```python
import torch

def _softmax(x, axis=-1):
    return torch.softmax(x, dim=axis)
def _gelu(x):
    return torch.nn.functional.gelu(x, approximate="tanh")
def _silu(x):
    return torch.nn.functional.silu(x)
def _sigmoid(x):
    return torch.sigmoid(x)
def _layernorm(x, axis=-1, eps=1e-5):
    m = x.mean(dim=axis, keepdim=True)
    v = x.var(dim=axis, keepdim=True, unbiased=False)
    return (x - m) / torch.sqrt(v + eps)
def _scatter_add(tgt, idx, src, axis=0):
    return tgt.clone().index_add_(axis, idx, src)
def _segment_sum(src, seg, n):
    out = torch.zeros((n,) + src.shape[1:], dtype=src.dtype)
    return out.index_add_(0, seg, src)
def _pad(x, pw):
    flat = tuple(v for pair in reversed(pw) for v in pair)
    return torch.nn.functional.pad(x, flat)

kernel_name = 'concat_heads__linear_attn_block__sliding_block__prompt'

def setup_inputs():

    _w = (lambda a: (lambda t: t.to(torch.bfloat16) if t.is_floating_point() else t)(torch.as_tensor(a)))
    def _A_setup():
        B, S, D = 1, 2048, 512
        return {
            "x": _w((lambda *s: torch.randn(*s, dtype=torch.bfloat16) * 0.05)(B, S, D)),
            "wqkv": _w((lambda *s: torch.randn(*s, dtype=torch.bfloat16) * 0.8)(D, 3 * D)),
            "wo": _w((lambda *s: torch.randn(*s, dtype=torch.bfloat16) * 0.8)(D, D)),
        }
    _A_in = _A_setup()

    def _B_setup():
        B, S, D = 1, 2048, 512
        return {
            "x": _w((lambda *s: torch.randn(*s, dtype=torch.bfloat16) * 0.2)(B, S, D)),
            "wqkv": _w((lambda *s: torch.randn(*s, dtype=torch.bfloat16) * 0.2)(D, 3 * D)),
            "wo": _w((lambda *s: torch.randn(*s, dtype=torch.bfloat16) * 0.05)(D, D)),
        }
    _B_in = _B_setup()

    return {
        "A_x": _A_in["x"],
        "A_wqkv": _A_in["wqkv"],
        "A_wo": _A_in["wo"],
        "B_x": _B_in["x"],
        "B_wqkv": _B_in["wqkv"],
        "B_wo": _B_in["wo"],
    }

def reference(A_x, A_wqkv, A_wo, B_x, B_wqkv, B_wo):
    def _A_ref(x, wqkv, wo):
        B, S, D = x.shape
        H = 32; Dh = D // H
        qkv = (lambda x, *d: x.permute(*d))((x @ wqkv).reshape(B, S, 3, H, Dh), 2, 0, 3, 1, 4)
        q, k, v = qkv[0], qkv[1], qkv[2]
        phi = lambda t: torch.where(t > 0, t + 1, torch.exp(t)) + 1e-6
        pq, pk = phi(q), phi(k)
        kv = torch.einsum("bhsd,bhse->bhde", pk, v)
        z = torch.einsum("bhsd->bhd", pk)
        num = torch.einsum("bhqd,bhde->bhqe", pq, kv)
        den = torch.einsum("bhqd,bhd->bhq", pq, z)[..., None] + 1e-6
        o = num / den
        return (lambda x, *d: x.permute(*d))(o, 0, 2, 1, 3).reshape(B, S, D) @ wo

    def _B_ref(x, wqkv, wo):
        B, S, D = x.shape
        H = 32; Dh = D // H; W = 256
        qkv = (lambda x, *d: x.permute(*d))((x @ wqkv).reshape(B, S, 3, H, Dh), 2, 0, 3, 1, 4)
        q, k, v = qkv[0], qkv[1], qkv[2]
        scores = torch.einsum("bhqd,bhkd->bhqk", q, k) * (Dh ** -0.5)
        idx = torch.arange(S)
        mask = (idx[:, None] - idx[None, :] >= 0) & (idx[:, None] - idx[None, :] < W)
        scores = torch.where(mask[None, None], scores, -1e9)
        p = _softmax(scores, axis=-1)
        o = torch.einsum("bhqk,bhkd->bhqd", p, v)
        return (lambda x, *d: x.permute(*d))(o, 0, 2, 1, 3).reshape(B, S, D) @ wo

    a = _A_ref(A_x, A_wqkv, A_wo)
    b = _B_ref(B_x, B_wqkv, B_wo)
    return torch.concatenate([a, b], axis=-1)
```

```python
import struct
def f2u(x): return struct.unpack("<I", struct.pack("<f", x))[0]

class Asm:
    def __init__(self):
        self.lines=[]
        self.uid=0
    def __call__(self, s):
        for l in s.strip("\n").split("\n"):
            self.lines.append("    "+l.strip() if not l.strip().endswith(":") else l.strip())
    def label(self, name): self.lines.append(name+":")
    def newlabel(self, p):
        self.uid+=1
        return f"{p}_{self.uid}"
    def c(self, s): self.lines.append("    ; "+s)
    def raw(self, s): self.lines.append(s)
    def text(self): return "\n".join(self.lines)+"\n"

def vr(a,n=1):
    return f"v{a}" if n==1 else f"v[{a}:{a+n-1}]"
def sr(a,n=1):
    return f"s{a}" if n==1 else f"s[{a}:{a+n-1}]"

def kdesc(name, vgpr, sgpr):
    acc=(vgpr+3)//4*4
    return f""".p2align 6
.amdhsa_kernel {name}
  .amdhsa_next_free_vgpr {vgpr}
  .amdhsa_next_free_sgpr {sgpr}
  .amdhsa_accum_offset {acc}
  .amdhsa_group_segment_fixed_size 0
  .amdhsa_kernarg_size 72
  .amdhsa_user_sgpr_count 2
  .amdhsa_user_sgpr_kernarg_segment_ptr 1
  .amdhsa_system_sgpr_workgroup_id_x 1
  .amdhsa_float_denorm_mode_32 3
.end_amdhsa_kernel
"""
```

```python
from asmlib import *
import math
QF=0; KF=2<<20; VF=4<<20; PQ=6<<20; OF=8<<20; KVP=12<<20; WS_USED=13<<20
LOG2E=math.log2(math.e)
CSCALE=0.25*LOG2E

def gen_k1(a, name, cfg):
    NS=cfg.get("k1_ns",3)
    LDF=cfg.get("k1_ldflags","")
    STF=cfg.get("k1_stflags","")
    XB=0; XS=16384; WB=NS*XS; WS_=24576
    a.raw(f".globl {name}\n.p2align 8\n.type {name},@function\n{name}:")
    sWAVE=20; sBR=21; sR=22; sG=23; sT=24; sT2=25
    SX=8; SW=12; SWS=16
    a(f"""
    s_cmp_ge_u32 s2, 256
    s_cbranch_scc1 {name}_end
    s_load_dwordx4 s[28:31], s[0:1], 0
    s_load_dwordx4 s[32:35], s[0:1], 24
    s_load_dwordx2 s[36:37], s[0:1], 64
    v_lshrrev_b32 v2, 6, v0
    v_and_b32 v1, 63, v0
    s_and_b32 s{sT}, s2, 7
    v_readfirstlane_b32 s{sWAVE}, v2
    s_lshr_b32 s{sT2}, s2, 3
    s_and_b32 s{sBR}, s{sT}, 1
    s_lshr_b32 s{sT}, s{sT}, 1
    s_lshl_b32 s{sT}, s{sT}, 2
    s_and_b32 s{sR}, s{sT2}, 3
    s_add_u32 s{sR}, s{sR}, s{sT}
    s_lshr_b32 s{sG}, s{sT2}, 2
    s_waitcnt lgkmcnt(0)
    s_cmp_eq_u32 s{sBR}, 0
    s_cselect_b32 s{SX}, s28, s32
    s_cselect_b32 s{SX+1}, s29, s33
    s_cselect_b32 s{SW}, s30, s34
    s_cselect_b32 s{SW+1}, s31, s35
    s_mov_b32 s{SX+2}, 0x200000
    s_mov_b32 s{SX+3}, 0x20000
    s_mov_b32 s{SW+2}, 0x180000
    s_mov_b32 s{SW+3}, 0x20000
    s_mov_b32 s{SWS}, s36
    s_mov_b32 s{SWS+1}, s37
    s_mov_b32 s{SWS+2}, {WS_USED}
    s_mov_b32 s{SWS+3}, 0x20000
    s_cmp_ge_u32 s{sWAVE}, 4
    s_cbranch_scc1 {name}_loader
    """)
    sTM=26; sFN=27
    vXA=4; vWA=8
    ACC=32
    def acc(tt,sec): return ACC+(tt*3+sec)*16
    FR=[128,148]
    def xf(s,tt): return FR[s]+4*tt
    def wf(s,sec): return FR[s]+8+4*sec
    a(f"""
    s_and_b32 s{sTM}, s{sWAVE}, 1
    s_lshr_b32 s{sFN}, s{sWAVE}, 1
    v_lshrrev_b32 v2, 5, v1                 ; hf
    v_and_b32 v3, 31, v1                    ; t31
    v_lshrrev_b32 v9, 1, v3
    v_and_b32 v9, 7, v9                     ; g
    s_lshl_b32 s{sT}, s{sTM}, 13            ; tm*64*128
    v_lshlrev_b32 v10, 7, v3                ; t31*128
    v_add_u32 v10, s{sT}, v10
    """)
    for ks in range(4):
        a(f"""
        v_or_b32 v11, {2*ks}, v2
        v_xor_b32 v11, v11, v9
        v_lshl_add_u32 v{vXA+ks}, v11, 4, v10
        """)
    if XB: raise Exception
    a(f"""
    v_bfe_u32 v10, v1, 2, 2                 ; (l&15)>>2
    v_lshlrev_b32 v10, 7, v10
    v_lshl_add_u32 v10, v2, 10, v10         ; + hf*1024
    v_bfe_u32 v11, v1, 4, 1
    v_lshlrev_b32 v11, 1, v11               ; 2*((l>>4)&1)
    v_bfe_u32 v12, v1, 1, 1                 ; (l&3)>>1
    v_or_b32 v11, v11, v12
    s_lshl_b32 s{sT}, s{sFN}, 2
    v_or_b32 v11, s{sT}, v11                ; c
    v_bfe_u32 v12, v1, 3, 1
    v_lshlrev_b32 v12, 2, v12
    v_xor_b32 v11, v11, v12                 ; c'
    v_lshl_add_u32 v10, v11, 4, v10
    v_and_b32 v12, 1, v1
    v_lshl_add_u32 v10, v12, 3, v10
    v_add_u32 v{vWA}, {WB}, v10
    """)
    for r in range(ACC,ACC+96): a(f"v_mov_b32 v{r}, 0")
    a(f"""
    s_mov_b32 s58, {(-(NS-1)*XS)&0xffffffff:#x}
    s_mov_b32 s59, {XS}
    s_mov_b32 s60, {(-(NS-1)*WS_)&0xffffffff:#x}
    s_mov_b32 s61, {WS_}
    """)

    def reads(s, ks):
        L=[]
        L.append(f"ds_read_b128 {vr(xf(s,0),4)}, v{vXA+ks}")
        L.append(f"ds_read_b64_tr_b16 {vr(wf(s,0),2)}, v{vWA} offset:{ks*2048}")
        L.append(f"ds_read_b64_tr_b16 {vr(wf(s,0)+2,2)}, v{vWA} offset:{ks*2048+512}")
        L.append(f"ds_read_b128 {vr(xf(s,1),4)}, v{vXA+ks} offset:4096")
        for sec in (1,2):
            L.append(f"ds_read_b64_tr_b16 {vr(wf(s,sec),2)}, v{vWA} offset:{sec*8192+ks*2048}")
            L.append(f"ds_read_b64_tr_b16 {vr(wf(s,sec)+2,2)}, v{vWA} offset:{sec*8192+ks*2048+512}")
        return L
    def mfmas(s, br):
        L=[]
        for sec in range(3):
            for tt in range(2):
                featrow = (sec==0) or (sec==1 and br==1)
                A_,B_ = (wf(s,sec),xf(s,tt)) if featrow else (xf(s,tt),wf(s,sec))
                L.append(f"v_mfma_f32_32x32x16_bf16 {vr(acc(tt,sec),16)}, {vr(A_,4)}, {vr(B_,4)}, {vr(acc(tt,sec),16)}")
        return L
    def step(s, br, rd):
        M=mfmas(s,br)
        if rd:
            a(M[0]); a(rd[0]); a(rd[1]); a(rd[2])
            a(M[1]); a(rd[3]); a(rd[4]); a(rd[5])
            a(M[2]); a(rd[6]); a(rd[7])
            a(M[3]); a(M[4]); a(M[5])
        else:
            for m in M: a(m)

    sCNT=38; sSTG=39; sDX=40; sDW=41
    for br in (0,1):
        bn="AB"[br]
        if br==0:
            a(f"s_cmp_eq_u32 s{sBR}, 1\ns_cbranch_scc1 {name}_cB")
        else:
            a.label(f"{name}_cB")
        a(f"s_mov_b32 s{sCNT}, 0\ns_mov_b32 s{sSTG}, 0")
        a("s_barrier")
        for l in reads(0,0): a(l)
        a.label(f"{name}_loop{bn}")
        for ks in range(3):
            a("s_waitcnt lgkmcnt(0)")
            step(ks&1, br, reads((ks+1)&1, ks+1))
        a(f"""
        s_add_u32 s{sSTG}, s{sSTG}, 1
        s_cmp_eq_u32 s{sSTG}, {NS}
        s_cselect_b32 s{sDX}, s58, s59
        s_cselect_b32 s{sDW}, s60, s61
        s_cselect_b32 s{sSTG}, 0, s{sSTG}
        s_waitcnt lgkmcnt(0)
        s_barrier
        """)
        for ks in range(4): a(f"v_add_u32 v{vXA+ks}, s{sDX}, v{vXA+ks}")
        a(f"v_add_u32 v{vWA}, s{sDW}, v{vWA}")
        step(1, br, reads(0,0))
        a(f"""
        s_add_u32 s{sCNT}, s{sCNT}, 1
        s_cmp_lt_u32 s{sCNT}, 7
        s_cbranch_scc1 {name}_loop{bn}
        """)
        for ks in range(3):
            a("s_waitcnt lgkmcnt(0)")
            step(ks&1, br, reads((ks+1)&1, ks+1))
        a("s_waitcnt lgkmcnt(0)")
        step(1, br, [])
        T0=128
        sOFF=42; sH=43; sTB=44
        a(f"""
        s_lshl_b32 s{sH}, s{sG}, 2
        s_lshl_b32 s{sT}, s{sFN}, 1
        s_add_u32 s{sH}, s{sH}, s{sT}          ; h0 = 4G+2fn
        s_lshl_b32 s{sTB}, s{sR}, 2
        s_lshl_b32 s{sT}, s{sTM}, 1
        s_add_u32 s{sTB}, s{sTB}, s{sT}
        s_lshl_b32 s{sOFF}, s{sH}, 16
        s_lshl_b32 s{sT}, s{sTB}, 10
        s_add_u32 s{sOFF}, s{sOFF}, s{sT}      ; (h0*64+tb0)*1024
        v_lshlrev_b32 v9, 4, v1                ; lane*16
        """)
        if br==1:
            a(f"s_mov_b32 s46, {f2u(CSCALE):#x}\ns_mov_b32 s47, {f2u(CSCALE):#x}")
            a(f"""
            v_bfe_u32 v10, v1, 4, 1
            v_lshlrev_b32 v10, 16, v10
            v_lshrrev_b32 v11, 5, v1
            v_lshl_add_u32 v10, v11, 8, v10
            v_and_b32 v11, 15, v1
            v_lshl_add_u32 v10, v11, 4, v10
            s_nop 7
            """)
            tmp=T0
            for tt in range(2):
                b=acc(tt,0)
                for i in range(8):
                    a(f"v_pk_mul_f32 {vr(b+2*i,2)}, {vr(b+2*i,2)}, s[46:47]")
                for i in range(8):
                    a(f"v_cvt_pk_bf16_f32 v{tmp+i}, v{b+2*i}, v{b+2*i+1}")
                a(f"s_add_u32 s{sT}, s{sOFF}, {QF+tt*1024}")
                a(f"buffer_store_dwordx4 {vr(tmp,4)}, v9, s[{SWS}:{SWS+3}], s{sT} offen {STF}")
                a(f"s_add_u32 s{sT2}, s{sOFF}, {QF+tt*1024+65536}")
                a(f"buffer_store_dwordx4 {vr(tmp+4,4)}, v9, s[{SWS}:{SWS+3}], s{sT2} offen {STF}")
                tmp = T0+8 if tmp==T0 else T0
            tmp=T0+16
            for tt in range(2):
                b=acc(tt,1)
                for i in range(8):
                    a(f"v_cvt_pk_bf16_f32 v{tmp+i}, v{b+2*i}, v{b+2*i+1}")
                a(f"s_add_u32 s{sT}, s{sOFF}, {KF+tt*1024}")
                a(f"buffer_store_dwordx4 {vr(tmp,4)}, v9, s[{SWS}:{SWS+3}], s{sT} offen {STF}")
                a(f"s_add_u32 s{sT2}, s{sOFF}, {KF+tt*1024+65536}")
                a(f"buffer_store_dwordx4 {vr(tmp+4,4)}, v9, s[{SWS}:{SWS+3}], s{sT2} offen {STF}")
                tmp = T0+24
            tmp=T0
            for tt in range(2):
                b=acc(tt,2)
                for i in range(8):
                    a(f"v_cvt_pk_bf16_f32 v{tmp+i}, v{b+2*i}, v{b+2*i+1}")
                a(f"s_add_u32 s{sT}, s{sOFF}, {VF+tt*1024}")
                a(f"buffer_store_dwordx4 {vr(tmp,4)}, v10, s[{SWS}:{SWS+3}], s{sT} offen {STF}")
                a(f"buffer_store_dwordx4 {vr(tmp+4,4)}, v10, s[{SWS}:{SWS+3}], s{sT} offen offset:512 {STF}")
                tmp = T0+8
            a("s_endpgm")
        else:
            a(f"""
            s_mov_b32 s46, {f2u(LOG2E):#x}
            s_mov_b32 s47, {f2u(LOG2E):#x}
            s_mov_b32 s48, 1.0
            s_mov_b32 s49, 1.0
            s_mov_b32 s50, {f2u(1e-6):#x}
            s_mov_b32 s51, {f2u(1e-6):#x}
            s_mov_b32 s52, 0x0000ffff
            s_mov_b32 s53, 0x0000ffff
            v_mov_b32 v20, 0x3f803f80
            v_mov_b32 v21, 0x3f803f80
            v_mov_b32 v22, 0x3f803f80
            v_mov_b32 v23, 0x3f803f80
            s_nop 4
            """)
            U=168
            def phi(b):
                for i in range(8): a(f"v_pk_mul_f32 {vr(U+2*i,2)}, {vr(b+2*i,2)}, s[46:47]")
                for i in range(16): a(f"v_exp_f32 v{U+i}, v{U+i} clamp")
                for i in range(8): a(f"v_pk_add_f32 {vr(b+2*i,2)}, {vr(b+2*i,2)}, s[48:49]")
                for i in range(16): a(f"v_max_f32 v{b+i}, v{b+i}, v{U+i}")
                for i in range(8): a(f"v_pk_add_f32 {vr(b+2*i,2)}, {vr(b+2*i,2)}, s[50:51]")
            PK=[128,136]; VV=[144,152]; D=184; D2=200
            for tt in range(2):
                b=acc(tt,2)
                for i in range(8): a(f"v_cvt_pk_bf16_f32 v{VV[tt]+i}, v{b+2*i}, v{b+2*i+1}")
            for tt in range(2):
                b=acc(tt,1)
                phi(b)
                for i in range(8): a(f"v_cvt_pk_bf16_f32 v{PK[tt]+i}, v{b+2*i}, v{b+2*i+1}")
                a("s_nop 1")
                for m in range(2):
                    c1 = "0" if (tt==0 and m==0) else vr(D,16)
                    c2 = "0" if (tt==0 and m==0) else vr(D2,16)
                    a(f"v_mfma_f32_32x32x16_bf16 {vr(D,16)}, {vr(PK[tt]+4*m,4)}, {vr(VV[tt]+4*m,4)}, {c1}")
                    a(f"v_mfma_f32_32x32x16_bf16 {vr(D2,16)}, {vr(PK[tt]+4*m,4)}, v[20:23], {c2}")
            tmp=160
            for tt in range(2):
                b=acc(tt,0)
                phi(b)
                for i in range(8): a(f"v_cvt_pk_bf16_f32 v{tmp+i}, v{b+2*i}, v{b+2*i+1}")
                a(f"s_add_u32 s{sT}, s{sOFF}, {PQ+tt*1024}")
                a(f"buffer_store_dwordx4 {vr(tmp,4)}, v9, s[{SWS}:{SWS+3}], s{sT} offen {STF}")
                a(f"s_add_u32 s{sT2}, s{sOFF}, {PQ+tt*1024+65536}")
                a(f"buffer_store_dwordx4 {vr(tmp+4,4)}, v9, s[{SWS}:{SWS+3}], s{sT2} offen {STF}")
                tmp=216
            for r in range(8):  a(f"v_cndmask_b32_e64 v{D+r}, v{D2+r}, v{D+r}, s[52:53]")
            for r in range(8,16): a(f"v_cndmask_b32_e64 v{D+r}, v{D+r}, v{D2+r}, s[52:53]")
            st7=7%NS
            EX = WB + ((st7+1)%NS)*WS_
            a(f"""
            s_lshl_b32 s{sT}, s{sFN}, 12
            s_add_u32 s{sT}, s{sT}, {EX}
            v_add_u32 v10, s{sT}, v9
            s_cmp_eq_u32 s{sTM}, 0
            s_cbranch_scc1 {name}_Ared
            """)
            for q in range(4): a(f"ds_write_b128 v10, {vr(D+4*q,4)} offset:{q*1024}")
            a(f"s_waitcnt lgkmcnt(0)\ns_barrier\ns_endpgm")
            a.label(f"{name}_Ared")
            a("s_barrier")
            for q in range(4): a(f"ds_read_b128 {vr(D2+4*q,4)}, v10 offset:{q*1024}")
            a(f"""
            v_and_b32 v11, 31, v1                  ; idx
            v_lshrrev_b32 v12, 5, v1               ; hf
            v_and_b32 v13, 15, v1
            v_lshlrev_b32 v13, 5, v13
            v_lshl_add_u32 v13, v12, 9, v13
            v_lshlrev_b32 v14, 5, v12
            v_add_u32 v14, 1024, v14               ; 1024 + hf*32
            v_mov_b32 v15, 0x40000000
            v_cmp_eq_u32 s[54:55], 16, v11
            v_cmp_eq_u32 s[56:57], 0, v11
            s_nop 1
            v_cndmask_b32_e64 v16, v15, v14, s[54:55]
            v_cndmask_b32_e64 v17, v15, v14, s[56:57]
            v_cndmask_b32_e64 v16, v16, v13, s[52:53]
            v_cndmask_b32_e64 v17, v13, v17, s[52:53]
            s_lshl_b32 s{sT}, s{sH}, 4
            s_add_u32 s{sT}, s{sT}, s{sR}
            s_mul_i32 s{sT}, s{sT}, 1088
            s_add_u32 s{sT}, s{sT}, {KVP}
            s_add_u32 s{sT2}, s{sT}, {16*1088}
            s_waitcnt lgkmcnt(0)
            """)
            for i in range(8): a(f"v_pk_add_f32 {vr(D+2*i,2)}, {vr(D+2*i,2)}, {vr(D2+2*i,2)}")
            a(f"""
            buffer_store_dwordx4 {vr(D,4)}, v16, s[{SWS}:{SWS+3}], s{sT} offen {STF}
            buffer_store_dwordx4 {vr(D+4,4)}, v16, s[{SWS}:{SWS+3}], s{sT} offen offset:16 {STF}
            buffer_store_dwordx4 {vr(D+8,4)}, v17, s[{SWS}:{SWS+3}], s{sT2} offen {STF}
            buffer_store_dwordx4 {vr(D+12,4)}, v17, s[{SWS}:{SWS+3}], s{sT2} offen offset:16 {STF}
            s_endpgm
            """)
    a.label(f"{name}_loader")
    sE=26; sXB=27; sWBs=38; sL=39
    a(f"""
    s_sub_u32 s{sE}, s{sWAVE}, 4
    v_lshrrev_b32 v2, 3, v1                 ; r
    v_and_b32 v3, 7, v1                     ; p
    v_lshrrev_b32 v4, 1, v2                 ; r>>1
    s_and_b32 s{sT}, s{sE}, 1
    s_lshl_b32 s{sT}, s{sT}, 2
    v_or_b32 v4, s{sT}, v4                  ; g
    v_xor_b32 v4, v4, v3
    v_lshlrev_b32 v5, 10, v2
    v_lshl_add_u32 v5, v4, 4, v5            ; x voffset
    v_bfe_u32 v4, v1, 4, 1
    v_lshlrev_b32 v4, 2, v4
    v_xor_b32 v4, v4, v3
    v_mul_u32_u24 v6, 3072, v2
    v_lshl_add_u32 v6, v4, 4, v6            ; w voffset
    s_lshl_b32 s{sXB}, s{sR}, 17
    s_lshl_b32 s{sT}, s{sE}, 13
    s_add_u32 s{sXB}, s{sXB}, s{sT}
    s_lshl_b32 s{sWBs}, s{sG}, 7
    s_mul_i32 s{sT}, s{sE}, 24576
    s_add_u32 s{sWBs}, s{sWBs}, s{sT}
    s_lshl_b32 s{sL}, s{sE}, 10
    """)
    def issue(c):
        st=c%NS
        for i in range(4):
            a(f"s_add_u32 m0, s{sL}, {XB+st*XS+i*4096}")
            a(f"s_add_u32 s{sT}, s{sXB}, {i*32768+c*128}")
            a(f"buffer_load_dwordx4 v5, s[{SX}:{SX+3}], s{sT} offen {LDF} lds")
        for jj in range(2):
            for sec in range(3):
                a(f"s_add_u32 m0, s{sL}, {WB+st*WS_+sec*8192+jj*4096}")
                a(f"s_add_u32 s{sT}, s{sWBs}, {c*196608+jj*4*24576+sec*1024}")
                a(f"buffer_load_dwordx4 v6, s[{SW}:{SW+3}], s{sT} offen {LDF} lds")
    for c in range(NS): issue(c)
    a(f"s_waitcnt vmcnt({10*(NS-1)})\ns_barrier")
    for c in range(7):
        issued=min(8,c+NS)
        rem=issued-(c+2)
        a(f"s_waitcnt vmcnt({10*rem})\ns_barrier")
        if c+NS<8: issue(c+NS)
    a.label(f"{name}_end")
    a("s_endpgm")
    lds=NS*40960
    return dict(name=name, grid=256, block=512, lds=lds, vgpr=232, sgpr=64)
```

```python
from asmlib import *
from k1 import QF,KF,VF,PQ,OF,KVP,WS_USED
NEGBIG=-1.0e30

def diag_mask(r):
    m=0
    for l in range(64):
        b=8*(r>>2)+4*(l>>5)+(r&3)
        if b<=(l&31): m|=1<<l
    return m

def gen_k2(a, name, cfg):
    LDF=cfg.get("k2_ldflags","")
    STF=cfg.get("k2_stflags","")
    KL=0; VL=16384; KVL=32768; RED=KVL+17408; ONES=((RED+1088+255)//256)*256
    LDS=ONES+9216
    a.raw(f".globl {name}\n.p2align 8\n.type {name},@function\n{name}:")
    SWS=8
    sWAVE=20; sRB=21; sH=22; sQB=23; sT=24; sT2=25; sTMIN=26; sBASE=27
    MASK=32
    a(f"""
    s_cmp_ge_u32 s2, 256
    s_cbranch_scc1 {name}_end
    s_load_dwordx2 s[4:5], s[0:1], 64
    v_lshrrev_b32 v2, 6, v0
    v_and_b32 v1, 63, v0
    s_and_b32 s{sRB}, s2, 7
    v_readfirstlane_b32 s{sWAVE}, v2
    s_lshr_b32 s{sH}, s2, 3
    v_lshlrev_b32 v3, 4, v1                   ; lane*16
    s_lshl_b32 s{sQB}, s{sRB}, 3
    s_add_u32 s{sQB}, s{sQB}, s{sWAVE}        ; qb
    s_waitcnt lgkmcnt(0)
    s_mov_b32 s{SWS}, s4
    s_mov_b32 s{SWS+1}, s5
    s_mov_b32 s{SWS+2}, {WS_USED}
    s_mov_b32 s{SWS+3}, 0x20000
    """)
    a(f"""
    s_mul_i32 s{sBASE}, s{sH}, 17408
    s_add_u32 s{sBASE}, s{sBASE}, {KVP}
    s_cmp_lg_u32 s{sWAVE}, 0
    s_cbranch_scc1 {name}_nokv16
    s_mov_b32 m0, {KVL+16*1024}
    s_add_u32 s{sT}, s{sBASE}, {16*1024}
    buffer_load_dwordx4 v3, s[{SWS}:{SWS+3}], s{sT} offen {LDF} lds
    {name}_nokv16:
    s_lshl_b32 s{sT2}, s{sWAVE}, 10
    s_add_u32 m0, s{sT2}, {KVL}
    s_add_u32 s{sT}, s{sBASE}, s{sT2}
    buffer_load_dwordx4 v3, s[{SWS}:{SWS+3}], s{sT} offen {LDF} lds
    s_add_u32 m0, s{sT2}, {KVL+8192}
    s_add_u32 s{sT}, s{sT}, 8192
    buffer_load_dwordx4 v3, s[{SWS}:{SWS+3}], s{sT} offen {LDF} lds
    """)
    vQ=4; vPQ=8
    a(f"""
    s_lshl_b32 s{sBASE}, s{sH}, 16            ; h*65536
    s_lshl_b32 s{sT}, s{sQB}, 10
    s_add_u32 s{sT}, s{sT}, s{sBASE}
    s_add_u32 s{sT2}, s{sT}, {PQ}
    buffer_load_dwordx4 {vr(vPQ,4)}, v3, s[{SWS}:{SWS+3}], s{sT2} offen {LDF}
    s_add_u32 s{sT2}, s{sT}, {QF}
    buffer_load_dwordx4 {vr(vQ,4)}, v3, s[{SWS}:{SWS+3}], s{sT2} offen {LDF}
    """)
    for u in range(2):
        a(f"""
        s_lshl_b32 s{sT}, s{sWAVE}, 1
        s_add_u32 s{sT}, s{sT}, {u}              ; slot
        s_lshl_b32 s{sT2}, s{sRB}, 3
        s_add_u32 s{sT2}, s{sT2}, s{sT}
        s_sub_i32 s{sT2}, s{sT2}, 8
        s_max_i32 s{sT2}, s{sT2}, 0              ; tile
        s_lshl_b32 s{sT2}, s{sT2}, 10
        s_add_u32 s{sT2}, s{sT2}, s{sBASE}
        s_lshl_b32 s{sT}, s{sT}, 10
        s_add_u32 m0, s{sT}, {KL}
        s_add_u32 s28, s{sT2}, {KF}
        buffer_load_dwordx4 v3, s[{SWS}:{SWS+3}], s28 offen {LDF} lds
        s_add_u32 m0, s{sT}, {VL}
        s_add_u32 s28, s{sT2}, {VF}
        buffer_load_dwordx4 v3, s[{SWS}:{SWS+3}], s28 offen {LDF} lds
        """)
    a(f"""
    v_mov_b32 v12, 0x3f803f80
    v_mov_b32 v13, 0x3f803f80
    v_mov_b32 v14, 0x3f803f80
    v_mov_b32 v15, 0x3f803f80
    s_lshl_b32 s{sT}, s{sWAVE}, 10
    s_add_u32 s{sT}, s{sT}, {ONES}
    v_add_u32 v16, s{sT}, v3
    ds_write_b128 v16, v[12:15]
    v_add_u32 v16, {ONES+8192}, v3
    ds_write_b128 v16, v[12:15]
    """)
    for r in range(16):
        m=diag_mask(r)
        a(f"s_mov_b32 s{MASK+2*r}, {m&0xffffffff:#x}\ns_mov_b32 s{MASK+2*r+1}, {m>>32:#x}")
    PM=16
    a("v_mov_b32 v24, 0xffff\nv_mov_b32 v25, 0xffff0000")
    for i in range(8):
        a(f"v_cndmask_b32_e64 v{PM+i}, 0, v24, s[{MASK+4*i}:{MASK+4*i+1}]")
        a(f"v_cndmask_b32_e64 v26, 0, v25, s[{MASK+4*i+2}:{MASK+4*i+3}]")
        a(f"v_or_b32 v{PM+i}, v{PM+i}, v26")
    vKA=24; vVA=25; vKVA=26; vRA=27
    a(f"""
    s_lshl_b32 s{sT}, s{sWAVE}, 10
    s_add_u32 s{sT2}, s{sT}, {KL}
    v_add_u32 v{vKA}, s{sT2}, v3
    v_and_b32 v28, 31, v1                     ; idx
    v_lshrrev_b32 v29, 5, v1                  ; hf
    v_lshlrev_b32 v30, 4, v28
    v_lshl_add_u32 v30, v29, 8, v30
    s_add_u32 s{sT2}, s{sT}, {VL}
    v_add_u32 v30, s{sT2}, v30
    v_subrev_u32 v31, 20, v28
    v_cmp_gt_u32 vcc, 8, v31
    v_mov_b32 v31, {ONES}
    v_mov_b32 v12, {ONES+64}
    v_cndmask_b32_e64 v31, v31, v12, vcc
    v_cmp_gt_u32 vcc, 16, v28
    s_nop 1
    v_cndmask_b32_e64 v{vVA}, v31, v30, vcc
    v_lshlrev_b32 v30, 5, v28
    v_lshl_add_u32 v30, v29, 9, v30
    v_lshlrev_b32 v31, 5, v29
    v_add_u32 v31, 1024, v31
    v_cndmask_b32_e64 v{vKVA}, v31, v30, vcc
    v_add_u32 v{vKVA}, {RED}, v{vKVA}
    ; tmin
    s_sub_u32 s{sTMIN}, 8, s{sWAVE}
    s_cmp_eq_u32 s{sRB}, 0
    s_cselect_b32 s{sTMIN}, s{sTMIN}, 1
    v_lshlrev_b32 v{vRA}, 2, v0               ; tid*4
    """)
    a(f"""
    s_waitcnt vmcnt(6) lgkmcnt(0)
    s_barrier
    v_cmp_gt_u32 vcc, 272, v0
    s_and_saveexec_b64 s[28:29], vcc
    s_cbranch_execz {name}_nored
    """)
    RT=32
    for p in range(12):
        a(f"ds_read_b32 v{RT+p}, v{vRA} offset:{KVL+p*1088}")
    for p in range(1,4):
        a(f"s_waitcnt lgkmcnt({11-p})")
        a(f"v_add_f32 v{RT}, v{RT}, v{RT+p}")
    for p in range(12,16):
        a(f"ds_read_b32 v{RT+p}, v{vRA} offset:{KVL+p*1088}")
    for p in range(4,16):
        a(f"s_waitcnt lgkmcnt({15-p})")
        a(f"v_add_f32 v{RT}, v{RT}, v{RT+p}")
    a(f"""
    ds_write_b32 v{vRA}, v{RT} offset:{RED}
    {name}_nored:
    s_mov_b64 exec, s[28:29]
    s_waitcnt vmcnt(0) lgkmcnt(0)
    s_barrier
    """)
    KFr=32
    SA,SB,SC,SD=68,84,100,116
    M=132; NEG=148; O=164; P=180; P2=188; VA=196; VB=204; OA=212; TMP=228
    def kf(t): return KFr+4*t
    a(f"""
    ds_read_b128 {vr(TMP,4)}, v{vKVA}
    ds_read_b128 {vr(TMP+4,4)}, v{vKVA} offset:16
    """)
    for t in (0,8,7,6,5,4,3,2,1):
        a(f"ds_read_b128 {vr(kf(t),4)}, v{vKA} offset:{t*1024}")
    a("s_waitcnt lgkmcnt(9)")
    for i in range(4): a(f"v_cvt_pk_bf16_f32 v{TMP+8+i}, v{TMP+2*i}, v{TMP+2*i+1}")
    a(f"s_waitcnt lgkmcnt(5)\ns_nop 1")
    a(f"v_mfma_f32_32x32x16_bf16 {vr(OA,16)}, {vr(TMP+8,4)}, {vr(vPQ,4)}, 0")
    lab0=f"{name}_rb0a"; lab1=f"{name}_rb0b"
    a(f"""
    s_cmp_eq_u32 s{sRB}, 0
    s_cbranch_scc1 {lab0}
    v_mfma_f32_32x32x16_bf16 {vr(SA,16)}, {vr(kf(0),4)}, {vr(vQ,4)}, 0
    s_branch {lab1}
    {lab0}:
    """)
    for r in range(16): a(f"v_mov_b32 v{SA+r}, {f2u(NEGBIG):#x}")
    a.label(lab1)
    a(f"""
    v_mfma_f32_32x32x16_bf16 {vr(SB,16)}, {vr(kf(8),4)}, {vr(vQ,4)}, 0
    v_mfma_f32_32x32x16_bf16 {vr(SC,16)}, {vr(kf(7),4)}, {vr(vQ,4)}, 0
    v_mfma_f32_32x32x16_bf16 {vr(SD,16)}, {vr(kf(6),4)}, {vr(vQ,4)}, 0
    s_nop 7
    """)
    a(f"""
    v_add_f32 v{OA+8}, {f2u(1e-6):#x}, v{OA+8}
    s_lshl_b32 s{sT}, s{sQB}, 5
    s_add_u32 s{sT}, s{sT}, s{sH}
    v_rcp_f32 v{OA+8}, v{OA+8}
    s_lshl_b32 s{sT}, s{sT}, 10
    s_add_u32 s{sBASE}, s{sT}, {OF}
    """)
    for r in range(8): a(f"v_mul_f32 v{OA+r}, v{OA+r}, v{OA+8}")
    for i in range(4): a(f"v_cvt_pk_bf16_f32 v{TMP+i}, v{OA+2*i}, v{OA+2*i+1}")
    a(f"buffer_store_dwordx4 {vr(TMP,4)}, v3, s[{SWS}:{SWS+3}], s{sBASE} offen {STF}")
    MX=28
    for r in range(16):
        a(f"v_cndmask_b32_e64 v{M+r}, v{SA+r}, v{SB+r}, s[{MASK+2*r}:{MASK+2*r+1}]")
    a(f"v_max3_f32 v{MX}, v{M}, v{M+1}, v{M+2}")
    for r in range(3,15,2): a(f"v_max3_f32 v{MX}, v{MX}, v{M+r}, v{M+r+1}")
    a(f"v_max_f32 v{MX}, v{MX}, v{M+15}")
    def maxtile(S):
        for r in range(0,16,2): a(f"v_max3_f32 v{MX}, v{MX}, v{S+r}, v{S+r+1}")
    P1E=f"{name}_p1end"
    def chk(t,lab):
        a(f"s_cmp_gt_u32 s{sTMIN}, {t}\ns_cbranch_scc1 {lab}")
    a("s_waitcnt lgkmcnt(0)")
    chk(7,P1E)
    a(f"v_mfma_f32_32x32x16_bf16 {vr(SA,16)}, {vr(kf(5),4)}, {vr(vQ,4)}, 0")
    a(f"v_mfma_f32_32x32x16_bf16 {vr(SB,16)}, {vr(kf(4),4)}, {vr(vQ,4)}, 0")
    maxtile(SC); chk(6,P1E); maxtile(SD); chk(5,P1E)
    a(f"v_mfma_f32_32x32x16_bf16 {vr(SC,16)}, {vr(kf(3),4)}, {vr(vQ,4)}, 0")
    a(f"v_mfma_f32_32x32x16_bf16 {vr(SD,16)}, {vr(kf(2),4)}, {vr(vQ,4)}, 0")
    maxtile(SA); chk(4,P1E); maxtile(SB); chk(3,P1E)
    a(f"v_mfma_f32_32x32x16_bf16 {vr(SA,16)}, {vr(kf(1),4)}, {vr(vQ,4)}, 0")
    maxtile(SC); chk(2,P1E); maxtile(SD); chk(1,P1E)
    a("s_nop 1")
    maxtile(SA)
    a.label(P1E)
    a(f"""
    v_mov_b32 v29, v{MX}
    s_nop 1
    v_permlane32_swap_b32 v29, v{MX}
    s_nop 1
    v_max_f32 v{MX}, v{MX}, v29
    v_sub_f32 v{NEG}, 0, v{MX}
    """)
    for r in range(1,16): a(f"v_mov_b32 v{NEG+r}, v{NEG}")
    def vreads(t,V):
        a(f"ds_read_b128 {vr(V,4)}, v{vVA} offset:{t*1024}")
        a(f"ds_read_b128 {vr(V+4,4)}, v{vVA} offset:{t*1024+512}")
    vreads(8,VA); vreads(0,VB)
    a(f"v_mfma_f32_32x32x16_bf16 {vr(SC,16)}, {vr(kf(7),4)}, {vr(vQ,4)}, {vr(NEG,16)}")
    for i in range(8): a(f"v_pk_add_f32 {vr(M+2*i,2)}, {vr(M+2*i,2)}, {vr(NEG,2)}")
    for r in range(16): a(f"v_exp_f32 v{M+r}, v{M+r}")
    a("s_nop 0")
    for i in range(8): a(f"v_cvt_pk_bf16_f32 v{P+i}, v{M+2*i}, v{M+2*i+1}")
    for i in range(8): a(f"v_and_b32 v{P2+i}, v{P+i}, v{PM+i}")
    for i in range(8): a(f"v_xor_b32 v{P+i}, v{P+i}, v{P2+i}")
    a("s_waitcnt lgkmcnt(0)")
    a(f"v_mfma_f32_32x32x16_bf16 {vr(O,16)}, {vr(VA,4)}, {vr(P2,4)}, 0")
    a(f"v_mfma_f32_32x32x16_bf16 {vr(O,16)}, {vr(VA+4,4)}, {vr(P2+4,4)}, {vr(O,16)}")
    lab=f"{name}_skip0"
    a(f"s_cmp_eq_u32 s{sRB}, 0\ns_cbranch_scc1 {lab}")
    a(f"v_mfma_f32_32x32x16_bf16 {vr(O,16)}, {vr(VB,4)}, {vr(P,4)}, {vr(O,16)}")
    a(f"v_mfma_f32_32x32x16_bf16 {vr(O,16)}, {vr(VB+4,4)}, {vr(P+4,4)}, {vr(O,16)}")
    a.label(lab)
    P2E=f"{name}_p2end"
    bufs=[SC,SD]
    Vb=[VA,VB]; Pb=[P,P2]
    for n,t in enumerate(range(7,0,-1)):
        S=bufs[n&1]; Sn=bufs[(n+1)&1]; V=Vb[n&1]; Pp=Pb[n&1]
        chk(t,P2E)
        vreads(t,V)
        if t>1:
            a(f"v_mfma_f32_32x32x16_bf16 {vr(Sn,16)}, {vr(kf(t-1),4)}, {vr(vQ,4)}, {vr(NEG,16)}")
        for r in range(16): a(f"v_exp_f32 v{S+r}, v{S+r}")
        a("s_nop 0")
        for i in range(8): a(f"v_cvt_pk_bf16_f32 v{Pp+i}, v{S+2*i}, v{S+2*i+1}")
        a("s_waitcnt lgkmcnt(0)")
        a(f"v_mfma_f32_32x32x16_bf16 {vr(O,16)}, {vr(V,4)}, {vr(Pp,4)}, {vr(O,16)}")
        a(f"v_mfma_f32_32x32x16_bf16 {vr(O,16)}, {vr(V+4,4)}, {vr(Pp+4,4)}, {vr(O,16)}")
    a.label(P2E)
    a(f"""
    s_nop 15
    v_rcp_f32 v{O+8}, v{O+8}
    s_add_u32 s{sBASE}, s{sBASE}, {64*32*1024}
    s_nop 0
    """)
    for r in range(8): a(f"v_mul_f32 v{O+r}, v{O+r}, v{O+8}")
    for i in range(4): a(f"v_cvt_pk_bf16_f32 v{TMP+i}, v{O+2*i}, v{O+2*i+1}")
    a(f"buffer_store_dwordx4 {vr(TMP,4)}, v3, s[{SWS}:{SWS+3}], s{sBASE} offen {STF}")
    a.label(f"{name}_end")
    a("s_endpgm")
    return dict(name=name, grid=256, block=512, lds=LDS, vgpr=240, sgpr=72)
```

```python
from asmlib import *
from k1 import QF,KF,VF,PQ,OF,KVP,WS_USED

def gen_k3(a, name, cfg):
    LDF=cfg.get("k3_ldflags","")
    WF=cfg.get("k3_wflags","")
    STF=cfg.get("k3_stflags","")
    a.raw(f".globl {name}\n.p2align 8\n.type {name},@function\n{name}:")
    SWO=8; SWS=12; SOUT=16
    sWAVE=20; sJ=21; sBR=22; sHALF=23; sNS=24; sT=25; sT2=26; sTB=27; sOB=28; sWQ=29; sL=30
    a(f"""
    s_cmp_ge_u32 s2, 256
    s_cbranch_scc1 {name}_end
    s_load_dwordx2 s[4:5], s[0:1], 16
    s_load_dwordx2 s[6:7], s[0:1], 40
    s_load_dwordx4 s[32:35], s[0:1], 48
    s_load_dwordx2 s[36:37], s[0:1], 64
    v_lshrrev_b32 v2, 6, v0
    v_and_b32 v1, 63, v0
    s_and_b32 s{sJ}, s2, 7
    v_readfirstlane_b32 s{sWAVE}, v2
    s_lshr_b32 s{sT}, s2, 3
    s_and_b32 s{sBR}, s{sT}, 1
    s_bfe_u32 s{sHALF}, s{sT}, 0x10001
    s_lshr_b32 s{sNS}, s{sT}, 2
    v_lshlrev_b32 v3, 4, v1                    ; lane*16
    s_lshl_b32 s{sTB}, s{sJ}, 3
    s_lshl_b32 s{sT}, s{sHALF}, 2
    s_add_u32 s{sTB}, s{sTB}, s{sT}
    s_add_u32 s{sTB}, s{sTB}, s{sWAVE}
    s_lshl_b32 s{sT}, s{sBR}, 6
    s_add_u32 s{sT}, s{sT}, s{sTB}
    s_lshl_b32 s{sOB}, s{sT}, 15
    s_add_u32 s{sOB}, s{sOB}, {OF}
    v_lshrrev_b32 v4, 3, v1
    v_and_b32 v5, 7, v1
    v_bfe_u32 v6, v1, 4, 1
    v_lshlrev_b32 v6, 2, v6
    v_xor_b32 v5, v5, v6
    v_lshlrev_b32 v4, 10, v4
    v_lshl_add_u32 v4, v5, 4, v4
    s_lshl_b32 s{sWQ}, s{sNS}, 7
    s_lshl_b32 s{sT}, s{sWAVE}, 13
    s_add_u32 s{sWQ}, s{sWQ}, s{sT}            ; ns*128 + w*8192
    s_lshl_b32 s{sL}, s{sWAVE}, 10
    s_waitcnt lgkmcnt(0)
    s_cmp_eq_u32 s{sBR}, 0
    s_cselect_b32 s{SWO}, s4, s6
    s_cselect_b32 s{SWO+1}, s5, s7
    s_mov_b32 s{SWO+2}, 0x80000
    s_mov_b32 s{SWO+3}, 0x20000
    s_mov_b32 s{SWS}, s36
    s_mov_b32 s{SWS+1}, s37
    s_mov_b32 s{SWS+2}, {WS_USED}
    s_mov_b32 s{SWS+3}, 0x20000
    s_mov_b32 s{SOUT}, s32
    s_mov_b32 s{SOUT+1}, s33
    s_mov_b32 s{SOUT+2}, 0x400000
    s_mov_b32 s{SOUT+3}, 0x20000
    """)
    OFR=64
    ACC=32
    WFR=[8,16]
    vWA=5
    def group(g):
        L=[]
        for u in range(4):
            q=16*g+4*u
            L.append(f"s_add_u32 m0, s{sL}, {q*1024}\ns_add_u32 s{sT}, s{sWQ}, {q*8192}\nbuffer_load_dwordx4 v4, s[{SWO}:{SWO+3}], s{sT} offen {WF} lds")
        for h in range(8*g,8*g+8):
            L.append(f"s_add_u32 s{sT2}, s{sOB}, {h*1024}\nbuffer_load_dwordx4 {vr(OFR+4*h,4)}, v3, s[{SWS}:{SWS+3}], s{sT2} offen {LDF}")
        return L
    for l in group(0): a(l)
    for l in group(1): a(l)
    a(f"""
    v_bfe_u32 v6, v1, 2, 2
    v_lshrrev_b32 v7, 5, v1
    v_lshl_add_u32 v6, v7, 2, v6               ; 4hf + r
    v_lshlrev_b32 v6, 7, v6                    ; *128
    v_and_b32 v7, 1, v1
    v_lshlrev_b32 v7, 1, v7
    v_bfe_u32 v24, v1, 4, 1
    v_or_b32 v7, v7, v24                       ; c (nt=0)
    v_bfe_u32 v24, v1, 3, 1
    v_lshlrev_b32 v24, 2, v24
    v_xor_b32 v7, v7, v24                      ; c' nt=0
    v_lshl_add_u32 v6, v7, 4, v6
    v_bfe_u32 v24, v1, 1, 1
    v_lshl_add_u32 v{vWA}, v24, 3, v6
    v_xor_b32 v{vWA+1}, 64, v{vWA}
    """)
    for r in range(ACC,ACC+32): a(f"v_mov_b32 v{r}, 0")
    def reads(s,h):
        L=[]
        for nt in range(2):
            for t in range(2):
                L.append(f"ds_read_b64_tr_b16 {vr(WFR[s]+4*nt+2*t,2)}, v{vWA+nt} offset:{h*2048+t*1024}")
        return L
    for g in range(4):
        rem = {0:12,1:12,2:12,3:0}[g] if True else 0
        a(f"s_waitcnt vmcnt({rem})\ns_barrier")
        pend = group(g+2) if g+2<4 else []
        for l in reads(0,8*g): a(l)
        for hh in range(8):
            h=8*g+hh; s=hh&1
            nxt = reads(s^1,h+1) if hh<7 else []
            for l in nxt: a(l)
            a(f"s_waitcnt lgkmcnt({len(nxt)})")
            for nt in range(2):
                a(f"v_mfma_f32_32x32x16_bf16 {vr(ACC+16*nt,16)}, {vr(WFR[s]+4*nt,4)}, {vr(OFR+4*h,4)}, {vr(ACC+16*nt,16)}")
                k=hh*2+nt
                if pend and k<12: a(pend[k])
    a(f"""
    s_lshl_b32 s{sT}, s{sTB}, 16               ; tb*32*2048
    s_lshl_b32 s{sT2}, s{sBR}, 10
    s_add_u32 s{sT}, s{sT}, s{sT2}
    s_lshl_b32 s{sT2}, s{sNS}, 7
    s_add_u32 s{sT}, s{sT}, s{sT2}
    v_and_b32 v6, 31, v1
    v_lshlrev_b32 v6, 11, v6
    v_lshrrev_b32 v7, 5, v1
    v_lshl_add_u32 v6, v7, 5, v6
    s_nop 7
    """)
    for nt in range(2):
        b=ACC+16*nt; T=8+8*nt
        for i in range(8): a(f"v_cvt_pk_bf16_f32 v{T+i}, v{b+2*i}, v{b+2*i+1}")
        a(f"buffer_store_dwordx4 {vr(T,4)}, v6, s[{SOUT}:{SOUT+3}], s{sT} offen offset:{nt*64} {STF}")
        a(f"buffer_store_dwordx4 {vr(T+4,4)}, v6, s[{SOUT}:{SOUT+3}], s{sT} offen offset:{nt*64+16} {STF}")
    a.label(f"{name}_end")
    a("s_endpgm")
    return dict(name=name, grid=256, block=256, lds=65536, vgpr=192, sgpr=48)
```

```python
import sys, json
from asmlib import *
from k1 import gen_k1
from k2 import gen_k2
from k3 import gen_k3
HDR=open("concat_heads__linear_attn_block__sliding_block__prompt.s.ref").read().split("\n")
def build(cfg):
    a=Asm()
    N="concat_heads__linear_attn_block__sliding_block__prompt"
    ks=[]
    ks.append(gen_k1(a,"qkv_kernel",cfg))
    ks.append(gen_k2(a,"attn_kernel",cfg))
    ks.append(gen_k3(a,"oproj_kernel",cfg))
    out=[]
    for l in HDR:
        if l.startswith("; Override") : break
        out.append(l)
    sel=cfg.get("launch",[0,1,2])
    for i in sel:
        k=ks[i]
        out.append(f"; @launch kernel={k['name']} grid=({k['grid']},1,1) block=({k['block']},1,1) lds={k['lds']}")
    out.append('.amdgcn_target "amdgcn-amd-amdhsa--gfx950"')
    out.append(".text")
    out.append(a.text())
    out.append('.section .rodata,"a"')
    for k in ks: out.append(kdesc(k['name'],k['vgpr'],k['sgpr']))
    return "\n".join(out)
if __name__=="__main__":
    cfg=json.loads(sys.argv[2]) if len(sys.argv)>2 else {}
    open(sys.argv[1],"w").write(build(cfg))
```

```python
import struct
def f2u(x): return struct.unpack("<I", struct.pack("<f", x))[0]

class Asm:
    def __init__(self):
        self.lines=[]
        self.uid=0
    def __call__(self, s):
        for l in s.strip("\n").split("\n"):
            self.lines.append("    "+l.strip() if not l.strip().endswith(":") else l.strip())
    def label(self, name): self.lines.append(name+":")
    def newlabel(self, p):
        self.uid+=1
        return f"{p}_{self.uid}"
    def c(self, s): self.lines.append("    ; "+s)
    def raw(self, s): self.lines.append(s)
    def text(self): return "\n".join(self.lines)+"\n"

def vr(a,n=1):
    return f"v{a}" if n==1 else f"v[{a}:{a+n-1}]"
def sr(a,n=1):
    return f"s{a}" if n==1 else f"s[{a}:{a+n-1}]"

def kdesc(name, vgpr, sgpr):
    acc=(vgpr+3)//4*4
    return f""".p2align 6
.amdhsa_kernel {name}
  .amdhsa_next_free_vgpr {vgpr}
  .amdhsa_next_free_sgpr {sgpr}
  .amdhsa_accum_offset {acc}
  .amdhsa_group_segment_fixed_size 0
  .amdhsa_kernarg_size 72
  .amdhsa_user_sgpr_count 2
  .amdhsa_user_sgpr_kernarg_segment_ptr 1
  .amdhsa_system_sgpr_workgroup_id_x 1
  .amdhsa_float_denorm_mode_32 3
.end_amdhsa_kernel
"""

PROF=14<<20
class Prof:
    def __init__(self, a, cfg, kidx, base_sgpr, wave_sgpr, ws_lo, ws_hi):
        self.a=a; self.on=cfg.get("prof",False); self.k=kidx; self.b=base_sgpr; self.n=0; self.ws=ws_sgpr=None
        self.timer=cfg.get("timer","s_memrealtime")
        self.wave=wave_sgpr; self.lo=ws_lo; self.hi=ws_hi
    def stamp(self, i):
        if not self.on: return
        self.a(f"{self.timer} s[{self.b+2*i}:{self.b+2*i+1}]\ns_waitcnt lgkmcnt(0)")
    def flush(self, n, srd, vtmp, wave=0):
        if not self.on: return
        a=self.a
        lab=a.newlabel("pf")
        a(f"s_waitcnt lgkmcnt(0)")
        a(f"s_cmp_lg_u32 s{self.wave}, {wave}\ns_cbranch_scc1 {lab}")
        a(f"s_mov_b32 s{srd}, s{self.lo}\ns_mov_b32 s{srd+1}, s{self.hi}\ns_mov_b32 s{srd+2}, {16<<20}\ns_mov_b32 s{srd+3}, 0x20000")
        a(f"s_lshl_b32 s{self.b+2*n}, s2, 6\ns_add_u32 s{self.b+2*n}, s{self.b+2*n}, {PROF+self.k*32768}")
        a(f"v_mov_b32 v{vtmp+1}, 0")
        for i in range(n):
            a(f"v_mov_b32 v{vtmp}, s{self.b+2*i}")
            a(f"buffer_store_dword v{vtmp}, v{vtmp+1}, s[{srd}:{srd+3}], s{self.b+2*n} offen offset:{4*i}")
            a("s_nop 1")
        a.label(lab)
```

```python
from asmlib import *
import math
QF=0; KF=2<<20; VF=4<<20; PQ=6<<20; OF=8<<20; KVP=12<<20; WS_USED=13<<20
LOG2E=math.log2(math.e)
CSCALE=0.25*LOG2E

def gen_k1(a, name, cfg):
    NS=cfg.get("k1_ns",3)
    LDF=cfg.get("k1_ldflags","")
    STF=cfg.get("k1_stflags","")
    XB=0; XS=16384; WB=NS*XS; WS_=24576
    a.raw(f".globl {name}\n.p2align 8\n.type {name},@function\n{name}:")
    sWAVE=20; sBR=21; sR=22; sG=23; sT=24; sT2=25
    SX=8; SW=12; SWS=16
    pf=Prof(a,cfg,0,64,sWAVE,36,37)
    pf.stamp(0)
    a(f"""
    s_cmp_ge_u32 s2, 256
    s_cbranch_scc1 {name}_end
    s_load_dwordx4 s[28:31], s[0:1], 0
    s_load_dwordx4 s[32:35], s[0:1], 24
    s_load_dwordx2 s[36:37], s[0:1], 64
    v_lshrrev_b32 v2, 6, v0
    v_and_b32 v1, 63, v0
    s_and_b32 s{sT}, s2, 7
    v_readfirstlane_b32 s{sWAVE}, v2
    s_lshr_b32 s{sT2}, s2, 3
    s_and_b32 s{sBR}, s{sT}, 1
    s_lshr_b32 s{sT}, s{sT}, 1
    s_lshl_b32 s{sT}, s{sT}, 2
    s_and_b32 s{sR}, s{sT2}, 3
    s_add_u32 s{sR}, s{sR}, s{sT}
    s_lshr_b32 s{sG}, s{sT2}, 2
    s_waitcnt lgkmcnt(0)
    s_cmp_eq_u32 s{sBR}, 0
    s_cselect_b32 s{SX}, s28, s32
    s_cselect_b32 s{SX+1}, s29, s33
    s_cselect_b32 s{SW}, s30, s34
    s_cselect_b32 s{SW+1}, s31, s35
    s_mov_b32 s{SX+2}, 0x200000
    s_mov_b32 s{SX+3}, 0x20000
    s_mov_b32 s{SW+2}, 0x180000
    s_mov_b32 s{SW+3}, 0x20000
    s_mov_b32 s{SWS}, s36
    s_mov_b32 s{SWS+1}, s37
    s_mov_b32 s{SWS+2}, {WS_USED}
    s_mov_b32 s{SWS+3}, 0x20000
    """)
    pf.stamp(4)
    a(f"""
    s_cmp_ge_u32 s{sWAVE}, 4
    s_cbranch_scc1 {name}_loader
    """)
    sTM=26; sFN=27
    vXA=4; vWA=8
    ACC=32
    def acc(tt,sec): return ACC+(tt*3+sec)*16
    FR=[128,148]
    def xf(s,tt): return FR[s]+4*tt
    def wf(s,sec): return FR[s]+8+4*sec
    a(f"""
    s_and_b32 s{sTM}, s{sWAVE}, 1
    s_lshr_b32 s{sFN}, s{sWAVE}, 1
    v_lshrrev_b32 v2, 5, v1                 ; hf
    v_and_b32 v3, 31, v1                    ; t31
    v_lshrrev_b32 v9, 1, v3
    v_and_b32 v9, 7, v9                     ; g
    s_lshl_b32 s{sT}, s{sTM}, 13            ; tm*64*128
    v_lshlrev_b32 v10, 7, v3                ; t31*128
    v_add_u32 v10, s{sT}, v10
    """)
    for ks in range(4):
        a(f"""
        v_or_b32 v11, {2*ks}, v2
        v_xor_b32 v11, v11, v9
        v_lshl_add_u32 v{vXA+ks}, v11, 4, v10
        """)
    if XB: raise Exception
    a(f"""
    v_bfe_u32 v10, v1, 2, 2                 ; (l&15)>>2
    v_lshlrev_b32 v10, 7, v10
    v_lshl_add_u32 v10, v2, 10, v10         ; + hf*1024
    v_bfe_u32 v11, v1, 4, 1
    v_lshlrev_b32 v11, 1, v11               ; 2*((l>>4)&1)
    v_bfe_u32 v12, v1, 1, 1                 ; (l&3)>>1
    v_or_b32 v11, v11, v12
    s_lshl_b32 s{sT}, s{sFN}, 2
    v_or_b32 v11, s{sT}, v11                ; c
    v_bfe_u32 v12, v1, 3, 1
    v_lshlrev_b32 v12, 2, v12
    v_xor_b32 v11, v11, v12                 ; c'
    v_lshl_add_u32 v10, v11, 4, v10
    v_and_b32 v12, 1, v1
    v_lshl_add_u32 v10, v12, 3, v10
    v_add_u32 v{vWA}, {WB}, v10
    """)
    for r in range(ACC,ACC+96): a(f"v_mov_b32 v{r}, 0")
    a(f"""
    s_mov_b32 s58, {(-(NS-1)*XS)&0xffffffff:#x}
    s_mov_b32 s59, {XS}
    s_mov_b32 s60, {(-(NS-1)*WS_)&0xffffffff:#x}
    s_mov_b32 s61, {WS_}
    """)

    def reads(s, ks):
        L=[]
        L.append(f"ds_read_b128 {vr(xf(s,0),4)}, v{vXA+ks}")
        L.append(f"ds_read_b64_tr_b16 {vr(wf(s,0),2)}, v{vWA} offset:{ks*2048}")
        L.append(f"ds_read_b64_tr_b16 {vr(wf(s,0)+2,2)}, v{vWA} offset:{ks*2048+512}")
        L.append(f"ds_read_b128 {vr(xf(s,1),4)}, v{vXA+ks} offset:4096")
        for sec in (1,2):
            L.append(f"ds_read_b64_tr_b16 {vr(wf(s,sec),2)}, v{vWA} offset:{sec*8192+ks*2048}")
            L.append(f"ds_read_b64_tr_b16 {vr(wf(s,sec)+2,2)}, v{vWA} offset:{sec*8192+ks*2048+512}")
        return L
    def mfmas(s, br):
        L=[]
        for sec in range(3):
            for tt in range(2):
                featrow = (sec==0) or (sec==1 and br==1)
                A_,B_ = (wf(s,sec),xf(s,tt)) if featrow else (xf(s,tt),wf(s,sec))
                L.append(f"v_mfma_f32_32x32x16_bf16 {vr(acc(tt,sec),16)}, {vr(A_,4)}, {vr(B_,4)}, {vr(acc(tt,sec),16)}")
        return L
    def step(s, br, rd):
        M=mfmas(s,br)
        if rd:
            a(M[0]); a(rd[0]); a(rd[1]); a(rd[2])
            a(M[1]); a(rd[3]); a(rd[4]); a(rd[5])
            a(M[2]); a(rd[6]); a(rd[7])
            a(M[3]); a(M[4]); a(M[5])
        else:
            for m in M: a(m)

    sCNT=38; sSTG=39; sDX=40; sDW=41
    for br in (0,1):
        bn="AB"[br]
        if br==0:
            a(f"s_cmp_eq_u32 s{sBR}, 1\ns_cbranch_scc1 {name}_cB")
        else:
            a.label(f"{name}_cB")
        a(f"s_mov_b32 s{sCNT}, 0\ns_mov_b32 s{sSTG}, 0")
        pf.stamp(5)
        a("s_barrier")
        pf.stamp(1)
        for l in reads(0,0): a(l)
        a.label(f"{name}_loop{bn}")
        for ks in range(3):
            a("s_waitcnt lgkmcnt(0)")
            step(ks&1, br, reads((ks+1)&1, ks+1))
        a(f"""
        s_add_u32 s{sSTG}, s{sSTG}, 1
        s_cmp_eq_u32 s{sSTG}, {NS}
        s_cselect_b32 s{sDX}, s58, s59
        s_cselect_b32 s{sDW}, s60, s61
        s_cselect_b32 s{sSTG}, 0, s{sSTG}
        s_waitcnt lgkmcnt(0)
        s_barrier
        """)
        for ks in range(4): a(f"v_add_u32 v{vXA+ks}, s{sDX}, v{vXA+ks}")
        a(f"v_add_u32 v{vWA}, s{sDW}, v{vWA}")
        step(1, br, reads(0,0))
        a(f"""
        s_add_u32 s{sCNT}, s{sCNT}, 1
        s_cmp_lt_u32 s{sCNT}, 7
        s_cbranch_scc1 {name}_loop{bn}
        """)
        for ks in range(3):
            a("s_waitcnt lgkmcnt(0)")
            step(ks&1, br, reads((ks+1)&1, ks+1))
        a("s_waitcnt lgkmcnt(0)")
        step(1, br, [])
        pf.stamp(2)
        T0=128
        sOFF=42; sH=43; sTB=44
        a(f"""
        s_lshl_b32 s{sH}, s{sG}, 2
        s_lshl_b32 s{sT}, s{sFN}, 1
        s_add_u32 s{sH}, s{sH}, s{sT}          ; h0 = 4G+2fn
        s_lshl_b32 s{sTB}, s{sR}, 2
        s_lshl_b32 s{sT}, s{sTM}, 1
        s_add_u32 s{sTB}, s{sTB}, s{sT}
        s_lshl_b32 s{sOFF}, s{sH}, 16
        s_lshl_b32 s{sT}, s{sTB}, 10
        s_add_u32 s{sOFF}, s{sOFF}, s{sT}      ; (h0*64+tb0)*1024
        v_lshlrev_b32 v9, 4, v1                ; lane*16
        """)
        if br==1:
            a(f"s_mov_b32 s46, {f2u(CSCALE):#x}\ns_mov_b32 s47, {f2u(CSCALE):#x}")
            a(f"""
            v_bfe_u32 v10, v1, 4, 1
            v_lshlrev_b32 v10, 16, v10
            v_lshrrev_b32 v11, 5, v1
            v_lshl_add_u32 v10, v11, 8, v10
            v_and_b32 v11, 15, v1
            v_lshl_add_u32 v10, v11, 4, v10
            s_nop 7
            """)
            tmp=T0
            for tt in range(2):
                b=acc(tt,0)
                for i in range(8):
                    a(f"v_pk_mul_f32 {vr(b+2*i,2)}, {vr(b+2*i,2)}, s[46:47]")
                for i in range(8):
                    a(f"v_cvt_pk_bf16_f32 v{tmp+i}, v{b+2*i}, v{b+2*i+1}")
                a(f"s_add_u32 s{sT}, s{sOFF}, {QF+tt*1024}")
                a(f"buffer_store_dwordx4 {vr(tmp,4)}, v9, s[{SWS}:{SWS+3}], s{sT} offen {STF}")
                a(f"s_add_u32 s{sT2}, s{sOFF}, {QF+tt*1024+65536}")
                a(f"buffer_store_dwordx4 {vr(tmp+4,4)}, v9, s[{SWS}:{SWS+3}], s{sT2} offen {STF}")
                tmp = T0+8 if tmp==T0 else T0
            tmp=T0+16
            for tt in range(2):
                b=acc(tt,1)
                for i in range(8):
                    a(f"v_cvt_pk_bf16_f32 v{tmp+i}, v{b+2*i}, v{b+2*i+1}")
                a(f"s_add_u32 s{sT}, s{sOFF}, {KF+tt*1024}")
                a(f"buffer_store_dwordx4 {vr(tmp,4)}, v9, s[{SWS}:{SWS+3}], s{sT} offen {STF}")
                a(f"s_add_u32 s{sT2}, s{sOFF}, {KF+tt*1024+65536}")
                a(f"buffer_store_dwordx4 {vr(tmp+4,4)}, v9, s[{SWS}:{SWS+3}], s{sT2} offen {STF}")
                tmp = T0+24
            tmp=T0
            for tt in range(2):
                b=acc(tt,2)
                for i in range(8):
                    a(f"v_cvt_pk_bf16_f32 v{tmp+i}, v{b+2*i}, v{b+2*i+1}")
                a(f"s_add_u32 s{sT}, s{sOFF}, {VF+tt*1024}")
                a(f"buffer_store_dwordx4 {vr(tmp,4)}, v10, s[{SWS}:{SWS+3}], s{sT} offen {STF}")
                a(f"buffer_store_dwordx4 {vr(tmp+4,4)}, v10, s[{SWS}:{SWS+3}], s{sT} offen offset:512 {STF}")
                tmp = T0+8
            if pf.on:
                a("s_waitcnt vmcnt(0)"); pf.stamp(3); pf.flush(6,80,2)
            a("s_endpgm")
        else:
            a(f"""
            s_mov_b32 s46, {f2u(LOG2E):#x}
            s_mov_b32 s47, {f2u(LOG2E):#x}
            s_mov_b32 s48, 1.0
            s_mov_b32 s49, 1.0
            s_mov_b32 s50, {f2u(1e-6):#x}
            s_mov_b32 s51, {f2u(1e-6):#x}
            s_mov_b32 s52, 0x0000ffff
            s_mov_b32 s53, 0x0000ffff
            v_mov_b32 v20, 0x3f803f80
            v_mov_b32 v21, 0x3f803f80
            v_mov_b32 v22, 0x3f803f80
            v_mov_b32 v23, 0x3f803f80
            s_nop 4
            """)
            U=168
            def phi(b):
                for i in range(8): a(f"v_pk_mul_f32 {vr(U+2*i,2)}, {vr(b+2*i,2)}, s[46:47]")
                for i in range(16): a(f"v_exp_f32 v{U+i}, v{U+i} clamp")
                for i in range(8): a(f"v_pk_add_f32 {vr(b+2*i,2)}, {vr(b+2*i,2)}, s[48:49]")
                for i in range(16): a(f"v_max_f32 v{b+i}, v{b+i}, v{U+i}")
                for i in range(8): a(f"v_pk_add_f32 {vr(b+2*i,2)}, {vr(b+2*i,2)}, s[50:51]")
            PK=[128,136]; VV=[144,152]; D=184; D2=200
            for tt in range(2):
                b=acc(tt,2)
                for i in range(8): a(f"v_cvt_pk_bf16_f32 v{VV[tt]+i}, v{b+2*i}, v{b+2*i+1}")
            for tt in range(2):
                b=acc(tt,1)
                phi(b)
                for i in range(8): a(f"v_cvt_pk_bf16_f32 v{PK[tt]+i}, v{b+2*i}, v{b+2*i+1}")
                a("s_nop 1")
                for m in range(2):
                    c1 = "0" if (tt==0 and m==0) else vr(D,16)
                    c2 = "0" if (tt==0 and m==0) else vr(D2,16)
                    a(f"v_mfma_f32_32x32x16_bf16 {vr(D,16)}, {vr(PK[tt]+4*m,4)}, {vr(VV[tt]+4*m,4)}, {c1}")
                    a(f"v_mfma_f32_32x32x16_bf16 {vr(D2,16)}, {vr(PK[tt]+4*m,4)}, v[20:23], {c2}")
            tmp=160
            for tt in range(2):
                b=acc(tt,0)
                phi(b)
                for i in range(8): a(f"v_cvt_pk_bf16_f32 v{tmp+i}, v{b+2*i}, v{b+2*i+1}")
                a(f"s_add_u32 s{sT}, s{sOFF}, {PQ+tt*1024}")
                a(f"buffer_store_dwordx4 {vr(tmp,4)}, v9, s[{SWS}:{SWS+3}], s{sT} offen {STF}")
                a(f"s_add_u32 s{sT2}, s{sOFF}, {PQ+tt*1024+65536}")
                a(f"buffer_store_dwordx4 {vr(tmp+4,4)}, v9, s[{SWS}:{SWS+3}], s{sT2} offen {STF}")
                tmp=216
            for r in range(8):  a(f"v_cndmask_b32_e64 v{D+r}, v{D2+r}, v{D+r}, s[52:53]")
            for r in range(8,16): a(f"v_cndmask_b32_e64 v{D+r}, v{D+r}, v{D2+r}, s[52:53]")
            st7=7%NS
            EX = WB + ((st7+1)%NS)*WS_
            a(f"""
            s_lshl_b32 s{sT}, s{sFN}, 12
            s_add_u32 s{sT}, s{sT}, {EX}
            v_add_u32 v10, s{sT}, v9
            s_cmp_eq_u32 s{sTM}, 0
            s_cbranch_scc1 {name}_Ared
            """)
            for q in range(4): a(f"ds_write_b128 v10, {vr(D+4*q,4)} offset:{q*1024}")
            a(f"s_waitcnt lgkmcnt(0)\ns_barrier\ns_endpgm")
            a.label(f"{name}_Ared")
            a("s_barrier")
            for q in range(4): a(f"ds_read_b128 {vr(D2+4*q,4)}, v10 offset:{q*1024}")
            a(f"""
            v_and_b32 v11, 31, v1                  ; idx
            v_lshrrev_b32 v12, 5, v1               ; hf
            v_and_b32 v13, 15, v1
            v_lshlrev_b32 v13, 5, v13
            v_lshl_add_u32 v13, v12, 9, v13
            v_lshlrev_b32 v14, 5, v12
            v_add_u32 v14, 1024, v14               ; 1024 + hf*32
            v_mov_b32 v15, 0x40000000
            v_cmp_eq_u32 s[54:55], 16, v11
            v_cmp_eq_u32 s[56:57], 0, v11
            s_nop 1
            v_cndmask_b32_e64 v16, v15, v14, s[54:55]
            v_cndmask_b32_e64 v17, v15, v14, s[56:57]
            v_cndmask_b32_e64 v16, v16, v13, s[52:53]
            v_cndmask_b32_e64 v17, v13, v17, s[52:53]
            s_lshl_b32 s{sT}, s{sH}, 4
            s_add_u32 s{sT}, s{sT}, s{sR}
            s_mul_i32 s{sT}, s{sT}, 1088
            s_add_u32 s{sT}, s{sT}, {KVP}
            s_add_u32 s{sT2}, s{sT}, {16*1088}
            s_waitcnt lgkmcnt(0)
            """)
            for i in range(8): a(f"v_pk_add_f32 {vr(D+2*i,2)}, {vr(D+2*i,2)}, {vr(D2+2*i,2)}")
            a(f"""
            buffer_store_dwordx4 {vr(D,4)}, v16, s[{SWS}:{SWS+3}], s{sT} offen {STF}
            buffer_store_dwordx4 {vr(D+4,4)}, v16, s[{SWS}:{SWS+3}], s{sT} offen offset:16 {STF}
            buffer_store_dwordx4 {vr(D+8,4)}, v17, s[{SWS}:{SWS+3}], s{sT2} offen {STF}
            buffer_store_dwordx4 {vr(D+12,4)}, v17, s[{SWS}:{SWS+3}], s{sT2} offen offset:16 {STF}
            """)
            if pf.on:
                a("s_waitcnt vmcnt(0)"); pf.stamp(3); pf.flush(6,80,2)
            a("s_endpgm")
    a.label(f"{name}_loader")
    sE=26; sXB=27; sWBs=38; sL=39
    a(f"""
    s_sub_u32 s{sE}, s{sWAVE}, 4
    v_lshrrev_b32 v2, 3, v1                 ; r
    v_and_b32 v3, 7, v1                     ; p
    v_lshrrev_b32 v4, 1, v2                 ; r>>1
    s_and_b32 s{sT}, s{sE}, 1
    s_lshl_b32 s{sT}, s{sT}, 2
    v_or_b32 v4, s{sT}, v4                  ; g
    v_xor_b32 v4, v4, v3
    v_lshlrev_b32 v5, 10, v2
    v_lshl_add_u32 v5, v4, 4, v5            ; x voffset
    v_bfe_u32 v4, v1, 4, 1
    v_lshlrev_b32 v4, 2, v4
    v_xor_b32 v4, v4, v3
    v_mul_u32_u24 v6, 3072, v2
    v_lshl_add_u32 v6, v4, 4, v6            ; w voffset
    s_lshl_b32 s{sXB}, s{sR}, 17
    s_lshl_b32 s{sT}, s{sE}, 13
    s_add_u32 s{sXB}, s{sXB}, s{sT}
    s_lshl_b32 s{sWBs}, s{sG}, 7
    s_mul_i32 s{sT}, s{sE}, 24576
    s_add_u32 s{sWBs}, s{sWBs}, s{sT}
    s_lshl_b32 s{sL}, s{sE}, 10
    """)
    def issue(c):
        st=c%NS
        for i in range(4):
            a(f"s_add_u32 m0, s{sL}, {XB+st*XS+i*4096}")
            a(f"s_add_u32 s{sT}, s{sXB}, {i*32768+c*128}")
            a(f"buffer_load_dwordx4 v5, s[{SX}:{SX+3}], s{sT} offen {LDF} lds")
        for jj in range(2):
            for sec in range(3):
                a(f"s_add_u32 m0, s{sL}, {WB+st*WS_+sec*8192+jj*4096}")
                a(f"s_add_u32 s{sT}, s{sWBs}, {c*196608+jj*4*24576+sec*1024}")
                a(f"buffer_load_dwordx4 v6, s[{SW}:{SW+3}], s{sT} offen {LDF} lds")
    for c in range(NS): issue(c)
    a(f"s_waitcnt vmcnt({10*(NS-1)})\ns_barrier")
    for c in range(7):
        issued=min(8,c+NS)
        rem=issued-(c+2)
        a(f"s_waitcnt vmcnt({10*rem})\ns_barrier")
        if c+NS<8: issue(c+NS)
    a.label(f"{name}_end")
    a("s_endpgm")
    lds=NS*40960
    return dict(name=name, grid=256, block=512, lds=lds, vgpr=232, sgpr=88 if cfg.get('prof') else 64)
```

```python
from asmlib import *
from k1 import QF,KF,VF,PQ,OF,KVP,WS_USED
NEGBIG=-1.0e30

def diag_mask(r):
    m=0
    for l in range(64):
        b=8*(r>>2)+4*(l>>5)+(r&3)
        if b<=(l&31): m|=1<<l
    return m

def gen_k2(a, name, cfg):
    LDF=cfg.get("k2_ldflags","")
    STF=cfg.get("k2_stflags","")
    KL=0; VL=16384; KVL=32768; RED=KVL+17408; ONES=((RED+1088+255)//256)*256
    LDS=ONES+9216
    a.raw(f".globl {name}\n.p2align 8\n.type {name},@function\n{name}:")
    SWS=8
    sWAVE=20; sRB=21; sH=22; sQB=23; sT=24; sT2=25; sTMIN=26; sBASE=27
    MASK=32
    pf=Prof(a,cfg,1,64,sWAVE,4,5)
    pf.stamp(0)
    a(f"""
    s_cmp_ge_u32 s2, 256
    s_cbranch_scc1 {name}_end
    s_load_dwordx2 s[4:5], s[0:1], 64
    v_lshrrev_b32 v2, 6, v0
    v_and_b32 v1, 63, v0
    s_and_b32 s{sRB}, s2, 7
    v_readfirstlane_b32 s{sWAVE}, v2
    s_lshr_b32 s{sH}, s2, 3
    v_lshlrev_b32 v3, 4, v1                   ; lane*16
    s_lshl_b32 s{sQB}, s{sRB}, 3
    s_add_u32 s{sQB}, s{sQB}, s{sWAVE}        ; qb
    s_waitcnt lgkmcnt(0)
    s_mov_b32 s{SWS}, s4
    s_mov_b32 s{SWS+1}, s5
    s_mov_b32 s{SWS+2}, {WS_USED}
    s_mov_b32 s{SWS+3}, 0x20000
    """)
    pf.stamp(6)
    a(f"""
    s_mul_i32 s{sBASE}, s{sH}, 17408
    s_add_u32 s{sBASE}, s{sBASE}, {KVP}
    s_cmp_lg_u32 s{sWAVE}, 0
    s_cbranch_scc1 {name}_nokv16
    s_mov_b32 m0, {KVL+16*1024}
    s_add_u32 s{sT}, s{sBASE}, {16*1024}
    buffer_load_dwordx4 v3, s[{SWS}:{SWS+3}], s{sT} offen {LDF} lds
    {name}_nokv16:
    s_lshl_b32 s{sT2}, s{sWAVE}, 10
    s_add_u32 m0, s{sT2}, {KVL}
    s_add_u32 s{sT}, s{sBASE}, s{sT2}
    buffer_load_dwordx4 v3, s[{SWS}:{SWS+3}], s{sT} offen {LDF} lds
    s_add_u32 m0, s{sT2}, {KVL+8192}
    s_add_u32 s{sT}, s{sT}, 8192
    buffer_load_dwordx4 v3, s[{SWS}:{SWS+3}], s{sT} offen {LDF} lds
    """)
    vQ=4; vPQ=8
    a(f"""
    s_lshl_b32 s{sBASE}, s{sH}, 16            ; h*65536
    s_lshl_b32 s{sT}, s{sQB}, 10
    s_add_u32 s{sT}, s{sT}, s{sBASE}
    s_add_u32 s{sT2}, s{sT}, {PQ}
    buffer_load_dwordx4 {vr(vPQ,4)}, v3, s[{SWS}:{SWS+3}], s{sT2} offen {LDF}
    s_add_u32 s{sT2}, s{sT}, {QF}
    buffer_load_dwordx4 {vr(vQ,4)}, v3, s[{SWS}:{SWS+3}], s{sT2} offen {LDF}
    """)
    for u in range(2):
        a(f"""
        s_lshl_b32 s{sT}, s{sWAVE}, 1
        s_add_u32 s{sT}, s{sT}, {u}              ; slot
        s_lshl_b32 s{sT2}, s{sRB}, 3
        s_add_u32 s{sT2}, s{sT2}, s{sT}
        s_sub_i32 s{sT2}, s{sT2}, 8
        s_max_i32 s{sT2}, s{sT2}, 0              ; tile
        s_lshl_b32 s{sT2}, s{sT2}, 10
        s_add_u32 s{sT2}, s{sT2}, s{sBASE}
        s_lshl_b32 s{sT}, s{sT}, 10
        s_add_u32 m0, s{sT}, {KL}
        s_add_u32 s28, s{sT2}, {KF}
        buffer_load_dwordx4 v3, s[{SWS}:{SWS+3}], s28 offen {LDF} lds
        s_add_u32 m0, s{sT}, {VL}
        s_add_u32 s28, s{sT2}, {VF}
        buffer_load_dwordx4 v3, s[{SWS}:{SWS+3}], s28 offen {LDF} lds
        """)
    pf.stamp(7)
    a(f"""
    v_mov_b32 v12, 0x3f803f80
    v_mov_b32 v13, 0x3f803f80
    v_mov_b32 v14, 0x3f803f80
    v_mov_b32 v15, 0x3f803f80
    s_lshl_b32 s{sT}, s{sWAVE}, 10
    s_add_u32 s{sT}, s{sT}, {ONES}
    v_add_u32 v16, s{sT}, v3
    ds_write_b128 v16, v[12:15]
    v_add_u32 v16, {ONES+8192}, v3
    ds_write_b128 v16, v[12:15]
    """)
    for r in range(16):
        m=diag_mask(r)
        a(f"s_mov_b32 s{MASK+2*r}, {m&0xffffffff:#x}\ns_mov_b32 s{MASK+2*r+1}, {m>>32:#x}")
    PM=16
    a("v_mov_b32 v24, 0xffff\nv_mov_b32 v25, 0xffff0000")
    for i in range(8):
        a(f"v_cndmask_b32_e64 v{PM+i}, 0, v24, s[{MASK+4*i}:{MASK+4*i+1}]")
        a(f"v_cndmask_b32_e64 v26, 0, v25, s[{MASK+4*i+2}:{MASK+4*i+3}]")
        a(f"v_or_b32 v{PM+i}, v{PM+i}, v26")
    vKA=24; vVA=25; vKVA=26; vRA=27
    a(f"""
    s_lshl_b32 s{sT}, s{sWAVE}, 10
    s_add_u32 s{sT2}, s{sT}, {KL}
    v_add_u32 v{vKA}, s{sT2}, v3
    v_and_b32 v28, 31, v1                     ; idx
    v_lshrrev_b32 v29, 5, v1                  ; hf
    v_lshlrev_b32 v30, 4, v28
    v_lshl_add_u32 v30, v29, 8, v30
    s_add_u32 s{sT2}, s{sT}, {VL}
    v_add_u32 v30, s{sT2}, v30
    v_subrev_u32 v31, 20, v28
    v_cmp_gt_u32 vcc, 8, v31
    v_mov_b32 v31, {ONES}
    v_mov_b32 v12, {ONES+64}
    v_cndmask_b32_e64 v31, v31, v12, vcc
    v_cmp_gt_u32 vcc, 16, v28
    s_nop 1
    v_cndmask_b32_e64 v{vVA}, v31, v30, vcc
    v_lshlrev_b32 v30, 5, v28
    v_lshl_add_u32 v30, v29, 9, v30
    v_lshlrev_b32 v31, 5, v29
    v_add_u32 v31, 1024, v31
    v_cndmask_b32_e64 v{vKVA}, v31, v30, vcc
    v_add_u32 v{vKVA}, {RED}, v{vKVA}
    ; tmin
    s_sub_u32 s{sTMIN}, 8, s{sWAVE}
    s_cmp_eq_u32 s{sRB}, 0
    s_cselect_b32 s{sTMIN}, s{sTMIN}, 1
    v_lshlrev_b32 v{vRA}, 2, v0               ; tid*4
    """)
    pf.stamp(8)
    a(f"""
    s_waitcnt vmcnt(6) lgkmcnt(0)
    s_barrier
    """)
    pf.stamp(1)
    a(f"""
    v_cmp_gt_u32 vcc, 272, v0
    s_and_saveexec_b64 s[28:29], vcc
    s_cbranch_execz {name}_nored
    """)
    RT=32
    for p in range(12):
        a(f"ds_read_b32 v{RT+p}, v{vRA} offset:{KVL+p*1088}")
    for p in range(1,4):
        a(f"s_waitcnt lgkmcnt({11-p})")
        a(f"v_add_f32 v{RT}, v{RT}, v{RT+p}")
    for p in range(12,16):
        a(f"ds_read_b32 v{RT+p}, v{vRA} offset:{KVL+p*1088}")
    for p in range(4,16):
        a(f"s_waitcnt lgkmcnt({15-p})")
        a(f"v_add_f32 v{RT}, v{RT}, v{RT+p}")
    a(f"""
    ds_write_b32 v{vRA}, v{RT} offset:{RED}
    {name}_nored:
    s_mov_b64 exec, s[28:29]
    s_waitcnt vmcnt(0) lgkmcnt(0)
    s_barrier
    """)
    pf.stamp(2)
    KFr=32
    SA,SB,SC,SD=68,84,100,116
    M=132; NEG=148; O=164; P=180; P2=188; VA=196; VB=204; OA=212; TMP=228
    def kf(t): return KFr+4*t
    a(f"""
    ds_read_b128 {vr(TMP,4)}, v{vKVA}
    ds_read_b128 {vr(TMP+4,4)}, v{vKVA} offset:16
    """)
    for t in (0,8,7,6,5,4,3,2,1):
        a(f"ds_read_b128 {vr(kf(t),4)}, v{vKA} offset:{t*1024}")
    a("s_waitcnt lgkmcnt(9)")
    for i in range(4): a(f"v_cvt_pk_bf16_f32 v{TMP+8+i}, v{TMP+2*i}, v{TMP+2*i+1}")
    a(f"s_waitcnt lgkmcnt(5)\ns_nop 1")
    a(f"v_mfma_f32_32x32x16_bf16 {vr(OA,16)}, {vr(TMP+8,4)}, {vr(vPQ,4)}, 0")
    lab0=f"{name}_rb0a"; lab1=f"{name}_rb0b"
    a(f"""
    s_cmp_eq_u32 s{sRB}, 0
    s_cbranch_scc1 {lab0}
    v_mfma_f32_32x32x16_bf16 {vr(SA,16)}, {vr(kf(0),4)}, {vr(vQ,4)}, 0
    s_branch {lab1}
    {lab0}:
    """)
    for r in range(16): a(f"v_mov_b32 v{SA+r}, {f2u(NEGBIG):#x}")
    a.label(lab1)
    a(f"""
    v_mfma_f32_32x32x16_bf16 {vr(SB,16)}, {vr(kf(8),4)}, {vr(vQ,4)}, 0
    v_mfma_f32_32x32x16_bf16 {vr(SC,16)}, {vr(kf(7),4)}, {vr(vQ,4)}, 0
    v_mfma_f32_32x32x16_bf16 {vr(SD,16)}, {vr(kf(6),4)}, {vr(vQ,4)}, 0
    s_nop 7
    """)
    a(f"""
    v_add_f32 v{OA+8}, {f2u(1e-6):#x}, v{OA+8}
    s_lshl_b32 s{sT}, s{sQB}, 5
    s_add_u32 s{sT}, s{sT}, s{sH}
    v_rcp_f32 v{OA+8}, v{OA+8}
    s_lshl_b32 s{sT}, s{sT}, 10
    s_add_u32 s{sBASE}, s{sT}, {OF}
    """)
    for r in range(8): a(f"v_mul_f32 v{OA+r}, v{OA+r}, v{OA+8}")
    for i in range(4): a(f"v_cvt_pk_bf16_f32 v{TMP+i}, v{OA+2*i}, v{OA+2*i+1}")
    a(f"buffer_store_dwordx4 {vr(TMP,4)}, v3, s[{SWS}:{SWS+3}], s{sBASE} offen {STF}")
    MX=28
    for r in range(16):
        a(f"v_cndmask_b32_e64 v{M+r}, v{SA+r}, v{SB+r}, s[{MASK+2*r}:{MASK+2*r+1}]")
    a(f"v_max3_f32 v{MX}, v{M}, v{M+1}, v{M+2}")
    for r in range(3,15,2): a(f"v_max3_f32 v{MX}, v{MX}, v{M+r}, v{M+r+1}")
    a(f"v_max_f32 v{MX}, v{MX}, v{M+15}")
    def maxtile(S):
        for r in range(0,16,2): a(f"v_max3_f32 v{MX}, v{MX}, v{S+r}, v{S+r+1}")
    P1E=f"{name}_p1end"
    def chk(t,lab):
        a(f"s_cmp_gt_u32 s{sTMIN}, {t}\ns_cbranch_scc1 {lab}")
    a("s_waitcnt lgkmcnt(0)")
    chk(7,P1E)
    a(f"v_mfma_f32_32x32x16_bf16 {vr(SA,16)}, {vr(kf(5),4)}, {vr(vQ,4)}, 0")
    a(f"v_mfma_f32_32x32x16_bf16 {vr(SB,16)}, {vr(kf(4),4)}, {vr(vQ,4)}, 0")
    maxtile(SC); chk(6,P1E); maxtile(SD); chk(5,P1E)
    a(f"v_mfma_f32_32x32x16_bf16 {vr(SC,16)}, {vr(kf(3),4)}, {vr(vQ,4)}, 0")
    a(f"v_mfma_f32_32x32x16_bf16 {vr(SD,16)}, {vr(kf(2),4)}, {vr(vQ,4)}, 0")
    maxtile(SA); chk(4,P1E); maxtile(SB); chk(3,P1E)
    a(f"v_mfma_f32_32x32x16_bf16 {vr(SA,16)}, {vr(kf(1),4)}, {vr(vQ,4)}, 0")
    maxtile(SC); chk(2,P1E); maxtile(SD); chk(1,P1E)
    a("s_nop 1")
    maxtile(SA)
    a.label(P1E)
    pf.stamp(3)
    a(f"""
    v_mov_b32 v29, v{MX}
    s_nop 1
    v_permlane32_swap_b32 v29, v{MX}
    s_nop 1
    v_max_f32 v{MX}, v{MX}, v29
    v_sub_f32 v{NEG}, 0, v{MX}
    """)
    for r in range(1,16): a(f"v_mov_b32 v{NEG+r}, v{NEG}")
    def vreads(t,V):
        a(f"ds_read_b128 {vr(V,4)}, v{vVA} offset:{t*1024}")
        a(f"ds_read_b128 {vr(V+4,4)}, v{vVA} offset:{t*1024+512}")
    vreads(8,VA); vreads(0,VB)
    a(f"v_mfma_f32_32x32x16_bf16 {vr(SC,16)}, {vr(kf(7),4)}, {vr(vQ,4)}, {vr(NEG,16)}")
    for i in range(8): a(f"v_pk_add_f32 {vr(M+2*i,2)}, {vr(M+2*i,2)}, {vr(NEG,2)}")
    for r in range(16): a(f"v_exp_f32 v{M+r}, v{M+r}")
    a("s_nop 0")
    for i in range(8): a(f"v_cvt_pk_bf16_f32 v{P+i}, v{M+2*i}, v{M+2*i+1}")
    for i in range(8): a(f"v_and_b32 v{P2+i}, v{P+i}, v{PM+i}")
    for i in range(8): a(f"v_xor_b32 v{P+i}, v{P+i}, v{P2+i}")
    a("s_waitcnt lgkmcnt(0)")
    a(f"v_mfma_f32_32x32x16_bf16 {vr(O,16)}, {vr(VA,4)}, {vr(P2,4)}, 0")
    a(f"v_mfma_f32_32x32x16_bf16 {vr(O,16)}, {vr(VA+4,4)}, {vr(P2+4,4)}, {vr(O,16)}")
    lab=f"{name}_skip0"
    a(f"s_cmp_eq_u32 s{sRB}, 0\ns_cbranch_scc1 {lab}")
    a(f"v_mfma_f32_32x32x16_bf16 {vr(O,16)}, {vr(VB,4)}, {vr(P,4)}, {vr(O,16)}")
    a(f"v_mfma_f32_32x32x16_bf16 {vr(O,16)}, {vr(VB+4,4)}, {vr(P+4,4)}, {vr(O,16)}")
    a.label(lab)
    P2E=f"{name}_p2end"
    bufs=[SC,SD]
    Vb=[VA,VB]; Pb=[P,P2]
    for n,t in enumerate(range(7,0,-1)):
        S=bufs[n&1]; Sn=bufs[(n+1)&1]; V=Vb[n&1]; Pp=Pb[n&1]
        chk(t,P2E)
        vreads(t,V)
        if t>1:
            a(f"v_mfma_f32_32x32x16_bf16 {vr(Sn,16)}, {vr(kf(t-1),4)}, {vr(vQ,4)}, {vr(NEG,16)}")
        for r in range(16): a(f"v_exp_f32 v{S+r}, v{S+r}")
        a("s_nop 0")
        for i in range(8): a(f"v_cvt_pk_bf16_f32 v{Pp+i}, v{S+2*i}, v{S+2*i+1}")
        a("s_waitcnt lgkmcnt(0)")
        a(f"v_mfma_f32_32x32x16_bf16 {vr(O,16)}, {vr(V,4)}, {vr(Pp,4)}, {vr(O,16)}")
        a(f"v_mfma_f32_32x32x16_bf16 {vr(O,16)}, {vr(V+4,4)}, {vr(Pp+4,4)}, {vr(O,16)}")
    a.label(P2E)
    a(f"""
    s_nop 15
    v_rcp_f32 v{O+8}, v{O+8}
    s_add_u32 s{sBASE}, s{sBASE}, {64*32*1024}
    s_nop 0
    """)
    for r in range(8): a(f"v_mul_f32 v{O+r}, v{O+r}, v{O+8}")
    for i in range(4): a(f"v_cvt_pk_bf16_f32 v{TMP+i}, v{O+2*i}, v{O+2*i+1}")
    a(f"buffer_store_dwordx4 {vr(TMP,4)}, v3, s[{SWS}:{SWS+3}], s{sBASE} offen {STF}")
    if pf.on:
        pf.stamp(4); a("s_waitcnt vmcnt(0)"); pf.stamp(5); pf.flush(9,84,30,wave=7)
    a.label(f"{name}_end")
    a("s_endpgm")
    return dict(name=name, grid=256, block=512, lds=LDS, vgpr=240, sgpr=92 if cfg.get('prof') else 72)
```

```python
from asmlib import *
from k1 import QF,KF,VF,PQ,OF,KVP,WS_USED

def gen_k3(a, name, cfg):
    LDF=cfg.get("k3_ldflags","")
    WF=cfg.get("k3_wflags","")
    STF=cfg.get("k3_stflags","")
    a.raw(f".globl {name}\n.p2align 8\n.type {name},@function\n{name}:")
    SWO=8; SWS=12; SOUT=16
    sWAVE=20; sJ=21; sBR=22; sHALF=23; sNS=24; sT=25; sT2=26; sTB=27; sOB=28; sWQ=29; sL=30
    pf=Prof(a,cfg,2,48,sWAVE,36,37)
    pf.stamp(0)
    a(f"""
    s_cmp_ge_u32 s2, 256
    s_cbranch_scc1 {name}_end
    s_load_dwordx2 s[4:5], s[0:1], 16
    s_load_dwordx2 s[6:7], s[0:1], 40
    s_load_dwordx4 s[32:35], s[0:1], 48
    s_load_dwordx2 s[36:37], s[0:1], 64
    v_lshrrev_b32 v2, 6, v0
    v_and_b32 v1, 63, v0
    s_and_b32 s{sJ}, s2, 7
    v_readfirstlane_b32 s{sWAVE}, v2
    s_lshr_b32 s{sT}, s2, 3
    s_and_b32 s{sBR}, s{sT}, 1
    s_bfe_u32 s{sHALF}, s{sT}, 0x10001
    s_lshr_b32 s{sNS}, s{sT}, 2
    v_lshlrev_b32 v3, 4, v1                    ; lane*16
    s_lshl_b32 s{sTB}, s{sJ}, 3
    s_lshl_b32 s{sT}, s{sHALF}, 2
    s_add_u32 s{sTB}, s{sTB}, s{sT}
    s_add_u32 s{sTB}, s{sTB}, s{sWAVE}
    s_lshl_b32 s{sT}, s{sBR}, 6
    s_add_u32 s{sT}, s{sT}, s{sTB}
    s_lshl_b32 s{sOB}, s{sT}, 15
    s_add_u32 s{sOB}, s{sOB}, {OF}
    v_lshrrev_b32 v4, 3, v1
    v_and_b32 v5, 7, v1
    v_bfe_u32 v6, v1, 4, 1
    v_lshlrev_b32 v6, 2, v6
    v_xor_b32 v5, v5, v6
    v_lshlrev_b32 v4, 10, v4
    v_lshl_add_u32 v4, v5, 4, v4
    s_lshl_b32 s{sWQ}, s{sNS}, 7
    s_lshl_b32 s{sT}, s{sWAVE}, 13
    s_add_u32 s{sWQ}, s{sWQ}, s{sT}            ; ns*128 + w*8192
    s_lshl_b32 s{sL}, s{sWAVE}, 10
    s_waitcnt lgkmcnt(0)
    s_cmp_eq_u32 s{sBR}, 0
    s_cselect_b32 s{SWO}, s4, s6
    s_cselect_b32 s{SWO+1}, s5, s7
    s_mov_b32 s{SWO+2}, 0x80000
    s_mov_b32 s{SWO+3}, 0x20000
    s_mov_b32 s{SWS}, s36
    s_mov_b32 s{SWS+1}, s37
    s_mov_b32 s{SWS+2}, {WS_USED}
    s_mov_b32 s{SWS+3}, 0x20000
    s_mov_b32 s{SOUT}, s32
    s_mov_b32 s{SOUT+1}, s33
    s_mov_b32 s{SOUT+2}, 0x400000
    s_mov_b32 s{SOUT+3}, 0x20000
    """)
    OFR=64
    ACC=32
    WFR=[8,16]
    vWA=5
    def group(g):
        L=[]
        for u in range(4):
            q=16*g+4*u
            L.append(f"s_add_u32 m0, s{sL}, {q*1024}\ns_add_u32 s{sT}, s{sWQ}, {q*8192}\nbuffer_load_dwordx4 v4, s[{SWO}:{SWO+3}], s{sT} offen {WF} lds")
        for h in range(8*g,8*g+8):
            L.append(f"s_add_u32 s{sT2}, s{sOB}, {h*1024}\nbuffer_load_dwordx4 {vr(OFR+4*h,4)}, v3, s[{SWS}:{SWS+3}], s{sT2} offen {LDF}")
        return L
    for l in group(0): a(l)
    for l in group(1): a(l)
    a(f"""
    v_bfe_u32 v6, v1, 2, 2
    v_lshrrev_b32 v7, 5, v1
    v_lshl_add_u32 v6, v7, 2, v6               ; 4hf + r
    v_lshlrev_b32 v6, 7, v6                    ; *128
    v_and_b32 v7, 1, v1
    v_lshlrev_b32 v7, 1, v7
    v_bfe_u32 v24, v1, 4, 1
    v_or_b32 v7, v7, v24                       ; c (nt=0)
    v_bfe_u32 v24, v1, 3, 1
    v_lshlrev_b32 v24, 2, v24
    v_xor_b32 v7, v7, v24                      ; c' nt=0
    v_lshl_add_u32 v6, v7, 4, v6
    v_bfe_u32 v24, v1, 1, 1
    v_lshl_add_u32 v{vWA}, v24, 3, v6
    v_xor_b32 v{vWA+1}, 64, v{vWA}
    """)
    for r in range(ACC,ACC+32): a(f"v_mov_b32 v{r}, 0")
    def reads(s,h):
        L=[]
        for nt in range(2):
            for t in range(2):
                L.append(f"ds_read_b64_tr_b16 {vr(WFR[s]+4*nt+2*t,2)}, v{vWA+nt} offset:{h*2048+t*1024}")
        return L
    for g in range(4):
        rem = {0:12,1:12,2:12,3:0}[g] if True else 0
        a(f"s_waitcnt vmcnt({rem})\ns_barrier")
        if g==0: pf.stamp(1)
        pend = group(g+2) if g+2<4 else []
        for l in reads(0,8*g): a(l)
        for hh in range(8):
            h=8*g+hh; s=hh&1
            nxt = reads(s^1,h+1) if hh<7 else []
            for l in nxt: a(l)
            a(f"s_waitcnt lgkmcnt({len(nxt)})")
            for nt in range(2):
                a(f"v_mfma_f32_32x32x16_bf16 {vr(ACC+16*nt,16)}, {vr(WFR[s]+4*nt,4)}, {vr(OFR+4*h,4)}, {vr(ACC+16*nt,16)}")
                k=hh*2+nt
                if pend and k<12: a(pend[k])
    pf.stamp(2)
    a(f"""
    s_lshl_b32 s{sT}, s{sTB}, 16               ; tb*32*2048
    s_lshl_b32 s{sT2}, s{sBR}, 10
    s_add_u32 s{sT}, s{sT}, s{sT2}
    s_lshl_b32 s{sT2}, s{sNS}, 7
    s_add_u32 s{sT}, s{sT}, s{sT2}
    v_and_b32 v6, 31, v1
    v_lshlrev_b32 v6, 11, v6
    v_lshrrev_b32 v7, 5, v1
    v_lshl_add_u32 v6, v7, 5, v6
    s_nop 7
    """)
    for nt in range(2):
        b=ACC+16*nt; T=8+8*nt
        for i in range(8): a(f"v_cvt_pk_bf16_f32 v{T+i}, v{b+2*i}, v{b+2*i+1}")
        a(f"buffer_store_dwordx4 {vr(T,4)}, v6, s[{SOUT}:{SOUT+3}], s{sT} offen offset:{nt*64} {STF}")
        a(f"buffer_store_dwordx4 {vr(T+4,4)}, v6, s[{SOUT}:{SOUT+3}], s{sT} offen offset:{nt*64+16} {STF}")
    if pf.on:
        a("s_waitcnt vmcnt(0)"); pf.stamp(3); pf.flush(4,60,2)
    a.label(f"{name}_end")
    a("s_endpgm")
    return dict(name=name, grid=256, block=256, lds=65536, vgpr=192, sgpr=72 if cfg.get('prof') else 48)
```

```python
from asmlib import *
import math
QF=0; KF=2<<20; VF=4<<20; PQ=6<<20; OF=8<<20; KVP=12<<20; WS_USED=13<<20
LOG2E=math.log2(math.e)
CSCALE=0.25*LOG2E

def gen_k1(a, name, cfg):
    NS=cfg.get("k1_ns",3)
    LDF=cfg.get("k1_ldflags","")
    STF=cfg.get("k1_stflags","")
    XB=0; XS=16384; WB=NS*XS; WS_=24576
    a.raw(f".globl {name}\n.p2align 8\n.type {name},@function\n{name}:")
    sWAVE=20; sBR=21; sR=22; sG=23; sT=24; sT2=25
    SX=8; SW=12; SWS=16
    pf=Prof(a,cfg,0,64,sWAVE,36,37)
    pf.stamp(0)
    a(f"""
    s_cmp_ge_u32 s2, 256
    s_cbranch_scc1 {name}_end
    s_load_dwordx4 s[28:31], s[0:1], 0
    s_load_dwordx4 s[32:35], s[0:1], 24
    s_load_dwordx2 s[36:37], s[0:1], 64
    v_lshrrev_b32 v2, 6, v0
    v_and_b32 v1, 63, v0
    s_and_b32 s{sT}, s2, 7
    v_readfirstlane_b32 s{sWAVE}, v2
    s_lshr_b32 s{sT2}, s2, 3
    s_and_b32 s{sBR}, s{sT}, 1
    s_lshr_b32 s{sT}, s{sT}, 1
    """)
    if cfg.get("k1_map",0)==0:
        a(f"""
        s_lshl_b32 s{sT}, s{sT}, 2
        s_and_b32 s{sR}, s{sT2}, 3
        s_add_u32 s{sR}, s{sR}, s{sT}
        s_lshr_b32 s{sG}, s{sT2}, 2
        """)
    else:
        a(f"""
        s_and_b32 s{sR}, s{sT}, 1
        s_lshl_b32 s{sR}, s{sR}, 3
        s_lshr_b32 s{sG}, s{sT}, 1
        s_lshl_b32 s{sG}, s{sG}, 2
        s_and_b32 s{sT}, s{sT2}, 7
        s_add_u32 s{sR}, s{sR}, s{sT}
        s_lshr_b32 s{sT}, s{sT2}, 3
        s_add_u32 s{sG}, s{sG}, s{sT}
        """)
    a(f"""
    s_waitcnt lgkmcnt(0)
    s_cmp_eq_u32 s{sBR}, 0
    s_cselect_b32 s{SX}, s28, s32
    s_cselect_b32 s{SX+1}, s29, s33
    s_cselect_b32 s{SW}, s30, s34
    s_cselect_b32 s{SW+1}, s31, s35
    s_mov_b32 s{SX+2}, 0x200000
    s_mov_b32 s{SX+3}, 0x20000
    s_mov_b32 s{SW+2}, 0x180000
    s_mov_b32 s{SW+3}, 0x20000
    s_mov_b32 s{SWS}, s36
    s_mov_b32 s{SWS+1}, s37
    s_mov_b32 s{SWS+2}, {WS_USED}
    s_mov_b32 s{SWS+3}, 0x20000
    """)
    pf.stamp(4)
    a(f"""
    s_cmp_ge_u32 s{sWAVE}, 4
    s_cbranch_scc1 {name}_loader
    """)
    sTM=26; sFN=27
    vXA=4; vWA=8
    ACC=32
    def acc(tt,sec): return ACC+(tt*3+sec)*16
    FR=[128,148]
    def xf(s,tt): return FR[s]+4*tt
    def wf(s,sec): return FR[s]+8+4*sec
    a(f"""
    s_and_b32 s{sTM}, s{sWAVE}, 1
    s_lshr_b32 s{sFN}, s{sWAVE}, 1
    v_lshrrev_b32 v2, 5, v1                 ; hf
    v_and_b32 v3, 31, v1                    ; t31
    v_lshrrev_b32 v9, 1, v3
    v_and_b32 v9, 7, v9                     ; g
    s_lshl_b32 s{sT}, s{sTM}, 13            ; tm*64*128
    v_lshlrev_b32 v10, 7, v3                ; t31*128
    v_add_u32 v10, s{sT}, v10
    """)
    for ks in range(4):
        a(f"""
        v_or_b32 v11, {2*ks}, v2
        v_xor_b32 v11, v11, v9
        v_lshl_add_u32 v{vXA+ks}, v11, 4, v10
        """)
    if XB: raise Exception
    a(f"""
    v_bfe_u32 v10, v1, 2, 2                 ; (l&15)>>2
    v_lshlrev_b32 v10, 7, v10
    v_lshl_add_u32 v10, v2, 10, v10         ; + hf*1024
    v_bfe_u32 v11, v1, 4, 1
    v_lshlrev_b32 v11, 1, v11               ; 2*((l>>4)&1)
    v_bfe_u32 v12, v1, 1, 1                 ; (l&3)>>1
    v_or_b32 v11, v11, v12
    s_lshl_b32 s{sT}, s{sFN}, 2
    v_or_b32 v11, s{sT}, v11                ; c
    v_bfe_u32 v12, v1, 3, 1
    v_lshlrev_b32 v12, 2, v12
    v_xor_b32 v11, v11, v12                 ; c'
    v_lshl_add_u32 v10, v11, 4, v10
    v_and_b32 v12, 1, v1
    v_lshl_add_u32 v10, v12, 3, v10
    v_add_u32 v{vWA}, {WB}, v10
    """)
    for r in range(ACC,ACC+96): a(f"v_mov_b32 v{r}, 0")
    a(f"""
    s_mov_b32 s58, {(-(NS-1)*XS)&0xffffffff:#x}
    s_mov_b32 s59, {XS}
    s_mov_b32 s60, {(-(NS-1)*WS_)&0xffffffff:#x}
    s_mov_b32 s61, {WS_}
    """)

    def reads(s, ks):
        L=[]
        if cfg.get("diag_noreads"): return ["s_nop 0"]*8
        L.append(f"ds_read_b128 {vr(xf(s,0),4)}, v{vXA+ks}")
        L.append(f"ds_read_b64_tr_b16 {vr(wf(s,0),2)}, v{vWA} offset:{ks*2048}")
        L.append(f"ds_read_b64_tr_b16 {vr(wf(s,0)+2,2)}, v{vWA} offset:{ks*2048+512}")
        L.append(f"ds_read_b128 {vr(xf(s,1),4)}, v{vXA+ks} offset:4096")
        for sec in (1,2):
            L.append(f"ds_read_b64_tr_b16 {vr(wf(s,sec),2)}, v{vWA} offset:{sec*8192+ks*2048}")
            L.append(f"ds_read_b64_tr_b16 {vr(wf(s,sec)+2,2)}, v{vWA} offset:{sec*8192+ks*2048+512}")
        return L
    def mfmas(s, br):
        L=[]
        for sec in range(3):
            for tt in range(2):
                featrow = (sec==0) or (sec==1 and br==1)
                A_,B_ = (wf(s,sec),xf(s,tt)) if featrow else (xf(s,tt),wf(s,sec))
                L.append(f"v_mfma_f32_32x32x16_bf16 {vr(acc(tt,sec),16)}, {vr(A_,4)}, {vr(B_,4)}, {vr(acc(tt,sec),16)}")
        return L
    def step(s, br, rd):
        M=mfmas(s,br)
        if rd:
            a(M[0]); a(rd[0]); a(rd[1]); a(rd[2])
            a(M[1]); a(rd[3]); a(rd[4]); a(rd[5])
            a(M[2]); a(rd[6]); a(rd[7])
            a(M[3]); a(M[4]); a(M[5])
        else:
            for m in M: a(m)

    sCNT=38; sSTG=39; sDX=40; sDW=41
    for br in (0,1):
        bn="AB"[br]
        if br==0:
            a(f"s_cmp_eq_u32 s{sBR}, 1\ns_cbranch_scc1 {name}_cB")
        else:
            a.label(f"{name}_cB")
        a(f"s_mov_b32 s{sCNT}, 0\ns_mov_b32 s{sSTG}, 0")
        pf.stamp(5)
        a("s_barrier")
        pf.stamp(1)
        for l in reads(0,0): a(l)
        a.label(f"{name}_loop{bn}")
        for ks in range(3):
            a("s_waitcnt lgkmcnt(0)")
            step(ks&1, br, reads((ks+1)&1, ks+1))
        a(f"""
        s_add_u32 s{sSTG}, s{sSTG}, 1
        s_cmp_eq_u32 s{sSTG}, {NS}
        s_cselect_b32 s{sDX}, s58, s59
        s_cselect_b32 s{sDW}, s60, s61
        s_cselect_b32 s{sSTG}, 0, s{sSTG}
        s_waitcnt lgkmcnt(0)
        s_barrier
        """)
        for ks in range(4): a(f"v_add_u32 v{vXA+ks}, s{sDX}, v{vXA+ks}")
        a(f"v_add_u32 v{vWA}, s{sDW}, v{vWA}")
        step(1, br, reads(0,0))
        a(f"""
        s_add_u32 s{sCNT}, s{sCNT}, 1
        s_cmp_lt_u32 s{sCNT}, 7
        s_cbranch_scc1 {name}_loop{bn}
        """)
        for ks in range(3):
            a("s_waitcnt lgkmcnt(0)")
            step(ks&1, br, reads((ks+1)&1, ks+1))
        a("s_waitcnt lgkmcnt(0)")
        step(1, br, [])
        pf.stamp(2)
        T0=128
        sOFF=42; sH=43; sTB=44
        a(f"""
        s_lshl_b32 s{sH}, s{sG}, 2
        s_lshl_b32 s{sT}, s{sFN}, 1
        s_add_u32 s{sH}, s{sH}, s{sT}          ; h0 = 4G+2fn
        s_lshl_b32 s{sTB}, s{sR}, 2
        s_lshl_b32 s{sT}, s{sTM}, 1
        s_add_u32 s{sTB}, s{sTB}, s{sT}
        s_lshl_b32 s{sOFF}, s{sH}, 16
        s_lshl_b32 s{sT}, s{sTB}, 10
        s_add_u32 s{sOFF}, s{sOFF}, s{sT}      ; (h0*64+tb0)*1024
        v_lshlrev_b32 v9, 4, v1                ; lane*16
        """)
        if br==1:
            a(f"s_mov_b32 s46, {f2u(CSCALE):#x}\ns_mov_b32 s47, {f2u(CSCALE):#x}")
            a(f"""
            v_bfe_u32 v10, v1, 4, 1
            v_lshlrev_b32 v10, 16, v10
            v_lshrrev_b32 v11, 5, v1
            v_lshl_add_u32 v10, v11, 8, v10
            v_and_b32 v11, 15, v1
            v_lshl_add_u32 v10, v11, 4, v10
            s_nop 7
            """)
            tmp=T0
            for tt in range(2):
                b=acc(tt,0)
                for i in range(8):
                    a(f"v_pk_mul_f32 {vr(b+2*i,2)}, {vr(b+2*i,2)}, s[46:47]")
                for i in range(8):
                    a(f"v_cvt_pk_bf16_f32 v{tmp+i}, v{b+2*i}, v{b+2*i+1}")
                a(f"s_add_u32 s{sT}, s{sOFF}, {QF+tt*1024}")
                a(f"buffer_store_dwordx4 {vr(tmp,4)}, v9, s[{SWS}:{SWS+3}], s{sT} offen {STF}")
                a(f"s_add_u32 s{sT2}, s{sOFF}, {QF+tt*1024+65536}")
                a(f"buffer_store_dwordx4 {vr(tmp+4,4)}, v9, s[{SWS}:{SWS+3}], s{sT2} offen {STF}")
                tmp = T0+8 if tmp==T0 else T0
            tmp=T0+16
            for tt in range(2):
                b=acc(tt,1)
                for i in range(8):
                    a(f"v_cvt_pk_bf16_f32 v{tmp+i}, v{b+2*i}, v{b+2*i+1}")
                a(f"s_add_u32 s{sT}, s{sOFF}, {KF+tt*1024}")
                a(f"buffer_store_dwordx4 {vr(tmp,4)}, v9, s[{SWS}:{SWS+3}], s{sT} offen {STF}")
                a(f"s_add_u32 s{sT2}, s{sOFF}, {KF+tt*1024+65536}")
                a(f"buffer_store_dwordx4 {vr(tmp+4,4)}, v9, s[{SWS}:{SWS+3}], s{sT2} offen {STF}")
                tmp = T0+24
            tmp=T0
            for tt in range(2):
                b=acc(tt,2)
                for i in range(8):
                    a(f"v_cvt_pk_bf16_f32 v{tmp+i}, v{b+2*i}, v{b+2*i+1}")
                a(f"s_add_u32 s{sT}, s{sOFF}, {VF+tt*1024}")
                a(f"buffer_store_dwordx4 {vr(tmp,4)}, v10, s[{SWS}:{SWS+3}], s{sT} offen {STF}")
                a(f"buffer_store_dwordx4 {vr(tmp+4,4)}, v10, s[{SWS}:{SWS+3}], s{sT} offen offset:512 {STF}")
                tmp = T0+8
            if pf.on:
                pf.stamp(6); a("s_waitcnt vmcnt(0)"); pf.stamp(3); pf.flush(7,80,2)
            a("s_endpgm")
        else:
            a(f"""
            s_mov_b32 s46, {f2u(LOG2E):#x}
            s_mov_b32 s47, {f2u(LOG2E):#x}
            s_mov_b32 s48, 1.0
            s_mov_b32 s49, 1.0
            s_mov_b32 s50, {f2u(1e-6):#x}
            s_mov_b32 s51, {f2u(1e-6):#x}
            s_mov_b32 s52, 0x0000ffff
            s_mov_b32 s53, 0x0000ffff
            v_mov_b32 v20, 0x3f803f80
            v_mov_b32 v21, 0x3f803f80
            v_mov_b32 v22, 0x3f803f80
            v_mov_b32 v23, 0x3f803f80
            s_nop 4
            """)
            U=168
            def phi(b):
                for i in range(8): a(f"v_pk_mul_f32 {vr(U+2*i,2)}, {vr(b+2*i,2)}, s[46:47]")
                for i in range(16): a(f"v_exp_f32 v{U+i}, v{U+i} clamp")
                for i in range(8): a(f"v_pk_add_f32 {vr(b+2*i,2)}, {vr(b+2*i,2)}, s[48:49]")
                for i in range(16): a(f"v_max_f32 v{b+i}, v{b+i}, v{U+i}")
                for i in range(8): a(f"v_pk_add_f32 {vr(b+2*i,2)}, {vr(b+2*i,2)}, s[50:51]")
            PK=[128,136]; VV=[144,152]; D=184; D2=200
            for tt in range(2):
                b=acc(tt,2)
                for i in range(8): a(f"v_cvt_pk_bf16_f32 v{VV[tt]+i}, v{b+2*i}, v{b+2*i+1}")
            for tt in range(2):
                b=acc(tt,1)
                phi(b)
                for i in range(8): a(f"v_cvt_pk_bf16_f32 v{PK[tt]+i}, v{b+2*i}, v{b+2*i+1}")
                a("s_nop 1")
                for m in range(2):
                    c1 = "0" if (tt==0 and m==0) else vr(D,16)
                    c2 = "0" if (tt==0 and m==0) else vr(D2,16)
                    a(f"v_mfma_f32_32x32x16_bf16 {vr(D,16)}, {vr(PK[tt]+4*m,4)}, {vr(VV[tt]+4*m,4)}, {c1}")
                    a(f"v_mfma_f32_32x32x16_bf16 {vr(D2,16)}, {vr(PK[tt]+4*m,4)}, v[20:23], {c2}")
            tmp=160
            for tt in range(2):
                b=acc(tt,0)
                phi(b)
                for i in range(8): a(f"v_cvt_pk_bf16_f32 v{tmp+i}, v{b+2*i}, v{b+2*i+1}")
                a(f"s_add_u32 s{sT}, s{sOFF}, {PQ+tt*1024}")
                a(f"buffer_store_dwordx4 {vr(tmp,4)}, v9, s[{SWS}:{SWS+3}], s{sT} offen {STF}")
                a(f"s_add_u32 s{sT2}, s{sOFF}, {PQ+tt*1024+65536}")
                a(f"buffer_store_dwordx4 {vr(tmp+4,4)}, v9, s[{SWS}:{SWS+3}], s{sT2} offen {STF}")
                tmp=216
            for r in range(8):  a(f"v_cndmask_b32_e64 v{D+r}, v{D2+r}, v{D+r}, s[52:53]")
            for r in range(8,16): a(f"v_cndmask_b32_e64 v{D+r}, v{D+r}, v{D2+r}, s[52:53]")
            st7=7%NS
            EX = WB + ((st7+1)%NS)*WS_
            a(f"""
            s_lshl_b32 s{sT}, s{sFN}, 12
            s_add_u32 s{sT}, s{sT}, {EX}
            v_add_u32 v10, s{sT}, v9
            s_cmp_eq_u32 s{sTM}, 0
            s_cbranch_scc1 {name}_Ared
            """)
            for q in range(4): a(f"ds_write_b128 v10, {vr(D+4*q,4)} offset:{q*1024}")
            a(f"s_waitcnt lgkmcnt(0)\ns_barrier\ns_endpgm")
            a.label(f"{name}_Ared")
            a("s_barrier")
            for q in range(4): a(f"ds_read_b128 {vr(D2+4*q,4)}, v10 offset:{q*1024}")
            a(f"""
            v_and_b32 v11, 31, v1                  ; idx
            v_lshrrev_b32 v12, 5, v1               ; hf
            v_and_b32 v13, 15, v1
            v_lshlrev_b32 v13, 5, v13
            v_lshl_add_u32 v13, v12, 9, v13
            v_lshlrev_b32 v14, 5, v12
            v_add_u32 v14, 1024, v14               ; 1024 + hf*32
            v_mov_b32 v15, 0x40000000
            v_cmp_eq_u32 s[54:55], 16, v11
            v_cmp_eq_u32 s[56:57], 0, v11
            s_nop 1
            v_cndmask_b32_e64 v16, v15, v14, s[54:55]
            v_cndmask_b32_e64 v17, v15, v14, s[56:57]
            v_cndmask_b32_e64 v16, v16, v13, s[52:53]
            v_cndmask_b32_e64 v17, v13, v17, s[52:53]
            s_lshl_b32 s{sT}, s{sH}, 4
            s_add_u32 s{sT}, s{sT}, s{sR}
            s_mul_i32 s{sT}, s{sT}, 1088
            s_add_u32 s{sT}, s{sT}, {KVP}
            s_add_u32 s{sT2}, s{sT}, {16*1088}
            s_waitcnt lgkmcnt(0)
            """)
            for i in range(8): a(f"v_pk_add_f32 {vr(D+2*i,2)}, {vr(D+2*i,2)}, {vr(D2+2*i,2)}")
            a(f"""
            buffer_store_dwordx4 {vr(D,4)}, v16, s[{SWS}:{SWS+3}], s{sT} offen {STF}
            buffer_store_dwordx4 {vr(D+4,4)}, v16, s[{SWS}:{SWS+3}], s{sT} offen offset:16 {STF}
            buffer_store_dwordx4 {vr(D+8,4)}, v17, s[{SWS}:{SWS+3}], s{sT2} offen {STF}
            buffer_store_dwordx4 {vr(D+12,4)}, v17, s[{SWS}:{SWS+3}], s{sT2} offen offset:16 {STF}
            """)
            if pf.on:
                pf.stamp(6); a("s_waitcnt vmcnt(0)"); pf.stamp(3); pf.flush(7,80,2)
            a("s_endpgm")
    a.label(f"{name}_loader")
    sE=26; sXB=27; sWBs=38; sL=39
    a(f"""
    s_sub_u32 s{sE}, s{sWAVE}, 4
    v_lshrrev_b32 v2, 3, v1                 ; r
    v_and_b32 v3, 7, v1                     ; p
    v_lshrrev_b32 v4, 1, v2                 ; r>>1
    s_and_b32 s{sT}, s{sE}, 1
    s_lshl_b32 s{sT}, s{sT}, 2
    v_or_b32 v4, s{sT}, v4                  ; g
    v_xor_b32 v4, v4, v3
    v_lshlrev_b32 v5, 10, v2
    v_lshl_add_u32 v5, v4, 4, v5            ; x voffset
    v_bfe_u32 v4, v1, 4, 1
    v_lshlrev_b32 v4, 2, v4
    v_xor_b32 v4, v4, v3
    v_mul_u32_u24 v6, 3072, v2
    v_lshl_add_u32 v6, v4, 4, v6            ; w voffset
    s_lshl_b32 s{sXB}, s{sR}, 17
    s_lshl_b32 s{sT}, s{sE}, 13
    s_add_u32 s{sXB}, s{sXB}, s{sT}
    s_lshl_b32 s{sWBs}, s{sG}, 7
    s_mul_i32 s{sT}, s{sE}, 24576
    s_add_u32 s{sWBs}, s{sWBs}, s{sT}
    s_lshl_b32 s{sL}, s{sE}, 10
    """)
    sROT=40; sXC=41; sWC=42
    a(f"s_mov_b32 s{sROT}, 0")
    for (src,sh,mask,mul) in cfg.get("k1_rot",[]):
        r={"R":sR,"G":sG}[src]
        a(f"s_lshr_b32 s{sT}, s{r}, {sh}\ns_and_b32 s{sT}, s{sT}, {mask}\ns_mul_i32 s{sT}, s{sT}, {mul}\ns_add_u32 s{sROT}, s{sROT}, s{sT}")
    def issue(c):
        if cfg.get("diag_nodma"): return
        st=c%NS
        a(f"""
        s_add_u32 s{sT}, s{sROT}, {c}
        s_and_b32 s{sT}, s{sT}, 7
        s_lshl_b32 s{sXC}, s{sT}, 7
        s_add_u32 s{sXC}, s{sXC}, s{sXB}
        s_mul_i32 s{sWC}, s{sT}, 196608
        s_add_u32 s{sWC}, s{sWC}, s{sWBs}
        """)
        for i in range(4):
            a(f"s_add_u32 m0, s{sL}, {XB+st*XS+i*4096}")
            a(f"s_add_u32 s{sT}, s{sXC}, {i*32768}")
            a(f"buffer_load_dwordx4 v5, s[{SX}:{SX+3}], s{sT} offen {LDF} lds")
        for jj in range(2):
            for sec in range(3):
                a(f"s_add_u32 m0, s{sL}, {WB+st*WS_+sec*8192+jj*4096}")
                a(f"s_add_u32 s{sT}, s{sWC}, {jj*4*24576+sec*1024}")
                a(f"buffer_load_dwordx4 v6, s[{SW}:{SW+3}], s{sT} offen {LDF} lds")
    if cfg.get("k1_order",1)==0:
        for c in range(NS): issue(c)
        a(f"s_waitcnt vmcnt({10*(NS-1)})\ns_barrier")
    else:
        issue(0); issue(1)
        a(f"s_waitcnt vmcnt(10)\ns_barrier")
        for c in range(2,NS): issue(c)
    for c in range(7):
        issued=min(8,c+NS)
        rem=issued-(c+2)
        a(f"s_waitcnt vmcnt({10*rem})\ns_barrier")
        if c+NS<8: issue(c+NS)
    a.label(f"{name}_end")
    a("s_endpgm")
    lds=NS*40960
    return dict(name=name, grid=256, block=512, lds=lds, vgpr=232, sgpr=88 if cfg.get('prof') else 64)
```

```python
from asmlib import *
from k1 import QF,KF,VF,PQ,OF,KVP,WS_USED
NEGBIG=-1.0e30

def diag_mask(r):
    m=0
    for l in range(64):
        b=8*(r>>2)+4*(l>>5)+(r&3)
        if b<=(l&31): m|=1<<l
    return m

KL=0; VL=16384; ONES=32768; KVL=ONES+9216; RED=KVL+17408; K2_LDS=RED+1088+192

class K2R:
    SWS=8
    sWAVE=20; sRB=21; sH=22; sQB=23; sT=24; sT2=25; sTMIN=26; sBASE=27; sOB=30
    MASK=32
    vLANE=1; vL16=3; vQ=4; vPQ=8; PM=16; vKA=24; vVA=25; vKVA=26; vRA=27; MX=28
    KFr=32
    SA,SB,SC,SD=68,84,100,116
    M=132; NEG=148; O=164; P=180; P2=188; VA=196; VB=204; OA=212; TMP=228

def k2_setup_consts(a, R):
    sT,sT2=R.sT,R.sT2
    a(f"""
    v_mov_b32 v12, 0x3f803f80
    v_mov_b32 v13, 0x3f803f80
    v_mov_b32 v14, 0x3f803f80
    v_mov_b32 v15, 0x3f803f80
    s_lshl_b32 s{sT}, s{R.sWAVE}, 10
    s_add_u32 s{sT}, s{sT}, {ONES}
    v_add_u32 v16, s{sT}, v{R.vL16}
    ds_write_b128 v16, v[12:15]
    v_add_u32 v16, {ONES+8192}, v{R.vL16}
    ds_write_b128 v16, v[12:15]
    """)
    for r in range(16):
        m=diag_mask(r)
        a(f"s_mov_b32 s{R.MASK+2*r}, {m&0xffffffff:#x}\ns_mov_b32 s{R.MASK+2*r+1}, {m>>32:#x}")
    a("v_mov_b32 v24, 0xffff\nv_mov_b32 v25, 0xffff0000")
    for i in range(8):
        a(f"v_cndmask_b32_e64 v{R.PM+i}, 0, v24, s[{R.MASK+4*i}:{R.MASK+4*i+1}]")
        a(f"v_cndmask_b32_e64 v26, 0, v25, s[{R.MASK+4*i+2}:{R.MASK+4*i+3}]")
        a(f"v_or_b32 v{R.PM+i}, v{R.PM+i}, v26")
    a(f"""
    s_lshl_b32 s{sT}, s{R.sWAVE}, 10
    s_add_u32 s{sT2}, s{sT}, {KL}
    v_add_u32 v{R.vKA}, s{sT2}, v{R.vL16}
    v_and_b32 v28, 31, v{R.vLANE}             ; idx
    v_lshrrev_b32 v29, 5, v{R.vLANE}          ; hf
    v_lshlrev_b32 v30, 4, v28
    v_lshl_add_u32 v30, v29, 8, v30
    s_add_u32 s{sT2}, s{sT}, {VL}
    v_add_u32 v30, s{sT2}, v30
    v_subrev_u32 v31, 20, v28
    v_cmp_gt_u32 vcc, 8, v31
    v_mov_b32 v31, {ONES}
    v_mov_b32 v12, {ONES+64}
    v_cndmask_b32_e64 v31, v31, v12, vcc
    v_cmp_gt_u32 vcc, 16, v28
    s_nop 1
    v_cndmask_b32_e64 v{R.vVA}, v31, v30, vcc
    v_lshlrev_b32 v30, 5, v28
    v_lshl_add_u32 v30, v29, 9, v30
    v_lshlrev_b32 v31, 5, v29
    v_add_u32 v31, 1024, v31
    v_cndmask_b32_e64 v{R.vKVA}, v31, v30, vcc
    v_add_u32 v{R.vKVA}, {RED}, v{R.vKVA}
    s_sub_u32 s{R.sTMIN}, 8, s{R.sWAVE}
    s_cmp_eq_u32 s{R.sRB}, 0
    s_cselect_b32 s{R.sTMIN}, s{R.sTMIN}, 1
    """)

def k2_load_b(a, R, LDF):
    sT,sT2,SWS=R.sT,R.sT2,R.SWS
    a(f"""
    s_lshl_b32 s{R.sBASE}, s{R.sH}, 16            ; h*65536
    s_lshl_b32 s{sT}, s{R.sQB}, 10
    s_add_u32 s{sT}, s{sT}, s{R.sBASE}
    s_add_u32 s{sT2}, s{sT}, {QF}
    buffer_load_dwordx4 {vr(R.vQ,4)}, v{R.vL16}, s[{SWS}:{SWS+3}], s{sT2} offen {LDF}
    """)
    for u in range(2):
        a(f"""
        s_lshl_b32 s{sT}, s{R.sWAVE}, 1
        s_add_u32 s{sT}, s{sT}, {u}              ; slot
        s_lshl_b32 s{sT2}, s{R.sRB}, 3
        s_add_u32 s{sT2}, s{sT2}, s{sT}
        s_sub_i32 s{sT2}, s{sT2}, 8
        s_max_i32 s{sT2}, s{sT2}, 0              ; tile
        s_lshl_b32 s{sT2}, s{sT2}, 10
        s_add_u32 s{sT2}, s{sT2}, s{R.sBASE}
        s_lshl_b32 s{sT}, s{sT}, 10
        s_add_u32 m0, s{sT}, {KL}
        s_add_u32 s28, s{sT2}, {KF}
        buffer_load_dwordx4 v{R.vL16}, s[{SWS}:{SWS+3}], s28 offen {LDF} lds
        s_add_u32 m0, s{sT}, {VL}
        s_add_u32 s28, s{sT2}, {VF}
        buffer_load_dwordx4 v{R.vL16}, s[{SWS}:{SWS+3}], s28 offen {LDF} lds
        """)

def k2_load_a(a, R, LDF, name):
    sT,sT2,SWS=R.sT,R.sT2,R.SWS
    a(f"""
    s_mul_i32 s28, s{R.sH}, 17408
    s_add_u32 s28, s28, {KVP}
    s_cmp_lg_u32 s{R.sWAVE}, 0
    s_cbranch_scc1 {name}_nokv16
    s_mov_b32 m0, {KVL+16*1024}
    s_add_u32 s{sT}, s28, {16*1024}
    buffer_load_dwordx4 v{R.vL16}, s[{SWS}:{SWS+3}], s{sT} offen {LDF} lds
    {name}_nokv16:
    s_lshl_b32 s{sT2}, s{R.sWAVE}, 10
    s_add_u32 m0, s{sT2}, {KVL}
    s_add_u32 s{sT}, s28, s{sT2}
    buffer_load_dwordx4 v{R.vL16}, s[{SWS}:{SWS+3}], s{sT} offen {LDF} lds
    s_add_u32 m0, s{sT2}, {KVL+8192}
    s_add_u32 s{sT}, s{sT}, 8192
    buffer_load_dwordx4 v{R.vL16}, s[{SWS}:{SWS+3}], s{sT} offen {LDF} lds
    s_lshl_b32 s{sT}, s{R.sH}, 16
    s_lshl_b32 s{sT2}, s{R.sQB}, 10
    s_add_u32 s{sT}, s{sT}, s{sT2}
    s_add_u32 s{sT}, s{sT}, {PQ}
    buffer_load_dwordx4 {vr(R.vPQ,4)}, v{R.vL16}, s[{SWS}:{SWS+3}], s{sT} offen {LDF}
    """)

def k2_attn(a, R, name, cfg, pf=None, hooks=None):
    hooks=hooks or {}
    SA,SB,SC,SD,M,NEG,O,P,P2,VA,VB,TMP=R.SA,R.SB,R.SC,R.SD,R.M,R.NEG,R.O,R.P,R.P2,R.VA,R.VB,R.TMP
    vQ,vKA,vVA,MASK,PM,MX=R.vQ,R.vKA,R.vVA,R.MASK,R.PM,R.MX
    def kf(t): return R.KFr+4*t
    def mf(D,A_,B_,C): a(f"v_mfma_f32_32x32x16_bf16 {vr(D,16)}, {vr(A_,4)}, {vr(B_,4)}, {C if isinstance(C,str) else vr(C,16)}")
    def vreads(t,V):
        a(f"ds_read_b128 {vr(V,4)}, v{vVA} offset:{t*1024}")
        a(f"ds_read_b128 {vr(V+4,4)}, v{vVA} offset:{t*1024+512}")
    def chk(t,lab): a(f"s_cmp_gt_u32 s{R.sTMIN}, {t}\ns_cbranch_scc1 {lab}")
    def hook(k):
        if k in hooks: hooks[k]()
    FE=f"{name}_fend"; SLOW=f"{name}_slow"; EPI=f"{name}_epi"
    nomax=cfg.get("k2_nomax",True)
    if nomax:
        KA,KB,KC=kf(0),kf(1),kf(2)
        a(f"ds_read_b128 {vr(KA,4)}, v{vKA} offset:0")
        a(f"ds_read_b128 {vr(KB,4)}, v{vKA} offset:{8*1024}")
        a(f"ds_read_b128 {vr(KC,4)}, v{vKA} offset:{7*1024}")
        vreads(8,VA); vreads(0,VB)
        l0=f"{name}_f0a"; l1=f"{name}_f0b"
        a(f"s_cmp_eq_u32 s{R.sRB}, 0\ns_cbranch_scc1 {l0}")
        a("s_waitcnt lgkmcnt(6)")
        mf(SA,KA,vQ,"0")
        a(f"s_branch {l1}")
        a.label(l0)
        for r in range(16): a(f"v_mov_b32 v{SA+r}, {f2u(NEGBIG):#x}")
        a.label(l1)
        a("s_waitcnt lgkmcnt(5)")
        mf(SB,KB,vQ,"0")
        a("s_waitcnt lgkmcnt(4)")
        mf(SC,KC,vQ,"0")
        a(f"ds_read_b128 {vr(KA,4)}, v{vKA} offset:{6*1024}")
        hook("pre")
        a("s_nop 7\ns_nop 1")
        for r in range(16):
            a(f"v_cndmask_b32_e64 v{M+r}, v{SA+r}, v{SB+r}, s[{MASK+2*r}:{MASK+2*r+1}]")
        for r in range(16): a(f"v_exp_f32 v{M+r}, v{M+r}")
        a("s_nop 0")
        for i in range(8): a(f"v_cvt_pk_bf16_f32 v{P+i}, v{M+2*i}, v{M+2*i+1}")
        for i in range(8): a(f"v_and_b32 v{P2+i}, v{P+i}, v{PM+i}")
        for i in range(8): a(f"v_xor_b32 v{P+i}, v{P+i}, v{P2+i}")
        a("s_waitcnt lgkmcnt(1)")
        mf(O,VA,P2,"0"); mf(O,VA+4,P2+4,O)
        lab=f"{name}_fskip0"
        a(f"s_cmp_eq_u32 s{R.sRB}, 0\ns_cbranch_scc1 {lab}")
        mf(O,VB,P,O); mf(O,VB+4,P+4,O)
        a.label(lab)
        hook("post0")
        bufs=[SC,SD]; Vb=[VA,VB]; Pb=[P2,P]; Kb=[KA,KB]
        for n,t in enumerate(range(7,0,-1)):
            S=bufs[n&1]; Sn=bufs[(n+1)&1]; V=Vb[n&1]; Pp=Pb[n&1]
            chk(t,FE)
            vreads(t,V)
            if t>1:
                a("s_waitcnt lgkmcnt(2)")
                mf(Sn,Kb[n&1],vQ,"0")
            if t>2: a(f"ds_read_b128 {vr(Kb[(n+1)&1],4)}, v{vKA} offset:{(t-2)*1024}")
            hook(("it",t))
            for r in range(16): a(f"v_exp_f32 v{S+r}, v{S+r}")
            a("s_nop 0")
            for i in range(8): a(f"v_cvt_pk_bf16_f32 v{Pp+i}, v{S+2*i}, v{S+2*i+1}")
            a(f"s_waitcnt lgkmcnt({1 if t>2 else 0})")
            mf(O,V,Pp,O); mf(O,V+4,Pp+4,O)
        a.label(FE)
        a(f"""
        s_nop 15
        v_max3_f32 v28, |v{O}|, |v{O+1}|, |v{O+2}|
        v_max3_f32 v29, |v{O+3}|, |v{O+4}|, |v{O+5}|
        v_max3_f32 v28, v28, |v{O+6}|, |v{O+7}|
        v_max_f32 v28, v28, v29
        s_mov_b32 s28, {f2u(2.0**-64):#x}
        s_mov_b32 s29, {f2u(2.0**64):#x}
        v_cmp_nle_f32 vcc, s28, v{O+8}
        v_cmp_nge_f32 s[30:31], s29, v{O+8}
        s_or_b64 vcc, vcc, s[30:31]
        s_mov_b32 s28, {f2u(2.0**120):#x}
        v_cmp_nge_f32 s[30:31], s28, v28
        s_or_b64 vcc, vcc, s[30:31]
        s_nop 4
        s_cbranch_vccz {EPI}
        """)
    a.label(SLOW)
    a("s_waitcnt lgkmcnt(0)")
    for t in (0,8,7,6,5,4,3,2,1):
        a(f"ds_read_b128 {vr(kf(t),4)}, v{vKA} offset:{t*1024}")
    a("s_waitcnt lgkmcnt(0)")
    l0=f"{name}_rb0a"; l1=f"{name}_rb0b"
    a(f"s_cmp_eq_u32 s{R.sRB}, 0\ns_cbranch_scc1 {l0}")
    mf(SA,kf(0),vQ,"0")
    a(f"s_branch {l1}")
    a.label(l0)
    for r in range(16): a(f"v_mov_b32 v{SA+r}, {f2u(NEGBIG):#x}")
    a.label(l1)
    mf(SB,kf(8),vQ,"0"); mf(SC,kf(7),vQ,"0"); mf(SD,kf(6),vQ,"0")
    a("s_nop 15")
    for r in range(16):
        a(f"v_cndmask_b32_e64 v{M+r}, v{SA+r}, v{SB+r}, s[{MASK+2*r}:{MASK+2*r+1}]")
    a(f"v_max3_f32 v{MX}, v{M}, v{M+1}, v{M+2}")
    for r in range(3,15,2): a(f"v_max3_f32 v{MX}, v{MX}, v{M+r}, v{M+r+1}")
    a(f"v_max_f32 v{MX}, v{MX}, v{M+15}")
    def maxtile(S):
        for r in range(0,16,2): a(f"v_max3_f32 v{MX}, v{MX}, v{S+r}, v{S+r+1}")
    P1E=f"{name}_p1end"
    chk(7,P1E)
    mf(SA,kf(5),vQ,"0"); mf(SB,kf(4),vQ,"0")
    maxtile(SC); chk(6,P1E); maxtile(SD); chk(5,P1E)
    mf(SC,kf(3),vQ,"0"); mf(SD,kf(2),vQ,"0")
    maxtile(SA); chk(4,P1E); maxtile(SB); chk(3,P1E)
    mf(SA,kf(1),vQ,"0")
    maxtile(SC); chk(2,P1E); maxtile(SD); chk(1,P1E)
    a("s_nop 1")
    maxtile(SA)
    a.label(P1E)
    a(f"""
    v_mov_b32 v29, v{MX}
    s_nop 1
    v_permlane32_swap_b32 v29, v{MX}
    s_nop 1
    v_max_f32 v{MX}, v{MX}, v29
    v_sub_f32 v{NEG}, 0, v{MX}
    """)
    for r in range(1,16): a(f"v_mov_b32 v{NEG+r}, v{NEG}")
    vreads(8,VA); vreads(0,VB)
    mf(SC,kf(7),vQ,NEG)
    for i in range(8): a(f"v_pk_add_f32 {vr(M+2*i,2)}, {vr(M+2*i,2)}, {vr(NEG,2)}")
    for r in range(16): a(f"v_exp_f32 v{M+r}, v{M+r}")
    a("s_nop 0")
    for i in range(8): a(f"v_cvt_pk_bf16_f32 v{P+i}, v{M+2*i}, v{M+2*i+1}")
    for i in range(8): a(f"v_and_b32 v{P2+i}, v{P+i}, v{PM+i}")
    for i in range(8): a(f"v_xor_b32 v{P+i}, v{P+i}, v{P2+i}")
    a("s_waitcnt lgkmcnt(0)")
    mf(O,VA,P2,"0"); mf(O,VA+4,P2+4,O)
    lab=f"{name}_skip0"
    a(f"s_cmp_eq_u32 s{R.sRB}, 0\ns_cbranch_scc1 {lab}")
    mf(O,VB,P,O); mf(O,VB+4,P+4,O)
    a.label(lab)
    P2E=f"{name}_p2end"
    bufs=[SC,SD]; Vb=[VA,VB]; Pb=[P,P2]
    for n,t in enumerate(range(7,0,-1)):
        S=bufs[n&1]; Sn=bufs[(n+1)&1]; V=Vb[n&1]; Pp=Pb[n&1]
        chk(t,P2E)
        vreads(t,V)
        if t>1: mf(Sn,kf(t-1),vQ,NEG)
        for r in range(16): a(f"v_exp_f32 v{S+r}, v{S+r}")
        a("s_nop 0")
        for i in range(8): a(f"v_cvt_pk_bf16_f32 v{Pp+i}, v{S+2*i}, v{S+2*i+1}")
        a("s_waitcnt lgkmcnt(0)")
        mf(O,V,Pp,O); mf(O,V+4,Pp+4,O)
    a.label(P2E)
    a("s_nop 15")
    a.label(EPI)
    a(f"v_rcp_f32 v{O+8}, v{O+8}\ns_nop 0")
    for r in range(8): a(f"v_mul_f32 v{O+r}, v{O+r}, v{O+8}")
    for i in range(4): a(f"v_cvt_pk_bf16_f32 v{TMP+i}, v{O+2*i}, v{O+2*i+1}")

def k2_apart(a, R, name):
    OA,TMP=R.OA,R.TMP
    a(f"""
    v_lshlrev_b32 v{R.vRA}, 2, v0               ; tid*4
    v_cmp_gt_u32 vcc, 272, v0
    s_and_saveexec_b64 s[28:29], vcc
    s_cbranch_execz {name}_nored
    """)
    RT=32
    for p in range(12):
        a(f"ds_read_b32 v{RT+p}, v{R.vRA} offset:{KVL+p*1088}")
    for p in range(1,4):
        a(f"s_waitcnt lgkmcnt({11-p})")
        a(f"v_add_f32 v{RT}, v{RT}, v{RT+p}")
    for p in range(12,16):
        a(f"ds_read_b32 v{RT+p}, v{R.vRA} offset:{KVL+p*1088}")
    for p in range(4,16):
        a(f"s_waitcnt lgkmcnt({15-p})")
        a(f"v_add_f32 v{RT}, v{RT}, v{RT+p}")
    a(f"""
    ds_write_b32 v{R.vRA}, v{RT} offset:{RED}
    {name}_nored:
    s_mov_b64 exec, s[28:29]
    s_waitcnt lgkmcnt(0)
    s_barrier
    ds_read_b128 {vr(TMP+8,4)}, v{R.vKVA}
    ds_read_b128 {vr(TMP+12,4)}, v{R.vKVA} offset:16
    s_waitcnt lgkmcnt(0)
    """)
    for i in range(4): a(f"v_cvt_pk_bf16_f32 v{TMP+8+i}, v{TMP+8+2*i}, v{TMP+8+2*i+1}")
    a("s_nop 1")
    a(f"v_mfma_f32_32x32x16_bf16 {vr(OA,16)}, {vr(TMP+8,4)}, {vr(R.vPQ,4)}, 0")
    a(f"""
    s_nop 15
    v_add_f32 v{OA+8}, {f2u(1e-6):#x}, v{OA+8}
    s_nop 0
    v_rcp_f32 v{OA+8}, v{OA+8}
    s_nop 0
    """)
    for r in range(8): a(f"v_mul_f32 v{OA+r}, v{OA+r}, v{OA+8}")
    for i in range(4): a(f"v_cvt_pk_bf16_f32 v{TMP+4+i}, v{OA+2*i}, v{OA+2*i+1}")

def gen_k2(a, name, cfg):
    LDF=cfg.get("k2_ldflags","")
    STF=cfg.get("k2_stflags","")
    R=K2R
    a.raw(f".globl {name}\n.p2align 8\n.type {name},@function\n{name}:")
    SWS=R.SWS
    pf=Prof(a,cfg,1,64,R.sWAVE,4,5)
    pf.stamp(0)
    a(f"""
    s_cmp_ge_u32 s2, 256
    s_cbranch_scc1 {name}_end
    s_load_dwordx2 s[4:5], s[0:1], 64
    v_lshrrev_b32 v2, 6, v0
    v_and_b32 v1, 63, v0
    """)
    if cfg.get("k2_map",1)==0:
        a(f"s_and_b32 s{R.sRB}, s2, 7\nv_readfirstlane_b32 s{R.sWAVE}, v2\ns_lshr_b32 s{R.sH}, s2, 3")
    else:
        a(f"""
        s_bfe_u32 s{R.sRB}, s2, 0x30003
        v_readfirstlane_b32 s{R.sWAVE}, v2
        s_and_b32 s{R.sH}, s2, 7
        s_lshr_b32 s{R.sT}, s2, 6
        s_lshl_b32 s{R.sT}, s{R.sT}, 3
        s_add_u32 s{R.sH}, s{R.sH}, s{R.sT}
        """)
    a(f"""
    v_lshlrev_b32 v3, 4, v1                   ; lane*16
    s_lshl_b32 s{R.sQB}, s{R.sRB}, 3
    s_add_u32 s{R.sQB}, s{R.sQB}, s{R.sWAVE}        ; qb
    s_waitcnt lgkmcnt(0)
    s_mov_b32 s{SWS}, s4
    s_mov_b32 s{SWS+1}, s5
    s_mov_b32 s{SWS+2}, {WS_USED}
    s_mov_b32 s{SWS+3}, 0x20000
    """)
    pf.stamp(6)
    k2_load_b(a,R,LDF)
    k2_load_a(a,R,LDF,name)
    pf.stamp(7)
    k2_setup_consts(a,R)
    pf.stamp(8)
    a("s_waitcnt vmcnt(3) lgkmcnt(0)\ns_barrier")
    pf.stamp(1)
    k2_attn(a,R,name,cfg,pf)
    a(f"""
    s_lshl_b32 s{R.sT}, s{R.sQB}, 5
    s_add_u32 s{R.sT}, s{R.sT}, s{R.sH}
    s_lshl_b32 s{R.sT}, s{R.sT}, 10
    s_add_u32 s{R.sOB}, s{R.sT}, {OF}
    s_add_u32 s{R.sT}, s{R.sOB}, {64*32*1024}
    buffer_store_dwordx4 {vr(R.TMP,4)}, v3, s[{SWS}:{SWS+3}], s{R.sT} offen {STF}
    """)
    pf.stamp(2)
    a("s_waitcnt vmcnt(1)\ns_barrier")
    k2_apart(a,R,name)
    a(f"buffer_store_dwordx4 {vr(R.TMP+4,4)}, v3, s[{SWS}:{SWS+3}], s{R.sOB} offen {STF}")
    if pf.on:
        pf.stamp(3); pf.stamp(4); a("s_waitcnt vmcnt(0)"); pf.stamp(5); pf.flush(9,84,30,wave=7)
    a.label(f"{name}_end")
    a("s_endpgm")
    return dict(name=name, grid=256, block=512, lds=K2_LDS, vgpr=248, sgpr=92 if cfg.get('prof') else 72)
```

```python
from asmlib import *
def gen_diag(a, name, cfg):
    kk,ss,stat = cfg["diag_q"]
    AMP=cfg.get("diag_amp",10)
    a.raw(f".globl {name}\n.p2align 8\n.type {name},@function\n{name}:")
    a(f"""
    s_cmp_ge_u32 s2, 1
    s_cbranch_scc1 {name}_end
    s_load_dwordx2 s[4:5], s[0:1], 64
    s_waitcnt lgkmcnt(0)
    s_mov_b32 s8, s4
    s_mov_b32 s9, s5
    s_mov_b32 s10, {16<<20}
    s_mov_b32 s11, 0x20000
    v_lshlrev_b32 v1, 6, v0
    s_mov_b32 s12, {PROF}
    s_mov_b32 s13, {PROF+kk*32768+4*ss}
    buffer_load_dword v2, v1, s[8:11], s12 offen sc1
    buffer_load_dword v3, v1, s[8:11], s13 offen sc1
    v_mov_b32 v4, 0
    v_mov_b32 v5, -1
    v_mov_b32 v6, 0
    ds_write_b32 v4, v5            ; [0] = min a
    ds_write_b32 v4, v5 offset:4   ; [4] = min b
    ds_write_b32 v4, v6 offset:8   ; [8] = max b
    ds_write_b32 v4, v6 offset:12
    s_waitcnt vmcnt(0) lgkmcnt(0)
    s_barrier
    ds_min_u32 v4, v2
    s_waitcnt lgkmcnt(0)
    s_barrier
    ds_read_b32 v7, v4
    s_waitcnt lgkmcnt(0)
    v_sub_u32 v3, v3, v7           ; b - min a
    ds_min_u32 v4, v3 offset:4
    ds_max_u32 v4, v3 offset:8
    ds_add_u32 v4, v3 offset:12
    s_waitcnt lgkmcnt(0)
    s_barrier
    ds_read_b32 v8, v4 offset:{ {"min":4,"max":8,"mean":12}[stat] }
    s_waitcnt lgkmcnt(0)
    """)
    if stat=="mean": a("v_lshrrev_b32 v8, 8, v8")
    a(f"""
    s_nop 1
    v_readfirstlane_b32 s14, v8
    s_mul_i32 s14, s14, {AMP}
    s_min_u32 s14, s14, 200000
    s_memrealtime s[16:17]
    s_waitcnt lgkmcnt(0)
    {name}_spin:
    s_memrealtime s[18:19]
    s_waitcnt lgkmcnt(0)
    s_sub_u32 s20, s18, s16
    s_cmp_lt_u32 s20, s14
    s_cbranch_scc1 {name}_spin
    {name}_end:
    s_endpgm
    """)
    return dict(name=name, grid=1, block=256, lds=64, vgpr=16, sgpr=32)
```

```python
import sys, json
from asmlib import *
from k1 import gen_k1
from k2 import gen_k2
from k3 import gen_k3
from kdiag import gen_diag
HDR=open("concat_heads__linear_attn_block__sliding_block__prompt.s.ref").read().split("\n")
def build(cfg):
    a=Asm()
    N="concat_heads__linear_attn_block__sliding_block__prompt"
    ks=[]
    ks.append(gen_k1(a,"qkv_kernel",cfg))
    ks.append(gen_k2(a,"attn_kernel",cfg))
    ks.append(gen_k3(a,"oproj_kernel",cfg))
    if 3 in cfg.get("launch",[]): a.raw(".globl empty_kernel\n.p2align 8\n.type empty_kernel,@function\nempty_kernel:")
    if 3 in cfg.get("launch",[]): a("s_endpgm")
    ks.append(dict(name="empty_kernel",grid=cfg.get("empty_grid",256),block=64,lds=0,vgpr=8,sgpr=16))
    if "diag_q" in cfg: ks.append(gen_diag(a,"diag_kernel",cfg))
    out=[]
    for l in HDR:
        if l.startswith("; Override") : break
        out.append(l)
    sel=cfg.get("launch",[0,1,2])
    for i in sel:
        k=ks[i]
        out.append(f"; @launch kernel={k['name']} grid=({k['grid']},1,1) block=({k['block']},1,1) lds={k['lds']}")
    out.append('.amdgcn_target "amdgcn-amd-amdhsa--gfx950"')
    out.append(".text")
    out.append(a.text())
    out.append('.section .rodata,"a"')
    used=set(sel)
    for i,k in enumerate(ks):
        if i in used or i<3: out.append(kdesc(k['name'],k['vgpr'],k['sgpr']))
    return "\n".join(out)
if __name__=="__main__":
    cfg=json.loads(sys.argv[2]) if len(sys.argv)>2 else {}
    open(sys.argv[1],"w").write(build(cfg))
```

```python
from asmlib import *
import math
from k1 import QF,KF,VF,PQ,OF,KVP,WS_USED,LOG2E,CSCALE
import k2
from k2 import K2R,k2_setup_consts,k2_load_b,k2_load_a,k2_attn,k2_apart

FLG=KVP+0x90000
F1=FLG; F2=FLG+4096; NONCE=FLG+8192
WOL=98304
NL=163840-16

sAWO=64; sBWO=66; sOUT=68; sDBG=70; sWSP=72; sN=74; sWV=75; sP3T=76; sP3NS=77; sP3BR=78; sCNT2=79

def poll(a, name, srd, soff, need_lo, need_hi, vtmp, voff, bound=3000):
    L=a.newlabel(name); D=a.newlabel(name+"d")
    a(f"""
    s_mov_b32 s{sCNT2}, 0
    {L}:
    buffer_load_dword v{vtmp}, v{voff}, s[{srd}:{srd+3}], s{soff} offen sc1
    s_waitcnt vmcnt(0)
    v_cmp_eq_u32 vcc, s{sN}, v{vtmp}
    s_and_b64 vcc, vcc, s[{need_lo}:{need_hi}]
    s_cmp_eq_u64 vcc, s[{need_lo}:{need_hi}]
    s_cbranch_scc1 {D}
    s_add_u32 s{sCNT2}, s{sCNT2}, 1
    s_cmp_lt_u32 s{sCNT2}, {bound}
    s_cbranch_scc0 {D}
    s_sleep 1
    s_branch {L}
    {D}:
    """)

def gen_fused(a, name, cfg):
    NS=3
    LDF=cfg.get("k1_ldflags","")
    STF="sc1"; HLD="sc1"
    OSTF=cfg.get("out_stflags","")
    XB=0; XS=16384; WB=NS*XS; WS_=24576
    a.raw(f".globl {name}\n.p2align 8\n.type {name},@function\n{name}:")
    sWAVE=20; sBR=21; sR=22; sG=23; sT=24; sT2=25
    SX=8; SW=12; SWS=16
    pf=Prof(a,cfg,0,80,sWV,sWSP,sWSP+1)
    pf.stamp(0)
    a(f"""
    s_cmp_ge_u32 s2, 256
    s_cbranch_scc1 {name}_end
    s_load_dwordx4 s[28:31], s[0:1], 0
    s_load_dwordx4 s[32:35], s[0:1], 24
    s_load_dwordx2 s[{sAWO}:{sAWO+1}], s[0:1], 16
    s_load_dwordx2 s[{sBWO}:{sBWO+1}], s[0:1], 40
    s_load_dwordx4 s[{sOUT}:{sOUT+3}], s[0:1], 48
    s_load_dwordx2 s[{sWSP}:{sWSP+1}], s[0:1], 64
    v_lshrrev_b32 v2, 6, v0
    v_and_b32 v1, 63, v0
    s_and_b32 s{sT}, s2, 7
    v_readfirstlane_b32 s{sWAVE}, v2
    s_lshr_b32 s{sT2}, s2, 3
    s_and_b32 s{sBR}, s{sT}, 1
    s_lshr_b32 s{sT}, s{sT}, 1
    s_mov_b32 s{sP3BR}, s{sBR}
    s_lshl_b32 s{sP3T}, s{sT}, 2
    s_and_b32 s{sP3NS}, s{sT2}, 3
    s_add_u32 s{sP3T}, s{sP3T}, s{sP3NS}
    s_lshr_b32 s{sP3NS}, s{sT2}, 2
    s_and_b32 s{sR}, s{sT}, 1
    s_lshl_b32 s{sR}, s{sR}, 3
    s_lshr_b32 s{sG}, s{sT}, 1
    s_lshl_b32 s{sG}, s{sG}, 2
    s_and_b32 s{sT}, s{sT2}, 7
    s_add_u32 s{sR}, s{sR}, s{sT}
    s_lshr_b32 s{sT}, s{sT2}, 3
    s_add_u32 s{sG}, s{sG}, s{sT}
    s_mov_b32 s{sWV}, s{sWAVE}
    s_waitcnt lgkmcnt(0)
    s_cmp_eq_u32 s{sBR}, 0
    s_cselect_b32 s{SX}, s28, s32
    s_cselect_b32 s{SX+1}, s29, s33
    s_cselect_b32 s{SW}, s30, s34
    s_cselect_b32 s{SW+1}, s31, s35
    s_mov_b32 s{SX+2}, 0x200000
    s_mov_b32 s{SX+3}, 0x20000
    s_mov_b32 s{SW+2}, 0x180000
    s_mov_b32 s{SW+3}, 0x20000
    s_mov_b32 s{SWS}, s{sWSP}
    s_mov_b32 s{SWS+1}, s{sWSP+1}
    s_mov_b32 s{SWS+2}, {WS_USED}
    s_mov_b32 s{SWS+3}, 0x20000
    s_cmp_ge_u32 s{sWAVE}, 4
    s_cbranch_scc1 {name}_loader
    """)
    sTM=26; sFN=27
    vXA=4; vWA=8
    ACC=32
    def acc(tt,sec): return ACC+(tt*3+sec)*16
    FR=[128,148]
    def xf(s,tt): return FR[s]+4*tt
    def wf(s,sec): return FR[s]+8+4*sec
    a(f"""
    s_mov_b32 s28, s{sDBG}
    s_mov_b32 s29, s{sDBG+1}
    s_mov_b32 s30, 256
    s_mov_b32 s31, 0x20000
    v_mov_b32 v12, 0
    s_cmp_lg_u32 s2, 0
    s_cbranch_scc1 {name}_nononce
    s_cmp_lg_u32 s{sWAVE}, 1
    s_cbranch_scc1 {name}_nononce
    s_mov_b32 s{sT}, {NONCE}
    buffer_load_dword v13, v12, s[{SWS}:{SWS+3}], s{sT} offen sc1
    s_waitcnt vmcnt(0)
    v_add_u32 v13, 1, v13
    v_max_u32 v13, 1, v13
    buffer_store_dword v13, v12, s[28:31], 0 offen sc1
    buffer_store_dword v13, v12, s[{SWS}:{SWS+3}], s{sT} offen sc1
    {name}_nononce:
    """)
    a(f"""
    s_and_b32 s{sTM}, s{sWAVE}, 1
    s_lshr_b32 s{sFN}, s{sWAVE}, 1
    v_lshrrev_b32 v2, 5, v1                 ; hf
    v_and_b32 v3, 31, v1                    ; t31
    v_lshrrev_b32 v9, 1, v3
    v_and_b32 v9, 7, v9                     ; g
    s_lshl_b32 s{sT}, s{sTM}, 13
    v_lshlrev_b32 v10, 7, v3
    v_add_u32 v10, s{sT}, v10
    """)
    for ks in range(4):
        a(f"v_or_b32 v11, {2*ks}, v2\nv_xor_b32 v11, v11, v9\nv_lshl_add_u32 v{vXA+ks}, v11, 4, v10")
    a(f"""
    v_bfe_u32 v10, v1, 2, 2
    v_lshlrev_b32 v10, 7, v10
    v_lshl_add_u32 v10, v2, 10, v10
    v_bfe_u32 v11, v1, 4, 1
    v_lshlrev_b32 v11, 1, v11
    v_bfe_u32 v12, v1, 1, 1
    v_or_b32 v11, v11, v12
    s_lshl_b32 s{sT}, s{sFN}, 2
    v_or_b32 v11, s{sT}, v11
    v_bfe_u32 v12, v1, 3, 1
    v_lshlrev_b32 v12, 2, v12
    v_xor_b32 v11, v11, v12
    v_lshl_add_u32 v10, v11, 4, v10
    v_and_b32 v12, 1, v1
    v_lshl_add_u32 v10, v12, 3, v10
    v_add_u32 v{vWA}, {WB}, v10
    """)
    for r in range(ACC,ACC+96): a(f"v_mov_b32 v{r}, 0")
    a(f"""
    s_mov_b32 s58, {(-(NS-1)*XS)&0xffffffff:#x}
    s_mov_b32 s59, {XS}
    s_mov_b32 s60, {(-(NS-1)*WS_)&0xffffffff:#x}
    s_mov_b32 s61, {WS_}
    """)
    Ln=a.newlabel("nz"); Ld=a.newlabel("nzd")
    a(f"""
    s_cmp_lg_u32 s{sWAVE}, 0
    s_cbranch_scc1 {Ld}_skip
    v_mov_b32 v12, 0
    s_mov_b32 s{sCNT2}, 0
    {Ln}:
    buffer_load_dword v13, v12, s[28:31], 0 offen sc1
    s_waitcnt vmcnt(0)
    v_readfirstlane_b32 s{sN}, v13
    s_cmp_lg_u32 s{sN}, 0
    s_cbranch_scc1 {Ld}
    s_add_u32 s{sCNT2}, s{sCNT2}, 1
    s_cmp_lt_u32 s{sCNT2}, 3000
    s_cbranch_scc0 {Ld}
    s_sleep 2
    s_branch {Ln}
    {Ld}:
    v_mov_b32 v12, {NL}
    ds_write_b32 v12, v13
    s_waitcnt lgkmcnt(0)
    {Ld}_skip:
    """)
    def reads(s, ks):
        L=[]
        L.append(f"ds_read_b128 {vr(xf(s,0),4)}, v{vXA+ks}")
        L.append(f"ds_read_b64_tr_b16 {vr(wf(s,0),2)}, v{vWA} offset:{ks*2048}")
        L.append(f"ds_read_b64_tr_b16 {vr(wf(s,0)+2,2)}, v{vWA} offset:{ks*2048+512}")
        L.append(f"ds_read_b128 {vr(xf(s,1),4)}, v{vXA+ks} offset:4096")
        for sec in (1,2):
            L.append(f"ds_read_b64_tr_b16 {vr(wf(s,sec),2)}, v{vWA} offset:{sec*8192+ks*2048}")
            L.append(f"ds_read_b64_tr_b16 {vr(wf(s,sec)+2,2)}, v{vWA} offset:{sec*8192+ks*2048+512}")
        return L
    def mfmas(s, br):
        L=[]
        for sec in range(3):
            for tt in range(2):
                featrow = (sec==0) or (sec==1 and br==1)
                A_,B_ = (wf(s,sec),xf(s,tt)) if featrow else (xf(s,tt),wf(s,sec))
                L.append(f"v_mfma_f32_32x32x16_bf16 {vr(acc(tt,sec),16)}, {vr(A_,4)}, {vr(B_,4)}, {vr(acc(tt,sec),16)}")
        return L
    def step(s, br, rd):
        M=mfmas(s,br)
        if rd:
            a(M[0]); a(rd[0]); a(rd[1]); a(rd[2])
            a(M[1]); a(rd[3]); a(rd[4]); a(rd[5])
            a(M[2]); a(rd[6]); a(rd[7])
            a(M[3]); a(M[4]); a(M[5])
        else:
            for m in M: a(m)
    def getnonce():
        a(f"v_mov_b32 v12, {NL}\nds_read_b32 v13, v12\ns_waitcnt lgkmcnt(0)\nv_readfirstlane_b32 s{sN}, v13")
    sCNT=38; sSTG=39; sDX=40; sDW=41
    for br in (0,1):
        bn="AB"[br]
        if br==0: a(f"s_cmp_eq_u32 s{sBR}, 1\ns_cbranch_scc1 {name}_cB")
        else: a.label(f"{name}_cB")
        a(f"s_mov_b32 s{sCNT}, 0\ns_mov_b32 s{sSTG}, 0")
        a("s_barrier")
        pf.stamp(1)
        getnonce()
        for l in reads(0,0): a(l)
        a.label(f"{name}_loop{bn}")
        for ks in range(3):
            a("s_waitcnt lgkmcnt(0)")
            step(ks&1, br, reads((ks+1)&1, ks+1))
        a(f"""
        s_add_u32 s{sSTG}, s{sSTG}, 1
        s_cmp_eq_u32 s{sSTG}, {NS}
        s_cselect_b32 s{sDX}, s58, s59
        s_cselect_b32 s{sDW}, s60, s61
        s_cselect_b32 s{sSTG}, 0, s{sSTG}
        s_waitcnt lgkmcnt(0)
        s_barrier
        """)
        for ks in range(4): a(f"v_add_u32 v{vXA+ks}, s{sDX}, v{vXA+ks}")
        a(f"v_add_u32 v{vWA}, s{sDW}, v{vWA}")
        step(1, br, reads(0,0))
        a(f"""
        s_add_u32 s{sCNT}, s{sCNT}, 1
        s_cmp_lt_u32 s{sCNT}, 7
        s_cbranch_scc1 {name}_loop{bn}
        """)
        for ks in range(3):
            a("s_waitcnt lgkmcnt(0)")
            step(ks&1, br, reads((ks+1)&1, ks+1))
        a("s_waitcnt lgkmcnt(0)")
        step(1, br, [])
        pf.stamp(2)
        T0=128
        sOFF=42; sH=43; sTB=44
        a(f"""
        s_lshl_b32 s{sH}, s{sG}, 2
        s_lshl_b32 s{sT}, s{sFN}, 1
        s_add_u32 s{sH}, s{sH}, s{sT}
        s_lshl_b32 s{sTB}, s{sR}, 2
        s_lshl_b32 s{sT}, s{sTM}, 1
        s_add_u32 s{sTB}, s{sTB}, s{sT}
        s_lshl_b32 s{sOFF}, s{sH}, 16
        s_lshl_b32 s{sT}, s{sTB}, 10
        s_add_u32 s{sOFF}, s{sOFF}, s{sT}
        v_lshlrev_b32 v9, 4, v1
        """)
        if br==1:
            a(f"s_mov_b32 s46, {f2u(CSCALE):#x}\ns_mov_b32 s47, {f2u(CSCALE):#x}")
            a(f"""
            v_bfe_u32 v10, v1, 4, 1
            v_lshlrev_b32 v10, 16, v10
            v_lshrrev_b32 v11, 5, v1
            v_lshl_add_u32 v10, v11, 8, v10
            v_and_b32 v11, 15, v1
            v_lshl_add_u32 v10, v11, 4, v10
            s_nop 7
            """)
            tmp=T0
            for tt in range(2):
                b=acc(tt,1)
                for i in range(8): a(f"v_cvt_pk_bf16_f32 v{tmp+i}, v{b+2*i}, v{b+2*i+1}")
                a(f"s_add_u32 s{sT}, s{sOFF}, {KF+tt*1024}")
                a(f"buffer_store_dwordx4 {vr(tmp,4)}, v9, s[{SWS}:{SWS+3}], s{sT} offen {STF}")
                a(f"s_add_u32 s{sT2}, s{sOFF}, {KF+tt*1024+65536}")
                a(f"buffer_store_dwordx4 {vr(tmp+4,4)}, v9, s[{SWS}:{SWS+3}], s{sT2} offen {STF}")
                tmp+=8
            for tt in range(2):
                b=acc(tt,2)
                for i in range(8): a(f"v_cvt_pk_bf16_f32 v{tmp+i}, v{b+2*i}, v{b+2*i+1}")
                a(f"s_add_u32 s{sT}, s{sOFF}, {VF+tt*1024}")
                a(f"buffer_store_dwordx4 {vr(tmp,4)}, v10, s[{SWS}:{SWS+3}], s{sT} offen {STF}")
                a(f"buffer_store_dwordx4 {vr(tmp+4,4)}, v10, s[{SWS}:{SWS+3}], s{sT} offen offset:512 {STF}")
                tmp+=8
            for tt in range(2):
                b=acc(tt,0)
                for i in range(8): a(f"v_pk_mul_f32 {vr(b+2*i,2)}, {vr(b+2*i,2)}, s[46:47]")
                for i in range(8): a(f"v_cvt_pk_bf16_f32 v{tmp+i}, v{b+2*i}, v{b+2*i+1}")
                a(f"s_add_u32 s{sT}, s{sOFF}, {QF+tt*1024}")
                a(f"buffer_store_dwordx4 {vr(tmp,4)}, v9, s[{SWS}:{SWS+3}], s{sT} offen {STF}")
                a(f"s_add_u32 s{sT2}, s{sOFF}, {QF+tt*1024+65536}")
                a(f"buffer_store_dwordx4 {vr(tmp+4,4)}, v9, s[{SWS}:{SWS+3}], s{sT2} offen {STF}")
                tmp+=8
            a(f"s_branch {name}_p1done")
        else:
            a(f"""
            s_mov_b32 s46, {f2u(LOG2E):#x}
            s_mov_b32 s47, {f2u(LOG2E):#x}
            s_mov_b32 s48, 1.0
            s_mov_b32 s49, 1.0
            s_mov_b32 s50, {f2u(1e-6):#x}
            s_mov_b32 s51, {f2u(1e-6):#x}
            s_mov_b32 s52, 0x0000ffff
            s_mov_b32 s53, 0x0000ffff
            v_mov_b32 v20, 0x3f803f80
            v_mov_b32 v21, 0x3f803f80
            v_mov_b32 v22, 0x3f803f80
            v_mov_b32 v23, 0x3f803f80
            s_nop 4
            """)
            U=168
            def phi(b):
                for i in range(8): a(f"v_pk_mul_f32 {vr(U+2*i,2)}, {vr(b+2*i,2)}, s[46:47]")
                for i in range(16): a(f"v_exp_f32 v{U+i}, v{U+i} clamp")
                for i in range(8): a(f"v_pk_add_f32 {vr(b+2*i,2)}, {vr(b+2*i,2)}, s[48:49]")
                for i in range(16): a(f"v_max_f32 v{b+i}, v{b+i}, v{U+i}")
                for i in range(8): a(f"v_pk_add_f32 {vr(b+2*i,2)}, {vr(b+2*i,2)}, s[50:51]")
            PK=[128,136]; VV=[144,152]; D=184; D2=200
            for tt in range(2):
                b=acc(tt,2)
                for i in range(8): a(f"v_cvt_pk_bf16_f32 v{VV[tt]+i}, v{b+2*i}, v{b+2*i+1}")
            mq=[]
            for tt in range(2):
                b=acc(tt,1)
                phi(b)
                for i in range(8): a(f"v_cvt_pk_bf16_f32 v{PK[tt]+i}, v{b+2*i}, v{b+2*i+1}")
                a("s_nop 1")
                for m in range(2):
                    c1 = "0" if (tt==0 and m==0) else vr(D,16)
                    c2 = "0" if (tt==0 and m==0) else vr(D2,16)
                    a(f"v_mfma_f32_32x32x16_bf16 {vr(D,16)}, {vr(PK[tt]+4*m,4)}, {vr(VV[tt]+4*m,4)}, {c1}")
                    a(f"v_mfma_f32_32x32x16_bf16 {vr(D2,16)}, {vr(PK[tt]+4*m,4)}, v[20:23], {c2}")
            a("s_nop 15")
            for r in range(8):  a(f"v_cndmask_b32_e64 v{D+r}, v{D2+r}, v{D+r}, s[52:53]")
            for r in range(8,16): a(f"v_cndmask_b32_e64 v{D+r}, v{D+r}, v{D2+r}, s[52:53]")
            EX = 0
            a(f"""
            s_lshl_b32 s{sT}, s{sFN}, 12
            s_add_u32 s{sT}, s{sT}, {EX}
            v_add_u32 v10, s{sT}, v9
            s_cmp_eq_u32 s{sTM}, 0
            s_cbranch_scc1 {name}_Ard
            """)
            for q in range(4): a(f"ds_write_b128 v10, {vr(D+4*q,4)} offset:{q*1024}")
            a(f"s_waitcnt lgkmcnt(0)")
            a.label(f"{name}_Ard")
            a("s_barrier")
            tmp=216
            def qpart(tt,tmp):
                b=acc(tt,0)
                phi(b)
                for i in range(8): a(f"v_cvt_pk_bf16_f32 v{tmp+i}, v{b+2*i}, v{b+2*i+1}")
                a(f"s_add_u32 s{sT}, s{sOFF}, {PQ+tt*1024}")
                a(f"buffer_store_dwordx4 {vr(tmp,4)}, v9, s[{SWS}:{SWS+3}], s{sT} offen {STF}")
                a(f"s_add_u32 s{sT2}, s{sOFF}, {PQ+tt*1024+65536}")
                a(f"buffer_store_dwordx4 {vr(tmp+4,4)}, v9, s[{SWS}:{SWS+3}], s{sT2} offen {STF}")
            a(f"s_cmp_lg_u32 s{sTM}, 0\ns_cbranch_scc1 {name}_Aq")
            for q in range(4): a(f"ds_read_b128 {vr(D2+4*q,4)}, v10 offset:{q*1024}")
            a(f"""
            v_and_b32 v11, 31, v1
            v_lshrrev_b32 v12, 5, v1
            v_and_b32 v13, 15, v1
            v_lshlrev_b32 v13, 5, v13
            v_lshl_add_u32 v13, v12, 9, v13
            v_lshlrev_b32 v14, 5, v12
            v_add_u32 v14, 1024, v14
            v_mov_b32 v15, 0x40000000
            v_cmp_eq_u32 s[54:55], 16, v11
            v_cmp_eq_u32 s[56:57], 0, v11
            s_nop 1
            v_cndmask_b32_e64 v16, v15, v14, s[54:55]
            v_cndmask_b32_e64 v17, v15, v14, s[56:57]
            v_cndmask_b32_e64 v16, v16, v13, s[52:53]
            v_cndmask_b32_e64 v17, v13, v17, s[52:53]
            s_lshl_b32 s{sT}, s{sH}, 4
            s_add_u32 s{sT}, s{sT}, s{sR}
            s_mul_i32 s{sT}, s{sT}, 1088
            s_add_u32 s{sT}, s{sT}, {KVP}
            s_add_u32 s{sT2}, s{sT}, {16*1088}
            s_waitcnt lgkmcnt(0)
            """)
            for i in range(8): a(f"v_pk_add_f32 {vr(D+2*i,2)}, {vr(D+2*i,2)}, {vr(D2+2*i,2)}")
            a(f"""
            buffer_store_dwordx4 {vr(D,4)}, v16, s[{SWS}:{SWS+3}], s{sT} offen {STF}
            buffer_store_dwordx4 {vr(D+4,4)}, v16, s[{SWS}:{SWS+3}], s{sT} offen offset:16 {STF}
            buffer_store_dwordx4 {vr(D+8,4)}, v17, s[{SWS}:{SWS+3}], s{sT2} offen {STF}
            buffer_store_dwordx4 {vr(D+12,4)}, v17, s[{SWS}:{SWS+3}], s{sT2} offen offset:16 {STF}
            """)
            a.label(f"{name}_Aq")
            qpart(0,216); qpart(1,128)
            a(f"s_branch {name}_p1done")
    a.label(f"{name}_loader")
    sE=26; sXB=27; sWBs=38; sL=39
    a(f"""
    s_sub_u32 s{sE}, s{sWAVE}, 4
    v_lshrrev_b32 v2, 3, v1
    v_and_b32 v3, 7, v1
    v_lshrrev_b32 v4, 1, v2
    s_and_b32 s{sT}, s{sE}, 1
    s_lshl_b32 s{sT}, s{sT}, 2
    v_or_b32 v4, s{sT}, v4
    v_xor_b32 v4, v4, v3
    v_lshlrev_b32 v5, 10, v2
    v_lshl_add_u32 v5, v4, 4, v5            ; x voffset
    v_bfe_u32 v4, v1, 4, 1
    v_lshlrev_b32 v4, 2, v4
    v_xor_b32 v4, v4, v3
    v_mul_u32_u24 v6, 3072, v2
    v_lshl_add_u32 v6, v4, 4, v6            ; w voffset
    v_lshlrev_b32 v7, 10, v2
    v_lshl_add_u32 v7, v4, 4, v7
    s_lshl_b32 s{sXB}, s{sR}, 17
    s_lshl_b32 s{sT}, s{sE}, 13
    s_add_u32 s{sXB}, s{sXB}, s{sT}
    s_lshl_b32 s{sWBs}, s{sG}, 7
    s_mul_i32 s{sT}, s{sE}, 24576
    s_add_u32 s{sWBs}, s{sWBs}, s{sT}
    s_lshl_b32 s{sL}, s{sE}, 10
    """)
    sROT=40; sXC=41; sWC=42
    a(f"s_mov_b32 s{sROT}, 0")
    for (src,sh,mask,mul) in cfg.get("k1_rot",[["R",0,3,2],["G",0,3,1]]):
        r={"R":sR,"G":sG}[src]
        a(f"s_lshr_b32 s{sT}, s{r}, {sh}\ns_and_b32 s{sT}, s{sT}, {mask}\ns_mul_i32 s{sT}, s{sT}, {mul}\ns_add_u32 s{sROT}, s{sROT}, s{sT}")
    def issue(c):
        st=c%NS
        a(f"""
        s_add_u32 s{sT}, s{sROT}, {c}
        s_and_b32 s{sT}, s{sT}, 7
        s_lshl_b32 s{sXC}, s{sT}, 7
        s_add_u32 s{sXC}, s{sXC}, s{sXB}
        s_mul_i32 s{sWC}, s{sT}, 196608
        s_add_u32 s{sWC}, s{sWC}, s{sWBs}
        """)
        for i in range(4):
            a(f"s_add_u32 m0, s{sL}, {XB+st*XS+i*4096}")
            a(f"s_add_u32 s{sT}, s{sXC}, {i*32768}")
            a(f"buffer_load_dwordx4 v5, s[{SX}:{SX+3}], s{sT} offen {LDF} lds")
        for jj in range(2):
            for sec in range(3):
                a(f"s_add_u32 m0, s{sL}, {WB+st*WS_+sec*8192+jj*4096}")
                a(f"s_add_u32 s{sT}, s{sWC}, {jj*4*24576+sec*1024}")
                a(f"buffer_load_dwordx4 v6, s[{SW}:{SW+3}], s{sT} offen {LDF} lds")
    issue(0); issue(1)
    a(f"s_waitcnt vmcnt(10)\ns_barrier")
    issue(2)
    getnonce()
    for c in range(7):
        issued=min(8,c+NS)
        rem=10*(issued-(c+2))
        if c==6: rem=16
        a(f"s_waitcnt vmcnt({rem})\ns_barrier")
        if c+NS<8: issue(c+NS)
        if c==5:
            a(f"""
            s_cmp_eq_u32 s{sP3BR}, 0
            s_cselect_b32 s28, s{sAWO}, s{sBWO}
            s_cselect_b32 s29, s{sAWO+1}, s{sBWO+1}
            s_mov_b32 s30, 0x80000
            s_mov_b32 s31, 0x20000
            s_lshl_b32 s{sXC}, s{sP3NS}, 7
            s_lshl_b32 s{sT}, s{sE}, 13
            s_add_u32 s{sXC}, s{sXC}, s{sT}
            """)
            for u in range(16):
                a(f"s_add_u32 m0, s{sL}, {WOL+u*4096}")
                a(f"s_add_u32 s{sT}, s{sXC}, {u*32768}")
                a(f"buffer_load_dwordx4 v7, s[28:31], s{sT} offen lds")
    a(f"s_cmp_eq_u32 s{sBR}, 1\ns_cbranch_scc1 {name}_p1bar\ns_barrier\ns_branch {name}_p1bar")
    a.label(f"{name}_p1done")
    pf.stamp(3)
    a("s_waitcnt vmcnt(0)")
    a.label(f"{name}_p1bar")
    a("s_barrier")
    R=K2R
    a(f"""
    s_cmp_lg_u32 s{sWV}, 0
    s_cbranch_scc1 {name}_nf1
    s_lshl_b32 s{sT}, s{sBR}, 3
    s_add_u32 s{sT}, s{sT}, s{sG}
    s_lshl_b32 s{sT}, s{sT}, 5
    s_add_u32 s{sT}, s{sT}, s{sR}
    s_lshl_b32 s{sT}, s{sT}, 2
    s_add_u32 s{sT}, s{sT}, {F1}
    v_mov_b32 v12, 0
    v_mov_b32 v13, s{sN}
    buffer_store_dword v13, v12, s[{SWS}:{SWS+3}], s{sT} offen sc1
    {name}_nf1:
    """)
    pf.stamp(4)
    a(f"""
    s_mov_b32 s{R.sWAVE}, s{sWV}
    s_bfe_u32 s{R.sRB}, s2, 0x30003
    s_and_b32 s{R.sH}, s2, 7
    s_lshr_b32 s{R.sT}, s2, 6
    s_lshl_b32 s{R.sT}, s{R.sT}, 3
    s_add_u32 s{R.sH}, s{R.sH}, s{R.sT}
    v_lshlrev_b32 v3, 4, v1
    s_lshl_b32 s{R.sQB}, s{R.sRB}, 3
    s_add_u32 s{R.sQB}, s{R.sQB}, s{R.sWAVE}
    s_mov_b32 s{R.SWS}, s{sWSP}
    s_mov_b32 s{R.SWS+1}, s{sWSP+1}
    s_mov_b32 s{R.SWS+2}, {WS_USED}
    s_mov_b32 s{R.SWS+3}, 0x20000
    """)
    k2_setup_consts(a,R)
    sFA=12; sNEED=14
    a(f"""
    v_lshlrev_b32 v2, 2, v1                   ; lane*4
    s_lshr_b32 s{sFA}, s{R.sH}, 2
    s_lshl_b32 s{sFA}, s{sFA}, 7
    s_add_u32 s13, s{sFA}, {F1}               ; A row
    s_add_u32 s{sFA}, s{sFA}, {F1+8*128}      ; B row
    s_cmp_lg_u32 s{sWV}, 0
    s_cbranch_scc1 {name}_np2
    s_lshl_b32 s{R.sT}, s{R.sRB}, 1
    s_lshl_b32 s{sNEED}, 15, s{R.sT}
    s_lshr_b32 s{sNEED}, s{sNEED}, 2          ; (0b1111 << 2rb) >> 2
    s_mov_b32 s{sNEED+1}, 0
    """)
    poll(a,"pb",R.SWS,sFA,sNEED,sNEED+1,12,2)
    a.label(f"{name}_np2")
    a("s_waitcnt lgkmcnt(0)\ns_barrier")
    pf.stamp(5)
    k2_load_b(a,R,HLD)
    a("s_waitcnt vmcnt(0)\ns_barrier")
    pf.stamp(6)
    def h_pre():
        a(f"buffer_load_dword v13, v2, s[{R.SWS}:{R.SWS+3}], s13 offen sc1")
    def h_post0():
        D=a.newlabel("pa")
        a(f"""
        s_mov_b32 s{sNEED}, 0xffff
        s_mov_b32 s{sNEED+1}, 0
        s_waitcnt vmcnt(0)
        v_cmp_eq_u32 vcc, s{sN}, v13
        s_and_b64 vcc, vcc, s[{sNEED}:{sNEED+1}]
        s_cmp_eq_u64 vcc, s[{sNEED}:{sNEED+1}]
        s_cbranch_scc1 {D}
        """)
        poll(a,"pa2",R.SWS,13,sNEED,sNEED+1,13,2)
        a.label(D)
        k2_load_a(a,R,HLD,name)
    k2_attn(a,R,name,cfg,pf,hooks={"pre":h_pre,"post0":h_post0})
    a(f"""
    s_lshl_b32 s{R.sT}, s{R.sQB}, 5
    s_add_u32 s{R.sT}, s{R.sT}, s{R.sH}
    s_lshl_b32 s{R.sT}, s{R.sT}, 10
    s_add_u32 s{R.sOB}, s{R.sT}, {OF}
    s_add_u32 s{R.sT}, s{R.sOB}, {64*32*1024}
    buffer_store_dwordx4 {vr(R.TMP,4)}, v3, s[{R.SWS}:{R.SWS+3}], s{R.sT} offen {STF}
    """)
    pf.stamp(7)
    a("s_waitcnt vmcnt(1)\ns_barrier")
    k2_apart(a,R,name)
    a(f"buffer_store_dwordx4 {vr(R.TMP+4,4)}, v3, s[{R.SWS}:{R.SWS+3}], s{R.sOB} offen {STF}")
    a("s_waitcnt vmcnt(0)\ns_barrier")
    a(f"""
    s_cmp_lg_u32 s{sWV}, 0
    s_cbranch_scc1 {name}_nf2
    s_lshl_b32 s{R.sT}, s{R.sRB}, 5
    s_add_u32 s{R.sT}, s{R.sT}, s{R.sH}
    s_lshl_b32 s{R.sT}, s{R.sT}, 2
    s_add_u32 s{R.sT}, s{R.sT}, {F2}
    v_mov_b32 v12, 0
    v_mov_b32 v13, s{sN}
    buffer_store_dword v13, v12, s[{R.SWS}:{R.SWS+3}], s{R.sT} offen sc1
    s_lshr_b32 s{sFA}, s{sP3T}, 1
    s_lshl_b32 s{sFA}, s{sFA}, 7
    s_add_u32 s{sFA}, s{sFA}, {F2}
    s_mov_b32 s{sNEED}, -1
    s_mov_b32 s{sNEED+1}, 0
    """)
    poll(a,"p3",R.SWS,sFA,sNEED,sNEED+1,12,2)
    a.label(f"{name}_nf2")
    a("s_barrier")
    pf.stamp(8)
    a(f"s_cmp_ge_u32 s{sWV}, 4\ns_cbranch_scc1 {name}_end")
    SOUT=16; sTB=27; sOB=28
    a(f"""
    s_lshl_b32 s{sTB}, s{sP3T}, 2
    s_add_u32 s{sTB}, s{sTB}, s{sWV}
    s_lshl_b32 s{sT}, s{sP3BR}, 6
    s_add_u32 s{sT}, s{sT}, s{sTB}
    s_lshl_b32 s{sOB}, s{sT}, 15
    s_add_u32 s{sOB}, s{sOB}, {OF}
    """)
    OFR=64; ACC3=32; WFR=[8,16]; vWA3=5
    DEPTH=cfg.get("p3_depth",10)
    def oload(h):
        a(f"s_add_u32 s{sT2}, s{sOB}, {h*1024}\nbuffer_load_dwordx4 {vr(OFR+4*h,4)}, v3, s[{R.SWS}:{R.SWS+3}], s{sT2} offen {HLD}")
    for h in range(DEPTH): oload(h)
    a(f"""
    s_mov_b32 s{SOUT}, s{sOUT}
    s_mov_b32 s{SOUT+1}, s{sOUT+1}
    s_mov_b32 s{SOUT+2}, 0x400000
    s_mov_b32 s{SOUT+3}, 0x20000
    v_bfe_u32 v6, v1, 2, 2
    v_lshrrev_b32 v7, 5, v1
    v_lshl_add_u32 v6, v7, 2, v6
    v_lshlrev_b32 v6, 7, v6
    v_and_b32 v7, 1, v1
    v_lshlrev_b32 v7, 1, v7
    v_bfe_u32 v24, v1, 4, 1
    v_or_b32 v7, v7, v24
    v_bfe_u32 v24, v1, 3, 1
    v_lshlrev_b32 v24, 2, v24
    v_xor_b32 v7, v7, v24
    v_lshl_add_u32 v6, v7, 4, v6
    v_bfe_u32 v24, v1, 1, 1
    v_lshl_add_u32 v{vWA3}, v24, 3, v6
    v_xor_b32 v{vWA3+1}, 64, v{vWA3}
    v_add_u32 v{vWA3}, {WOL}, v{vWA3}
    v_add_u32 v{vWA3+1}, {WOL}, v{vWA3+1}
    """)
    def reads3(s,h):
        L=[]
        for nt in range(2):
            for t in range(2):
                L.append(f"ds_read_b64_tr_b16 {vr(WFR[s]+4*nt+2*t,2)}, v{vWA3+nt} offset:{h*2048+t*1024}")
        return L
    for l in reads3(0,0): a(l)
    for h in range(32):
        s=h&1
        nxt=reads3(s^1,h+1) if h<31 else []
        for l in nxt: a(l)
        issued=min(32,h+DEPTH)
        a(f"s_waitcnt vmcnt({issued-h-1}) lgkmcnt({len(nxt)})")
        for nt in range(2):
            c = "0" if h==0 else vr(ACC3+16*nt,16)
            a(f"v_mfma_f32_32x32x16_bf16 {vr(ACC3+16*nt,16)}, {vr(WFR[s]+4*nt,4)}, {vr(OFR+4*h,4)}, {c}")
        if h+DEPTH<32: oload(h+DEPTH)
    a(f"""
    s_lshl_b32 s{sT}, s{sTB}, 16
    s_lshl_b32 s{sT2}, s{sP3BR}, 10
    s_add_u32 s{sT}, s{sT}, s{sT2}
    s_lshl_b32 s{sT2}, s{sP3NS}, 7
    s_add_u32 s{sT}, s{sT}, s{sT2}
    v_and_b32 v6, 31, v1
    v_lshlrev_b32 v6, 11, v6
    v_lshrrev_b32 v7, 5, v1
    v_lshl_add_u32 v6, v7, 5, v6
    s_nop 7
    """)
    for nt in range(2):
        b=ACC3+16*nt; T=8+8*nt
        for i in range(8): a(f"v_cvt_pk_bf16_f32 v{T+i}, v{b+2*i}, v{b+2*i+1}")
        a(f"buffer_store_dwordx4 {vr(T,4)}, v6, s[{SOUT}:{SOUT+3}], s{sT} offen offset:{nt*64} {OSTF}")
        a(f"buffer_store_dwordx4 {vr(T+4,4)}, v6, s[{SOUT}:{SOUT+3}], s{sT} offen offset:{nt*64+16} {OSTF}")
    if pf.on:
        a("s_waitcnt vmcnt(0)"); pf.stamp(9); pf.flush(10,4,2,wave=0)
    a.label(f"{name}_end")
    a("s_endpgm")
    return dict(name=name, grid=256, block=512, lds=163840, vgpr=248, sgpr=104 if False else 102)
```

```python
import sys, json
from asmlib import *
from k1 import gen_k1
from k2 import gen_k2
from k3 import gen_k3
from kdiag import gen_diag
from fused import gen_fused
from fused2 import gen_fused2
from fused3 import gen_fused3
HDR=open("concat_heads__linear_attn_block__sliding_block__prompt.s.ref").read().split("\n")
def build_fused(cfg):
    a=Asm()
    N="concat_heads__linear_attn_block__sliding_block__prompt_kernel"
    k=({2:gen_fused2,3:gen_fused3}.get(cfg.get('fused'),gen_fused))(a,N,cfg)
    out=[]
    for l in HDR:
        if l.startswith("; Override") : break
        out.append(l)
    ks=[k]
    if "diag_q" in cfg:
        ks.append(gen_diag(a,"diag_kernel",cfg))
        for kk in ks: out.append(f"; @launch kernel={kk['name']} grid=({kk['grid']},1,1) block=({kk['block']},1,1) lds={kk['lds']}")
    else:
        out.append(f"; @launch grid=({k['grid']},1,1) block=({k['block']},1,1) lds={k['lds']}")
    out.append('.amdgcn_target "amdgcn-amd-amdhsa--gfx950"')
    out.append(".text")
    out.append(a.text())
    out.append('.section .rodata,"a"')
    for kk in ks: out.append(kdesc(kk['name'],kk['vgpr'],kk['sgpr']))
    return "\n".join(out)
def build(cfg):
    if cfg.get("fused"): return build_fused(cfg)
    a=Asm()
    N="concat_heads__linear_attn_block__sliding_block__prompt"
    ks=[]
    ks.append(gen_k1(a,"qkv_kernel",cfg))
    ks.append(gen_k2(a,"attn_kernel",cfg))
    ks.append(gen_k3(a,"oproj_kernel",cfg))
    if 3 in cfg.get("launch",[]): a.raw(".globl empty_kernel\n.p2align 8\n.type empty_kernel,@function\nempty_kernel:")
    if 3 in cfg.get("launch",[]): a("s_endpgm")
    ks.append(dict(name="empty_kernel",grid=cfg.get("empty_grid",256),block=64,lds=0,vgpr=8,sgpr=16))
    if "diag_q" in cfg: ks.append(gen_diag(a,"diag_kernel",cfg))
    out=[]
    for l in HDR:
        if l.startswith("; Override") : break
        out.append(l)
    sel=cfg.get("launch",[0,1,2])
    for i in sel:
        k=ks[i]
        out.append(f"; @launch kernel={k['name']} grid=({k['grid']},1,1) block=({k['block']},1,1) lds={k['lds']}")
    out.append('.amdgcn_target "amdgcn-amd-amdhsa--gfx950"')
    out.append(".text")
    out.append(a.text())
    out.append('.section .rodata,"a"')
    used=set(sel)
    for i,k in enumerate(ks):
        if i in used or i<3: out.append(kdesc(k['name'],k['vgpr'],k['sgpr']))
    return "\n".join(out)
if __name__=="__main__":
    cfg=json.loads(sys.argv[2]) if len(sys.argv)>2 else {}
    open(sys.argv[1],"w").write(build(cfg))
```

```python
from asmlib import *
import math
from k1 import QF,KF,VF,PQ,OF,KVP,WS_USED,LOG2E,CSCALE
import k2
from k2 import K2R,k2_setup_consts,k2_load_b,k2_load_a,k2_attn,k2_apart

FLG=KVP+0x90000
FL=128
FSTR=16*FL+256
F1=FLG; F2=FLG+16*FSTR; F2STR=32*FL+256; NONCE=F2+8*F2STR
WOL=98304
NL=163840-16

sAWO=64; sBWO=66; sOUT=68; sDBG=70; sWSP=72; sN=74; sWV=75; sP3T=76; sP3NS=77; sP3BR=78; sCNT2=79

def poll(a, name, srd, soff, need_lo, need_hi, vtmp, voff, bound=3000, sleep=4):
    L=a.newlabel(name); D=a.newlabel(name+"d")
    a(f"""
    s_mov_b32 s{sCNT2}, 0
    s_mov_b64 exec, s[{need_lo}:{need_hi}]
    {L}:
    buffer_load_dword v{vtmp}, v{voff}, s[{srd}:{srd+3}], s{soff} offen sc1
    s_waitcnt vmcnt(0)
    v_cmp_eq_u32 vcc, s{sN}, v{vtmp}
    s_cmp_eq_u64 vcc, s[{need_lo}:{need_hi}]
    s_cbranch_scc1 {D}
    s_add_u32 s{sCNT2}, s{sCNT2}, 1
    s_cmp_lt_u32 s{sCNT2}, {bound}
    s_cbranch_scc0 {D}
    s_sleep {sleep}
    s_branch {L}
    {D}:
    s_mov_b64 exec, -1
    """)

def gen_fused(a, name, cfg):
    NS=3
    LDX=cfg.get("ldx",""); LDW=cfg.get("ldw","")
    STF="sc1"; HLD="sc1"
    OSTF=cfg.get("out_stflags","")
    XB=0; XS=16384; WB=NS*XS; WS_=24576
    a.raw(f".globl {name}\n.p2align 8\n.type {name},@function\n{name}:")
    sWAVE=20; sBR=21; sR=22; sG=23; sT=24; sT2=25
    SX=8; SW=12; SWS=16
    pf0=Prof(a,cfg,0,80,sWV,sWSP,sWSP+1)
    PTS=cfg.get("pts",["entry","p","loop","epi","b1","b2","kv","att","f2","end"])
    class PF:
        on=pf0.on
        def pt(self,n):
            if n in PTS: pf0.stamp(PTS.index(n))
    pf=PF()
    pf.pt("entry")
    a(f"""
    s_cmp_ge_u32 s2, 256
    s_cbranch_scc1 {name}_end
    s_load_dwordx4 s[28:31], s[0:1], 0
    s_load_dwordx4 s[32:35], s[0:1], 24
    s_load_dwordx2 s[{sAWO}:{sAWO+1}], s[0:1], 16
    s_load_dwordx2 s[{sBWO}:{sBWO+1}], s[0:1], 40
    s_load_dwordx4 s[{sOUT}:{sOUT+3}], s[0:1], 48
    s_load_dwordx2 s[{sWSP}:{sWSP+1}], s[0:1], 64
    v_lshrrev_b32 v2, 6, v0
    v_and_b32 v1, 63, v0
    s_and_b32 s{sT}, s2, 7
    v_readfirstlane_b32 s{sWAVE}, v2
    s_lshr_b32 s{sT2}, s2, 3
    s_and_b32 s{sBR}, s{sT}, 1
    s_lshr_b32 s{sT}, s{sT}, 1
    s_mov_b32 s{sP3BR}, s{sBR}
    s_lshl_b32 s{sP3T}, s{sT}, 2
    s_and_b32 s{sP3NS}, s{sT2}, 3
    s_add_u32 s{sP3T}, s{sP3T}, s{sP3NS}
    s_lshr_b32 s{sP3NS}, s{sT2}, 2
    s_and_b32 s{sR}, s{sT}, 1
    s_lshl_b32 s{sR}, s{sR}, 3
    s_lshr_b32 s{sG}, s{sT}, 1
    s_lshl_b32 s{sG}, s{sG}, 2
    s_and_b32 s{sT}, s{sT2}, 7
    s_add_u32 s{sR}, s{sR}, s{sT}
    s_lshr_b32 s{sT}, s{sT2}, 3
    s_add_u32 s{sG}, s{sG}, s{sT}
    s_mov_b32 s{sWV}, s{sWAVE}
    s_waitcnt lgkmcnt(0)
    s_cmp_eq_u32 s{sBR}, 0
    s_cselect_b32 s{SX}, s28, s32
    s_cselect_b32 s{SX+1}, s29, s33
    s_cselect_b32 s{SW}, s30, s34
    s_cselect_b32 s{SW+1}, s31, s35
    s_mov_b32 s{SX+2}, 0x200000
    s_mov_b32 s{SX+3}, 0x20000
    s_mov_b32 s{SW+2}, 0x180000
    s_mov_b32 s{SW+3}, 0x20000
    s_mov_b32 s{SWS}, s{sWSP}
    s_mov_b32 s{SWS+1}, s{sWSP+1}
    s_mov_b32 s{SWS+2}, {WS_USED}
    s_mov_b32 s{SWS+3}, 0x20000
    s_cmp_ge_u32 s{sWAVE}, 4
    s_cbranch_scc1 {name}_loader
    """)
    sTM=26; sFN=27
    vXA=4; vWA=8
    ACC=32
    def acc(tt,sec): return ACC+(tt*3+sec)*16
    FR=[128,148]
    def xf(s,tt): return FR[s]+4*tt
    def wf(s,sec): return FR[s]+8+4*sec
    a(f"""
    s_mov_b32 s28, s{sDBG}
    s_mov_b32 s29, s{sDBG+1}
    s_mov_b32 s30, 256
    s_mov_b32 s31, 0x20000
    v_mov_b32 v12, 0
    s_cmp_lg_u32 s2, 0
    s_cbranch_scc1 {name}_nononce
    s_cmp_lg_u32 s{sWAVE}, 1
    s_cbranch_scc1 {name}_nononce
    s_mov_b32 s{sT}, {NONCE}
    buffer_load_dword v13, v12, s[{SWS}:{SWS+3}], s{sT} offen sc1
    s_waitcnt vmcnt(0)
    v_add_u32 v13, 1, v13
    v_max_u32 v13, 1, v13
    buffer_store_dword v13, v12, s[28:31], 0 offen sc1
    buffer_store_dword v13, v12, s[{SWS}:{SWS+3}], s{sT} offen sc1
    {name}_nononce:
    """)
    a(f"""
    s_and_b32 s{sTM}, s{sWAVE}, 1
    s_lshr_b32 s{sFN}, s{sWAVE}, 1
    v_lshrrev_b32 v2, 5, v1                 ; hf
    v_and_b32 v3, 31, v1                    ; t31
    v_lshrrev_b32 v9, 1, v3
    v_and_b32 v9, 7, v9                     ; g
    s_lshl_b32 s{sT}, s{sTM}, 13
    v_lshlrev_b32 v10, 7, v3
    v_add_u32 v10, s{sT}, v10
    """)
    for ks in range(4):
        a(f"v_or_b32 v11, {2*ks}, v2\nv_xor_b32 v11, v11, v9\nv_lshl_add_u32 v{vXA+ks}, v11, 4, v10")
    a(f"""
    v_bfe_u32 v10, v1, 2, 2
    v_lshlrev_b32 v10, 7, v10
    v_lshl_add_u32 v10, v2, 10, v10
    v_bfe_u32 v11, v1, 4, 1
    v_lshlrev_b32 v11, 1, v11
    v_bfe_u32 v12, v1, 1, 1
    v_or_b32 v11, v11, v12
    s_lshl_b32 s{sT}, s{sFN}, 2
    v_or_b32 v11, s{sT}, v11
    v_bfe_u32 v12, v1, 3, 1
    v_lshlrev_b32 v12, 2, v12
    v_xor_b32 v11, v11, v12
    v_lshl_add_u32 v10, v11, 4, v10
    v_and_b32 v12, 1, v1
    v_lshl_add_u32 v10, v12, 3, v10
    v_add_u32 v{vWA}, {WB}, v10
    """)
    for r in range(ACC,ACC+96): a(f"v_mov_b32 v{r}, 0")
    a(f"""
    s_mov_b32 s58, {(-(NS-1)*XS)&0xffffffff:#x}
    s_mov_b32 s59, {XS}
    s_mov_b32 s60, {(-(NS-1)*WS_)&0xffffffff:#x}
    s_mov_b32 s61, {WS_}
    """)
    Ln=a.newlabel("nz"); Ld=a.newlabel("nzd")
    a(f"""
    s_cmp_lg_u32 s{sWAVE}, 0
    s_cbranch_scc1 {Ld}_skip
    v_mov_b32 v12, 0
    s_mov_b32 s{sCNT2}, 0
    {Ln}:
    buffer_load_dword v13, v12, s[28:31], 0 offen sc1
    s_waitcnt vmcnt(0)
    v_readfirstlane_b32 s{sN}, v13
    s_cmp_lg_u32 s{sN}, 0
    s_cbranch_scc1 {Ld}
    s_add_u32 s{sCNT2}, s{sCNT2}, 1
    s_cmp_lt_u32 s{sCNT2}, 3000
    s_cbranch_scc0 {Ld}
    s_sleep 2
    s_branch {Ln}
    {Ld}:
    v_mov_b32 v12, {NL}
    ds_write_b32 v12, v13
    s_waitcnt lgkmcnt(0)
    {Ld}_skip:
    """)
    def reads(s, ks):
        L=[]
        L.append(f"ds_read_b128 {vr(xf(s,0),4)}, v{vXA+ks}")
        L.append(f"ds_read_b64_tr_b16 {vr(wf(s,0),2)}, v{vWA} offset:{ks*2048}")
        L.append(f"ds_read_b64_tr_b16 {vr(wf(s,0)+2,2)}, v{vWA} offset:{ks*2048+512}")
        L.append(f"ds_read_b128 {vr(xf(s,1),4)}, v{vXA+ks} offset:4096")
        for sec in (1,2):
            L.append(f"ds_read_b64_tr_b16 {vr(wf(s,sec),2)}, v{vWA} offset:{sec*8192+ks*2048}")
            L.append(f"ds_read_b64_tr_b16 {vr(wf(s,sec)+2,2)}, v{vWA} offset:{sec*8192+ks*2048+512}")
        return L
    def mfmas(s, br):
        L=[]
        for sec in range(3):
            for tt in range(2):
                featrow = (sec==0) or (sec==1 and br==1)
                A_,B_ = (wf(s,sec),xf(s,tt)) if featrow else (xf(s,tt),wf(s,sec))
                if cfg.get("mf16test"):
                    o=acc(tt,sec)+8*s
                    L.append(f"v_mfma_f32_16x16x32_bf16 {vr(o,4)}, {vr(A_,4)}, {vr(B_,4)}, {vr(o,4)}\nv_mfma_f32_16x16x32_bf16 {vr(o+4,4)}, {vr(B_,4)}, {vr(A_,4)}, {vr(o+4,4)}")
                else:
                    L.append(f"v_mfma_f32_32x32x16_bf16 {vr(acc(tt,sec),16)}, {vr(A_,4)}, {vr(B_,4)}, {vr(acc(tt,sec),16)}")
        return L
    def step(s, br, rd):
        M=mfmas(s,br)
        if rd:
            a(M[0]); a(rd[0]); a(rd[1]); a(rd[2])
            a(M[1]); a(rd[3]); a(rd[4]); a(rd[5])
            a(M[2]); a(rd[6]); a(rd[7])
            a(M[3]); a(M[4]); a(M[5])
        else:
            for m in M: a(m)
    def getnonce():
        a(f"v_mov_b32 v12, {NL}\nds_read_b32 v13, v12\ns_waitcnt lgkmcnt(0)\nv_readfirstlane_b32 s{sN}, v13")
    sCNT=38; sSTG=39; sDX=40; sDW=41
    for br in (0,1):
        bn="AB"[br]
        if br==0: a(f"s_cmp_eq_u32 s{sBR}, 1\ns_cbranch_scc1 {name}_cB")
        else: a.label(f"{name}_cB")
        a(f"s_mov_b32 s{sCNT}, 0\ns_mov_b32 s{sSTG}, 0")
        a("s_barrier")
        pf.pt("p")
        getnonce()
        for l in reads(0,0): a(l)
        a.label(f"{name}_loop{bn}")
        for ks in range(3):
            a("s_waitcnt lgkmcnt(0)")
            step(ks&1, br, reads((ks+1)&1, ks+1))
        a(f"""
        s_add_u32 s{sSTG}, s{sSTG}, 1
        s_cmp_eq_u32 s{sSTG}, {NS}
        s_cselect_b32 s{sDX}, s58, s59
        s_cselect_b32 s{sDW}, s60, s61
        s_cselect_b32 s{sSTG}, 0, s{sSTG}
        s_waitcnt lgkmcnt(0)
        s_barrier
        """)
        if cfg.get("chunkstamps"):
            for c in range(7):
                lab=a.newlabel("cs")
                a(f"s_cmp_lg_u32 s{sCNT}, {c}\ns_cbranch_scc1 {lab}")
                pf.pt(f"c{c}")
                a.label(lab)
        for ks in range(4): a(f"v_add_u32 v{vXA+ks}, s{sDX}, v{vXA+ks}")
        a(f"v_add_u32 v{vWA}, s{sDW}, v{vWA}")
        step(1, br, reads(0,0))
        a(f"""
        s_add_u32 s{sCNT}, s{sCNT}, 1
        s_cmp_lt_u32 s{sCNT}, 7
        s_cbranch_scc1 {name}_loop{bn}
        """)
        for ks in range(3):
            a("s_waitcnt lgkmcnt(0)")
            step(ks&1, br, reads((ks+1)&1, ks+1))
        a("s_waitcnt lgkmcnt(0)")
        step(1, br, [])
        pf.pt("loop")
        T0=128
        sOFF=42; sH=43; sTB=44
        a(f"""
        s_lshl_b32 s{sH}, s{sG}, 2
        s_lshl_b32 s{sT}, s{sFN}, 1
        s_add_u32 s{sH}, s{sH}, s{sT}
        s_lshl_b32 s{sTB}, s{sR}, 2
        s_lshl_b32 s{sT}, s{sTM}, 1
        s_add_u32 s{sTB}, s{sTB}, s{sT}
        s_lshl_b32 s{sOFF}, s{sH}, 16
        s_lshl_b32 s{sT}, s{sTB}, 10
        s_add_u32 s{sOFF}, s{sOFF}, s{sT}
        v_lshlrev_b32 v9, 4, v1
        """)
        if br==1:
            a(f"s_mov_b32 s46, {f2u(CSCALE):#x}\ns_mov_b32 s47, {f2u(CSCALE):#x}")
            a(f"""
            v_bfe_u32 v10, v1, 4, 1
            v_lshlrev_b32 v10, 16, v10
            v_lshrrev_b32 v11, 5, v1
            v_lshl_add_u32 v10, v11, 8, v10
            v_and_b32 v11, 15, v1
            v_lshl_add_u32 v10, v11, 4, v10
            s_nop 7
            """)
            tmp=T0
            for tt in range(2):
                b=acc(tt,1)
                for i in range(8): a(f"v_cvt_pk_bf16_f32 v{tmp+i}, v{b+2*i}, v{b+2*i+1}")
                a(f"s_add_u32 s{sT}, s{sOFF}, {KF+tt*1024}")
                a(f"buffer_store_dwordx4 {vr(tmp,4)}, v9, s[{SWS}:{SWS+3}], s{sT} offen {STF}")
                a(f"s_add_u32 s{sT2}, s{sOFF}, {KF+tt*1024+65536}")
                a(f"buffer_store_dwordx4 {vr(tmp+4,4)}, v9, s[{SWS}:{SWS+3}], s{sT2} offen {STF}")
                tmp+=8
            for tt in range(2):
                b=acc(tt,2)
                for i in range(8): a(f"v_cvt_pk_bf16_f32 v{tmp+i}, v{b+2*i}, v{b+2*i+1}")
                a(f"s_add_u32 s{sT}, s{sOFF}, {VF+tt*1024}")
                a(f"buffer_store_dwordx4 {vr(tmp,4)}, v10, s[{SWS}:{SWS+3}], s{sT} offen {STF}")
                a(f"buffer_store_dwordx4 {vr(tmp+4,4)}, v10, s[{SWS}:{SWS+3}], s{sT} offen offset:512 {STF}")
                tmp+=8
            for tt in range(2):
                b=acc(tt,0)
                for i in range(8): a(f"v_pk_mul_f32 {vr(b+2*i,2)}, {vr(b+2*i,2)}, s[46:47]")
                for i in range(8): a(f"v_cvt_pk_bf16_f32 v{tmp+i}, v{b+2*i}, v{b+2*i+1}")
                a(f"s_add_u32 s{sT}, s{sOFF}, {QF+tt*1024}")
                a(f"buffer_store_dwordx4 {vr(tmp,4)}, v9, s[{SWS}:{SWS+3}], s{sT} offen {STF}")
                a(f"s_add_u32 s{sT2}, s{sOFF}, {QF+tt*1024+65536}")
                a(f"buffer_store_dwordx4 {vr(tmp+4,4)}, v9, s[{SWS}:{SWS+3}], s{sT2} offen {STF}")
                tmp+=8
            a(f"s_branch {name}_p1done")
        else:
            a(f"""
            s_mov_b32 s46, {f2u(LOG2E):#x}
            s_mov_b32 s47, {f2u(LOG2E):#x}
            s_mov_b32 s48, 1.0
            s_mov_b32 s49, 1.0
            s_mov_b32 s50, {f2u(1e-6):#x}
            s_mov_b32 s51, {f2u(1e-6):#x}
            s_mov_b32 s52, 0x0000ffff
            s_mov_b32 s53, 0x0000ffff
            v_mov_b32 v20, 0x3f803f80
            v_mov_b32 v21, 0x3f803f80
            v_mov_b32 v22, 0x3f803f80
            v_mov_b32 v23, 0x3f803f80
            s_nop 4
            """)
            U=168
            def phi(b):
                for i in range(8): a(f"v_pk_mul_f32 {vr(U+2*i,2)}, {vr(b+2*i,2)}, s[46:47]")
                for i in range(16): a(f"v_exp_f32 v{U+i}, v{U+i} clamp")
                for i in range(8): a(f"v_pk_add_f32 {vr(b+2*i,2)}, {vr(b+2*i,2)}, s[48:49]")
                for i in range(16): a(f"v_max_f32 v{b+i}, v{b+i}, v{U+i}")
                for i in range(8): a(f"v_pk_add_f32 {vr(b+2*i,2)}, {vr(b+2*i,2)}, s[50:51]")
            PK=[128,136]; VV=[144,152]; D=184; D2=200
            for tt in range(2):
                b=acc(tt,2)
                for i in range(8): a(f"v_cvt_pk_bf16_f32 v{VV[tt]+i}, v{b+2*i}, v{b+2*i+1}")
            mq=[]
            for tt in range(2):
                b=acc(tt,1)
                phi(b)
                for i in range(8): a(f"v_cvt_pk_bf16_f32 v{PK[tt]+i}, v{b+2*i}, v{b+2*i+1}")
                a("s_nop 1")
                for m in range(2):
                    c1 = "0" if (tt==0 and m==0) else vr(D,16)
                    c2 = "0" if (tt==0 and m==0) else vr(D2,16)
                    a(f"v_mfma_f32_32x32x16_bf16 {vr(D,16)}, {vr(PK[tt]+4*m,4)}, {vr(VV[tt]+4*m,4)}, {c1}")
                    a(f"v_mfma_f32_32x32x16_bf16 {vr(D2,16)}, {vr(PK[tt]+4*m,4)}, v[20:23], {c2}")
            a("s_nop 15")
            for r in range(8):  a(f"v_cndmask_b32_e64 v{D+r}, v{D2+r}, v{D+r}, s[52:53]")
            for r in range(8,16): a(f"v_cndmask_b32_e64 v{D+r}, v{D+r}, v{D2+r}, s[52:53]")
            EX = 0
            a(f"""
            s_lshl_b32 s{sT}, s{sFN}, 12
            s_add_u32 s{sT}, s{sT}, {EX}
            v_add_u32 v10, s{sT}, v9
            s_cmp_eq_u32 s{sTM}, 0
            s_cbranch_scc1 {name}_Ard
            """)
            for q in range(4): a(f"ds_write_b128 v10, {vr(D+4*q,4)} offset:{q*1024}")
            a(f"s_waitcnt lgkmcnt(0)")
            a.label(f"{name}_Ard")
            a("s_barrier")
            tmp=216
            def qpart(tt,tmp):
                b=acc(tt,0)
                phi(b)
                for i in range(8): a(f"v_cvt_pk_bf16_f32 v{tmp+i}, v{b+2*i}, v{b+2*i+1}")
                a(f"s_add_u32 s{sT}, s{sOFF}, {PQ+tt*1024}")
                a(f"buffer_store_dwordx4 {vr(tmp,4)}, v9, s[{SWS}:{SWS+3}], s{sT} offen {STF}")
                a(f"s_add_u32 s{sT2}, s{sOFF}, {PQ+tt*1024+65536}")
                a(f"buffer_store_dwordx4 {vr(tmp+4,4)}, v9, s[{SWS}:{SWS+3}], s{sT2} offen {STF}")
            a(f"s_cmp_lg_u32 s{sTM}, 0\ns_cbranch_scc1 {name}_Aq")
            for q in range(4): a(f"ds_read_b128 {vr(D2+4*q,4)}, v10 offset:{q*1024}")
            a(f"""
            v_and_b32 v11, 31, v1
            v_lshrrev_b32 v12, 5, v1
            v_and_b32 v13, 15, v1
            v_lshlrev_b32 v13, 5, v13
            v_lshl_add_u32 v13, v12, 9, v13
            v_lshlrev_b32 v14, 5, v12
            v_add_u32 v14, 1024, v14
            v_mov_b32 v15, 0x40000000
            v_cmp_eq_u32 s[54:55], 16, v11
            v_cmp_eq_u32 s[56:57], 0, v11
            s_nop 1
            v_cndmask_b32_e64 v16, v15, v14, s[54:55]
            v_cndmask_b32_e64 v17, v15, v14, s[56:57]
            v_cndmask_b32_e64 v16, v16, v13, s[52:53]
            v_cndmask_b32_e64 v17, v13, v17, s[52:53]
            s_lshl_b32 s{sT}, s{sH}, 4
            s_add_u32 s{sT}, s{sT}, s{sR}
            s_mul_i32 s{sT}, s{sT}, 1088
            s_add_u32 s{sT}, s{sT}, {KVP}
            s_add_u32 s{sT2}, s{sT}, {16*1088}
            s_waitcnt lgkmcnt(0)
            """)
            for i in range(8): a(f"v_pk_add_f32 {vr(D+2*i,2)}, {vr(D+2*i,2)}, {vr(D2+2*i,2)}")
            a(f"""
            buffer_store_dwordx4 {vr(D,4)}, v16, s[{SWS}:{SWS+3}], s{sT} offen {STF}
            buffer_store_dwordx4 {vr(D+4,4)}, v16, s[{SWS}:{SWS+3}], s{sT} offen offset:16 {STF}
            buffer_store_dwordx4 {vr(D+8,4)}, v17, s[{SWS}:{SWS+3}], s{sT2} offen {STF}
            buffer_store_dwordx4 {vr(D+12,4)}, v17, s[{SWS}:{SWS+3}], s{sT2} offen offset:16 {STF}
            """)
            a.label(f"{name}_Aq")
            qpart(0,216); qpart(1,128)
            a(f"s_branch {name}_p1done")
    a.label(f"{name}_loader")
    sE=26; sXB=27; sWBs=38; sL=39
    a(f"""
    s_sub_u32 s{sE}, s{sWAVE}, 4
    v_lshrrev_b32 v2, 3, v1
    v_and_b32 v3, 7, v1
    v_lshrrev_b32 v4, 1, v2
    s_and_b32 s{sT}, s{sE}, 1
    s_lshl_b32 s{sT}, s{sT}, 2
    v_or_b32 v4, s{sT}, v4
    v_xor_b32 v4, v4, v3
    v_lshlrev_b32 v5, 10, v2
    v_lshl_add_u32 v5, v4, 4, v5            ; x voffset
    v_bfe_u32 v4, v1, 4, 1
    v_lshlrev_b32 v4, 2, v4
    v_xor_b32 v4, v4, v3
    v_mul_u32_u24 v6, 3072, v2
    v_lshl_add_u32 v6, v4, 4, v6            ; w voffset
    v_lshlrev_b32 v7, 10, v2
    v_lshl_add_u32 v7, v4, 4, v7
    s_lshl_b32 s{sXB}, s{sR}, 17
    s_lshl_b32 s{sT}, s{sE}, 13
    s_add_u32 s{sXB}, s{sXB}, s{sT}
    s_lshl_b32 s{sWBs}, s{sG}, 7
    s_mul_i32 s{sT}, s{sE}, 24576
    s_add_u32 s{sWBs}, s{sWBs}, s{sT}
    s_lshl_b32 s{sL}, s{sE}, 10
    """)
    sROT=40; sXC=41; sWC=42
    a(f"s_mov_b32 s{sROT}, 0")
    for (src,sh,mask,mul) in cfg.get("k1_rot",[["R",0,3,2],["G",0,3,1]]):
        r={"R":sR,"G":sG}[src]
        a(f"s_lshr_b32 s{sT}, s{r}, {sh}\ns_and_b32 s{sT}, s{sT}, {mask}\ns_mul_i32 s{sT}, s{sT}, {mul}\ns_add_u32 s{sROT}, s{sROT}, s{sT}")
    def issue(c, part=None):
        st=c%NS
        L=[]
        hdr=f"""
        s_add_u32 s{sT}, s{sROT}, {c}
        s_and_b32 s{sT}, s{sT}, 7
        s_lshl_b32 s{sXC}, s{sT}, 7
        s_add_u32 s{sXC}, s{sXC}, s{sXB}
        s_mul_i32 s{sWC}, s{sT}, 196608
        s_add_u32 s{sWC}, s{sWC}, s{sWBs}
        """
        for i in range(4):
            L.append(f"s_add_u32 m0, s{sL}, {XB+st*XS+i*4096}\ns_add_u32 s{sT}, s{sXC}, {i*32768}\nbuffer_load_dwordx4 v5, s[{SX}:{SX+3}], s{sT} offen {LDX} lds")
        for jj in range(2):
            for sec in range(3):
                L.append(f"s_add_u32 m0, s{sL}, {WB+st*WS_+sec*8192+jj*4096}\ns_add_u32 s{sT}, s{sWC}, {jj*4*24576+sec*1024}\nbuffer_load_dwordx4 v6, s[{SW}:{SW+3}], s{sT} offen {LDW} lds")
        lo,hi = part if part else (0,10)
        if lo==0: a(hdr)
        for l in L[lo:hi]: a(l)
    k0=cfg.get("pro_k",5)
    issue(0); issue(1,(0,k0))
    a(f"s_waitcnt vmcnt({k0})\ns_barrier")
    if k0<10: issue(1,(k0,10))
    issue(2)
    getnonce()
    for c in range(7):
        issued=min(8,c+NS)
        rem=10*(issued-(c+2))
        if c==6: rem=16
        a(f"s_waitcnt vmcnt({rem})\ns_barrier")
        if c+NS<8: issue(c+NS)
        if c==5:
            a(f"""
            s_cmp_eq_u32 s{sP3BR}, 0
            s_cselect_b32 s28, s{sAWO}, s{sBWO}
            s_cselect_b32 s29, s{sAWO+1}, s{sBWO+1}
            s_mov_b32 s30, 0x80000
            s_mov_b32 s31, 0x20000
            s_lshl_b32 s{sXC}, s{sP3NS}, 7
            s_lshl_b32 s{sT}, s{sE}, 13
            s_add_u32 s{sXC}, s{sXC}, s{sT}
            """)
            for u in range(16):
                a(f"s_add_u32 m0, s{sL}, {WOL+u*4096}")
                a(f"s_add_u32 s{sT}, s{sXC}, {u*32768}")
                a(f"buffer_load_dwordx4 v7, s[28:31], s{sT} offen lds")
    a(f"s_cmp_eq_u32 s{sBR}, 1\ns_cbranch_scc1 {name}_p1bar\ns_barrier\ns_branch {name}_p1bar")
    a.label(f"{name}_p1done")
    pf.pt("epi")
    a("s_waitcnt vmcnt(0)")
    a.label(f"{name}_p1bar")
    a("s_barrier")
    R=K2R
    a(f"""
    s_cmp_lg_u32 s{sWV}, 0
    s_cbranch_scc1 {name}_nf1
    s_lshl_b32 s{sT}, s{sBR}, 3
    s_add_u32 s{sT}, s{sT}, s{sG}
    s_mul_i32 s{sT}, s{sT}, {FSTR}
    s_lshl_b32 s{sT2}, s{sR}, 7
    s_add_u32 s{sT}, s{sT}, s{sT2}
    s_add_u32 s{sT}, s{sT}, {F1}
    v_mov_b32 v12, 0
    v_mov_b32 v13, s{sN}
    buffer_store_dword v13, v12, s[{SWS}:{SWS+3}], s{sT} offen sc1
    {name}_nf1:
    """)
    pf.pt("b1")
    a(f"""
    s_mov_b32 s{R.sWAVE}, s{sWV}
    s_bfe_u32 s{R.sRB}, s2, 0x30003
    s_and_b32 s{R.sH}, s2, 7
    s_lshr_b32 s{R.sT}, s2, 6
    s_lshl_b32 s{R.sT}, s{R.sT}, 3
    s_add_u32 s{R.sH}, s{R.sH}, s{R.sT}
    v_lshlrev_b32 v3, 4, v1
    s_lshl_b32 s{R.sQB}, s{R.sRB}, 3
    s_add_u32 s{R.sQB}, s{R.sQB}, s{R.sWAVE}
    s_mov_b32 s{R.SWS}, s{sWSP}
    s_mov_b32 s{R.SWS+1}, s{sWSP+1}
    s_mov_b32 s{R.SWS+2}, {WS_USED}
    s_mov_b32 s{R.SWS+3}, 0x20000
    """)
    k2_setup_consts(a,R)
    sFA=12; sNEED=14
    a(f"""
    v_lshlrev_b32 v2, 7, v1
    s_lshr_b32 s{sFA}, s{R.sH}, 2
    s_mul_i32 s{sFA}, s{sFA}, {FSTR}
    s_add_u32 s13, s{sFA}, {F1}               ; A row
    s_add_u32 s{sFA}, s{sFA}, {F1+8*FSTR}     ; B row
    s_cmp_lg_u32 s{sWV}, 0
    s_cbranch_scc1 {name}_np2
    s_lshl_b32 s{R.sT}, s{R.sRB}, 1
    s_lshl_b32 s{sNEED}, 15, s{R.sT}
    s_lshr_b32 s{sNEED}, s{sNEED}, 2          ; (0b1111 << 2rb) >> 2
    s_mov_b32 s{sNEED+1}, 0
    """)
    poll(a,"pb",R.SWS,sFA,sNEED,sNEED+1,12,2,sleep=cfg.get("sleep1",4))
    a.label(f"{name}_np2")
    a("s_waitcnt lgkmcnt(0)\ns_barrier")
    pf.pt("b2")
    k2_load_b(a,R,HLD)
    a("s_waitcnt vmcnt(0)\ns_barrier")
    pf.pt("kv")
    def h_pre():
        a(f"s_mov_b64 exec, 0xffff\nbuffer_load_dword v13, v2, s[{R.SWS}:{R.SWS+3}], s13 offen sc1\ns_mov_b64 exec, -1")
    def h_post0():
        pf.pt("post0")
        D=a.newlabel("pa")
        a(f"""
        s_mov_b32 s{sNEED}, 0xffff
        s_mov_b32 s{sNEED+1}, 0
        s_waitcnt vmcnt(0)
        v_cmp_eq_u32 vcc, s{sN}, v13
        s_and_b64 vcc, vcc, s[{sNEED}:{sNEED+1}]
        s_cmp_eq_u64 vcc, s[{sNEED}:{sNEED+1}]
        s_cbranch_scc1 {D}
        """)
        poll(a,"pa2",R.SWS,13,sNEED,sNEED+1,13,2)
        a.label(D)
        pf.pt("aflag")
        k2_load_a(a,R,HLD,name)
    k2_attn(a,R,name,cfg,pf,hooks={"pre":h_pre,"post0":h_post0})
    a(f"""
    s_lshl_b32 s{R.sT}, s{R.sQB}, 5
    s_add_u32 s{R.sT}, s{R.sT}, s{R.sH}
    s_lshl_b32 s{R.sT}, s{R.sT}, 10
    s_add_u32 s{R.sOB}, s{R.sT}, {OF}
    s_add_u32 s{R.sT}, s{R.sOB}, {64*32*1024}
    buffer_store_dwordx4 {vr(R.TMP,4)}, v3, s[{R.SWS}:{R.SWS+3}], s{R.sT} offen {STF}
    """)
    pf.pt("att")
    a("s_waitcnt vmcnt(1)\ns_barrier")
    pf.pt("kvp")
    k2_apart(a,R,name)
    pf.pt("apart")
    a(f"buffer_store_dwordx4 {vr(R.TMP+4,4)}, v3, s[{R.SWS}:{R.SWS+3}], s{R.sOB} offen {STF}")
    a("s_waitcnt vmcnt(0)")
    pf.pt("odrain")
    a("s_barrier")
    pf.pt("b5")
    a(f"""
    s_cmp_lg_u32 s{sWV}, 0
    s_cbranch_scc1 {name}_nf2
    s_mul_i32 s{R.sT}, s{R.sRB}, {F2STR}
    s_lshl_b32 s{R.sT2}, s{R.sH}, 7
    s_add_u32 s{R.sT}, s{R.sT}, s{R.sT2}
    s_add_u32 s{R.sT}, s{R.sT}, {F2}
    v_mov_b32 v12, 0
    v_mov_b32 v13, s{sN}
    buffer_store_dword v13, v12, s[{R.SWS}:{R.SWS+3}], s{R.sT} offen sc1
    s_lshr_b32 s{sFA}, s{sP3T}, 1
    s_mul_i32 s{sFA}, s{sFA}, {F2STR}
    s_add_u32 s{sFA}, s{sFA}, {F2}
    s_mov_b32 s{sNEED}, -1
    s_mov_b32 s{sNEED+1}, 0
    """)
    poll(a,"p3",R.SWS,sFA,sNEED,sNEED+1,12,2,sleep=cfg.get("sleep2",4))
    a.label(f"{name}_nf2")
    a("s_barrier")
    pf.pt("f2")
    if pf.on and cfg.get("pwave",0)>=4:
        pf0.flush(len(PTS),4,2,wave=cfg["pwave"])
    a(f"s_cmp_ge_u32 s{sWV}, 4\ns_cbranch_scc1 {name}_end")
    SOUT=16; sTB=27; sOB=28
    a(f"""
    s_lshl_b32 s{sTB}, s{sP3T}, 2
    s_add_u32 s{sTB}, s{sTB}, s{sWV}
    s_lshl_b32 s{sT}, s{sP3BR}, 6
    s_add_u32 s{sT}, s{sT}, s{sTB}
    s_lshl_b32 s{sOB}, s{sT}, 15
    s_add_u32 s{sOB}, s{sOB}, {OF}
    """)
    OFR=64; ACC3=32; WFR=[8,16]; vWA3=5
    DEPTH=cfg.get("p3_depth",10)
    def oload(h):
        a(f"s_add_u32 s{sT2}, s{sOB}, {h*1024}\nbuffer_load_dwordx4 {vr(OFR+4*h,4)}, v3, s[{R.SWS}:{R.SWS+3}], s{sT2} offen {HLD}")
    for h in range(DEPTH): oload(h)
    a(f"""
    s_mov_b32 s{SOUT}, s{sOUT}
    s_mov_b32 s{SOUT+1}, s{sOUT+1}
    s_mov_b32 s{SOUT+2}, 0x400000
    s_mov_b32 s{SOUT+3}, 0x20000
    v_bfe_u32 v6, v1, 2, 2
    v_lshrrev_b32 v7, 5, v1
    v_lshl_add_u32 v6, v7, 2, v6
    v_lshlrev_b32 v6, 7, v6
    v_and_b32 v7, 1, v1
    v_lshlrev_b32 v7, 1, v7
    v_bfe_u32 v24, v1, 4, 1
    v_or_b32 v7, v7, v24
    v_bfe_u32 v24, v1, 3, 1
    v_lshlrev_b32 v24, 2, v24
    v_xor_b32 v7, v7, v24
    v_lshl_add_u32 v6, v7, 4, v6
    v_bfe_u32 v24, v1, 1, 1
    v_lshl_add_u32 v{vWA3}, v24, 3, v6
    v_xor_b32 v{vWA3+1}, 64, v{vWA3}
    v_add_u32 v{vWA3}, {WOL}, v{vWA3}
    v_add_u32 v{vWA3+1}, {WOL}, v{vWA3+1}
    """)
    def reads3(s,h):
        L=[]
        for nt in range(2):
            for t in range(2):
                L.append(f"ds_read_b64_tr_b16 {vr(WFR[s]+4*nt+2*t,2)}, v{vWA3+nt} offset:{h*2048+t*1024}")
        return L
    for l in reads3(0,0): a(l)
    for h in range(32):
        s=h&1
        nxt=reads3(s^1,h+1) if h<31 else []
        for l in nxt: a(l)
        issued=min(32,h+DEPTH)
        a(f"s_waitcnt vmcnt({issued-h-1}) lgkmcnt({len(nxt)})")
        for nt in range(2):
            c = "0" if h==0 else vr(ACC3+16*nt,16)
            a(f"v_mfma_f32_32x32x16_bf16 {vr(ACC3+16*nt,16)}, {vr(WFR[s]+4*nt,4)}, {vr(OFR+4*h,4)}, {c}")
        if h+DEPTH<32: oload(h+DEPTH)
    a(f"""
    s_lshl_b32 s{sT}, s{sTB}, 16
    s_lshl_b32 s{sT2}, s{sP3BR}, 10
    s_add_u32 s{sT}, s{sT}, s{sT2}
    s_lshl_b32 s{sT2}, s{sP3NS}, 7
    s_add_u32 s{sT}, s{sT}, s{sT2}
    v_and_b32 v6, 31, v1
    v_lshlrev_b32 v6, 11, v6
    v_lshrrev_b32 v7, 5, v1
    v_lshl_add_u32 v6, v7, 5, v6
    s_nop 7
    """)
    for nt in range(2):
        b=ACC3+16*nt; T=8+8*nt
        for i in range(8): a(f"v_cvt_pk_bf16_f32 v{T+i}, v{b+2*i}, v{b+2*i+1}")
        a(f"buffer_store_dwordx4 {vr(T,4)}, v6, s[{SOUT}:{SOUT+3}], s{sT} offen offset:{nt*64} {OSTF}")
        a(f"buffer_store_dwordx4 {vr(T+4,4)}, v6, s[{SOUT}:{SOUT+3}], s{sT} offen offset:{nt*64+16} {OSTF}")
    if pf.on:
        a("s_waitcnt vmcnt(0)"); pf.pt("end"); pf0.flush(len(PTS),4,2,wave=cfg.get("pwave",0) if cfg.get("pwave",0)<4 else 99)
    a.label(f"{name}_end")
    a("s_endpgm")
    return dict(name=name, grid=256, block=512, lds=163840, vgpr=248, sgpr=104 if False else 102)
```

```python
from asmlib import *
import math
from k1 import QF,KF,VF,PQ,OF,LOG2E,CSCALE
import k2
from k2 import K2R,k2_setup_consts,k2_attn

KVP=12<<20
FLG=0xD40000
WS_USED=0xE00000
FL=128
FBSTR=32*FL+256; FASTR=64*FL+256; F2STR=32*FL+256
F1B=FLG; F1A=F1B+8*FBSTR; F2=F1A+16*FASTR; NONCE=F2+8*F2STR
PROFB=14<<20

class R2(K2R):
    KL=100352; VL=116736; QL=133120; ONES=141312; KVL=0; RED=34816; NP=32
WOL=36864
NL=163824; XF=163808

sAX=64; sAW=66; sBX=68; sBW=70; sAWO=72; sBWO=74; sOUT=76; sDBG=78; sN=80; sCNT2=81
vSTAMP=247

def gen_fused2(a, name, cfg):
    NS=3
    LDX=cfg.get("ldx",""); LDW=cfg.get("ldw","")
    STF="sc1"; HLD="sc1"
    OSTF=cfg.get("out_stflags","")
    XB=0; XS=8192; WB=NS*XS; WS_=24576
    R=R2
    SWS=R.SWS
    sWAVE=R.sWAVE; sT=R.sT; sT2=R.sT2
    sR=82; sG=83
    on=cfg.get("prof",False)
    PTS=cfg.get("pts",[]); TIMER=cfg.get("timer","s_memrealtime")
    def pt(n):
        if on and n in PTS:
            a(f"{TIMER} s[4:5]\ns_waitcnt lgkmcnt(0)\nv_writelane_b32 v{vSTAMP}, s4, {PTS.index(n)}")
    def flush():
        if not on: return
        lab=a.newlabel("pf")
        a(f"""
        s_cmp_lg_u32 s{sWAVE}, {cfg.get("pwave",0)}
        s_cbranch_scc1 {lab}
        s_mov_b32 s4, s{SWS}
        s_mov_b32 s5, s{SWS+1}
        s_mov_b32 s6, {16<<20}
        s_mov_b32 s7, 0x20000
        s_lshl_b32 s{sT}, s2, 6
        s_add_u32 s{sT}, s{sT}, {PROFB}
        v_lshlrev_b32 v2, 2, v1
        s_mov_b64 exec, 0xffff
        buffer_store_dword v{vSTAMP}, v2, s[4:7], s{sT} offen
        s_mov_b64 exec, -1
        {lab}:
        """)
    def poll(tag, soff, need, vtmp, voff, bound=3000, sleep=4):
        L=a.newlabel(tag); D=a.newlabel(tag+"d")
        a(f"""
        s_mov_b32 s{sCNT2}, 0
        s_mov_b64 exec, s[{need}:{need+1}]
        {L}:
        buffer_load_dword v{vtmp}, v{voff}, s[{SWS}:{SWS+3}], s{soff} offen sc1
        s_waitcnt vmcnt(0)
        v_cmp_eq_u32 vcc, s{sN}, v{vtmp}
        s_cmp_eq_u64 vcc, s[{need}:{need+1}]
        s_cbranch_scc1 {D}
        s_add_u32 s{sCNT2}, s{sCNT2}, 1
        s_cmp_lt_u32 s{sCNT2}, {bound}
        s_cbranch_scc0 {D}
        s_sleep {sleep}
        s_branch {L}
        {D}:
        s_mov_b64 exec, -1
        """)
    a.raw(f".globl {name}\n.p2align 8\n.type {name},@function\n{name}:")
    if on: a(f"{TIMER} s[6:7]")
    a(f"""
    s_cmp_ge_u32 s2, 256
    s_cbranch_scc1 {name}_end
    s_load_dwordx4 s[{sAX}:{sAX+3}], s[0:1], 0
    s_load_dwordx4 s[{sBX}:{sBX+3}], s[0:1], 24
    s_load_dwordx2 s[{sAWO}:{sAWO+1}], s[0:1], 16
    s_load_dwordx2 s[{sBWO}:{sBWO+1}], s[0:1], 40
    s_load_dwordx4 s[{sOUT}:{sOUT+3}], s[0:1], 48
    s_load_dwordx2 s[{SWS}:{SWS+1}], s[0:1], 64
    v_lshrrev_b32 v2, 6, v0
    v_and_b32 v1, 63, v0
    s_and_b32 s{sT}, s2, 7                  ; j
    v_readfirstlane_b32 s{sWAVE}, v2
    s_lshr_b32 s{sT2}, s2, 3                ; i
    s_lshr_b32 s{sR}, s{sT}, 1
    s_lshl_b32 s{sR}, s{sR}, 3
    s_and_b32 s28, s{sT2}, 7
    s_add_u32 s{sR}, s{sR}, s28
    s_and_b32 s{sG}, s{sT}, 1
    s_lshl_b32 s{sG}, s{sG}, 2
    s_lshr_b32 s28, s{sT2}, 3
    s_add_u32 s{sG}, s{sG}, s28
    s_and_b32 s{R.sRB}, s{sT2}, 7
    s_lshr_b32 s28, s2, 6
    s_lshl_b32 s28, s28, 3
    s_add_u32 s{R.sH}, s{sT}, s28
    s_lshl_b32 s{R.sQB}, s{R.sRB}, 3
    s_add_u32 s{R.sQB}, s{R.sQB}, s{sWAVE}
    v_lshlrev_b32 v3, 4, v1
    s_mov_b32 s{SWS+2}, {WS_USED}
    s_mov_b32 s{SWS+3}, 0x20000
    s_waitcnt lgkmcnt(0)
    """)
    if on and "entry" in PTS: a(f"v_writelane_b32 v{vSTAMP}, s6, {PTS.index('entry')}")
    a(f"s_cmp_ge_u32 s{sWAVE}, 4\ns_cbranch_scc1 {name}_loader")
    sTT=84; sFN=85; sCNT=86; sSTG=87; sDX=88; sDW=89; sOFF=90; sH1=91
    ACC=32
    def acc(sec): return ACC+16*sec
    FR=[80,112]
    def xf(s,u): return FR[s]+16*u
    def wf(s,u,sec): return FR[s]+16*u+4+4*sec
    vXA=144; vWA=148
    a(f"""
    s_mov_b32 s28, s{sDBG}
    s_mov_b32 s29, s{sDBG+1}
    s_mov_b32 s30, 256
    s_mov_b32 s31, 0x20000
    v_mov_b32 v12, 0
    s_cmp_lg_u32 s2, 0
    s_cbranch_scc1 {name}_nononce
    s_cmp_lg_u32 s{sWAVE}, 1
    s_cbranch_scc1 {name}_nononce
    s_mov_b32 s{sT}, {NONCE}
    buffer_load_dword v13, v12, s[{SWS}:{SWS+3}], s{sT} offen sc1
    s_waitcnt vmcnt(0)
    v_add_u32 v13, 1, v13
    v_max_u32 v13, 1, v13
    buffer_store_dword v13, v12, s[28:31], 0 offen sc1
    buffer_store_dword v13, v12, s[{SWS}:{SWS+3}], s{sT} offen sc1
    {name}_nononce:
    """)
    Ln=a.newlabel("nz"); Ld=a.newlabel("nzd")
    a(f"""
    s_and_b32 s{sTT}, s{sWAVE}, 1
    s_lshr_b32 s{sFN}, s{sWAVE}, 1
    v_lshrrev_b32 v4, 5, v1                 ; hf
    v_and_b32 v5, 31, v1                    ; t31
    v_lshrrev_b32 v9, 1, v5
    v_and_b32 v9, 7, v9                     ; g
    s_lshl_b32 s{sT}, s{sTT}, 12
    v_lshlrev_b32 v10, 7, v5
    v_add_u32 v10, s{sT}, v10
    """)
    for ks in range(4):
        a(f"v_or_b32 v11, {2*ks}, v4\nv_xor_b32 v11, v11, v9\nv_lshl_add_u32 v{vXA+ks}, v11, 4, v10")
    a(f"""
    v_bfe_u32 v10, v1, 2, 2
    v_lshlrev_b32 v10, 7, v10
    v_lshl_add_u32 v10, v4, 10, v10
    v_bfe_u32 v11, v1, 4, 1
    v_lshlrev_b32 v11, 1, v11
    v_bfe_u32 v12, v1, 1, 1
    v_or_b32 v11, v11, v12
    s_lshl_b32 s{sT}, s{sFN}, 2
    v_or_b32 v11, s{sT}, v11
    v_bfe_u32 v12, v1, 3, 1
    v_lshlrev_b32 v12, 2, v12
    v_xor_b32 v11, v11, v12
    v_lshl_add_u32 v10, v11, 4, v10
    v_and_b32 v12, 1, v1
    v_lshl_add_u32 v10, v12, 3, v10
    v_add_u32 v{vWA}, {WB}, v10
    s_mov_b32 s92, {(-(NS-1)*XS)&0xffffffff:#x}
    s_mov_b32 s93, {XS}
    s_mov_b32 s94, {(-(NS-1)*WS_)&0xffffffff:#x}
    s_mov_b32 s95, {WS_}
    """)
    for r in range(ACC,ACC+48): a(f"v_mov_b32 v{r}, 0")
    k2_setup_consts(a,R)
    a(f"""
    s_cmp_lg_u32 s{sWAVE}, 0
    s_cbranch_scc1 {Ld}_skip
    s_mov_b32 s28, s{sDBG}
    s_mov_b32 s29, s{sDBG+1}
    s_mov_b32 s30, 256
    s_mov_b32 s31, 0x20000
    v_mov_b32 v12, 0
    s_mov_b32 s{sCNT2}, 0
    {Ln}:
    buffer_load_dword v13, v12, s[28:31], 0 offen sc1
    s_waitcnt vmcnt(0)
    v_readfirstlane_b32 s{sN}, v13
    s_cmp_lg_u32 s{sN}, 0
    s_cbranch_scc1 {Ld}
    s_add_u32 s{sCNT2}, s{sCNT2}, 1
    s_cmp_lt_u32 s{sCNT2}, 3000
    s_cbranch_scc0 {Ld}
    s_sleep 2
    s_branch {Ln}
    {Ld}:
    v_mov_b32 v14, {NL}
    v_mov_b32 v15, {XF}
    v_mov_b32 v10, 0
    v_mov_b32 v11, 0
    ds_write_b32 v14, v13
    ds_write_b64 v15, v[10:11]
    {Ld}_skip:
    s_waitcnt lgkmcnt(0)
    """)
    def reads(s, m):
        L=[]
        if cfg.get("diag_noreads"): return ["s_nop 0"]*14
        for u in range(2):
            ks=2*m+u
            L.append(f"ds_read_b128 {vr(xf(s,u),4)}, v{vXA+ks}")
            for sec in range(3):
                for t in range(2):
                    L.append(f"ds_read_b64_tr_b16 {vr(wf(s,u,sec)+2*t,2)}, v{vWA} offset:{sec*8192+ks*2048+t*512}")
        return L
    def mfmas(s, br):
        L=[]
        for u in range(2):
            for sec in range(3):
                featrow = (sec==0) or (sec==1 and br==1)
                A_,B_ = (wf(s,u,sec),xf(s,u)) if featrow else (xf(s,u),wf(s,u,sec))
                L.append(f"v_mfma_f32_32x32x16_bf16 {vr(acc(sec),16)}, {vr(A_,4)}, {vr(B_,4)}, {vr(acc(sec),16)}")
        return L
    def step(s, br, rd):
        M=mfmas(s,br)
        if rd:
            a(M[0])
            for l in rd[0:4]: a(l)
            a(M[1])
            for l in rd[4:8]: a(l)
            a(M[2])
            for l in rd[8:12]: a(l)
            a(M[3])
            for l in rd[12:14]: a(l)
            a(M[4]); a(M[5])
        else:
            for m in M: a(m)
    def getnonce():
        a(f"v_mov_b32 v12, {NL}\nds_read_b32 v13, v12\ns_waitcnt lgkmcnt(0)\nv_readfirstlane_b32 s{sN}, v13")
    def advance():
        a(f"""
        s_add_u32 s{sSTG}, s{sSTG}, 1
        s_cmp_eq_u32 s{sSTG}, {NS}
        s_cselect_b32 s{sDX}, s92, s93
        s_cselect_b32 s{sDW}, s94, s95
        s_cselect_b32 s{sSTG}, 0, s{sSTG}
        """)
    def addr_update():
        for ks in range(4): a(f"v_add_u32 v{vXA+ks}, s{sDX}, v{vXA+ks}")
        a(f"v_add_u32 v{vWA}, s{sDW}, v{vWA}")
    a(f"s_mov_b32 s{sSTG}, 0")
    a("s_barrier")
    pt("p")
    getnonce()
    for l in reads(0,0): a(l)
    def epi_addr():
        a(f"""
        s_lshl_b32 s{sH1}, s{sG}, 2
        s_lshl_b32 s{sT}, s{sFN}, 1
        s_add_u32 s{sH1}, s{sH1}, s{sT}          ; h0 = 4G+2fn
        s_lshl_b32 s{sT}, s{sR}, 1
        s_add_u32 s{sT}, s{sT}, s{sTT}
        s_lshl_b32 s{sOFF}, s{sH1}, 16
        s_lshl_b32 s{sT}, s{sT}, 10
        s_add_u32 s{sOFF}, s{sOFF}, s{sT}
        """)
    a(f"s_mov_b32 s{sCNT}, 0")
    a.label(f"{name}_loopB")
    a("s_waitcnt lgkmcnt(0)")
    step(0,1,reads(1,1))
    advance()
    a("s_waitcnt lgkmcnt(0)\ns_barrier")
    addr_update()
    step(1,1,reads(0,0))
    a(f"s_add_u32 s{sCNT}, s{sCNT}, 1\ns_cmp_lt_u32 s{sCNT}, 8\ns_cbranch_scc1 {name}_loopB")
    pt("loopB")
    T0=152
    epi_addr()
    a(f"""
    s_mov_b32 s96, {f2u(CSCALE):#x}
    s_mov_b32 s97, {f2u(CSCALE):#x}
    v_bfe_u32 v10, v1, 4, 1
    v_lshlrev_b32 v10, 16, v10
    v_lshrrev_b32 v11, 5, v1
    v_lshl_add_u32 v10, v11, 8, v10
    v_and_b32 v11, 15, v1
    v_lshl_add_u32 v10, v11, 4, v10
    s_nop 4
    """)
    b=acc(1)
    for i in range(8): a(f"v_cvt_pk_bf16_f32 v{T0+i}, v{b+2*i}, v{b+2*i+1}")
    a(f"s_add_u32 s{sT}, s{sOFF}, {KF}\nbuffer_store_dwordx4 {vr(T0,4)}, v3, s[{SWS}:{SWS+3}], s{sT} offen {STF}")
    a(f"s_add_u32 s{sT2}, s{sOFF}, {KF+65536}\nbuffer_store_dwordx4 {vr(T0+4,4)}, v3, s[{SWS}:{SWS+3}], s{sT2} offen {STF}")
    b=acc(2)
    for i in range(8): a(f"v_cvt_pk_bf16_f32 v{T0+8+i}, v{b+2*i}, v{b+2*i+1}")
    a(f"s_add_u32 s{sT}, s{sOFF}, {VF}\nbuffer_store_dwordx4 {vr(T0+8,4)}, v10, s[{SWS}:{SWS+3}], s{sT} offen {STF}")
    a(f"buffer_store_dwordx4 {vr(T0+12,4)}, v10, s[{SWS}:{SWS+3}], s{sT} offen offset:512 {STF}")
    b=acc(0)
    for i in range(8): a(f"v_pk_mul_f32 {vr(b+2*i,2)}, {vr(b+2*i,2)}, s[96:97]")
    for i in range(8): a(f"v_cvt_pk_bf16_f32 v{T0+16+i}, v{b+2*i}, v{b+2*i+1}")
    a(f"s_add_u32 s{sT}, s{sOFF}, {QF}\nbuffer_store_dwordx4 {vr(T0+16,4)}, v3, s[{SWS}:{SWS+3}], s{sT} offen {STF}")
    a(f"s_add_u32 s{sT2}, s{sOFF}, {QF+65536}\nbuffer_store_dwordx4 {vr(T0+20,4)}, v3, s[{SWS}:{SWS+3}], s{sT2} offen {STF}")
    for r in range(ACC,ACC+48): a(f"v_mov_b32 v{r}, 0")
    pt("epiB")
    FB=cfg.get("flagB_at",2)
    a(f"s_mov_b32 s{sCNT}, 0\ns_nop 1")
    a.label(f"{name}_loopA")
    a("s_waitcnt lgkmcnt(0)")
    step(0,0,reads(1,1))
    advance()
    a(f"""
    s_cmp_lg_u32 s{sCNT}, {FB}
    s_cbranch_scc1 {name}_nofb0
    s_waitcnt vmcnt(0)
    {name}_nofb0:
    s_waitcnt lgkmcnt(0)
    s_barrier
    s_cmp_lg_u32 s{sCNT}, {FB}
    s_cbranch_scc1 {name}_nofb1
    s_cmp_lg_u32 s{sWAVE}, 0
    s_cbranch_scc1 {name}_nofb1
    s_mul_i32 s{sT}, s{sG}, {FBSTR}
    s_lshl_b32 s{sT2}, s{sR}, 7
    s_add_u32 s{sT}, s{sT}, s{sT2}
    s_add_u32 s{sT}, s{sT}, {F1B}
    v_mov_b32 v12, 0
    v_mov_b32 v13, s{sN}
    buffer_store_dword v13, v12, s[{SWS}:{SWS+3}], s{sT} offen sc1
    {name}_nofb1:
    """)
    addr_update()
    step(1,0,reads(0,0))
    a(f"s_add_u32 s{sCNT}, s{sCNT}, 1\ns_cmp_lt_u32 s{sCNT}, 7\ns_cbranch_scc1 {name}_loopA")
    a("s_waitcnt lgkmcnt(0)")
    step(0,0,reads(1,1))
    a("s_waitcnt lgkmcnt(0)")
    step(1,0,[])
    pt("loopA")
    a(f"""
    s_mov_b32 s96, {f2u(LOG2E):#x}
    s_mov_b32 s97, {f2u(LOG2E):#x}
    s_mov_b32 s98, 1.0
    s_mov_b32 s99, 1.0
    s_mov_b32 s100, {f2u(1e-6):#x}
    s_mov_b32 s101, {f2u(1e-6):#x}
    s_mov_b32 s92, 0x0000ffff
    s_mov_b32 s93, 0x0000ffff
    v_mov_b32 v80, 0x3f803f80
    v_mov_b32 v81, 0x3f803f80
    v_mov_b32 v82, 0x3f803f80
    v_mov_b32 v83, 0x3f803f80
    s_nop 4
    """)
    U=152; PK=84; VV=92; D=168; D2=184; TQ=100
    def phi(b):
        for i in range(8): a(f"v_pk_mul_f32 {vr(U+2*i,2)}, {vr(b+2*i,2)}, s[96:97]")
        for i in range(16): a(f"v_exp_f32 v{U+i}, v{U+i} clamp")
        for i in range(8): a(f"v_pk_add_f32 {vr(b+2*i,2)}, {vr(b+2*i,2)}, s[98:99]")
        for i in range(16): a(f"v_max_f32 v{b+i}, v{b+i}, v{U+i}")
        for i in range(8): a(f"v_pk_add_f32 {vr(b+2*i,2)}, {vr(b+2*i,2)}, s[100:101]")
    b=acc(2)
    for i in range(8): a(f"v_cvt_pk_bf16_f32 v{VV+i}, v{b+2*i}, v{b+2*i+1}")
    b=acc(1)
    phi(b)
    for i in range(8): a(f"v_cvt_pk_bf16_f32 v{PK+i}, v{b+2*i}, v{b+2*i+1}")
    a("s_nop 1")
    for m in range(2):
        c1 = "0" if m==0 else vr(D,16)
        c2 = "0" if m==0 else vr(D2,16)
        a(f"v_mfma_f32_32x32x16_bf16 {vr(D,16)}, {vr(PK+4*m,4)}, {vr(VV+4*m,4)}, {c1}")
        a(f"v_mfma_f32_32x32x16_bf16 {vr(D2,16)}, {vr(PK+4*m,4)}, v[80:83], {c2}")
    b=acc(0)
    phi(b)
    for i in range(8): a(f"v_cvt_pk_bf16_f32 v{TQ+i}, v{b+2*i}, v{b+2*i+1}")
    a(f"s_add_u32 s{sT}, s{sOFF}, {PQ}\nbuffer_store_dwordx4 {vr(TQ,4)}, v3, s[{SWS}:{SWS+3}], s{sT} offen {STF}")
    a(f"s_add_u32 s{sT2}, s{sOFF}, {PQ+65536}\nbuffer_store_dwordx4 {vr(TQ+4,4)}, v3, s[{SWS}:{SWS+3}], s{sT2} offen {STF}")
    for r in range(8):  a(f"v_cndmask_b32_e64 v{D+r}, v{D2+r}, v{D+r}, s[92:93]")
    for r in range(8,16): a(f"v_cndmask_b32_e64 v{D+r}, v{D+r}, v{D2+r}, s[92:93]")
    EX=XS
    Lx=a.newlabel("xw"); Lxd=a.newlabel("xd")
    a(f"""
    s_lshl_b32 s{sT}, s{sFN}, 12
    s_add_u32 s{sT}, s{sT}, {EX}
    v_add_u32 v10, s{sT}, v3
    s_lshl_b32 s{sT}, s{sFN}, 2
    s_add_u32 s{sT}, s{sT}, {XF}
    v_mov_b32 v11, s{sT}
    s_cmp_eq_u32 s{sTT}, 0
    s_cbranch_scc1 {name}_Ard
    """)
    for q in range(4): a(f"ds_write_b128 v10, {vr(D+4*q,4)} offset:{q*1024}")
    a(f"""
    s_waitcnt lgkmcnt(0)
    v_mov_b32 v12, 1
    ds_write_b32 v11, v12
    s_branch {name}_Adone
    {name}_Ard:
    s_mov_b32 s{sCNT2}, 0
    {Lx}:
    ds_read_b32 v12, v11
    s_waitcnt lgkmcnt(0)
    v_readfirstlane_b32 s{sT}, v12
    s_cmp_lg_u32 s{sT}, 0
    s_cbranch_scc1 {Lxd}
    s_add_u32 s{sCNT2}, s{sCNT2}, 1
    s_cmp_lt_u32 s{sCNT2}, 100000
    s_cbranch_scc1 {Lx}
    {Lxd}:
    """)
    for q in range(4): a(f"ds_read_b128 {vr(D2+4*q,4)}, v10 offset:{q*1024}")
    a(f"""
    v_and_b32 v11, 31, v1
    v_lshrrev_b32 v12, 5, v1
    v_and_b32 v13, 15, v1
    v_lshlrev_b32 v13, 5, v13
    v_lshl_add_u32 v13, v12, 9, v13
    v_lshlrev_b32 v14, 5, v12
    v_add_u32 v14, 1024, v14
    v_mov_b32 v15, 0x40000000
    v_cmp_eq_u32 s[4:5], 16, v11
    v_cmp_eq_u32 s[6:7], 0, v11
    s_nop 1
    v_cndmask_b32_e64 v8, v15, v14, s[4:5]
    v_cndmask_b32_e64 v9, v15, v14, s[6:7]
    v_cndmask_b32_e64 v8, v8, v13, s[92:93]
    v_cndmask_b32_e64 v9, v13, v9, s[92:93]
    s_lshl_b32 s{sT}, s{sH1}, 5
    s_add_u32 s{sT}, s{sT}, s{sR}
    s_mul_i32 s{sT}, s{sT}, 1088
    s_add_u32 s{sT}, s{sT}, {KVP}
    s_add_u32 s{sT2}, s{sT}, {32*1088}
    s_waitcnt lgkmcnt(0)
    """)
    for i in range(8): a(f"v_pk_add_f32 {vr(D+2*i,2)}, {vr(D+2*i,2)}, {vr(D2+2*i,2)}")
    a(f"""
    buffer_store_dwordx4 {vr(D,4)}, v8, s[{SWS}:{SWS+3}], s{sT} offen {STF}
    buffer_store_dwordx4 {vr(D+4,4)}, v8, s[{SWS}:{SWS+3}], s{sT} offen offset:16 {STF}
    buffer_store_dwordx4 {vr(D+8,4)}, v9, s[{SWS}:{SWS+3}], s{sT2} offen {STF}
    buffer_store_dwordx4 {vr(D+12,4)}, v9, s[{SWS}:{SWS+3}], s{sT2} offen offset:16 {STF}
    {name}_Adone:
    """)
    pt("epiA")
    a(f"s_waitcnt lgkmcnt(0)\ns_branch {name}_p2")
    a.label(f"{name}_loader")
    sE=84; sXBs=85; sWBs=86; sL=87; sROT=88; sXC=89; sWC=90
    SX=12; SW=16
    a(f"""
    s_sub_u32 s{sE}, s{sWAVE}, 4
    s_mov_b32 s{SX}, s{sBX}
    s_mov_b32 s{SX+1}, s{sBX+1}
    s_mov_b32 s{SX+2}, 0x200000
    s_mov_b32 s{SX+3}, 0x20000
    s_mov_b32 s{SW}, s{sBW}
    s_mov_b32 s{SW+1}, s{sBW+1}
    s_mov_b32 s{SW+2}, 0x180000
    s_mov_b32 s{SW+3}, 0x20000
    v_lshrrev_b32 v4, 3, v1                 ; r
    v_and_b32 v5, 7, v1                     ; p
    v_lshrrev_b32 v6, 1, v4
    s_and_b32 s{sT}, s{sE}, 1
    s_lshl_b32 s{sT}, s{sT}, 2
    v_or_b32 v6, s{sT}, v6
    v_xor_b32 v6, v6, v5
    v_lshlrev_b32 v32, 10, v4
    v_lshl_add_u32 v32, v6, 4, v32          ; x voffset
    v_bfe_u32 v6, v1, 4, 1
    v_lshlrev_b32 v6, 2, v6
    v_xor_b32 v6, v6, v5
    v_mul_u32_u24 v33, 3072, v4
    v_lshl_add_u32 v33, v6, 4, v33          ; w voffset
    v_lshlrev_b32 v34, 10, v4
    v_lshl_add_u32 v34, v6, 4, v34
    s_lshl_b32 s{sXBs}, s{sR}, 16           ; R*64 rows*1024
    s_lshl_b32 s{sT}, s{sE}, 13
    s_add_u32 s{sXBs}, s{sXBs}, s{sT}
    s_lshl_b32 s{sWBs}, s{sG}, 7
    s_mul_i32 s{sT}, s{sE}, 24576
    s_add_u32 s{sWBs}, s{sWBs}, s{sT}
    s_lshl_b32 s{sL}, s{sE}, 10
    s_mov_b32 s{sROT}, 0
    """)
    for (src,sh,mask,mul) in cfg.get("k1_rot",[["R",0,7,1]]):
        r={"R":sR,"G":sG}[src]
        a(f"s_lshr_b32 s{sT}, s{r}, {sh}\ns_and_b32 s{sT}, s{sT}, {mask}\ns_mul_i32 s{sT}, s{sT}, {mul}\ns_add_u32 s{sROT}, s{sROT}, s{sT}")
    def issue(cc, part=None):
        if cfg.get("diag_nodma"): return
        st=cc%NS
        L=[]
        hdr=f"""
        s_add_u32 s{sT}, s{sROT}, {cc&7}
        s_and_b32 s{sT}, s{sT}, 7
        s_lshl_b32 s{sXC}, s{sT}, 7
        s_add_u32 s{sXC}, s{sXC}, s{sXBs}
        s_mul_i32 s{sWC}, s{sT}, 196608
        s_add_u32 s{sWC}, s{sWC}, s{sWBs}
        """
        if cc==8:
            hdr+=f"""
            s_mov_b32 s{SX}, s{sAX}
            s_mov_b32 s{SX+1}, s{sAX+1}
            s_mov_b32 s{SW}, s{sAW}
            s_mov_b32 s{SW+1}, s{sAW+1}
            """
        for i in range(2):
            L.append(f"s_add_u32 m0, s{sL}, {XB+st*XS+i*4096}\ns_add_u32 s{sT}, s{sXC}, {i*32768}\nbuffer_load_dwordx4 v32, s[{SX}:{SX+3}], s{sT} offen {LDX} lds")
        for jj in range(2):
            for sec in range(3):
                L.append(f"s_add_u32 m0, s{sL}, {WB+st*WS_+sec*8192+jj*4096}\ns_add_u32 s{sT}, s{sWC}, {jj*4*24576+sec*1024}\nbuffer_load_dwordx4 v33, s[{SW}:{SW+3}], s{sT} offen {LDW} lds")
        lo,hi = part if part else (0,8)
        if lo==0: a(hdr)
        for l in L[lo:hi]: a(l)
    k0=cfg.get("pro_k",3)
    issue(0); issue(1,(0,k0))
    k2_setup_consts(a,R)
    a(f"s_waitcnt vmcnt({k0}) lgkmcnt(0)\ns_barrier")
    issue(1,(k0,8)); issue(2)
    getnonce()
    for c in range(15):
        issued=min(16,c+NS)
        rem=8*(issued-(c+2))
        a(f"s_waitcnt vmcnt({rem})\ns_barrier")
        if c+NS<16: issue(c+NS)
    sFA=12; sNEED=14
    a(f"""
    v_lshlrev_b32 v2, 7, v1
    s_lshr_b32 s{sFA}, s{R.sH}, 2
    s_mul_i32 s{sFA}, s{sFA}, {FBSTR}
    s_add_u32 s{sFA}, s{sFA}, {F1B}
    s_lshl_b32 s{sT}, s{R.sRB}, 2
    s_mov_b32 s{sNEED}, 0xff
    s_mov_b32 s{sNEED+1}, 0
    s_lshl_b64 s[{sNEED}:{sNEED+1}], s[{sNEED}:{sNEED+1}], s{sT}
    s_lshr_b64 s[{sNEED}:{sNEED+1}], s[{sNEED}:{sNEED+1}], 4
    """)
    poll("pb",sFA,sNEED,12,2,sleep=cfg.get("sleep1",2))
    pt("bflag")
    a(f"s_lshl_b32 s{R.sBASE}, s{R.sH}, 16")
    for u in range(4):
        a(f"""
        s_lshl_b32 s{sT}, s{sE}, 2
        s_add_u32 s{sT}, s{sT}, {u}
        s_lshl_b32 s{sT2}, s{R.sRB}, 3
        s_add_u32 s{sT2}, s{sT2}, s{sT}
        s_sub_i32 s{sT2}, s{sT2}, 8
        s_max_i32 s{sT2}, s{sT2}, 0
        s_lshl_b32 s{sT2}, s{sT2}, 10
        s_add_u32 s{sT2}, s{sT2}, s{R.sBASE}
        s_lshl_b32 s{sT}, s{sT}, 10
        s_add_u32 m0, s{sT}, {R.KL}
        s_add_u32 s28, s{sT2}, {KF}
        buffer_load_dwordx4 v3, s[{SWS}:{SWS+3}], s28 offen {HLD} lds
        s_add_u32 m0, s{sT}, {R.VL}
        s_add_u32 s28, s{sT2}, {VF}
        buffer_load_dwordx4 v3, s[{SWS}:{SWS+3}], s28 offen {HLD} lds
        """)
    for u in range(2):
        a(f"""
        s_lshl_b32 s{sT}, s{sE}, 1
        s_add_u32 s{sT}, s{sT}, {u}               ; q-block
        s_lshl_b32 s{sT2}, s{R.sRB}, 3
        s_add_u32 s{sT2}, s{sT2}, s{sT}
        s_lshl_b32 s{sT2}, s{sT2}, 10
        s_add_u32 s{sT2}, s{sT2}, s{R.sBASE}
        s_add_u32 s28, s{sT2}, {QF}
        s_lshl_b32 s{sT}, s{sT}, 10
        s_add_u32 m0, s{sT}, {R.QL}
        s_nop 0
        buffer_load_dwordx4 v3, s[{SWS}:{SWS+3}], s28 offen {HLD} lds
        """)
    a("s_waitcnt vmcnt(0)")
    a.label(f"{name}_p2")
    a("s_barrier")
    pt("kv")
    a(f"""
    v_lshlrev_b32 v2, 7, v1
    s_lshl_b32 s{sT}, s{sWAVE}, 10
    s_add_u32 s{sT}, s{sT}, {R.QL}
    v_add_u32 v12, s{sT}, v3
    ds_read_b128 {vr(R.vQ,4)}, v12
    s_lshr_b32 s13, s{R.sH}, 1
    s_mul_i32 s13, s13, {FASTR}
    s_add_u32 s13, s13, {F1A}
    s_waitcnt lgkmcnt(0)
    """)
    sNEED=14
    def load_a():
        lab=a.newlabel("ka")
        a(f"""
        s_mul_i32 s28, s{R.sH}, {32*1088}
        s_add_u32 s28, s28, {KVP}
        s_cmp_ge_u32 s{sWAVE}, 2
        s_cbranch_scc1 {lab}
        s_add_u32 s{sT2}, s{sWAVE}, 32
        s_lshl_b32 s{sT2}, s{sT2}, 10
        s_add_u32 m0, s{sT2}, {R.KVL}
        s_add_u32 s{sT}, s28, s{sT2}
        buffer_load_dwordx4 v3, s[{SWS}:{SWS+3}], s{sT} offen {HLD} lds
        {lab}:
        s_lshl_b32 s{sT2}, s{sWAVE}, 10
        s_add_u32 s28, s28, s{sT2}
        """)
        for u in range(4):
            a(f"s_add_u32 m0, s{sT2}, {R.KVL+u*8192}\ns_add_u32 s{sT}, s28, {u*8192}\nbuffer_load_dwordx4 v3, s[{SWS}:{SWS+3}], s{sT} offen {HLD} lds")
        a(f"""
        s_lshl_b32 s{sT}, s{R.sH}, 16
        s_lshl_b32 s{sT2}, s{R.sQB}, 10
        s_add_u32 s{sT}, s{sT}, s{sT2}
        s_add_u32 s{sT}, s{sT}, {PQ}
        buffer_load_dwordx4 {vr(R.vPQ,4)}, v3, s[{SWS}:{SWS+3}], s{sT} offen {HLD}
        """)
    def h_post0():
        lab=a.newlabel("fa")
        a(f"""
        s_cmp_ge_u32 s{sWAVE}, 4
        s_cbranch_scc1 {lab}
        s_waitcnt vmcnt(0)
        s_lshl_b32 s{sT}, s{sG}, 1
        s_lshr_b32 s{sT2}, s{sWAVE}, 1
        s_add_u32 s{sT}, s{sT}, s{sT2}          ; (G,fn)
        s_mul_i32 s{sT}, s{sT}, {FASTR}
        s_lshl_b32 s{sT2}, s{sR}, 1
        s_and_b32 s28, s{sWAVE}, 1
        s_add_u32 s{sT2}, s{sT2}, s28
        s_lshl_b32 s{sT2}, s{sT2}, 7
        s_add_u32 s{sT}, s{sT}, s{sT2}
        s_add_u32 s{sT}, s{sT}, {F1A}
        v_mov_b32 v12, 0
        v_mov_b32 v13, s{sN}
        buffer_store_dword v13, v12, s[{SWS}:{SWS+3}], s{sT} offen sc1
        {lab}:
        """)
        pt("post0")
    AT=cfg.get("a_at",3)
    def h_probe():
        lab=a.newlabel("pr")
        a(f"s_cmp_eq_u32 s{R.sRB}, 0\ns_cbranch_scc1 {lab}\nbuffer_load_dword v13, v2, s[{SWS}:{SWS+3}], s13 offen sc1\n{lab}:")
    def acheck(first):
        D=a.newlabel("pa")
        a(f"s_mov_b64 s[{sNEED}:{sNEED+1}], -1")
        if first:
            a(f"""
            s_waitcnt vmcnt(0)
            v_cmp_eq_u32 vcc, s{sN}, v13
            s_cmp_eq_u64 vcc, s[{sNEED}:{sNEED+1}]
            s_cbranch_scc1 {D}
            """)
        poll("pa2",13,sNEED,13,2,sleep=cfg.get("sleep2",2))
        a.label(D)
        pt("aflag")
        load_a()
    def h_check():
        lab=a.newlabel("ck")
        a(f"s_cmp_eq_u32 s{R.sRB}, 0\ns_cbranch_scc1 {lab}")
        acheck(True)
        a.label(lab)
    k2_attn(a,R,name,cfg,None,hooks={"post0":h_post0,("it",AT+1):h_probe,("it",AT):h_check})
    lab=a.newlabel("rb0")
    a(f"s_cmp_lg_u32 s{R.sRB}, 0\ns_cbranch_scc1 {lab}")
    acheck(False)
    a.label(lab)
    a(f"""
    s_lshl_b32 s{sT}, s{R.sQB}, 5
    s_add_u32 s{sT}, s{sT}, s{R.sH}
    s_lshl_b32 s{sT}, s{sT}, 10
    s_add_u32 s{R.sOB}, s{sT}, {OF}
    s_add_u32 s{sT}, s{R.sOB}, {64*32*1024}
    buffer_store_dwordx4 {vr(R.TMP,4)}, v3, s[{SWS}:{SWS+3}], s{sT} offen {STF}
    """)
    pt("att")
    a("s_waitcnt vmcnt(1)\ns_barrier")
    pt("kvp")
    OA,TMP=R.OA,R.TMP
    lab=a.newlabel("nr")
    a(f"""
    v_lshlrev_b32 v{R.vRA}, 2, v0
    v_cmp_gt_u32 vcc, 272, v0
    s_and_saveexec_b64 s[28:29], vcc
    s_cbranch_execz {lab}
    """)
    RT=32
    W=12; issued=0; done=1
    while issued<W:
        a(f"ds_read_b32 v{RT+issued}, v{R.vRA} offset:{R.KVL+issued*1088}"); issued+=1
    while done<32:
        upto=min(32,done+4)
        a(f"s_waitcnt lgkmcnt({issued-upto})")
        for p in range(done,upto): a(f"v_add_f32 v{RT}, v{RT}, v{RT+p}")
        done=upto
        for _ in range(4):
            if issued<32:
                a(f"ds_read_b32 v{RT+issued}, v{R.vRA} offset:{R.KVL+issued*1088}"); issued+=1
    a(f"""
    ds_write_b32 v{R.vRA}, v{RT} offset:{R.RED}
    {lab}:
    s_mov_b64 exec, s[28:29]
    s_waitcnt lgkmcnt(0)
    s_barrier
    ds_read_b128 {vr(TMP+8,4)}, v{R.vKVA}
    ds_read_b128 {vr(TMP+12,4)}, v{R.vKVA} offset:16
    s_waitcnt lgkmcnt(0)
    """)
    for i in range(4): a(f"v_cvt_pk_bf16_f32 v{TMP+8+i}, v{TMP+8+2*i}, v{TMP+8+2*i+1}")
    a("s_nop 1")
    a(f"v_mfma_f32_32x32x16_bf16 {vr(OA,16)}, {vr(TMP+8,4)}, {vr(R.vPQ,4)}, 0")
    a(f"""
    v_lshrrev_b32 v4, 3, v1
    v_and_b32 v5, 7, v1
    v_bfe_u32 v6, v1, 4, 1
    v_lshlrev_b32 v6, 2, v6
    v_xor_b32 v6, v6, v5
    v_lshlrev_b32 v7, 10, v4
    v_lshl_add_u32 v7, v6, 4, v7
    s_and_b32 s{sT}, s2, 1
    s_cmp_eq_u32 s{sT}, 0
    s_cselect_b32 s16, s{sAWO}, s{sBWO}
    s_cselect_b32 s17, s{sAWO+1}, s{sBWO+1}
    s_mov_b32 s18, 0x80000
    s_mov_b32 s19, 0x20000
    s_nop 4
    v_add_f32 v{OA+8}, {f2u(1e-6):#x}, v{OA+8}
    s_nop 0
    v_rcp_f32 v{OA+8}, v{OA+8}
    s_nop 0
    """)
    for r in range(8): a(f"v_mul_f32 v{OA+r}, v{OA+r}, v{OA+8}")
    for i in range(4): a(f"v_cvt_pk_bf16_f32 v{TMP+4+i}, v{OA+2*i}, v{OA+2*i+1}")
    a(f"buffer_store_dwordx4 {vr(TMP+4,4)}, v3, s[{SWS}:{SWS+3}], s{R.sOB} offen {STF}")
    pt("apart")
    sP3T=82; sP3NS=83; sP3BR=84
    a(f"""
    s_and_b32 s{sP3BR}, s2, 1
    s_bfe_u32 s{sP3T}, s2, 0x20001            ; j>>1
    s_lshl_b32 s{sP3T}, s{sP3T}, 2
    s_bfe_u32 s{sT}, s2, 0x20003              ; i&3
    s_add_u32 s{sP3T}, s{sP3T}, s{sT}
    s_lshr_b32 s{sP3NS}, s2, 5                ; i>>2
    s_waitcnt vmcnt(0)
    """)
    pt("odrain")
    a("s_barrier")
    a(f"""
    s_cmp_lt_u32 s{sWAVE}, 4
    s_cbranch_scc1 {name}_wod
    s_sub_u32 s29, s{sWAVE}, 4
    s_lshl_b32 s28, s{sP3NS}, 7
    s_lshl_b32 s{sT}, s29, 13
    s_add_u32 s28, s28, s{sT}
    s_lshl_b32 s29, s29, 10
    """)
    for u in range(16):
        a(f"s_add_u32 m0, s29, {WOL+u*4096}\ns_add_u32 s{sT}, s28, {u*32768}\nbuffer_load_dwordx4 v7, s[16:19], s{sT} offen lds")
    a.label(f"{name}_wod")
    sFA=12
    lab=a.newlabel("nf2")
    a(f"""
    s_cmp_lg_u32 s{sWAVE}, 0
    s_cbranch_scc1 {lab}
    s_mul_i32 s{sT}, s{R.sRB}, {F2STR}
    s_lshl_b32 s{sT2}, s{R.sH}, 7
    s_add_u32 s{sT}, s{sT}, s{sT2}
    s_add_u32 s{sT}, s{sT}, {F2}
    v_mov_b32 v12, 0
    v_mov_b32 v13, s{sN}
    buffer_store_dword v13, v12, s[{SWS}:{SWS+3}], s{sT} offen sc1
    s_lshr_b32 s{sFA}, s{sP3T}, 1
    s_mul_i32 s{sFA}, s{sFA}, {F2STR}
    s_add_u32 s{sFA}, s{sFA}, {F2}
    s_mov_b32 s{sNEED}, -1
    s_mov_b32 s{sNEED+1}, 0
    """)
    poll("p3",sFA,sNEED,12,2,sleep=cfg.get("sleep3",2))
    a.label(lab)
    a("s_waitcnt vmcnt(0)\ns_barrier")
    pt("f2")
    if on and cfg.get("pwave",0)>=4: flush()
    a(f"s_cmp_ge_u32 s{sWAVE}, 4\ns_cbranch_scc1 {name}_end")
    SOUT=16; sTB=27; sOB=28
    a(f"""
    s_lshl_b32 s{sTB}, s{sP3T}, 2
    s_add_u32 s{sTB}, s{sTB}, s{sWAVE}
    s_lshl_b32 s{sT}, s{sP3BR}, 6
    s_add_u32 s{sT}, s{sT}, s{sTB}
    s_lshl_b32 s{sOB}, s{sT}, 15
    s_add_u32 s{sOB}, s{sOB}, {OF}
    """)
    OFR=64; ACC3=32; WFR=[8,16]; vWA3=5
    DEPTH=cfg.get("p3_depth",10)
    def oload(h):
        a(f"s_add_u32 s{sT2}, s{sOB}, {h*1024}\nbuffer_load_dwordx4 {vr(OFR+4*h,4)}, v3, s[{SWS}:{SWS+3}], s{sT2} offen {HLD}")
    for h in range(DEPTH): oload(h)
    a(f"""
    s_mov_b32 s{SOUT}, s{sOUT}
    s_mov_b32 s{SOUT+1}, s{sOUT+1}
    s_mov_b32 s{SOUT+2}, 0x400000
    s_mov_b32 s{SOUT+3}, 0x20000
    v_bfe_u32 v6, v1, 2, 2
    v_lshrrev_b32 v7, 5, v1
    v_lshl_add_u32 v6, v7, 2, v6
    v_lshlrev_b32 v6, 7, v6
    v_and_b32 v7, 1, v1
    v_lshlrev_b32 v7, 1, v7
    v_bfe_u32 v24, v1, 4, 1
    v_or_b32 v7, v7, v24
    v_bfe_u32 v24, v1, 3, 1
    v_lshlrev_b32 v24, 2, v24
    v_xor_b32 v7, v7, v24
    v_lshl_add_u32 v6, v7, 4, v6
    v_bfe_u32 v24, v1, 1, 1
    v_lshl_add_u32 v{vWA3}, v24, 3, v6
    v_xor_b32 v{vWA3+1}, 64, v{vWA3}
    v_add_u32 v{vWA3}, {WOL}, v{vWA3}
    v_add_u32 v{vWA3+1}, {WOL}, v{vWA3+1}
    """)
    def reads3(s,h):
        L=[]
        for nt in range(2):
            for t in range(2):
                L.append(f"ds_read_b64_tr_b16 {vr(WFR[s]+4*nt+2*t,2)}, v{vWA3+nt} offset:{h*2048+t*1024}")
        return L
    for l in reads3(0,0): a(l)
    for h in range(32):
        s=h&1
        nxt=reads3(s^1,h+1) if h<31 else []
        for l in nxt: a(l)
        issued=min(32,h+DEPTH)
        a(f"s_waitcnt vmcnt({issued-h-1}) lgkmcnt({len(nxt)})")
        for nt in range(2):
            c = "0" if h==0 else vr(ACC3+16*nt,16)
            a(f"v_mfma_f32_32x32x16_bf16 {vr(ACC3+16*nt,16)}, {vr(WFR[s]+4*nt,4)}, {vr(OFR+4*h,4)}, {c}")
        if h+DEPTH<32: oload(h+DEPTH)
    a(f"""
    s_lshl_b32 s{sT}, s{sTB}, 16
    s_lshl_b32 s{sT2}, s{sP3BR}, 10
    s_add_u32 s{sT}, s{sT}, s{sT2}
    s_lshl_b32 s{sT2}, s{sP3NS}, 7
    s_add_u32 s{sT}, s{sT}, s{sT2}
    v_and_b32 v6, 31, v1
    v_lshlrev_b32 v6, 11, v6
    v_lshrrev_b32 v7, 5, v1
    v_lshl_add_u32 v6, v7, 5, v6
    s_nop 7
    """)
    for nt in range(2):
        b=ACC3+16*nt; T=8+8*nt
        for i in range(8): a(f"v_cvt_pk_bf16_f32 v{T+i}, v{b+2*i}, v{b+2*i+1}")
        a(f"buffer_store_dwordx4 {vr(T,4)}, v6, s[{SOUT}:{SOUT+3}], s{sT} offen offset:{nt*64} {OSTF}")
        a(f"buffer_store_dwordx4 {vr(T+4,4)}, v6, s[{SOUT}:{SOUT+3}], s{sT} offen offset:{nt*64+16} {OSTF}")
    if on:
        a("s_waitcnt vmcnt(0)"); pt("end")
        if cfg.get("pwave",0)<4: flush()
    a.label(f"{name}_end")
    a("s_endpgm")
    return dict(name=name, grid=256, block=512, lds=163840, vgpr=248, sgpr=102)
```

```python
from asmlib import *
from k1 import QF,KF,VF,PQ,OF,KVP,WS_USED
NEGBIG=-1.0e30

def diag_mask(r):
    m=0
    for l in range(64):
        b=8*(r>>2)+4*(l>>5)+(r&3)
        if b<=(l&31): m|=1<<l
    return m

KL=0; VL=16384; ONES=32768; KVL=ONES+9216; RED=KVL+17408; K2_LDS=RED+1088+192

class K2R:
    KL=KL; VL=VL; ONES=ONES; KVL=KVL; RED=RED; NP=16; KVPB=KVP
    SWS=8
    sWAVE=20; sRB=21; sH=22; sQB=23; sT=24; sT2=25; sTMIN=26; sBASE=27; sOB=30
    MASK=32
    vLANE=1; vL16=3; vQ=4; vPQ=8; PM=16; vKA=24; vVA=25; vKVA=26; vRA=27; MX=28
    KFr=32
    SA,SB,SC,SD=68,84,100,116
    M=132; NEG=148; O=164; P=180; P2=188; VA=196; VB=204; OA=212; TMP=228

def k2_setup_consts(a, R):
    sT,sT2=R.sT,R.sT2
    a(f"""
    v_mov_b32 v12, 0x3f803f80
    v_mov_b32 v13, 0x3f803f80
    v_mov_b32 v14, 0x3f803f80
    v_mov_b32 v15, 0x3f803f80
    s_lshl_b32 s{sT}, s{R.sWAVE}, 10
    s_add_u32 s{sT}, s{sT}, {R.ONES}
    v_add_u32 v16, s{sT}, v{R.vL16}
    ds_write_b128 v16, v[12:15]
    v_add_u32 v16, {R.ONES+8192}, v{R.vL16}
    ds_write_b128 v16, v[12:15]
    """)
    for r in range(16):
        m=diag_mask(r)
        a(f"s_mov_b32 s{R.MASK+2*r}, {m&0xffffffff:#x}\ns_mov_b32 s{R.MASK+2*r+1}, {m>>32:#x}")
    a("v_mov_b32 v24, 0xffff\nv_mov_b32 v25, 0xffff0000")
    for i in range(8):
        a(f"v_cndmask_b32_e64 v{R.PM+i}, 0, v24, s[{R.MASK+4*i}:{R.MASK+4*i+1}]")
        a(f"v_cndmask_b32_e64 v26, 0, v25, s[{R.MASK+4*i+2}:{R.MASK+4*i+3}]")
        a(f"v_or_b32 v{R.PM+i}, v{R.PM+i}, v26")
    a(f"""
    s_lshl_b32 s{sT}, s{R.sWAVE}, 10
    s_add_u32 s{sT2}, s{sT}, {R.KL}
    v_add_u32 v{R.vKA}, s{sT2}, v{R.vL16}
    v_and_b32 v28, 31, v{R.vLANE}             ; idx
    v_lshrrev_b32 v29, 5, v{R.vLANE}          ; hf
    v_lshlrev_b32 v30, 4, v28
    v_lshl_add_u32 v30, v29, 8, v30
    s_add_u32 s{sT2}, s{sT}, {R.VL}
    v_add_u32 v30, s{sT2}, v30
    v_subrev_u32 v31, 20, v28
    v_cmp_gt_u32 vcc, 8, v31
    v_mov_b32 v31, {R.ONES}
    v_mov_b32 v12, {R.ONES+64}
    v_cndmask_b32_e64 v31, v31, v12, vcc
    v_cmp_gt_u32 vcc, 16, v28
    s_nop 1
    v_cndmask_b32_e64 v{R.vVA}, v31, v30, vcc
    v_lshlrev_b32 v30, 5, v28
    v_lshl_add_u32 v30, v29, 9, v30
    v_lshlrev_b32 v31, 5, v29
    v_add_u32 v31, 1024, v31
    v_cndmask_b32_e64 v{R.vKVA}, v31, v30, vcc
    v_add_u32 v{R.vKVA}, {R.RED}, v{R.vKVA}
    s_sub_u32 s{R.sTMIN}, 8, s{R.sWAVE}
    s_cmp_eq_u32 s{R.sRB}, 0
    s_cselect_b32 s{R.sTMIN}, s{R.sTMIN}, 1
    """)

def k2_load_b(a, R, LDF):
    sT,sT2,SWS=R.sT,R.sT2,R.SWS
    a(f"""
    s_lshl_b32 s{R.sBASE}, s{R.sH}, 16            ; h*65536
    s_lshl_b32 s{sT}, s{R.sQB}, 10
    s_add_u32 s{sT}, s{sT}, s{R.sBASE}
    s_add_u32 s{sT2}, s{sT}, {QF}
    buffer_load_dwordx4 {vr(R.vQ,4)}, v{R.vL16}, s[{SWS}:{SWS+3}], s{sT2} offen {LDF}
    """)
    for u in range(2):
        a(f"""
        s_lshl_b32 s{sT}, s{R.sWAVE}, 1
        s_add_u32 s{sT}, s{sT}, {u}              ; slot
        s_lshl_b32 s{sT2}, s{R.sRB}, 3
        s_add_u32 s{sT2}, s{sT2}, s{sT}
        s_sub_i32 s{sT2}, s{sT2}, 8
        s_max_i32 s{sT2}, s{sT2}, 0              ; tile
        s_lshl_b32 s{sT2}, s{sT2}, 10
        s_add_u32 s{sT2}, s{sT2}, s{R.sBASE}
        s_lshl_b32 s{sT}, s{sT}, 10
        s_add_u32 m0, s{sT}, {R.KL}
        s_add_u32 s28, s{sT2}, {KF}
        buffer_load_dwordx4 v{R.vL16}, s[{SWS}:{SWS+3}], s28 offen {LDF} lds
        s_add_u32 m0, s{sT}, {R.VL}
        s_add_u32 s28, s{sT2}, {VF}
        buffer_load_dwordx4 v{R.vL16}, s[{SWS}:{SWS+3}], s28 offen {LDF} lds
        """)

def k2_load_a(a, R, LDF, name):
    sT,sT2,SWS=R.sT,R.sT2,R.SWS
    a(f"""
    s_mul_i32 s28, s{R.sH}, 17408
    s_add_u32 s28, s28, {KVP}
    s_cmp_lg_u32 s{R.sWAVE}, 0
    s_cbranch_scc1 {name}_nokv16
    s_mov_b32 m0, {R.KVL+16*1024}
    s_add_u32 s{sT}, s28, {16*1024}
    buffer_load_dwordx4 v{R.vL16}, s[{SWS}:{SWS+3}], s{sT} offen {LDF} lds
    {name}_nokv16:
    s_lshl_b32 s{sT2}, s{R.sWAVE}, 10
    s_add_u32 m0, s{sT2}, {R.KVL}
    s_add_u32 s{sT}, s28, s{sT2}
    buffer_load_dwordx4 v{R.vL16}, s[{SWS}:{SWS+3}], s{sT} offen {LDF} lds
    s_add_u32 m0, s{sT2}, {R.KVL+8192}
    s_add_u32 s{sT}, s{sT}, 8192
    buffer_load_dwordx4 v{R.vL16}, s[{SWS}:{SWS+3}], s{sT} offen {LDF} lds
    s_lshl_b32 s{sT}, s{R.sH}, 16
    s_lshl_b32 s{sT2}, s{R.sQB}, 10
    s_add_u32 s{sT}, s{sT}, s{sT2}
    s_add_u32 s{sT}, s{sT}, {PQ}
    buffer_load_dwordx4 {vr(R.vPQ,4)}, v{R.vL16}, s[{SWS}:{SWS+3}], s{sT} offen {LDF}
    """)

def k2_attn(a, R, name, cfg, pf=None, hooks=None):
    hooks=hooks or {}
    SA,SB,SC,SD,M,NEG,O,P,P2,VA,VB,TMP=R.SA,R.SB,R.SC,R.SD,R.M,R.NEG,R.O,R.P,R.P2,R.VA,R.VB,R.TMP
    vQ,vKA,vVA,MASK,PM,MX=R.vQ,R.vKA,R.vVA,R.MASK,R.PM,R.MX
    def kf(t): return R.KFr+4*t
    def mf(D,A_,B_,C): a(f"v_mfma_f32_32x32x16_bf16 {vr(D,16)}, {vr(A_,4)}, {vr(B_,4)}, {C if isinstance(C,str) else vr(C,16)}")
    def vreads(t,V):
        a(f"ds_read_b128 {vr(V,4)}, v{vVA} offset:{t*1024}")
        a(f"ds_read_b128 {vr(V+4,4)}, v{vVA} offset:{t*1024+512}")
    def chk(t,lab): a(f"s_cmp_gt_u32 s{R.sTMIN}, {t}\ns_cbranch_scc1 {lab}")
    def hook(k):
        if k in hooks: hooks[k]()
    FE=f"{name}_fend"; SLOW=f"{name}_slow"; EPI=f"{name}_epi"
    nomax=cfg.get("k2_nomax",True)
    if nomax:
        KA,KB,KC=kf(0),kf(1),kf(2)
        a(f"ds_read_b128 {vr(KA,4)}, v{vKA} offset:0")
        a(f"ds_read_b128 {vr(KB,4)}, v{vKA} offset:{8*1024}")
        a(f"ds_read_b128 {vr(KC,4)}, v{vKA} offset:{7*1024}")
        vreads(8,VA); vreads(0,VB)
        l0=f"{name}_f0a"; l1=f"{name}_f0b"
        a(f"s_cmp_eq_u32 s{R.sRB}, 0\ns_cbranch_scc1 {l0}")
        a("s_waitcnt lgkmcnt(6)")
        mf(SA,KA,vQ,"0")
        a(f"s_branch {l1}")
        a.label(l0)
        for r in range(16): a(f"v_mov_b32 v{SA+r}, {f2u(NEGBIG):#x}")
        a.label(l1)
        a("s_waitcnt lgkmcnt(5)")
        mf(SB,KB,vQ,"0")
        a("s_waitcnt lgkmcnt(4)")
        mf(SC,KC,vQ,"0")
        a(f"ds_read_b128 {vr(KA,4)}, v{vKA} offset:{6*1024}")
        hook("pre")
        a("s_nop 7\ns_nop 1")
        for r in range(16):
            a(f"v_cndmask_b32_e64 v{M+r}, v{SA+r}, v{SB+r}, s[{MASK+2*r}:{MASK+2*r+1}]")
        for r in range(16): a(f"v_exp_f32 v{M+r}, v{M+r}")
        a("s_nop 0")
        for i in range(8): a(f"v_cvt_pk_bf16_f32 v{P+i}, v{M+2*i}, v{M+2*i+1}")
        for i in range(8): a(f"v_and_b32 v{P2+i}, v{P+i}, v{PM+i}")
        for i in range(8): a(f"v_xor_b32 v{P+i}, v{P+i}, v{P2+i}")
        a("s_waitcnt lgkmcnt(1)")
        mf(O,VA,P2,"0"); mf(O,VA+4,P2+4,O)
        lab=f"{name}_fskip0"
        a(f"s_cmp_eq_u32 s{R.sRB}, 0\ns_cbranch_scc1 {lab}")
        mf(O,VB,P,O); mf(O,VB+4,P+4,O)
        a.label(lab)
        hook("post0")
        bufs=[SC,SD]; Vb=[VA,VB]; Pb=[P2,P]; Kb=[KA,KB]
        for n,t in enumerate(range(7,0,-1)):
            S=bufs[n&1]; Sn=bufs[(n+1)&1]; V=Vb[n&1]; Pp=Pb[n&1]
            chk(t,FE)
            vreads(t,V)
            if t>1:
                a("s_waitcnt lgkmcnt(2)")
                mf(Sn,Kb[n&1],vQ,"0")
            if t>2: a(f"ds_read_b128 {vr(Kb[(n+1)&1],4)}, v{vKA} offset:{(t-2)*1024}")
            hook(("it",t))
            for r in range(16): a(f"v_exp_f32 v{S+r}, v{S+r}")
            a("s_nop 0")
            for i in range(8): a(f"v_cvt_pk_bf16_f32 v{Pp+i}, v{S+2*i}, v{S+2*i+1}")
            a(f"s_waitcnt lgkmcnt({1 if t>2 else 0})")
            mf(O,V,Pp,O); mf(O,V+4,Pp+4,O)
        a.label(FE)
        a(f"""
        s_nop 15
        v_max3_f32 v28, |v{O}|, |v{O+1}|, |v{O+2}|
        v_max3_f32 v29, |v{O+3}|, |v{O+4}|, |v{O+5}|
        v_max3_f32 v28, v28, |v{O+6}|, |v{O+7}|
        v_max_f32 v28, v28, v29
        s_mov_b32 s28, {f2u(2.0**-64):#x}
        s_mov_b32 s29, {f2u(2.0**64):#x}
        v_cmp_nle_f32 vcc, s28, v{O+8}
        v_cmp_nge_f32 s[30:31], s29, v{O+8}
        s_or_b64 vcc, vcc, s[30:31]
        s_mov_b32 s28, {f2u(2.0**120):#x}
        v_cmp_nge_f32 s[30:31], s28, v28
        s_or_b64 vcc, vcc, s[30:31]
        s_nop 4
        s_cbranch_vccz {EPI}
        """)
    a.label(SLOW)
    a("s_waitcnt lgkmcnt(0)")
    for t in (0,8,7,6,5,4,3,2,1):
        a(f"ds_read_b128 {vr(kf(t),4)}, v{vKA} offset:{t*1024}")
    a("s_waitcnt lgkmcnt(0)")
    l0=f"{name}_rb0a"; l1=f"{name}_rb0b"
    a(f"s_cmp_eq_u32 s{R.sRB}, 0\ns_cbranch_scc1 {l0}")
    mf(SA,kf(0),vQ,"0")
    a(f"s_branch {l1}")
    a.label(l0)
    for r in range(16): a(f"v_mov_b32 v{SA+r}, {f2u(NEGBIG):#x}")
    a.label(l1)
    mf(SB,kf(8),vQ,"0"); mf(SC,kf(7),vQ,"0"); mf(SD,kf(6),vQ,"0")
    a("s_nop 15")
    for r in range(16):
        a(f"v_cndmask_b32_e64 v{M+r}, v{SA+r}, v{SB+r}, s[{MASK+2*r}:{MASK+2*r+1}]")
    a(f"v_max3_f32 v{MX}, v{M}, v{M+1}, v{M+2}")
    for r in range(3,15,2): a(f"v_max3_f32 v{MX}, v{MX}, v{M+r}, v{M+r+1}")
    a(f"v_max_f32 v{MX}, v{MX}, v{M+15}")
    def maxtile(S):
        for r in range(0,16,2): a(f"v_max3_f32 v{MX}, v{MX}, v{S+r}, v{S+r+1}")
    P1E=f"{name}_p1end"
    chk(7,P1E)
    mf(SA,kf(5),vQ,"0"); mf(SB,kf(4),vQ,"0")
    maxtile(SC); chk(6,P1E); maxtile(SD); chk(5,P1E)
    mf(SC,kf(3),vQ,"0"); mf(SD,kf(2),vQ,"0")
    maxtile(SA); chk(4,P1E); maxtile(SB); chk(3,P1E)
    mf(SA,kf(1),vQ,"0")
    maxtile(SC); chk(2,P1E); maxtile(SD); chk(1,P1E)
    a("s_nop 1")
    maxtile(SA)
    a.label(P1E)
    a(f"""
    v_mov_b32 v29, v{MX}
    s_nop 1
    v_permlane32_swap_b32 v29, v{MX}
    s_nop 1
    v_max_f32 v{MX}, v{MX}, v29
    v_sub_f32 v{NEG}, 0, v{MX}
    """)
    for r in range(1,16): a(f"v_mov_b32 v{NEG+r}, v{NEG}")
    vreads(8,VA); vreads(0,VB)
    mf(SC,kf(7),vQ,NEG)
    for i in range(8): a(f"v_pk_add_f32 {vr(M+2*i,2)}, {vr(M+2*i,2)}, {vr(NEG,2)}")
    for r in range(16): a(f"v_exp_f32 v{M+r}, v{M+r}")
    a("s_nop 0")
    for i in range(8): a(f"v_cvt_pk_bf16_f32 v{P+i}, v{M+2*i}, v{M+2*i+1}")
    for i in range(8): a(f"v_and_b32 v{P2+i}, v{P+i}, v{PM+i}")
    for i in range(8): a(f"v_xor_b32 v{P+i}, v{P+i}, v{P2+i}")
    a("s_waitcnt lgkmcnt(0)")
    mf(O,VA,P2,"0"); mf(O,VA+4,P2+4,O)
    lab=f"{name}_skip0"
    a(f"s_cmp_eq_u32 s{R.sRB}, 0\ns_cbranch_scc1 {lab}")
    mf(O,VB,P,O); mf(O,VB+4,P+4,O)
    a.label(lab)
    P2E=f"{name}_p2end"
    bufs=[SC,SD]; Vb=[VA,VB]; Pb=[P,P2]
    for n,t in enumerate(range(7,0,-1)):
        S=bufs[n&1]; Sn=bufs[(n+1)&1]; V=Vb[n&1]; Pp=Pb[n&1]
        chk(t,P2E)
        vreads(t,V)
        if t>1: mf(Sn,kf(t-1),vQ,NEG)
        for r in range(16): a(f"v_exp_f32 v{S+r}, v{S+r}")
        a("s_nop 0")
        for i in range(8): a(f"v_cvt_pk_bf16_f32 v{Pp+i}, v{S+2*i}, v{S+2*i+1}")
        a("s_waitcnt lgkmcnt(0)")
        mf(O,V,Pp,O); mf(O,V+4,Pp+4,O)
    a.label(P2E)
    a("s_nop 15")
    a.label(EPI)
    a(f"v_rcp_f32 v{O+8}, v{O+8}\ns_nop 0")
    for r in range(8): a(f"v_mul_f32 v{O+r}, v{O+r}, v{O+8}")
    for i in range(4): a(f"v_cvt_pk_bf16_f32 v{TMP+i}, v{O+2*i}, v{O+2*i+1}")

def k2_apart(a, R, name):
    OA,TMP=R.OA,R.TMP
    a(f"""
    v_lshlrev_b32 v{R.vRA}, 2, v0               ; tid*4
    v_cmp_gt_u32 vcc, 272, v0
    s_and_saveexec_b64 s[28:29], vcc
    s_cbranch_execz {name}_nored
    """)
    RT=32
    for p in range(12):
        a(f"ds_read_b32 v{RT+p}, v{R.vRA} offset:{R.KVL+p*1088}")
    for p in range(1,4):
        a(f"s_waitcnt lgkmcnt({11-p})")
        a(f"v_add_f32 v{RT}, v{RT}, v{RT+p}")
    for p in range(12,16):
        a(f"ds_read_b32 v{RT+p}, v{R.vRA} offset:{R.KVL+p*1088}")
    for p in range(4,16):
        a(f"s_waitcnt lgkmcnt({15-p})")
        a(f"v_add_f32 v{RT}, v{RT}, v{RT+p}")
    a(f"""
    ds_write_b32 v{R.vRA}, v{RT} offset:{R.RED}
    {name}_nored:
    s_mov_b64 exec, s[28:29]
    s_waitcnt lgkmcnt(0)
    s_barrier
    ds_read_b128 {vr(TMP+8,4)}, v{R.vKVA}
    ds_read_b128 {vr(TMP+12,4)}, v{R.vKVA} offset:16
    s_waitcnt lgkmcnt(0)
    """)
    for i in range(4): a(f"v_cvt_pk_bf16_f32 v{TMP+8+i}, v{TMP+8+2*i}, v{TMP+8+2*i+1}")
    a("s_nop 1")
    a(f"v_mfma_f32_32x32x16_bf16 {vr(OA,16)}, {vr(TMP+8,4)}, {vr(R.vPQ,4)}, 0")
    a(f"""
    s_nop 15
    v_add_f32 v{OA+8}, {f2u(1e-6):#x}, v{OA+8}
    s_nop 0
    v_rcp_f32 v{OA+8}, v{OA+8}
    s_nop 0
    """)
    for r in range(8): a(f"v_mul_f32 v{OA+r}, v{OA+r}, v{OA+8}")
    for i in range(4): a(f"v_cvt_pk_bf16_f32 v{TMP+4+i}, v{OA+2*i}, v{OA+2*i+1}")

def gen_k2(a, name, cfg):
    LDF=cfg.get("k2_ldflags","")
    STF=cfg.get("k2_stflags","")
    R=K2R
    a.raw(f".globl {name}\n.p2align 8\n.type {name},@function\n{name}:")
    SWS=R.SWS
    pf=Prof(a,cfg,1,64,R.sWAVE,4,5)
    pf.stamp(0)
    a(f"""
    s_cmp_ge_u32 s2, 256
    s_cbranch_scc1 {name}_end
    s_load_dwordx2 s[4:5], s[0:1], 64
    v_lshrrev_b32 v2, 6, v0
    v_and_b32 v1, 63, v0
    """)
    if cfg.get("k2_map",1)==0:
        a(f"s_and_b32 s{R.sRB}, s2, 7\nv_readfirstlane_b32 s{R.sWAVE}, v2\ns_lshr_b32 s{R.sH}, s2, 3")
    else:
        a(f"""
        s_bfe_u32 s{R.sRB}, s2, 0x30003
        v_readfirstlane_b32 s{R.sWAVE}, v2
        s_and_b32 s{R.sH}, s2, 7
        s_lshr_b32 s{R.sT}, s2, 6
        s_lshl_b32 s{R.sT}, s{R.sT}, 3
        s_add_u32 s{R.sH}, s{R.sH}, s{R.sT}
        """)
    a(f"""
    v_lshlrev_b32 v3, 4, v1                   ; lane*16
    s_lshl_b32 s{R.sQB}, s{R.sRB}, 3
    s_add_u32 s{R.sQB}, s{R.sQB}, s{R.sWAVE}        ; qb
    s_waitcnt lgkmcnt(0)
    s_mov_b32 s{SWS}, s4
    s_mov_b32 s{SWS+1}, s5
    s_mov_b32 s{SWS+2}, {WS_USED}
    s_mov_b32 s{SWS+3}, 0x20000
    """)
    pf.stamp(6)
    k2_load_b(a,R,LDF)
    k2_load_a(a,R,LDF,name)
    pf.stamp(7)
    k2_setup_consts(a,R)
    pf.stamp(8)
    a("s_waitcnt vmcnt(3) lgkmcnt(0)\ns_barrier")
    pf.stamp(1)
    k2_attn(a,R,name,cfg,pf)
    a(f"""
    s_lshl_b32 s{R.sT}, s{R.sQB}, 5
    s_add_u32 s{R.sT}, s{R.sT}, s{R.sH}
    s_lshl_b32 s{R.sT}, s{R.sT}, 10
    s_add_u32 s{R.sOB}, s{R.sT}, {OF}
    s_add_u32 s{R.sT}, s{R.sOB}, {64*32*1024}
    buffer_store_dwordx4 {vr(R.TMP,4)}, v3, s[{SWS}:{SWS+3}], s{R.sT} offen {STF}
    """)
    pf.stamp(2)
    a("s_waitcnt vmcnt(1)\ns_barrier")
    k2_apart(a,R,name)
    a(f"buffer_store_dwordx4 {vr(R.TMP+4,4)}, v3, s[{SWS}:{SWS+3}], s{R.sOB} offen {STF}")
    if pf.on:
        pf.stamp(3); pf.stamp(4); a("s_waitcnt vmcnt(0)"); pf.stamp(5); pf.flush(9,84,30,wave=7)
    a.label(f"{name}_end")
    a("s_endpgm")
    return dict(name=name, grid=256, block=512, lds=K2_LDS, vgpr=248, sgpr=92 if cfg.get('prof') else 72)
```

```python
from asmlib import *
import math
from k1 import QF,KF,VF,PQ,OF,KVP,WS_USED,LOG2E,CSCALE
import k2
from k2 import K2R,k2_setup_consts,k2_load_b,k2_load_a,k2_attn,k2_apart

FLG=KVP+0x90000
FL=128
FSTR=16*FL+256
F1=FLG; F2=FLG+16*FSTR; F2STR=32*FL+256; NONCE=F2+8*F2STR
WOL=98304
NL=163840-16

sAWO=64; sBWO=66; sOUT=68; sDBG=70; sWSP=72; sN=74; sWV=75; sP3T=76; sP3NS=77; sP3BR=78; sCNT2=79

def poll(a, name, srd, soff, need_lo, need_hi, vtmp, voff, bound=3000, sleep=4):
    L=a.newlabel(name); D=a.newlabel(name+"d")
    a(f"""
    s_mov_b32 s{sCNT2}, 0
    s_mov_b64 exec, s[{need_lo}:{need_hi}]
    {L}:
    buffer_load_dword v{vtmp}, v{voff}, s[{srd}:{srd+3}], s{soff} offen sc1
    s_waitcnt vmcnt(0)
    v_cmp_eq_u32 vcc, s{sN}, v{vtmp}
    s_cmp_eq_u64 vcc, s[{need_lo}:{need_hi}]
    s_cbranch_scc1 {D}
    s_add_u32 s{sCNT2}, s{sCNT2}, 1
    s_cmp_lt_u32 s{sCNT2}, {bound}
    s_cbranch_scc0 {D}
    s_sleep {sleep}
    s_branch {L}
    {D}:
    s_mov_b64 exec, -1
    """)

def gen_fused(a, name, cfg):
    NS=3
    LDX=cfg.get("ldx",""); LDW=cfg.get("ldw","")
    STF="sc1"; HLD="sc1"
    OSTF=cfg.get("out_stflags","")
    XB=0; XS=16384; WB=NS*XS; WS_=24576
    a.raw(f".globl {name}\n.p2align 8\n.type {name},@function\n{name}:")
    sWAVE=20; sBR=21; sR=22; sG=23; sT=24; sT2=25
    SX=8; SW=12; SWS=16
    pf0=Prof(a,cfg,0,80,sWV,sWSP,sWSP+1)
    PTS=cfg.get("pts",["entry","p","loop","epi","b1","b2","kv","att","f2","end"])
    class PF:
        on=pf0.on
        def pt(self,n):
            if n in PTS: pf0.stamp(PTS.index(n))
    pf=PF()
    pf.pt("entry")
    a(f"""
    s_cmp_ge_u32 s2, 256
    s_cbranch_scc1 {name}_end
    s_load_dwordx4 s[28:31], s[0:1], 0
    s_load_dwordx4 s[32:35], s[0:1], 24
    s_load_dwordx2 s[{sAWO}:{sAWO+1}], s[0:1], 16
    s_load_dwordx2 s[{sBWO}:{sBWO+1}], s[0:1], 40
    s_load_dwordx4 s[{sOUT}:{sOUT+3}], s[0:1], 48
    s_load_dwordx2 s[{sWSP}:{sWSP+1}], s[0:1], 64
    v_lshrrev_b32 v2, 6, v0
    v_and_b32 v1, 63, v0
    s_and_b32 s{sT}, s2, 7
    v_readfirstlane_b32 s{sWAVE}, v2
    s_lshr_b32 s{sT2}, s2, 3
    s_and_b32 s{sBR}, s{sT}, 1
    s_lshr_b32 s{sT}, s{sT}, 1
    s_mov_b32 s{sP3BR}, s{sBR}
    s_lshl_b32 s{sP3T}, s{sT}, 2
    s_and_b32 s{sP3NS}, s{sT2}, 3
    s_add_u32 s{sP3T}, s{sP3T}, s{sP3NS}
    s_lshr_b32 s{sP3NS}, s{sT2}, 2
    s_and_b32 s{sR}, s{sT}, 1
    s_lshl_b32 s{sR}, s{sR}, 3
    s_lshr_b32 s{sG}, s{sT}, 1
    s_lshl_b32 s{sG}, s{sG}, 2
    s_and_b32 s{sT}, s{sT2}, 7
    s_add_u32 s{sR}, s{sR}, s{sT}
    s_lshr_b32 s{sT}, s{sT2}, 3
    s_add_u32 s{sG}, s{sG}, s{sT}
    s_mov_b32 s{sWV}, s{sWAVE}
    s_waitcnt lgkmcnt(0)
    s_cmp_eq_u32 s{sBR}, 0
    s_cselect_b32 s{SX}, s28, s32
    s_cselect_b32 s{SX+1}, s29, s33
    s_cselect_b32 s{SW}, s30, s34
    s_cselect_b32 s{SW+1}, s31, s35
    s_mov_b32 s{SX+2}, 0x200000
    s_mov_b32 s{SX+3}, 0x20000
    s_mov_b32 s{SW+2}, 0x180000
    s_mov_b32 s{SW+3}, 0x20000
    s_mov_b32 s{SWS}, s{sWSP}
    s_mov_b32 s{SWS+1}, s{sWSP+1}
    s_mov_b32 s{SWS+2}, {WS_USED}
    s_mov_b32 s{SWS+3}, 0x20000
    s_mov_b32 s4, {NONCE}
    v_mov_b32 v30, 0
    buffer_load_dword v31, v30, s[{SWS}:{SWS+3}], s4 offen sc1
    s_cmp_ge_u32 s{sWAVE}, 4
    s_cbranch_scc1 {name}_loader
    """)
    sTM=26; sFN=27
    vXA=4; vWA=8
    ACC=32
    def acc(tt,sec): return ACC+(tt*3+sec)*16
    FR=[128,148]
    def xf(s,tt): return FR[s]+4*tt
    def wf(s,sec): return FR[s]+8+4*sec
    if cfg.get("codepf"):
        nseg=cfg["codepf"]
        lab=a.newlabel("cpf")
        a(f"""
        s_cmp_lg_u32 s{sWAVE}, 1
        s_cbranch_scc1 {lab}
        s_lshr_b32 s4, s2, 3
        s_cmp_ge_u32 s4, {nseg}
        s_cbranch_scc1 {lab}
        s_lshl_b32 s6, s4, 13
        s_getpc_b64 s[4:5]
        {lab}_pc:
        s_sub_u32 s4, s4, {lab}_pc-{name}
        s_subb_u32 s5, s5, 0
        v_lshlrev_b32 v12, 7, v1
        v_add_u32 v12, s6, v12
        v_min_u32 v12, {name}_last-{name}, v12
        v_mov_b32 v13, s5
        v_add_co_u32 v12, vcc, s4, v12
        s_nop 1
        v_addc_co_u32 v13, vcc, 0, v13, vcc
        global_load_dword v14, v[12:13], off
        {lab}:
        """)
    a(f"""
    s_and_b32 s{sTM}, s{sWAVE}, 1
    s_lshr_b32 s{sFN}, s{sWAVE}, 1
    v_lshrrev_b32 v2, 5, v1                 ; hf
    v_and_b32 v3, 31, v1                    ; t31
    v_lshrrev_b32 v9, 1, v3
    v_and_b32 v9, 7, v9                     ; g
    s_lshl_b32 s{sT}, s{sTM}, 13
    v_lshlrev_b32 v10, 7, v3
    v_add_u32 v10, s{sT}, v10
    """)
    for ks in range(4):
        a(f"v_or_b32 v11, {2*ks}, v2\nv_xor_b32 v11, v11, v9\nv_lshl_add_u32 v{vXA+ks}, v11, 4, v10")
    a(f"""
    v_bfe_u32 v10, v1, 2, 2
    v_lshlrev_b32 v10, 7, v10
    v_lshl_add_u32 v10, v2, 10, v10
    v_bfe_u32 v11, v1, 4, 1
    v_lshlrev_b32 v11, 1, v11
    v_bfe_u32 v12, v1, 1, 1
    v_or_b32 v11, v11, v12
    s_lshl_b32 s{sT}, s{sFN}, 2
    v_or_b32 v11, s{sT}, v11
    v_bfe_u32 v12, v1, 3, 1
    v_lshlrev_b32 v12, 2, v12
    v_xor_b32 v11, v11, v12
    v_lshl_add_u32 v10, v11, 4, v10
    v_and_b32 v12, 1, v1
    v_lshl_add_u32 v10, v12, 3, v10
    v_add_u32 v{vWA}, {WB}, v10
    """)
    for r in range(ACC,ACC+96): a(f"v_mov_b32 v{r}, 0")
    a(f"""
    s_mov_b32 s58, {(-(NS-1)*XS)&0xffffffff:#x}
    s_mov_b32 s59, {XS}
    s_mov_b32 s60, {(-(NS-1)*WS_)&0xffffffff:#x}
    s_mov_b32 s61, {WS_}
    """)
    def reads(s, ks):
        L=[]
        L.append(f"ds_read_b128 {vr(xf(s,0),4)}, v{vXA+ks}")
        L.append(f"ds_read_b64_tr_b16 {vr(wf(s,0),2)}, v{vWA} offset:{ks*2048}")
        L.append(f"ds_read_b64_tr_b16 {vr(wf(s,0)+2,2)}, v{vWA} offset:{ks*2048+512}")
        L.append(f"ds_read_b128 {vr(xf(s,1),4)}, v{vXA+ks} offset:4096")
        for sec in (1,2):
            L.append(f"ds_read_b64_tr_b16 {vr(wf(s,sec),2)}, v{vWA} offset:{sec*8192+ks*2048}")
            L.append(f"ds_read_b64_tr_b16 {vr(wf(s,sec)+2,2)}, v{vWA} offset:{sec*8192+ks*2048+512}")
        return L
    def mfmas(s, br):
        L=[]
        for sec in range(3):
            for tt in range(2):
                featrow = (sec==0) or (sec==1 and br==1)
                A_,B_ = (wf(s,sec),xf(s,tt)) if featrow else (xf(s,tt),wf(s,sec))
                if cfg.get("mf16test"):
                    o=acc(tt,sec)+8*s
                    L.append(f"v_mfma_f32_16x16x32_bf16 {vr(o,4)}, {vr(A_,4)}, {vr(B_,4)}, {vr(o,4)}\nv_mfma_f32_16x16x32_bf16 {vr(o+4,4)}, {vr(B_,4)}, {vr(A_,4)}, {vr(o+4,4)}")
                else:
                    L.append(f"v_mfma_f32_32x32x16_bf16 {vr(acc(tt,sec),16)}, {vr(A_,4)}, {vr(B_,4)}, {vr(acc(tt,sec),16)}")
        return L
    def step(s, br, rd):
        M=mfmas(s,br)
        if rd:
            a(M[0]); a(rd[0]); a(rd[1]); a(rd[2])
            a(M[1]); a(rd[3]); a(rd[4]); a(rd[5])
            a(M[2]); a(rd[6]); a(rd[7])
            a(M[3]); a(M[4]); a(M[5])
        else:
            for m in M: a(m)
    sCNT=38; sSTG=39; sDX=40; sDW=41
    for br in (0,1):
        bn="AB"[br]
        if br==0: a(f"s_cmp_eq_u32 s{sBR}, 1\ns_cbranch_scc1 {name}_cB")
        else: a.label(f"{name}_cB")
        a(f"s_mov_b32 s{sCNT}, 0\ns_mov_b32 s{sSTG}, 0\ns_waitcnt vmcnt(0)\nv_readfirstlane_b32 s{sN}, v31\ns_nop 3\ns_add_u32 s{sN}, s{sN}, 1")
        a("s_barrier")
        pf.pt("p")
        for l in reads(0,0): a(l)
        a.label(f"{name}_loop{bn}")
        for ks in range(3):
            a("s_waitcnt lgkmcnt(0)")
            step(ks&1, br, reads((ks+1)&1, ks+1))
        a(f"""
        s_add_u32 s{sSTG}, s{sSTG}, 1
        s_cmp_eq_u32 s{sSTG}, {NS}
        s_cselect_b32 s{sDX}, s58, s59
        s_cselect_b32 s{sDW}, s60, s61
        s_cselect_b32 s{sSTG}, 0, s{sSTG}
        s_waitcnt lgkmcnt(0)
        s_barrier
        """)
        if cfg.get("chunkstamps"):
            for c in range(7):
                lab=a.newlabel("cs")
                a(f"s_cmp_lg_u32 s{sCNT}, {c}\ns_cbranch_scc1 {lab}")
                pf.pt(f"c{c}")
                a.label(lab)
        for ks in range(4): a(f"v_add_u32 v{vXA+ks}, s{sDX}, v{vXA+ks}")
        a(f"v_add_u32 v{vWA}, s{sDW}, v{vWA}")
        step(1, br, reads(0,0))
        a(f"""
        s_add_u32 s{sCNT}, s{sCNT}, 1
        s_cmp_lt_u32 s{sCNT}, 7
        s_cbranch_scc1 {name}_loop{bn}
        """)
        for ks in range(3):
            a("s_waitcnt lgkmcnt(0)")
            step(ks&1, br, reads((ks+1)&1, ks+1))
        a("s_waitcnt lgkmcnt(0)")
        step(1, br, [])
        pf.pt("loop")
        T0=128
        sOFF=42; sH=43; sTB=44
        a(f"""
        s_lshl_b32 s{sH}, s{sG}, 2
        s_lshl_b32 s{sT}, s{sFN}, 1
        s_add_u32 s{sH}, s{sH}, s{sT}
        s_lshl_b32 s{sTB}, s{sR}, 2
        s_lshl_b32 s{sT}, s{sTM}, 1
        s_add_u32 s{sTB}, s{sTB}, s{sT}
        s_lshl_b32 s{sOFF}, s{sH}, 16
        s_lshl_b32 s{sT}, s{sTB}, 10
        s_add_u32 s{sOFF}, s{sOFF}, s{sT}
        v_lshlrev_b32 v9, 4, v1
        """)
        if br==1:
            a(f"s_mov_b32 s46, {f2u(CSCALE):#x}\ns_mov_b32 s47, {f2u(CSCALE):#x}")
            a(f"""
            v_bfe_u32 v10, v1, 4, 1
            v_lshlrev_b32 v10, 16, v10
            v_lshrrev_b32 v11, 5, v1
            v_lshl_add_u32 v10, v11, 8, v10
            v_and_b32 v11, 15, v1
            v_lshl_add_u32 v10, v11, 4, v10
            s_nop 7
            """)
            tmp=T0
            for tt in range(2):
                b=acc(tt,1)
                for i in range(8): a(f"v_cvt_pk_bf16_f32 v{tmp+i}, v{b+2*i}, v{b+2*i+1}")
                a(f"s_add_u32 s{sT}, s{sOFF}, {KF+tt*1024}")
                a(f"buffer_store_dwordx4 {vr(tmp,4)}, v9, s[{SWS}:{SWS+3}], s{sT} offen {STF}")
                a(f"s_add_u32 s{sT2}, s{sOFF}, {KF+tt*1024+65536}")
                a(f"buffer_store_dwordx4 {vr(tmp+4,4)}, v9, s[{SWS}:{SWS+3}], s{sT2} offen {STF}")
                tmp+=8
            for tt in range(2):
                b=acc(tt,2)
                for i in range(8): a(f"v_cvt_pk_bf16_f32 v{tmp+i}, v{b+2*i}, v{b+2*i+1}")
                a(f"s_add_u32 s{sT}, s{sOFF}, {VF+tt*1024}")
                a(f"buffer_store_dwordx4 {vr(tmp,4)}, v10, s[{SWS}:{SWS+3}], s{sT} offen {STF}")
                a(f"buffer_store_dwordx4 {vr(tmp+4,4)}, v10, s[{SWS}:{SWS+3}], s{sT} offen offset:512 {STF}")
                tmp+=8
            for tt in range(2):
                b=acc(tt,0)
                for i in range(8): a(f"v_pk_mul_f32 {vr(b+2*i,2)}, {vr(b+2*i,2)}, s[46:47]")
                for i in range(8): a(f"v_cvt_pk_bf16_f32 v{tmp+i}, v{b+2*i}, v{b+2*i+1}")
                a(f"s_add_u32 s{sT}, s{sOFF}, {QF+tt*1024}")
                a(f"buffer_store_dwordx4 {vr(tmp,4)}, v9, s[{SWS}:{SWS+3}], s{sT} offen {STF}")
                a(f"s_add_u32 s{sT2}, s{sOFF}, {QF+tt*1024+65536}")
                a(f"buffer_store_dwordx4 {vr(tmp+4,4)}, v9, s[{SWS}:{SWS+3}], s{sT2} offen {STF}")
                tmp+=8
            a(f"s_branch {name}_p1done")
        else:
            a(f"""
            s_mov_b32 s46, {f2u(LOG2E):#x}
            s_mov_b32 s47, {f2u(LOG2E):#x}
            s_mov_b32 s48, 1.0
            s_mov_b32 s49, 1.0
            s_mov_b32 s50, {f2u(1e-6):#x}
            s_mov_b32 s51, {f2u(1e-6):#x}
            s_mov_b32 s52, 0x0000ffff
            s_mov_b32 s53, 0x0000ffff
            v_mov_b32 v20, 0x3f803f80
            v_mov_b32 v21, 0x3f803f80
            v_mov_b32 v22, 0x3f803f80
            v_mov_b32 v23, 0x3f803f80
            s_nop 4
            """)
            U=168
            def phi(b):
                for i in range(8): a(f"v_pk_mul_f32 {vr(U+2*i,2)}, {vr(b+2*i,2)}, s[46:47]")
                for i in range(16): a(f"v_exp_f32 v{U+i}, v{U+i} clamp")
                for i in range(8): a(f"v_pk_add_f32 {vr(b+2*i,2)}, {vr(b+2*i,2)}, s[48:49]")
                for i in range(16): a(f"v_max_f32 v{b+i}, v{b+i}, v{U+i}")
                for i in range(8): a(f"v_pk_add_f32 {vr(b+2*i,2)}, {vr(b+2*i,2)}, s[50:51]")
            PK=[128,136]; VV=[144,152]; D=184; D2=200
            for tt in range(2):
                b=acc(tt,2)
                for i in range(8): a(f"v_cvt_pk_bf16_f32 v{VV[tt]+i}, v{b+2*i}, v{b+2*i+1}")
            mq=[]
            for tt in range(2):
                b=acc(tt,1)
                phi(b)
                for i in range(8): a(f"v_cvt_pk_bf16_f32 v{PK[tt]+i}, v{b+2*i}, v{b+2*i+1}")
                a("s_nop 1")
                for m in range(2):
                    c1 = "0" if (tt==0 and m==0) else vr(D,16)
                    c2 = "0" if (tt==0 and m==0) else vr(D2,16)
                    a(f"v_mfma_f32_32x32x16_bf16 {vr(D,16)}, {vr(PK[tt]+4*m,4)}, {vr(VV[tt]+4*m,4)}, {c1}")
                    a(f"v_mfma_f32_32x32x16_bf16 {vr(D2,16)}, {vr(PK[tt]+4*m,4)}, v[20:23], {c2}")
            a("s_nop 15")
            for r in range(8):  a(f"v_cndmask_b32_e64 v{D+r}, v{D2+r}, v{D+r}, s[52:53]")
            for r in range(8,16): a(f"v_cndmask_b32_e64 v{D+r}, v{D+r}, v{D2+r}, s[52:53]")
            EX = 0
            a(f"""
            s_lshl_b32 s{sT}, s{sFN}, 12
            s_add_u32 s{sT}, s{sT}, {EX}
            v_add_u32 v10, s{sT}, v9
            s_cmp_eq_u32 s{sTM}, 0
            s_cbranch_scc1 {name}_Ard
            """)
            for q in range(4): a(f"ds_write_b128 v10, {vr(D+4*q,4)} offset:{q*1024}")
            a(f"s_waitcnt lgkmcnt(0)")
            a.label(f"{name}_Ard")
            a("s_barrier")
            tmp=216
            def qpart(tt,tmp):
                b=acc(tt,0)
                phi(b)
                for i in range(8): a(f"v_cvt_pk_bf16_f32 v{tmp+i}, v{b+2*i}, v{b+2*i+1}")
                a(f"s_add_u32 s{sT}, s{sOFF}, {PQ+tt*1024}")
                a(f"buffer_store_dwordx4 {vr(tmp,4)}, v9, s[{SWS}:{SWS+3}], s{sT} offen {STF}")
                a(f"s_add_u32 s{sT2}, s{sOFF}, {PQ+tt*1024+65536}")
                a(f"buffer_store_dwordx4 {vr(tmp+4,4)}, v9, s[{SWS}:{SWS+3}], s{sT2} offen {STF}")
            a(f"s_cmp_lg_u32 s{sTM}, 0\ns_cbranch_scc1 {name}_Aq")
            for q in range(4): a(f"ds_read_b128 {vr(D2+4*q,4)}, v10 offset:{q*1024}")
            a(f"""
            v_and_b32 v11, 31, v1
            v_lshrrev_b32 v12, 5, v1
            v_and_b32 v13, 15, v1
            v_lshlrev_b32 v13, 5, v13
            v_lshl_add_u32 v13, v12, 9, v13
            v_lshlrev_b32 v14, 5, v12
            v_add_u32 v14, 1024, v14
            v_mov_b32 v15, 0x40000000
            v_cmp_eq_u32 s[54:55], 16, v11
            v_cmp_eq_u32 s[56:57], 0, v11
            s_nop 1
            v_cndmask_b32_e64 v16, v15, v14, s[54:55]
            v_cndmask_b32_e64 v17, v15, v14, s[56:57]
            v_cndmask_b32_e64 v16, v16, v13, s[52:53]
            v_cndmask_b32_e64 v17, v13, v17, s[52:53]
            s_lshl_b32 s{sT}, s{sH}, 4
            s_add_u32 s{sT}, s{sT}, s{sR}
            s_mul_i32 s{sT}, s{sT}, 1088
            s_add_u32 s{sT}, s{sT}, {KVP}
            s_add_u32 s{sT2}, s{sT}, {16*1088}
            s_waitcnt lgkmcnt(0)
            """)
            for i in range(8): a(f"v_pk_add_f32 {vr(D+2*i,2)}, {vr(D+2*i,2)}, {vr(D2+2*i,2)}")
            a(f"""
            buffer_store_dwordx4 {vr(D,4)}, v16, s[{SWS}:{SWS+3}], s{sT} offen {STF}
            buffer_store_dwordx4 {vr(D+4,4)}, v16, s[{SWS}:{SWS+3}], s{sT} offen offset:16 {STF}
            buffer_store_dwordx4 {vr(D+8,4)}, v17, s[{SWS}:{SWS+3}], s{sT2} offen {STF}
            buffer_store_dwordx4 {vr(D+12,4)}, v17, s[{SWS}:{SWS+3}], s{sT2} offen offset:16 {STF}
            """)
            a.label(f"{name}_Aq")
            qpart(0,216); qpart(1,128)
            a(f"s_branch {name}_p1done")
    a.label(f"{name}_loader")
    sE=26; sXB=27; sWBs=38; sL=39
    a(f"""
    s_sub_u32 s{sE}, s{sWAVE}, 4
    v_lshrrev_b32 v2, 3, v1
    v_and_b32 v3, 7, v1
    v_lshrrev_b32 v4, 1, v2
    s_and_b32 s{sT}, s{sE}, 1
    s_lshl_b32 s{sT}, s{sT}, 2
    v_or_b32 v4, s{sT}, v4
    v_xor_b32 v4, v4, v3
    v_lshlrev_b32 v5, 10, v2
    v_lshl_add_u32 v5, v4, 4, v5            ; x voffset
    v_bfe_u32 v4, v1, 4, 1
    v_lshlrev_b32 v4, 2, v4
    v_xor_b32 v4, v4, v3
    v_mul_u32_u24 v6, 3072, v2
    v_lshl_add_u32 v6, v4, 4, v6            ; w voffset
    v_lshlrev_b32 v7, 10, v2
    v_lshl_add_u32 v7, v4, 4, v7
    s_lshl_b32 s{sXB}, s{sR}, 17
    s_lshl_b32 s{sT}, s{sE}, 13
    s_add_u32 s{sXB}, s{sXB}, s{sT}
    s_lshl_b32 s{sWBs}, s{sG}, 7
    s_mul_i32 s{sT}, s{sE}, 24576
    s_add_u32 s{sWBs}, s{sWBs}, s{sT}
    s_lshl_b32 s{sL}, s{sE}, 10
    """)
    sROT=40; sXC=41; sWC=42
    a(f"s_mov_b32 s{sROT}, 0")
    for (src,sh,mask,mul) in cfg.get("k1_rot",[["R",0,3,2],["G",0,3,1]]):
        r={"R":sR,"G":sG}[src]
        a(f"s_lshr_b32 s{sT}, s{r}, {sh}\ns_and_b32 s{sT}, s{sT}, {mask}\ns_mul_i32 s{sT}, s{sT}, {mul}\ns_add_u32 s{sROT}, s{sROT}, s{sT}")
    def issue(c, part=None):
        st=c%NS
        L=[]
        hdr=f"""
        s_add_u32 s{sT}, s{sROT}, {c}
        s_and_b32 s{sT}, s{sT}, 7
        s_lshl_b32 s{sXC}, s{sT}, 7
        s_add_u32 s{sXC}, s{sXC}, s{sXB}
        s_mul_i32 s{sWC}, s{sT}, 196608
        s_add_u32 s{sWC}, s{sWC}, s{sWBs}
        """
        for i in range(4):
            L.append(f"s_add_u32 m0, s{sL}, {XB+st*XS+i*4096}\ns_add_u32 s{sT}, s{sXC}, {i*32768}\nbuffer_load_dwordx4 v5, s[{SX}:{SX+3}], s{sT} offen {LDX} lds")
        for jj in range(2):
            for sec in range(3):
                L.append(f"s_add_u32 m0, s{sL}, {WB+st*WS_+sec*8192+jj*4096}\ns_add_u32 s{sT}, s{sWC}, {jj*4*24576+sec*1024}\nbuffer_load_dwordx4 v6, s[{SW}:{SW+3}], s{sT} offen {LDW} lds")
        lo,hi = part if part else (0,10)
        if lo==0: a(hdr)
        for l in L[lo:hi]: a(l)
    k0=cfg.get("pro_k",5)
    issue(0); issue(1,(0,k0))
    a(f"s_waitcnt vmcnt({k0})\nv_readfirstlane_b32 s{sN}, v31\ns_nop 3\ns_add_u32 s{sN}, s{sN}, 1\ns_barrier")
    if k0<10: issue(1,(k0,10))
    issue(2)
    for c in range(7):
        issued=min(8,c+NS)
        rem=10*(issued-(c+2))
        if c==6: rem=16
        a(f"s_waitcnt vmcnt({rem})\ns_barrier")
        if c+NS<8: issue(c+NS)
        if c==5:
            a(f"""
            s_cmp_eq_u32 s{sP3BR}, 0
            s_cselect_b32 s28, s{sAWO}, s{sBWO}
            s_cselect_b32 s29, s{sAWO+1}, s{sBWO+1}
            s_mov_b32 s30, 0x80000
            s_mov_b32 s31, 0x20000
            s_lshl_b32 s{sXC}, s{sP3NS}, 7
            s_lshl_b32 s{sT}, s{sE}, 13
            s_add_u32 s{sXC}, s{sXC}, s{sT}
            """)
            for u in range(16):
                a(f"s_add_u32 m0, s{sL}, {WOL+u*4096}")
                a(f"s_add_u32 s{sT}, s{sXC}, {u*32768}")
                a(f"buffer_load_dwordx4 v7, s[28:31], s{sT} offen lds")
    a(f"s_cmp_eq_u32 s{sBR}, 1\ns_cbranch_scc1 {name}_p1bar\ns_barrier\ns_branch {name}_p1bar")
    a.label(f"{name}_p1done")
    pf.pt("epi")
    a("s_waitcnt vmcnt(0)")
    a.label(f"{name}_p1bar")
    a("s_barrier")
    R=K2R
    a(f"""
    s_cmp_lg_u32 s{sWV}, 0
    s_cbranch_scc1 {name}_nf1
    s_lshl_b32 s{sT}, s{sBR}, 3
    s_add_u32 s{sT}, s{sT}, s{sG}
    s_mul_i32 s{sT}, s{sT}, {FSTR}
    s_lshl_b32 s{sT2}, s{sR}, 7
    s_add_u32 s{sT}, s{sT}, s{sT2}
    s_add_u32 s{sT}, s{sT}, {F1}
    v_mov_b32 v12, 0
    v_mov_b32 v13, s{sN}
    buffer_store_dword v13, v12, s[{SWS}:{SWS+3}], s{sT} offen sc1
    {name}_nf1:
    """)
    pf.pt("b1")
    a(f"""
    s_mov_b32 s{R.sWAVE}, s{sWV}
    s_bfe_u32 s{R.sRB}, s2, 0x30003
    s_and_b32 s{R.sH}, s2, 7
    s_lshr_b32 s{R.sT}, s2, 6
    s_lshl_b32 s{R.sT}, s{R.sT}, 3
    s_add_u32 s{R.sH}, s{R.sH}, s{R.sT}
    v_lshlrev_b32 v3, 4, v1
    s_lshl_b32 s{R.sQB}, s{R.sRB}, 3
    s_add_u32 s{R.sQB}, s{R.sQB}, s{R.sWAVE}
    s_mov_b32 s{R.SWS}, s{sWSP}
    s_mov_b32 s{R.SWS+1}, s{sWSP+1}
    s_mov_b32 s{R.SWS+2}, {WS_USED}
    s_mov_b32 s{R.SWS+3}, 0x20000
    """)
    k2_setup_consts(a,R)
    sFA=12; sNEED=14
    a(f"""
    v_lshlrev_b32 v2, 7, v1
    s_lshr_b32 s{sFA}, s{R.sH}, 2
    s_mul_i32 s{sFA}, s{sFA}, {FSTR}
    s_add_u32 s13, s{sFA}, {F1}               ; A row
    s_add_u32 s{sFA}, s{sFA}, {F1+8*FSTR}     ; B row
    s_cmp_lg_u32 s{sWV}, 0
    s_cbranch_scc1 {name}_np2
    s_lshl_b32 s{R.sT}, s{R.sRB}, 1
    s_lshl_b32 s{sNEED}, 15, s{R.sT}
    s_lshr_b32 s{sNEED}, s{sNEED}, 2          ; (0b1111 << 2rb) >> 2
    s_mov_b32 s{sNEED+1}, 0
    """)
    poll(a,"pb",R.SWS,sFA,sNEED,sNEED+1,12,2,sleep=cfg.get("sleep1",4))
    a.label(f"{name}_np2")
    a("s_waitcnt lgkmcnt(0)\ns_barrier")
    pf.pt("b2")
    k2_load_b(a,R,HLD)
    a("s_waitcnt vmcnt(0)\ns_barrier")
    pf.pt("kv")
    def h_pre():
        a(f"s_mov_b64 exec, 0xffff\nbuffer_load_dword v13, v2, s[{R.SWS}:{R.SWS+3}], s13 offen sc1\ns_mov_b64 exec, -1")
    def h_post0():
        pf.pt("post0")
        D=a.newlabel("pa")
        a(f"""
        s_mov_b32 s{sNEED}, 0xffff
        s_mov_b32 s{sNEED+1}, 0
        s_waitcnt vmcnt(0)
        v_cmp_eq_u32 vcc, s{sN}, v13
        s_and_b64 vcc, vcc, s[{sNEED}:{sNEED+1}]
        s_cmp_eq_u64 vcc, s[{sNEED}:{sNEED+1}]
        s_cbranch_scc1 {D}
        """)
        poll(a,"pa2",R.SWS,13,sNEED,sNEED+1,13,2)
        a.label(D)
        pf.pt("aflag")
        k2_load_a(a,R,HLD,name)
    k2_attn(a,R,name,cfg,pf,hooks={"pre":h_pre,"post0":h_post0})
    a(f"""
    s_lshl_b32 s{R.sT}, s{R.sQB}, 5
    s_add_u32 s{R.sT}, s{R.sT}, s{R.sH}
    s_lshl_b32 s{R.sT}, s{R.sT}, 10
    s_add_u32 s{R.sOB}, s{R.sT}, {OF}
    s_add_u32 s{R.sT}, s{R.sOB}, {64*32*1024}
    buffer_store_dwordx4 {vr(R.TMP,4)}, v3, s[{R.SWS}:{R.SWS+3}], s{R.sT} offen {STF}
    """)
    pf.pt("att")
    a("s_waitcnt vmcnt(1)\ns_barrier")
    pf.pt("kvp")
    k2_apart(a,R,name)
    pf.pt("apart")
    a(f"buffer_store_dwordx4 {vr(R.TMP+4,4)}, v3, s[{R.SWS}:{R.SWS+3}], s{R.sOB} offen {STF}")
    a("s_waitcnt vmcnt(0)")
    pf.pt("odrain")
    a("s_barrier")
    pf.pt("b5")
    a(f"""
    s_cmp_lg_u32 s{sWV}, 0
    s_cbranch_scc1 {name}_nf2
    s_mul_i32 s{R.sT}, s{R.sRB}, {F2STR}
    s_lshl_b32 s{R.sT2}, s{R.sH}, 7
    s_add_u32 s{R.sT}, s{R.sT}, s{R.sT2}
    s_add_u32 s{R.sT}, s{R.sT}, {F2}
    v_mov_b32 v12, 0
    v_mov_b32 v13, s{sN}
    buffer_store_dword v13, v12, s[{R.SWS}:{R.SWS+3}], s{R.sT} offen sc1
    s_lshr_b32 s{sFA}, s{sP3T}, 1
    s_mul_i32 s{sFA}, s{sFA}, {F2STR}
    s_add_u32 s{sFA}, s{sFA}, {F2}
    s_mov_b32 s{sNEED}, -1
    s_mov_b32 s{sNEED+1}, 0
    """)
    poll(a,"p3",R.SWS,sFA,sNEED,sNEED+1,12,2,sleep=cfg.get("sleep2",4))
    a.label(f"{name}_nf2")
    a("s_barrier")
    pf.pt("f2")
    if pf.on and cfg.get("pwave",0)>=4:
        pf0.flush(len(PTS),4,2,wave=cfg["pwave"])
    a(f"s_cmp_ge_u32 s{sWV}, 4\ns_cbranch_scc1 {name}_end")
    SOUT=16; sTB=27; sOB=28
    a(f"""
    s_lshl_b32 s{sTB}, s{sP3T}, 2
    s_add_u32 s{sTB}, s{sTB}, s{sWV}
    s_lshl_b32 s{sT}, s{sP3BR}, 6
    s_add_u32 s{sT}, s{sT}, s{sTB}
    s_lshl_b32 s{sOB}, s{sT}, 15
    s_add_u32 s{sOB}, s{sOB}, {OF}
    """)
    OFR=64; ACC3=32; WFR=[8,16]; vWA3=5
    DEPTH=cfg.get("p3_depth",10)
    def oload(h):
        a(f"s_add_u32 s{sT2}, s{sOB}, {h*1024}\nbuffer_load_dwordx4 {vr(OFR+4*h,4)}, v3, s[{R.SWS}:{R.SWS+3}], s{sT2} offen {HLD}")
    for h in range(DEPTH): oload(h)
    a(f"""
    s_mov_b32 s{SOUT}, s{sOUT}
    s_mov_b32 s{SOUT+1}, s{sOUT+1}
    s_mov_b32 s{SOUT+2}, 0x400000
    s_mov_b32 s{SOUT+3}, 0x20000
    v_bfe_u32 v6, v1, 2, 2
    v_lshrrev_b32 v7, 5, v1
    v_lshl_add_u32 v6, v7, 2, v6
    v_lshlrev_b32 v6, 7, v6
    v_and_b32 v7, 1, v1
    v_lshlrev_b32 v7, 1, v7
    v_bfe_u32 v24, v1, 4, 1
    v_or_b32 v7, v7, v24
    v_bfe_u32 v24, v1, 3, 1
    v_lshlrev_b32 v24, 2, v24
    v_xor_b32 v7, v7, v24
    v_lshl_add_u32 v6, v7, 4, v6
    v_bfe_u32 v24, v1, 1, 1
    v_lshl_add_u32 v{vWA3}, v24, 3, v6
    v_xor_b32 v{vWA3+1}, 64, v{vWA3}
    v_add_u32 v{vWA3}, {WOL}, v{vWA3}
    v_add_u32 v{vWA3+1}, {WOL}, v{vWA3+1}
    """)
    def reads3(s,h):
        L=[]
        for nt in range(2):
            for t in range(2):
                L.append(f"ds_read_b64_tr_b16 {vr(WFR[s]+4*nt+2*t,2)}, v{vWA3+nt} offset:{h*2048+t*1024}")
        return L
    for l in reads3(0,0): a(l)
    for h in range(32):
        s=h&1
        nxt=reads3(s^1,h+1) if h<31 else []
        for l in nxt: a(l)
        issued=min(32,h+DEPTH)
        a(f"s_waitcnt vmcnt({issued-h-1}) lgkmcnt({len(nxt)})")
        for nt in range(2):
            c = "0" if h==0 else vr(ACC3+16*nt,16)
            a(f"v_mfma_f32_32x32x16_bf16 {vr(ACC3+16*nt,16)}, {vr(WFR[s]+4*nt,4)}, {vr(OFR+4*h,4)}, {c}")
        if h+DEPTH<32: oload(h+DEPTH)
    a(f"""
    s_lshl_b32 s{sT}, s{sTB}, 16
    s_lshl_b32 s{sT2}, s{sP3BR}, 10
    s_add_u32 s{sT}, s{sT}, s{sT2}
    s_lshl_b32 s{sT2}, s{sP3NS}, 7
    s_add_u32 s{sT}, s{sT}, s{sT2}
    v_and_b32 v6, 31, v1
    v_lshlrev_b32 v6, 11, v6
    v_lshrrev_b32 v7, 5, v1
    v_lshl_add_u32 v6, v7, 5, v6
    s_nop 7
    """)
    for nt in range(2):
        b=ACC3+16*nt; T=8+8*nt
        for i in range(8): a(f"v_cvt_pk_bf16_f32 v{T+i}, v{b+2*i}, v{b+2*i+1}")
        a(f"buffer_store_dwordx4 {vr(T,4)}, v6, s[{SOUT}:{SOUT+3}], s{sT} offen offset:{nt*64} {OSTF}")
        a(f"buffer_store_dwordx4 {vr(T+4,4)}, v6, s[{SOUT}:{SOUT+3}], s{sT} offen offset:{nt*64+16} {OSTF}")
    a(f"""
    s_cmp_lg_u32 s2, 0
    s_cbranch_scc1 {name}_nn
    s_cmp_lg_u32 s{sWV}, 0
    s_cbranch_scc1 {name}_nn
    s_mov_b32 s{sT}, {NONCE}
    v_mov_b32 v12, 0
    v_mov_b32 v13, s{sN}
    buffer_store_dword v13, v12, s[{R.SWS}:{R.SWS+3}], s{sT} offen sc1
    {name}_nn:
    """)
    if pf.on:
        a("s_waitcnt vmcnt(0)"); pf.pt("end"); pf0.flush(len(PTS),4,2,wave=cfg.get("pwave",0) if cfg.get("pwave",0)<4 else 99)
    a.label(f"{name}_end")
    a.label(f"{name}_last")
    a("s_endpgm")
    return dict(name=name, grid=256, block=512, lds=163840, vgpr=248, sgpr=104 if False else 102)
```

```python
from asmlib import *
import math
from k1 import QF,KF,VF,PQ,OF,KVP,WS_USED,LOG2E,CSCALE
import k2
from k2 import K2R,k2_setup_consts,k2_load_b,k2_load_a,k2_attn,k2_apart

FLG=KVP+0x90000
FL=128
FSTR=16*FL+256
F1=FLG; F2=FLG+16*FSTR; F2STR=32*FL+256; NONCE=F2+8*F2STR
FP=NONCE+256; FPSTR=32*FL+256
WOL=98304
NL=163840-16

sAWO=64; sBWO=66; sOUT=68; sDBG=70; sWSP=72; sN=74; sWV=75; sP3T=76; sP3NS=77; sP3BR=78; sCNT2=79

def poll(a, name, srd, soff, need_lo, need_hi, vtmp, voff, bound=3000, sleep=4):
    L=a.newlabel(name); D=a.newlabel(name+"d")
    a(f"""
    s_mov_b32 s{sCNT2}, 0
    s_mov_b64 exec, s[{need_lo}:{need_hi}]
    {L}:
    buffer_load_dword v{vtmp}, v{voff}, s[{srd}:{srd+3}], s{soff} offen sc1
    s_waitcnt vmcnt(0)
    v_cmp_eq_u32 vcc, s{sN}, v{vtmp}
    s_cmp_eq_u64 vcc, s[{need_lo}:{need_hi}]
    s_cbranch_scc1 {D}
    s_add_u32 s{sCNT2}, s{sCNT2}, 1
    s_cmp_lt_u32 s{sCNT2}, {bound}
    s_cbranch_scc0 {D}
    s_sleep {sleep}
    s_branch {L}
    {D}:
    s_mov_b64 exec, -1
    """)

def gen_p3v2(a,name,cfg,R,pf,pf0,PTS,OSTF,HLD):
    sT=R.sT; sT2=R.sT2
    WOL0=32768; WOL1=98304
    a(f"s_cmp_ge_u32 s{sWV}, 4\ns_cbranch_scc1 {name}_p3l")
    SOUT=16; sTT=26; sNH=27
    ACC3=32; OS=[64,80]; WSET=[96,104,112]
    vWA3=5; vO=7
    a(f"""
    s_and_b32 s{sTT}, s{sWV}, 1
    s_lshr_b32 s{sNH}, s{sWV}, 1
    s_mov_b32 s{SOUT}, s{sOUT}
    s_mov_b32 s{SOUT+1}, s{sOUT+1}
    s_mov_b32 s{SOUT+2}, 0x400000
    s_mov_b32 s{SOUT+3}, 0x20000
    v_bfe_u32 v6, v1, 2, 2
    v_lshrrev_b32 v7, 5, v1
    v_lshl_add_u32 v6, v7, 2, v6
    v_lshlrev_b32 v6, 7, v6
    v_and_b32 v7, 1, v1
    v_lshlrev_b32 v7, 1, v7
    v_bfe_u32 v24, v1, 4, 1
    v_or_b32 v7, v7, v24
    v_bfe_u32 v24, v1, 3, 1
    v_lshlrev_b32 v24, 2, v24
    v_xor_b32 v7, v7, v24
    v_lshl_add_u32 v6, v7, 4, v6
    v_bfe_u32 v24, v1, 1, 1
    v_lshl_add_u32 v{vWA3}, v24, 3, v6
    v_xor_b32 v{vWA3+1}, 64, v{vWA3}
    s_lshl_b32 s{sT}, s{sNH}, 16
    s_add_u32 s{sT}, s{sT}, {WOL0}
    v_add_u32 v{vWA3}, s{sT}, v{vWA3}
    v_add_u32 v{vWA3+1}, s{sT}, v{vWA3+1}
    s_lshl_b32 s{sT}, s{sTT}, 10
    v_add_u32 v{vO}, s{sT}, v3
    """)
    q=[]
    def rd_o(e):
        for hh in range(4):
            a(f"ds_read_b128 {vr(OS[e&1]+4*hh,4)}, v{vO} offset:{(e&3)*8192+hh*2048}"); q.append(("o",e))
    def rd_w(h):
        for nt in range(2):
            for t in range(2):
                a(f"ds_read_b64_tr_b16 {vr(WSET[h%3]+4*nt+2*t,2)}, v{vWA3+nt} offset:{h*2048+t*1024}"); q.append(("w",h))
    st={"done":0}
    def wait_for(tags):
        last=max(i for i,x in enumerate(q) if x in tags)
        if last<st["done"]: return
        n=len(q)-1-last
        assert n<=15 and len(q)-st["done"]<=16, (n,len(q)-st["done"])
        a(f"s_waitcnt lgkmcnt({n})"); st["done"]=last+1
    rd_w(0); rd_w(1)
    a("s_barrier")
    pf.pt("p3b0")
    rd_o(0)
    for h in range(32):
        e=h>>2; hh=h&3
        if hh==2 and e<7:
            wait_for([("o",e)])
            a("s_barrier")
            rd_o(e+1)
        if h+2<32: rd_w(h+2)
        wait_for([("w",h),("o",e)])
        for nt in range(2):
            c = "0" if h==0 else vr(ACC3+16*nt,16)
            a(f"v_mfma_f32_32x32x16_bf16 {vr(ACC3+16*nt,16)}, {vr(WSET[h%3]+4*nt,4)}, {vr(OS[e&1]+4*hh,4)}, {c}")
    pf.pt("p3loop")
    a(f"""
    s_lshl_b32 s{sT}, s{sP3T}, 1
    s_add_u32 s{sT}, s{sT}, s{sTT}
    s_lshl_b32 s{sT}, s{sT}, 16
    s_lshl_b32 s{sT2}, s{sP3BR}, 10
    s_add_u32 s{sT}, s{sT}, s{sT2}
    s_lshl_b32 s{sT2}, s{sP3NS}, 8
    s_add_u32 s{sT}, s{sT}, s{sT2}
    s_lshl_b32 s{sT2}, s{sNH}, 7
    s_add_u32 s{sT}, s{sT}, s{sT2}
    v_and_b32 v6, 31, v1
    v_lshlrev_b32 v6, 11, v6
    v_lshrrev_b32 v7, 5, v1
    v_lshl_add_u32 v6, v7, 5, v6
    s_nop 7
    """)
    if cfg.get("outT"):
        a(f"""
        s_lshl_b32 s{sT2}, s{sWV}, 12
        v_and_b32 v8, 31, v1
        v_lshlrev_b32 v8, 7, v8                    ; token*128
        v_lshrrev_b32 v9, 5, v1
        v_lshl_add_u32 v8, v9, 5, v8               ; + hf*32
        v_and_b32 v9, 7, v1
        v_lshlrev_b32 v9, 4, v9
        v_add_u32 v8, s{sT2}, v8
        """)
        for nt in range(2):
            b=ACC3+16*nt; T=16+8*nt
            for i in range(8): a(f"v_cvt_pk_bf16_f32 v{T+i}, v{b+2*i}, v{b+2*i+1}")
        for nt in range(2):
            for u in range(2):
                a(f"v_add_u32 v10, {nt*64+u*16}, v8\nv_xor_b32 v10, v10, v9\nds_write_b128 v10, {vr(16+8*nt+4*u,4)}")
        a(f"""
        v_lshrrev_b32 v11, 3, v1
        v_and_b32 v12, 7, v1                       ; chunk
        v_xor_b32 v13, v12, v11
        v_lshlrev_b32 v13, 4, v13
        v_lshl_add_u32 v13, v11, 7, v13
        v_add_u32 v13, s{sT2}, v13
        v_lshlrev_b32 v14, 11, v11
        v_lshl_add_u32 v14, v12, 4, v14
        s_waitcnt lgkmcnt(0)
        """)
        for i in range(4): a(f"ds_read_b128 {vr(32+4*i,4)}, v13 offset:{i*1024}")
        for i in range(4):
            a(f"s_waitcnt lgkmcnt({3-i})\ns_add_u32 s{sT2}, s{sT}, {i*8*2048}\nbuffer_store_dwordx4 {vr(32+4*i,4)}, v14, s[{SOUT}:{SOUT+3}], s{sT2} offen {OSTF}")
    else:
      for nt in range(2):
        b=ACC3+16*nt; T=8+8*nt
        for i in range(8): a(f"v_cvt_pk_bf16_f32 v{T+i}, v{b+2*i}, v{b+2*i+1}")
        a(f"buffer_store_dwordx4 {vr(T,4)}, v6, s[{SOUT}:{SOUT+3}], s{sT} offen offset:{nt*64} {OSTF}")
        a(f"buffer_store_dwordx4 {vr(T+4,4)}, v6, s[{SOUT}:{SOUT+3}], s{sT} offen offset:{nt*64+16} {OSTF}")
    a(f"""
    s_cmp_lg_u32 s2, 0
    s_cbranch_scc1 {name}_nn
    s_cmp_lg_u32 s{sWV}, 0
    s_cbranch_scc1 {name}_nn
    s_mov_b32 s{sT}, {NONCE}
    v_mov_b32 v12, 0
    v_mov_b32 v13, s{sN}
    buffer_store_dword v13, v12, s[{R.SWS}:{R.SWS+3}], s{sT} offen sc1
    {name}_nn:
    """)
    if pf.on:
        a("s_waitcnt vmcnt(0)"); pf.pt("end"); pf0.flush(len(PTS),4,2,wave=cfg.get("pwave",0) if cfg.get("pwave",0)<4 else 99)
    a("s_endpgm")
    a.label(f"{name}_p3l")
    sE=26; sB=27; sL=28
    a(f"""
    s_sub_u32 s{sE}, s{sWV}, 4
    s_lshl_b32 s{sT}, s{sP3BR}, 6
    s_lshl_b32 s{sT2}, s{sP3T}, 1
    s_add_u32 s{sT}, s{sT}, s{sT2}
    s_lshl_b32 s{sB}, s{sT}, 15
    s_lshl_b32 s{sT}, s{sE}, 10
    s_add_u32 s{sB}, s{sB}, s{sT}
    s_add_u32 s{sB}, s{sB}, {OF}
    s_lshl_b32 s{sL}, s{sE}, 11
    """)
    OR=32; LA=cfg.get("p3_la",5); mode=cfg.get("p3_mode","reg")
    items=[(e,tt) for e in range(8) for tt in range(2)]
    def ld(k):
        e,tt=items[k]
        if cfg.get("diag_p3noload"): return
        if mode=="reg":
            a(f"s_add_u32 s{sT}, s{sB}, {e*4096+tt*32768}\nbuffer_load_dwordx4 {vr(OR+4*k,4)}, v3, s[{R.SWS}:{R.SWS+3}], s{sT} offen {HLD}")
        else:
            a(f"s_add_u32 m0, s{sL}, {(e&3)*8192+tt*1024}\ns_add_u32 s{sT}, s{sB}, {e*4096+tt*32768}\nbuffer_load_dwordx4 v3, s[{R.SWS}:{R.SWS+3}], s{sT} offen {HLD} lds")
    issued=0
    if mode=="dma": LA=min(LA,6)
    while issued<LA: ld(issued); issued+=1
    a(f"v_add_u32 v4, s{sL}, v3")
    for e in range(8):
        need=2*e+2
        a(f"s_waitcnt vmcnt({max(issued-need,0)})")
        if mode=="reg":
            for tt in range(2):
                a(f"ds_write_b128 v4, {vr(OR+4*(2*e+tt),4)} offset:{(e&3)*8192+tt*1024}")
            while issued<min(16,need+LA): ld(issued); issued+=1
            a("s_waitcnt lgkmcnt(0)\ns_barrier")
        else:
            a("s_barrier")
            while issued<min(16,need+LA,2*(e+4)): ld(issued); issued+=1
    a.label(f"{name}_end")
    a.label(f"{name}_last")
    a("s_endpgm")

def gen_fused(a, name, cfg):
    NS=3
    P3V=cfg.get("p3v",1)
    DEF=cfg.get("defer_pq",False)
    LDX=cfg.get("ldx",""); LDW=cfg.get("ldw","")
    STF="sc1"; HLD="sc1"
    OSTF=cfg.get("out_stflags","")
    XB=0; XS=16384; WB=NS*XS; WS_=24576
    a.raw(f".globl {name}\n.p2align 8\n.type {name},@function\n{name}:")
    sWAVE=20; sBR=21; sR=22; sG=23; sT=24; sT2=25
    SX=8; SW=12; SWS=16
    PTS=cfg.get("pts",["entry","p","loop","epi","b1","b2","kv","att","f2","end"])
    TIMER=cfg.get("timer","s_memrealtime")
    class PF0:
        on=cfg.get("prof",False)
        def flush(self,n,srd,vt,wave=0):
            if not self.on: return
            lab=a.newlabel("pf")
            a(f"""
            s_cmp_lg_u32 s{sWV}, {wave}
            s_cbranch_scc1 {lab}
            s_mov_b32 s4, s{sWSP}
            s_mov_b32 s5, s{sWSP+1}
            s_mov_b32 s6, {16<<20}
            s_mov_b32 s7, 0x20000
            s_lshl_b32 s24, s2, 6
            s_add_u32 s24, s24, {14<<20}
            v_lshlrev_b32 v2, 2, v1
            s_mov_b64 exec, 0xffff
            buffer_store_dword v247, v2, s[4:7], s24 offen
            s_mov_b64 exec, -1
            {lab}:
            """)
    pf0=PF0()
    class PF:
        on=pf0.on
        def pt(self,n):
            if self.on and n in PTS:
                a(f"{TIMER} s[100:101]\ns_waitcnt lgkmcnt(0)\nv_writelane_b32 v247, s100, {PTS.index(n)}")
    pf=PF()
    pf.pt("entry")
    a(f"""
    s_cmp_ge_u32 s2, 256
    s_cbranch_scc1 {name}_end
    s_load_dwordx4 s[28:31], s[0:1], 0
    s_load_dwordx4 s[32:35], s[0:1], 24
    s_load_dwordx2 s[{sAWO}:{sAWO+1}], s[0:1], 16
    s_load_dwordx2 s[{sBWO}:{sBWO+1}], s[0:1], 40
    s_load_dwordx4 s[{sOUT}:{sOUT+3}], s[0:1], 48
    s_load_dwordx2 s[{sWSP}:{sWSP+1}], s[0:1], 64
    v_lshrrev_b32 v2, 6, v0
    v_and_b32 v1, 63, v0
    s_and_b32 s{sT}, s2, 7
    v_readfirstlane_b32 s{sWAVE}, v2
    s_lshr_b32 s{sT2}, s2, 3
    s_and_b32 s{sBR}, s{sT}, 1
    s_lshr_b32 s{sT}, s{sT}, 1
    s_mov_b32 s{sP3BR}, s{sBR}
    s_lshl_b32 s{sP3T}, s{sT}, {3 if P3V==2 else 2}
    s_and_b32 s{sP3NS}, s{sT2}, {7 if P3V==2 else 3}
    s_add_u32 s{sP3T}, s{sP3T}, s{sP3NS}
    s_lshr_b32 s{sP3NS}, s{sT2}, {3 if P3V==2 else 2}
    s_and_b32 s{sR}, s{sT}, 1
    s_lshl_b32 s{sR}, s{sR}, 3
    s_lshr_b32 s{sG}, s{sT}, 1
    s_lshl_b32 s{sG}, s{sG}, 2
    s_and_b32 s{sT}, s{sT2}, 7
    s_add_u32 s{sR}, s{sR}, s{sT}
    s_lshr_b32 s{sT}, s{sT2}, 3
    s_add_u32 s{sG}, s{sG}, s{sT}
    s_mov_b32 s{sWV}, s{sWAVE}
    s_mov_b32 s83, 0
    s_waitcnt lgkmcnt(0)
    s_cmp_eq_u32 s{sBR}, 0
    s_cselect_b32 s{SX}, s28, s32
    s_cselect_b32 s{SX+1}, s29, s33
    s_cselect_b32 s{SW}, s30, s34
    s_cselect_b32 s{SW+1}, s31, s35
    s_mov_b32 s{SX+2}, 0x200000
    s_mov_b32 s{SX+3}, 0x20000
    s_mov_b32 s{SW+2}, 0x180000
    s_mov_b32 s{SW+3}, 0x20000
    s_mov_b32 s{SWS}, s{sWSP}
    s_mov_b32 s{SWS+1}, s{sWSP+1}
    s_mov_b32 s{SWS+2}, {WS_USED}
    s_mov_b32 s{SWS+3}, 0x20000
    s_mov_b32 s4, {NONCE}
    v_mov_b32 v30, 0
    buffer_load_dword v31, v30, s[{SWS}:{SWS+3}], s4 offen sc1
    s_cmp_ge_u32 s{sWAVE}, 4
    s_cbranch_scc1 {name}_loader
    """)
    sTM=26; sFN=27
    vXA=4; vWA=8
    ACC=32
    def acc(tt,sec): return ACC+(tt*3+sec)*16
    FR=[128,148]
    def xf(s,tt): return FR[s]+4*tt
    def wf(s,sec): return FR[s]+8+4*sec
    if cfg.get("codepf"):
        nseg=cfg["codepf"]
        lab=a.newlabel("cpf")
        a(f"""
        s_cmp_lg_u32 s{sWAVE}, 1
        s_cbranch_scc1 {lab}
        s_lshr_b32 s4, s2, 3
        s_cmp_ge_u32 s4, {nseg}
        s_cbranch_scc1 {lab}
        s_lshl_b32 s6, s4, 13
        s_getpc_b64 s[4:5]
        {lab}_pc:
        s_sub_u32 s4, s4, {lab}_pc-{name}
        s_subb_u32 s5, s5, 0
        v_lshlrev_b32 v12, 7, v1
        v_add_u32 v12, s6, v12
        v_min_u32 v12, {name}_last-{name}, v12
        v_mov_b32 v13, s5
        v_add_co_u32 v12, vcc, s4, v12
        s_nop 1
        v_addc_co_u32 v13, vcc, 0, v13, vcc
        global_load_dword v14, v[12:13], off
        {lab}:
        """)
    a(f"""
    s_and_b32 s{sTM}, s{sWAVE}, 1
    s_lshr_b32 s{sFN}, s{sWAVE}, 1
    v_lshrrev_b32 v2, 5, v1                 ; hf
    v_and_b32 v3, 31, v1                    ; t31
    v_lshrrev_b32 v9, 1, v3
    v_and_b32 v9, 7, v9                     ; g
    s_lshl_b32 s{sT}, s{sTM}, 13
    v_lshlrev_b32 v10, 7, v3
    v_add_u32 v10, s{sT}, v10
    """)
    for ks in range(4):
        a(f"v_or_b32 v11, {2*ks}, v2\nv_xor_b32 v11, v11, v9\nv_lshl_add_u32 v{vXA+ks}, v11, 4, v10")
    a(f"""
    v_bfe_u32 v10, v1, 2, 2
    v_lshlrev_b32 v10, 7, v10
    v_lshl_add_u32 v10, v2, 10, v10
    v_bfe_u32 v11, v1, 4, 1
    v_lshlrev_b32 v11, 1, v11
    v_bfe_u32 v12, v1, 1, 1
    v_or_b32 v11, v11, v12
    s_lshl_b32 s{sT}, s{sFN}, 2
    v_or_b32 v11, s{sT}, v11
    v_bfe_u32 v12, v1, 3, 1
    v_lshlrev_b32 v12, 2, v12
    v_xor_b32 v11, v11, v12
    v_lshl_add_u32 v10, v11, 4, v10
    v_and_b32 v12, 1, v1
    v_lshl_add_u32 v10, v12, 3, v10
    v_add_u32 v{vWA}, {WB}, v10
    """)
    for r in range(ACC,ACC+96): a(f"v_mov_b32 v{r}, 0")
    a(f"""
    s_mov_b32 s58, {(-(NS-1)*XS)&0xffffffff:#x}
    s_mov_b32 s59, {XS}
    s_mov_b32 s60, {(-(NS-1)*WS_)&0xffffffff:#x}
    s_mov_b32 s61, {WS_}
    """)
    def reads(s, ks):
        L=[]
        L.append(f"ds_read_b128 {vr(xf(s,0),4)}, v{vXA+ks}")
        L.append(f"ds_read_b64_tr_b16 {vr(wf(s,0),2)}, v{vWA} offset:{ks*2048}")
        L.append(f"ds_read_b64_tr_b16 {vr(wf(s,0)+2,2)}, v{vWA} offset:{ks*2048+512}")
        L.append(f"ds_read_b128 {vr(xf(s,1),4)}, v{vXA+ks} offset:4096")
        for sec in (1,2):
            L.append(f"ds_read_b64_tr_b16 {vr(wf(s,sec),2)}, v{vWA} offset:{sec*8192+ks*2048}")
            L.append(f"ds_read_b64_tr_b16 {vr(wf(s,sec)+2,2)}, v{vWA} offset:{sec*8192+ks*2048+512}")
        return L
    def mfmas(s, br):
        L=[]
        for sec in range(3):
            for tt in range(2):
                featrow = (sec==0) or (sec==1 and br==1)
                A_,B_ = (wf(s,sec),xf(s,tt)) if featrow else (xf(s,tt),wf(s,sec))
                if cfg.get("mf16test"):
                    o=acc(tt,sec)+8*s
                    L.append(f"v_mfma_f32_16x16x32_bf16 {vr(o,4)}, {vr(A_,4)}, {vr(B_,4)}, {vr(o,4)}\nv_mfma_f32_16x16x32_bf16 {vr(o+4,4)}, {vr(B_,4)}, {vr(A_,4)}, {vr(o+4,4)}")
                else:
                    L.append(f"v_mfma_f32_32x32x16_bf16 {vr(acc(tt,sec),16)}, {vr(A_,4)}, {vr(B_,4)}, {vr(acc(tt,sec),16)}")
        return L
    def step(s, br, rd):
        M=mfmas(s,br)
        if rd:
            a(M[0]); a(rd[0]); a(rd[1]); a(rd[2])
            a(M[1]); a(rd[3]); a(rd[4]); a(rd[5])
            a(M[2]); a(rd[6]); a(rd[7])
            a(M[3]); a(M[4]); a(M[5])
        else:
            for m in M: a(m)
    sCNT=38; sSTG=39; sDX=40; sDW=41
    for br in (0,1):
        bn="AB"[br]
        if br==0: a(f"s_cmp_eq_u32 s{sBR}, 1\ns_cbranch_scc1 {name}_cB")
        else: a.label(f"{name}_cB")
        a(f"s_mov_b32 s{sCNT}, 0\ns_mov_b32 s{sSTG}, 0\ns_waitcnt vmcnt(0)\nv_readfirstlane_b32 s{sN}, v31\ns_nop 3\ns_add_u32 s{sN}, s{sN}, 1")
        a("s_barrier")
        pf.pt("p")
        for l in reads(0,0): a(l)
        a.label(f"{name}_loop{bn}")
        for ks in range(3):
            a("s_waitcnt lgkmcnt(0)")
            step(ks&1, br, reads((ks+1)&1, ks+1))
        a(f"""
        s_add_u32 s{sSTG}, s{sSTG}, 1
        s_cmp_eq_u32 s{sSTG}, {NS}
        s_cselect_b32 s{sDX}, s58, s59
        s_cselect_b32 s{sDW}, s60, s61
        s_cselect_b32 s{sSTG}, 0, s{sSTG}
        s_waitcnt lgkmcnt(0)
        s_barrier
        """)
        if cfg.get("chunkstamps"):
            for c in range(7):
                lab=a.newlabel("cs")
                a(f"s_cmp_lg_u32 s{sCNT}, {c}\ns_cbranch_scc1 {lab}")
                pf.pt(f"c{c}")
                a.label(lab)
        for ks in range(4): a(f"v_add_u32 v{vXA+ks}, s{sDX}, v{vXA+ks}")
        a(f"v_add_u32 v{vWA}, s{sDW}, v{vWA}")
        step(1, br, reads(0,0))
        a(f"""
        s_add_u32 s{sCNT}, s{sCNT}, 1
        s_cmp_lt_u32 s{sCNT}, 7
        s_cbranch_scc1 {name}_loop{bn}
        """)
        sOFF=42; sH=43; sTB=44
        def epi_addr():
            a(f"""
            s_lshl_b32 s{sH}, s{sG}, 2
            s_lshl_b32 s{sT}, s{sFN}, 1
            s_add_u32 s{sH}, s{sH}, s{sT}
            s_lshl_b32 s{sTB}, s{sR}, 2
            s_lshl_b32 s{sT}, s{sTM}, 1
            s_add_u32 s{sTB}, s{sTB}, s{sT}
            s_lshl_b32 s{sOFF}, s{sH}, 16
            s_lshl_b32 s{sT}, s{sTB}, 10
            s_add_u32 s{sOFF}, s{sOFF}, s{sT}
            v_lshlrev_b32 v9, 4, v1
            """)
        T0=128
        if br==1 and cfg.get("lastchunk"):
            epi_addr()
            a(f"""
            s_mov_b32 s46, {f2u(CSCALE):#x}
            s_mov_b32 s47, {f2u(CSCALE):#x}
            v_bfe_u32 v10, v1, 4, 1
            v_lshlrev_b32 v10, 16, v10
            v_lshrrev_b32 v11, 5, v1
            v_lshl_add_u32 v10, v11, 8, v10
            v_and_b32 v11, 15, v1
            v_lshl_add_u32 v10, v11, 4, v10
            """)
            XL={0:[xf(0,0),xf(0,1)]}; WL={(0,sec):wf(0,sec) for sec in range(3)}
            reg=168
            for ks in range(1,4): XL[ks]=[reg,reg+4]; reg+=8
            for sec in (1,2,0):
                for ks in range(1,4): WL[(ks,sec)]=reg; reg+=4
            assert reg<=232
            q=[]; st={"done":0}
            def rx(ks):
                a(f"ds_read_b128 {vr(XL[ks][0],4)}, v{vXA+ks}"); q.append(("x",ks))
                a(f"ds_read_b128 {vr(XL[ks][1],4)}, v{vXA+ks} offset:4096"); q.append(("x",ks))
            def rw(ks,sec):
                for t in range(2):
                    a(f"ds_read_b64_tr_b16 {vr(WL[(ks,sec)]+2*t,2)}, v{vWA} offset:{sec*8192+ks*2048+t*512}"); q.append(("w",ks,sec))
            def wait_for(tags):
                idx=[i for i,x in enumerate(q) if x in tags]
                if not idx or max(idx)<st["done"]: return
                n=len(q)-1-max(idx); assert n<=15 and len(q)-st["done"]<=15,(n,len(q),st)
                a(f"s_waitcnt lgkmcnt({n})"); st["done"]=max(idx)+1
            def mm(sec,ks,tt):
                featrow = sec in (0,1)
                A_,B_ = (WL[(ks,sec)],XL[ks][tt]) if featrow else (XL[ks][tt],WL[(ks,sec)])
                a(f"v_mfma_f32_32x32x16_bf16 {vr(acc(tt,sec),16)}, {vr(A_,4)}, {vr(B_,4)}, {vr(acc(tt,sec),16)}")
            TK=128+8
            TK=148
            def kops():
                L=[]
                for tt in range(2):
                    b=acc(tt,1); tmp=TK+8*tt
                    for i in range(8): L.append(f"v_cvt_pk_bf16_f32 v{tmp+i}, v{b+2*i}, v{b+2*i+1}")
                    L.append(f"s_add_u32 s{sT}, s{sOFF}, {KF+tt*1024}\nbuffer_store_dwordx4 {vr(tmp,4)}, v9, s[{SWS}:{SWS+3}], s{sT} offen {STF}")
                    L.append(f"s_add_u32 s{sT2}, s{sOFF}, {KF+tt*1024+65536}\nbuffer_store_dwordx4 {vr(tmp+4,4)}, v9, s[{SWS}:{SWS+3}], s{sT2} offen {STF}")
                return L
            TV=232
            def vops():
                L=[]
                for tt in range(2):
                    b=acc(tt,2); tmp=[232,148][tt]
                    for i in range(8): L.append(f"v_cvt_pk_bf16_f32 v{tmp+i}, v{b+2*i}, v{b+2*i+1}")
                    L.append(f"s_add_u32 s{sT}, s{sOFF}, {VF+tt*1024}\nbuffer_store_dwordx4 {vr(tmp,4)}, v10, s[{SWS}:{SWS+3}], s{sT} offen {STF}")
                    L.append(f"buffer_store_dwordx4 {vr(tmp+4,4)}, v10, s[{SWS}:{SWS+3}], s{sT} offen offset:512 {STF}")
                return L
            a("s_waitcnt lgkmcnt(0)")
            rx(1); rw(1,1); rx(2); rw(2,1)
            mm(1,0,0); mm(1,0,1)
            rx(3); rw(3,1)
            wait_for([("x",1),("w",1,1)]); mm(1,1,0); rw(1,2); mm(1,1,1)
            wait_for([("x",2),("w",2,1)]); mm(1,2,0); rw(2,2); mm(1,2,1)
            wait_for([("x",3),("w",3,1)]); mm(1,3,0); rw(3,2); mm(1,3,1)
            mm(2,0,0); rw(1,0); mm(2,0,1); rw(2,0)
            wait_for([("w",1,2)]); mm(2,1,0); rw(3,0); mm(2,1,1)
            a("s_nop 3")
            K=kops()
            for l in K[0:5]: a(l)
            wait_for([("w",2,2)]); mm(2,2,0)
            for l in K[5:10]: a(l)
            mm(2,2,1)
            for l in K[10:15]: a(l)
            wait_for([("w",3,2)]); mm(2,3,0)
            for l in K[15:20]: a(l)
            mm(2,3,1)
            mm(0,0,0); mm(0,0,1)
            wait_for([("w",1,0)]); mm(0,1,0); mm(0,1,1)
            a("s_nop 7")
            V=vops()
            for l in V[0:5]: a(l)
            wait_for([("w",2,0)]); mm(0,2,0)
            for l in V[5:10]: a(l)
            mm(0,2,1)
            for l in V[10:15]: a(l)
            wait_for([("w",3,0)]); mm(0,3,0)
            for l in V[15:20]: a(l)
            mm(0,3,1)
            pf.pt("loop")
            a("s_nop 15")
            tmp=168
            for tt in range(2):
                b=acc(tt,0)
                for i in range(8): a(f"v_pk_mul_f32 {vr(b+2*i,2)}, {vr(b+2*i,2)}, s[46:47]")
                for i in range(8): a(f"v_cvt_pk_bf16_f32 v{tmp+i}, v{b+2*i}, v{b+2*i+1}")
                a(f"s_add_u32 s{sT}, s{sOFF}, {QF+tt*1024}")
                a(f"buffer_store_dwordx4 {vr(tmp,4)}, v9, s[{SWS}:{SWS+3}], s{sT} offen {STF}")
                a(f"s_add_u32 s{sT2}, s{sOFF}, {QF+tt*1024+65536}")
                a(f"buffer_store_dwordx4 {vr(tmp+4,4)}, v9, s[{SWS}:{SWS+3}], s{sT2} offen {STF}")
                tmp+=8
            a(f"s_branch {name}_p1done")
            continue
        for ks in range(3):
            a("s_waitcnt lgkmcnt(0)")
            step(ks&1, br, reads((ks+1)&1, ks+1))
        a("s_waitcnt lgkmcnt(0)")
        step(1, br, [])
        pf.pt("loop")
        epi_addr()
        if br==1:
            a(f"s_mov_b32 s46, {f2u(CSCALE):#x}\ns_mov_b32 s47, {f2u(CSCALE):#x}")
            a(f"""
            v_bfe_u32 v10, v1, 4, 1
            v_lshlrev_b32 v10, 16, v10
            v_lshrrev_b32 v11, 5, v1
            v_lshl_add_u32 v10, v11, 8, v10
            v_and_b32 v11, 15, v1
            v_lshl_add_u32 v10, v11, 4, v10
            s_nop 7
            """)
            tmp=T0
            for tt in range(2):
                b=acc(tt,1)
                for i in range(8): a(f"v_cvt_pk_bf16_f32 v{tmp+i}, v{b+2*i}, v{b+2*i+1}")
                a(f"s_add_u32 s{sT}, s{sOFF}, {KF+tt*1024}")
                a(f"buffer_store_dwordx4 {vr(tmp,4)}, v9, s[{SWS}:{SWS+3}], s{sT} offen {STF}")
                a(f"s_add_u32 s{sT2}, s{sOFF}, {KF+tt*1024+65536}")
                a(f"buffer_store_dwordx4 {vr(tmp+4,4)}, v9, s[{SWS}:{SWS+3}], s{sT2} offen {STF}")
                tmp+=8
            for tt in range(2):
                b=acc(tt,2)
                for i in range(8): a(f"v_cvt_pk_bf16_f32 v{tmp+i}, v{b+2*i}, v{b+2*i+1}")
                a(f"s_add_u32 s{sT}, s{sOFF}, {VF+tt*1024}")
                a(f"buffer_store_dwordx4 {vr(tmp,4)}, v10, s[{SWS}:{SWS+3}], s{sT} offen {STF}")
                a(f"buffer_store_dwordx4 {vr(tmp+4,4)}, v10, s[{SWS}:{SWS+3}], s{sT} offen offset:512 {STF}")
                tmp+=8
            for tt in range(2):
                b=acc(tt,0)
                for i in range(8): a(f"v_pk_mul_f32 {vr(b+2*i,2)}, {vr(b+2*i,2)}, s[46:47]")
                for i in range(8): a(f"v_cvt_pk_bf16_f32 v{tmp+i}, v{b+2*i}, v{b+2*i+1}")
                a(f"s_add_u32 s{sT}, s{sOFF}, {QF+tt*1024}")
                a(f"buffer_store_dwordx4 {vr(tmp,4)}, v9, s[{SWS}:{SWS+3}], s{sT} offen {STF}")
                a(f"s_add_u32 s{sT2}, s{sOFF}, {QF+tt*1024+65536}")
                a(f"buffer_store_dwordx4 {vr(tmp+4,4)}, v9, s[{SWS}:{SWS+3}], s{sT2} offen {STF}")
                tmp+=8
            a(f"s_branch {name}_p1done")
        else:
            a(f"""
            s_mov_b32 s46, {f2u(LOG2E):#x}
            s_mov_b32 s47, {f2u(LOG2E):#x}
            s_mov_b32 s48, 1.0
            s_mov_b32 s49, 1.0
            s_mov_b32 s50, {f2u(1e-6):#x}
            s_mov_b32 s51, {f2u(1e-6):#x}
            s_mov_b32 s52, 0x0000ffff
            s_mov_b32 s53, 0x0000ffff
            v_mov_b32 v20, 0x3f803f80
            v_mov_b32 v21, 0x3f803f80
            v_mov_b32 v22, 0x3f803f80
            v_mov_b32 v23, 0x3f803f80
            s_nop 4
            """)
            U=168
            def phi(b):
                for i in range(8): a(f"v_pk_mul_f32 {vr(U+2*i,2)}, {vr(b+2*i,2)}, s[46:47]")
                for i in range(16): a(f"v_exp_f32 v{U+i}, v{U+i} clamp")
                for i in range(8): a(f"v_pk_add_f32 {vr(b+2*i,2)}, {vr(b+2*i,2)}, s[48:49]")
                for i in range(16): a(f"v_max_f32 v{b+i}, v{b+i}, v{U+i}")
                for i in range(8): a(f"v_pk_add_f32 {vr(b+2*i,2)}, {vr(b+2*i,2)}, s[50:51]")
            PK=[128,136]; VV=[144,152]; D=184; D2=200
            for tt in range(2):
                b=acc(tt,2)
                for i in range(8): a(f"v_cvt_pk_bf16_f32 v{VV[tt]+i}, v{b+2*i}, v{b+2*i+1}")
            mq=[]
            for tt in range(2):
                b=acc(tt,1)
                phi(b)
                for i in range(8): a(f"v_cvt_pk_bf16_f32 v{PK[tt]+i}, v{b+2*i}, v{b+2*i+1}")
                a("s_nop 1")
                for m in range(2):
                    c1 = "0" if (tt==0 and m==0) else vr(D,16)
                    c2 = "0" if (tt==0 and m==0) else vr(D2,16)
                    a(f"v_mfma_f32_32x32x16_bf16 {vr(D,16)}, {vr(PK[tt]+4*m,4)}, {vr(VV[tt]+4*m,4)}, {c1}")
                    a(f"v_mfma_f32_32x32x16_bf16 {vr(D2,16)}, {vr(PK[tt]+4*m,4)}, v[20:23], {c2}")
            a("s_nop 15")
            for r in range(8):  a(f"v_cndmask_b32_e64 v{D+r}, v{D2+r}, v{D+r}, s[52:53]")
            for r in range(8,16): a(f"v_cndmask_b32_e64 v{D+r}, v{D+r}, v{D2+r}, s[52:53]")
            EX = 0
            a(f"""
            s_lshl_b32 s{sT}, s{sFN}, 12
            s_add_u32 s{sT}, s{sT}, {EX}
            v_add_u32 v10, s{sT}, v9
            s_cmp_eq_u32 s{sTM}, 0
            s_cbranch_scc1 {name}_Ard
            """)
            for q in range(4): a(f"ds_write_b128 v10, {vr(D+4*q,4)} offset:{q*1024}")
            a(f"s_waitcnt lgkmcnt(0)")
            a.label(f"{name}_Ard")
            a("s_barrier")
            tmp=216
            def qpart(tt,tmp):
                b=acc(tt,0)
                phi(b)
                for i in range(8): a(f"v_cvt_pk_bf16_f32 v{tmp+i}, v{b+2*i}, v{b+2*i+1}")
                if DEF: return
                a(f"s_add_u32 s{sT}, s{sOFF}, {PQ+tt*1024}")
                a(f"buffer_store_dwordx4 {vr(tmp,4)}, v9, s[{SWS}:{SWS+3}], s{sT} offen {STF}")
                a(f"s_add_u32 s{sT2}, s{sOFF}, {PQ+tt*1024+65536}")
                a(f"buffer_store_dwordx4 {vr(tmp+4,4)}, v9, s[{SWS}:{SWS+3}], s{sT2} offen {STF}")
            a(f"s_cmp_lg_u32 s{sTM}, 0\ns_cbranch_scc1 {name}_Aq")
            for q in range(4): a(f"ds_read_b128 {vr(D2+4*q,4)}, v10 offset:{q*1024}")
            a(f"""
            v_and_b32 v11, 31, v1
            v_lshrrev_b32 v12, 5, v1
            v_and_b32 v13, 15, v1
            v_lshlrev_b32 v13, 5, v13
            v_lshl_add_u32 v13, v12, 9, v13
            v_lshlrev_b32 v14, 5, v12
            v_add_u32 v14, 1024, v14
            v_mov_b32 v15, 0x40000000
            v_cmp_eq_u32 s[54:55], 16, v11
            v_cmp_eq_u32 s[56:57], 0, v11
            s_nop 1
            v_cndmask_b32_e64 v16, v15, v14, s[54:55]
            v_cndmask_b32_e64 v17, v15, v14, s[56:57]
            v_cndmask_b32_e64 v16, v16, v13, s[52:53]
            v_cndmask_b32_e64 v17, v13, v17, s[52:53]
            s_lshl_b32 s{sT}, s{sH}, 4
            s_add_u32 s{sT}, s{sT}, s{sR}
            s_mul_i32 s{sT}, s{sT}, 1088
            s_add_u32 s{sT}, s{sT}, {KVP}
            s_add_u32 s{sT2}, s{sT}, {16*1088}
            s_waitcnt lgkmcnt(0)
            """)
            for i in range(8): a(f"v_pk_add_f32 {vr(D+2*i,2)}, {vr(D+2*i,2)}, {vr(D2+2*i,2)}")
            a(f"""
            buffer_store_dwordx4 {vr(D,4)}, v16, s[{SWS}:{SWS+3}], s{sT} offen {STF}
            buffer_store_dwordx4 {vr(D+4,4)}, v16, s[{SWS}:{SWS+3}], s{sT} offen offset:16 {STF}
            buffer_store_dwordx4 {vr(D+8,4)}, v17, s[{SWS}:{SWS+3}], s{sT2} offen {STF}
            buffer_store_dwordx4 {vr(D+12,4)}, v17, s[{SWS}:{SWS+3}], s{sT2} offen offset:16 {STF}
            """)
            a.label(f"{name}_Aq")
            qpart(0,216); qpart(1,224 if DEF else 128)
            if DEF:
                a(f"""
                s_mov_b32 s82, s{sOFF}
                s_lshl_b32 s{sT}, s{sG}, 1
                s_add_u32 s{sT}, s{sT}, s{sFN}
                s_mul_i32 s{sT}, s{sT}, {FPSTR}
                s_lshl_b32 s{sT2}, s{sR}, 1
                s_add_u32 s{sT2}, s{sT2}, s{sTM}
                s_lshl_b32 s{sT2}, s{sT2}, 7
                s_add_u32 s{sT}, s{sT}, s{sT2}
                s_add_u32 s84, s{sT}, {FP}
                s_mov_b32 s83, 1
                """)
            a(f"s_branch {name}_p1done")
    a.label(f"{name}_loader")
    sE=26; sXB=27; sWBs=38; sL=39
    a(f"""
    s_sub_u32 s{sE}, s{sWAVE}, 4
    v_lshrrev_b32 v2, 3, v1
    v_and_b32 v3, 7, v1
    v_lshrrev_b32 v4, 1, v2
    s_and_b32 s{sT}, s{sE}, 1
    s_lshl_b32 s{sT}, s{sT}, 2
    v_or_b32 v4, s{sT}, v4
    v_xor_b32 v4, v4, v3
    v_lshlrev_b32 v5, 10, v2
    v_lshl_add_u32 v5, v4, 4, v5            ; x voffset
    v_bfe_u32 v4, v1, 4, 1
    v_lshlrev_b32 v4, 2, v4
    v_xor_b32 v4, v4, v3
    v_mul_u32_u24 v6, 3072, v2
    v_lshl_add_u32 v6, v4, 4, v6            ; w voffset
    v_lshlrev_b32 v7, 10, v2
    v_lshl_add_u32 v7, v4, 4, v7
    s_lshl_b32 s{sXB}, s{sR}, 17
    s_lshl_b32 s{sT}, s{sE}, 13
    s_add_u32 s{sXB}, s{sXB}, s{sT}
    s_lshl_b32 s{sWBs}, s{sG}, 7
    s_mul_i32 s{sT}, s{sE}, 24576
    s_add_u32 s{sWBs}, s{sWBs}, s{sT}
    s_lshl_b32 s{sL}, s{sE}, 10
    """)
    sROT=40; sXC=41; sWC=42
    a(f"s_mov_b32 s{sROT}, 0")
    for (src,sh,mask,mul) in cfg.get("k1_rot",[["R",0,3,2],["G",0,3,1]]):
        r={"R":sR,"G":sG}[src]
        a(f"s_lshr_b32 s{sT}, s{r}, {sh}\ns_and_b32 s{sT}, s{sT}, {mask}\ns_mul_i32 s{sT}, s{sT}, {mul}\ns_add_u32 s{sROT}, s{sROT}, s{sT}")
    def issue(c, part=None):
        st=c%NS
        L=[]
        hdr=f"""
        s_add_u32 s{sT}, s{sROT}, {c}
        s_and_b32 s{sT}, s{sT}, 7
        s_lshl_b32 s{sXC}, s{sT}, 7
        s_add_u32 s{sXC}, s{sXC}, s{sXB}
        s_mul_i32 s{sWC}, s{sT}, 196608
        s_add_u32 s{sWC}, s{sWC}, s{sWBs}
        """
        for i in range(4):
            L.append(f"s_add_u32 m0, s{sL}, {XB+st*XS+i*4096}\ns_add_u32 s{sT}, s{sXC}, {i*32768}\nbuffer_load_dwordx4 v5, s[{SX}:{SX+3}], s{sT} offen {LDX} lds")
        for jj in range(2):
            for sec in range(3):
                L.append(f"s_add_u32 m0, s{sL}, {WB+st*WS_+sec*8192+jj*4096}\ns_add_u32 s{sT}, s{sWC}, {jj*4*24576+sec*1024}\nbuffer_load_dwordx4 v6, s[{SW}:{SW+3}], s{sT} offen {LDW} lds")
        lo,hi = part if part else (0,10)
        if lo==0: a(hdr)
        for l in L[lo:hi]: a(l)
    k0=cfg.get("pro_k",5)
    issue(0); issue(1,(0,k0))
    a(f"s_waitcnt vmcnt({k0})\nv_readfirstlane_b32 s{sN}, v31\ns_nop 3\ns_add_u32 s{sN}, s{sN}, 1\ns_barrier")
    if k0<10: issue(1,(k0,10))
    issue(2)
    for c in range(7):
        issued=min(8,c+NS)
        rem=10*(issued-(c+2))
        if c==6: rem=16 if P3V==1 else 17
        a(f"s_waitcnt vmcnt({rem})\ns_barrier")
        if c+NS<8: issue(c+NS)
        if c==5:
            a(f"""
            s_cmp_eq_u32 s{sP3BR}, 0
            s_cselect_b32 s28, s{sAWO}, s{sBWO}
            s_cselect_b32 s29, s{sAWO+1}, s{sBWO+1}
            s_mov_b32 s30, 0x80000
            s_mov_b32 s31, 0x20000
            s_lshl_b32 s{sXC}, s{sP3NS}, {7 if P3V==1 else 8}
            s_lshl_b32 s{sT}, s{sE}, 13
            s_add_u32 s{sXC}, s{sXC}, s{sT}
            """)
            if P3V==1 and cfg.get("p3rot",0):
                a(f"s_lshl_b32 s{sXC}, s{sP3NS}, 7\ns_mul_i32 s{sWC}, s{sP3NS}, {2*cfg['p3rot']}\ns_add_u32 s{sWC}, s{sWC}, s{sE}")
                for u in range(16):
                    a(f"s_add_u32 m0, s{sL}, {WOL+u*4096}")
                    a(f"s_add_u32 s{sT}, s{sWC}, {4*u}\ns_and_b32 s{sT}, s{sT}, 63\ns_lshl_b32 s{sT}, s{sT}, 13\ns_add_u32 s{sT}, s{sT}, s{sXC}")
                    a(f"buffer_load_dwordx4 v7, s[28:31], s{sT} offen lds")
            else:
              for u in range(16):
                a(f"s_add_u32 m0, s{sL}, {WOL+u*4096}")
                a(f"s_add_u32 s{sT}, s{sXC}, {u*32768+(0 if P3V==1 else 128)}")
                a(f"buffer_load_dwordx4 v7, s[28:31], s{sT} offen lds")
            if P3V==2:
                a(f"""
                v_and_b32 v8, 15, v1
                s_lshl_b32 s{sT}, s{sE}, 4
                v_add_u32 v8, s{sT}, v8
                v_lshlrev_b32 v8, 10, v8
                s_bfe_u32 s{sT}, s2, 0x30003
                s_lshl_b32 s{sT}, s{sT}, 16
                s_lshl_b32 s{sXC}, s{sP3NS}, 8
                s_add_u32 s{sT}, s{sT}, s{sXC}
                buffer_load_dword v9, v8, s[28:31], s{sT} offen
                """)
    a(f"s_cmp_eq_u32 s{sBR}, 1\ns_cbranch_scc1 {name}_p1bar\ns_barrier\ns_branch {name}_p1bar")
    a.label(f"{name}_p1done")
    pf.pt("epi")
    a("s_waitcnt vmcnt(0)")
    a.label(f"{name}_p1bar")
    a("s_barrier")
    R=K2R
    a(f"""
    s_cmp_lg_u32 s{sWV}, 0
    s_cbranch_scc1 {name}_nf1
    s_lshl_b32 s{sT}, s{sBR}, 3
    s_add_u32 s{sT}, s{sT}, s{sG}
    s_mul_i32 s{sT}, s{sT}, {FSTR}
    s_lshl_b32 s{sT2}, s{sR}, 7
    s_add_u32 s{sT}, s{sT}, s{sT2}
    s_add_u32 s{sT}, s{sT}, {F1}
    v_mov_b32 v12, 0
    v_mov_b32 v13, s{sN}
    buffer_store_dword v13, v12, s[{SWS}:{SWS+3}], s{sT} offen sc1
    {name}_nf1:
    """)
    pf.pt("b1")
    a(f"""
    s_mov_b32 s{R.sWAVE}, s{sWV}
    s_bfe_u32 s{R.sRB}, s2, 0x30003
    s_and_b32 s{R.sH}, s2, 7
    s_lshr_b32 s{R.sT}, s2, 6
    s_lshl_b32 s{R.sT}, s{R.sT}, 3
    s_add_u32 s{R.sH}, s{R.sH}, s{R.sT}
    v_lshlrev_b32 v3, 4, v1
    s_lshl_b32 s{R.sQB}, s{R.sRB}, 3
    s_add_u32 s{R.sQB}, s{R.sQB}, s{R.sWAVE}
    s_mov_b32 s{R.SWS}, s{sWSP}
    s_mov_b32 s{R.SWS+1}, s{sWSP+1}
    s_mov_b32 s{R.SWS+2}, {WS_USED}
    s_mov_b32 s{R.SWS+3}, 0x20000
    """)
    k2_setup_consts(a,R)
    sFA=12; sNEED=14
    a(f"""
    v_lshlrev_b32 v2, 7, v1
    s_lshr_b32 s{sFA}, s{R.sH}, 2
    s_mul_i32 s{sFA}, s{sFA}, {FSTR}
    s_add_u32 s13, s{sFA}, {F1}               ; A row
    s_add_u32 s{sFA}, s{sFA}, {F1+8*FSTR}     ; B row
    s_cmp_lg_u32 s{sWV}, 0
    s_cbranch_scc1 {name}_np2
    s_lshl_b32 s{R.sT}, s{R.sRB}, 1
    s_lshl_b32 s{sNEED}, 15, s{R.sT}
    s_lshr_b32 s{sNEED}, s{sNEED}, 2          ; (0b1111 << 2rb) >> 2
    s_mov_b32 s{sNEED+1}, 0
    """)
    poll(a,"pb",R.SWS,sFA,sNEED,sNEED+1,12,2,sleep=cfg.get("sleep1",4))
    a.label(f"{name}_np2")
    a("s_waitcnt lgkmcnt(0)\ns_barrier")
    pf.pt("b2")
    k2_load_b(a,R,HLD)
    if DEF:
        a(f"s_cmp_eq_u32 s83, 0\ns_cbranch_scc1 {name}_nopq")
        for tt in range(2):
            a(f"s_add_u32 s{R.sT}, s82, {PQ+tt*1024}\nbuffer_store_dwordx4 {vr(216+8*tt,4)}, v3, s[{R.SWS}:{R.SWS+3}], s{R.sT} offen {STF}")
            a(f"s_add_u32 s{R.sT2}, s82, {PQ+tt*1024+65536}\nbuffer_store_dwordx4 {vr(220+8*tt,4)}, v3, s[{R.SWS}:{R.SWS+3}], s{R.sT2} offen {STF}")
        a(f"s_waitcnt vmcnt(4)\ns_branch {name}_pqd\n{name}_nopq:\ns_waitcnt vmcnt(0)\n{name}_pqd:\ns_barrier")
    else:
        a("s_waitcnt vmcnt(0)\ns_barrier")
    pf.pt("kv")
    def h_pre():
        a(f"s_mov_b64 exec, 0xffff\nbuffer_load_dword v13, v2, s[{R.SWS}:{R.SWS+3}], s13 offen sc1\ns_mov_b64 exec, -1")
    def h_post0():
        pf.pt("post0")
        D=a.newlabel("pa")
        a(f"""
        s_mov_b32 s{sNEED}, 0xffff
        s_mov_b32 s{sNEED+1}, 0
        s_waitcnt vmcnt(0)
        v_cmp_eq_u32 vcc, s{sN}, v13
        s_and_b64 vcc, vcc, s[{sNEED}:{sNEED+1}]
        s_cmp_eq_u64 vcc, s[{sNEED}:{sNEED+1}]
        s_cbranch_scc1 {D}
        """)
        poll(a,"pa2",R.SWS,13,sNEED,sNEED+1,13,2)
        a.label(D)
        pf.pt("aflag")
        if DEF:
            lab=a.newlabel("pqf")
            a(f"""
            s_cmp_eq_u32 s83, 0
            s_cbranch_scc1 {lab}
            v_mov_b32 v12, 0
            v_mov_b32 v13, s{sN}
            buffer_store_dword v13, v12, s[{R.SWS}:{R.SWS+3}], s84 offen sc1
            {lab}:
            """)
        k2_load_a(a,R,HLD,name,pq=not DEF)
    def pq_addr():
        a(f"""
        s_lshr_b32 s14, s{R.sH}, 1
        s_mul_i32 s14, s14, {FPSTR}
        s_lshr_b32 s15, s{R.sQB}, 1
        s_lshl_b32 s15, s15, 7
        s_add_u32 s14, s14, s15
        s_add_u32 s16, s14, {FP}
        v_mov_b32 v12, 0
        """)
    def pq_load():
        a(f"""
        s_lshl_b32 s{R.sT}, s{R.sH}, 16
        s_lshl_b32 s{R.sT2}, s{R.sQB}, 10
        s_add_u32 s{R.sT}, s{R.sT}, s{R.sT2}
        s_add_u32 s{R.sT}, s{R.sT}, {PQ}
        buffer_load_dwordx4 {vr(R.vPQ,4)}, v3, s[{R.SWS}:{R.SWS+3}], s{R.sT} offen {HLD}
        """)
    def pq_check(first):
        D=a.newlabel("pqd")
        a("s_mov_b32 s14, 1\ns_mov_b32 s15, 0")
        if first:
            a(f"""
            s_waitcnt vmcnt(0)
            v_readfirstlane_b32 s{R.sT}, v13
            s_cmp_eq_u32 s{R.sT}, s{sN}
            s_cbranch_scc1 {D}
            """)
        poll(a,"pq2",R.SWS,16,14,15,13,12,sleep=2)
        a.label(D)
        pq_load()
    def h_probe():
        lab=a.newlabel("pr")
        a(f"s_cmp_eq_u32 s{R.sRB}, 0\ns_cbranch_scc1 {lab}")
        pq_addr()
        a(f"buffer_load_dword v13, v12, s[{R.SWS}:{R.SWS+3}], s16 offen sc1\n{lab}:")
    def h_check():
        lab=a.newlabel("ck")
        a(f"s_cmp_eq_u32 s{R.sRB}, 0\ns_cbranch_scc1 {lab}")
        pq_check(True)
        a.label(lab)
    hk={"pre":h_pre,"post0":h_post0}
    if DEF: hk[("it",cfg.get("pq_at",2)+1)]=h_probe; hk[("it",cfg.get("pq_at",2))]=h_check
    k2_attn(a,R,name,cfg,pf,hooks=hk)
    if DEF:
        lab=a.newlabel("rb0")
        a(f"s_cmp_lg_u32 s{R.sRB}, 0\ns_cbranch_scc1 {lab}")
        pq_addr(); pq_check(False)
        a.label(lab)
    a(f"""
    s_lshl_b32 s{R.sT}, s{R.sQB}, 5
    s_add_u32 s{R.sT}, s{R.sT}, s{R.sH}
    s_lshl_b32 s{R.sT}, s{R.sT}, 10
    s_add_u32 s{R.sOB}, s{R.sT}, {OF}
    s_add_u32 s{R.sT}, s{R.sOB}, {64*32*1024}
    buffer_store_dwordx4 {vr(R.TMP,4)}, v3, s[{R.SWS}:{R.SWS+3}], s{R.sT} offen {STF}
    """)
    pf.pt("att")
    a("s_waitcnt vmcnt(1)\ns_barrier")
    pf.pt("kvp")
    k2_apart(a,R,name)
    pf.pt("apart")
    a(f"buffer_store_dwordx4 {vr(R.TMP+4,4)}, v3, s[{R.SWS}:{R.SWS+3}], s{R.sOB} offen {STF}")
    a("s_waitcnt vmcnt(0)")
    pf.pt("odrain")
    a("s_barrier")
    pf.pt("b5")
    if P3V==2:
        WOL0=32768
        a(f"""
        s_cmp_lt_u32 s{sWV}, 4
        s_cbranch_scc1 {name}_wod
        v_lshrrev_b32 v4, 3, v1
        v_and_b32 v5, 7, v1
        v_bfe_u32 v6, v1, 4, 1
        v_lshlrev_b32 v6, 2, v6
        v_xor_b32 v6, v6, v5
        v_lshlrev_b32 v7, 10, v4
        v_lshl_add_u32 v7, v6, 4, v7
        s_cmp_eq_u32 s{sP3BR}, 0
        s_cselect_b32 s16, s{sAWO}, s{sBWO}
        s_cselect_b32 s17, s{sAWO+1}, s{sBWO+1}
        s_mov_b32 s18, 0x80000
        s_mov_b32 s19, 0x20000
        s_sub_u32 s29, s{sWV}, 4
        s_lshl_b32 s28, s{sP3NS}, 8
        s_lshl_b32 s{R.sT}, s29, 13
        s_add_u32 s28, s28, s{R.sT}
        s_lshl_b32 s29, s29, 10
        """)
        for u in range(16):
            a(f"s_add_u32 m0, s29, {WOL0+u*4096}\ns_add_u32 s{R.sT}, s28, {u*32768}\nbuffer_load_dwordx4 v7, s[16:19], s{R.sT} offen lds")
        a.label(f"{name}_wod")
    a(f"""
    s_cmp_lg_u32 s{sWV}, 0
    s_cbranch_scc1 {name}_nf2
    s_mul_i32 s{R.sT}, s{R.sRB}, {F2STR}
    s_lshl_b32 s{R.sT2}, s{R.sH}, 7
    s_add_u32 s{R.sT}, s{R.sT}, s{R.sT2}
    s_add_u32 s{R.sT}, s{R.sT}, {F2}
    v_mov_b32 v12, 0
    v_mov_b32 v13, s{sN}
    buffer_store_dword v13, v12, s[{R.SWS}:{R.SWS+3}], s{R.sT} offen sc1
    s_lshr_b32 s{sFA}, s{sP3T}, {2 if P3V==2 else 1}
    s_mul_i32 s{sFA}, s{sFA}, {F2STR}
    s_add_u32 s{sFA}, s{sFA}, {F2}
    s_mov_b32 s{sNEED}, -1
    s_mov_b32 s{sNEED+1}, 0
    """)
    poll(a,"p3",R.SWS,sFA,sNEED,sNEED+1,12,2,sleep=cfg.get("sleep2",4))
    a.label(f"{name}_nf2")
    if P3V==2: a("s_waitcnt vmcnt(0)")
    a("s_barrier")
    pf.pt("f2")
    if pf.on and cfg.get("pwave",0)>=4:
        pf0.flush(len(PTS),4,2,wave=cfg["pwave"])
    if P3V==2:
        gen_p3v2(a,name,cfg,R,pf,pf0,PTS,OSTF,HLD)
        return dict(name=name, grid=256, block=512, lds=163840, vgpr=248, sgpr=102)
    a(f"s_cmp_ge_u32 s{sWV}, 4\ns_cbranch_scc1 {name}_end")
    SOUT=16; sTB=27; sOB=28
    a(f"""
    s_lshl_b32 s{sTB}, s{sP3T}, 2
    s_add_u32 s{sTB}, s{sTB}, s{sWV}
    s_lshl_b32 s{sT}, s{sP3BR}, 6
    s_add_u32 s{sT}, s{sT}, s{sTB}
    s_lshl_b32 s{sOB}, s{sT}, 15
    s_add_u32 s{sOB}, s{sOB}, {OF}
    """)
    OFR=64; ACC3=32; WFR=[8,16]; vWA3=5
    DEPTH=cfg.get("p3_depth",10)
    if cfg.get("p3rot",0): a(f"s_mul_i32 s29, s{sP3NS}, {cfg['p3rot']}")
    def oload(h):
        if cfg.get("p3rot",0):
            a(f"s_add_u32 s{sT2}, s29, {h}\ns_and_b32 s{sT2}, s{sT2}, 31\ns_lshl_b32 s{sT2}, s{sT2}, 10\ns_add_u32 s{sT2}, s{sT2}, s{sOB}\nbuffer_load_dwordx4 {vr(OFR+4*h,4)}, v3, s[{R.SWS}:{R.SWS+3}], s{sT2} offen {HLD}")
        else:
            a(f"s_add_u32 s{sT2}, s{sOB}, {h*1024}\nbuffer_load_dwordx4 {vr(OFR+4*h,4)}, v3, s[{R.SWS}:{R.SWS+3}], s{sT2} offen {HLD}")
    for h in range(DEPTH): oload(h)
    a(f"""
    s_mov_b32 s{SOUT}, s{sOUT}
    s_mov_b32 s{SOUT+1}, s{sOUT+1}
    s_mov_b32 s{SOUT+2}, 0x400000
    s_mov_b32 s{SOUT+3}, 0x20000
    v_bfe_u32 v6, v1, 2, 2
    v_lshrrev_b32 v7, 5, v1
    v_lshl_add_u32 v6, v7, 2, v6
    v_lshlrev_b32 v6, 7, v6
    v_and_b32 v7, 1, v1
    v_lshlrev_b32 v7, 1, v7
    v_bfe_u32 v24, v1, 4, 1
    v_or_b32 v7, v7, v24
    v_bfe_u32 v24, v1, 3, 1
    v_lshlrev_b32 v24, 2, v24
    v_xor_b32 v7, v7, v24
    v_lshl_add_u32 v6, v7, 4, v6
    v_bfe_u32 v24, v1, 1, 1
    v_lshl_add_u32 v{vWA3}, v24, 3, v6
    v_xor_b32 v{vWA3+1}, 64, v{vWA3}
    v_add_u32 v{vWA3}, {WOL}, v{vWA3}
    v_add_u32 v{vWA3+1}, {WOL}, v{vWA3+1}
    """)
    def reads3(s,h):
        L=[]
        for nt in range(2):
            for t in range(2):
                L.append(f"ds_read_b64_tr_b16 {vr(WFR[s]+4*nt+2*t,2)}, v{vWA3+nt} offset:{h*2048+t*1024}")
        return L
    for l in reads3(0,0): a(l)
    for h in range(32):
        s=h&1
        if h==1: pf.pt("p3b0")
        nxt=reads3(s^1,h+1) if h<31 else []
        for l in nxt: a(l)
        issued=min(32,h+DEPTH)
        a(f"s_waitcnt vmcnt({issued-h-1}) lgkmcnt({len(nxt)})")
        for nt in range(2):
            c = "0" if h==0 else vr(ACC3+16*nt,16)
            a(f"v_mfma_f32_32x32x16_bf16 {vr(ACC3+16*nt,16)}, {vr(WFR[s]+4*nt,4)}, {vr(OFR+4*h,4)}, {c}")
        if h+DEPTH<32: oload(h+DEPTH)
    pf.pt("p3loop")
    a(f"""
    s_lshl_b32 s{sT}, s{sTB}, 16
    s_lshl_b32 s{sT2}, s{sP3BR}, 10
    s_add_u32 s{sT}, s{sT}, s{sT2}
    s_lshl_b32 s{sT2}, s{sP3NS}, 7
    s_add_u32 s{sT}, s{sT}, s{sT2}
    v_and_b32 v6, 31, v1
    v_lshlrev_b32 v6, 11, v6
    v_lshrrev_b32 v7, 5, v1
    v_lshl_add_u32 v6, v7, 5, v6
    s_nop 7
    """)
    if cfg.get("outT"):
        a(f"""
        s_lshl_b32 s{sT2}, s{sWV}, 12
        v_and_b32 v8, 31, v1
        v_lshlrev_b32 v8, 7, v8                    ; token*128
        v_lshrrev_b32 v9, 5, v1
        v_lshl_add_u32 v8, v9, 5, v8               ; + hf*32
        v_and_b32 v9, 7, v1
        v_lshlrev_b32 v9, 4, v9
        v_add_u32 v8, s{sT2}, v8
        """)
        for nt in range(2):
            b=ACC3+16*nt; T=16+8*nt
            for i in range(8): a(f"v_cvt_pk_bf16_f32 v{T+i}, v{b+2*i}, v{b+2*i+1}")
        for nt in range(2):
            for u in range(2):
                a(f"v_add_u32 v10, {nt*64+u*16}, v8\nv_xor_b32 v10, v10, v9\nds_write_b128 v10, {vr(16+8*nt+4*u,4)}")
        a(f"""
        v_lshrrev_b32 v11, 3, v1
        v_and_b32 v12, 7, v1                       ; chunk
        v_xor_b32 v13, v12, v11
        v_lshlrev_b32 v13, 4, v13
        v_lshl_add_u32 v13, v11, 7, v13
        v_add_u32 v13, s{sT2}, v13
        v_lshlrev_b32 v14, 11, v11
        v_lshl_add_u32 v14, v12, 4, v14
        s_waitcnt lgkmcnt(0)
        """)
        for i in range(4): a(f"ds_read_b128 {vr(32+4*i,4)}, v13 offset:{i*1024}")
        for i in range(4):
            a(f"s_waitcnt lgkmcnt({3-i})\ns_add_u32 s{sT2}, s{sT}, {i*8*2048}\nbuffer_store_dwordx4 {vr(32+4*i,4)}, v14, s[{SOUT}:{SOUT+3}], s{sT2} offen {OSTF}")
    else:
      for nt in range(2):
        b=ACC3+16*nt; T=8+8*nt
        for i in range(8): a(f"v_cvt_pk_bf16_f32 v{T+i}, v{b+2*i}, v{b+2*i+1}")
        a(f"buffer_store_dwordx4 {vr(T,4)}, v6, s[{SOUT}:{SOUT+3}], s{sT} offen offset:{nt*64} {OSTF}")
        a(f"buffer_store_dwordx4 {vr(T+4,4)}, v6, s[{SOUT}:{SOUT+3}], s{sT} offen offset:{nt*64+16} {OSTF}")
    a(f"""
    s_cmp_lg_u32 s2, 0
    s_cbranch_scc1 {name}_nn
    s_cmp_lg_u32 s{sWV}, 0
    s_cbranch_scc1 {name}_nn
    s_mov_b32 s{sT}, {NONCE}
    v_mov_b32 v12, 0
    v_mov_b32 v13, s{sN}
    buffer_store_dword v13, v12, s[{R.SWS}:{R.SWS+3}], s{sT} offen sc1
    {name}_nn:
    """)
    if pf.on:
        a("s_waitcnt vmcnt(0)"); pf.pt("end"); pf0.flush(len(PTS),4,2,wave=cfg.get("pwave",0) if cfg.get("pwave",0)<4 else 99)
    a.label(f"{name}_end")
    a.label(f"{name}_last")
    a("s_endpgm")
    return dict(name=name, grid=256, block=512, lds=163840, vgpr=248, sgpr=104 if False else 102)
```

```python
from asmlib import *
import math
from k1 import QF,KF,VF,PQ,OF,KVP,WS_USED,LOG2E,CSCALE
import k2
from k2 import K2R,k2_setup_consts,k2_load_b,k2_load_a,k2_attn,k2_apart

FLG=KVP+0x90000
FL=128
ROW=32*FL+256
FKV=FLG; FQ=FLG+16*ROW; FA=FLG+32*ROW; F2=FLG+48*ROW; F2STR=ROW; NONCE=F2+8*ROW
EXL=61440; XFL=69632; QL=73728
WOL=98304
NL=163840-16

sAWO=64; sBWO=66; sOUT=68; sDBG=70; sWSP=72; sN=74; sWV=75; sP3T=76; sP3NS=77; sP3BR=78; sCNT2=79

def poll(a, name, srd, soff, need_lo, need_hi, vtmp, voff, bound=3000, sleep=4):
    L=a.newlabel(name); D=a.newlabel(name+"d")
    a(f"""
    s_mov_b32 s{sCNT2}, 0
    s_mov_b64 exec, s[{need_lo}:{need_hi}]
    {L}:
    buffer_load_dword v{vtmp}, v{voff}, s[{srd}:{srd+3}], s{soff} offen sc1
    s_waitcnt vmcnt(0)
    v_cmp_eq_u32 vcc, s{sN}, v{vtmp}
    s_cmp_eq_u64 vcc, s[{need_lo}:{need_hi}]
    s_cbranch_scc1 {D}
    s_add_u32 s{sCNT2}, s{sCNT2}, 1
    s_cmp_lt_u32 s{sCNT2}, {bound}
    s_cbranch_scc0 {D}
    s_sleep {sleep}
    s_branch {L}
    {D}:
    s_mov_b64 exec, -1
    """)

def gen_p3v2(a,name,cfg,R,pf,pf0,PTS,OSTF,HLD):
    sT=R.sT; sT2=R.sT2
    WOL0=32768; WOL1=98304
    a(f"s_cmp_ge_u32 s{sWV}, 4\ns_cbranch_scc1 {name}_p3l")
    SOUT=16; sTT=26; sNH=27
    ACC3=32; OS=[64,80]; WSET=[96,104,112]
    vWA3=5; vO=7
    a(f"""
    s_and_b32 s{sTT}, s{sWV}, 1
    s_lshr_b32 s{sNH}, s{sWV}, 1
    s_mov_b32 s{SOUT}, s{sOUT}
    s_mov_b32 s{SOUT+1}, s{sOUT+1}
    s_mov_b32 s{SOUT+2}, 0x400000
    s_mov_b32 s{SOUT+3}, 0x20000
    v_bfe_u32 v6, v1, 2, 2
    v_lshrrev_b32 v7, 5, v1
    v_lshl_add_u32 v6, v7, 2, v6
    v_lshlrev_b32 v6, 7, v6
    v_and_b32 v7, 1, v1
    v_lshlrev_b32 v7, 1, v7
    v_bfe_u32 v24, v1, 4, 1
    v_or_b32 v7, v7, v24
    v_bfe_u32 v24, v1, 3, 1
    v_lshlrev_b32 v24, 2, v24
    v_xor_b32 v7, v7, v24
    v_lshl_add_u32 v6, v7, 4, v6
    v_bfe_u32 v24, v1, 1, 1
    v_lshl_add_u32 v{vWA3}, v24, 3, v6
    v_xor_b32 v{vWA3+1}, 64, v{vWA3}
    s_lshl_b32 s{sT}, s{sNH}, 16
    s_add_u32 s{sT}, s{sT}, {WOL0}
    v_add_u32 v{vWA3}, s{sT}, v{vWA3}
    v_add_u32 v{vWA3+1}, s{sT}, v{vWA3+1}
    s_lshl_b32 s{sT}, s{sTT}, 10
    v_add_u32 v{vO}, s{sT}, v3
    """)
    q=[]
    def rd_o(e):
        for hh in range(4):
            a(f"ds_read_b128 {vr(OS[e&1]+4*hh,4)}, v{vO} offset:{(e&3)*8192+hh*2048}"); q.append(("o",e))
    def rd_w(h):
        for nt in range(2):
            for t in range(2):
                a(f"ds_read_b64_tr_b16 {vr(WSET[h%3]+4*nt+2*t,2)}, v{vWA3+nt} offset:{h*2048+t*1024}"); q.append(("w",h))
    st={"done":0}
    def wait_for(tags):
        last=max(i for i,x in enumerate(q) if x in tags)
        if last<st["done"]: return
        n=len(q)-1-last
        assert n<=15 and len(q)-st["done"]<=16, (n,len(q)-st["done"])
        a(f"s_waitcnt lgkmcnt({n})"); st["done"]=last+1
    rd_w(0); rd_w(1)
    a("s_barrier")
    pf.pt("p3b0")
    rd_o(0)
    for h in range(32):
        e=h>>2; hh=h&3
        if hh==2 and e<7:
            wait_for([("o",e)])
            a("s_barrier")
            rd_o(e+1)
        if h+2<32: rd_w(h+2)
        wait_for([("w",h),("o",e)])
        for nt in range(2):
            c = "0" if h==0 else vr(ACC3+16*nt,16)
            a(f"v_mfma_f32_32x32x16_bf16 {vr(ACC3+16*nt,16)}, {vr(WSET[h%3]+4*nt,4)}, {vr(OS[e&1]+4*hh,4)}, {c}")
    pf.pt("p3loop")
    a(f"""
    s_lshl_b32 s{sT}, s{sP3T}, 1
    s_add_u32 s{sT}, s{sT}, s{sTT}
    s_lshl_b32 s{sT}, s{sT}, 16
    s_lshl_b32 s{sT2}, s{sP3BR}, 10
    s_add_u32 s{sT}, s{sT}, s{sT2}
    s_lshl_b32 s{sT2}, s{sP3NS}, 8
    s_add_u32 s{sT}, s{sT}, s{sT2}
    s_lshl_b32 s{sT2}, s{sNH}, 7
    s_add_u32 s{sT}, s{sT}, s{sT2}
    v_and_b32 v6, 31, v1
    v_lshlrev_b32 v6, 11, v6
    v_lshrrev_b32 v7, 5, v1
    v_lshl_add_u32 v6, v7, 5, v6
    s_nop 7
    """)
    if cfg.get("outT"):
        a(f"""
        s_lshl_b32 s{sT2}, s{sWV}, 12
        v_and_b32 v8, 31, v1
        v_lshlrev_b32 v8, 7, v8                    ; token*128
        v_lshrrev_b32 v9, 5, v1
        v_lshl_add_u32 v8, v9, 5, v8               ; + hf*32
        v_and_b32 v9, 7, v1
        v_lshlrev_b32 v9, 4, v9
        v_add_u32 v8, s{sT2}, v8
        """)
        for nt in range(2):
            b=ACC3+16*nt; T=16+8*nt
            for i in range(8): a(f"v_cvt_pk_bf16_f32 v{T+i}, v{b+2*i}, v{b+2*i+1}")
        for nt in range(2):
            for u in range(2):
                a(f"v_add_u32 v10, {nt*64+u*16}, v8\nv_xor_b32 v10, v10, v9\nds_write_b128 v10, {vr(16+8*nt+4*u,4)}")
        a(f"""
        v_lshrrev_b32 v11, 3, v1
        v_and_b32 v12, 7, v1                       ; chunk
        v_xor_b32 v13, v12, v11
        v_lshlrev_b32 v13, 4, v13
        v_lshl_add_u32 v13, v11, 7, v13
        v_add_u32 v13, s{sT2}, v13
        v_lshlrev_b32 v14, 11, v11
        v_lshl_add_u32 v14, v12, 4, v14
        s_waitcnt lgkmcnt(0)
        """)
        for i in range(4): a(f"ds_read_b128 {vr(32+4*i,4)}, v13 offset:{i*1024}")
        for i in range(4):
            a(f"s_waitcnt lgkmcnt({3-i})\ns_add_u32 s{sT2}, s{sT}, {i*8*2048}\nbuffer_store_dwordx4 {vr(32+4*i,4)}, v14, s[{SOUT}:{SOUT+3}], s{sT2} offen {OSTF}")
    else:
      for nt in range(2):
        b=ACC3+16*nt; T=8+8*nt
        for i in range(8): a(f"v_cvt_pk_bf16_f32 v{T+i}, v{b+2*i}, v{b+2*i+1}")
        a(f"buffer_store_dwordx4 {vr(T,4)}, v6, s[{SOUT}:{SOUT+3}], s{sT} offen offset:{nt*64} {OSTF}")
        a(f"buffer_store_dwordx4 {vr(T+4,4)}, v6, s[{SOUT}:{SOUT+3}], s{sT} offen offset:{nt*64+16} {OSTF}")
    a(f"""
    s_cmp_lg_u32 s2, 0
    s_cbranch_scc1 {name}_nn
    s_cmp_lg_u32 s{sWV}, 0
    s_cbranch_scc1 {name}_nn
    s_mov_b32 s{sT}, {NONCE}
    v_mov_b32 v12, 0
    v_mov_b32 v13, s{sN}
    buffer_store_dword v13, v12, s[{R.SWS}:{R.SWS+3}], s{sT} offen sc1
    {name}_nn:
    """)
    if pf.on:
        a("s_waitcnt vmcnt(0)"); pf.pt("end"); pf0.flush(len(PTS),4,2,wave=cfg.get("pwave",0) if cfg.get("pwave",0)<4 else 99)
    a("s_endpgm")
    a.label(f"{name}_p3l")
    sE=26; sB=27; sL=28
    a(f"""
    s_sub_u32 s{sE}, s{sWV}, 4
    s_lshl_b32 s{sT}, s{sP3BR}, 6
    s_lshl_b32 s{sT2}, s{sP3T}, 1
    s_add_u32 s{sT}, s{sT}, s{sT2}
    s_lshl_b32 s{sB}, s{sT}, 15
    s_lshl_b32 s{sT}, s{sE}, 10
    s_add_u32 s{sB}, s{sB}, s{sT}
    s_add_u32 s{sB}, s{sB}, {OF}
    s_lshl_b32 s{sL}, s{sE}, 11
    """)
    OR=32; LA=cfg.get("p3_la",5); mode=cfg.get("p3_mode","reg")
    items=[(e,tt) for e in range(8) for tt in range(2)]
    def ld(k):
        e,tt=items[k]
        if cfg.get("diag_p3noload"): return
        if mode=="reg":
            a(f"s_add_u32 s{sT}, s{sB}, {e*4096+tt*32768}\nbuffer_load_dwordx4 {vr(OR+4*k,4)}, v3, s[{R.SWS}:{R.SWS+3}], s{sT} offen {HLD}")
        else:
            a(f"s_add_u32 m0, s{sL}, {(e&3)*8192+tt*1024}\ns_add_u32 s{sT}, s{sB}, {e*4096+tt*32768}\nbuffer_load_dwordx4 v3, s[{R.SWS}:{R.SWS+3}], s{sT} offen {HLD} lds")
    issued=0
    if mode=="dma": LA=min(LA,6)
    while issued<LA: ld(issued); issued+=1
    a(f"v_add_u32 v4, s{sL}, v3")
    for e in range(8):
        need=2*e+2
        a(f"s_waitcnt vmcnt({max(issued-need,0)})")
        if mode=="reg":
            for tt in range(2):
                a(f"ds_write_b128 v4, {vr(OR+4*(2*e+tt),4)} offset:{(e&3)*8192+tt*1024}")
            while issued<min(16,need+LA): ld(issued); issued+=1
            a("s_waitcnt lgkmcnt(0)\ns_barrier")
        else:
            a("s_barrier")
            while issued<min(16,need+LA,2*(e+4)): ld(issued); issued+=1
    a.label(f"{name}_end")
    a.label(f"{name}_last")
    a("s_endpgm")

def gen_fused3(a, name, cfg):
    NS=3
    P3V=cfg.get("p3v",1)
    LDX=cfg.get("ldx",""); LDW=cfg.get("ldw","")
    STF="sc1"; HLD="sc1"
    OSTF=cfg.get("out_stflags","")
    XB=0; XS=16384; WB=NS*XS; WS_=24576
    a.raw(f".globl {name}\n.p2align 8\n.type {name},@function\n{name}:")
    sWAVE=20; sBR=21; sR=22; sG=23; sT=24; sT2=25
    SX=8; SW=12; SWS=16
    PTS=cfg.get("pts",["entry","p","loop","epi","b1","b2","kv","att","f2","end"])
    TIMER=cfg.get("timer","s_memrealtime")
    class PF0:
        on=cfg.get("prof",False)
        def flush(self,n,srd,vt,wave=0):
            if not self.on: return
            lab=a.newlabel("pf")
            a(f"""
            s_cmp_lg_u32 s{sWV}, {wave}
            s_cbranch_scc1 {lab}
            s_mov_b32 s4, s{sWSP}
            s_mov_b32 s5, s{sWSP+1}
            s_mov_b32 s6, {16<<20}
            s_mov_b32 s7, 0x20000
            s_lshl_b32 s24, s2, 6
            s_add_u32 s24, s24, {14<<20}
            v_lshlrev_b32 v2, 2, v1
            s_mov_b64 exec, 0xffff
            buffer_store_dword v247, v2, s[4:7], s24 offen
            s_mov_b64 exec, -1
            {lab}:
            """)
    pf0=PF0()
    class PF:
        on=pf0.on
        def pt(self,n):
            if self.on and n in PTS:
                a(f"{TIMER} s[100:101]\ns_waitcnt lgkmcnt(0)\nv_writelane_b32 v247, s100, {PTS.index(n)}")
    pf=PF()
    pf.pt("entry")
    a(f"""
    s_cmp_ge_u32 s2, 256
    s_cbranch_scc1 {name}_end
    s_load_dwordx4 s[28:31], s[0:1], 0
    s_load_dwordx4 s[32:35], s[0:1], 24
    s_load_dwordx2 s[{sAWO}:{sAWO+1}], s[0:1], 16
    s_load_dwordx2 s[{sBWO}:{sBWO+1}], s[0:1], 40
    s_load_dwordx4 s[{sOUT}:{sOUT+3}], s[0:1], 48
    s_load_dwordx2 s[{sWSP}:{sWSP+1}], s[0:1], 64
    v_lshrrev_b32 v2, 6, v0
    v_and_b32 v1, 63, v0
    s_and_b32 s{sT}, s2, 7
    v_readfirstlane_b32 s{sWAVE}, v2
    s_lshr_b32 s{sT2}, s2, 3
    s_and_b32 s{sBR}, s{sT}, 1
    s_lshr_b32 s{sT}, s{sT}, 1
    s_mov_b32 s{sP3BR}, s{sBR}
    s_lshl_b32 s{sP3T}, s{sT}, {3 if P3V==2 else 2}
    s_and_b32 s{sP3NS}, s{sT2}, {7 if P3V==2 else 3}
    s_add_u32 s{sP3T}, s{sP3T}, s{sP3NS}
    s_lshr_b32 s{sP3NS}, s{sT2}, {3 if P3V==2 else 2}
    s_and_b32 s{sR}, s{sT}, 1
    s_lshl_b32 s{sR}, s{sR}, 3
    s_lshr_b32 s{sG}, s{sT}, 1
    s_lshl_b32 s{sG}, s{sG}, 2
    s_and_b32 s{sT}, s{sT2}, 7
    s_add_u32 s{sR}, s{sR}, s{sT}
    s_lshr_b32 s{sT}, s{sT2}, 3
    s_add_u32 s{sG}, s{sG}, s{sT}
    s_mov_b32 s{sWV}, s{sWAVE}
    s_waitcnt lgkmcnt(0)
    s_cmp_eq_u32 s{sBR}, 0
    s_cselect_b32 s{SX}, s28, s32
    s_cselect_b32 s{SX+1}, s29, s33
    s_cselect_b32 s{SW}, s30, s34
    s_cselect_b32 s{SW+1}, s31, s35
    s_mov_b32 s{SX+2}, 0x200000
    s_mov_b32 s{SX+3}, 0x20000
    s_mov_b32 s{SW+2}, 0x180000
    s_mov_b32 s{SW+3}, 0x20000
    s_mov_b32 s{SWS}, s{sWSP}
    s_mov_b32 s{SWS+1}, s{sWSP+1}
    s_mov_b32 s{SWS+2}, {WS_USED}
    s_mov_b32 s{SWS+3}, 0x20000
    s_mov_b32 s4, {NONCE}
    v_mov_b32 v30, 0
    buffer_load_dword v31, v30, s[{SWS}:{SWS+3}], s4 offen sc1
    s_cmp_ge_u32 s{sWAVE}, 4
    s_cbranch_scc1 {name}_loader
    """)
    sTM=26; sFN=27
    vXA=4; vWA=8
    ACC=32
    def acc(tt,sec): return ACC+(tt*3+sec)*16
    FR=[128,148]
    def xf(s,tt): return FR[s]+4*tt
    def wf(s,sec): return FR[s]+8+4*sec
    if cfg.get("codepf"):
        nseg=cfg["codepf"]
        lab=a.newlabel("cpf")
        a(f"""
        s_cmp_lg_u32 s{sWAVE}, 1
        s_cbranch_scc1 {lab}
        s_lshr_b32 s4, s2, 3
        s_cmp_ge_u32 s4, {nseg}
        s_cbranch_scc1 {lab}
        s_lshl_b32 s6, s4, 13
        s_getpc_b64 s[4:5]
        {lab}_pc:
        s_sub_u32 s4, s4, {lab}_pc-{name}
        s_subb_u32 s5, s5, 0
        v_lshlrev_b32 v12, 7, v1
        v_add_u32 v12, s6, v12
        v_min_u32 v12, {name}_last-{name}, v12
        v_mov_b32 v13, s5
        v_add_co_u32 v12, vcc, s4, v12
        s_nop 1
        v_addc_co_u32 v13, vcc, 0, v13, vcc
        global_load_dword v14, v[12:13], off
        {lab}:
        """)
    a(f"""
    s_and_b32 s{sTM}, s{sWAVE}, 1
    s_lshr_b32 s{sFN}, s{sWAVE}, 1
    v_lshrrev_b32 v2, 5, v1                 ; hf
    v_and_b32 v3, 31, v1                    ; t31
    v_lshrrev_b32 v9, 1, v3
    v_and_b32 v9, 7, v9                     ; g
    s_lshl_b32 s{sT}, s{sTM}, 13
    v_lshlrev_b32 v10, 7, v3
    v_add_u32 v10, s{sT}, v10
    """)
    for ks in range(4):
        a(f"v_or_b32 v11, {2*ks}, v2\nv_xor_b32 v11, v11, v9\nv_lshl_add_u32 v{vXA+ks}, v11, 4, v10")
    a(f"""
    v_bfe_u32 v10, v1, 2, 2
    v_lshlrev_b32 v10, 7, v10
    v_lshl_add_u32 v10, v2, 10, v10
    v_bfe_u32 v11, v1, 4, 1
    v_lshlrev_b32 v11, 1, v11
    v_bfe_u32 v12, v1, 1, 1
    v_or_b32 v11, v11, v12
    s_lshl_b32 s{sT}, s{sFN}, 2
    v_or_b32 v11, s{sT}, v11
    v_bfe_u32 v12, v1, 3, 1
    v_lshlrev_b32 v12, 2, v12
    v_xor_b32 v11, v11, v12
    v_lshl_add_u32 v10, v11, 4, v10
    v_and_b32 v12, 1, v1
    v_lshl_add_u32 v10, v12, 3, v10
    v_add_u32 v{vWA}, {WB}, v10
    """)
    for r in range(ACC,ACC+96): a(f"v_mov_b32 v{r}, 0")
    a(f"""
    s_mov_b32 s58, {(-(NS-1)*XS)&0xffffffff:#x}
    s_mov_b32 s59, {XS}
    s_mov_b32 s60, {(-(NS-1)*WS_)&0xffffffff:#x}
    s_mov_b32 s61, {WS_}
    """)
    def reads(s, ks):
        L=[]
        L.append(f"ds_read_b128 {vr(xf(s,0),4)}, v{vXA+ks}")
        L.append(f"ds_read_b64_tr_b16 {vr(wf(s,0),2)}, v{vWA} offset:{ks*2048}")
        L.append(f"ds_read_b64_tr_b16 {vr(wf(s,0)+2,2)}, v{vWA} offset:{ks*2048+512}")
        L.append(f"ds_read_b128 {vr(xf(s,1),4)}, v{vXA+ks} offset:4096")
        for sec in (1,2):
            L.append(f"ds_read_b64_tr_b16 {vr(wf(s,sec),2)}, v{vWA} offset:{sec*8192+ks*2048}")
            L.append(f"ds_read_b64_tr_b16 {vr(wf(s,sec)+2,2)}, v{vWA} offset:{sec*8192+ks*2048+512}")
        return L
    def mfmas(s, br):
        L=[]
        for sec in range(3):
            for tt in range(2):
                featrow = (sec==0) or (sec==1 and br==1)
                A_,B_ = (wf(s,sec),xf(s,tt)) if featrow else (xf(s,tt),wf(s,sec))
                if cfg.get("mf16test"):
                    o=acc(tt,sec)+8*s
                    L.append(f"v_mfma_f32_16x16x32_bf16 {vr(o,4)}, {vr(A_,4)}, {vr(B_,4)}, {vr(o,4)}\nv_mfma_f32_16x16x32_bf16 {vr(o+4,4)}, {vr(B_,4)}, {vr(A_,4)}, {vr(o+4,4)}")
                else:
                    L.append(f"v_mfma_f32_32x32x16_bf16 {vr(acc(tt,sec),16)}, {vr(A_,4)}, {vr(B_,4)}, {vr(acc(tt,sec),16)}")
        return L
    def step(s, br, rd):
        M=mfmas(s,br)
        if rd:
            a(M[0]); a(rd[0]); a(rd[1]); a(rd[2])
            a(M[1]); a(rd[3]); a(rd[4]); a(rd[5])
            a(M[2]); a(rd[6]); a(rd[7])
            a(M[3]); a(M[4]); a(M[5])
        else:
            for m in M: a(m)
    sCNT=38; sSTG=39; sDX=40; sDW=41
    for br in (0,1):
        bn="AB"[br]
        if br==0: a(f"s_cmp_eq_u32 s{sBR}, 1\ns_cbranch_scc1 {name}_cB")
        else: a.label(f"{name}_cB")
        a(f"s_mov_b32 s{sCNT}, 0\ns_mov_b32 s{sSTG}, 0\ns_waitcnt vmcnt(0)\nv_readfirstlane_b32 s{sN}, v31\ns_nop 3\ns_add_u32 s{sN}, s{sN}, 1")
        a("s_barrier")
        pf.pt("p")
        for l in reads(0,0): a(l)
        a.label(f"{name}_loop{bn}")
        for ks in range(3):
            a("s_waitcnt lgkmcnt(0)")
            step(ks&1, br, reads((ks+1)&1, ks+1))
        a(f"""
        s_add_u32 s{sSTG}, s{sSTG}, 1
        s_cmp_eq_u32 s{sSTG}, {NS}
        s_cselect_b32 s{sDX}, s58, s59
        s_cselect_b32 s{sDW}, s60, s61
        s_cselect_b32 s{sSTG}, 0, s{sSTG}
        s_waitcnt lgkmcnt(0)
        s_barrier
        """)
        if cfg.get("chunkstamps"):
            for c in range(7):
                lab=a.newlabel("cs")
                a(f"s_cmp_lg_u32 s{sCNT}, {c}\ns_cbranch_scc1 {lab}")
                pf.pt(f"c{c}")
                a.label(lab)
        for ks in range(4): a(f"v_add_u32 v{vXA+ks}, s{sDX}, v{vXA+ks}")
        a(f"v_add_u32 v{vWA}, s{sDW}, v{vWA}")
        step(1, br, reads(0,0))
        a(f"""
        s_add_u32 s{sCNT}, s{sCNT}, 1
        s_cmp_lt_u32 s{sCNT}, 7
        s_cbranch_scc1 {name}_loop{bn}
        """)
        if br==0:
            a(f"v_mov_b32 v12, {XFL}\nv_mov_b32 v14, 0\nv_mov_b32 v15, 0\nds_write_b64 v12, v[14:15]")
        for ks in range(3):
            a("s_waitcnt lgkmcnt(0)")
            step(ks&1, br, reads((ks+1)&1, ks+1))
        a("s_waitcnt lgkmcnt(0)")
        step(1, br, [])
        a("s_barrier")
        pf.pt("loop")
        T0=128
        sOFF=42; sH=43; sTB=44
        a(f"""
        s_lshl_b32 s{sH}, s{sG}, 2
        s_lshl_b32 s{sT}, s{sFN}, 1
        s_add_u32 s{sH}, s{sH}, s{sT}
        s_lshl_b32 s{sTB}, s{sR}, 2
        s_lshl_b32 s{sT}, s{sTM}, 1
        s_add_u32 s{sTB}, s{sTB}, s{sT}
        s_lshl_b32 s{sOFF}, s{sH}, 16
        s_lshl_b32 s{sT}, s{sTB}, 10
        s_add_u32 s{sOFF}, s{sOFF}, s{sT}
        v_lshlrev_b32 v9, 4, v1
        """)
        if br==1:
            a(f"s_mov_b32 s46, {f2u(CSCALE):#x}\ns_mov_b32 s47, {f2u(CSCALE):#x}")
            a(f"""
            v_bfe_u32 v10, v1, 4, 1
            v_lshlrev_b32 v10, 16, v10
            v_lshrrev_b32 v11, 5, v1
            v_lshl_add_u32 v10, v11, 8, v10
            v_and_b32 v11, 15, v1
            v_lshl_add_u32 v10, v11, 4, v10
            s_nop 7
            """)
            tmp=T0
            for tt in range(2):
                b=acc(tt,1)
                for i in range(8): a(f"v_cvt_pk_bf16_f32 v{tmp+i}, v{b+2*i}, v{b+2*i+1}")
                a(f"s_add_u32 s{sT}, s{sOFF}, {KF+tt*1024}")
                a(f"buffer_store_dwordx4 {vr(tmp,4)}, v9, s[{SWS}:{SWS+3}], s{sT} offen {STF}")
                a(f"s_add_u32 s{sT2}, s{sOFF}, {KF+tt*1024+65536}")
                a(f"buffer_store_dwordx4 {vr(tmp+4,4)}, v9, s[{SWS}:{SWS+3}], s{sT2} offen {STF}")
                tmp+=8
            for tt in range(2):
                b=acc(tt,2)
                for i in range(8): a(f"v_cvt_pk_bf16_f32 v{tmp+i}, v{b+2*i}, v{b+2*i+1}")
                a(f"s_add_u32 s{sT}, s{sOFF}, {VF+tt*1024}")
                a(f"buffer_store_dwordx4 {vr(tmp,4)}, v10, s[{SWS}:{SWS+3}], s{sT} offen {STF}")
                a(f"buffer_store_dwordx4 {vr(tmp+4,4)}, v10, s[{SWS}:{SWS+3}], s{sT} offen offset:512 {STF}")
                tmp+=8
            for tt in range(2):
                b=acc(tt,0)
                for i in range(8): a(f"v_pk_mul_f32 {vr(b+2*i,2)}, {vr(b+2*i,2)}, s[46:47]")
                for i in range(8): a(f"v_cvt_pk_bf16_f32 v{tmp+i}, v{b+2*i}, v{b+2*i+1}")
                a(f"s_add_u32 s{sT}, s{sOFF}, {QF+tt*1024}")
                a(f"buffer_store_dwordx4 {vr(tmp,4)}, v9, s[{SWS}:{SWS+3}], s{sT} offen {STF}")
                a(f"s_add_u32 s{sT2}, s{sOFF}, {QF+tt*1024+65536}")
                a(f"buffer_store_dwordx4 {vr(tmp+4,4)}, v9, s[{SWS}:{SWS+3}], s{sT2} offen {STF}")
                tmp+=8
            a(f"""
            s_lshl_b32 s{sT}, s{sG}, 1
            s_add_u32 s{sT}, s{sT}, s{sFN}
            s_mul_i32 s{sT}, s{sT}, {ROW}
            s_lshl_b32 s{sT2}, s{sR}, 1
            s_add_u32 s{sT2}, s{sT2}, s{sTM}
            s_lshl_b32 s{sT2}, s{sT2}, 7
            s_add_u32 s{sT}, s{sT}, s{sT2}
            s_add_u32 s{sT2}, s{sT}, {FKV}
            s_add_u32 s{sT}, s{sT}, {FQ}
            v_mov_b32 v12, 0
            v_mov_b32 v13, s{sN}
            s_waitcnt vmcnt(4)
            buffer_store_dword v13, v12, s[{SWS}:{SWS+3}], s{sT2} offen sc1
            """)
            pf.pt("fkv")
            a(f"""
            s_waitcnt vmcnt(1)
            buffer_store_dword v13, v12, s[{SWS}:{SWS+3}], s{sT} offen sc1
            """)
            a(f"s_branch {name}_p1done")
        else:
            a(f"""
            s_mov_b32 s46, {f2u(LOG2E):#x}
            s_mov_b32 s47, {f2u(LOG2E):#x}
            s_mov_b32 s48, 1.0
            s_mov_b32 s49, 1.0
            s_mov_b32 s50, {f2u(1e-6):#x}
            s_mov_b32 s51, {f2u(1e-6):#x}
            s_mov_b32 s52, 0x0000ffff
            s_mov_b32 s53, 0x0000ffff
            v_mov_b32 v20, 0x3f803f80
            v_mov_b32 v21, 0x3f803f80
            v_mov_b32 v22, 0x3f803f80
            v_mov_b32 v23, 0x3f803f80
            s_nop 4
            """)
            U=168
            def phi(b):
                for i in range(8): a(f"v_pk_mul_f32 {vr(U+2*i,2)}, {vr(b+2*i,2)}, s[46:47]")
                for i in range(16): a(f"v_exp_f32 v{U+i}, v{U+i} clamp")
                for i in range(8): a(f"v_pk_add_f32 {vr(b+2*i,2)}, {vr(b+2*i,2)}, s[48:49]")
                for i in range(16): a(f"v_max_f32 v{b+i}, v{b+i}, v{U+i}")
                for i in range(8): a(f"v_pk_add_f32 {vr(b+2*i,2)}, {vr(b+2*i,2)}, s[50:51]")
            PK=[128,136]; VV=[144,152]; D=184; D2=200
            for tt in range(2):
                b=acc(tt,2)
                for i in range(8): a(f"v_cvt_pk_bf16_f32 v{VV[tt]+i}, v{b+2*i}, v{b+2*i+1}")
            mq=[]
            for tt in range(2):
                b=acc(tt,1)
                phi(b)
                for i in range(8): a(f"v_cvt_pk_bf16_f32 v{PK[tt]+i}, v{b+2*i}, v{b+2*i+1}")
                a("s_nop 1")
                for m in range(2):
                    c1 = "0" if (tt==0 and m==0) else vr(D,16)
                    c2 = "0" if (tt==0 and m==0) else vr(D2,16)
                    a(f"v_mfma_f32_32x32x16_bf16 {vr(D,16)}, {vr(PK[tt]+4*m,4)}, {vr(VV[tt]+4*m,4)}, {c1}")
                    a(f"v_mfma_f32_32x32x16_bf16 {vr(D2,16)}, {vr(PK[tt]+4*m,4)}, v[20:23], {c2}")
            a("s_nop 15")
            for r in range(8):  a(f"v_cndmask_b32_e64 v{D+r}, v{D2+r}, v{D+r}, s[52:53]")
            for r in range(8,16): a(f"v_cndmask_b32_e64 v{D+r}, v{D+r}, v{D2+r}, s[52:53]")
            Lx=a.newlabel("xw"); Lxd=a.newlabel("xd")
            a(f"""
            s_lshl_b32 s{sT}, s{sFN}, 12
            s_add_u32 s{sT}, s{sT}, {EXL}
            v_add_u32 v10, s{sT}, v9
            s_lshl_b32 s{sT}, s{sFN}, 2
            s_add_u32 s{sT}, s{sT}, {XFL}
            v_mov_b32 v11, s{sT}
            s_cmp_eq_u32 s{sTM}, 0
            s_cbranch_scc1 {name}_Ard
            """)
            for q in range(4): a(f"ds_write_b128 v10, {vr(D+4*q,4)} offset:{q*1024}")
            a(f"""
            s_waitcnt lgkmcnt(0)
            v_mov_b32 v12, 1
            ds_write_b32 v11, v12
            {name}_Ard:
            """)
            tmp=216
            def qpart(tt,tmp):
                b=acc(tt,0)
                phi(b)
                for i in range(8): a(f"v_cvt_pk_bf16_f32 v{tmp+i}, v{b+2*i}, v{b+2*i+1}")
                a(f"s_add_u32 s{sT}, s{sOFF}, {PQ+tt*1024}")
                a(f"buffer_store_dwordx4 {vr(tmp,4)}, v9, s[{SWS}:{SWS+3}], s{sT} offen {STF}")
                a(f"s_add_u32 s{sT2}, s{sOFF}, {PQ+tt*1024+65536}")
                a(f"buffer_store_dwordx4 {vr(tmp+4,4)}, v9, s[{SWS}:{SWS+3}], s{sT2} offen {STF}")
            qpart(0,216); qpart(1,128)
            a(f"""
            s_cmp_lg_u32 s{sTM}, 0
            s_cbranch_scc1 {name}_Aq
            s_mov_b32 s{sCNT2}, 0
            {Lx}:
            ds_read_b32 v12, v11
            s_waitcnt lgkmcnt(0)
            v_readfirstlane_b32 s{sT}, v12
            s_cmp_lg_u32 s{sT}, 0
            s_cbranch_scc1 {Lxd}
            s_add_u32 s{sCNT2}, s{sCNT2}, 1
            s_cmp_lt_u32 s{sCNT2}, 100000
            s_cbranch_scc1 {Lx}
            {Lxd}:
            """)
            for q in range(4): a(f"ds_read_b128 {vr(D2+4*q,4)}, v10 offset:{q*1024}")
            a(f"""
            v_and_b32 v11, 31, v1
            v_lshrrev_b32 v12, 5, v1
            v_and_b32 v13, 15, v1
            v_lshlrev_b32 v13, 5, v13
            v_lshl_add_u32 v13, v12, 9, v13
            v_lshlrev_b32 v14, 5, v12
            v_add_u32 v14, 1024, v14
            v_mov_b32 v15, 0x40000000
            v_cmp_eq_u32 s[54:55], 16, v11
            v_cmp_eq_u32 s[56:57], 0, v11
            s_nop 1
            v_cndmask_b32_e64 v16, v15, v14, s[54:55]
            v_cndmask_b32_e64 v17, v15, v14, s[56:57]
            v_cndmask_b32_e64 v16, v16, v13, s[52:53]
            v_cndmask_b32_e64 v17, v13, v17, s[52:53]
            s_lshl_b32 s{sT}, s{sH}, 4
            s_add_u32 s{sT}, s{sT}, s{sR}
            s_mul_i32 s{sT}, s{sT}, 1088
            s_add_u32 s{sT}, s{sT}, {KVP}
            s_add_u32 s{sT2}, s{sT}, {16*1088}
            s_waitcnt lgkmcnt(0)
            """)
            for i in range(8): a(f"v_pk_add_f32 {vr(D+2*i,2)}, {vr(D+2*i,2)}, {vr(D2+2*i,2)}")
            a(f"""
            buffer_store_dwordx4 {vr(D,4)}, v16, s[{SWS}:{SWS+3}], s{sT} offen {STF}
            buffer_store_dwordx4 {vr(D+4,4)}, v16, s[{SWS}:{SWS+3}], s{sT} offen offset:16 {STF}
            buffer_store_dwordx4 {vr(D+8,4)}, v17, s[{SWS}:{SWS+3}], s{sT2} offen {STF}
            buffer_store_dwordx4 {vr(D+12,4)}, v17, s[{SWS}:{SWS+3}], s{sT2} offen offset:16 {STF}
            """)
            a.label(f"{name}_Aq")
            a(f"""
            s_lshl_b32 s{sT}, s{sG}, 1
            s_add_u32 s{sT}, s{sT}, s{sFN}
            s_mul_i32 s{sT}, s{sT}, {ROW}
            s_lshl_b32 s{sT2}, s{sR}, 1
            s_add_u32 s{sT2}, s{sT2}, s{sTM}
            s_lshl_b32 s{sT2}, s{sT2}, 7
            s_add_u32 s{sT}, s{sT}, s{sT2}
            s_add_u32 s{sT}, s{sT}, {FA}
            v_mov_b32 v12, 0
            v_mov_b32 v13, s{sN}
            """)
            pf.pt("fkv")
            a(f"""
            s_waitcnt vmcnt(0)
            buffer_store_dword v13, v12, s[{SWS}:{SWS+3}], s{sT} offen sc1
            """)
            a(f"s_branch {name}_p1done")
    a.label(f"{name}_loader")
    sE=26; sXB=27; sWBs=38; sL=39
    a(f"""
    s_sub_u32 s{sE}, s{sWAVE}, 4
    v_lshrrev_b32 v2, 3, v1
    v_and_b32 v3, 7, v1
    v_lshrrev_b32 v4, 1, v2
    s_and_b32 s{sT}, s{sE}, 1
    s_lshl_b32 s{sT}, s{sT}, 2
    v_or_b32 v4, s{sT}, v4
    v_xor_b32 v4, v4, v3
    v_lshlrev_b32 v5, 10, v2
    v_lshl_add_u32 v5, v4, 4, v5            ; x voffset
    v_bfe_u32 v4, v1, 4, 1
    v_lshlrev_b32 v4, 2, v4
    v_xor_b32 v4, v4, v3
    v_mul_u32_u24 v6, 3072, v2
    v_lshl_add_u32 v6, v4, 4, v6            ; w voffset
    v_lshlrev_b32 v7, 10, v2
    v_lshl_add_u32 v7, v4, 4, v7
    s_lshl_b32 s{sXB}, s{sR}, 17
    s_lshl_b32 s{sT}, s{sE}, 13
    s_add_u32 s{sXB}, s{sXB}, s{sT}
    s_lshl_b32 s{sWBs}, s{sG}, 7
    s_mul_i32 s{sT}, s{sE}, 24576
    s_add_u32 s{sWBs}, s{sWBs}, s{sT}
    s_lshl_b32 s{sL}, s{sE}, 10
    """)
    sROT=40; sXC=41; sWC=42
    a(f"s_mov_b32 s{sROT}, 0")
    for (src,sh,mask,mul) in cfg.get("k1_rot",[["R",0,3,2],["G",0,3,1]]):
        r={"R":sR,"G":sG}[src]
        a(f"s_lshr_b32 s{sT}, s{r}, {sh}\ns_and_b32 s{sT}, s{sT}, {mask}\ns_mul_i32 s{sT}, s{sT}, {mul}\ns_add_u32 s{sROT}, s{sROT}, s{sT}")
    def issue(c, part=None):
        st=c%NS
        L=[]
        hdr=f"""
        s_add_u32 s{sT}, s{sROT}, {c}
        s_and_b32 s{sT}, s{sT}, 7
        s_lshl_b32 s{sXC}, s{sT}, 7
        s_add_u32 s{sXC}, s{sXC}, s{sXB}
        s_mul_i32 s{sWC}, s{sT}, 196608
        s_add_u32 s{sWC}, s{sWC}, s{sWBs}
        """
        for i in range(4):
            L.append(f"s_add_u32 m0, s{sL}, {XB+st*XS+i*4096}\ns_add_u32 s{sT}, s{sXC}, {i*32768}\nbuffer_load_dwordx4 v5, s[{SX}:{SX+3}], s{sT} offen {LDX} lds")
        for jj in range(2):
            for sec in range(3):
                L.append(f"s_add_u32 m0, s{sL}, {WB+st*WS_+sec*8192+jj*4096}\ns_add_u32 s{sT}, s{sWC}, {jj*4*24576+sec*1024}\nbuffer_load_dwordx4 v6, s[{SW}:{SW+3}], s{sT} offen {LDW} lds")
        lo,hi = part if part else (0,10)
        if lo==0: a(hdr)
        for l in L[lo:hi]: a(l)
    k0=cfg.get("pro_k",5)
    issue(0); issue(1,(0,k0))
    a(f"s_waitcnt vmcnt({k0})\nv_readfirstlane_b32 s{sN}, v31\ns_nop 3\ns_add_u32 s{sN}, s{sN}, 1\ns_barrier")
    if k0<10: issue(1,(k0,10))
    issue(2)
    for c in range(7):
        issued=min(8,c+NS)
        rem=10*(issued-(c+2))
        if c==6: rem=16 if P3V==1 else 17
        a(f"s_waitcnt vmcnt({rem})\ns_barrier")
        if c+NS<8: issue(c+NS)
        if c==5:
            a(f"""
            s_cmp_eq_u32 s{sP3BR}, 0
            s_cselect_b32 s28, s{sAWO}, s{sBWO}
            s_cselect_b32 s29, s{sAWO+1}, s{sBWO+1}
            s_mov_b32 s30, 0x80000
            s_mov_b32 s31, 0x20000
            s_lshl_b32 s{sXC}, s{sP3NS}, {7 if P3V==1 else 8}
            s_lshl_b32 s{sT}, s{sE}, 13
            s_add_u32 s{sXC}, s{sXC}, s{sT}
            """)
            if P3V==1 and cfg.get("p3rot",0):
                a(f"s_lshl_b32 s{sXC}, s{sP3NS}, 7\ns_mul_i32 s{sWC}, s{sP3NS}, {2*cfg['p3rot']}\ns_add_u32 s{sWC}, s{sWC}, s{sE}")
                for u in range(16):
                    a(f"s_add_u32 m0, s{sL}, {WOL+u*4096}")
                    a(f"s_add_u32 s{sT}, s{sWC}, {4*u}\ns_and_b32 s{sT}, s{sT}, 63\ns_lshl_b32 s{sT}, s{sT}, 13\ns_add_u32 s{sT}, s{sT}, s{sXC}")
                    a(f"buffer_load_dwordx4 v7, s[28:31], s{sT} offen lds")
            else:
              for u in range(16):
                a(f"s_add_u32 m0, s{sL}, {WOL+u*4096}")
                a(f"s_add_u32 s{sT}, s{sXC}, {u*32768+(0 if P3V==1 else 128)}")
                a(f"buffer_load_dwordx4 v7, s[28:31], s{sT} offen lds")
            if P3V==2:
                a(f"""
                v_and_b32 v8, 15, v1
                s_lshl_b32 s{sT}, s{sE}, 4
                v_add_u32 v8, s{sT}, v8
                v_lshlrev_b32 v8, 10, v8
                s_bfe_u32 s{sT}, s2, 0x30003
                s_lshl_b32 s{sT}, s{sT}, 16
                s_lshl_b32 s{sXC}, s{sP3NS}, 8
                s_add_u32 s{sT}, s{sT}, s{sXC}
                buffer_load_dword v9, v8, s[28:31], s{sT} offen
                """)
    a("s_barrier")
    R=K2R
    def p2_roles():
        a(f"""
        s_mov_b32 s{R.sWAVE}, s{sWV}
        s_bfe_u32 s{R.sRB}, s2, 0x30003
        s_and_b32 s{R.sH}, s2, 7
        s_lshr_b32 s{R.sT}, s2, 6
        s_lshl_b32 s{R.sT}, s{R.sT}, 3
        s_add_u32 s{R.sH}, s{R.sH}, s{R.sT}
        v_lshlrev_b32 v3, 4, v1
        s_lshl_b32 s{R.sQB}, s{R.sRB}, 3
        s_add_u32 s{R.sQB}, s{R.sQB}, s{R.sWAVE}
        s_mov_b32 s{R.SWS}, s{sWSP}
        s_mov_b32 s{R.SWS+1}, s{sWSP+1}
        s_mov_b32 s{R.SWS+2}, {WS_USED}
        s_mov_b32 s{R.SWS+3}, 0x20000
        v_lshlrev_b32 v2, 7, v1
        s_lshr_b32 s12, s{R.sH}, 1
        s_mul_i32 s12, s12, {ROW}
        s_add_u32 s13, s12, {FA}
        s_lshl_b32 s{R.sT}, s{R.sRB}, 2
        """)
    sFA=12; sNEED=14
    p2_roles()
    a(f"""
    s_mov_b32 s{sNEED}, 0xff
    s_mov_b32 s{sNEED+1}, 0
    s_lshl_b64 s[{sNEED}:{sNEED+1}], s[{sNEED}:{sNEED+1}], s{R.sT}
    s_lshr_b64 s[{sNEED}:{sNEED+1}], s[{sNEED}:{sNEED+1}], 4
    s_add_u32 s{sFA}, s12, {FKV}
    """)
    k2_setup_consts(a,R)
    poll(a,"pb",R.SWS,sFA,sNEED,sNEED+1,12,2,sleep=cfg.get("sleep1",2))
    pf.pt("b2")
    a(f"s_lshl_b32 s{R.sBASE}, s{R.sH}, 16\ns_sub_u32 s29, s{sWV}, 4")
    for u in range(4):
        a(f"""
        s_lshl_b32 s{R.sT}, s29, 2
        s_add_u32 s{R.sT}, s{R.sT}, {u}
        s_lshl_b32 s{R.sT2}, s{R.sRB}, 3
        s_add_u32 s{R.sT2}, s{R.sT2}, s{R.sT}
        s_sub_i32 s{R.sT2}, s{R.sT2}, 8
        s_max_i32 s{R.sT2}, s{R.sT2}, 0
        s_lshl_b32 s{R.sT2}, s{R.sT2}, 10
        s_add_u32 s{R.sT2}, s{R.sT2}, s{R.sBASE}
        s_lshl_b32 s{R.sT}, s{R.sT}, 10
        s_add_u32 m0, s{R.sT}, {R.KL}
        s_add_u32 s28, s{R.sT2}, {KF}
        buffer_load_dwordx4 v3, s[{R.SWS}:{R.SWS+3}], s28 offen {HLD} lds
        s_add_u32 m0, s{R.sT}, {R.VL}
        s_add_u32 s28, s{R.sT2}, {VF}
        buffer_load_dwordx4 v3, s[{R.SWS}:{R.SWS+3}], s28 offen {HLD} lds
        """)
    a(f"s_branch {name}_p2go")
    a.label(f"{name}_p1done")
    pf.pt("epi")
    p2_roles()
    a(f"""
    s_mov_b32 s{sNEED}, 0xf
    s_mov_b32 s{sNEED+1}, 0
    s_lshl_b64 s[{sNEED}:{sNEED+1}], s[{sNEED}:{sNEED+1}], s{R.sT}
    s_add_u32 s{sFA}, s12, {FQ}
    """)
    k2_setup_consts(a,R)
    poll(a,"pq",R.SWS,sFA,sNEED,sNEED+1,12,2,sleep=cfg.get("sleep1",2))
    pf.pt("bq")
    for u in range(2):
        a(f"""
        s_add_u32 s{R.sT}, s{sWV}, {4*u}
        s_lshl_b32 s{R.sT2}, s{R.sRB}, 3
        s_add_u32 s{R.sT2}, s{R.sT2}, s{R.sT}
        s_lshl_b32 s{R.sT2}, s{R.sT2}, 10
        s_lshl_b32 s28, s{R.sH}, 16
        s_add_u32 s{R.sT2}, s{R.sT2}, s28
        s_add_u32 s28, s{R.sT2}, {QF}
        s_lshl_b32 s{R.sT}, s{R.sT}, 10
        s_add_u32 m0, s{R.sT}, {QL}
        s_nop 0
        buffer_load_dwordx4 v3, s[{R.SWS}:{R.SWS+3}], s28 offen {HLD} lds
        """)
    a.label(f"{name}_p2go")
    a("s_waitcnt vmcnt(0) lgkmcnt(0)\ns_barrier")
    pf.pt("kv")
    a(f"""
    s_lshl_b32 s{R.sT}, s{sWV}, 10
    s_add_u32 s{R.sT}, s{R.sT}, {QL}
    v_add_u32 v12, s{R.sT}, v3
    ds_read_b128 {vr(R.vQ,4)}, v12
    s_waitcnt lgkmcnt(0)
    """)
    def h_pre():
        a(f"s_mov_b32 exec_lo, -1\ns_mov_b32 exec_hi, 0\nbuffer_load_dword v13, v2, s[{R.SWS}:{R.SWS+3}], s13 offen sc1\ns_mov_b64 exec, -1")
    def h_post0():
        pf.pt("post0")
        D=a.newlabel("pa")
        a(f"""
        s_mov_b32 s{sNEED}, -1
        s_mov_b32 s{sNEED+1}, 0
        s_waitcnt vmcnt(0)
        v_cmp_eq_u32 vcc, s{sN}, v13
        s_and_b64 vcc, vcc, s[{sNEED}:{sNEED+1}]
        s_cmp_eq_u64 vcc, s[{sNEED}:{sNEED+1}]
        s_cbranch_scc1 {D}
        """)
        poll(a,"pa2",R.SWS,13,sNEED,sNEED+1,13,2)
        a.label(D)
        pf.pt("aflag")
        k2_load_a(a,R,HLD,name)
    k2_attn(a,R,name,cfg,pf,hooks={"pre":h_pre,"post0":h_post0})
    a(f"""
    s_lshl_b32 s{R.sT}, s{R.sQB}, 5
    s_add_u32 s{R.sT}, s{R.sT}, s{R.sH}
    s_lshl_b32 s{R.sT}, s{R.sT}, 10
    s_add_u32 s{R.sOB}, s{R.sT}, {OF}
    s_add_u32 s{R.sT}, s{R.sOB}, {64*32*1024}
    buffer_store_dwordx4 {vr(R.TMP,4)}, v3, s[{R.SWS}:{R.SWS+3}], s{R.sT} offen {STF}
    """)
    pf.pt("att")
    a("s_waitcnt vmcnt(1)\ns_barrier")
    pf.pt("kvp")
    k2_apart(a,R,name)
    pf.pt("apart")
    a(f"buffer_store_dwordx4 {vr(R.TMP+4,4)}, v3, s[{R.SWS}:{R.SWS+3}], s{R.sOB} offen {STF}")
    a("s_waitcnt vmcnt(0)")
    pf.pt("odrain")
    a("s_barrier")
    pf.pt("b5")
    if P3V==2:
        WOL0=32768
        a(f"""
        s_cmp_lt_u32 s{sWV}, 4
        s_cbranch_scc1 {name}_wod
        v_lshrrev_b32 v4, 3, v1
        v_and_b32 v5, 7, v1
        v_bfe_u32 v6, v1, 4, 1
        v_lshlrev_b32 v6, 2, v6
        v_xor_b32 v6, v6, v5
        v_lshlrev_b32 v7, 10, v4
        v_lshl_add_u32 v7, v6, 4, v7
        s_cmp_eq_u32 s{sP3BR}, 0
        s_cselect_b32 s16, s{sAWO}, s{sBWO}
        s_cselect_b32 s17, s{sAWO+1}, s{sBWO+1}
        s_mov_b32 s18, 0x80000
        s_mov_b32 s19, 0x20000
        s_sub_u32 s29, s{sWV}, 4
        s_lshl_b32 s28, s{sP3NS}, 8
        s_lshl_b32 s{R.sT}, s29, 13
        s_add_u32 s28, s28, s{R.sT}
        s_lshl_b32 s29, s29, 10
        """)
        for u in range(16):
            a(f"s_add_u32 m0, s29, {WOL0+u*4096}\ns_add_u32 s{R.sT}, s28, {u*32768}\nbuffer_load_dwordx4 v7, s[16:19], s{R.sT} offen lds")
        a.label(f"{name}_wod")
    a(f"""
    s_cmp_lg_u32 s{sWV}, 0
    s_cbranch_scc1 {name}_nf2
    s_mul_i32 s{R.sT}, s{R.sRB}, {F2STR}
    s_lshl_b32 s{R.sT2}, s{R.sH}, 7
    s_add_u32 s{R.sT}, s{R.sT}, s{R.sT2}
    s_add_u32 s{R.sT}, s{R.sT}, {F2}
    v_mov_b32 v12, 0
    v_mov_b32 v13, s{sN}
    buffer_store_dword v13, v12, s[{R.SWS}:{R.SWS+3}], s{R.sT} offen sc1
    s_lshr_b32 s{sFA}, s{sP3T}, {2 if P3V==2 else 1}
    s_mul_i32 s{sFA}, s{sFA}, {F2STR}
    s_add_u32 s{sFA}, s{sFA}, {F2}
    s_mov_b32 s{sNEED}, -1
    s_mov_b32 s{sNEED+1}, 0
    """)
    poll(a,"p3",R.SWS,sFA,sNEED,sNEED+1,12,2,sleep=cfg.get("sleep2",4))
    a.label(f"{name}_nf2")
    if P3V==2: a("s_waitcnt vmcnt(0)")
    a("s_barrier")
    pf.pt("f2")
    if pf.on and cfg.get("pwave",0)>=4:
        pf0.flush(len(PTS),4,2,wave=cfg["pwave"])
    if P3V==2:
        gen_p3v2(a,name,cfg,R,pf,pf0,PTS,OSTF,HLD)
        return dict(name=name, grid=256, block=512, lds=163840, vgpr=248, sgpr=102)
    a(f"s_cmp_ge_u32 s{sWV}, 4\ns_cbranch_scc1 {name}_end")
    SOUT=16; sTB=27; sOB=28
    a(f"""
    s_lshl_b32 s{sTB}, s{sP3T}, 2
    s_add_u32 s{sTB}, s{sTB}, s{sWV}
    s_lshl_b32 s{sT}, s{sP3BR}, 6
    s_add_u32 s{sT}, s{sT}, s{sTB}
    s_lshl_b32 s{sOB}, s{sT}, 15
    s_add_u32 s{sOB}, s{sOB}, {OF}
    """)
    OFR=64; ACC3=32; WFR=[8,16]; vWA3=5
    DEPTH=cfg.get("p3_depth",10)
    if cfg.get("p3rot",0): a(f"s_mul_i32 s29, s{sP3NS}, {cfg['p3rot']}")
    def oload(h):
        if cfg.get("p3rot",0):
            a(f"s_add_u32 s{sT2}, s29, {h}\ns_and_b32 s{sT2}, s{sT2}, 31\ns_lshl_b32 s{sT2}, s{sT2}, 10\ns_add_u32 s{sT2}, s{sT2}, s{sOB}\nbuffer_load_dwordx4 {vr(OFR+4*h,4)}, v3, s[{R.SWS}:{R.SWS+3}], s{sT2} offen {HLD}")
        else:
            a(f"s_add_u32 s{sT2}, s{sOB}, {h*1024}\nbuffer_load_dwordx4 {vr(OFR+4*h,4)}, v3, s[{R.SWS}:{R.SWS+3}], s{sT2} offen {HLD}")
    for h in range(DEPTH): oload(h)
    a(f"""
    s_mov_b32 s{SOUT}, s{sOUT}
    s_mov_b32 s{SOUT+1}, s{sOUT+1}
    s_mov_b32 s{SOUT+2}, 0x400000
    s_mov_b32 s{SOUT+3}, 0x20000
    v_bfe_u32 v6, v1, 2, 2
    v_lshrrev_b32 v7, 5, v1
    v_lshl_add_u32 v6, v7, 2, v6
    v_lshlrev_b32 v6, 7, v6
    v_and_b32 v7, 1, v1
    v_lshlrev_b32 v7, 1, v7
    v_bfe_u32 v24, v1, 4, 1
    v_or_b32 v7, v7, v24
    v_bfe_u32 v24, v1, 3, 1
    v_lshlrev_b32 v24, 2, v24
    v_xor_b32 v7, v7, v24
    v_lshl_add_u32 v6, v7, 4, v6
    v_bfe_u32 v24, v1, 1, 1
    v_lshl_add_u32 v{vWA3}, v24, 3, v6
    v_xor_b32 v{vWA3+1}, 64, v{vWA3}
    v_add_u32 v{vWA3}, {WOL}, v{vWA3}
    v_add_u32 v{vWA3+1}, {WOL}, v{vWA3+1}
    """)
    def reads3(s,h):
        L=[]
        for nt in range(2):
            for t in range(2):
                L.append(f"ds_read_b64_tr_b16 {vr(WFR[s]+4*nt+2*t,2)}, v{vWA3+nt} offset:{h*2048+t*1024}")
        return L
    for l in reads3(0,0): a(l)
    for h in range(32):
        s=h&1
        if h==1: pf.pt("p3b0")
        nxt=reads3(s^1,h+1) if h<31 else []
        for l in nxt: a(l)
        issued=min(32,h+DEPTH)
        a(f"s_waitcnt vmcnt({issued-h-1}) lgkmcnt({len(nxt)})")
        for nt in range(2):
            c = "0" if h==0 else vr(ACC3+16*nt,16)
            a(f"v_mfma_f32_32x32x16_bf16 {vr(ACC3+16*nt,16)}, {vr(WFR[s]+4*nt,4)}, {vr(OFR+4*h,4)}, {c}")
        if h+DEPTH<32: oload(h+DEPTH)
    pf.pt("p3loop")
    a(f"""
    s_lshl_b32 s{sT}, s{sTB}, 16
    s_lshl_b32 s{sT2}, s{sP3BR}, 10
    s_add_u32 s{sT}, s{sT}, s{sT2}
    s_lshl_b32 s{sT2}, s{sP3NS}, 7
    s_add_u32 s{sT}, s{sT}, s{sT2}
    v_and_b32 v6, 31, v1
    v_lshlrev_b32 v6, 11, v6
    v_lshrrev_b32 v7, 5, v1
    v_lshl_add_u32 v6, v7, 5, v6
    s_nop 7
    """)
    if cfg.get("outT"):
        a(f"""
        s_lshl_b32 s{sT2}, s{sWV}, 12
        v_and_b32 v8, 31, v1
        v_lshlrev_b32 v8, 7, v8                    ; token*128
        v_lshrrev_b32 v9, 5, v1
        v_lshl_add_u32 v8, v9, 5, v8               ; + hf*32
        v_and_b32 v9, 7, v1
        v_lshlrev_b32 v9, 4, v9
        v_add_u32 v8, s{sT2}, v8
        """)
        for nt in range(2):
            b=ACC3+16*nt; T=16+8*nt
            for i in range(8): a(f"v_cvt_pk_bf16_f32 v{T+i}, v{b+2*i}, v{b+2*i+1}")
        for nt in range(2):
            for u in range(2):
                a(f"v_add_u32 v10, {nt*64+u*16}, v8\nv_xor_b32 v10, v10, v9\nds_write_b128 v10, {vr(16+8*nt+4*u,4)}")
        a(f"""
        v_lshrrev_b32 v11, 3, v1
        v_and_b32 v12, 7, v1                       ; chunk
        v_xor_b32 v13, v12, v11
        v_lshlrev_b32 v13, 4, v13
        v_lshl_add_u32 v13, v11, 7, v13
        v_add_u32 v13, s{sT2}, v13
        v_lshlrev_b32 v14, 11, v11
        v_lshl_add_u32 v14, v12, 4, v14
        s_waitcnt lgkmcnt(0)
        """)
        for i in range(4): a(f"ds_read_b128 {vr(32+4*i,4)}, v13 offset:{i*1024}")
        for i in range(4):
            a(f"s_waitcnt lgkmcnt({3-i})\ns_add_u32 s{sT2}, s{sT}, {i*8*2048}\nbuffer_store_dwordx4 {vr(32+4*i,4)}, v14, s[{SOUT}:{SOUT+3}], s{sT2} offen {OSTF}")
    else:
      for nt in range(2):
        b=ACC3+16*nt; T=8+8*nt
        for i in range(8): a(f"v_cvt_pk_bf16_f32 v{T+i}, v{b+2*i}, v{b+2*i+1}")
        a(f"buffer_store_dwordx4 {vr(T,4)}, v6, s[{SOUT}:{SOUT+3}], s{sT} offen offset:{nt*64} {OSTF}")
        a(f"buffer_store_dwordx4 {vr(T+4,4)}, v6, s[{SOUT}:{SOUT+3}], s{sT} offen offset:{nt*64+16} {OSTF}")
    a(f"""
    s_cmp_lg_u32 s2, 0
    s_cbranch_scc1 {name}_nn
    s_cmp_lg_u32 s{sWV}, 0
    s_cbranch_scc1 {name}_nn
    s_mov_b32 s{sT}, {NONCE}
    v_mov_b32 v12, 0
    v_mov_b32 v13, s{sN}
    buffer_store_dword v13, v12, s[{R.SWS}:{R.SWS+3}], s{sT} offen sc1
    {name}_nn:
    """)
    if pf.on:
        a("s_waitcnt vmcnt(0)"); pf.pt("end"); pf0.flush(len(PTS),4,2,wave=cfg.get("pwave",0) if cfg.get("pwave",0)<4 else 99)
    a.label(f"{name}_end")
    a.label(f"{name}_last")
    a("s_endpgm")
    return dict(name=name, grid=256, block=512, lds=163840, vgpr=248, sgpr=104 if False else 102)
```

```python
from asmlib import *
from k1 import QF,KF,VF,PQ,OF,KVP,WS_USED
NEGBIG=-1.0e30

def diag_mask(r):
    m=0
    for l in range(64):
        b=8*(r>>2)+4*(l>>5)+(r&3)
        if b<=(l&31): m|=1<<l
    return m

KL=0; VL=16384; ONES=32768; KVL=ONES+9216; RED=KVL+17408; K2_LDS=RED+1088+192

class K2R:
    KL=KL; VL=VL; ONES=ONES; KVL=KVL; RED=RED; NP=16; KVPB=KVP
    SWS=8
    sWAVE=20; sRB=21; sH=22; sQB=23; sT=24; sT2=25; sTMIN=26; sBASE=27; sOB=30
    MASK=32
    vLANE=1; vL16=3; vQ=4; vPQ=8; PM=16; vKA=24; vVA=25; vKVA=26; vRA=27; MX=28
    KFr=32
    SA,SB,SC,SD=68,84,100,116
    M=132; NEG=148; O=164; P=180; P2=188; VA=196; VB=204; OA=212; TMP=228

def k2_setup_consts(a, R):
    sT,sT2=R.sT,R.sT2
    a(f"""
    v_mov_b32 v12, 0x3f803f80
    v_mov_b32 v13, 0x3f803f80
    v_mov_b32 v14, 0x3f803f80
    v_mov_b32 v15, 0x3f803f80
    s_lshl_b32 s{sT}, s{R.sWAVE}, 10
    s_add_u32 s{sT}, s{sT}, {R.ONES}
    v_add_u32 v16, s{sT}, v{R.vL16}
    ds_write_b128 v16, v[12:15]
    v_add_u32 v16, {R.ONES+8192}, v{R.vL16}
    ds_write_b128 v16, v[12:15]
    """)
    for r in range(16):
        m=diag_mask(r)
        a(f"s_mov_b32 s{R.MASK+2*r}, {m&0xffffffff:#x}\ns_mov_b32 s{R.MASK+2*r+1}, {m>>32:#x}")
    a("v_mov_b32 v24, 0xffff\nv_mov_b32 v25, 0xffff0000")
    for i in range(8):
        a(f"v_cndmask_b32_e64 v{R.PM+i}, 0, v24, s[{R.MASK+4*i}:{R.MASK+4*i+1}]")
        a(f"v_cndmask_b32_e64 v26, 0, v25, s[{R.MASK+4*i+2}:{R.MASK+4*i+3}]")
        a(f"v_or_b32 v{R.PM+i}, v{R.PM+i}, v26")
    a(f"""
    s_lshl_b32 s{sT}, s{R.sWAVE}, 10
    s_add_u32 s{sT2}, s{sT}, {R.KL}
    v_add_u32 v{R.vKA}, s{sT2}, v{R.vL16}
    v_and_b32 v28, 31, v{R.vLANE}             ; idx
    v_lshrrev_b32 v29, 5, v{R.vLANE}          ; hf
    v_lshlrev_b32 v30, 4, v28
    v_lshl_add_u32 v30, v29, 8, v30
    s_add_u32 s{sT2}, s{sT}, {R.VL}
    v_add_u32 v30, s{sT2}, v30
    v_subrev_u32 v31, 20, v28
    v_cmp_gt_u32 vcc, 8, v31
    v_mov_b32 v31, {R.ONES}
    v_mov_b32 v12, {R.ONES+64}
    v_cndmask_b32_e64 v31, v31, v12, vcc
    v_cmp_gt_u32 vcc, 16, v28
    s_nop 1
    v_cndmask_b32_e64 v{R.vVA}, v31, v30, vcc
    v_lshlrev_b32 v30, 5, v28
    v_lshl_add_u32 v30, v29, 9, v30
    v_lshlrev_b32 v31, 5, v29
    v_add_u32 v31, 1024, v31
    v_cndmask_b32_e64 v{R.vKVA}, v31, v30, vcc
    v_add_u32 v{R.vKVA}, {R.RED}, v{R.vKVA}
    s_sub_u32 s{R.sTMIN}, 8, s{R.sWAVE}
    s_cmp_eq_u32 s{R.sRB}, 0
    s_cselect_b32 s{R.sTMIN}, s{R.sTMIN}, 1
    """)

def k2_load_b(a, R, LDF):
    sT,sT2,SWS=R.sT,R.sT2,R.SWS
    a(f"""
    s_lshl_b32 s{R.sBASE}, s{R.sH}, 16            ; h*65536
    s_lshl_b32 s{sT}, s{R.sQB}, 10
    s_add_u32 s{sT}, s{sT}, s{R.sBASE}
    s_add_u32 s{sT2}, s{sT}, {QF}
    buffer_load_dwordx4 {vr(R.vQ,4)}, v{R.vL16}, s[{SWS}:{SWS+3}], s{sT2} offen {LDF}
    """)
    for u in range(2):
        a(f"""
        s_lshl_b32 s{sT}, s{R.sWAVE}, 1
        s_add_u32 s{sT}, s{sT}, {u}              ; slot
        s_lshl_b32 s{sT2}, s{R.sRB}, 3
        s_add_u32 s{sT2}, s{sT2}, s{sT}
        s_sub_i32 s{sT2}, s{sT2}, 8
        s_max_i32 s{sT2}, s{sT2}, 0              ; tile
        s_lshl_b32 s{sT2}, s{sT2}, 10
        s_add_u32 s{sT2}, s{sT2}, s{R.sBASE}
        s_lshl_b32 s{sT}, s{sT}, 10
        s_add_u32 m0, s{sT}, {R.KL}
        s_add_u32 s28, s{sT2}, {KF}
        buffer_load_dwordx4 v{R.vL16}, s[{SWS}:{SWS+3}], s28 offen {LDF} lds
        s_add_u32 m0, s{sT}, {R.VL}
        s_add_u32 s28, s{sT2}, {VF}
        buffer_load_dwordx4 v{R.vL16}, s[{SWS}:{SWS+3}], s28 offen {LDF} lds
        """)

def k2_load_a(a, R, LDF, name, pq=True):
    sT,sT2,SWS=R.sT,R.sT2,R.SWS
    a(f"""
    s_mul_i32 s28, s{R.sH}, 17408
    s_add_u32 s28, s28, {KVP}
    s_cmp_lg_u32 s{R.sWAVE}, 0
    s_cbranch_scc1 {name}_nokv16
    s_mov_b32 m0, {R.KVL+16*1024}
    s_add_u32 s{sT}, s28, {16*1024}
    buffer_load_dwordx4 v{R.vL16}, s[{SWS}:{SWS+3}], s{sT} offen {LDF} lds
    {name}_nokv16:
    s_lshl_b32 s{sT2}, s{R.sWAVE}, 10
    s_add_u32 m0, s{sT2}, {R.KVL}
    s_add_u32 s{sT}, s28, s{sT2}
    buffer_load_dwordx4 v{R.vL16}, s[{SWS}:{SWS+3}], s{sT} offen {LDF} lds
    s_add_u32 m0, s{sT2}, {R.KVL+8192}
    s_add_u32 s{sT}, s{sT}, 8192
    buffer_load_dwordx4 v{R.vL16}, s[{SWS}:{SWS+3}], s{sT} offen {LDF} lds
    """)
    if pq: a(f"""
    s_lshl_b32 s{sT}, s{R.sH}, 16
    s_lshl_b32 s{sT2}, s{R.sQB}, 10
    s_add_u32 s{sT}, s{sT}, s{sT2}
    s_add_u32 s{sT}, s{sT}, {PQ}
    buffer_load_dwordx4 {vr(R.vPQ,4)}, v{R.vL16}, s[{SWS}:{SWS+3}], s{sT} offen {LDF}
    """)

def k2_attn(a, R, name, cfg, pf=None, hooks=None):
    hooks=hooks or {}
    SA,SB,SC,SD,M,NEG,O,P,P2,VA,VB,TMP=R.SA,R.SB,R.SC,R.SD,R.M,R.NEG,R.O,R.P,R.P2,R.VA,R.VB,R.TMP
    vQ,vKA,vVA,MASK,PM,MX=R.vQ,R.vKA,R.vVA,R.MASK,R.PM,R.MX
    def kf(t): return R.KFr+4*t
    def mf(D,A_,B_,C): a(f"v_mfma_f32_32x32x16_bf16 {vr(D,16)}, {vr(A_,4)}, {vr(B_,4)}, {C if isinstance(C,str) else vr(C,16)}")
    def vreads(t,V):
        a(f"ds_read_b128 {vr(V,4)}, v{vVA} offset:{t*1024}")
        a(f"ds_read_b128 {vr(V+4,4)}, v{vVA} offset:{t*1024+512}")
    def chk(t,lab): a(f"s_cmp_gt_u32 s{R.sTMIN}, {t}\ns_cbranch_scc1 {lab}")
    def hook(k):
        if k in hooks: hooks[k]()
    FE=f"{name}_fend"; SLOW=f"{name}_slow"; EPI=f"{name}_epi"
    nomax=cfg.get("k2_nomax",True)
    if nomax:
        KA,KB,KC=kf(0),kf(1),kf(2)
        a(f"ds_read_b128 {vr(KA,4)}, v{vKA} offset:0")
        a(f"ds_read_b128 {vr(KB,4)}, v{vKA} offset:{8*1024}")
        a(f"ds_read_b128 {vr(KC,4)}, v{vKA} offset:{7*1024}")
        vreads(8,VA); vreads(0,VB)
        l0=f"{name}_f0a"; l1=f"{name}_f0b"
        a(f"s_cmp_eq_u32 s{R.sRB}, 0\ns_cbranch_scc1 {l0}")
        a("s_waitcnt lgkmcnt(6)")
        mf(SA,KA,vQ,"0")
        a(f"s_branch {l1}")
        a.label(l0)
        for r in range(16): a(f"v_mov_b32 v{SA+r}, {f2u(NEGBIG):#x}")
        a.label(l1)
        a("s_waitcnt lgkmcnt(5)")
        mf(SB,KB,vQ,"0")
        a("s_waitcnt lgkmcnt(4)")
        mf(SC,KC,vQ,"0")
        a(f"ds_read_b128 {vr(KA,4)}, v{vKA} offset:{6*1024}")
        hook("pre")
        a("s_nop 7\ns_nop 1")
        for r in range(16):
            a(f"v_cndmask_b32_e64 v{M+r}, v{SA+r}, v{SB+r}, s[{MASK+2*r}:{MASK+2*r+1}]")
        for r in range(16): a(f"v_exp_f32 v{M+r}, v{M+r}")
        a("s_nop 0")
        for i in range(8): a(f"v_cvt_pk_bf16_f32 v{P+i}, v{M+2*i}, v{M+2*i+1}")
        for i in range(8): a(f"v_and_b32 v{P2+i}, v{P+i}, v{PM+i}")
        for i in range(8): a(f"v_xor_b32 v{P+i}, v{P+i}, v{P2+i}")
        a("s_waitcnt lgkmcnt(1)")
        mf(O,VA,P2,"0"); mf(O,VA+4,P2+4,O)
        lab=f"{name}_fskip0"
        a(f"s_cmp_eq_u32 s{R.sRB}, 0\ns_cbranch_scc1 {lab}")
        mf(O,VB,P,O); mf(O,VB+4,P+4,O)
        a.label(lab)
        hook("post0")
        bufs=[SC,SD]; Vb=[VA,VB]; Pb=[P2,P]; Kb=[KA,KB]
        if cfg.get("k2_sched",0)==0:
          for n,t in enumerate(range(7,0,-1)):
            S=bufs[n&1]; Sn=bufs[(n+1)&1]; V=Vb[n&1]; Pp=Pb[n&1]
            chk(t,FE)
            vreads(t,V)
            if t>1:
                a("s_waitcnt lgkmcnt(2)")
                mf(Sn,Kb[n&1],vQ,"0")
            if t>2: a(f"ds_read_b128 {vr(Kb[(n+1)&1],4)}, v{vKA} offset:{(t-2)*1024}")
            hook(("it",t))
            for r in range(16): a(f"v_exp_f32 v{S+r}, v{S+r}")
            a("s_nop 0")
            for i in range(8): a(f"v_cvt_pk_bf16_f32 v{Pp+i}, v{S+2*i}, v{S+2*i+1}")
            a(f"s_waitcnt lgkmcnt({1 if t>2 else 0})")
            mf(O,V,Pp,O); mf(O,V+4,Pp+4,O)
        else:
          FEP=f"{name}_fendp"
          pend=None
          for n,t in enumerate(range(7,0,-1)):
            S=bufs[n&1]; Sn=bufs[(n+1)&1]; V=Vb[n&1]; Pp=Pb[n&1]
            if pend is None: chk(t,FE)
            else: chk(t,f"{FEP}{n}")
            if t>1:
                a(f"s_waitcnt lgkmcnt({0 if pend is None else 2})")
                mf(Sn,Kb[n&1],vQ,"0")
            if t>2: a(f"ds_read_b128 {vr(Kb[(n+1)&1],4)}, v{vKA} offset:{(t-2)*1024}")
            hook(("it",t))
            for r in range(4): a(f"v_exp_f32 v{S+r}, v{S+r}")
            if pend is not None:
                a(f"s_waitcnt lgkmcnt({1 if t>2 else 0})")
                mf(O,pend[0],pend[1],O)
            for r in range(4,8): a(f"v_exp_f32 v{S+r}, v{S+r}")
            if pend is not None: mf(O,pend[0]+4,pend[1]+4,O)
            vreads(t,V)
            for r in range(8,16): a(f"v_exp_f32 v{S+r}, v{S+r}")
            a("s_nop 0")
            for i in range(8): a(f"v_cvt_pk_bf16_f32 v{Pp+i}, v{S+2*i}, v{S+2*i+1}")
            pend=(V,Pp)
          a("s_waitcnt lgkmcnt(0)")
          mf(O,pend[0],pend[1],O); mf(O,pend[0]+4,pend[1]+4,O)
          a(f"s_branch {FE}")
          for n in range(1,7):
            V=Vb[(n-1)&1]; Pp=Pb[(n-1)&1]
            a.label(f"{FEP}{n}")
            a("s_waitcnt lgkmcnt(0)\ns_nop 1")
            mf(O,V,Pp,O); mf(O,V+4,Pp+4,O)
            if n<6: a(f"s_branch {FE}")
        a.label(FE)
        a(f"""
        s_nop 15
        v_max3_f32 v28, |v{O}|, |v{O+1}|, |v{O+2}|
        v_max3_f32 v29, |v{O+3}|, |v{O+4}|, |v{O+5}|
        v_max3_f32 v28, v28, |v{O+6}|, |v{O+7}|
        v_max_f32 v28, v28, v29
        s_mov_b32 s28, {f2u(2.0**-64):#x}
        s_mov_b32 s29, {f2u(2.0**64):#x}
        v_cmp_nle_f32 vcc, s28, v{O+8}
        v_cmp_nge_f32 s[30:31], s29, v{O+8}
        s_or_b64 vcc, vcc, s[30:31]
        s_mov_b32 s28, {f2u(2.0**120):#x}
        v_cmp_nge_f32 s[30:31], s28, v28
        s_or_b64 vcc, vcc, s[30:31]
        s_nop 4
        s_cbranch_vccz {EPI}
        """)
    a.label(SLOW)
    a("s_waitcnt lgkmcnt(0)")
    for t in (0,8,7,6,5,4,3,2,1):
        a(f"ds_read_b128 {vr(kf(t),4)}, v{vKA} offset:{t*1024}")
    a("s_waitcnt lgkmcnt(0)")
    l0=f"{name}_rb0a"; l1=f"{name}_rb0b"
    a(f"s_cmp_eq_u32 s{R.sRB}, 0\ns_cbranch_scc1 {l0}")
    mf(SA,kf(0),vQ,"0")
    a(f"s_branch {l1}")
    a.label(l0)
    for r in range(16): a(f"v_mov_b32 v{SA+r}, {f2u(NEGBIG):#x}")
    a.label(l1)
    mf(SB,kf(8),vQ,"0"); mf(SC,kf(7),vQ,"0"); mf(SD,kf(6),vQ,"0")
    a("s_nop 15")
    for r in range(16):
        a(f"v_cndmask_b32_e64 v{M+r}, v{SA+r}, v{SB+r}, s[{MASK+2*r}:{MASK+2*r+1}]")
    a(f"v_max3_f32 v{MX}, v{M}, v{M+1}, v{M+2}")
    for r in range(3,15,2): a(f"v_max3_f32 v{MX}, v{MX}, v{M+r}, v{M+r+1}")
    a(f"v_max_f32 v{MX}, v{MX}, v{M+15}")
    def maxtile(S):
        for r in range(0,16,2): a(f"v_max3_f32 v{MX}, v{MX}, v{S+r}, v{S+r+1}")
    P1E=f"{name}_p1end"
    chk(7,P1E)
    mf(SA,kf(5),vQ,"0"); mf(SB,kf(4),vQ,"0")
    maxtile(SC); chk(6,P1E); maxtile(SD); chk(5,P1E)
    mf(SC,kf(3),vQ,"0"); mf(SD,kf(2),vQ,"0")
    maxtile(SA); chk(4,P1E); maxtile(SB); chk(3,P1E)
    mf(SA,kf(1),vQ,"0")
    maxtile(SC); chk(2,P1E); maxtile(SD); chk(1,P1E)
    a("s_nop 1")
    maxtile(SA)
    a.label(P1E)
    a(f"""
    v_mov_b32 v29, v{MX}
    s_nop 1
    v_permlane32_swap_b32 v29, v{MX}
    s_nop 1
    v_max_f32 v{MX}, v{MX}, v29
    v_sub_f32 v{NEG}, 0, v{MX}
    """)
    for r in range(1,16): a(f"v_mov_b32 v{NEG+r}, v{NEG}")
    vreads(8,VA); vreads(0,VB)
    mf(SC,kf(7),vQ,NEG)
    for i in range(8): a(f"v_pk_add_f32 {vr(M+2*i,2)}, {vr(M+2*i,2)}, {vr(NEG,2)}")
    for r in range(16): a(f"v_exp_f32 v{M+r}, v{M+r}")
    a("s_nop 0")
    for i in range(8): a(f"v_cvt_pk_bf16_f32 v{P+i}, v{M+2*i}, v{M+2*i+1}")
    for i in range(8): a(f"v_and_b32 v{P2+i}, v{P+i}, v{PM+i}")
    for i in range(8): a(f"v_xor_b32 v{P+i}, v{P+i}, v{P2+i}")
    a("s_waitcnt lgkmcnt(0)")
    mf(O,VA,P2,"0"); mf(O,VA+4,P2+4,O)
    lab=f"{name}_skip0"
    a(f"s_cmp_eq_u32 s{R.sRB}, 0\ns_cbranch_scc1 {lab}")
    mf(O,VB,P,O); mf(O,VB+4,P+4,O)
    a.label(lab)
    P2E=f"{name}_p2end"
    bufs=[SC,SD]; Vb=[VA,VB]; Pb=[P,P2]
    for n,t in enumerate(range(7,0,-1)):
        S=bufs[n&1]; Sn=bufs[(n+1)&1]; V=Vb[n&1]; Pp=Pb[n&1]
        chk(t,P2E)
        vreads(t,V)
        if t>1: mf(Sn,kf(t-1),vQ,NEG)
        for r in range(16): a(f"v_exp_f32 v{S+r}, v{S+r}")
        a("s_nop 0")
        for i in range(8): a(f"v_cvt_pk_bf16_f32 v{Pp+i}, v{S+2*i}, v{S+2*i+1}")
        a("s_waitcnt lgkmcnt(0)")
        mf(O,V,Pp,O); mf(O,V+4,Pp+4,O)
    a.label(P2E)
    a("s_nop 15")
    a.label(EPI)
    a(f"v_rcp_f32 v{O+8}, v{O+8}\ns_nop 0")
    for r in range(8): a(f"v_mul_f32 v{O+r}, v{O+r}, v{O+8}")
    for i in range(4): a(f"v_cvt_pk_bf16_f32 v{TMP+i}, v{O+2*i}, v{O+2*i+1}")

def k2_apart(a, R, name):
    OA,TMP=R.OA,R.TMP
    a(f"""
    v_lshlrev_b32 v{R.vRA}, 2, v0               ; tid*4
    v_cmp_gt_u32 vcc, 272, v0
    s_and_saveexec_b64 s[28:29], vcc
    s_cbranch_execz {name}_nored
    """)
    RT=32
    for p in range(12):
        a(f"ds_read_b32 v{RT+p}, v{R.vRA} offset:{R.KVL+p*1088}")
    for p in range(1,4):
        a(f"s_waitcnt lgkmcnt({11-p})")
        a(f"v_add_f32 v{RT}, v{RT}, v{RT+p}")
    for p in range(12,16):
        a(f"ds_read_b32 v{RT+p}, v{R.vRA} offset:{R.KVL+p*1088}")
    for p in range(4,16):
        a(f"s_waitcnt lgkmcnt({15-p})")
        a(f"v_add_f32 v{RT}, v{RT}, v{RT+p}")
    a(f"""
    ds_write_b32 v{R.vRA}, v{RT} offset:{R.RED}
    {name}_nored:
    s_mov_b64 exec, s[28:29]
    s_waitcnt lgkmcnt(0)
    s_barrier
    ds_read_b128 {vr(TMP+8,4)}, v{R.vKVA}
    ds_read_b128 {vr(TMP+12,4)}, v{R.vKVA} offset:16
    s_waitcnt lgkmcnt(0)
    """)
    for i in range(4): a(f"v_cvt_pk_bf16_f32 v{TMP+8+i}, v{TMP+8+2*i}, v{TMP+8+2*i+1}")
    a("s_nop 1")
    a(f"v_mfma_f32_32x32x16_bf16 {vr(OA,16)}, {vr(TMP+8,4)}, {vr(R.vPQ,4)}, 0")
    a(f"""
    s_nop 15
    v_add_f32 v{OA+8}, {f2u(1e-6):#x}, v{OA+8}
    s_nop 0
    v_rcp_f32 v{OA+8}, v{OA+8}
    s_nop 0
    """)
    for r in range(8): a(f"v_mul_f32 v{OA+r}, v{OA+r}, v{OA+8}")
    for i in range(4): a(f"v_cvt_pk_bf16_f32 v{TMP+4+i}, v{OA+2*i}, v{OA+2*i+1}")

def gen_k2(a, name, cfg):
    LDF=cfg.get("k2_ldflags","")
    STF=cfg.get("k2_stflags","")
    R=K2R
    a.raw(f".globl {name}\n.p2align 8\n.type {name},@function\n{name}:")
    SWS=R.SWS
    pf=Prof(a,cfg,1,64,R.sWAVE,4,5)
    pf.stamp(0)
    a(f"""
    s_cmp_ge_u32 s2, 256
    s_cbranch_scc1 {name}_end
    s_load_dwordx2 s[4:5], s[0:1], 64
    v_lshrrev_b32 v2, 6, v0
    v_and_b32 v1, 63, v0
    """)
    if cfg.get("k2_map",1)==0:
        a(f"s_and_b32 s{R.sRB}, s2, 7\nv_readfirstlane_b32 s{R.sWAVE}, v2\ns_lshr_b32 s{R.sH}, s2, 3")
    else:
        a(f"""
        s_bfe_u32 s{R.sRB}, s2, 0x30003
        v_readfirstlane_b32 s{R.sWAVE}, v2
        s_and_b32 s{R.sH}, s2, 7
        s_lshr_b32 s{R.sT}, s2, 6
        s_lshl_b32 s{R.sT}, s{R.sT}, 3
        s_add_u32 s{R.sH}, s{R.sH}, s{R.sT}
        """)
    a(f"""
    v_lshlrev_b32 v3, 4, v1                   ; lane*16
    s_lshl_b32 s{R.sQB}, s{R.sRB}, 3
    s_add_u32 s{R.sQB}, s{R.sQB}, s{R.sWAVE}        ; qb
    s_waitcnt lgkmcnt(0)
    s_mov_b32 s{SWS}, s4
    s_mov_b32 s{SWS+1}, s5
    s_mov_b32 s{SWS+2}, {WS_USED}
    s_mov_b32 s{SWS+3}, 0x20000
    """)
    pf.stamp(6)
    k2_load_b(a,R,LDF)
    k2_load_a(a,R,LDF,name)
    pf.stamp(7)
    k2_setup_consts(a,R)
    pf.stamp(8)
    a("s_waitcnt vmcnt(3) lgkmcnt(0)\ns_barrier")
    pf.stamp(1)
    k2_attn(a,R,name,cfg,pf)
    a(f"""
    s_lshl_b32 s{R.sT}, s{R.sQB}, 5
    s_add_u32 s{R.sT}, s{R.sT}, s{R.sH}
    s_lshl_b32 s{R.sT}, s{R.sT}, 10
    s_add_u32 s{R.sOB}, s{R.sT}, {OF}
    s_add_u32 s{R.sT}, s{R.sOB}, {64*32*1024}
    buffer_store_dwordx4 {vr(R.TMP,4)}, v3, s[{SWS}:{SWS+3}], s{R.sT} offen {STF}
    """)
    pf.stamp(2)
    a("s_waitcnt vmcnt(1)\ns_barrier")
    k2_apart(a,R,name)
    a(f"buffer_store_dwordx4 {vr(R.TMP+4,4)}, v3, s[{SWS}:{SWS+3}], s{R.sOB} offen {STF}")
    if pf.on:
        pf.stamp(3); pf.stamp(4); a("s_waitcnt vmcnt(0)"); pf.stamp(5); pf.flush(9,84,30,wave=7)
    a.label(f"{name}_end")
    a("s_endpgm")
    return dict(name=name, grid=256, block=512, lds=K2_LDS, vgpr=248, sgpr=92 if cfg.get('prof') else 72)
```

```python
from asmlib import *
import math
from k1 import QF,KF,VF,PQ,OF,KVP,WS_USED,LOG2E,CSCALE
import k2
from k2 import K2R,k2_setup_consts,k2_load_b,k2_load_a,k2_attn,k2_apart

FLG=KVP+0x90000
FL=128
FSTR=16*FL+256
F1=FLG; F2=FLG+16*FSTR; F2STR=32*FL+256; NONCE=F2+8*F2STR
FP=NONCE+256; FPSTR=32*FL+256
WOL=98304
NL=163840-16

sAWO=64; sBWO=66; sOUT=68; sDBG=70; sWSP=72; sN=74; sWV=75; sP3T=76; sP3NS=77; sP3BR=78; sCNT2=79

def poll(a, name, srd, soff, need_lo, need_hi, vtmp, voff, bound=30000, sleep=4):
    L=a.newlabel(name); D=a.newlabel(name+"d")
    a(f"""
    s_mov_b32 s{sCNT2}, 0
    s_mov_b64 exec, s[{need_lo}:{need_hi}]
    {L}:
    buffer_load_dword v{vtmp}, v{voff}, s[{srd}:{srd+3}], s{soff} offen sc1
    s_waitcnt vmcnt(0)
    v_cmp_eq_u32 vcc, s{sN}, v{vtmp}
    s_cmp_eq_u64 vcc, s[{need_lo}:{need_hi}]
    s_cbranch_scc1 {D}
    s_add_u32 s{sCNT2}, s{sCNT2}, 1
    s_cmp_lt_u32 s{sCNT2}, {bound}
    s_cbranch_scc0 {D}
    s_sleep {sleep}
    s_branch {L}
    {D}:
    s_mov_b64 exec, -1
    """)

def gen_p3v2(a,name,cfg,R,pf,pf0,PTS,OSTF,HLD):
    sT=R.sT; sT2=R.sT2
    WOL0=32768; WOL1=98304
    a(f"s_cmp_ge_u32 s{sWV}, 4\ns_cbranch_scc1 {name}_p3l")
    SOUT=16; sTT=26; sNH=27
    ACC3=32; OS=[64,80]; WSET=[96,104,112]
    vWA3=5; vO=7
    a(f"""
    s_and_b32 s{sTT}, s{sWV}, 1
    s_lshr_b32 s{sNH}, s{sWV}, 1
    s_mov_b32 s{SOUT}, s{sOUT}
    s_mov_b32 s{SOUT+1}, s{sOUT+1}
    s_mov_b32 s{SOUT+2}, 0x400000
    s_mov_b32 s{SOUT+3}, 0x20000
    v_bfe_u32 v6, v1, 2, 2
    v_lshrrev_b32 v7, 5, v1
    v_lshl_add_u32 v6, v7, 2, v6
    v_lshlrev_b32 v6, 7, v6
    v_and_b32 v7, 1, v1
    v_lshlrev_b32 v7, 1, v7
    v_bfe_u32 v24, v1, 4, 1
    v_or_b32 v7, v7, v24
    v_bfe_u32 v24, v1, 3, 1
    v_lshlrev_b32 v24, 2, v24
    v_xor_b32 v7, v7, v24
    v_lshl_add_u32 v6, v7, 4, v6
    v_bfe_u32 v24, v1, 1, 1
    v_lshl_add_u32 v{vWA3}, v24, 3, v6
    v_xor_b32 v{vWA3+1}, 64, v{vWA3}
    s_lshl_b32 s{sT}, s{sNH}, 16
    s_add_u32 s{sT}, s{sT}, {WOL0}
    v_add_u32 v{vWA3}, s{sT}, v{vWA3}
    v_add_u32 v{vWA3+1}, s{sT}, v{vWA3+1}
    s_lshl_b32 s{sT}, s{sTT}, 10
    v_add_u32 v{vO}, s{sT}, v3
    """)
    q=[]
    def rd_o(e):
        for hh in range(4):
            a(f"ds_read_b128 {vr(OS[e&1]+4*hh,4)}, v{vO} offset:{(e&3)*8192+hh*2048}"); q.append(("o",e))
    def rd_w(h):
        for nt in range(2):
            for t in range(2):
                a(f"ds_read_b64_tr_b16 {vr(WSET[h%3]+4*nt+2*t,2)}, v{vWA3+nt} offset:{h*2048+t*1024}"); q.append(("w",h))
    st={"done":0}
    def wait_for(tags):
        last=max(i for i,x in enumerate(q) if x in tags)
        if last<st["done"]: return
        n=len(q)-1-last
        assert n<=15 and len(q)-st["done"]<=16, (n,len(q)-st["done"])
        a(f"s_waitcnt lgkmcnt({n})"); st["done"]=last+1
    rd_w(0); rd_w(1)
    a("s_barrier")
    pf.pt("p3b0")
    rd_o(0)
    for h in range(32):
        e=h>>2; hh=h&3
        if hh==2 and e<7:
            wait_for([("o",e)])
            a("s_barrier")
            rd_o(e+1)
        if h+2<32: rd_w(h+2)
        wait_for([("w",h),("o",e)])
        for nt in range(2):
            c = "0" if h==0 else vr(ACC3+16*nt,16)
            a(f"v_mfma_f32_32x32x16_bf16 {vr(ACC3+16*nt,16)}, {vr(WSET[h%3]+4*nt,4)}, {vr(OS[e&1]+4*hh,4)}, {c}")
    pf.pt("p3loop")
    a(f"""
    s_lshl_b32 s{sT}, s{sP3T}, 1
    s_add_u32 s{sT}, s{sT}, s{sTT}
    s_lshl_b32 s{sT}, s{sT}, 16
    s_lshl_b32 s{sT2}, s{sP3BR}, 10
    s_add_u32 s{sT}, s{sT}, s{sT2}
    s_lshl_b32 s{sT2}, s{sP3NS}, 8
    s_add_u32 s{sT}, s{sT}, s{sT2}
    s_lshl_b32 s{sT2}, s{sNH}, 7
    s_add_u32 s{sT}, s{sT}, s{sT2}
    v_and_b32 v6, 31, v1
    v_lshlrev_b32 v6, 11, v6
    v_lshrrev_b32 v7, 5, v1
    v_lshl_add_u32 v6, v7, 5, v6
    s_nop 7
    """)
    if cfg.get("outT"):
        a(f"""
        s_lshl_b32 s{sT2}, s{sWV}, 12
        v_and_b32 v8, 31, v1
        v_lshlrev_b32 v8, 7, v8                    ; token*128
        v_lshrrev_b32 v9, 5, v1
        v_lshl_add_u32 v8, v9, 5, v8               ; + hf*32
        v_and_b32 v9, 7, v1
        v_lshlrev_b32 v9, 4, v9
        v_add_u32 v8, s{sT2}, v8
        """)
        for nt in range(2):
            b=ACC3+16*nt; T=16+8*nt
            for i in range(8): a(f"v_cvt_pk_bf16_f32 v{T+i}, v{b+2*i}, v{b+2*i+1}")
        for nt in range(2):
            for u in range(2):
                a(f"v_add_u32 v10, {nt*64+u*16}, v8\nv_xor_b32 v10, v10, v9\nds_write_b128 v10, {vr(16+8*nt+4*u,4)}")
        a(f"""
        v_lshrrev_b32 v11, 3, v1
        v_and_b32 v12, 7, v1                       ; chunk
        v_xor_b32 v13, v12, v11
        v_lshlrev_b32 v13, 4, v13
        v_lshl_add_u32 v13, v11, 7, v13
        v_add_u32 v13, s{sT2}, v13
        v_lshlrev_b32 v14, 11, v11
        v_lshl_add_u32 v14, v12, 4, v14
        s_waitcnt lgkmcnt(0)
        """)
        for i in range(4): a(f"ds_read_b128 {vr(32+4*i,4)}, v13 offset:{i*1024}")
        for i in range(4):
            a(f"s_waitcnt lgkmcnt({3-i})\ns_add_u32 s{sT2}, s{sT}, {i*8*2048}\nbuffer_store_dwordx4 {vr(32+4*i,4)}, v14, s[{SOUT}:{SOUT+3}], s{sT2} offen {OSTF}")
    else:
      for nt in range(2):
        b=ACC3+16*nt; T=8+8*nt
        for i in range(8): a(f"v_cvt_pk_bf16_f32 v{T+i}, v{b+2*i}, v{b+2*i+1}")
        a(f"buffer_store_dwordx4 {vr(T,4)}, v6, s[{SOUT}:{SOUT+3}], s{sT} offen offset:{nt*64} {OSTF}")
        a(f"buffer_store_dwordx4 {vr(T+4,4)}, v6, s[{SOUT}:{SOUT+3}], s{sT} offen offset:{nt*64+16} {OSTF}")
    a(f"""
    s_cmp_lg_u32 s2, 0
    s_cbranch_scc1 {name}_nn
    s_cmp_lg_u32 s{sWV}, 0
    s_cbranch_scc1 {name}_nn
    s_mov_b32 s{sT}, {NONCE}
    v_mov_b32 v12, 0
    v_mov_b32 v13, s{sN}
    buffer_store_dword v13, v12, s[{R.SWS}:{R.SWS+3}], s{sT} offen sc1
    {name}_nn:
    """)
    if pf.on:
        a("s_waitcnt vmcnt(0)"); pf.pt("end"); pf0.flush(len(PTS),4,2,wave=cfg.get("pwave",0) if cfg.get("pwave",0)<4 else 99)
    a("s_endpgm")
    a.label(f"{name}_p3l")
    sE=26; sB=27; sL=28
    a(f"""
    s_sub_u32 s{sE}, s{sWV}, 4
    s_lshl_b32 s{sT}, s{sP3BR}, 6
    s_lshl_b32 s{sT2}, s{sP3T}, 1
    s_add_u32 s{sT}, s{sT}, s{sT2}
    s_lshl_b32 s{sB}, s{sT}, 15
    s_lshl_b32 s{sT}, s{sE}, 10
    s_add_u32 s{sB}, s{sB}, s{sT}
    s_add_u32 s{sB}, s{sB}, {OF}
    s_lshl_b32 s{sL}, s{sE}, 11
    """)
    OR=32; LA=cfg.get("p3_la",5); mode=cfg.get("p3_mode","reg")
    items=[(e,tt) for e in range(8) for tt in range(2)]
    def ld(k):
        e,tt=items[k]
        if cfg.get("diag_p3noload"): return
        if mode=="reg":
            a(f"s_add_u32 s{sT}, s{sB}, {e*4096+tt*32768}\nbuffer_load_dwordx4 {vr(OR+4*k,4)}, v3, s[{R.SWS}:{R.SWS+3}], s{sT} offen {HLD}")
        else:
            a(f"s_add_u32 m0, s{sL}, {(e&3)*8192+tt*1024}\ns_add_u32 s{sT}, s{sB}, {e*4096+tt*32768}\nbuffer_load_dwordx4 v3, s[{R.SWS}:{R.SWS+3}], s{sT} offen {HLD} lds")
    issued=0
    if mode=="dma": LA=min(LA,6)
    while issued<LA: ld(issued); issued+=1
    a(f"v_add_u32 v4, s{sL}, v3")
    for e in range(8):
        need=2*e+2
        a(f"s_waitcnt vmcnt({max(issued-need,0)})")
        if mode=="reg":
            for tt in range(2):
                a(f"ds_write_b128 v4, {vr(OR+4*(2*e+tt),4)} offset:{(e&3)*8192+tt*1024}")
            while issued<min(16,need+LA): ld(issued); issued+=1
            a("s_waitcnt lgkmcnt(0)\ns_barrier")
        else:
            a("s_barrier")
            while issued<min(16,need+LA,2*(e+4)): ld(issued); issued+=1
    a.label(f"{name}_end")
    a.label(f"{name}_last")
    a("s_endpgm")

def gen_fused(a, name, cfg):
    NS=3
    P3V=cfg.get("p3v",1)
    DEF=cfg.get("defer_pq",False)
    LDX=cfg.get("ldx",""); LDW=cfg.get("ldw","")
    STF="sc1"; HLD="sc1"
    OSTF=cfg.get("out_stflags","")
    XB=0; XS=16384; WB=NS*XS; WS_=24576
    a.raw(f".globl {name}\n.p2align 8\n.type {name},@function\n{name}:")
    sWAVE=20; sBR=21; sR=22; sG=23; sT=24; sT2=25
    SX=8; SW=12; SWS=16
    PTS=cfg.get("pts",["entry","p","loop","epi","b1","b2","kv","att","f2","end"])
    TIMER=cfg.get("timer","s_memrealtime")
    class PF0:
        on=cfg.get("prof",False)
        def flush(self,n,srd,vt,wave=0):
            if not self.on: return
            lab=a.newlabel("pf")
            a(f"""
            s_cmp_lg_u32 s{sWV}, {wave}
            s_cbranch_scc1 {lab}
            s_mov_b32 s4, s{sWSP}
            s_mov_b32 s5, s{sWSP+1}
            s_mov_b32 s6, {16<<20}
            s_mov_b32 s7, 0x20000
            s_lshl_b32 s24, s2, 6
            s_add_u32 s24, s24, {14<<20}
            v_lshlrev_b32 v2, 2, v1
            s_mov_b64 exec, 0xffff
            buffer_store_dword v247, v2, s[4:7], s24 offen
            s_mov_b64 exec, -1
            {lab}:
            """)
    pf0=PF0()
    class PF:
        on=pf0.on
        def pt(self,n):
            if self.on and n in PTS:
                a(f"{TIMER} s[100:101]\ns_waitcnt lgkmcnt(0)\nv_writelane_b32 v247, s100, {PTS.index(n)}")
    pf=PF()
    pf.pt("entry")
    a(f"""
    s_cmp_ge_u32 s2, 256
    s_cbranch_scc1 {name}_end
    s_load_dwordx4 s[28:31], s[0:1], 0
    s_load_dwordx4 s[32:35], s[0:1], 24
    s_load_dwordx2 s[{sAWO}:{sAWO+1}], s[0:1], 16
    s_load_dwordx2 s[{sBWO}:{sBWO+1}], s[0:1], 40
    s_load_dwordx4 s[{sOUT}:{sOUT+3}], s[0:1], 48
    s_load_dwordx2 s[{sWSP}:{sWSP+1}], s[0:1], 64
    v_lshrrev_b32 v2, 6, v0
    v_and_b32 v1, 63, v0
    s_and_b32 s{sT}, s2, 7
    v_readfirstlane_b32 s{sWAVE}, v2
    s_lshr_b32 s{sT2}, s2, 3
    s_and_b32 s{sBR}, s{sT}, 1
    s_lshr_b32 s{sT}, s{sT}, 1
    s_mov_b32 s{sP3BR}, s{sBR}
    s_lshl_b32 s{sP3T}, s{sT}, {3 if P3V==2 else 2}
    s_and_b32 s{sP3NS}, s{sT2}, {7 if P3V==2 else 3}
    s_add_u32 s{sP3T}, s{sP3T}, s{sP3NS}
    s_lshr_b32 s{sP3NS}, s{sT2}, {3 if P3V==2 else 2}
    s_and_b32 s{sR}, s{sT}, 1
    s_lshl_b32 s{sR}, s{sR}, 3
    s_lshr_b32 s{sG}, s{sT}, 1
    s_lshl_b32 s{sG}, s{sG}, 2
    s_and_b32 s{sT}, s{sT2}, 7
    s_add_u32 s{sR}, s{sR}, s{sT}
    s_lshr_b32 s{sT}, s{sT2}, 3
    s_add_u32 s{sG}, s{sG}, s{sT}
    s_mov_b32 s{sWV}, s{sWAVE}
    s_mov_b32 s83, 0
    """)
    FAST=cfg.get("faststart",False)
    sE=26; sXB=27; sWBs=38; sL=39; sROT=40; sXC=41; sWC=42
    def loader_setup():
        a(f"""
        s_sub_u32 s{sE}, s{sWAVE}, 4
        v_lshrrev_b32 v2, 3, v1
        v_and_b32 v3, 7, v1
        v_lshrrev_b32 v4, 1, v2
        s_and_b32 s{sT}, s{sE}, 1
        s_lshl_b32 s{sT}, s{sT}, 2
        v_or_b32 v4, s{sT}, v4
        v_xor_b32 v4, v4, v3
        v_lshlrev_b32 v5, 10, v2
        v_lshl_add_u32 v5, v4, 4, v5            ; x voffset
        v_bfe_u32 v4, v1, 4, 1
        v_lshlrev_b32 v4, 2, v4
        v_xor_b32 v4, v4, v3
        v_mul_u32_u24 v6, 3072, v2
        v_lshl_add_u32 v6, v4, 4, v6            ; w voffset
        v_lshlrev_b32 v7, 10, v2
        v_lshl_add_u32 v7, v4, 4, v7
        s_lshl_b32 s{sXB}, s{sR}, 17
        s_lshl_b32 s{sT}, s{sE}, 13
        s_add_u32 s{sXB}, s{sXB}, s{sT}
        s_lshl_b32 s{sWBs}, s{sG}, 7
        s_mul_i32 s{sT}, s{sE}, 24576
        s_add_u32 s{sWBs}, s{sWBs}, s{sT}
        s_lshl_b32 s{sL}, s{sE}, 10
        s_mov_b32 s{sROT}, 0
        """)
        for (src,sh,mask,mul) in cfg.get("k1_rot",[["R",0,3,2],["G",0,3,1]]):
            r={"R":sR,"G":sG}[src]
            a(f"s_lshr_b32 s{sT}, s{r}, {sh}\ns_and_b32 s{sT}, s{sT}, {mask}\ns_mul_i32 s{sT}, s{sT}, {mul}\ns_add_u32 s{sROT}, s{sROT}, s{sT}")
    if FAST: loader_setup()
    a(f"""
    s_mov_b32 s{SX+2}, 0x200000
    s_mov_b32 s{SX+3}, 0x20000
    s_mov_b32 s{SW+2}, 0x180000
    s_mov_b32 s{SW+3}, 0x20000
    s_mov_b32 s{SWS+2}, {WS_USED}
    s_mov_b32 s{SWS+3}, 0x20000
    s_cmp_eq_u32 s{sBR}, 0
    s_waitcnt lgkmcnt(0)
    s_cselect_b32 s{SX}, s28, s32
    s_cselect_b32 s{SX+1}, s29, s33
    s_cselect_b32 s{SW}, s30, s34
    s_cselect_b32 s{SW+1}, s31, s35
    s_mov_b32 s{SWS}, s{sWSP}
    s_mov_b32 s{SWS+1}, s{sWSP+1}
    """)
    def nonce_load():
        a(f"""
        s_mov_b32 s4, {NONCE}
        v_mov_b32 v30, 0
        buffer_load_dword v31, v30, s[{SWS}:{SWS+3}], s4 offen sc1
        """)
    if FAST:
        a(f"s_cmp_lt_u32 s{sWAVE}, 4\ns_cbranch_scc1 {name}_compute")
        mark_entry_end=len(a.lines)
        a.label(f"{name}_compute")
        nonce_load()
    else:
        nonce_load()
        a(f"s_cmp_ge_u32 s{sWAVE}, 4\ns_cbranch_scc1 {name}_loader")
    sTM=26; sFN=27
    vXA=4; vWA=8
    ACC=32
    def acc(tt,sec): return ACC+(tt*3+sec)*16
    FR=[128,148]
    def xf(s,tt): return FR[s]+4*tt
    def wf(s,sec): return FR[s]+8+4*sec
    if cfg.get("codepf"):
        nseg=cfg["codepf"]
        lab=a.newlabel("cpf")
        a(f"""
        s_cmp_lg_u32 s{sWAVE}, 1
        s_cbranch_scc1 {lab}
        s_lshr_b32 s4, s2, 3
        s_cmp_ge_u32 s4, {nseg}
        s_cbranch_scc1 {lab}
        s_lshl_b32 s6, s4, 13
        s_getpc_b64 s[4:5]
        {lab}_pc:
        s_sub_u32 s4, s4, {lab}_pc-{name}
        s_subb_u32 s5, s5, 0
        v_lshlrev_b32 v12, 7, v1
        v_add_u32 v12, s6, v12
        v_min_u32 v12, {name}_last-{name}, v12
        v_mov_b32 v13, s5
        v_add_co_u32 v12, vcc, s4, v12
        s_nop 1
        v_addc_co_u32 v13, vcc, 0, v13, vcc
        global_load_dword v14, v[12:13], off
        {lab}:
        """)
    a(f"""
    s_and_b32 s{sTM}, s{sWAVE}, 1
    s_lshr_b32 s{sFN}, s{sWAVE}, 1
    v_lshrrev_b32 v2, 5, v1                 ; hf
    v_and_b32 v3, 31, v1                    ; t31
    v_lshrrev_b32 v9, 1, v3
    v_and_b32 v9, 7, v9                     ; g
    s_lshl_b32 s{sT}, s{sTM}, 13
    v_lshlrev_b32 v10, 7, v3
    v_add_u32 v10, s{sT}, v10
    """)
    for ks in range(4):
        a(f"v_or_b32 v11, {2*ks}, v2\nv_xor_b32 v11, v11, v9\nv_lshl_add_u32 v{vXA+ks}, v11, 4, v10")
    a(f"""
    v_bfe_u32 v10, v1, 2, 2
    v_lshlrev_b32 v10, 7, v10
    v_lshl_add_u32 v10, v2, 10, v10
    v_bfe_u32 v11, v1, 4, 1
    v_lshlrev_b32 v11, 1, v11
    v_bfe_u32 v12, v1, 1, 1
    v_or_b32 v11, v11, v12
    s_lshl_b32 s{sT}, s{sFN}, 2
    v_or_b32 v11, s{sT}, v11
    v_bfe_u32 v12, v1, 3, 1
    v_lshlrev_b32 v12, 2, v12
    v_xor_b32 v11, v11, v12
    v_lshl_add_u32 v10, v11, 4, v10
    v_and_b32 v12, 1, v1
    v_lshl_add_u32 v10, v12, 3, v10
    v_add_u32 v{vWA}, {WB}, v10
    """)
    for r in range(ACC,ACC+96): a(f"v_mov_b32 v{r}, 0")
    a(f"""
    s_mov_b32 s58, {(-(NS-1)*XS)&0xffffffff:#x}
    s_mov_b32 s59, {XS}
    s_mov_b32 s60, {(-(NS-1)*WS_)&0xffffffff:#x}
    s_mov_b32 s61, {WS_}
    """)
    def reads(s, ks):
        L=[]
        L.append(f"ds_read_b128 {vr(xf(s,0),4)}, v{vXA+ks}")
        L.append(f"ds_read_b64_tr_b16 {vr(wf(s,0),2)}, v{vWA} offset:{ks*2048}")
        L.append(f"ds_read_b64_tr_b16 {vr(wf(s,0)+2,2)}, v{vWA} offset:{ks*2048+512}")
        L.append(f"ds_read_b128 {vr(xf(s,1),4)}, v{vXA+ks} offset:4096")
        for sec in (1,2):
            L.append(f"ds_read_b64_tr_b16 {vr(wf(s,sec),2)}, v{vWA} offset:{sec*8192+ks*2048}")
            L.append(f"ds_read_b64_tr_b16 {vr(wf(s,sec)+2,2)}, v{vWA} offset:{sec*8192+ks*2048+512}")
        return L
    def mfmas(s, br):
        L=[]
        for sec in range(3):
            for tt in range(2):
                featrow = (sec==0) or (sec==1 and br==1)
                A_,B_ = (wf(s,sec),xf(s,tt)) if featrow else (xf(s,tt),wf(s,sec))
                if cfg.get("mf16test"):
                    o=acc(tt,sec)+8*s
                    L.append(f"v_mfma_f32_16x16x32_bf16 {vr(o,4)}, {vr(A_,4)}, {vr(B_,4)}, {vr(o,4)}\nv_mfma_f32_16x16x32_bf16 {vr(o+4,4)}, {vr(B_,4)}, {vr(A_,4)}, {vr(o+4,4)}")
                else:
                    L.append(f"v_mfma_f32_32x32x16_bf16 {vr(acc(tt,sec),16)}, {vr(A_,4)}, {vr(B_,4)}, {vr(acc(tt,sec),16)}")
        return L
    def step(s, br, rd):
        M=mfmas(s,br)
        if rd:
            a(M[0]); a(rd[0]); a(rd[1]); a(rd[2])
            a(M[1]); a(rd[3]); a(rd[4]); a(rd[5])
            a(M[2]); a(rd[6]); a(rd[7])
            a(M[3]); a(M[4]); a(M[5])
        else:
            for m in M: a(m)
    sCNT=38; sSTG=39; sDX=40; sDW=41
    for br in (0,1):
        bn="AB"[br]
        if br==0: a(f"s_cmp_eq_u32 s{sBR}, 1\ns_cbranch_scc1 {name}_cB")
        else: a.label(f"{name}_cB")
        a(f"s_mov_b32 s{sCNT}, 0\ns_mov_b32 s{sSTG}, 0\ns_waitcnt vmcnt(0)\nv_readfirstlane_b32 s{sN}, v31\ns_nop 3\ns_add_u32 s{sN}, s{sN}, 1")
        a("s_barrier")
        pf.pt("p")
        for l in reads(0,0): a(l)
        a.label(f"{name}_loop{bn}")
        for ks in range(3):
            a("s_waitcnt lgkmcnt(0)")
            step(ks&1, br, reads((ks+1)&1, ks+1))
        a(f"""
        s_add_u32 s{sSTG}, s{sSTG}, 1
        s_cmp_eq_u32 s{sSTG}, {NS}
        s_cselect_b32 s{sDX}, s58, s59
        s_cselect_b32 s{sDW}, s60, s61
        s_cselect_b32 s{sSTG}, 0, s{sSTG}
        s_waitcnt lgkmcnt(0)
        s_barrier
        """)
        if cfg.get("chunkstamps"):
            for c in range(7):
                lab=a.newlabel("cs")
                a(f"s_cmp_lg_u32 s{sCNT}, {c}\ns_cbranch_scc1 {lab}")
                pf.pt(f"c{c}")
                a.label(lab)
        for ks in range(4): a(f"v_add_u32 v{vXA+ks}, s{sDX}, v{vXA+ks}")
        a(f"v_add_u32 v{vWA}, s{sDW}, v{vWA}")
        step(1, br, reads(0,0))
        a(f"""
        s_add_u32 s{sCNT}, s{sCNT}, 1
        s_cmp_lt_u32 s{sCNT}, 7
        s_cbranch_scc1 {name}_loop{bn}
        """)
        sOFF=42; sH=43; sTB=44
        def epi_addr():
            a(f"""
            s_lshl_b32 s{sH}, s{sG}, 2
            s_lshl_b32 s{sT}, s{sFN}, 1
            s_add_u32 s{sH}, s{sH}, s{sT}
            s_lshl_b32 s{sTB}, s{sR}, 2
            s_lshl_b32 s{sT}, s{sTM}, 1
            s_add_u32 s{sTB}, s{sTB}, s{sT}
            s_lshl_b32 s{sOFF}, s{sH}, 16
            s_lshl_b32 s{sT}, s{sTB}, 10
            s_add_u32 s{sOFF}, s{sOFF}, s{sT}
            v_lshlrev_b32 v9, 4, v1
            """)
        T0=128
        if br==1 and cfg.get("lastchunk"):
            epi_addr()
            a(f"""
            s_mov_b32 s46, {f2u(CSCALE):#x}
            s_mov_b32 s47, {f2u(CSCALE):#x}
            v_bfe_u32 v10, v1, 4, 1
            v_lshlrev_b32 v10, 16, v10
            v_lshrrev_b32 v11, 5, v1
            v_lshl_add_u32 v10, v11, 8, v10
            v_and_b32 v11, 15, v1
            v_lshl_add_u32 v10, v11, 4, v10
            """)
            XL={0:[xf(0,0),xf(0,1)]}; WL={(0,sec):wf(0,sec) for sec in range(3)}
            reg=168
            for ks in range(1,4): XL[ks]=[reg,reg+4]; reg+=8
            for sec in (1,2,0):
                for ks in range(1,4): WL[(ks,sec)]=reg; reg+=4
            assert reg<=232
            q=[]; st={"done":0}
            def rx(ks):
                a(f"ds_read_b128 {vr(XL[ks][0],4)}, v{vXA+ks}"); q.append(("x",ks))
                a(f"ds_read_b128 {vr(XL[ks][1],4)}, v{vXA+ks} offset:4096"); q.append(("x",ks))
            def rw(ks,sec):
                for t in range(2):
                    a(f"ds_read_b64_tr_b16 {vr(WL[(ks,sec)]+2*t,2)}, v{vWA} offset:{sec*8192+ks*2048+t*512}"); q.append(("w",ks,sec))
            def wait_for(tags):
                idx=[i for i,x in enumerate(q) if x in tags]
                if not idx or max(idx)<st["done"]: return
                n=len(q)-1-max(idx); assert n<=15 and len(q)-st["done"]<=15,(n,len(q),st)
                a(f"s_waitcnt lgkmcnt({n})"); st["done"]=max(idx)+1
            def mm(sec,ks,tt):
                featrow = sec in (0,1)
                A_,B_ = (WL[(ks,sec)],XL[ks][tt]) if featrow else (XL[ks][tt],WL[(ks,sec)])
                a(f"v_mfma_f32_32x32x16_bf16 {vr(acc(tt,sec),16)}, {vr(A_,4)}, {vr(B_,4)}, {vr(acc(tt,sec),16)}")
            TK=128+8
            TK=148
            def kops():
                L=[]
                for tt in range(2):
                    b=acc(tt,1); tmp=TK+8*tt
                    for i in range(8): L.append(f"v_cvt_pk_bf16_f32 v{tmp+i}, v{b+2*i}, v{b+2*i+1}")
                    L.append(f"s_add_u32 s{sT}, s{sOFF}, {KF+tt*1024}\nbuffer_store_dwordx4 {vr(tmp,4)}, v9, s[{SWS}:{SWS+3}], s{sT} offen {STF}")
                    L.append(f"s_add_u32 s{sT2}, s{sOFF}, {KF+tt*1024+65536}\nbuffer_store_dwordx4 {vr(tmp+4,4)}, v9, s[{SWS}:{SWS+3}], s{sT2} offen {STF}")
                return L
            TV=232
            def vops():
                L=[]
                for tt in range(2):
                    b=acc(tt,2); tmp=[232,148][tt]
                    for i in range(8): L.append(f"v_cvt_pk_bf16_f32 v{tmp+i}, v{b+2*i}, v{b+2*i+1}")
                    L.append(f"s_add_u32 s{sT}, s{sOFF}, {VF+tt*1024}\nbuffer_store_dwordx4 {vr(tmp,4)}, v10, s[{SWS}:{SWS+3}], s{sT} offen {STF}")
                    L.append(f"buffer_store_dwordx4 {vr(tmp+4,4)}, v10, s[{SWS}:{SWS+3}], s{sT} offen offset:512 {STF}")
                return L
            a("s_waitcnt lgkmcnt(0)")
            rx(1); rw(1,1); rx(2); rw(2,1)
            mm(1,0,0); mm(1,0,1)
            rx(3); rw(3,1)
            wait_for([("x",1),("w",1,1)]); mm(1,1,0); rw(1,2); mm(1,1,1)
            wait_for([("x",2),("w",2,1)]); mm(1,2,0); rw(2,2); mm(1,2,1)
            wait_for([("x",3),("w",3,1)]); mm(1,3,0); rw(3,2); mm(1,3,1)
            mm(2,0,0); rw(1,0); mm(2,0,1); rw(2,0)
            wait_for([("w",1,2)]); mm(2,1,0); rw(3,0); mm(2,1,1)
            a("s_nop 3")
            K=kops()
            for l in K[0:5]: a(l)
            wait_for([("w",2,2)]); mm(2,2,0)
            for l in K[5:10]: a(l)
            mm(2,2,1)
            for l in K[10:15]: a(l)
            wait_for([("w",3,2)]); mm(2,3,0)
            for l in K[15:20]: a(l)
            mm(2,3,1)
            mm(0,0,0); mm(0,0,1)
            wait_for([("w",1,0)]); mm(0,1,0); mm(0,1,1)
            a("s_nop 7")
            V=vops()
            for l in V[0:5]: a(l)
            wait_for([("w",2,0)]); mm(0,2,0)
            for l in V[5:10]: a(l)
            mm(0,2,1)
            for l in V[10:15]: a(l)
            wait_for([("w",3,0)]); mm(0,3,0)
            for l in V[15:20]: a(l)
            mm(0,3,1)
            pf.pt("loop")
            a("s_nop 15")
            tmp=168
            for tt in range(2):
                b=acc(tt,0)
                for i in range(8): a(f"v_pk_mul_f32 {vr(b+2*i,2)}, {vr(b+2*i,2)}, s[46:47]")
                for i in range(8): a(f"v_cvt_pk_bf16_f32 v{tmp+i}, v{b+2*i}, v{b+2*i+1}")
                a(f"s_add_u32 s{sT}, s{sOFF}, {QF+tt*1024}")
                a(f"buffer_store_dwordx4 {vr(tmp,4)}, v9, s[{SWS}:{SWS+3}], s{sT} offen {STF}")
                a(f"s_add_u32 s{sT2}, s{sOFF}, {QF+tt*1024+65536}")
                a(f"buffer_store_dwordx4 {vr(tmp+4,4)}, v9, s[{SWS}:{SWS+3}], s{sT2} offen {STF}")
                tmp+=8
            a(f"s_branch {name}_p1done")
            continue
        for ks in range(3):
            a("s_waitcnt lgkmcnt(0)")
            step(ks&1, br, reads((ks+1)&1, ks+1))
        a("s_waitcnt lgkmcnt(0)")
        step(1, br, [])
        pf.pt("loop")
        epi_addr()
        if br==1:
            a(f"s_mov_b32 s46, {f2u(CSCALE):#x}\ns_mov_b32 s47, {f2u(CSCALE):#x}")
            a(f"""
            v_bfe_u32 v10, v1, 4, 1
            v_lshlrev_b32 v10, 16, v10
            v_lshrrev_b32 v11, 5, v1
            v_lshl_add_u32 v10, v11, 8, v10
            v_and_b32 v11, 15, v1
            v_lshl_add_u32 v10, v11, 4, v10
            s_nop 7
            """)
            tmp=T0
            for tt in range(2):
                b=acc(tt,1)
                for i in range(8): a(f"v_cvt_pk_bf16_f32 v{tmp+i}, v{b+2*i}, v{b+2*i+1}")
                a(f"s_add_u32 s{sT}, s{sOFF}, {KF+tt*1024}")
                a(f"buffer_store_dwordx4 {vr(tmp,4)}, v9, s[{SWS}:{SWS+3}], s{sT} offen {STF}")
                a(f"s_add_u32 s{sT2}, s{sOFF}, {KF+tt*1024+65536}")
                a(f"buffer_store_dwordx4 {vr(tmp+4,4)}, v9, s[{SWS}:{SWS+3}], s{sT2} offen {STF}")
                tmp+=8
            for tt in range(2):
                b=acc(tt,2)
                for i in range(8): a(f"v_cvt_pk_bf16_f32 v{tmp+i}, v{b+2*i}, v{b+2*i+1}")
                a(f"s_add_u32 s{sT}, s{sOFF}, {VF+tt*1024}")
                a(f"buffer_store_dwordx4 {vr(tmp,4)}, v10, s[{SWS}:{SWS+3}], s{sT} offen {STF}")
                a(f"buffer_store_dwordx4 {vr(tmp+4,4)}, v10, s[{SWS}:{SWS+3}], s{sT} offen offset:512 {STF}")
                tmp+=8
            for tt in range(2):
                b=acc(tt,0)
                for i in range(8): a(f"v_pk_mul_f32 {vr(b+2*i,2)}, {vr(b+2*i,2)}, s[46:47]")
                for i in range(8): a(f"v_cvt_pk_bf16_f32 v{tmp+i}, v{b+2*i}, v{b+2*i+1}")
                a(f"s_add_u32 s{sT}, s{sOFF}, {QF+tt*1024}")
                a(f"buffer_store_dwordx4 {vr(tmp,4)}, v9, s[{SWS}:{SWS+3}], s{sT} offen {STF}")
                a(f"s_add_u32 s{sT2}, s{sOFF}, {QF+tt*1024+65536}")
                a(f"buffer_store_dwordx4 {vr(tmp+4,4)}, v9, s[{SWS}:{SWS+3}], s{sT2} offen {STF}")
                tmp+=8
            a(f"s_branch {name}_p1done")
        else:
            a(f"""
            s_mov_b32 s46, {f2u(LOG2E):#x}
            s_mov_b32 s47, {f2u(LOG2E):#x}
            s_mov_b32 s48, 1.0
            s_mov_b32 s49, 1.0
            s_mov_b32 s50, {f2u(1e-6):#x}
            s_mov_b32 s51, {f2u(1e-6):#x}
            s_mov_b32 s52, 0x0000ffff
            s_mov_b32 s53, 0x0000ffff
            v_mov_b32 v20, 0x3f803f80
            v_mov_b32 v21, 0x3f803f80
            v_mov_b32 v22, 0x3f803f80
            v_mov_b32 v23, 0x3f803f80
            s_nop 4
            """)
            U=168
            def phi(b):
                for i in range(8): a(f"v_pk_mul_f32 {vr(U+2*i,2)}, {vr(b+2*i,2)}, s[46:47]")
                for i in range(16): a(f"v_exp_f32 v{U+i}, v{U+i} clamp")
                for i in range(8): a(f"v_pk_add_f32 {vr(b+2*i,2)}, {vr(b+2*i,2)}, s[48:49]")
                for i in range(16): a(f"v_max_f32 v{b+i}, v{b+i}, v{U+i}")
                for i in range(8): a(f"v_pk_add_f32 {vr(b+2*i,2)}, {vr(b+2*i,2)}, s[50:51]")
            PK=[128,136]; VV=[144,152]; D=184; D2=200
            def qpart(tt,tmp):
                b=acc(tt,0)
                phi(b)
                for i in range(8): a(f"v_cvt_pk_bf16_f32 v{tmp+i}, v{b+2*i}, v{b+2*i+1}")
                if DEF: return
                a(f"s_add_u32 s{sT}, s{sOFF}, {PQ+tt*1024}")
                a(f"buffer_store_dwordx4 {vr(tmp,4)}, v9, s[{SWS}:{SWS+3}], s{sT} offen {STF}")
                a(f"s_add_u32 s{sT2}, s{sOFF}, {PQ+tt*1024+65536}")
                a(f"buffer_store_dwordx4 {vr(tmp+4,4)}, v9, s[{SWS}:{SWS+3}], s{sT2} offen {STF}")
            QF1=cfg.get("a_qfirst",False)
            if QF1: qpart(0,216); qpart(1,224)
            for tt in range(2):
                b=acc(tt,2)
                for i in range(8): a(f"v_cvt_pk_bf16_f32 v{VV[tt]+i}, v{b+2*i}, v{b+2*i+1}")
            for tt in range(2):
                b=acc(tt,1)
                phi(b)
                for i in range(8): a(f"v_cvt_pk_bf16_f32 v{PK[tt]+i}, v{b+2*i}, v{b+2*i+1}")
                a("s_nop 1")
                for m in range(2):
                    c1 = "0" if (tt==0 and m==0) else vr(D,16)
                    c2 = "0" if (tt==0 and m==0) else vr(D2,16)
                    a(f"v_mfma_f32_32x32x16_bf16 {vr(D,16)}, {vr(PK[tt]+4*m,4)}, {vr(VV[tt]+4*m,4)}, {c1}")
                    a(f"v_mfma_f32_32x32x16_bf16 {vr(D2,16)}, {vr(PK[tt]+4*m,4)}, v[20:23], {c2}")
            def kvp_addr():
                a(f"""
                v_and_b32 v11, 31, v1
                v_lshrrev_b32 v12, 5, v1
                v_and_b32 v13, 15, v1
                v_lshlrev_b32 v13, 5, v13
                v_lshl_add_u32 v13, v12, 9, v13
                v_lshlrev_b32 v14, 5, v12
                v_add_u32 v14, 1024, v14
                v_mov_b32 v15, 0x40000000
                v_cmp_eq_u32 s[54:55], 16, v11
                v_cmp_eq_u32 s[56:57], 0, v11
                s_nop 1
                v_cndmask_b32_e64 v16, v15, v14, s[54:55]
                v_cndmask_b32_e64 v17, v15, v14, s[56:57]
                v_cndmask_b32_e64 v16, v16, v13, s[52:53]
                v_cndmask_b32_e64 v17, v13, v17, s[52:53]
                """)
            if QF1:
                kvp_addr()
                a("s_nop 1")
            else:
                a("s_nop 15")
            for r in range(8):  a(f"v_cndmask_b32_e64 v{D+r}, v{D2+r}, v{D+r}, s[52:53]")
            for r in range(8,16): a(f"v_cndmask_b32_e64 v{D+r}, v{D+r}, v{D2+r}, s[52:53]")
            EX = 0
            a(f"""
            s_lshl_b32 s{sT}, s{sFN}, 12
            s_add_u32 s{sT}, s{sT}, {EX}
            v_add_u32 v10, s{sT}, v9
            s_cmp_eq_u32 s{sTM}, 0
            s_cbranch_scc1 {name}_Ard
            """)
            for q in range(4): a(f"ds_write_b128 v10, {vr(D+4*q,4)} offset:{q*1024}")
            a(f"s_waitcnt lgkmcnt(0)")
            a.label(f"{name}_Ard")
            a("s_barrier")
            a(f"s_cmp_lg_u32 s{sTM}, 0\ns_cbranch_scc1 {name}_Aq")
            for q in range(4): a(f"ds_read_b128 {vr(D2+4*q,4)}, v10 offset:{q*1024}")
            if not QF1: kvp_addr()
            a(f"""
            s_lshl_b32 s{sT}, s{sH}, 4
            s_add_u32 s{sT}, s{sT}, s{sR}
            s_mul_i32 s{sT}, s{sT}, 1088
            s_add_u32 s{sT}, s{sT}, {KVP}
            s_add_u32 s{sT2}, s{sT}, {16*1088}
            s_waitcnt lgkmcnt(0)
            """)
            for i in range(8): a(f"v_pk_add_f32 {vr(D+2*i,2)}, {vr(D+2*i,2)}, {vr(D2+2*i,2)}")
            a(f"""
            buffer_store_dwordx4 {vr(D,4)}, v16, s[{SWS}:{SWS+3}], s{sT} offen {STF}
            buffer_store_dwordx4 {vr(D+4,4)}, v16, s[{SWS}:{SWS+3}], s{sT} offen offset:16 {STF}
            buffer_store_dwordx4 {vr(D+8,4)}, v17, s[{SWS}:{SWS+3}], s{sT2} offen {STF}
            buffer_store_dwordx4 {vr(D+12,4)}, v17, s[{SWS}:{SWS+3}], s{sT2} offen offset:16 {STF}
            """)
            a.label(f"{name}_Aq")
            if not QF1: qpart(0,216); qpart(1,224 if DEF else 128)
            if DEF:
                a(f"""
                s_mov_b32 s82, s{sOFF}
                s_lshl_b32 s{sT}, s{sG}, 1
                s_add_u32 s{sT}, s{sT}, s{sFN}
                s_mul_i32 s{sT}, s{sT}, {FPSTR}
                s_lshl_b32 s{sT2}, s{sR}, 1
                s_add_u32 s{sT2}, s{sT2}, s{sTM}
                s_lshl_b32 s{sT2}, s{sT2}, 7
                s_add_u32 s{sT}, s{sT}, s{sT2}
                s_add_u32 s84, s{sT}, {FP}
                s_mov_b32 s83, 1
                """)
            a(f"s_branch {name}_p1done")
    mark_loader_start=len(a.lines)
    a.label(f"{name}_loader")
    if not FAST: loader_setup()
    def issue(c, part=None):
        st=c%NS
        L=[]
        hdr=f"""
        s_add_u32 s{sT}, s{sROT}, {c}
        s_and_b32 s{sT}, s{sT}, 7
        s_lshl_b32 s{sXC}, s{sT}, 7
        s_add_u32 s{sXC}, s{sXC}, s{sXB}
        s_mul_i32 s{sWC}, s{sT}, 196608
        s_add_u32 s{sWC}, s{sWC}, s{sWBs}
        """
        for i in range(4):
            L.append(f"s_add_u32 m0, s{sL}, {XB+st*XS+i*4096}\ns_add_u32 s{sT}, s{sXC}, {i*32768}\nbuffer_load_dwordx4 v5, s[{SX}:{SX+3}], s{sT} offen {LDX} lds")
        for jj in range(2):
            for sec in range(3):
                L.append(f"s_add_u32 m0, s{sL}, {WB+st*WS_+sec*8192+jj*4096}\ns_add_u32 s{sT}, s{sWC}, {jj*4*24576+sec*1024}\nbuffer_load_dwordx4 v6, s[{SW}:{SW+3}], s{sT} offen {LDW} lds")
        lo,hi = part if part else (0,10)
        if lo==0: a(hdr)
        for l in L[lo:hi]: a(l)
    k0=cfg.get("pro_k",5)
    issue(0)
    if FAST: nonce_load()
    issue(1,(0,k0))
    a(f"s_waitcnt vmcnt({k0})\nv_readfirstlane_b32 s{sN}, v31\ns_nop 3\ns_add_u32 s{sN}, s{sN}, 1\ns_barrier")
    if k0<10: issue(1,(k0,10))
    issue(2)
    for c in range(7):
        issued=min(8,c+NS)
        rem=10*(issued-(c+2))
        if c==6: rem=16 if P3V==1 else 17
        a(f"s_waitcnt vmcnt({rem})\ns_barrier")
        if c+NS<8: issue(c+NS)
        if c==5:
            a(f"""
            s_cmp_eq_u32 s{sP3BR}, 0
            s_cselect_b32 s28, s{sAWO}, s{sBWO}
            s_cselect_b32 s29, s{sAWO+1}, s{sBWO+1}
            s_mov_b32 s30, 0x80000
            s_mov_b32 s31, 0x20000
            s_lshl_b32 s{sXC}, s{sP3NS}, {7 if P3V==1 else 8}
            s_lshl_b32 s{sT}, s{sE}, 13
            s_add_u32 s{sXC}, s{sXC}, s{sT}
            """)
            if P3V==1 and cfg.get("p3rot",0):
                a(f"s_lshl_b32 s{sXC}, s{sP3NS}, 7\ns_mul_i32 s{sWC}, s{sP3NS}, {2*cfg['p3rot']}\ns_add_u32 s{sWC}, s{sWC}, s{sE}")
                for u in range(16):
                    a(f"s_add_u32 m0, s{sL}, {WOL+u*4096}")
                    a(f"s_add_u32 s{sT}, s{sWC}, {4*u}\ns_and_b32 s{sT}, s{sT}, 63\ns_lshl_b32 s{sT}, s{sT}, 13\ns_add_u32 s{sT}, s{sT}, s{sXC}")
                    a(f"buffer_load_dwordx4 v7, s[28:31], s{sT} offen lds")
            else:
              for u in range(16):
                a(f"s_add_u32 m0, s{sL}, {WOL+u*4096}")
                a(f"s_add_u32 s{sT}, s{sXC}, {u*32768+(0 if P3V==1 else 128)}")
                a(f"buffer_load_dwordx4 v7, s[28:31], s{sT} offen lds")
            if P3V==2:
                a(f"""
                v_and_b32 v8, 15, v1
                s_lshl_b32 s{sT}, s{sE}, 4
                v_add_u32 v8, s{sT}, v8
                v_lshlrev_b32 v8, 10, v8
                s_bfe_u32 s{sT}, s2, 0x30003
                s_lshl_b32 s{sT}, s{sT}, 16
                s_lshl_b32 s{sXC}, s{sP3NS}, 8
                s_add_u32 s{sT}, s{sT}, s{sXC}
                buffer_load_dword v9, v8, s[28:31], s{sT} offen
                """)
    a(f"s_cmp_eq_u32 s{sBR}, 1\ns_cbranch_scc1 {name}_p1bar\ns_barrier\ns_branch {name}_p1bar")
    if FAST:
        blk=a.lines[mark_loader_start:]
        del a.lines[mark_loader_start:]
        a.lines[mark_entry_end:mark_entry_end]=blk
    a.label(f"{name}_p1done")
    pf.pt("epi")
    a("s_waitcnt vmcnt(0)")
    a.label(f"{name}_p1bar")
    a("s_barrier")
    R=K2R
    a(f"""
    s_cmp_lg_u32 s{sWV}, 0
    s_cbranch_scc1 {name}_nf1
    s_lshl_b32 s{sT}, s{sBR}, 3
    s_add_u32 s{sT}, s{sT}, s{sG}
    s_mul_i32 s{sT}, s{sT}, {FSTR}
    s_lshl_b32 s{sT2}, s{sR}, 7
    s_add_u32 s{sT}, s{sT}, s{sT2}
    s_add_u32 s{sT}, s{sT}, {F1}
    v_mov_b32 v12, 0
    v_mov_b32 v13, s{sN}
    buffer_store_dword v13, v12, s[{SWS}:{SWS+3}], s{sT} offen sc1
    {name}_nf1:
    """)
    pf.pt("b1")
    a(f"""
    s_mov_b32 s{R.sWAVE}, s{sWV}
    s_bfe_u32 s{R.sRB}, s2, 0x30003
    s_and_b32 s{R.sH}, s2, 7
    s_lshr_b32 s{R.sT}, s2, 6
    s_lshl_b32 s{R.sT}, s{R.sT}, 3
    s_add_u32 s{R.sH}, s{R.sH}, s{R.sT}
    v_lshlrev_b32 v3, 4, v1
    s_lshl_b32 s{R.sQB}, s{R.sRB}, 3
    s_add_u32 s{R.sQB}, s{R.sQB}, s{R.sWAVE}
    s_mov_b32 s{R.SWS}, s{sWSP}
    s_mov_b32 s{R.SWS+1}, s{sWSP+1}
    s_mov_b32 s{R.SWS+2}, {WS_USED}
    s_mov_b32 s{R.SWS+3}, 0x20000
    """)
    k2_setup_consts(a,R)
    sFA=12; sNEED=14
    a(f"""
    v_lshlrev_b32 v2, 7, v1
    s_lshr_b32 s{sFA}, s{R.sH}, 2
    s_mul_i32 s{sFA}, s{sFA}, {FSTR}
    s_add_u32 s13, s{sFA}, {F1}               ; A row
    s_add_u32 s{sFA}, s{sFA}, {F1+8*FSTR}     ; B row
    """)
    if cfg.get("wavepoll"):
        a(f"""
        s_lshl_b32 s{R.sT}, s{R.sRB}, 1
        s_lshr_b32 s{R.sT2}, s{sWV}, 1
        s_add_u32 s{R.sT2}, s{R.sT2}, s{R.sT}
        s_sub_i32 s{R.sT2}, s{R.sT2}, 2
        s_max_i32 s{R.sT2}, s{R.sT2}, 0
        s_lshl_b32 s{sNEED}, 1, s{R.sT2}
        s_lshr_b32 s{R.sT2}, s{sWV}, 2
        s_add_u32 s{R.sT2}, s{R.sT2}, s{R.sT}
        s_lshl_b32 s{R.sT2}, 1, s{R.sT2}
        s_or_b32 s{sNEED}, s{sNEED}, s{R.sT2}
        s_mov_b32 s{sNEED+1}, 0
        """)
        poll(a,"pb",R.SWS,sFA,sNEED,sNEED+1,12,2,sleep=cfg.get("sleep1",4))
    else:
        a(f"""
        s_cmp_lg_u32 s{sWV}, 0
        s_cbranch_scc1 {name}_np2
        s_lshl_b32 s{R.sT}, s{R.sRB}, 1
        s_lshl_b32 s{sNEED}, 15, s{R.sT}
        s_lshr_b32 s{sNEED}, s{sNEED}, 2          ; (0b1111 << 2rb) >> 2
        s_mov_b32 s{sNEED+1}, 0
        """)
        poll(a,"pb",R.SWS,sFA,sNEED,sNEED+1,12,2,sleep=cfg.get("sleep1",4))
        a.label(f"{name}_np2")
        a("s_waitcnt lgkmcnt(0)\ns_barrier")
    pf.pt("b2")
    k2_load_b(a,R,HLD)
    if DEF:
        a(f"s_cmp_eq_u32 s83, 0\ns_cbranch_scc1 {name}_nopq")
        for tt in range(2):
            a(f"s_add_u32 s{R.sT}, s82, {PQ+tt*1024}\nbuffer_store_dwordx4 {vr(216+8*tt,4)}, v3, s[{R.SWS}:{R.SWS+3}], s{R.sT} offen {STF}")
            a(f"s_add_u32 s{R.sT2}, s82, {PQ+tt*1024+65536}\nbuffer_store_dwordx4 {vr(220+8*tt,4)}, v3, s[{R.SWS}:{R.SWS+3}], s{R.sT2} offen {STF}")
        a(f"s_waitcnt vmcnt(4)\ns_branch {name}_pqd\n{name}_nopq:\ns_waitcnt vmcnt(0)\n{name}_pqd:\ns_barrier")
    else:
        a("s_waitcnt vmcnt(0) lgkmcnt(0)\ns_barrier")
    pf.pt("kv")
    def h_pre():
        a(f"s_mov_b64 exec, 0xffff\nbuffer_load_dword v13, v2, s[{R.SWS}:{R.SWS+3}], s13 offen sc1\ns_mov_b64 exec, -1")
    def h_post0():
        pf.pt("post0")
        D=a.newlabel("pa")
        a(f"""
        s_mov_b32 s{sNEED}, 0xffff
        s_mov_b32 s{sNEED+1}, 0
        s_waitcnt vmcnt(0)
        v_cmp_eq_u32 vcc, s{sN}, v13
        s_and_b64 vcc, vcc, s[{sNEED}:{sNEED+1}]
        s_cmp_eq_u64 vcc, s[{sNEED}:{sNEED+1}]
        s_cbranch_scc1 {D}
        """)
        poll(a,"pa2",R.SWS,13,sNEED,sNEED+1,13,2)
        a.label(D)
        pf.pt("aflag")
        if DEF:
            lab=a.newlabel("pqf")
            a(f"""
            s_cmp_eq_u32 s83, 0
            s_cbranch_scc1 {lab}
            v_mov_b32 v12, 0
            v_mov_b32 v13, s{sN}
            buffer_store_dword v13, v12, s[{R.SWS}:{R.SWS+3}], s84 offen sc1
            {lab}:
            """)
        k2_load_a(a,R,HLD,name,pq=not DEF)
    def pq_addr():
        a(f"""
        s_lshr_b32 s14, s{R.sH}, 1
        s_mul_i32 s14, s14, {FPSTR}
        s_lshr_b32 s15, s{R.sQB}, 1
        s_lshl_b32 s15, s15, 7
        s_add_u32 s14, s14, s15
        s_add_u32 s16, s14, {FP}
        v_mov_b32 v12, 0
        """)
    def pq_load():
        a(f"""
        s_lshl_b32 s{R.sT}, s{R.sH}, 16
        s_lshl_b32 s{R.sT2}, s{R.sQB}, 10
        s_add_u32 s{R.sT}, s{R.sT}, s{R.sT2}
        s_add_u32 s{R.sT}, s{R.sT}, {PQ}
        buffer_load_dwordx4 {vr(R.vPQ,4)}, v3, s[{R.SWS}:{R.SWS+3}], s{R.sT} offen {HLD}
        """)
    def pq_check(first):
        D=a.newlabel("pqd")
        a("s_mov_b32 s14, 1\ns_mov_b32 s15, 0")
        if first:
            a(f"""
            s_waitcnt vmcnt(0)
            v_readfirstlane_b32 s{R.sT}, v13
            s_cmp_eq_u32 s{R.sT}, s{sN}
            s_cbranch_scc1 {D}
            """)
        poll(a,"pq2",R.SWS,16,14,15,13,12,sleep=2)
        a.label(D)
        pq_load()
    def h_probe():
        lab=a.newlabel("pr")
        a(f"s_cmp_eq_u32 s{R.sRB}, 0\ns_cbranch_scc1 {lab}")
        pq_addr()
        a(f"buffer_load_dword v13, v12, s[{R.SWS}:{R.SWS+3}], s16 offen sc1\n{lab}:")
    def h_check():
        lab=a.newlabel("ck")
        a(f"s_cmp_eq_u32 s{R.sRB}, 0\ns_cbranch_scc1 {lab}")
        pq_check(True)
        a.label(lab)
    hk={"pre":h_pre,"post0":h_post0}
    if DEF: hk[("it",cfg.get("pq_at",2)+1)]=h_probe; hk[("it",cfg.get("pq_at",2))]=h_check
    k2_attn(a,R,name,cfg,pf,hooks=hk)
    if DEF:
        lab=a.newlabel("rb0")
        a(f"s_cmp_lg_u32 s{R.sRB}, 0\ns_cbranch_scc1 {lab}")
        pq_addr(); pq_check(False)
        a.label(lab)
    a(f"""
    s_lshl_b32 s{R.sT}, s{R.sQB}, 5
    s_add_u32 s{R.sT}, s{R.sT}, s{R.sH}
    s_lshl_b32 s{R.sT}, s{R.sT}, 10
    s_add_u32 s{R.sOB}, s{R.sT}, {OF}
    s_add_u32 s{R.sT}, s{R.sOB}, {64*32*1024}
    buffer_store_dwordx4 {vr(R.TMP,4)}, v3, s[{R.SWS}:{R.SWS+3}], s{R.sT} offen {STF}
    """)
    pf.pt("att")
    a("s_waitcnt vmcnt(1)\ns_barrier")
    pf.pt("kvp")
    k2_apart(a,R,name)
    pf.pt("apart")
    a(f"buffer_store_dwordx4 {vr(R.TMP+4,4)}, v3, s[{R.SWS}:{R.SWS+3}], s{R.sOB} offen {STF}")
    a("s_waitcnt vmcnt(0)")
    pf.pt("odrain")
    a("s_barrier")
    pf.pt("b5")
    if P3V==2:
        WOL0=32768
        a(f"""
        s_cmp_lt_u32 s{sWV}, 4
        s_cbranch_scc1 {name}_wod
        v_lshrrev_b32 v4, 3, v1
        v_and_b32 v5, 7, v1
        v_bfe_u32 v6, v1, 4, 1
        v_lshlrev_b32 v6, 2, v6
        v_xor_b32 v6, v6, v5
        v_lshlrev_b32 v7, 10, v4
        v_lshl_add_u32 v7, v6, 4, v7
        s_cmp_eq_u32 s{sP3BR}, 0
        s_cselect_b32 s16, s{sAWO}, s{sBWO}
        s_cselect_b32 s17, s{sAWO+1}, s{sBWO+1}
        s_mov_b32 s18, 0x80000
        s_mov_b32 s19, 0x20000
        s_sub_u32 s29, s{sWV}, 4
        s_lshl_b32 s28, s{sP3NS}, 8
        s_lshl_b32 s{R.sT}, s29, 13
        s_add_u32 s28, s28, s{R.sT}
        s_lshl_b32 s29, s29, 10
        """)
        for u in range(16):
            a(f"s_add_u32 m0, s29, {WOL0+u*4096}\ns_add_u32 s{R.sT}, s28, {u*32768}\nbuffer_load_dwordx4 v7, s[16:19], s{R.sT} offen lds")
        a.label(f"{name}_wod")
    a(f"""
    s_cmp_lg_u32 s{sWV}, 0
    s_cbranch_scc1 {name}_nf2
    s_mul_i32 s{R.sT}, s{R.sRB}, {F2STR}
    s_lshl_b32 s{R.sT2}, s{R.sH}, 7
    s_add_u32 s{R.sT}, s{R.sT}, s{R.sT2}
    s_add_u32 s{R.sT}, s{R.sT}, {F2}
    v_mov_b32 v12, 0
    v_mov_b32 v13, s{sN}
    buffer_store_dword v13, v12, s[{R.SWS}:{R.SWS+3}], s{R.sT} offen sc1
    s_lshr_b32 s{sFA}, s{sP3T}, {2 if P3V==2 else 1}
    s_mul_i32 s{sFA}, s{sFA}, {F2STR}
    s_add_u32 s{sFA}, s{sFA}, {F2}
    s_mov_b32 s{sNEED}, -1
    s_mov_b32 s{sNEED+1}, 0
    """)
    poll(a,"p3",R.SWS,sFA,sNEED,sNEED+1,12,2,sleep=cfg.get("sleep2",4))
    a.label(f"{name}_nf2")
    if P3V==2: a("s_waitcnt vmcnt(0)")
    a("s_barrier")
    pf.pt("f2")
    if pf.on and cfg.get("pwave",0)>=4:
        pf0.flush(len(PTS),4,2,wave=cfg["pwave"])
    if P3V==2:
        gen_p3v2(a,name,cfg,R,pf,pf0,PTS,OSTF,HLD)
        return dict(name=name, grid=256, block=512, lds=163840, vgpr=248, sgpr=102)
    a(f"s_cmp_ge_u32 s{sWV}, 4\ns_cbranch_scc1 {name}_end")
    SOUT=16; sTB=27; sOB=28
    a(f"""
    s_lshl_b32 s{sTB}, s{sP3T}, 2
    s_add_u32 s{sTB}, s{sTB}, s{sWV}
    s_lshl_b32 s{sT}, s{sP3BR}, 6
    s_add_u32 s{sT}, s{sT}, s{sTB}
    s_lshl_b32 s{sOB}, s{sT}, 15
    s_add_u32 s{sOB}, s{sOB}, {OF}
    """)
    OFR=64; ACC3=32; WFR=[8,16]; vWA3=5
    DEPTH=cfg.get("p3_depth",10)
    if cfg.get("p3rot",0): a(f"s_mul_i32 s29, s{sP3NS}, {cfg['p3rot']}")
    def oload(h):
        if cfg.get("p3rot",0):
            a(f"s_add_u32 s{sT2}, s29, {h}\ns_and_b32 s{sT2}, s{sT2}, 31\ns_lshl_b32 s{sT2}, s{sT2}, 10\ns_add_u32 s{sT2}, s{sT2}, s{sOB}\nbuffer_load_dwordx4 {vr(OFR+4*h,4)}, v3, s[{R.SWS}:{R.SWS+3}], s{sT2} offen {HLD}")
        else:
            a(f"s_add_u32 s{sT2}, s{sOB}, {h*1024}\nbuffer_load_dwordx4 {vr(OFR+4*h,4)}, v3, s[{R.SWS}:{R.SWS+3}], s{sT2} offen {HLD}")
    for h in range(DEPTH): oload(h)
    a(f"""
    s_mov_b32 s{SOUT}, s{sOUT}
    s_mov_b32 s{SOUT+1}, s{sOUT+1}
    s_mov_b32 s{SOUT+2}, 0x400000
    s_mov_b32 s{SOUT+3}, 0x20000
    v_bfe_u32 v6, v1, 2, 2
    v_lshrrev_b32 v7, 5, v1
    v_lshl_add_u32 v6, v7, 2, v6
    v_lshlrev_b32 v6, 7, v6
    v_and_b32 v7, 1, v1
    v_lshlrev_b32 v7, 1, v7
    v_bfe_u32 v24, v1, 4, 1
    v_or_b32 v7, v7, v24
    v_bfe_u32 v24, v1, 3, 1
    v_lshlrev_b32 v24, 2, v24
    v_xor_b32 v7, v7, v24
    v_lshl_add_u32 v6, v7, 4, v6
    v_bfe_u32 v24, v1, 1, 1
    v_lshl_add_u32 v{vWA3}, v24, 3, v6
    v_xor_b32 v{vWA3+1}, 64, v{vWA3}
    v_add_u32 v{vWA3}, {WOL}, v{vWA3}
    v_add_u32 v{vWA3+1}, {WOL}, v{vWA3+1}
    """)
    def reads3(s,h):
        L=[]
        for nt in range(2):
            for t in range(2):
                L.append(f"ds_read_b64_tr_b16 {vr(WFR[s]+4*nt+2*t,2)}, v{vWA3+nt} offset:{h*2048+t*1024}")
        return L
    for l in reads3(0,0): a(l)
    for h in range(32):
        s=h&1
        if h==1: pf.pt("p3b0")
        nxt=reads3(s^1,h+1) if h<31 else []
        for l in nxt: a(l)
        issued=min(32,h+DEPTH)
        a(f"s_waitcnt vmcnt({issued-h-1}) lgkmcnt({len(nxt)})")
        for nt in range(2):
            c = "0" if h==0 else vr(ACC3+16*nt,16)
            a(f"v_mfma_f32_32x32x16_bf16 {vr(ACC3+16*nt,16)}, {vr(WFR[s]+4*nt,4)}, {vr(OFR+4*h,4)}, {c}")
        if h+DEPTH<32: oload(h+DEPTH)
    pf.pt("p3loop")
    a(f"""
    s_lshl_b32 s{sT}, s{sTB}, 16
    s_lshl_b32 s{sT2}, s{sP3BR}, 10
    s_add_u32 s{sT}, s{sT}, s{sT2}
    s_lshl_b32 s{sT2}, s{sP3NS}, 7
    s_add_u32 s{sT}, s{sT}, s{sT2}
    v_and_b32 v6, 31, v1
    v_lshlrev_b32 v6, 11, v6
    v_lshrrev_b32 v7, 5, v1
    v_lshl_add_u32 v6, v7, 5, v6
    s_nop 7
    """)
    if cfg.get("outT"):
        a(f"""
        s_lshl_b32 s{sT2}, s{sWV}, 12
        v_and_b32 v8, 31, v1
        v_lshlrev_b32 v8, 7, v8                    ; token*128
        v_lshrrev_b32 v9, 5, v1
        v_lshl_add_u32 v8, v9, 5, v8               ; + hf*32
        v_and_b32 v9, 7, v1
        v_lshlrev_b32 v9, 4, v9
        v_add_u32 v8, s{sT2}, v8
        """)
        for nt in range(2):
            b=ACC3+16*nt; T=16+8*nt
            for i in range(8): a(f"v_cvt_pk_bf16_f32 v{T+i}, v{b+2*i}, v{b+2*i+1}")
        for nt in range(2):
            for u in range(2):
                a(f"v_add_u32 v10, {nt*64+u*16}, v8\nv_xor_b32 v10, v10, v9\nds_write_b128 v10, {vr(16+8*nt+4*u,4)}")
        a(f"""
        v_lshrrev_b32 v11, 3, v1
        v_and_b32 v12, 7, v1                       ; chunk
        v_xor_b32 v13, v12, v11
        v_lshlrev_b32 v13, 4, v13
        v_lshl_add_u32 v13, v11, 7, v13
        v_add_u32 v13, s{sT2}, v13
        v_lshlrev_b32 v14, 11, v11
        v_lshl_add_u32 v14, v12, 4, v14
        s_waitcnt lgkmcnt(0)
        """)
        for i in range(4): a(f"ds_read_b128 {vr(32+4*i,4)}, v13 offset:{i*1024}")
        for i in range(4):
            a(f"s_waitcnt lgkmcnt({3-i})\ns_add_u32 s{sT2}, s{sT}, {i*8*2048}\nbuffer_store_dwordx4 {vr(32+4*i,4)}, v14, s[{SOUT}:{SOUT+3}], s{sT2} offen {OSTF}")
    else:
      for nt in range(2):
        b=ACC3+16*nt; T=8+8*nt
        for i in range(8): a(f"v_cvt_pk_bf16_f32 v{T+i}, v{b+2*i}, v{b+2*i+1}")
        a(f"buffer_store_dwordx4 {vr(T,4)}, v6, s[{SOUT}:{SOUT+3}], s{sT} offen offset:{nt*64} {OSTF}")
        a(f"buffer_store_dwordx4 {vr(T+4,4)}, v6, s[{SOUT}:{SOUT+3}], s{sT} offen offset:{nt*64+16} {OSTF}")
    a(f"""
    s_cmp_lg_u32 s2, 0
    s_cbranch_scc1 {name}_nn
    s_cmp_lg_u32 s{sWV}, 0
    s_cbranch_scc1 {name}_nn
    s_mov_b32 s{sT}, {NONCE}
    v_mov_b32 v12, 0
    v_mov_b32 v13, s{sN}
    buffer_store_dword v13, v12, s[{R.SWS}:{R.SWS+3}], s{sT} offen sc1
    {name}_nn:
    """)
    if pf.on:
        a("s_waitcnt vmcnt(0)"); pf.pt("end"); pf0.flush(len(PTS),4,2,wave=cfg.get("pwave",0) if cfg.get("pwave",0)<4 else 99)
    a.label(f"{name}_end")
    a.label(f"{name}_last")
    a("s_endpgm")
    return dict(name=name, grid=256, block=512, lds=163840, vgpr=248, sgpr=104 if False else 102)
```

```python
from asmlib import *
import math
from k1 import QF,KF,VF,PQ,OF,KVP,WS_USED,LOG2E,CSCALE
import k2
from k2 import K2R,k2_setup_consts,k2_load_b,k2_load_a,k2_attn,k2_apart

FLG=KVP+0x90000
FL=128
FSTR=16*FL+256
F1=FLG; F2=FLG+16*FSTR; F2STR=32*FL+256; NONCE=F2+8*F2STR
FP=NONCE+256; FPSTR=32*FL+256
WOL=98304
NL=163840-16

sAWO=64; sBWO=66; sOUT=68; sDBG=70; sWSP=72; sN=74; sWV=75; sP3T=76; sP3NS=77; sP3BR=78; sCNT2=79

def poll(a, name, srd, soff, need_lo, need_hi, vtmp, voff, bound=30000, sleep=4):
    L=a.newlabel(name); D=a.newlabel(name+"d")
    a(f"""
    s_mov_b32 s{sCNT2}, 0
    s_mov_b64 exec, s[{need_lo}:{need_hi}]
    {L}:
    buffer_load_dword v{vtmp}, v{voff}, s[{srd}:{srd+3}], s{soff} offen sc1
    s_waitcnt vmcnt(0)
    v_cmp_eq_u32 vcc, s{sN}, v{vtmp}
    s_cmp_eq_u64 vcc, s[{need_lo}:{need_hi}]
    s_cbranch_scc1 {D}
    s_add_u32 s{sCNT2}, s{sCNT2}, 1
    s_cmp_lt_u32 s{sCNT2}, {bound}
    s_cbranch_scc0 {D}
    s_sleep {sleep}
    s_branch {L}
    {D}:
    s_mov_b64 exec, -1
    """)

def gen_p3v2(a,name,cfg,R,pf,pf0,PTS,OSTF,HLD):
    sT=R.sT; sT2=R.sT2
    WOL0=32768; WOL1=98304
    a(f"s_cmp_ge_u32 s{sWV}, 4\ns_cbranch_scc1 {name}_p3l")
    SOUT=16; sTT=26; sNH=27
    ACC3=32; OS=[64,80]; WSET=[96,104,112]
    vWA3=5; vO=7
    a(f"""
    s_and_b32 s{sTT}, s{sWV}, 1
    s_lshr_b32 s{sNH}, s{sWV}, 1
    s_mov_b32 s{SOUT}, s{sOUT}
    s_mov_b32 s{SOUT+1}, s{sOUT+1}
    s_mov_b32 s{SOUT+2}, 0x400000
    s_mov_b32 s{SOUT+3}, 0x20000
    v_bfe_u32 v6, v1, 2, 2
    v_lshrrev_b32 v7, 5, v1
    v_lshl_add_u32 v6, v7, 2, v6
    v_lshlrev_b32 v6, 7, v6
    v_and_b32 v7, 1, v1
    v_lshlrev_b32 v7, 1, v7
    v_bfe_u32 v24, v1, 4, 1
    v_or_b32 v7, v7, v24
    v_bfe_u32 v24, v1, 3, 1
    v_lshlrev_b32 v24, 2, v24
    v_xor_b32 v7, v7, v24
    v_lshl_add_u32 v6, v7, 4, v6
    v_bfe_u32 v24, v1, 1, 1
    v_lshl_add_u32 v{vWA3}, v24, 3, v6
    v_xor_b32 v{vWA3+1}, 64, v{vWA3}
    s_lshl_b32 s{sT}, s{sNH}, 16
    s_add_u32 s{sT}, s{sT}, {WOL0}
    v_add_u32 v{vWA3}, s{sT}, v{vWA3}
    v_add_u32 v{vWA3+1}, s{sT}, v{vWA3+1}
    s_lshl_b32 s{sT}, s{sTT}, 10
    v_add_u32 v{vO}, s{sT}, v3
    """)
    q=[]
    def rd_o(e):
        for hh in range(4):
            a(f"ds_read_b128 {vr(OS[e&1]+4*hh,4)}, v{vO} offset:{(e&3)*8192+hh*2048}"); q.append(("o",e))
    def rd_w(h):
        for nt in range(2):
            for t in range(2):
                a(f"ds_read_b64_tr_b16 {vr(WSET[h%3]+4*nt+2*t,2)}, v{vWA3+nt} offset:{h*2048+t*1024}"); q.append(("w",h))
    st={"done":0}
    def wait_for(tags):
        last=max(i for i,x in enumerate(q) if x in tags)
        if last<st["done"]: return
        n=len(q)-1-last
        assert n<=15 and len(q)-st["done"]<=16, (n,len(q)-st["done"])
        a(f"s_waitcnt lgkmcnt({n})"); st["done"]=last+1
    rd_w(0); rd_w(1)
    a("s_barrier")
    pf.pt("p3b0")
    rd_o(0)
    for h in range(32):
        e=h>>2; hh=h&3
        if hh==2 and e<7:
            wait_for([("o",e)])
            a("s_barrier")
            rd_o(e+1)
        if h+2<32: rd_w(h+2)
        wait_for([("w",h),("o",e)])
        for nt in range(2):
            c = "0" if h==0 else vr(ACC3+16*nt,16)
            a(f"v_mfma_f32_32x32x16_bf16 {vr(ACC3+16*nt,16)}, {vr(WSET[h%3]+4*nt,4)}, {vr(OS[e&1]+4*hh,4)}, {c}")
    pf.pt("p3loop")
    a(f"""
    s_lshl_b32 s{sT}, s{sP3T}, 1
    s_add_u32 s{sT}, s{sT}, s{sTT}
    s_lshl_b32 s{sT}, s{sT}, 16
    s_lshl_b32 s{sT2}, s{sP3BR}, 10
    s_add_u32 s{sT}, s{sT}, s{sT2}
    s_lshl_b32 s{sT2}, s{sP3NS}, 8
    s_add_u32 s{sT}, s{sT}, s{sT2}
    s_lshl_b32 s{sT2}, s{sNH}, 7
    s_add_u32 s{sT}, s{sT}, s{sT2}
    v_and_b32 v6, 31, v1
    v_lshlrev_b32 v6, 11, v6
    v_lshrrev_b32 v7, 5, v1
    v_lshl_add_u32 v6, v7, 5, v6
    s_nop 7
    """)
    if cfg.get("outT"):
        a(f"""
        s_lshl_b32 s{sT2}, s{sWV}, 12
        v_and_b32 v8, 31, v1
        v_lshlrev_b32 v8, 7, v8                    ; token*128
        v_lshrrev_b32 v9, 5, v1
        v_lshl_add_u32 v8, v9, 5, v8               ; + hf*32
        v_and_b32 v9, 7, v1
        v_lshlrev_b32 v9, 4, v9
        v_add_u32 v8, s{sT2}, v8
        """)
        for nt in range(2):
            b=ACC3+16*nt; T=16+8*nt
            for i in range(8): a(f"v_cvt_pk_bf16_f32 v{T+i}, v{b+2*i}, v{b+2*i+1}")
        for nt in range(2):
            for u in range(2):
                a(f"v_add_u32 v10, {nt*64+u*16}, v8\nv_xor_b32 v10, v10, v9\nds_write_b128 v10, {vr(16+8*nt+4*u,4)}")
        a(f"""
        v_lshrrev_b32 v11, 3, v1
        v_and_b32 v12, 7, v1                       ; chunk
        v_xor_b32 v13, v12, v11
        v_lshlrev_b32 v13, 4, v13
        v_lshl_add_u32 v13, v11, 7, v13
        v_add_u32 v13, s{sT2}, v13
        v_lshlrev_b32 v14, 11, v11
        v_lshl_add_u32 v14, v12, 4, v14
        s_waitcnt lgkmcnt(0)
        """)
        for i in range(4): a(f"ds_read_b128 {vr(32+4*i,4)}, v13 offset:{i*1024}")
        for i in range(4):
            a(f"s_waitcnt lgkmcnt({3-i})\ns_add_u32 s{sT2}, s{sT}, {i*8*2048}\nbuffer_store_dwordx4 {vr(32+4*i,4)}, v14, s[{SOUT}:{SOUT+3}], s{sT2} offen {OSTF}")
    else:
      for nt in range(2):
        b=ACC3+16*nt; T=8+8*nt
        for i in range(8): a(f"v_cvt_pk_bf16_f32 v{T+i}, v{b+2*i}, v{b+2*i+1}")
        a(f"buffer_store_dwordx4 {vr(T,4)}, v6, s[{SOUT}:{SOUT+3}], s{sT} offen offset:{nt*64} {OSTF}")
        a(f"buffer_store_dwordx4 {vr(T+4,4)}, v6, s[{SOUT}:{SOUT+3}], s{sT} offen offset:{nt*64+16} {OSTF}")
    a(f"""
    s_cmp_lg_u32 s2, 0
    s_cbranch_scc1 {name}_nn
    s_cmp_lg_u32 s{sWV}, 0
    s_cbranch_scc1 {name}_nn
    s_mov_b32 s{sT}, {NONCE}
    v_mov_b32 v12, 0
    v_mov_b32 v13, s{sN}
    buffer_store_dword v13, v12, s[{R.SWS}:{R.SWS+3}], s{sT} offen sc1
    {name}_nn:
    """)
    if pf.on:
        a("s_waitcnt vmcnt(0)"); pf.pt("end"); pf0.flush(len(PTS),4,2,wave=cfg.get("pwave",0) if cfg.get("pwave",0)<4 else 99)
    a("s_endpgm")
    a.label(f"{name}_p3l")
    sE=26; sB=27; sL=28
    a(f"""
    s_sub_u32 s{sE}, s{sWV}, 4
    s_lshl_b32 s{sT}, s{sP3BR}, 6
    s_lshl_b32 s{sT2}, s{sP3T}, 1
    s_add_u32 s{sT}, s{sT}, s{sT2}
    s_lshl_b32 s{sB}, s{sT}, 15
    s_lshl_b32 s{sT}, s{sE}, 10
    s_add_u32 s{sB}, s{sB}, s{sT}
    s_add_u32 s{sB}, s{sB}, {OF}
    s_lshl_b32 s{sL}, s{sE}, 11
    """)
    OR=32; LA=cfg.get("p3_la",5); mode=cfg.get("p3_mode","reg")
    items=[(e,tt) for e in range(8) for tt in range(2)]
    def ld(k):
        e,tt=items[k]
        if cfg.get("diag_p3noload"): return
        if mode=="reg":
            a(f"s_add_u32 s{sT}, s{sB}, {e*4096+tt*32768}\nbuffer_load_dwordx4 {vr(OR+4*k,4)}, v3, s[{R.SWS}:{R.SWS+3}], s{sT} offen {HLD}")
        else:
            a(f"s_add_u32 m0, s{sL}, {(e&3)*8192+tt*1024}\ns_add_u32 s{sT}, s{sB}, {e*4096+tt*32768}\nbuffer_load_dwordx4 v3, s[{R.SWS}:{R.SWS+3}], s{sT} offen {HLD} lds")
    issued=0
    if mode=="dma": LA=min(LA,6)
    while issued<LA: ld(issued); issued+=1
    a(f"v_add_u32 v4, s{sL}, v3")
    for e in range(8):
        need=2*e+2
        a(f"s_waitcnt vmcnt({max(issued-need,0)})")
        if mode=="reg":
            for tt in range(2):
                a(f"ds_write_b128 v4, {vr(OR+4*(2*e+tt),4)} offset:{(e&3)*8192+tt*1024}")
            while issued<min(16,need+LA): ld(issued); issued+=1
            a("s_waitcnt lgkmcnt(0)\ns_barrier")
        else:
            a("s_barrier")
            while issued<min(16,need+LA,2*(e+4)): ld(issued); issued+=1
    a.label(f"{name}_end")
    a.label(f"{name}_last")
    a("s_endpgm")

def gen_fused(a, name, cfg):
    NS=3
    P3V=cfg.get("p3v",1)
    DEF=cfg.get("defer_pq",False)
    LDX=cfg.get("ldx",""); LDW=cfg.get("ldw","")
    STF="sc1"; HLD="sc1"
    OSTF=cfg.get("out_stflags","")
    XB=0; XS=16384; WB=NS*XS; WS_=24576
    a.raw(f".globl {name}\n.p2align 8\n.type {name},@function\n{name}:")
    sWAVE=20; sBR=21; sR=22; sG=23; sT=24; sT2=25
    SX=8; SW=12; SWS=16
    PTS=cfg.get("pts",["entry","p","loop","epi","b1","b2","kv","att","f2","end"])
    TIMER=cfg.get("timer","s_memrealtime")
    class PF0:
        on=cfg.get("prof",False)
        def flush(self,n,srd,vt,wave=0):
            if not self.on: return
            lab=a.newlabel("pf")
            a(f"""
            s_cmp_lg_u32 s{sWV}, {wave}
            s_cbranch_scc1 {lab}
            s_mov_b32 s4, s{sWSP}
            s_mov_b32 s5, s{sWSP+1}
            s_mov_b32 s6, {16<<20}
            s_mov_b32 s7, 0x20000
            s_lshl_b32 s24, s2, 6
            s_add_u32 s24, s24, {14<<20}
            v_lshlrev_b32 v2, 2, v1
            s_mov_b64 exec, 0xffff
            buffer_store_dword v247, v2, s[4:7], s24 offen
            s_mov_b64 exec, -1
            {lab}:
            """)
    pf0=PF0()
    class PF:
        on=pf0.on
        def pt(self,n):
            if self.on and n in PTS:
                a(f"{TIMER} s[100:101]\ns_waitcnt lgkmcnt(0)\nv_writelane_b32 v247, s100, {PTS.index(n)}")
    pf=PF()
    pf.pt("entry")
    a(f"""
    s_cmp_ge_u32 s2, 256
    s_cbranch_scc1 {name}_end
    """)
    if cfg.get("codepf_top"):
        nseg=cfg["codepf_top"]; lab=a.newlabel("cpt"); nwg=cfg.get("codepf_wgs",8)
        a(f"""
        s_load_dwordx4 s[28:31], s[0:1], 0
        s_load_dwordx4 s[32:35], s[0:1], 24
        s_load_dwordx2 s[{sAWO}:{sAWO+1}], s[0:1], 16
        s_load_dwordx2 s[{sBWO}:{sBWO+1}], s[0:1], 40
        s_load_dwordx4 s[{sOUT}:{sOUT+3}], s[0:1], 48
        s_load_dwordx2 s[{sWSP}:{sWSP+1}], s[0:1], 64
        s_cmp_ge_u32 s2, {nwg}
        s_cbranch_scc1 {lab}
        v_lshrrev_b32 v2, 6, v0
        v_and_b32 v1, 63, v0
        v_subrev_u32 v2, 1, v2                     ; wave - 1
        v_cmp_gt_u32 vcc, {nseg}, v2
        s_getpc_b64 s[4:5]
        {lab}_pc:
        s_sub_u32 s4, s4, {lab}_pc-{name}
        s_subb_u32 s5, s5, 0
        v_lshlrev_b32 v12, 13, v2
        v_lshl_add_u32 v12, v1, 7, v12
        v_min_u32 v12, {name}_last-{name}, v12
        v_mov_b32 v13, s5
        s_and_saveexec_b64 s[6:7], vcc
        s_cbranch_execz {lab}_x
        v_add_co_u32 v12, vcc, s4, v12
        s_nop 1
        v_addc_co_u32 v13, vcc, 0, v13, vcc
        global_load_dword v14, v[12:13], off
        {lab}_x:
        s_mov_b64 exec, s[6:7]
        {lab}:
        """)
    if not cfg.get("codepf_top"):
        a(f"""
        s_load_dwordx4 s[28:31], s[0:1], 0
        s_load_dwordx4 s[32:35], s[0:1], 24
        s_load_dwordx2 s[{sAWO}:{sAWO+1}], s[0:1], 16
        s_load_dwordx2 s[{sBWO}:{sBWO+1}], s[0:1], 40
        s_load_dwordx4 s[{sOUT}:{sOUT+3}], s[0:1], 48
        s_load_dwordx2 s[{sWSP}:{sWSP+1}], s[0:1], 64
        """)
    a(f"""
    v_lshrrev_b32 v2, 6, v0
    v_and_b32 v1, 63, v0
    s_and_b32 s{sT}, s2, 7
    v_readfirstlane_b32 s{sWAVE}, v2
    s_lshr_b32 s{sT2}, s2, 3
    s_and_b32 s{sBR}, s{sT}, 1
    s_lshr_b32 s{sT}, s{sT}, 1
    s_mov_b32 s{sP3BR}, s{sBR}
    s_lshl_b32 s{sP3T}, s{sT}, {3 if P3V==2 else 2}
    s_and_b32 s{sP3NS}, s{sT2}, {7 if P3V==2 else 3}
    s_add_u32 s{sP3T}, s{sP3T}, s{sP3NS}
    s_lshr_b32 s{sP3NS}, s{sT2}, {3 if P3V==2 else 2}
    s_and_b32 s{sR}, s{sT}, 1
    s_lshl_b32 s{sR}, s{sR}, 3
    s_lshr_b32 s{sG}, s{sT}, 1
    s_lshl_b32 s{sG}, s{sG}, 2
    s_and_b32 s{sT}, s{sT2}, 7
    s_add_u32 s{sR}, s{sR}, s{sT}
    s_lshr_b32 s{sT}, s{sT2}, 3
    s_add_u32 s{sG}, s{sG}, s{sT}
    s_mov_b32 s{sWV}, s{sWAVE}
    s_mov_b32 s83, 0
    """)
    FAST=cfg.get("faststart",False)
    sE=26; sXB=27; sWBs=38; sL=39; sROT=40; sXC=41; sWC=42
    def loader_setup():
        a(f"""
        s_sub_u32 s{sE}, s{sWAVE}, 4
        v_lshrrev_b32 v2, 3, v1
        v_and_b32 v3, 7, v1
        v_lshrrev_b32 v4, 1, v2
        s_and_b32 s{sT}, s{sE}, 1
        s_lshl_b32 s{sT}, s{sT}, 2
        v_or_b32 v4, s{sT}, v4
        v_xor_b32 v4, v4, v3
        v_lshlrev_b32 v5, 10, v2
        v_lshl_add_u32 v5, v4, 4, v5            ; x voffset
        v_bfe_u32 v4, v1, 4, 1
        v_lshlrev_b32 v4, 2, v4
        v_xor_b32 v4, v4, v3
        v_mul_u32_u24 v6, 3072, v2
        v_lshl_add_u32 v6, v4, 4, v6            ; w voffset
        v_lshlrev_b32 v7, 10, v2
        v_lshl_add_u32 v7, v4, 4, v7
        s_lshl_b32 s{sXB}, s{sR}, 17
        s_lshl_b32 s{sT}, s{sE}, 13
        s_add_u32 s{sXB}, s{sXB}, s{sT}
        s_lshl_b32 s{sWBs}, s{sG}, 7
        s_mul_i32 s{sT}, s{sE}, 24576
        s_add_u32 s{sWBs}, s{sWBs}, s{sT}
        s_lshl_b32 s{sL}, s{sE}, 10
        s_mov_b32 s{sROT}, 0
        """)
        for (src,sh,mask,mul) in cfg.get("k1_rot",[["R",0,3,2],["G",0,3,1]]):
            r={"R":sR,"G":sG}[src]
            a(f"s_lshr_b32 s{sT}, s{r}, {sh}\ns_and_b32 s{sT}, s{sT}, {mask}\ns_mul_i32 s{sT}, s{sT}, {mul}\ns_add_u32 s{sROT}, s{sROT}, s{sT}")
    if FAST: loader_setup()
    a(f"""
    s_mov_b32 s{SX+2}, 0x200000
    s_mov_b32 s{SX+3}, 0x20000
    s_mov_b32 s{SW+2}, 0x180000
    s_mov_b32 s{SW+3}, 0x20000
    s_mov_b32 s{SWS+2}, {WS_USED}
    s_mov_b32 s{SWS+3}, 0x20000
    s_cmp_eq_u32 s{sBR}, 0
    s_waitcnt lgkmcnt(0)
    s_cselect_b32 s{SX}, s28, s32
    s_cselect_b32 s{SX+1}, s29, s33
    s_cselect_b32 s{SW}, s30, s34
    s_cselect_b32 s{SW+1}, s31, s35
    s_mov_b32 s{SWS}, s{sWSP}
    s_mov_b32 s{SWS+1}, s{sWSP+1}
    """)
    def nonce_load():
        a(f"""
        s_mov_b32 s4, {NONCE}
        v_mov_b32 v30, 0
        buffer_load_dword v31, v30, s[{SWS}:{SWS+3}], s4 offen sc1
        """)
    if FAST:
        a(f"s_cmp_lt_u32 s{sWAVE}, 4\ns_cbranch_scc1 {name}_compute")
        mark_entry_end=len(a.lines)
        a.label(f"{name}_compute")
        nonce_load()
    else:
        nonce_load()
        a(f"s_cmp_ge_u32 s{sWAVE}, 4\ns_cbranch_scc1 {name}_loader")
    sTM=26; sFN=27
    vXA=4; vWA=8
    ACC=32
    def acc(tt,sec): return ACC+(tt*3+sec)*16
    FR=[128,148]
    def xf(s,tt): return FR[s]+4*tt
    def wf(s,sec): return FR[s]+8+4*sec
    if cfg.get("codepf"):
        nseg=cfg["codepf"]
        lab=a.newlabel("cpf")
        a(f"""
        s_cmp_lg_u32 s{sWAVE}, 1
        s_cbranch_scc1 {lab}
        s_lshr_b32 s4, s2, 3
        s_cmp_ge_u32 s4, {nseg}
        s_cbranch_scc1 {lab}
        s_lshl_b32 s6, s4, 13
        s_getpc_b64 s[4:5]
        {lab}_pc:
        s_sub_u32 s4, s4, {lab}_pc-{name}
        s_subb_u32 s5, s5, 0
        v_lshlrev_b32 v12, 7, v1
        v_add_u32 v12, s6, v12
        v_min_u32 v12, {name}_last-{name}, v12
        v_mov_b32 v13, s5
        v_add_co_u32 v12, vcc, s4, v12
        s_nop 1
        v_addc_co_u32 v13, vcc, 0, v13, vcc
        global_load_dword v14, v[12:13], off
        {lab}:
        """)
    a(f"""
    s_and_b32 s{sTM}, s{sWAVE}, 1
    s_lshr_b32 s{sFN}, s{sWAVE}, 1
    v_lshrrev_b32 v2, 5, v1                 ; hf
    v_and_b32 v3, 31, v1                    ; t31
    v_lshrrev_b32 v9, 1, v3
    v_and_b32 v9, 7, v9                     ; g
    s_lshl_b32 s{sT}, s{sTM}, 13
    v_lshlrev_b32 v10, 7, v3
    v_add_u32 v10, s{sT}, v10
    """)
    for ks in range(4):
        a(f"v_or_b32 v11, {2*ks}, v2\nv_xor_b32 v11, v11, v9\nv_lshl_add_u32 v{vXA+ks}, v11, 4, v10")
    a(f"""
    v_bfe_u32 v10, v1, 2, 2
    v_lshlrev_b32 v10, 7, v10
    v_lshl_add_u32 v10, v2, 10, v10
    v_bfe_u32 v11, v1, 4, 1
    v_lshlrev_b32 v11, 1, v11
    v_bfe_u32 v12, v1, 1, 1
    v_or_b32 v11, v11, v12
    s_lshl_b32 s{sT}, s{sFN}, 2
    v_or_b32 v11, s{sT}, v11
    v_bfe_u32 v12, v1, 3, 1
    v_lshlrev_b32 v12, 2, v12
    v_xor_b32 v11, v11, v12
    v_lshl_add_u32 v10, v11, 4, v10
    v_and_b32 v12, 1, v1
    v_lshl_add_u32 v10, v12, 3, v10
    v_add_u32 v{vWA}, {WB}, v10
    """)
    for r in range(ACC,ACC+96): a(f"v_mov_b32 v{r}, 0")
    a(f"""
    s_mov_b32 s58, {(-(NS-1)*XS)&0xffffffff:#x}
    s_mov_b32 s59, {XS}
    s_mov_b32 s60, {(-(NS-1)*WS_)&0xffffffff:#x}
    s_mov_b32 s61, {WS_}
    """)
    def reads(s, ks):
        L=[]
        L.append(f"ds_read_b128 {vr(xf(s,0),4)}, v{vXA+ks}")
        L.append(f"ds_read_b64_tr_b16 {vr(wf(s,0),2)}, v{vWA} offset:{ks*2048}")
        L.append(f"ds_read_b64_tr_b16 {vr(wf(s,0)+2,2)}, v{vWA} offset:{ks*2048+512}")
        L.append(f"ds_read_b128 {vr(xf(s,1),4)}, v{vXA+ks} offset:4096")
        for sec in (1,2):
            L.append(f"ds_read_b64_tr_b16 {vr(wf(s,sec),2)}, v{vWA} offset:{sec*8192+ks*2048}")
            L.append(f"ds_read_b64_tr_b16 {vr(wf(s,sec)+2,2)}, v{vWA} offset:{sec*8192+ks*2048+512}")
        return L
    def mfmas(s, br):
        L=[]
        for sec in range(3):
            for tt in range(2):
                featrow = (sec==0) or (sec==1 and br==1)
                A_,B_ = (wf(s,sec),xf(s,tt)) if featrow else (xf(s,tt),wf(s,sec))
                if cfg.get("mf16test"):
                    o=acc(tt,sec)+8*s
                    L.append(f"v_mfma_f32_16x16x32_bf16 {vr(o,4)}, {vr(A_,4)}, {vr(B_,4)}, {vr(o,4)}\nv_mfma_f32_16x16x32_bf16 {vr(o+4,4)}, {vr(B_,4)}, {vr(A_,4)}, {vr(o+4,4)}")
                else:
                    L.append(f"v_mfma_f32_32x32x16_bf16 {vr(acc(tt,sec),16)}, {vr(A_,4)}, {vr(B_,4)}, {vr(acc(tt,sec),16)}")
        return L
    def step(s, br, rd):
        M=mfmas(s,br)
        if rd:
            a(M[0]); a(rd[0]); a(rd[1]); a(rd[2])
            a(M[1]); a(rd[3]); a(rd[4]); a(rd[5])
            a(M[2]); a(rd[6]); a(rd[7])
            a(M[3]); a(M[4]); a(M[5])
        else:
            for m in M: a(m)
    sCNT=38; sSTG=39; sDX=40; sDW=41
    for br in (0,1):
        bn="AB"[br]
        if br==0: a(f"s_cmp_eq_u32 s{sBR}, 1\ns_cbranch_scc1 {name}_cB")
        else: a.label(f"{name}_cB")
        a(f"s_mov_b32 s{sCNT}, 0\ns_mov_b32 s{sSTG}, 0\ns_waitcnt vmcnt(0)\nv_readfirstlane_b32 s{sN}, v31\ns_nop 3\ns_add_u32 s{sN}, s{sN}, 1")
        a("s_barrier")
        pf.pt("p")
        for l in reads(0,0): a(l)
        a.label(f"{name}_loop{bn}")
        for ks in range(3):
            a("s_waitcnt lgkmcnt(0)")
            step(ks&1, br, reads((ks+1)&1, ks+1))
        a(f"""
        s_add_u32 s{sSTG}, s{sSTG}, 1
        s_cmp_eq_u32 s{sSTG}, {NS}
        s_cselect_b32 s{sDX}, s58, s59
        s_cselect_b32 s{sDW}, s60, s61
        s_cselect_b32 s{sSTG}, 0, s{sSTG}
        s_waitcnt lgkmcnt(0)
        s_barrier
        """)
        if cfg.get("chunkstamps"):
            for c in range(7):
                lab=a.newlabel("cs")
                a(f"s_cmp_lg_u32 s{sCNT}, {c}\ns_cbranch_scc1 {lab}")
                pf.pt(f"c{c}")
                a.label(lab)
        for ks in range(4): a(f"v_add_u32 v{vXA+ks}, s{sDX}, v{vXA+ks}")
        a(f"v_add_u32 v{vWA}, s{sDW}, v{vWA}")
        step(1, br, reads(0,0))
        a(f"""
        s_add_u32 s{sCNT}, s{sCNT}, 1
        s_cmp_lt_u32 s{sCNT}, 7
        s_cbranch_scc1 {name}_loop{bn}
        """)
        sOFF=42; sH=43; sTB=44
        def epi_addr():
            a(f"""
            s_lshl_b32 s{sH}, s{sG}, 2
            s_lshl_b32 s{sT}, s{sFN}, 1
            s_add_u32 s{sH}, s{sH}, s{sT}
            s_lshl_b32 s{sTB}, s{sR}, 2
            s_lshl_b32 s{sT}, s{sTM}, 1
            s_add_u32 s{sTB}, s{sTB}, s{sT}
            s_lshl_b32 s{sOFF}, s{sH}, 16
            s_lshl_b32 s{sT}, s{sTB}, 10
            s_add_u32 s{sOFF}, s{sOFF}, s{sT}
            v_lshlrev_b32 v9, 4, v1
            """)
        T0=128
        if br==1 and cfg.get("lastchunk"):
            epi_addr()
            a(f"""
            s_mov_b32 s46, {f2u(CSCALE):#x}
            s_mov_b32 s47, {f2u(CSCALE):#x}
            v_bfe_u32 v10, v1, 4, 1
            v_lshlrev_b32 v10, 16, v10
            v_lshrrev_b32 v11, 5, v1
            v_lshl_add_u32 v10, v11, 8, v10
            v_and_b32 v11, 15, v1
            v_lshl_add_u32 v10, v11, 4, v10
            """)
            XL={0:[xf(0,0),xf(0,1)]}; WL={(0,sec):wf(0,sec) for sec in range(3)}
            reg=168
            for ks in range(1,4): XL[ks]=[reg,reg+4]; reg+=8
            for sec in (1,2,0):
                for ks in range(1,4): WL[(ks,sec)]=reg; reg+=4
            assert reg<=232
            q=[]; st={"done":0}
            def rx(ks):
                a(f"ds_read_b128 {vr(XL[ks][0],4)}, v{vXA+ks}"); q.append(("x",ks))
                a(f"ds_read_b128 {vr(XL[ks][1],4)}, v{vXA+ks} offset:4096"); q.append(("x",ks))
            def rw(ks,sec):
                for t in range(2):
                    a(f"ds_read_b64_tr_b16 {vr(WL[(ks,sec)]+2*t,2)}, v{vWA} offset:{sec*8192+ks*2048+t*512}"); q.append(("w",ks,sec))
            def wait_for(tags):
                idx=[i for i,x in enumerate(q) if x in tags]
                if not idx or max(idx)<st["done"]: return
                n=len(q)-1-max(idx); assert n<=15 and len(q)-st["done"]<=15,(n,len(q),st)
                a(f"s_waitcnt lgkmcnt({n})"); st["done"]=max(idx)+1
            def mm(sec,ks,tt):
                featrow = sec in (0,1)
                A_,B_ = (WL[(ks,sec)],XL[ks][tt]) if featrow else (XL[ks][tt],WL[(ks,sec)])
                a(f"v_mfma_f32_32x32x16_bf16 {vr(acc(tt,sec),16)}, {vr(A_,4)}, {vr(B_,4)}, {vr(acc(tt,sec),16)}")
            TK=128+8
            TK=148
            def kops():
                L=[]
                for tt in range(2):
                    b=acc(tt,1); tmp=TK+8*tt
                    for i in range(8): L.append(f"v_cvt_pk_bf16_f32 v{tmp+i}, v{b+2*i}, v{b+2*i+1}")
                    L.append(f"s_add_u32 s{sT}, s{sOFF}, {KF+tt*1024}\nbuffer_store_dwordx4 {vr(tmp,4)}, v9, s[{SWS}:{SWS+3}], s{sT} offen {STF}")
                    L.append(f"s_add_u32 s{sT2}, s{sOFF}, {KF+tt*1024+65536}\nbuffer_store_dwordx4 {vr(tmp+4,4)}, v9, s[{SWS}:{SWS+3}], s{sT2} offen {STF}")
                return L
            TV=232
            def vops():
                L=[]
                for tt in range(2):
                    b=acc(tt,2); tmp=[232,148][tt]
                    for i in range(8): L.append(f"v_cvt_pk_bf16_f32 v{tmp+i}, v{b+2*i}, v{b+2*i+1}")
                    L.append(f"s_add_u32 s{sT}, s{sOFF}, {VF+tt*1024}\nbuffer_store_dwordx4 {vr(tmp,4)}, v10, s[{SWS}:{SWS+3}], s{sT} offen {STF}")
                    L.append(f"buffer_store_dwordx4 {vr(tmp+4,4)}, v10, s[{SWS}:{SWS+3}], s{sT} offen offset:512 {STF}")
                return L
            a("s_waitcnt lgkmcnt(0)")
            rx(1); rw(1,1); rx(2); rw(2,1)
            mm(1,0,0); mm(1,0,1)
            rx(3); rw(3,1)
            wait_for([("x",1),("w",1,1)]); mm(1,1,0); rw(1,2); mm(1,1,1)
            wait_for([("x",2),("w",2,1)]); mm(1,2,0); rw(2,2); mm(1,2,1)
            wait_for([("x",3),("w",3,1)]); mm(1,3,0); rw(3,2); mm(1,3,1)
            mm(2,0,0); rw(1,0); mm(2,0,1); rw(2,0)
            wait_for([("w",1,2)]); mm(2,1,0); rw(3,0); mm(2,1,1)
            a("s_nop 3")
            K=kops()
            for l in K[0:5]: a(l)
            wait_for([("w",2,2)]); mm(2,2,0)
            for l in K[5:10]: a(l)
            mm(2,2,1)
            for l in K[10:15]: a(l)
            wait_for([("w",3,2)]); mm(2,3,0)
            for l in K[15:20]: a(l)
            mm(2,3,1)
            mm(0,0,0); mm(0,0,1)
            wait_for([("w",1,0)]); mm(0,1,0); mm(0,1,1)
            a("s_nop 7")
            V=vops()
            for l in V[0:5]: a(l)
            wait_for([("w",2,0)]); mm(0,2,0)
            for l in V[5:10]: a(l)
            mm(0,2,1)
            for l in V[10:15]: a(l)
            wait_for([("w",3,0)]); mm(0,3,0)
            for l in V[15:20]: a(l)
            mm(0,3,1)
            pf.pt("loop")
            a("s_nop 15")
            tmp=168
            for tt in range(2):
                b=acc(tt,0)
                for i in range(8): a(f"v_pk_mul_f32 {vr(b+2*i,2)}, {vr(b+2*i,2)}, s[46:47]")
                for i in range(8): a(f"v_cvt_pk_bf16_f32 v{tmp+i}, v{b+2*i}, v{b+2*i+1}")
                a(f"s_add_u32 s{sT}, s{sOFF}, {QF+tt*1024}")
                a(f"buffer_store_dwordx4 {vr(tmp,4)}, v9, s[{SWS}:{SWS+3}], s{sT} offen {STF}")
                a(f"s_add_u32 s{sT2}, s{sOFF}, {QF+tt*1024+65536}")
                a(f"buffer_store_dwordx4 {vr(tmp+4,4)}, v9, s[{SWS}:{SWS+3}], s{sT2} offen {STF}")
                tmp+=8
            a(f"s_branch {name}_p1done")
            continue
        for ks in range(3):
            a("s_waitcnt lgkmcnt(0)")
            step(ks&1, br, reads((ks+1)&1, ks+1))
        a("s_waitcnt lgkmcnt(0)")
        step(1, br, [])
        pf.pt("loop")
        epi_addr()
        if br==1:
            a(f"s_mov_b32 s46, {f2u(CSCALE):#x}\ns_mov_b32 s47, {f2u(CSCALE):#x}")
            a(f"""
            v_bfe_u32 v10, v1, 4, 1
            v_lshlrev_b32 v10, 16, v10
            v_lshrrev_b32 v11, 5, v1
            v_lshl_add_u32 v10, v11, 8, v10
            v_and_b32 v11, 15, v1
            v_lshl_add_u32 v10, v11, 4, v10
            s_nop 7
            """)
            tmp=T0
            for tt in range(2):
                b=acc(tt,1)
                for i in range(8): a(f"v_cvt_pk_bf16_f32 v{tmp+i}, v{b+2*i}, v{b+2*i+1}")
                a(f"s_add_u32 s{sT}, s{sOFF}, {KF+tt*1024}")
                a(f"buffer_store_dwordx4 {vr(tmp,4)}, v9, s[{SWS}:{SWS+3}], s{sT} offen {STF}")
                a(f"s_add_u32 s{sT2}, s{sOFF}, {KF+tt*1024+65536}")
                a(f"buffer_store_dwordx4 {vr(tmp+4,4)}, v9, s[{SWS}:{SWS+3}], s{sT2} offen {STF}")
                tmp+=8
            for tt in range(2):
                b=acc(tt,2)
                for i in range(8): a(f"v_cvt_pk_bf16_f32 v{tmp+i}, v{b+2*i}, v{b+2*i+1}")
                a(f"s_add_u32 s{sT}, s{sOFF}, {VF+tt*1024}")
                a(f"buffer_store_dwordx4 {vr(tmp,4)}, v10, s[{SWS}:{SWS+3}], s{sT} offen {STF}")
                a(f"buffer_store_dwordx4 {vr(tmp+4,4)}, v10, s[{SWS}:{SWS+3}], s{sT} offen offset:512 {STF}")
                tmp+=8
            for tt in range(2):
                b=acc(tt,0)
                for i in range(8): a(f"v_pk_mul_f32 {vr(b+2*i,2)}, {vr(b+2*i,2)}, s[46:47]")
                for i in range(8): a(f"v_cvt_pk_bf16_f32 v{tmp+i}, v{b+2*i}, v{b+2*i+1}")
                a(f"s_add_u32 s{sT}, s{sOFF}, {QF+tt*1024}")
                a(f"buffer_store_dwordx4 {vr(tmp,4)}, v9, s[{SWS}:{SWS+3}], s{sT} offen {STF}")
                a(f"s_add_u32 s{sT2}, s{sOFF}, {QF+tt*1024+65536}")
                a(f"buffer_store_dwordx4 {vr(tmp+4,4)}, v9, s[{SWS}:{SWS+3}], s{sT2} offen {STF}")
                tmp+=8
            a(f"s_branch {name}_p1done")
        else:
            a(f"""
            s_mov_b32 s46, {f2u(LOG2E):#x}
            s_mov_b32 s47, {f2u(LOG2E):#x}
            s_mov_b32 s48, 1.0
            s_mov_b32 s49, 1.0
            s_mov_b32 s50, {f2u(1e-6):#x}
            s_mov_b32 s51, {f2u(1e-6):#x}
            s_mov_b32 s52, 0x0000ffff
            s_mov_b32 s53, 0x0000ffff
            v_mov_b32 v20, 0x3f803f80
            v_mov_b32 v21, 0x3f803f80
            v_mov_b32 v22, 0x3f803f80
            v_mov_b32 v23, 0x3f803f80
            s_nop 4
            """)
            U=168
            def phi(b):
                for i in range(8): a(f"v_pk_mul_f32 {vr(U+2*i,2)}, {vr(b+2*i,2)}, s[46:47]")
                for i in range(16): a(f"v_exp_f32 v{U+i}, v{U+i} clamp")
                for i in range(8): a(f"v_pk_add_f32 {vr(b+2*i,2)}, {vr(b+2*i,2)}, s[48:49]")
                for i in range(16): a(f"v_max_f32 v{b+i}, v{b+i}, v{U+i}")
                for i in range(8): a(f"v_pk_add_f32 {vr(b+2*i,2)}, {vr(b+2*i,2)}, s[50:51]")
            PK=[128,136]; VV=[144,152]; D=184; D2=200
            def qpart(tt,tmp):
                b=acc(tt,0)
                phi(b)
                for i in range(8): a(f"v_cvt_pk_bf16_f32 v{tmp+i}, v{b+2*i}, v{b+2*i+1}")
                if DEF: return
                a(f"s_add_u32 s{sT}, s{sOFF}, {PQ+tt*1024}")
                a(f"buffer_store_dwordx4 {vr(tmp,4)}, v9, s[{SWS}:{SWS+3}], s{sT} offen {STF}")
                a(f"s_add_u32 s{sT2}, s{sOFF}, {PQ+tt*1024+65536}")
                a(f"buffer_store_dwordx4 {vr(tmp+4,4)}, v9, s[{SWS}:{SWS+3}], s{sT2} offen {STF}")
            QF1=cfg.get("a_qfirst",False)
            if QF1: qpart(0,216); qpart(1,224)
            for tt in range(2):
                b=acc(tt,2)
                for i in range(8): a(f"v_cvt_pk_bf16_f32 v{VV[tt]+i}, v{b+2*i}, v{b+2*i+1}")
            for tt in range(2):
                b=acc(tt,1)
                phi(b)
                for i in range(8): a(f"v_cvt_pk_bf16_f32 v{PK[tt]+i}, v{b+2*i}, v{b+2*i+1}")
                a("s_nop 1")
                for m in range(2):
                    c1 = "0" if (tt==0 and m==0) else vr(D,16)
                    c2 = "0" if (tt==0 and m==0) else vr(D2,16)
                    a(f"v_mfma_f32_32x32x16_bf16 {vr(D,16)}, {vr(PK[tt]+4*m,4)}, {vr(VV[tt]+4*m,4)}, {c1}")
                    a(f"v_mfma_f32_32x32x16_bf16 {vr(D2,16)}, {vr(PK[tt]+4*m,4)}, v[20:23], {c2}")
            def kvp_addr():
                a(f"""
                v_and_b32 v11, 31, v1
                v_lshrrev_b32 v12, 5, v1
                v_and_b32 v13, 15, v1
                v_lshlrev_b32 v13, 5, v13
                v_lshl_add_u32 v13, v12, 9, v13
                v_lshlrev_b32 v14, 5, v12
                v_add_u32 v14, 1024, v14
                v_mov_b32 v15, 0x40000000
                v_cmp_eq_u32 s[54:55], 16, v11
                v_cmp_eq_u32 s[56:57], 0, v11
                s_nop 1
                v_cndmask_b32_e64 v16, v15, v14, s[54:55]
                v_cndmask_b32_e64 v17, v15, v14, s[56:57]
                v_cndmask_b32_e64 v16, v16, v13, s[52:53]
                v_cndmask_b32_e64 v17, v13, v17, s[52:53]
                """)
            if QF1:
                kvp_addr()
                a("s_nop 1")
            else:
                a("s_nop 15")
            for r in range(8):  a(f"v_cndmask_b32_e64 v{D+r}, v{D2+r}, v{D+r}, s[52:53]")
            for r in range(8,16): a(f"v_cndmask_b32_e64 v{D+r}, v{D+r}, v{D2+r}, s[52:53]")
            EX = 0
            a(f"""
            s_lshl_b32 s{sT}, s{sFN}, 12
            s_add_u32 s{sT}, s{sT}, {EX}
            v_add_u32 v10, s{sT}, v9
            s_cmp_eq_u32 s{sTM}, 0
            s_cbranch_scc1 {name}_Ard
            """)
            for q in range(4): a(f"ds_write_b128 v10, {vr(D+4*q,4)} offset:{q*1024}")
            a(f"s_waitcnt lgkmcnt(0)")
            a.label(f"{name}_Ard")
            a("s_barrier")
            a(f"s_cmp_lg_u32 s{sTM}, 0\ns_cbranch_scc1 {name}_Aq")
            for q in range(4): a(f"ds_read_b128 {vr(D2+4*q,4)}, v10 offset:{q*1024}")
            if not QF1: kvp_addr()
            a(f"""
            s_lshl_b32 s{sT}, s{sH}, 4
            s_add_u32 s{sT}, s{sT}, s{sR}
            s_mul_i32 s{sT}, s{sT}, 1088
            s_add_u32 s{sT}, s{sT}, {KVP}
            s_add_u32 s{sT2}, s{sT}, {16*1088}
            s_waitcnt lgkmcnt(0)
            """)
            for i in range(8): a(f"v_pk_add_f32 {vr(D+2*i,2)}, {vr(D+2*i,2)}, {vr(D2+2*i,2)}")
            a(f"""
            buffer_store_dwordx4 {vr(D,4)}, v16, s[{SWS}:{SWS+3}], s{sT} offen {STF}
            buffer_store_dwordx4 {vr(D+4,4)}, v16, s[{SWS}:{SWS+3}], s{sT} offen offset:16 {STF}
            buffer_store_dwordx4 {vr(D+8,4)}, v17, s[{SWS}:{SWS+3}], s{sT2} offen {STF}
            buffer_store_dwordx4 {vr(D+12,4)}, v17, s[{SWS}:{SWS+3}], s{sT2} offen offset:16 {STF}
            """)
            a.label(f"{name}_Aq")
            if not QF1: qpart(0,216); qpart(1,224 if DEF else 128)
            if DEF:
                a(f"""
                s_mov_b32 s82, s{sOFF}
                s_lshl_b32 s{sT}, s{sG}, 1
                s_add_u32 s{sT}, s{sT}, s{sFN}
                s_mul_i32 s{sT}, s{sT}, {FPSTR}
                s_lshl_b32 s{sT2}, s{sR}, 1
                s_add_u32 s{sT2}, s{sT2}, s{sTM}
                s_lshl_b32 s{sT2}, s{sT2}, 7
                s_add_u32 s{sT}, s{sT}, s{sT2}
                s_add_u32 s84, s{sT}, {FP}
                s_mov_b32 s83, 1
                """)
            a(f"s_branch {name}_p1done")
    mark_loader_start=len(a.lines)
    a.label(f"{name}_loader")
    if not FAST: loader_setup()
    def issue(c, part=None):
        st=c%NS
        L=[]
        hdr=f"""
        s_add_u32 s{sT}, s{sROT}, {c}
        s_and_b32 s{sT}, s{sT}, 7
        s_lshl_b32 s{sXC}, s{sT}, 7
        s_add_u32 s{sXC}, s{sXC}, s{sXB}
        s_mul_i32 s{sWC}, s{sT}, 196608
        s_add_u32 s{sWC}, s{sWC}, s{sWBs}
        """
        for i in range(4):
            L.append(f"s_add_u32 m0, s{sL}, {XB+st*XS+i*4096}\ns_add_u32 s{sT}, s{sXC}, {i*32768}\nbuffer_load_dwordx4 v5, s[{SX}:{SX+3}], s{sT} offen {LDX} lds")
        for jj in range(2):
            for sec in range(3):
                L.append(f"s_add_u32 m0, s{sL}, {WB+st*WS_+sec*8192+jj*4096}\ns_add_u32 s{sT}, s{sWC}, {jj*4*24576+sec*1024}\nbuffer_load_dwordx4 v6, s[{SW}:{SW+3}], s{sT} offen {LDW} lds")
        lo,hi = part if part else (0,10)
        if lo==0: a(hdr)
        for l in L[lo:hi]: a(l)
    k0=cfg.get("pro_k",5)
    issue(0)
    if FAST: nonce_load()
    issue(1,(0,k0))
    a(f"s_waitcnt vmcnt({k0})\nv_readfirstlane_b32 s{sN}, v31\ns_nop 3\ns_add_u32 s{sN}, s{sN}, 1\ns_barrier")
    if k0<10: issue(1,(k0,10))
    issue(2)
    for c in range(7):
        issued=min(8,c+NS)
        rem=10*(issued-(c+2))
        if c==6: rem=16 if P3V==1 else 17
        a(f"s_waitcnt vmcnt({rem})\ns_barrier")
        if c+NS<8: issue(c+NS)
        if c==5:
            a(f"""
            s_cmp_eq_u32 s{sP3BR}, 0
            s_cselect_b32 s28, s{sAWO}, s{sBWO}
            s_cselect_b32 s29, s{sAWO+1}, s{sBWO+1}
            s_mov_b32 s30, 0x80000
            s_mov_b32 s31, 0x20000
            s_lshl_b32 s{sXC}, s{sP3NS}, {7 if P3V==1 else 8}
            s_lshl_b32 s{sT}, s{sE}, 13
            s_add_u32 s{sXC}, s{sXC}, s{sT}
            """)
            if P3V==1 and cfg.get("p3rot",0):
                a(f"s_lshl_b32 s{sXC}, s{sP3NS}, 7\ns_mul_i32 s{sWC}, s{sP3NS}, {2*cfg['p3rot']}\ns_add_u32 s{sWC}, s{sWC}, s{sE}")
                for u in range(16):
                    a(f"s_add_u32 m0, s{sL}, {WOL+u*4096}")
                    a(f"s_add_u32 s{sT}, s{sWC}, {4*u}\ns_and_b32 s{sT}, s{sT}, 63\ns_lshl_b32 s{sT}, s{sT}, 13\ns_add_u32 s{sT}, s{sT}, s{sXC}")
                    a(f"buffer_load_dwordx4 v7, s[28:31], s{sT} offen lds")
            else:
              for u in range(16):
                a(f"s_add_u32 m0, s{sL}, {WOL+u*4096}")
                a(f"s_add_u32 s{sT}, s{sXC}, {u*32768+(0 if P3V==1 else 128)}")
                a(f"buffer_load_dwordx4 v7, s[28:31], s{sT} offen lds")
            if P3V==2:
                a(f"""
                v_and_b32 v8, 15, v1
                s_lshl_b32 s{sT}, s{sE}, 4
                v_add_u32 v8, s{sT}, v8
                v_lshlrev_b32 v8, 10, v8
                s_bfe_u32 s{sT}, s2, 0x30003
                s_lshl_b32 s{sT}, s{sT}, 16
                s_lshl_b32 s{sXC}, s{sP3NS}, 8
                s_add_u32 s{sT}, s{sT}, s{sXC}
                buffer_load_dword v9, v8, s[28:31], s{sT} offen
                """)
    a(f"s_cmp_eq_u32 s{sBR}, 1\ns_cbranch_scc1 {name}_p1bar\ns_barrier\ns_branch {name}_p1bar")
    if FAST:
        blk=a.lines[mark_loader_start:]
        del a.lines[mark_loader_start:]
        a.lines[mark_entry_end:mark_entry_end]=blk
    a.label(f"{name}_p1done")
    pf.pt("epi")
    a("s_waitcnt vmcnt(0)")
    a.label(f"{name}_p1bar")
    a("s_barrier")
    R=K2R
    a(f"""
    s_cmp_lg_u32 s{sWV}, 0
    s_cbranch_scc1 {name}_nf1
    s_lshl_b32 s{sT}, s{sBR}, 3
    s_add_u32 s{sT}, s{sT}, s{sG}
    s_mul_i32 s{sT}, s{sT}, {FSTR}
    s_lshl_b32 s{sT2}, s{sR}, 7
    s_add_u32 s{sT}, s{sT}, s{sT2}
    s_add_u32 s{sT}, s{sT}, {F1}
    v_mov_b32 v12, 0
    v_mov_b32 v13, s{sN}
    buffer_store_dword v13, v12, s[{SWS}:{SWS+3}], s{sT} offen sc1
    {name}_nf1:
    """)
    pf.pt("b1")
    a(f"""
    s_mov_b32 s{R.sWAVE}, s{sWV}
    s_bfe_u32 s{R.sRB}, s2, 0x30003
    s_and_b32 s{R.sH}, s2, 7
    s_lshr_b32 s{R.sT}, s2, 6
    s_lshl_b32 s{R.sT}, s{R.sT}, 3
    s_add_u32 s{R.sH}, s{R.sH}, s{R.sT}
    v_lshlrev_b32 v3, 4, v1
    s_lshl_b32 s{R.sQB}, s{R.sRB}, 3
    s_add_u32 s{R.sQB}, s{R.sQB}, s{R.sWAVE}
    s_mov_b32 s{R.SWS}, s{sWSP}
    s_mov_b32 s{R.SWS+1}, s{sWSP+1}
    s_mov_b32 s{R.SWS+2}, {WS_USED}
    s_mov_b32 s{R.SWS+3}, 0x20000
    """)
    k2_setup_consts(a,R)
    sFA=12; sNEED=14
    a(f"""
    v_lshlrev_b32 v2, 7, v1
    s_lshr_b32 s{sFA}, s{R.sH}, 2
    s_mul_i32 s{sFA}, s{sFA}, {FSTR}
    s_add_u32 s13, s{sFA}, {F1}               ; A row
    s_add_u32 s{sFA}, s{sFA}, {F1+8*FSTR}     ; B row
    """)
    if cfg.get("wavepoll"):
        a(f"""
        s_lshl_b32 s{R.sT}, s{R.sRB}, 1
        s_lshr_b32 s{R.sT2}, s{sWV}, 1
        s_add_u32 s{R.sT2}, s{R.sT2}, s{R.sT}
        s_sub_i32 s{R.sT2}, s{R.sT2}, 2
        s_max_i32 s{R.sT2}, s{R.sT2}, 0
        s_lshl_b32 s{sNEED}, 1, s{R.sT2}
        s_lshr_b32 s{R.sT2}, s{sWV}, 2
        s_add_u32 s{R.sT2}, s{R.sT2}, s{R.sT}
        s_lshl_b32 s{R.sT2}, 1, s{R.sT2}
        s_or_b32 s{sNEED}, s{sNEED}, s{R.sT2}
        s_mov_b32 s{sNEED+1}, 0
        """)
        poll(a,"pb",R.SWS,sFA,sNEED,sNEED+1,12,2,sleep=cfg.get("sleep1",4))
    else:
        a(f"""
        s_cmp_lg_u32 s{sWV}, 0
        s_cbranch_scc1 {name}_np2
        s_lshl_b32 s{R.sT}, s{R.sRB}, 1
        s_lshl_b32 s{sNEED}, 15, s{R.sT}
        s_lshr_b32 s{sNEED}, s{sNEED}, 2          ; (0b1111 << 2rb) >> 2
        s_mov_b32 s{sNEED+1}, 0
        """)
        poll(a,"pb",R.SWS,sFA,sNEED,sNEED+1,12,2,sleep=cfg.get("sleep1",4))
        a.label(f"{name}_np2")
        a("s_waitcnt lgkmcnt(0)\ns_barrier")
    pf.pt("b2")
    k2_load_b(a,R,HLD)
    if DEF:
        a(f"s_cmp_eq_u32 s83, 0\ns_cbranch_scc1 {name}_nopq")
        for tt in range(2):
            a(f"s_add_u32 s{R.sT}, s82, {PQ+tt*1024}\nbuffer_store_dwordx4 {vr(216+8*tt,4)}, v3, s[{R.SWS}:{R.SWS+3}], s{R.sT} offen {STF}")
            a(f"s_add_u32 s{R.sT2}, s82, {PQ+tt*1024+65536}\nbuffer_store_dwordx4 {vr(220+8*tt,4)}, v3, s[{R.SWS}:{R.SWS+3}], s{R.sT2} offen {STF}")
        a(f"s_waitcnt vmcnt(4)\ns_branch {name}_pqd\n{name}_nopq:\ns_waitcnt vmcnt(0)\n{name}_pqd:\ns_barrier")
    else:
        a("s_waitcnt vmcnt(0) lgkmcnt(0)\ns_barrier")
    pf.pt("kv")
    def h_pre():
        a(f"s_mov_b64 exec, 0xffff\nbuffer_load_dword v13, v2, s[{R.SWS}:{R.SWS+3}], s13 offen sc1\ns_mov_b64 exec, -1")
    def h_post0():
        pf.pt("post0")
        D=a.newlabel("pa")
        a(f"""
        s_mov_b32 s{sNEED}, 0xffff
        s_mov_b32 s{sNEED+1}, 0
        s_waitcnt vmcnt(0)
        v_cmp_eq_u32 vcc, s{sN}, v13
        s_and_b64 vcc, vcc, s[{sNEED}:{sNEED+1}]
        s_cmp_eq_u64 vcc, s[{sNEED}:{sNEED+1}]
        s_cbranch_scc1 {D}
        """)
        poll(a,"pa2",R.SWS,13,sNEED,sNEED+1,13,2)
        a.label(D)
        pf.pt("aflag")
        if DEF:
            lab=a.newlabel("pqf")
            a(f"""
            s_cmp_eq_u32 s83, 0
            s_cbranch_scc1 {lab}
            v_mov_b32 v12, 0
            v_mov_b32 v13, s{sN}
            buffer_store_dword v13, v12, s[{R.SWS}:{R.SWS+3}], s84 offen sc1
            {lab}:
            """)
        k2_load_a(a,R,HLD,name,pq=not DEF)
    def pq_addr():
        a(f"""
        s_lshr_b32 s14, s{R.sH}, 1
        s_mul_i32 s14, s14, {FPSTR}
        s_lshr_b32 s15, s{R.sQB}, 1
        s_lshl_b32 s15, s15, 7
        s_add_u32 s14, s14, s15
        s_add_u32 s16, s14, {FP}
        v_mov_b32 v12, 0
        """)
    def pq_load():
        a(f"""
        s_lshl_b32 s{R.sT}, s{R.sH}, 16
        s_lshl_b32 s{R.sT2}, s{R.sQB}, 10
        s_add_u32 s{R.sT}, s{R.sT}, s{R.sT2}
        s_add_u32 s{R.sT}, s{R.sT}, {PQ}
        buffer_load_dwordx4 {vr(R.vPQ,4)}, v3, s[{R.SWS}:{R.SWS+3}], s{R.sT} offen {HLD}
        """)
    def pq_check(first):
        D=a.newlabel("pqd")
        a("s_mov_b32 s14, 1\ns_mov_b32 s15, 0")
        if first:
            a(f"""
            s_waitcnt vmcnt(0)
            v_readfirstlane_b32 s{R.sT}, v13
            s_cmp_eq_u32 s{R.sT}, s{sN}
            s_cbranch_scc1 {D}
            """)
        poll(a,"pq2",R.SWS,16,14,15,13,12,sleep=2)
        a.label(D)
        pq_load()
    def h_probe():
        lab=a.newlabel("pr")
        a(f"s_cmp_eq_u32 s{R.sRB}, 0\ns_cbranch_scc1 {lab}")
        pq_addr()
        a(f"buffer_load_dword v13, v12, s[{R.SWS}:{R.SWS+3}], s16 offen sc1\n{lab}:")
    def h_check():
        lab=a.newlabel("ck")
        a(f"s_cmp_eq_u32 s{R.sRB}, 0\ns_cbranch_scc1 {lab}")
        pq_check(True)
        a.label(lab)
    hk={"pre":h_pre,"post0":h_post0}
    if DEF: hk[("it",cfg.get("pq_at",2)+1)]=h_probe; hk[("it",cfg.get("pq_at",2))]=h_check
    k2_attn(a,R,name,cfg,pf,hooks=hk)
    if DEF:
        lab=a.newlabel("rb0")
        a(f"s_cmp_lg_u32 s{R.sRB}, 0\ns_cbranch_scc1 {lab}")
        pq_addr(); pq_check(False)
        a.label(lab)
    a(f"""
    s_lshl_b32 s{R.sT}, s{R.sQB}, 5
    s_add_u32 s{R.sT}, s{R.sT}, s{R.sH}
    s_lshl_b32 s{R.sT}, s{R.sT}, 10
    s_add_u32 s{R.sOB}, s{R.sT}, {OF}
    s_add_u32 s{R.sT}, s{R.sOB}, {64*32*1024}
    buffer_store_dwordx4 {vr(R.TMP,4)}, v3, s[{R.SWS}:{R.SWS+3}], s{R.sT} offen {STF}
    """)
    pf.pt("att")
    a("s_waitcnt vmcnt(1)\ns_barrier")
    pf.pt("kvp")
    k2_apart(a,R,name)
    pf.pt("apart")
    a(f"buffer_store_dwordx4 {vr(R.TMP+4,4)}, v3, s[{R.SWS}:{R.SWS+3}], s{R.sOB} offen {STF}")
    a("s_waitcnt vmcnt(0)")
    pf.pt("odrain")
    a("s_barrier")
    pf.pt("b5")
    if P3V==2:
        WOL0=32768
        a(f"""
        s_cmp_lt_u32 s{sWV}, 4
        s_cbranch_scc1 {name}_wod
        v_lshrrev_b32 v4, 3, v1
        v_and_b32 v5, 7, v1
        v_bfe_u32 v6, v1, 4, 1
        v_lshlrev_b32 v6, 2, v6
        v_xor_b32 v6, v6, v5
        v_lshlrev_b32 v7, 10, v4
        v_lshl_add_u32 v7, v6, 4, v7
        s_cmp_eq_u32 s{sP3BR}, 0
        s_cselect_b32 s16, s{sAWO}, s{sBWO}
        s_cselect_b32 s17, s{sAWO+1}, s{sBWO+1}
        s_mov_b32 s18, 0x80000
        s_mov_b32 s19, 0x20000
        s_sub_u32 s29, s{sWV}, 4
        s_lshl_b32 s28, s{sP3NS}, 8
        s_lshl_b32 s{R.sT}, s29, 13
        s_add_u32 s28, s28, s{R.sT}
        s_lshl_b32 s29, s29, 10
        """)
        for u in range(16):
            a(f"s_add_u32 m0, s29, {WOL0+u*4096}\ns_add_u32 s{R.sT}, s28, {u*32768}\nbuffer_load_dwordx4 v7, s[16:19], s{R.sT} offen lds")
        a.label(f"{name}_wod")
    a(f"""
    s_cmp_lg_u32 s{sWV}, 0
    s_cbranch_scc1 {name}_nf2
    s_mul_i32 s{R.sT}, s{R.sRB}, {F2STR}
    s_lshl_b32 s{R.sT2}, s{R.sH}, 7
    s_add_u32 s{R.sT}, s{R.sT}, s{R.sT2}
    s_add_u32 s{R.sT}, s{R.sT}, {F2}
    v_mov_b32 v12, 0
    v_mov_b32 v13, s{sN}
    buffer_store_dword v13, v12, s[{R.SWS}:{R.SWS+3}], s{R.sT} offen sc1
    s_lshr_b32 s{sFA}, s{sP3T}, {2 if P3V==2 else 1}
    s_mul_i32 s{sFA}, s{sFA}, {F2STR}
    s_add_u32 s{sFA}, s{sFA}, {F2}
    s_mov_b32 s{sNEED}, -1
    s_mov_b32 s{sNEED+1}, 0
    """)
    poll(a,"p3",R.SWS,sFA,sNEED,sNEED+1,12,2,sleep=cfg.get("sleep2",4))
    a.label(f"{name}_nf2")
    if P3V==2: a("s_waitcnt vmcnt(0)")
    a("s_barrier")
    pf.pt("f2")
    if pf.on and cfg.get("pwave",0)>=4:
        pf0.flush(len(PTS),4,2,wave=cfg["pwave"])
    if P3V==2:
        gen_p3v2(a,name,cfg,R,pf,pf0,PTS,OSTF,HLD)
        return dict(name=name, grid=256, block=512, lds=163840, vgpr=248, sgpr=102)
    a(f"s_cmp_ge_u32 s{sWV}, 4\ns_cbranch_scc1 {name}_end")
    SOUT=16; sTB=27; sOB=28
    a(f"""
    s_lshl_b32 s{sTB}, s{sP3T}, 2
    s_add_u32 s{sTB}, s{sTB}, s{sWV}
    s_lshl_b32 s{sT}, s{sP3BR}, 6
    s_add_u32 s{sT}, s{sT}, s{sTB}
    s_lshl_b32 s{sOB}, s{sT}, 15
    s_add_u32 s{sOB}, s{sOB}, {OF}
    """)
    OFR=64; ACC3=32; WFR=[8,16]; vWA3=5
    DEPTH=cfg.get("p3_depth",10)
    if cfg.get("p3rot",0): a(f"s_mul_i32 s29, s{sP3NS}, {cfg['p3rot']}")
    def oload(h):
        if cfg.get("p3rot",0):
            a(f"s_add_u32 s{sT2}, s29, {h}\ns_and_b32 s{sT2}, s{sT2}, 31\ns_lshl_b32 s{sT2}, s{sT2}, 10\ns_add_u32 s{sT2}, s{sT2}, s{sOB}\nbuffer_load_dwordx4 {vr(OFR+4*h,4)}, v3, s[{R.SWS}:{R.SWS+3}], s{sT2} offen {HLD}")
        else:
            a(f"s_add_u32 s{sT2}, s{sOB}, {h*1024}\nbuffer_load_dwordx4 {vr(OFR+4*h,4)}, v3, s[{R.SWS}:{R.SWS+3}], s{sT2} offen {HLD}")
    for h in range(DEPTH): oload(h)
    a(f"""
    s_mov_b32 s{SOUT}, s{sOUT}
    s_mov_b32 s{SOUT+1}, s{sOUT+1}
    s_mov_b32 s{SOUT+2}, 0x400000
    s_mov_b32 s{SOUT+3}, 0x20000
    v_bfe_u32 v6, v1, 2, 2
    v_lshrrev_b32 v7, 5, v1
    v_lshl_add_u32 v6, v7, 2, v6
    v_lshlrev_b32 v6, 7, v6
    v_and_b32 v7, 1, v1
    v_lshlrev_b32 v7, 1, v7
    v_bfe_u32 v24, v1, 4, 1
    v_or_b32 v7, v7, v24
    v_bfe_u32 v24, v1, 3, 1
    v_lshlrev_b32 v24, 2, v24
    v_xor_b32 v7, v7, v24
    v_lshl_add_u32 v6, v7, 4, v6
    v_bfe_u32 v24, v1, 1, 1
    v_lshl_add_u32 v{vWA3}, v24, 3, v6
    v_xor_b32 v{vWA3+1}, 64, v{vWA3}
    v_add_u32 v{vWA3}, {WOL}, v{vWA3}
    v_add_u32 v{vWA3+1}, {WOL}, v{vWA3+1}
    """)
    def reads3(s,h):
        L=[]
        for nt in range(2):
            for t in range(2):
                L.append(f"ds_read_b64_tr_b16 {vr(WFR[s]+4*nt+2*t,2)}, v{vWA3+nt} offset:{h*2048+t*1024}")
        return L
    for l in reads3(0,0): a(l)
    for h in range(32):
        s=h&1
        if h==1: pf.pt("p3b0")
        nxt=reads3(s^1,h+1) if h<31 else []
        for l in nxt: a(l)
        issued=min(32,h+DEPTH)
        a(f"s_waitcnt vmcnt({issued-h-1}) lgkmcnt({len(nxt)})")
        for nt in range(2):
            c = "0" if h==0 else vr(ACC3+16*nt,16)
            a(f"v_mfma_f32_32x32x16_bf16 {vr(ACC3+16*nt,16)}, {vr(WFR[s]+4*nt,4)}, {vr(OFR+4*h,4)}, {c}")
        if h+DEPTH<32: oload(h+DEPTH)
    pf.pt("p3loop")
    a(f"""
    s_lshl_b32 s{sT}, s{sTB}, 16
    s_lshl_b32 s{sT2}, s{sP3BR}, 10
    s_add_u32 s{sT}, s{sT}, s{sT2}
    s_lshl_b32 s{sT2}, s{sP3NS}, 7
    s_add_u32 s{sT}, s{sT}, s{sT2}
    v_and_b32 v6, 31, v1
    v_lshlrev_b32 v6, 11, v6
    v_lshrrev_b32 v7, 5, v1
    v_lshl_add_u32 v6, v7, 5, v6
    s_nop 7
    """)
    if cfg.get("outT"):
        a(f"""
        s_lshl_b32 s{sT2}, s{sWV}, 12
        v_and_b32 v8, 31, v1
        v_lshlrev_b32 v8, 7, v8                    ; token*128
        v_lshrrev_b32 v9, 5, v1
        v_lshl_add_u32 v8, v9, 5, v8               ; + hf*32
        v_and_b32 v9, 7, v1
        v_lshlrev_b32 v9, 4, v9
        v_add_u32 v8, s{sT2}, v8
        """)
        for nt in range(2):
            b=ACC3+16*nt; T=16+8*nt
            for i in range(8): a(f"v_cvt_pk_bf16_f32 v{T+i}, v{b+2*i}, v{b+2*i+1}")
        for nt in range(2):
            for u in range(2):
                a(f"v_add_u32 v10, {nt*64+u*16}, v8\nv_xor_b32 v10, v10, v9\nds_write_b128 v10, {vr(16+8*nt+4*u,4)}")
        a(f"""
        v_lshrrev_b32 v11, 3, v1
        v_and_b32 v12, 7, v1                       ; chunk
        v_xor_b32 v13, v12, v11
        v_lshlrev_b32 v13, 4, v13
        v_lshl_add_u32 v13, v11, 7, v13
        v_add_u32 v13, s{sT2}, v13
        v_lshlrev_b32 v14, 11, v11
        v_lshl_add_u32 v14, v12, 4, v14
        s_waitcnt lgkmcnt(0)
        """)
        for i in range(4): a(f"ds_read_b128 {vr(32+4*i,4)}, v13 offset:{i*1024}")
        for i in range(4):
            a(f"s_waitcnt lgkmcnt({3-i})\ns_add_u32 s{sT2}, s{sT}, {i*8*2048}\nbuffer_store_dwordx4 {vr(32+4*i,4)}, v14, s[{SOUT}:{SOUT+3}], s{sT2} offen {OSTF}")
    else:
      for nt in range(2):
        b=ACC3+16*nt; T=8+8*nt
        for i in range(8): a(f"v_cvt_pk_bf16_f32 v{T+i}, v{b+2*i}, v{b+2*i+1}")
        a(f"buffer_store_dwordx4 {vr(T,4)}, v6, s[{SOUT}:{SOUT+3}], s{sT} offen offset:{nt*64} {OSTF}")
        a(f"buffer_store_dwordx4 {vr(T+4,4)}, v6, s[{SOUT}:{SOUT+3}], s{sT} offen offset:{nt*64+16} {OSTF}")
    a(f"""
    s_cmp_lg_u32 s2, 0
    s_cbranch_scc1 {name}_nn
    s_cmp_lg_u32 s{sWV}, 0
    s_cbranch_scc1 {name}_nn
    s_mov_b32 s{sT}, {NONCE}
    v_mov_b32 v12, 0
    v_mov_b32 v13, s{sN}
    buffer_store_dword v13, v12, s[{R.SWS}:{R.SWS+3}], s{sT} offen sc1
    {name}_nn:
    """)
    if pf.on:
        a("s_waitcnt vmcnt(0)"); pf.pt("end"); pf0.flush(len(PTS),4,2,wave=cfg.get("pwave",0) if cfg.get("pwave",0)<4 else 99)
    a.label(f"{name}_end")
    a("s_endpgm")
    if cfg.get("slow_ool"): a.lines+=R.deferred
    a.label(f"{name}_last")
    a("s_endpgm")
    return dict(name=name, grid=256, block=512, lds=163840, vgpr=248, sgpr=104 if False else 102)
```

```python
from asmlib import *
from k1 import QF,KF,VF,PQ,OF,KVP,WS_USED
NEGBIG=-1.0e30

def diag_mask(r):
    m=0
    for l in range(64):
        b=8*(r>>2)+4*(l>>5)+(r&3)
        if b<=(l&31): m|=1<<l
    return m

KL=0; VL=16384; ONES=32768; KVL=ONES+9216; RED=KVL+17408; K2_LDS=RED+1088+192

class K2R:
    KL=KL; VL=VL; ONES=ONES; KVL=KVL; RED=RED; NP=16; KVPB=KVP
    SWS=8
    sWAVE=20; sRB=21; sH=22; sQB=23; sT=24; sT2=25; sTMIN=26; sBASE=27; sOB=30
    MASK=32
    vLANE=1; vL16=3; vQ=4; vPQ=8; PM=16; vKA=24; vVA=25; vKVA=26; vRA=27; MX=28
    KFr=32
    SA,SB,SC,SD=68,84,100,116
    M=132; NEG=148; O=164; P=180; P2=188; VA=196; VB=204; OA=212; TMP=228

def k2_setup_consts(a, R):
    sT,sT2=R.sT,R.sT2
    a(f"""
    v_mov_b32 v12, 0x3f803f80
    v_mov_b32 v13, 0x3f803f80
    v_mov_b32 v14, 0x3f803f80
    v_mov_b32 v15, 0x3f803f80
    s_lshl_b32 s{sT}, s{R.sWAVE}, 10
    s_add_u32 s{sT}, s{sT}, {R.ONES}
    v_add_u32 v16, s{sT}, v{R.vL16}
    ds_write_b128 v16, v[12:15]
    v_add_u32 v16, {R.ONES+8192}, v{R.vL16}
    ds_write_b128 v16, v[12:15]
    """)
    for r in range(16):
        m=diag_mask(r)
        a(f"s_mov_b32 s{R.MASK+2*r}, {m&0xffffffff:#x}\ns_mov_b32 s{R.MASK+2*r+1}, {m>>32:#x}")
    a("v_mov_b32 v24, 0xffff\nv_mov_b32 v25, 0xffff0000")
    for i in range(8):
        a(f"v_cndmask_b32_e64 v{R.PM+i}, 0, v24, s[{R.MASK+4*i}:{R.MASK+4*i+1}]")
        a(f"v_cndmask_b32_e64 v26, 0, v25, s[{R.MASK+4*i+2}:{R.MASK+4*i+3}]")
        a(f"v_or_b32 v{R.PM+i}, v{R.PM+i}, v26")
    a(f"""
    s_lshl_b32 s{sT}, s{R.sWAVE}, 10
    s_add_u32 s{sT2}, s{sT}, {R.KL}
    v_add_u32 v{R.vKA}, s{sT2}, v{R.vL16}
    v_and_b32 v28, 31, v{R.vLANE}             ; idx
    v_lshrrev_b32 v29, 5, v{R.vLANE}          ; hf
    v_lshlrev_b32 v30, 4, v28
    v_lshl_add_u32 v30, v29, 8, v30
    s_add_u32 s{sT2}, s{sT}, {R.VL}
    v_add_u32 v30, s{sT2}, v30
    v_subrev_u32 v31, 20, v28
    v_cmp_gt_u32 vcc, 8, v31
    v_mov_b32 v31, {R.ONES}
    v_mov_b32 v12, {R.ONES+64}
    v_cndmask_b32_e64 v31, v31, v12, vcc
    v_cmp_gt_u32 vcc, 16, v28
    s_nop 1
    v_cndmask_b32_e64 v{R.vVA}, v31, v30, vcc
    v_lshlrev_b32 v30, 5, v28
    v_lshl_add_u32 v30, v29, 9, v30
    v_lshlrev_b32 v31, 5, v29
    v_add_u32 v31, 1024, v31
    v_cndmask_b32_e64 v{R.vKVA}, v31, v30, vcc
    v_add_u32 v{R.vKVA}, {R.RED}, v{R.vKVA}
    s_sub_u32 s{R.sTMIN}, 8, s{R.sWAVE}
    s_cmp_eq_u32 s{R.sRB}, 0
    s_cselect_b32 s{R.sTMIN}, s{R.sTMIN}, 1
    """)

def k2_load_b(a, R, LDF):
    sT,sT2,SWS=R.sT,R.sT2,R.SWS
    a(f"""
    s_lshl_b32 s{R.sBASE}, s{R.sH}, 16            ; h*65536
    s_lshl_b32 s{sT}, s{R.sQB}, 10
    s_add_u32 s{sT}, s{sT}, s{R.sBASE}
    s_add_u32 s{sT2}, s{sT}, {QF}
    buffer_load_dwordx4 {vr(R.vQ,4)}, v{R.vL16}, s[{SWS}:{SWS+3}], s{sT2} offen {LDF}
    """)
    for u in range(2):
        a(f"""
        s_lshl_b32 s{sT}, s{R.sWAVE}, 1
        s_add_u32 s{sT}, s{sT}, {u}              ; slot
        s_lshl_b32 s{sT2}, s{R.sRB}, 3
        s_add_u32 s{sT2}, s{sT2}, s{sT}
        s_sub_i32 s{sT2}, s{sT2}, 8
        s_max_i32 s{sT2}, s{sT2}, 0              ; tile
        s_lshl_b32 s{sT2}, s{sT2}, 10
        s_add_u32 s{sT2}, s{sT2}, s{R.sBASE}
        s_lshl_b32 s{sT}, s{sT}, 10
        s_add_u32 m0, s{sT}, {R.KL}
        s_add_u32 s28, s{sT2}, {KF}
        buffer_load_dwordx4 v{R.vL16}, s[{SWS}:{SWS+3}], s28 offen {LDF} lds
        s_add_u32 m0, s{sT}, {R.VL}
        s_add_u32 s28, s{sT2}, {VF}
        buffer_load_dwordx4 v{R.vL16}, s[{SWS}:{SWS+3}], s28 offen {LDF} lds
        """)

def k2_load_a(a, R, LDF, name, pq=True):
    sT,sT2,SWS=R.sT,R.sT2,R.SWS
    a(f"""
    s_mul_i32 s28, s{R.sH}, 17408
    s_add_u32 s28, s28, {KVP}
    s_cmp_lg_u32 s{R.sWAVE}, 0
    s_cbranch_scc1 {name}_nokv16
    s_mov_b32 m0, {R.KVL+16*1024}
    s_add_u32 s{sT}, s28, {16*1024}
    buffer_load_dwordx4 v{R.vL16}, s[{SWS}:{SWS+3}], s{sT} offen {LDF} lds
    {name}_nokv16:
    s_lshl_b32 s{sT2}, s{R.sWAVE}, 10
    s_add_u32 m0, s{sT2}, {R.KVL}
    s_add_u32 s{sT}, s28, s{sT2}
    buffer_load_dwordx4 v{R.vL16}, s[{SWS}:{SWS+3}], s{sT} offen {LDF} lds
    s_add_u32 m0, s{sT2}, {R.KVL+8192}
    s_add_u32 s{sT}, s{sT}, 8192
    buffer_load_dwordx4 v{R.vL16}, s[{SWS}:{SWS+3}], s{sT} offen {LDF} lds
    """)
    if pq: a(f"""
    s_lshl_b32 s{sT}, s{R.sH}, 16
    s_lshl_b32 s{sT2}, s{R.sQB}, 10
    s_add_u32 s{sT}, s{sT}, s{sT2}
    s_add_u32 s{sT}, s{sT}, {PQ}
    buffer_load_dwordx4 {vr(R.vPQ,4)}, v{R.vL16}, s[{SWS}:{SWS+3}], s{sT} offen {LDF}
    """)

def k2_attn(a, R, name, cfg, pf=None, hooks=None):
    hooks=hooks or {}
    SA,SB,SC,SD,M,NEG,O,P,P2,VA,VB,TMP=R.SA,R.SB,R.SC,R.SD,R.M,R.NEG,R.O,R.P,R.P2,R.VA,R.VB,R.TMP
    vQ,vKA,vVA,MASK,PM,MX=R.vQ,R.vKA,R.vVA,R.MASK,R.PM,R.MX
    def kf(t): return R.KFr+4*t
    def mf(D,A_,B_,C): a(f"v_mfma_f32_32x32x16_bf16 {vr(D,16)}, {vr(A_,4)}, {vr(B_,4)}, {C if isinstance(C,str) else vr(C,16)}")
    def vreads(t,V):
        a(f"ds_read_b128 {vr(V,4)}, v{vVA} offset:{t*1024}")
        a(f"ds_read_b128 {vr(V+4,4)}, v{vVA} offset:{t*1024+512}")
    def chk(t,lab): a(f"s_cmp_gt_u32 s{R.sTMIN}, {t}\ns_cbranch_scc1 {lab}")
    def hook(k):
        if k in hooks: hooks[k]()
    FE=f"{name}_fend"; SLOW=f"{name}_slow"; EPI=f"{name}_epi"
    nomax=cfg.get("k2_nomax",True)
    if nomax:
        KA,KB,KC=kf(0),kf(1),kf(2)
        a(f"ds_read_b128 {vr(KA,4)}, v{vKA} offset:0")
        a(f"ds_read_b128 {vr(KB,4)}, v{vKA} offset:{8*1024}")
        a(f"ds_read_b128 {vr(KC,4)}, v{vKA} offset:{7*1024}")
        vreads(8,VA); vreads(0,VB)
        l0=f"{name}_f0a"; l1=f"{name}_f0b"
        a(f"s_cmp_eq_u32 s{R.sRB}, 0\ns_cbranch_scc1 {l0}")
        a("s_waitcnt lgkmcnt(6)")
        mf(SA,KA,vQ,"0")
        a(f"s_branch {l1}")
        a.label(l0)
        for r in range(16): a(f"v_mov_b32 v{SA+r}, {f2u(NEGBIG):#x}")
        a.label(l1)
        a("s_waitcnt lgkmcnt(5)")
        mf(SB,KB,vQ,"0")
        a("s_waitcnt lgkmcnt(4)")
        mf(SC,KC,vQ,"0")
        a(f"ds_read_b128 {vr(KA,4)}, v{vKA} offset:{6*1024}")
        hook("pre")
        a("s_nop 7\ns_nop 1")
        for r in range(16):
            a(f"v_cndmask_b32_e64 v{M+r}, v{SA+r}, v{SB+r}, s[{MASK+2*r}:{MASK+2*r+1}]")
        for r in range(16): a(f"v_exp_f32 v{M+r}, v{M+r}")
        a("s_nop 0")
        for i in range(8): a(f"v_cvt_pk_bf16_f32 v{P+i}, v{M+2*i}, v{M+2*i+1}")
        for i in range(8): a(f"v_and_b32 v{P2+i}, v{P+i}, v{PM+i}")
        for i in range(8): a(f"v_xor_b32 v{P+i}, v{P+i}, v{P2+i}")
        a("s_waitcnt lgkmcnt(1)")
        mf(O,VA,P2,"0"); mf(O,VA+4,P2+4,O)
        lab=f"{name}_fskip0"
        a(f"s_cmp_eq_u32 s{R.sRB}, 0\ns_cbranch_scc1 {lab}")
        mf(O,VB,P,O); mf(O,VB+4,P+4,O)
        a.label(lab)
        hook("post0")
        bufs=[SC,SD]; Vb=[VA,VB]; Pb=[P2,P]; Kb=[KA,KB]
        if cfg.get("k2_sched",0)==0:
          for n,t in enumerate(range(7,0,-1)):
            S=bufs[n&1]; Sn=bufs[(n+1)&1]; V=Vb[n&1]; Pp=Pb[n&1]
            chk(t,FE)
            vreads(t,V)
            if t>1:
                a("s_waitcnt lgkmcnt(2)")
                mf(Sn,Kb[n&1],vQ,"0")
            if t>2: a(f"ds_read_b128 {vr(Kb[(n+1)&1],4)}, v{vKA} offset:{(t-2)*1024}")
            hook(("it",t))
            for r in range(16): a(f"v_exp_f32 v{S+r}, v{S+r}")
            a("s_nop 0")
            for i in range(8): a(f"v_cvt_pk_bf16_f32 v{Pp+i}, v{S+2*i}, v{S+2*i+1}")
            a(f"s_waitcnt lgkmcnt({1 if t>2 else 0})")
            mf(O,V,Pp,O); mf(O,V+4,Pp+4,O)
        else:
          FEP=f"{name}_fendp"
          pend=None
          for n,t in enumerate(range(7,0,-1)):
            S=bufs[n&1]; Sn=bufs[(n+1)&1]; V=Vb[n&1]; Pp=Pb[n&1]
            if pend is None: chk(t,FE)
            else: chk(t,f"{FEP}{n}")
            if t>1:
                a(f"s_waitcnt lgkmcnt({0 if pend is None else 2})")
                mf(Sn,Kb[n&1],vQ,"0")
            if t>2: a(f"ds_read_b128 {vr(Kb[(n+1)&1],4)}, v{vKA} offset:{(t-2)*1024}")
            hook(("it",t))
            for r in range(4): a(f"v_exp_f32 v{S+r}, v{S+r}")
            if pend is not None:
                a(f"s_waitcnt lgkmcnt({1 if t>2 else 0})")
                mf(O,pend[0],pend[1],O)
            for r in range(4,8): a(f"v_exp_f32 v{S+r}, v{S+r}")
            if pend is not None: mf(O,pend[0]+4,pend[1]+4,O)
            vreads(t,V)
            for r in range(8,16): a(f"v_exp_f32 v{S+r}, v{S+r}")
            a("s_nop 0")
            for i in range(8): a(f"v_cvt_pk_bf16_f32 v{Pp+i}, v{S+2*i}, v{S+2*i+1}")
            pend=(V,Pp)
          a("s_waitcnt lgkmcnt(0)")
          mf(O,pend[0],pend[1],O); mf(O,pend[0]+4,pend[1]+4,O)
          a(f"s_branch {FE}")
          for n in range(1,7):
            V=Vb[(n-1)&1]; Pp=Pb[(n-1)&1]
            a.label(f"{FEP}{n}")
            a("s_waitcnt lgkmcnt(0)\ns_nop 1")
            mf(O,V,Pp,O); mf(O,V+4,Pp+4,O)
            if n<6: a(f"s_branch {FE}")
        a.label(FE)
        a(f"""
        s_nop 15
        v_max3_f32 v28, |v{O}|, |v{O+1}|, |v{O+2}|
        v_max3_f32 v29, |v{O+3}|, |v{O+4}|, |v{O+5}|
        v_max3_f32 v28, v28, |v{O+6}|, |v{O+7}|
        v_max_f32 v28, v28, v29
        s_mov_b32 s28, {f2u(2.0**-64):#x}
        s_mov_b32 s29, {f2u(2.0**64):#x}
        v_cmp_nle_f32 vcc, s28, v{O+8}
        v_cmp_nge_f32 s[30:31], s29, v{O+8}
        s_or_b64 vcc, vcc, s[30:31]
        s_mov_b32 s28, {f2u(2.0**120):#x}
        v_cmp_nge_f32 s[30:31], s28, v28
        s_or_b64 vcc, vcc, s[30:31]
        s_nop 4
        s_cbranch_vccz {EPI}
        """)
    ool=cfg.get("slow_ool") and nomax
    if ool:
        a.lines[-2]=a.lines[-2].replace(f"s_cbranch_vccz {EPI}",f"s_cbranch_vccnz {SLOW}") if "s_cbranch_vccz" in a.lines[-2] else a.lines[-2]
        a.lines[-1]=a.lines[-1].replace(f"s_cbranch_vccz {EPI}",f"s_cbranch_vccnz {SLOW}") if "s_cbranch_vccz" in a.lines[-1] else a.lines[-1]
        mark=len(a.lines)
    a.label(SLOW)
    a("s_waitcnt lgkmcnt(0)")
    for t in (0,8,7,6,5,4,3,2,1):
        a(f"ds_read_b128 {vr(kf(t),4)}, v{vKA} offset:{t*1024}")
    a("s_waitcnt lgkmcnt(0)")
    l0=f"{name}_rb0a"; l1=f"{name}_rb0b"
    a(f"s_cmp_eq_u32 s{R.sRB}, 0\ns_cbranch_scc1 {l0}")
    mf(SA,kf(0),vQ,"0")
    a(f"s_branch {l1}")
    a.label(l0)
    for r in range(16): a(f"v_mov_b32 v{SA+r}, {f2u(NEGBIG):#x}")
    a.label(l1)
    mf(SB,kf(8),vQ,"0"); mf(SC,kf(7),vQ,"0"); mf(SD,kf(6),vQ,"0")
    a("s_nop 15")
    for r in range(16):
        a(f"v_cndmask_b32_e64 v{M+r}, v{SA+r}, v{SB+r}, s[{MASK+2*r}:{MASK+2*r+1}]")
    a(f"v_max3_f32 v{MX}, v{M}, v{M+1}, v{M+2}")
    for r in range(3,15,2): a(f"v_max3_f32 v{MX}, v{MX}, v{M+r}, v{M+r+1}")
    a(f"v_max_f32 v{MX}, v{MX}, v{M+15}")
    def maxtile(S):
        for r in range(0,16,2): a(f"v_max3_f32 v{MX}, v{MX}, v{S+r}, v{S+r+1}")
    P1E=f"{name}_p1end"
    chk(7,P1E)
    mf(SA,kf(5),vQ,"0"); mf(SB,kf(4),vQ,"0")
    maxtile(SC); chk(6,P1E); maxtile(SD); chk(5,P1E)
    mf(SC,kf(3),vQ,"0"); mf(SD,kf(2),vQ,"0")
    maxtile(SA); chk(4,P1E); maxtile(SB); chk(3,P1E)
    mf(SA,kf(1),vQ,"0")
    maxtile(SC); chk(2,P1E); maxtile(SD); chk(1,P1E)
    a("s_nop 1")
    maxtile(SA)
    a.label(P1E)
    a(f"""
    v_mov_b32 v29, v{MX}
    s_nop 1
    v_permlane32_swap_b32 v29, v{MX}
    s_nop 1
    v_max_f32 v{MX}, v{MX}, v29
    v_sub_f32 v{NEG}, 0, v{MX}
    """)
    for r in range(1,16): a(f"v_mov_b32 v{NEG+r}, v{NEG}")
    vreads(8,VA); vreads(0,VB)
    mf(SC,kf(7),vQ,NEG)
    for i in range(8): a(f"v_pk_add_f32 {vr(M+2*i,2)}, {vr(M+2*i,2)}, {vr(NEG,2)}")
    for r in range(16): a(f"v_exp_f32 v{M+r}, v{M+r}")
    a("s_nop 0")
    for i in range(8): a(f"v_cvt_pk_bf16_f32 v{P+i}, v{M+2*i}, v{M+2*i+1}")
    for i in range(8): a(f"v_and_b32 v{P2+i}, v{P+i}, v{PM+i}")
    for i in range(8): a(f"v_xor_b32 v{P+i}, v{P+i}, v{P2+i}")
    a("s_waitcnt lgkmcnt(0)")
    mf(O,VA,P2,"0"); mf(O,VA+4,P2+4,O)
    lab=f"{name}_skip0"
    a(f"s_cmp_eq_u32 s{R.sRB}, 0\ns_cbranch_scc1 {lab}")
    mf(O,VB,P,O); mf(O,VB+4,P+4,O)
    a.label(lab)
    P2E=f"{name}_p2end"
    bufs=[SC,SD]; Vb=[VA,VB]; Pb=[P,P2]
    for n,t in enumerate(range(7,0,-1)):
        S=bufs[n&1]; Sn=bufs[(n+1)&1]; V=Vb[n&1]; Pp=Pb[n&1]
        chk(t,P2E)
        vreads(t,V)
        if t>1: mf(Sn,kf(t-1),vQ,NEG)
        for r in range(16): a(f"v_exp_f32 v{S+r}, v{S+r}")
        a("s_nop 0")
        for i in range(8): a(f"v_cvt_pk_bf16_f32 v{Pp+i}, v{S+2*i}, v{S+2*i+1}")
        a("s_waitcnt lgkmcnt(0)")
        mf(O,V,Pp,O); mf(O,V+4,Pp+4,O)
    a.label(P2E)
    a("s_nop 15")
    if ool:
        a(f"s_branch {EPI}")
        R.deferred=a.lines[mark:]
        del a.lines[mark:]
    a.label(EPI)
    a(f"v_rcp_f32 v{O+8}, v{O+8}\ns_nop 0")
    for r in range(8): a(f"v_mul_f32 v{O+r}, v{O+r}, v{O+8}")
    for i in range(4): a(f"v_cvt_pk_bf16_f32 v{TMP+i}, v{O+2*i}, v{O+2*i+1}")

def k2_apart(a, R, name):
    OA,TMP=R.OA,R.TMP
    a(f"""
    v_lshlrev_b32 v{R.vRA}, 2, v0               ; tid*4
    v_cmp_gt_u32 vcc, 272, v0
    s_and_saveexec_b64 s[28:29], vcc
    s_cbranch_execz {name}_nored
    """)
    RT=32
    for p in range(12):
        a(f"ds_read_b32 v{RT+p}, v{R.vRA} offset:{R.KVL+p*1088}")
    for p in range(1,4):
        a(f"s_waitcnt lgkmcnt({11-p})")
        a(f"v_add_f32 v{RT}, v{RT}, v{RT+p}")
    for p in range(12,16):
        a(f"ds_read_b32 v{RT+p}, v{R.vRA} offset:{R.KVL+p*1088}")
    for p in range(4,16):
        a(f"s_waitcnt lgkmcnt({15-p})")
        a(f"v_add_f32 v{RT}, v{RT}, v{RT+p}")
    a(f"""
    ds_write_b32 v{R.vRA}, v{RT} offset:{R.RED}
    {name}_nored:
    s_mov_b64 exec, s[28:29]
    s_waitcnt lgkmcnt(0)
    s_barrier
    ds_read_b128 {vr(TMP+8,4)}, v{R.vKVA}
    ds_read_b128 {vr(TMP+12,4)}, v{R.vKVA} offset:16
    s_waitcnt lgkmcnt(0)
    """)
    for i in range(4): a(f"v_cvt_pk_bf16_f32 v{TMP+8+i}, v{TMP+8+2*i}, v{TMP+8+2*i+1}")
    a("s_nop 1")
    a(f"v_mfma_f32_32x32x16_bf16 {vr(OA,16)}, {vr(TMP+8,4)}, {vr(R.vPQ,4)}, 0")
    a(f"""
    s_nop 15
    v_add_f32 v{OA+8}, {f2u(1e-6):#x}, v{OA+8}
    s_nop 0
    v_rcp_f32 v{OA+8}, v{OA+8}
    s_nop 0
    """)
    for r in range(8): a(f"v_mul_f32 v{OA+r}, v{OA+r}, v{OA+8}")
    for i in range(4): a(f"v_cvt_pk_bf16_f32 v{TMP+4+i}, v{OA+2*i}, v{OA+2*i+1}")

def gen_k2(a, name, cfg):
    LDF=cfg.get("k2_ldflags","")
    STF=cfg.get("k2_stflags","")
    R=K2R
    a.raw(f".globl {name}\n.p2align 8\n.type {name},@function\n{name}:")
    SWS=R.SWS
    pf=Prof(a,cfg,1,64,R.sWAVE,4,5)
    pf.stamp(0)
    a(f"""
    s_cmp_ge_u32 s2, 256
    s_cbranch_scc1 {name}_end
    s_load_dwordx2 s[4:5], s[0:1], 64
    v_lshrrev_b32 v2, 6, v0
    v_and_b32 v1, 63, v0
    """)
    if cfg.get("k2_map",1)==0:
        a(f"s_and_b32 s{R.sRB}, s2, 7\nv_readfirstlane_b32 s{R.sWAVE}, v2\ns_lshr_b32 s{R.sH}, s2, 3")
    else:
        a(f"""
        s_bfe_u32 s{R.sRB}, s2, 0x30003
        v_readfirstlane_b32 s{R.sWAVE}, v2
        s_and_b32 s{R.sH}, s2, 7
        s_lshr_b32 s{R.sT}, s2, 6
        s_lshl_b32 s{R.sT}, s{R.sT}, 3
        s_add_u32 s{R.sH}, s{R.sH}, s{R.sT}
        """)
    a(f"""
    v_lshlrev_b32 v3, 4, v1                   ; lane*16
    s_lshl_b32 s{R.sQB}, s{R.sRB}, 3
    s_add_u32 s{R.sQB}, s{R.sQB}, s{R.sWAVE}        ; qb
    s_waitcnt lgkmcnt(0)
    s_mov_b32 s{SWS}, s4
    s_mov_b32 s{SWS+1}, s5
    s_mov_b32 s{SWS+2}, {WS_USED}
    s_mov_b32 s{SWS+3}, 0x20000
    """)
    pf.stamp(6)
    k2_load_b(a,R,LDF)
    k2_load_a(a,R,LDF,name)
    pf.stamp(7)
    k2_setup_consts(a,R)
    pf.stamp(8)
    a("s_waitcnt vmcnt(3) lgkmcnt(0)\ns_barrier")
    pf.stamp(1)
    k2_attn(a,R,name,cfg,pf)
    a(f"""
    s_lshl_b32 s{R.sT}, s{R.sQB}, 5
    s_add_u32 s{R.sT}, s{R.sT}, s{R.sH}
    s_lshl_b32 s{R.sT}, s{R.sT}, 10
    s_add_u32 s{R.sOB}, s{R.sT}, {OF}
    s_add_u32 s{R.sT}, s{R.sOB}, {64*32*1024}
    buffer_store_dwordx4 {vr(R.TMP,4)}, v3, s[{SWS}:{SWS+3}], s{R.sT} offen {STF}
    """)
    pf.stamp(2)
    a("s_waitcnt vmcnt(1)\ns_barrier")
    k2_apart(a,R,name)
    a(f"buffer_store_dwordx4 {vr(R.TMP+4,4)}, v3, s[{SWS}:{SWS+3}], s{R.sOB} offen {STF}")
    if pf.on:
        pf.stamp(3); pf.stamp(4); a("s_waitcnt vmcnt(0)"); pf.stamp(5); pf.flush(9,84,30,wave=7)
    a.label(f"{name}_end")
    a("s_endpgm")
    return dict(name=name, grid=256, block=512, lds=K2_LDS, vgpr=248, sgpr=92 if cfg.get('prof') else 72)
```

```python
from asmlib import *
import math
from k1 import QF,KF,VF,PQ,OF,KVP,WS_USED,LOG2E,CSCALE
import k2
from k2 import K2R,k2_setup_consts,k2_load_b,k2_load_a,k2_attn,k2_apart

FLG=KVP+0x90000
FL=128
FSTR=16*FL+256
F1=FLG; F2=FLG+16*FSTR; F2STR=32*FL+256; NONCE=F2+8*F2STR
FP=NONCE+256; FPSTR=32*FL+256
WOL=98304
NL=163840-16

sAWO=64; sBWO=66; sOUT=68; sDBG=70; sWSP=72; sN=74; sWV=75; sP3T=76; sP3NS=77; sP3BR=78; sCNT2=79

def poll(a, name, srd, soff, need_lo, need_hi, vtmp, voff, bound=30000, sleep=4):
    L=a.newlabel(name); D=a.newlabel(name+"d")
    a(f"""
    s_mov_b32 s{sCNT2}, 0
    s_mov_b64 exec, s[{need_lo}:{need_hi}]
    {L}:
    buffer_load_dword v{vtmp}, v{voff}, s[{srd}:{srd+3}], s{soff} offen sc1
    s_waitcnt vmcnt(0)
    v_cmp_eq_u32 vcc, s{sN}, v{vtmp}
    s_cmp_eq_u64 vcc, s[{need_lo}:{need_hi}]
    s_cbranch_scc1 {D}
    s_add_u32 s{sCNT2}, s{sCNT2}, 1
    s_cmp_lt_u32 s{sCNT2}, {bound}
    s_cbranch_scc0 {D}
    s_sleep {sleep}
    s_branch {L}
    {D}:
    s_mov_b64 exec, -1
    """)

def gen_p3v2(a,name,cfg,R,pf,pf0,PTS,OSTF,HLD):
    sT=R.sT; sT2=R.sT2
    WOL0=32768; WOL1=98304
    a(f"s_cmp_ge_u32 s{sWV}, 4\ns_cbranch_scc1 {name}_p3l")
    SOUT=16; sTT=26; sNH=27
    ACC3=32; OS=[64,80]; WSET=[96,104,112]
    vWA3=5; vO=7
    a(f"""
    s_and_b32 s{sTT}, s{sWV}, 1
    s_lshr_b32 s{sNH}, s{sWV}, 1
    s_mov_b32 s{SOUT}, s{sOUT}
    s_mov_b32 s{SOUT+1}, s{sOUT+1}
    s_mov_b32 s{SOUT+2}, 0x400000
    s_mov_b32 s{SOUT+3}, 0x20000
    v_bfe_u32 v6, v1, 2, 2
    v_lshrrev_b32 v7, 5, v1
    v_lshl_add_u32 v6, v7, 2, v6
    v_lshlrev_b32 v6, 7, v6
    v_and_b32 v7, 1, v1
    v_lshlrev_b32 v7, 1, v7
    v_bfe_u32 v24, v1, 4, 1
    v_or_b32 v7, v7, v24
    v_bfe_u32 v24, v1, 3, 1
    v_lshlrev_b32 v24, 2, v24
    v_xor_b32 v7, v7, v24
    v_lshl_add_u32 v6, v7, 4, v6
    v_bfe_u32 v24, v1, 1, 1
    v_lshl_add_u32 v{vWA3}, v24, 3, v6
    v_xor_b32 v{vWA3+1}, 64, v{vWA3}
    s_lshl_b32 s{sT}, s{sNH}, 16
    s_add_u32 s{sT}, s{sT}, {WOL0}
    v_add_u32 v{vWA3}, s{sT}, v{vWA3}
    v_add_u32 v{vWA3+1}, s{sT}, v{vWA3+1}
    s_lshl_b32 s{sT}, s{sTT}, 10
    v_add_u32 v{vO}, s{sT}, v3
    """)
    q=[]
    def rd_o(e):
        for hh in range(4):
            a(f"ds_read_b128 {vr(OS[e&1]+4*hh,4)}, v{vO} offset:{(e&3)*8192+hh*2048}"); q.append(("o",e))
    def rd_w(h):
        for nt in range(2):
            for t in range(2):
                a(f"ds_read_b64_tr_b16 {vr(WSET[h%3]+4*nt+2*t,2)}, v{vWA3+nt} offset:{h*2048+t*1024}"); q.append(("w",h))
    st={"done":0}
    def wait_for(tags):
        last=max(i for i,x in enumerate(q) if x in tags)
        if last<st["done"]: return
        n=len(q)-1-last
        assert n<=15 and len(q)-st["done"]<=16, (n,len(q)-st["done"])
        a(f"s_waitcnt lgkmcnt({n})"); st["done"]=last+1
    rd_w(0); rd_w(1)
    a("s_barrier")
    pf.pt("p3b0")
    rd_o(0)
    for h in range(32):
        e=h>>2; hh=h&3
        if hh==2 and e<7:
            wait_for([("o",e)])
            a("s_barrier")
            rd_o(e+1)
        if h+2<32: rd_w(h+2)
        wait_for([("w",h),("o",e)])
        for nt in range(2):
            c = "0" if h==0 else vr(ACC3+16*nt,16)
            a(f"v_mfma_f32_32x32x16_bf16 {vr(ACC3+16*nt,16)}, {vr(WSET[h%3]+4*nt,4)}, {vr(OS[e&1]+4*hh,4)}, {c}")
    pf.pt("p3loop")
    a(f"""
    s_lshl_b32 s{sT}, s{sP3T}, 1
    s_add_u32 s{sT}, s{sT}, s{sTT}
    s_lshl_b32 s{sT}, s{sT}, 16
    s_lshl_b32 s{sT2}, s{sP3BR}, 10
    s_add_u32 s{sT}, s{sT}, s{sT2}
    s_lshl_b32 s{sT2}, s{sP3NS}, 8
    s_add_u32 s{sT}, s{sT}, s{sT2}
    s_lshl_b32 s{sT2}, s{sNH}, 7
    s_add_u32 s{sT}, s{sT}, s{sT2}
    v_and_b32 v6, 31, v1
    v_lshlrev_b32 v6, 11, v6
    v_lshrrev_b32 v7, 5, v1
    v_lshl_add_u32 v6, v7, 5, v6
    s_nop 7
    """)
    if cfg.get("outT"):
        a(f"""
        s_lshl_b32 s{sT2}, s{sWV}, 12
        v_and_b32 v8, 31, v1
        v_lshlrev_b32 v8, 7, v8                    ; token*128
        v_lshrrev_b32 v9, 5, v1
        v_lshl_add_u32 v8, v9, 5, v8               ; + hf*32
        v_and_b32 v9, 7, v1
        v_lshlrev_b32 v9, 4, v9
        v_add_u32 v8, s{sT2}, v8
        """)
        for nt in range(2):
            b=ACC3+16*nt; T=16+8*nt
            for i in range(8): a(f"v_cvt_pk_bf16_f32 v{T+i}, v{b+2*i}, v{b+2*i+1}")
        for nt in range(2):
            for u in range(2):
                a(f"v_add_u32 v10, {nt*64+u*16}, v8\nv_xor_b32 v10, v10, v9\nds_write_b128 v10, {vr(16+8*nt+4*u,4)}")
        a(f"""
        v_lshrrev_b32 v11, 3, v1
        v_and_b32 v12, 7, v1                       ; chunk
        v_xor_b32 v13, v12, v11
        v_lshlrev_b32 v13, 4, v13
        v_lshl_add_u32 v13, v11, 7, v13
        v_add_u32 v13, s{sT2}, v13
        v_lshlrev_b32 v14, 11, v11
        v_lshl_add_u32 v14, v12, 4, v14
        s_waitcnt lgkmcnt(0)
        """)
        for i in range(4): a(f"ds_read_b128 {vr(32+4*i,4)}, v13 offset:{i*1024}")
        for i in range(4):
            a(f"s_waitcnt lgkmcnt({3-i})\ns_add_u32 s{sT2}, s{sT}, {i*8*2048}\nbuffer_store_dwordx4 {vr(32+4*i,4)}, v14, s[{SOUT}:{SOUT+3}], s{sT2} offen {OSTF}")
    else:
      for nt in range(2):
        b=ACC3+16*nt; T=8+8*nt
        for i in range(8): a(f"v_cvt_pk_bf16_f32 v{T+i}, v{b+2*i}, v{b+2*i+1}")
        a(f"buffer_store_dwordx4 {vr(T,4)}, v6, s[{SOUT}:{SOUT+3}], s{sT} offen offset:{nt*64} {OSTF}")
        a(f"buffer_store_dwordx4 {vr(T+4,4)}, v6, s[{SOUT}:{SOUT+3}], s{sT} offen offset:{nt*64+16} {OSTF}")
    a(f"""
    s_cmp_lg_u32 s2, 0
    s_cbranch_scc1 {name}_nn
    s_cmp_lg_u32 s{sWV}, 0
    s_cbranch_scc1 {name}_nn
    s_mov_b32 s{sT}, {NONCE}
    v_mov_b32 v12, 0
    v_mov_b32 v13, s{sN}
    buffer_store_dword v13, v12, s[{R.SWS}:{R.SWS+3}], s{sT} offen sc1
    {name}_nn:
    """)
    if pf.on:
        a("s_waitcnt vmcnt(0)"); pf.pt("end"); pf0.flush(len(PTS),4,2,wave=cfg.get("pwave",0) if cfg.get("pwave",0)<4 else 99)
    a("s_endpgm")
    a.label(f"{name}_p3l")
    sE=26; sB=27; sL=28
    a(f"""
    s_sub_u32 s{sE}, s{sWV}, 4
    s_lshl_b32 s{sT}, s{sP3BR}, 6
    s_lshl_b32 s{sT2}, s{sP3T}, 1
    s_add_u32 s{sT}, s{sT}, s{sT2}
    s_lshl_b32 s{sB}, s{sT}, 15
    s_lshl_b32 s{sT}, s{sE}, 10
    s_add_u32 s{sB}, s{sB}, s{sT}
    s_add_u32 s{sB}, s{sB}, {OF}
    s_lshl_b32 s{sL}, s{sE}, 11
    """)
    OR=32; LA=cfg.get("p3_la",5); mode=cfg.get("p3_mode","reg")
    items=[(e,tt) for e in range(8) for tt in range(2)]
    def ld(k):
        e,tt=items[k]
        if cfg.get("diag_p3noload"): return
        if mode=="reg":
            a(f"s_add_u32 s{sT}, s{sB}, {e*4096+tt*32768}\nbuffer_load_dwordx4 {vr(OR+4*k,4)}, v3, s[{R.SWS}:{R.SWS+3}], s{sT} offen {HLD}")
        else:
            a(f"s_add_u32 m0, s{sL}, {(e&3)*8192+tt*1024}\ns_add_u32 s{sT}, s{sB}, {e*4096+tt*32768}\nbuffer_load_dwordx4 v3, s[{R.SWS}:{R.SWS+3}], s{sT} offen {HLD} lds")
    issued=0
    if mode=="dma": LA=min(LA,6)
    while issued<LA: ld(issued); issued+=1
    a(f"v_add_u32 v4, s{sL}, v3")
    for e in range(8):
        need=2*e+2
        a(f"s_waitcnt vmcnt({max(issued-need,0)})")
        if mode=="reg":
            for tt in range(2):
                a(f"ds_write_b128 v4, {vr(OR+4*(2*e+tt),4)} offset:{(e&3)*8192+tt*1024}")
            while issued<min(16,need+LA): ld(issued); issued+=1
            a("s_waitcnt lgkmcnt(0)\ns_barrier")
        else:
            a("s_barrier")
            while issued<min(16,need+LA,2*(e+4)): ld(issued); issued+=1
    a.label(f"{name}_end")
    a.label(f"{name}_last")
    a("s_endpgm")

def gen_fused(a, name, cfg):
    NS=3
    P3V=cfg.get("p3v",1)
    DEF=cfg.get("defer_pq",False)
    LDX=cfg.get("ldx",""); LDW=cfg.get("ldw","")
    STF="sc1"; HLD="sc1"
    OSTF=cfg.get("out_stflags","")
    XB=0; XS=16384; WB=NS*XS; WS_=24576
    a.raw(f".globl {name}\n.p2align 8\n.type {name},@function\n{name}:")
    sWAVE=20; sBR=21; sR=22; sG=23; sT=24; sT2=25
    SX=8; SW=12; SWS=16
    PTS=cfg.get("pts",["entry","p","loop","epi","b1","b2","kv","att","f2","end"])
    TIMER=cfg.get("timer","s_memrealtime")
    class PF0:
        on=cfg.get("prof",False)
        def flush(self,n,srd,vt,wave=0):
            if not self.on: return
            lab=a.newlabel("pf")
            a(f"""
            s_cmp_lg_u32 s{sWV}, {wave}
            s_cbranch_scc1 {lab}
            s_mov_b32 s4, s{sWSP}
            s_mov_b32 s5, s{sWSP+1}
            s_mov_b32 s6, {16<<20}
            s_mov_b32 s7, 0x20000
            s_lshl_b32 s24, s2, 6
            s_add_u32 s24, s24, {14<<20}
            v_lshlrev_b32 v2, 2, v1
            s_mov_b64 exec, 0xffff
            buffer_store_dword v247, v2, s[4:7], s24 offen
            s_mov_b64 exec, -1
            {lab}:
            """)
    pf0=PF0()
    class PF:
        on=pf0.on
        def pt(self,n):
            if self.on and n in PTS:
                a(f"{TIMER} s[100:101]\ns_waitcnt lgkmcnt(0)\nv_writelane_b32 v247, s100, {PTS.index(n)}")
    pf=PF()
    pf.pt("entry")
    a(f"""
    s_cmp_ge_u32 s2, 256
    s_cbranch_scc1 {name}_end
    """)
    if cfg.get("codepf_top"):
        nseg=cfg["codepf_top"]; lab=a.newlabel("cpt"); nwg=cfg.get("codepf_wgs",8)
        a(f"""
        s_load_dwordx4 s[28:31], s[0:1], 0
        s_load_dwordx4 s[32:35], s[0:1], 24
        s_load_dwordx2 s[{sAWO}:{sAWO+1}], s[0:1], 16
        s_load_dwordx2 s[{sBWO}:{sBWO+1}], s[0:1], 40
        s_load_dwordx4 s[{sOUT}:{sOUT+3}], s[0:1], 48
        s_load_dwordx2 s[{sWSP}:{sWSP+1}], s[0:1], 64
        s_cmp_ge_u32 s2, {nwg}
        s_cbranch_scc1 {lab}
        v_lshrrev_b32 v2, 6, v0
        v_and_b32 v1, 63, v0
        v_subrev_u32 v2, 1, v2                     ; wave - 1
        v_cmp_gt_u32 vcc, {nseg}, v2
        s_getpc_b64 s[4:5]
        {lab}_pc:
        s_sub_u32 s4, s4, {lab}_pc-{name}
        s_subb_u32 s5, s5, 0
        v_lshlrev_b32 v12, 13, v2
        v_lshl_add_u32 v12, v1, 7, v12
        v_min_u32 v12, {name}_last-{name}, v12
        v_mov_b32 v13, s5
        s_and_saveexec_b64 s[6:7], vcc
        s_cbranch_execz {lab}_x
        v_add_co_u32 v12, vcc, s4, v12
        s_nop 1
        v_addc_co_u32 v13, vcc, 0, v13, vcc
        global_load_dword v14, v[12:13], off
        {lab}_x:
        s_mov_b64 exec, s[6:7]
        {lab}:
        """)
    if not cfg.get("codepf_top"):
        a(f"""
        s_load_dwordx4 s[28:31], s[0:1], 0
        s_load_dwordx4 s[32:35], s[0:1], 24
        s_load_dwordx2 s[{sAWO}:{sAWO+1}], s[0:1], 16
        s_load_dwordx2 s[{sBWO}:{sBWO+1}], s[0:1], 40
        s_load_dwordx4 s[{sOUT}:{sOUT+3}], s[0:1], 48
        s_load_dwordx2 s[{sWSP}:{sWSP+1}], s[0:1], 64
        """)
    a(f"""
    v_lshrrev_b32 v2, 6, v0
    v_and_b32 v1, 63, v0
    s_and_b32 s{sT}, s2, 7
    v_readfirstlane_b32 s{sWAVE}, v2
    s_lshr_b32 s{sT2}, s2, 3
    s_and_b32 s{sBR}, s{sT}, 1
    s_lshr_b32 s{sT}, s{sT}, 1
    s_mov_b32 s{sP3BR}, s{sBR}
    s_lshl_b32 s{sP3T}, s{sT}, {3 if P3V==2 else 2}
    s_and_b32 s{sP3NS}, s{sT2}, {7 if P3V==2 else 3}
    s_add_u32 s{sP3T}, s{sP3T}, s{sP3NS}
    s_lshr_b32 s{sP3NS}, s{sT2}, {3 if P3V==2 else 2}
    s_and_b32 s{sR}, s{sT}, 1
    s_lshl_b32 s{sR}, s{sR}, 3
    s_lshr_b32 s{sG}, s{sT}, 1
    s_lshl_b32 s{sG}, s{sG}, 2
    s_and_b32 s{sT}, s{sT2}, 7
    s_add_u32 s{sR}, s{sR}, s{sT}
    s_lshr_b32 s{sT}, s{sT2}, 3
    s_add_u32 s{sG}, s{sG}, s{sT}
    s_mov_b32 s{sWV}, s{sWAVE}
    s_mov_b32 s83, 0
    """)
    FAST=cfg.get("faststart",False)
    sE=26; sXB=27; sWBs=38; sL=39; sROT=40; sXC=41; sWC=42
    def loader_setup():
        a(f"""
        s_sub_u32 s{sE}, s{sWAVE}, 4
        v_lshrrev_b32 v2, 3, v1
        v_and_b32 v3, 7, v1
        v_lshrrev_b32 v4, 1, v2
        s_and_b32 s{sT}, s{sE}, 1
        s_lshl_b32 s{sT}, s{sT}, 2
        v_or_b32 v4, s{sT}, v4
        v_xor_b32 v4, v4, v3
        v_lshlrev_b32 v5, 10, v2
        v_lshl_add_u32 v5, v4, 4, v5            ; x voffset
        v_bfe_u32 v4, v1, 4, 1
        v_lshlrev_b32 v4, 2, v4
        v_xor_b32 v4, v4, v3
        v_mul_u32_u24 v6, 3072, v2
        v_lshl_add_u32 v6, v4, 4, v6            ; w voffset
        v_lshlrev_b32 v7, 10, v2
        v_lshl_add_u32 v7, v4, 4, v7
        s_lshl_b32 s{sXB}, s{sR}, 17
        s_lshl_b32 s{sT}, s{sE}, 13
        s_add_u32 s{sXB}, s{sXB}, s{sT}
        s_lshl_b32 s{sWBs}, s{sG}, 7
        s_mul_i32 s{sT}, s{sE}, 24576
        s_add_u32 s{sWBs}, s{sWBs}, s{sT}
        s_lshl_b32 s{sL}, s{sE}, 10
        s_mov_b32 s{sROT}, 0
        """)
        for (src,sh,mask,mul) in cfg.get("k1_rot",[["R",0,3,2],["G",0,3,1]]):
            r={"R":sR,"G":sG}[src]
            a(f"s_lshr_b32 s{sT}, s{r}, {sh}\ns_and_b32 s{sT}, s{sT}, {mask}\ns_mul_i32 s{sT}, s{sT}, {mul}\ns_add_u32 s{sROT}, s{sROT}, s{sT}")
    if FAST: loader_setup()
    a(f"""
    s_mov_b32 s{SX+2}, 0x200000
    s_mov_b32 s{SX+3}, 0x20000
    s_mov_b32 s{SW+2}, 0x180000
    s_mov_b32 s{SW+3}, 0x20000
    s_mov_b32 s{SWS+2}, {WS_USED}
    s_mov_b32 s{SWS+3}, 0x20000
    s_cmp_eq_u32 s{sBR}, 0
    s_waitcnt lgkmcnt(0)
    s_cselect_b32 s{SX}, s28, s32
    s_cselect_b32 s{SX+1}, s29, s33
    s_cselect_b32 s{SW}, s30, s34
    s_cselect_b32 s{SW+1}, s31, s35
    s_mov_b32 s{SWS}, s{sWSP}
    s_mov_b32 s{SWS+1}, s{sWSP+1}
    """)
    def nonce_load():
        a(f"""
        s_mov_b32 s4, {NONCE}
        v_mov_b32 v30, 0
        buffer_load_dword v31, v30, s[{SWS}:{SWS+3}], s4 offen sc1
        """)
    if FAST:
        a(f"s_cmp_lt_u32 s{sWAVE}, 4\ns_cbranch_scc1 {name}_compute")
        mark_entry_end=len(a.lines)
        a.label(f"{name}_compute")
        nonce_load()
    else:
        nonce_load()
        a(f"s_cmp_ge_u32 s{sWAVE}, 4\ns_cbranch_scc1 {name}_loader")
    sTM=26; sFN=27
    vXA=4; vWA=8
    ACC=32
    def acc(tt,sec): return ACC+(tt*3+sec)*16
    FR=[128,148]
    def xf(s,tt): return FR[s]+4*tt
    def wf(s,sec): return FR[s]+8+4*sec
    if cfg.get("pretouch"):
        lab=a.newlabel("ptc")
        a(f"""
        s_cmp_lg_u32 s{sWAVE}, 2
        s_cbranch_scc1 {lab}
        v_and_b32 v12, 7, v1
        v_lshlrev_b32 v12, 21, v12
        v_add_u32 v12, {0x1ffc00 if False else 0x100000}, v12
        v_min_u32 v12, {WS_USED-256}, v12
        buffer_load_dword v14, v12, s[{SWS}:{SWS+3}], 0 offen
        s_mov_b32 s44, s{sOUT}
        s_mov_b32 s45, s{sOUT+1}
        s_mov_b32 s46, 0x400000
        s_mov_b32 s47, 0x20000
        v_and_b32 v12, 1, v1
        v_lshlrev_b32 v12, 21, v12
        buffer_load_dword v15, v12, s[44:47], 0 offen
        s_cmp_eq_u32 s{sP3BR}, 0
        s_cselect_b32 s44, s{sAWO}, s{sBWO}
        s_cselect_b32 s45, s{sAWO+1}, s{sBWO+1}
        s_mov_b32 s46, 0x80000
        v_mov_b32 v12, 0
        buffer_load_dword v16, v12, s[44:47], 0 offen
        {lab}:
        """)
    if cfg.get("codepf"):
        nseg=cfg["codepf"]
        lab=a.newlabel("cpf")
        a(f"""
        s_cmp_lg_u32 s{sWAVE}, 1
        s_cbranch_scc1 {lab}
        s_lshr_b32 s4, s2, 3
        s_cmp_ge_u32 s4, {nseg}
        s_cbranch_scc1 {lab}
        s_lshl_b32 s6, s4, 13
        s_getpc_b64 s[4:5]
        {lab}_pc:
        s_sub_u32 s4, s4, {lab}_pc-{name}
        s_subb_u32 s5, s5, 0
        v_lshlrev_b32 v12, 7, v1
        v_add_u32 v12, s6, v12
        v_min_u32 v12, {name}_last-{name}, v12
        v_mov_b32 v13, s5
        v_add_co_u32 v12, vcc, s4, v12
        s_nop 1
        v_addc_co_u32 v13, vcc, 0, v13, vcc
        global_load_dword v14, v[12:13], off
        {lab}:
        """)
    a(f"""
    s_and_b32 s{sTM}, s{sWAVE}, 1
    s_lshr_b32 s{sFN}, s{sWAVE}, 1
    v_lshrrev_b32 v2, 5, v1                 ; hf
    v_and_b32 v3, 31, v1                    ; t31
    v_lshrrev_b32 v9, 1, v3
    v_and_b32 v9, 7, v9                     ; g
    s_lshl_b32 s{sT}, s{sTM}, 13
    v_lshlrev_b32 v10, 7, v3
    v_add_u32 v10, s{sT}, v10
    """)
    for ks in range(4):
        a(f"v_or_b32 v11, {2*ks}, v2\nv_xor_b32 v11, v11, v9\nv_lshl_add_u32 v{vXA+ks}, v11, 4, v10")
    a(f"""
    v_bfe_u32 v10, v1, 2, 2
    v_lshlrev_b32 v10, 7, v10
    v_lshl_add_u32 v10, v2, 10, v10
    v_bfe_u32 v11, v1, 4, 1
    v_lshlrev_b32 v11, 1, v11
    v_bfe_u32 v12, v1, 1, 1
    v_or_b32 v11, v11, v12
    s_lshl_b32 s{sT}, s{sFN}, 2
    v_or_b32 v11, s{sT}, v11
    v_bfe_u32 v12, v1, 3, 1
    v_lshlrev_b32 v12, 2, v12
    v_xor_b32 v11, v11, v12
    v_lshl_add_u32 v10, v11, 4, v10
    v_and_b32 v12, 1, v1
    v_lshl_add_u32 v10, v12, 3, v10
    v_add_u32 v{vWA}, {WB}, v10
    """)
    for r in range(ACC,ACC+96): a(f"v_mov_b32 v{r}, 0")
    a(f"""
    s_mov_b32 s58, {(-(NS-1)*XS)&0xffffffff:#x}
    s_mov_b32 s59, {XS}
    s_mov_b32 s60, {(-(NS-1)*WS_)&0xffffffff:#x}
    s_mov_b32 s61, {WS_}
    """)
    def reads(s, ks):
        L=[]
        L.append(f"ds_read_b128 {vr(xf(s,0),4)}, v{vXA+ks}")
        L.append(f"ds_read_b64_tr_b16 {vr(wf(s,0),2)}, v{vWA} offset:{ks*2048}")
        L.append(f"ds_read_b64_tr_b16 {vr(wf(s,0)+2,2)}, v{vWA} offset:{ks*2048+512}")
        L.append(f"ds_read_b128 {vr(xf(s,1),4)}, v{vXA+ks} offset:4096")
        for sec in (1,2):
            L.append(f"ds_read_b64_tr_b16 {vr(wf(s,sec),2)}, v{vWA} offset:{sec*8192+ks*2048}")
            L.append(f"ds_read_b64_tr_b16 {vr(wf(s,sec)+2,2)}, v{vWA} offset:{sec*8192+ks*2048+512}")
        return L
    def mfmas(s, br):
        L=[]
        for sec in range(3):
            for tt in range(2):
                featrow = (sec==0) or (sec==1 and br==1)
                A_,B_ = (wf(s,sec),xf(s,tt)) if featrow else (xf(s,tt),wf(s,sec))
                if cfg.get("mf16test"):
                    o=acc(tt,sec)+8*s
                    L.append(f"v_mfma_f32_16x16x32_bf16 {vr(o,4)}, {vr(A_,4)}, {vr(B_,4)}, {vr(o,4)}\nv_mfma_f32_16x16x32_bf16 {vr(o+4,4)}, {vr(B_,4)}, {vr(A_,4)}, {vr(o+4,4)}")
                else:
                    L.append(f"v_mfma_f32_32x32x16_bf16 {vr(acc(tt,sec),16)}, {vr(A_,4)}, {vr(B_,4)}, {vr(acc(tt,sec),16)}")
        return L
    def step(s, br, rd):
        M=mfmas(s,br)
        if rd:
            a(M[0]); a(rd[0]); a(rd[1]); a(rd[2])
            a(M[1]); a(rd[3]); a(rd[4]); a(rd[5])
            a(M[2]); a(rd[6]); a(rd[7])
            a(M[3]); a(M[4]); a(M[5])
        else:
            for m in M: a(m)
    sCNT=38; sSTG=39; sDX=40; sDW=41
    for br in (0,1):
        bn="AB"[br]
        if br==0: a(f"s_cmp_eq_u32 s{sBR}, 1\ns_cbranch_scc1 {name}_cB")
        else: a.label(f"{name}_cB")
        a(f"s_mov_b32 s{sCNT}, 0\ns_mov_b32 s{sSTG}, 0\ns_waitcnt vmcnt(0)\nv_readfirstlane_b32 s{sN}, v31\ns_nop 3\ns_add_u32 s{sN}, s{sN}, 1")
        a("s_barrier")
        pf.pt("p")
        for l in reads(0,0): a(l)
        a.label(f"{name}_loop{bn}")
        for ks in range(3):
            a("s_waitcnt lgkmcnt(0)")
            step(ks&1, br, reads((ks+1)&1, ks+1))
        a(f"""
        s_add_u32 s{sSTG}, s{sSTG}, 1
        s_cmp_eq_u32 s{sSTG}, {NS}
        s_cselect_b32 s{sDX}, s58, s59
        s_cselect_b32 s{sDW}, s60, s61
        s_cselect_b32 s{sSTG}, 0, s{sSTG}
        s_waitcnt lgkmcnt(0)
        s_barrier
        """)
        if cfg.get("chunkstamps"):
            for c in range(7):
                lab=a.newlabel("cs")
                a(f"s_cmp_lg_u32 s{sCNT}, {c}\ns_cbranch_scc1 {lab}")
                pf.pt(f"c{c}")
                a.label(lab)
        for ks in range(4): a(f"v_add_u32 v{vXA+ks}, s{sDX}, v{vXA+ks}")
        a(f"v_add_u32 v{vWA}, s{sDW}, v{vWA}")
        step(1, br, reads(0,0))
        a(f"""
        s_add_u32 s{sCNT}, s{sCNT}, 1
        s_cmp_lt_u32 s{sCNT}, 7
        s_cbranch_scc1 {name}_loop{bn}
        """)
        sOFF=42; sH=43; sTB=44
        def epi_addr():
            a(f"""
            s_lshl_b32 s{sH}, s{sG}, 2
            s_lshl_b32 s{sT}, s{sFN}, 1
            s_add_u32 s{sH}, s{sH}, s{sT}
            s_lshl_b32 s{sTB}, s{sR}, 2
            s_lshl_b32 s{sT}, s{sTM}, 1
            s_add_u32 s{sTB}, s{sTB}, s{sT}
            s_lshl_b32 s{sOFF}, s{sH}, 16
            s_lshl_b32 s{sT}, s{sTB}, 10
            s_add_u32 s{sOFF}, s{sOFF}, s{sT}
            v_lshlrev_b32 v9, 4, v1
            """)
        T0=128
        if br==1 and cfg.get("lastchunk"):
            epi_addr()
            a(f"""
            s_mov_b32 s46, {f2u(CSCALE):#x}
            s_mov_b32 s47, {f2u(CSCALE):#x}
            v_bfe_u32 v10, v1, 4, 1
            v_lshlrev_b32 v10, 16, v10
            v_lshrrev_b32 v11, 5, v1
            v_lshl_add_u32 v10, v11, 8, v10
            v_and_b32 v11, 15, v1
            v_lshl_add_u32 v10, v11, 4, v10
            """)
            XL={0:[xf(0,0),xf(0,1)]}; WL={(0,sec):wf(0,sec) for sec in range(3)}
            reg=168
            for ks in range(1,4): XL[ks]=[reg,reg+4]; reg+=8
            for sec in (1,2,0):
                for ks in range(1,4): WL[(ks,sec)]=reg; reg+=4
            assert reg<=232
            q=[]; st={"done":0}
            def rx(ks):
                a(f"ds_read_b128 {vr(XL[ks][0],4)}, v{vXA+ks}"); q.append(("x",ks))
                a(f"ds_read_b128 {vr(XL[ks][1],4)}, v{vXA+ks} offset:4096"); q.append(("x",ks))
            def rw(ks,sec):
                for t in range(2):
                    a(f"ds_read_b64_tr_b16 {vr(WL[(ks,sec)]+2*t,2)}, v{vWA} offset:{sec*8192+ks*2048+t*512}"); q.append(("w",ks,sec))
            def wait_for(tags):
                idx=[i for i,x in enumerate(q) if x in tags]
                if not idx or max(idx)<st["done"]: return
                n=len(q)-1-max(idx); assert n<=15 and len(q)-st["done"]<=15,(n,len(q),st)
                a(f"s_waitcnt lgkmcnt({n})"); st["done"]=max(idx)+1
            def mm(sec,ks,tt):
                featrow = sec in (0,1)
                A_,B_ = (WL[(ks,sec)],XL[ks][tt]) if featrow else (XL[ks][tt],WL[(ks,sec)])
                a(f"v_mfma_f32_32x32x16_bf16 {vr(acc(tt,sec),16)}, {vr(A_,4)}, {vr(B_,4)}, {vr(acc(tt,sec),16)}")
            TK=128+8
            TK=148
            def kops():
                L=[]
                for tt in range(2):
                    b=acc(tt,1); tmp=TK+8*tt
                    for i in range(8): L.append(f"v_cvt_pk_bf16_f32 v{tmp+i}, v{b+2*i}, v{b+2*i+1}")
                    L.append(f"s_add_u32 s{sT}, s{sOFF}, {KF+tt*1024}\nbuffer_store_dwordx4 {vr(tmp,4)}, v9, s[{SWS}:{SWS+3}], s{sT} offen {STF}")
                    L.append(f"s_add_u32 s{sT2}, s{sOFF}, {KF+tt*1024+65536}\nbuffer_store_dwordx4 {vr(tmp+4,4)}, v9, s[{SWS}:{SWS+3}], s{sT2} offen {STF}")
                return L
            TV=232
            def vops():
                L=[]
                for tt in range(2):
                    b=acc(tt,2); tmp=[232,148][tt]
                    for i in range(8): L.append(f"v_cvt_pk_bf16_f32 v{tmp+i}, v{b+2*i}, v{b+2*i+1}")
                    L.append(f"s_add_u32 s{sT}, s{sOFF}, {VF+tt*1024}\nbuffer_store_dwordx4 {vr(tmp,4)}, v10, s[{SWS}:{SWS+3}], s{sT} offen {STF}")
                    L.append(f"buffer_store_dwordx4 {vr(tmp+4,4)}, v10, s[{SWS}:{SWS+3}], s{sT} offen offset:512 {STF}")
                return L
            a("s_waitcnt lgkmcnt(0)")
            rx(1); rw(1,1); rx(2); rw(2,1)
            mm(1,0,0); mm(1,0,1)
            rx(3); rw(3,1)
            wait_for([("x",1),("w",1,1)]); mm(1,1,0); rw(1,2); mm(1,1,1)
            wait_for([("x",2),("w",2,1)]); mm(1,2,0); rw(2,2); mm(1,2,1)
            wait_for([("x",3),("w",3,1)]); mm(1,3,0); rw(3,2); mm(1,3,1)
            mm(2,0,0); rw(1,0); mm(2,0,1); rw(2,0)
            wait_for([("w",1,2)]); mm(2,1,0); rw(3,0); mm(2,1,1)
            a("s_nop 3")
            K=kops()
            for l in K[0:5]: a(l)
            wait_for([("w",2,2)]); mm(2,2,0)
            for l in K[5:10]: a(l)
            mm(2,2,1)
            for l in K[10:15]: a(l)
            wait_for([("w",3,2)]); mm(2,3,0)
            for l in K[15:20]: a(l)
            mm(2,3,1)
            mm(0,0,0); mm(0,0,1)
            wait_for([("w",1,0)]); mm(0,1,0); mm(0,1,1)
            a("s_nop 7")
            V=vops()
            for l in V[0:5]: a(l)
            wait_for([("w",2,0)]); mm(0,2,0)
            for l in V[5:10]: a(l)
            mm(0,2,1)
            for l in V[10:15]: a(l)
            wait_for([("w",3,0)]); mm(0,3,0)
            for l in V[15:20]: a(l)
            mm(0,3,1)
            pf.pt("loop")
            a("s_nop 15")
            tmp=168
            for tt in range(2):
                b=acc(tt,0)
                for i in range(8): a(f"v_pk_mul_f32 {vr(b+2*i,2)}, {vr(b+2*i,2)}, s[46:47]")
                for i in range(8): a(f"v_cvt_pk_bf16_f32 v{tmp+i}, v{b+2*i}, v{b+2*i+1}")
                a(f"s_add_u32 s{sT}, s{sOFF}, {QF+tt*1024}")
                a(f"buffer_store_dwordx4 {vr(tmp,4)}, v9, s[{SWS}:{SWS+3}], s{sT} offen {STF}")
                a(f"s_add_u32 s{sT2}, s{sOFF}, {QF+tt*1024+65536}")
                a(f"buffer_store_dwordx4 {vr(tmp+4,4)}, v9, s[{SWS}:{SWS+3}], s{sT2} offen {STF}")
                tmp+=8
            a(f"s_branch {name}_p1done")
            continue
        for ks in range(3):
            a("s_waitcnt lgkmcnt(0)")
            step(ks&1, br, reads((ks+1)&1, ks+1))
        a("s_waitcnt lgkmcnt(0)")
        step(1, br, [])
        pf.pt("loop")
        epi_addr()
        if br==1:
            a(f"s_mov_b32 s46, {f2u(CSCALE):#x}\ns_mov_b32 s47, {f2u(CSCALE):#x}")
            a(f"""
            v_bfe_u32 v10, v1, 4, 1
            v_lshlrev_b32 v10, 16, v10
            v_lshrrev_b32 v11, 5, v1
            v_lshl_add_u32 v10, v11, 8, v10
            v_and_b32 v11, 15, v1
            v_lshl_add_u32 v10, v11, 4, v10
            s_nop 7
            """)
            tmp=T0
            for tt in range(2):
                b=acc(tt,1)
                for i in range(8): a(f"v_cvt_pk_bf16_f32 v{tmp+i}, v{b+2*i}, v{b+2*i+1}")
                a(f"s_add_u32 s{sT}, s{sOFF}, {KF+tt*1024}")
                a(f"buffer_store_dwordx4 {vr(tmp,4)}, v9, s[{SWS}:{SWS+3}], s{sT} offen {STF}")
                a(f"s_add_u32 s{sT2}, s{sOFF}, {KF+tt*1024+65536}")
                a(f"buffer_store_dwordx4 {vr(tmp+4,4)}, v9, s[{SWS}:{SWS+3}], s{sT2} offen {STF}")
                tmp+=8
            for tt in range(2):
                b=acc(tt,2)
                for i in range(8): a(f"v_cvt_pk_bf16_f32 v{tmp+i}, v{b+2*i}, v{b+2*i+1}")
                a(f"s_add_u32 s{sT}, s{sOFF}, {VF+tt*1024}")
                a(f"buffer_store_dwordx4 {vr(tmp,4)}, v10, s[{SWS}:{SWS+3}], s{sT} offen {STF}")
                a(f"buffer_store_dwordx4 {vr(tmp+4,4)}, v10, s[{SWS}:{SWS+3}], s{sT} offen offset:512 {STF}")
                tmp+=8
            for tt in range(2):
                b=acc(tt,0)
                for i in range(8): a(f"v_pk_mul_f32 {vr(b+2*i,2)}, {vr(b+2*i,2)}, s[46:47]")
                for i in range(8): a(f"v_cvt_pk_bf16_f32 v{tmp+i}, v{b+2*i}, v{b+2*i+1}")
                a(f"s_add_u32 s{sT}, s{sOFF}, {QF+tt*1024}")
                a(f"buffer_store_dwordx4 {vr(tmp,4)}, v9, s[{SWS}:{SWS+3}], s{sT} offen {STF}")
                a(f"s_add_u32 s{sT2}, s{sOFF}, {QF+tt*1024+65536}")
                a(f"buffer_store_dwordx4 {vr(tmp+4,4)}, v9, s[{SWS}:{SWS+3}], s{sT2} offen {STF}")
                tmp+=8
            a(f"s_branch {name}_p1done")
        else:
            a(f"""
            s_mov_b32 s46, {f2u(LOG2E):#x}
            s_mov_b32 s47, {f2u(LOG2E):#x}
            s_mov_b32 s48, 1.0
            s_mov_b32 s49, 1.0
            s_mov_b32 s50, {f2u(1e-6):#x}
            s_mov_b32 s51, {f2u(1e-6):#x}
            s_mov_b32 s52, 0x0000ffff
            s_mov_b32 s53, 0x0000ffff
            v_mov_b32 v20, 0x3f803f80
            v_mov_b32 v21, 0x3f803f80
            v_mov_b32 v22, 0x3f803f80
            v_mov_b32 v23, 0x3f803f80
            s_nop 4
            """)
            U=168
            def phi(b):
                for i in range(8): a(f"v_pk_mul_f32 {vr(U+2*i,2)}, {vr(b+2*i,2)}, s[46:47]")
                for i in range(16): a(f"v_exp_f32 v{U+i}, v{U+i} clamp")
                for i in range(8): a(f"v_pk_add_f32 {vr(b+2*i,2)}, {vr(b+2*i,2)}, s[48:49]")
                for i in range(16): a(f"v_max_f32 v{b+i}, v{b+i}, v{U+i}")
                for i in range(8): a(f"v_pk_add_f32 {vr(b+2*i,2)}, {vr(b+2*i,2)}, s[50:51]")
            PK=[128,136]; VV=[144,152]; D=184; D2=200
            def qpart(tt,tmp):
                b=acc(tt,0)
                phi(b)
                for i in range(8): a(f"v_cvt_pk_bf16_f32 v{tmp+i}, v{b+2*i}, v{b+2*i+1}")
                if DEF: return
                a(f"s_add_u32 s{sT}, s{sOFF}, {PQ+tt*1024}")
                a(f"buffer_store_dwordx4 {vr(tmp,4)}, v9, s[{SWS}:{SWS+3}], s{sT} offen {STF}")
                a(f"s_add_u32 s{sT2}, s{sOFF}, {PQ+tt*1024+65536}")
                a(f"buffer_store_dwordx4 {vr(tmp+4,4)}, v9, s[{SWS}:{SWS+3}], s{sT2} offen {STF}")
            QF1=cfg.get("a_qfirst",False)
            if QF1: qpart(0,216); qpart(1,224)
            for tt in range(2):
                b=acc(tt,2)
                for i in range(8): a(f"v_cvt_pk_bf16_f32 v{VV[tt]+i}, v{b+2*i}, v{b+2*i+1}")
            for tt in range(2):
                b=acc(tt,1)
                phi(b)
                for i in range(8): a(f"v_cvt_pk_bf16_f32 v{PK[tt]+i}, v{b+2*i}, v{b+2*i+1}")
                a("s_nop 1")
                for m in range(2):
                    c1 = "0" if (tt==0 and m==0) else vr(D,16)
                    c2 = "0" if (tt==0 and m==0) else vr(D2,16)
                    a(f"v_mfma_f32_32x32x16_bf16 {vr(D,16)}, {vr(PK[tt]+4*m,4)}, {vr(VV[tt]+4*m,4)}, {c1}")
                    a(f"v_mfma_f32_32x32x16_bf16 {vr(D2,16)}, {vr(PK[tt]+4*m,4)}, v[20:23], {c2}")
            def kvp_addr():
                a(f"""
                v_and_b32 v11, 31, v1
                v_lshrrev_b32 v12, 5, v1
                v_and_b32 v13, 15, v1
                v_lshlrev_b32 v13, 5, v13
                v_lshl_add_u32 v13, v12, 9, v13
                v_lshlrev_b32 v14, 5, v12
                v_add_u32 v14, 1024, v14
                v_mov_b32 v15, 0x40000000
                v_cmp_eq_u32 s[54:55], 16, v11
                v_cmp_eq_u32 s[56:57], 0, v11
                s_nop 1
                v_cndmask_b32_e64 v16, v15, v14, s[54:55]
                v_cndmask_b32_e64 v17, v15, v14, s[56:57]
                v_cndmask_b32_e64 v16, v16, v13, s[52:53]
                v_cndmask_b32_e64 v17, v13, v17, s[52:53]
                """)
            if QF1:
                kvp_addr()
                a("s_nop 1")
            else:
                a("s_nop 15")
            for r in range(8):  a(f"v_cndmask_b32_e64 v{D+r}, v{D2+r}, v{D+r}, s[52:53]")
            for r in range(8,16): a(f"v_cndmask_b32_e64 v{D+r}, v{D+r}, v{D2+r}, s[52:53]")
            EX = 0
            a(f"""
            s_lshl_b32 s{sT}, s{sFN}, 12
            s_add_u32 s{sT}, s{sT}, {EX}
            v_add_u32 v10, s{sT}, v9
            s_cmp_eq_u32 s{sTM}, 0
            s_cbranch_scc1 {name}_Ard
            """)
            for q in range(4): a(f"ds_write_b128 v10, {vr(D+4*q,4)} offset:{q*1024}")
            a(f"s_waitcnt lgkmcnt(0)")
            a.label(f"{name}_Ard")
            a("s_barrier")
            a(f"s_cmp_lg_u32 s{sTM}, 0\ns_cbranch_scc1 {name}_Aq")
            for q in range(4): a(f"ds_read_b128 {vr(D2+4*q,4)}, v10 offset:{q*1024}")
            if not QF1: kvp_addr()
            a(f"""
            s_lshl_b32 s{sT}, s{sH}, 4
            s_add_u32 s{sT}, s{sT}, s{sR}
            s_mul_i32 s{sT}, s{sT}, 1088
            s_add_u32 s{sT}, s{sT}, {KVP}
            s_add_u32 s{sT2}, s{sT}, {16*1088}
            s_waitcnt lgkmcnt(0)
            """)
            for i in range(8): a(f"v_pk_add_f32 {vr(D+2*i,2)}, {vr(D+2*i,2)}, {vr(D2+2*i,2)}")
            a(f"""
            buffer_store_dwordx4 {vr(D,4)}, v16, s[{SWS}:{SWS+3}], s{sT} offen {STF}
            buffer_store_dwordx4 {vr(D+4,4)}, v16, s[{SWS}:{SWS+3}], s{sT} offen offset:16 {STF}
            buffer_store_dwordx4 {vr(D+8,4)}, v17, s[{SWS}:{SWS+3}], s{sT2} offen {STF}
            buffer_store_dwordx4 {vr(D+12,4)}, v17, s[{SWS}:{SWS+3}], s{sT2} offen offset:16 {STF}
            """)
            a.label(f"{name}_Aq")
            if not QF1: qpart(0,216); qpart(1,224 if DEF else 128)
            if DEF:
                a(f"""
                s_mov_b32 s82, s{sOFF}
                s_lshl_b32 s{sT}, s{sG}, 1
                s_add_u32 s{sT}, s{sT}, s{sFN}
                s_mul_i32 s{sT}, s{sT}, {FPSTR}
                s_lshl_b32 s{sT2}, s{sR}, 1
                s_add_u32 s{sT2}, s{sT2}, s{sTM}
                s_lshl_b32 s{sT2}, s{sT2}, 7
                s_add_u32 s{sT}, s{sT}, s{sT2}
                s_add_u32 s84, s{sT}, {FP}
                s_mov_b32 s83, 1
                """)
            a(f"s_branch {name}_p1done")
    mark_loader_start=len(a.lines)
    a.label(f"{name}_loader")
    if not FAST: loader_setup()
    def issue(c, part=None):
        st=c%NS
        L=[]
        hdr=f"""
        s_add_u32 s{sT}, s{sROT}, {c}
        s_and_b32 s{sT}, s{sT}, 7
        s_lshl_b32 s{sXC}, s{sT}, 7
        s_add_u32 s{sXC}, s{sXC}, s{sXB}
        s_mul_i32 s{sWC}, s{sT}, 196608
        s_add_u32 s{sWC}, s{sWC}, s{sWBs}
        """
        for i in range(4):
            L.append(f"s_add_u32 m0, s{sL}, {XB+st*XS+i*4096}\ns_add_u32 s{sT}, s{sXC}, {i*32768}\nbuffer_load_dwordx4 v5, s[{SX}:{SX+3}], s{sT} offen {LDX} lds")
        for jj in range(2):
            for sec in range(3):
                L.append(f"s_add_u32 m0, s{sL}, {WB+st*WS_+sec*8192+jj*4096}\ns_add_u32 s{sT}, s{sWC}, {jj*4*24576+sec*1024}\nbuffer_load_dwordx4 v6, s[{SW}:{SW+3}], s{sT} offen {LDW} lds")
        lo,hi = part if part else (0,10)
        if lo==0: a(hdr)
        for l in L[lo:hi]: a(l)
    k0=cfg.get("pro_k",5)
    issue(0)
    if FAST: nonce_load()
    issue(1,(0,k0))
    a(f"s_waitcnt vmcnt({k0})\nv_readfirstlane_b32 s{sN}, v31\ns_nop 3\ns_add_u32 s{sN}, s{sN}, 1\ns_barrier")
    if k0<10: issue(1,(k0,10))
    issue(2)
    for c in range(7):
        issued=min(8,c+NS)
        rem=10*(issued-(c+2))
        if c==6: rem=16 if P3V==1 else 17
        a(f"s_waitcnt vmcnt({rem})\ns_barrier")
        if c+NS<8: issue(c+NS)
        if c==5:
            a(f"""
            s_cmp_eq_u32 s{sP3BR}, 0
            s_cselect_b32 s28, s{sAWO}, s{sBWO}
            s_cselect_b32 s29, s{sAWO+1}, s{sBWO+1}
            s_mov_b32 s30, 0x80000
            s_mov_b32 s31, 0x20000
            s_lshl_b32 s{sXC}, s{sP3NS}, {7 if P3V==1 else 8}
            s_lshl_b32 s{sT}, s{sE}, 13
            s_add_u32 s{sXC}, s{sXC}, s{sT}
            """)
            if P3V==1 and cfg.get("p3rot",0):
                a(f"s_lshl_b32 s{sXC}, s{sP3NS}, 7\ns_mul_i32 s{sWC}, s{sP3NS}, {2*cfg['p3rot']}\ns_add_u32 s{sWC}, s{sWC}, s{sE}")
                for u in range(16):
                    a(f"s_add_u32 m0, s{sL}, {WOL+u*4096}")
                    a(f"s_add_u32 s{sT}, s{sWC}, {4*u}\ns_and_b32 s{sT}, s{sT}, 63\ns_lshl_b32 s{sT}, s{sT}, 13\ns_add_u32 s{sT}, s{sT}, s{sXC}")
                    a(f"buffer_load_dwordx4 v7, s[28:31], s{sT} offen lds")
            else:
              for u in range(16):
                a(f"s_add_u32 m0, s{sL}, {WOL+u*4096}")
                a(f"s_add_u32 s{sT}, s{sXC}, {u*32768+(0 if P3V==1 else 128)}")
                a(f"buffer_load_dwordx4 v7, s[28:31], s{sT} offen lds")
            if P3V==2:
                a(f"""
                v_and_b32 v8, 15, v1
                s_lshl_b32 s{sT}, s{sE}, 4
                v_add_u32 v8, s{sT}, v8
                v_lshlrev_b32 v8, 10, v8
                s_bfe_u32 s{sT}, s2, 0x30003
                s_lshl_b32 s{sT}, s{sT}, 16
                s_lshl_b32 s{sXC}, s{sP3NS}, 8
                s_add_u32 s{sT}, s{sT}, s{sXC}
                buffer_load_dword v9, v8, s[28:31], s{sT} offen
                """)
    a(f"s_cmp_eq_u32 s{sBR}, 1\ns_cbranch_scc1 {name}_p1bar\ns_barrier\ns_branch {name}_p1bar")
    if FAST:
        blk=a.lines[mark_loader_start:]
        del a.lines[mark_loader_start:]
        a.lines[mark_entry_end:mark_entry_end]=blk
    a.label(f"{name}_p1done")
    pf.pt("epi")
    a("s_waitcnt vmcnt(0)")
    a.label(f"{name}_p1bar")
    a("s_barrier")
    R=K2R
    a(f"""
    s_cmp_lg_u32 s{sWV}, 0
    s_cbranch_scc1 {name}_nf1
    s_lshl_b32 s{sT}, s{sBR}, 3
    s_add_u32 s{sT}, s{sT}, s{sG}
    s_mul_i32 s{sT}, s{sT}, {FSTR}
    s_lshl_b32 s{sT2}, s{sR}, 7
    s_add_u32 s{sT}, s{sT}, s{sT2}
    s_add_u32 s{sT}, s{sT}, {F1}
    v_mov_b32 v12, 0
    v_mov_b32 v13, s{sN}
    buffer_store_dword v13, v12, s[{SWS}:{SWS+3}], s{sT} offen sc1
    {name}_nf1:
    """)
    pf.pt("b1")
    a(f"""
    s_mov_b32 s{R.sWAVE}, s{sWV}
    s_bfe_u32 s{R.sRB}, s2, 0x30003
    s_and_b32 s{R.sH}, s2, 7
    s_lshr_b32 s{R.sT}, s2, 6
    s_lshl_b32 s{R.sT}, s{R.sT}, 3
    s_add_u32 s{R.sH}, s{R.sH}, s{R.sT}
    v_lshlrev_b32 v3, 4, v1
    s_lshl_b32 s{R.sQB}, s{R.sRB}, 3
    s_add_u32 s{R.sQB}, s{R.sQB}, s{R.sWAVE}
    s_mov_b32 s{R.SWS}, s{sWSP}
    s_mov_b32 s{R.SWS+1}, s{sWSP+1}
    s_mov_b32 s{R.SWS+2}, {WS_USED}
    s_mov_b32 s{R.SWS+3}, 0x20000
    """)
    k2_setup_consts(a,R)
    sFA=12; sNEED=14
    a(f"""
    v_lshlrev_b32 v2, 7, v1
    s_lshr_b32 s{sFA}, s{R.sH}, 2
    s_mul_i32 s{sFA}, s{sFA}, {FSTR}
    s_add_u32 s13, s{sFA}, {F1}               ; A row
    s_add_u32 s{sFA}, s{sFA}, {F1+8*FSTR}     ; B row
    """)
    if cfg.get("wavepoll"):
        a(f"""
        s_lshl_b32 s{R.sT}, s{R.sRB}, 1
        s_lshr_b32 s{R.sT2}, s{sWV}, 1
        s_add_u32 s{R.sT2}, s{R.sT2}, s{R.sT}
        s_sub_i32 s{R.sT2}, s{R.sT2}, 2
        s_max_i32 s{R.sT2}, s{R.sT2}, 0
        s_lshl_b32 s{sNEED}, 1, s{R.sT2}
        s_lshr_b32 s{R.sT2}, s{sWV}, 2
        s_add_u32 s{R.sT2}, s{R.sT2}, s{R.sT}
        s_lshl_b32 s{R.sT2}, 1, s{R.sT2}
        s_or_b32 s{sNEED}, s{sNEED}, s{R.sT2}
        s_mov_b32 s{sNEED+1}, 0
        """)
        poll(a,"pb",R.SWS,sFA,sNEED,sNEED+1,12,2,sleep=cfg.get("sleep1",4))
    else:
        a(f"""
        s_cmp_lg_u32 s{sWV}, 0
        s_cbranch_scc1 {name}_np2
        s_lshl_b32 s{R.sT}, s{R.sRB}, 1
        s_lshl_b32 s{sNEED}, 15, s{R.sT}
        s_lshr_b32 s{sNEED}, s{sNEED}, 2          ; (0b1111 << 2rb) >> 2
        s_mov_b32 s{sNEED+1}, 0
        """)
        poll(a,"pb",R.SWS,sFA,sNEED,sNEED+1,12,2,sleep=cfg.get("sleep1",4))
        a.label(f"{name}_np2")
        a("s_waitcnt lgkmcnt(0)\ns_barrier")
    pf.pt("b2")
    k2_load_b(a,R,HLD)
    if DEF:
        a(f"s_cmp_eq_u32 s83, 0\ns_cbranch_scc1 {name}_nopq")
        for tt in range(2):
            a(f"s_add_u32 s{R.sT}, s82, {PQ+tt*1024}\nbuffer_store_dwordx4 {vr(216+8*tt,4)}, v3, s[{R.SWS}:{R.SWS+3}], s{R.sT} offen {STF}")
            a(f"s_add_u32 s{R.sT2}, s82, {PQ+tt*1024+65536}\nbuffer_store_dwordx4 {vr(220+8*tt,4)}, v3, s[{R.SWS}:{R.SWS+3}], s{R.sT2} offen {STF}")
        a(f"s_waitcnt vmcnt(4)\ns_branch {name}_pqd\n{name}_nopq:\ns_waitcnt vmcnt(0)\n{name}_pqd:\ns_barrier")
    else:
        a("s_waitcnt vmcnt(0) lgkmcnt(0)\ns_barrier")
    pf.pt("kv")
    def h_pre():
        a(f"s_mov_b64 exec, 0xffff\nbuffer_load_dword v13, v2, s[{R.SWS}:{R.SWS+3}], s13 offen sc1\ns_mov_b64 exec, -1")
    def h_post0():
        pf.pt("post0")
        D=a.newlabel("pa")
        a(f"""
        s_mov_b32 s{sNEED}, 0xffff
        s_mov_b32 s{sNEED+1}, 0
        s_waitcnt vmcnt(0)
        v_cmp_eq_u32 vcc, s{sN}, v13
        s_and_b64 vcc, vcc, s[{sNEED}:{sNEED+1}]
        s_cmp_eq_u64 vcc, s[{sNEED}:{sNEED+1}]
        s_cbranch_scc1 {D}
        """)
        poll(a,"pa2",R.SWS,13,sNEED,sNEED+1,13,2)
        a.label(D)
        pf.pt("aflag")
        if DEF:
            lab=a.newlabel("pqf")
            a(f"""
            s_cmp_eq_u32 s83, 0
            s_cbranch_scc1 {lab}
            v_mov_b32 v12, 0
            v_mov_b32 v13, s{sN}
            buffer_store_dword v13, v12, s[{R.SWS}:{R.SWS+3}], s84 offen sc1
            {lab}:
            """)
        k2_load_a(a,R,HLD,name,pq=not DEF)
    def pq_addr():
        a(f"""
        s_lshr_b32 s14, s{R.sH}, 1
        s_mul_i32 s14, s14, {FPSTR}
        s_lshr_b32 s15, s{R.sQB}, 1
        s_lshl_b32 s15, s15, 7
        s_add_u32 s14, s14, s15
        s_add_u32 s16, s14, {FP}
        v_mov_b32 v12, 0
        """)
    def pq_load():
        a(f"""
        s_lshl_b32 s{R.sT}, s{R.sH}, 16
        s_lshl_b32 s{R.sT2}, s{R.sQB}, 10
        s_add_u32 s{R.sT}, s{R.sT}, s{R.sT2}
        s_add_u32 s{R.sT}, s{R.sT}, {PQ}
        buffer_load_dwordx4 {vr(R.vPQ,4)}, v3, s[{R.SWS}:{R.SWS+3}], s{R.sT} offen {HLD}
        """)
    def pq_check(first):
        D=a.newlabel("pqd")
        a("s_mov_b32 s14, 1\ns_mov_b32 s15, 0")
        if first:
            a(f"""
            s_waitcnt vmcnt(0)
            v_readfirstlane_b32 s{R.sT}, v13
            s_cmp_eq_u32 s{R.sT}, s{sN}
            s_cbranch_scc1 {D}
            """)
        poll(a,"pq2",R.SWS,16,14,15,13,12,sleep=2)
        a.label(D)
        pq_load()
    def h_probe():
        lab=a.newlabel("pr")
        a(f"s_cmp_eq_u32 s{R.sRB}, 0\ns_cbranch_scc1 {lab}")
        pq_addr()
        a(f"buffer_load_dword v13, v12, s[{R.SWS}:{R.SWS+3}], s16 offen sc1\n{lab}:")
    def h_check():
        lab=a.newlabel("ck")
        a(f"s_cmp_eq_u32 s{R.sRB}, 0\ns_cbranch_scc1 {lab}")
        pq_check(True)
        a.label(lab)
    hk={"pre":h_pre,"post0":h_post0}
    if DEF: hk[("it",cfg.get("pq_at",2)+1)]=h_probe; hk[("it",cfg.get("pq_at",2))]=h_check
    k2_attn(a,R,name,cfg,pf,hooks=hk)
    if DEF:
        lab=a.newlabel("rb0")
        a(f"s_cmp_lg_u32 s{R.sRB}, 0\ns_cbranch_scc1 {lab}")
        pq_addr(); pq_check(False)
        a.label(lab)
    a(f"""
    s_lshl_b32 s{R.sT}, s{R.sQB}, 5
    s_add_u32 s{R.sT}, s{R.sT}, s{R.sH}
    s_lshl_b32 s{R.sT}, s{R.sT}, 10
    s_add_u32 s{R.sOB}, s{R.sT}, {OF}
    s_add_u32 s{R.sT}, s{R.sOB}, {64*32*1024}
    buffer_store_dwordx4 {vr(R.TMP,4)}, v3, s[{R.SWS}:{R.SWS+3}], s{R.sT} offen {STF}
    """)
    pf.pt("att")
    a("s_waitcnt vmcnt(1)\ns_barrier")
    pf.pt("kvp")
    k2_apart(a,R,name)
    pf.pt("apart")
    a(f"buffer_store_dwordx4 {vr(R.TMP+4,4)}, v3, s[{R.SWS}:{R.SWS+3}], s{R.sOB} offen {STF}")
    a("s_waitcnt vmcnt(0)")
    pf.pt("odrain")
    a("s_barrier")
    pf.pt("b5")
    if P3V==2:
        WOL0=32768
        a(f"""
        s_cmp_lt_u32 s{sWV}, 4
        s_cbranch_scc1 {name}_wod
        v_lshrrev_b32 v4, 3, v1
        v_and_b32 v5, 7, v1
        v_bfe_u32 v6, v1, 4, 1
        v_lshlrev_b32 v6, 2, v6
        v_xor_b32 v6, v6, v5
        v_lshlrev_b32 v7, 10, v4
        v_lshl_add_u32 v7, v6, 4, v7
        s_cmp_eq_u32 s{sP3BR}, 0
        s_cselect_b32 s16, s{sAWO}, s{sBWO}
        s_cselect_b32 s17, s{sAWO+1}, s{sBWO+1}
        s_mov_b32 s18, 0x80000
        s_mov_b32 s19, 0x20000
        s_sub_u32 s29, s{sWV}, 4
        s_lshl_b32 s28, s{sP3NS}, 8
        s_lshl_b32 s{R.sT}, s29, 13
        s_add_u32 s28, s28, s{R.sT}
        s_lshl_b32 s29, s29, 10
        """)
        for u in range(16):
            a(f"s_add_u32 m0, s29, {WOL0+u*4096}\ns_add_u32 s{R.sT}, s28, {u*32768}\nbuffer_load_dwordx4 v7, s[16:19], s{R.sT} offen lds")
        a.label(f"{name}_wod")
    a(f"""
    s_cmp_lg_u32 s{sWV}, 0
    s_cbranch_scc1 {name}_nf2
    s_mul_i32 s{R.sT}, s{R.sRB}, {F2STR}
    s_lshl_b32 s{R.sT2}, s{R.sH}, 7
    s_add_u32 s{R.sT}, s{R.sT}, s{R.sT2}
    s_add_u32 s{R.sT}, s{R.sT}, {F2}
    v_mov_b32 v12, 0
    v_mov_b32 v13, s{sN}
    buffer_store_dword v13, v12, s[{R.SWS}:{R.SWS+3}], s{R.sT} offen sc1
    s_lshr_b32 s{sFA}, s{sP3T}, {2 if P3V==2 else 1}
    s_mul_i32 s{sFA}, s{sFA}, {F2STR}
    s_add_u32 s{sFA}, s{sFA}, {F2}
    s_mov_b32 s{sNEED}, -1
    s_mov_b32 s{sNEED+1}, 0
    """)
    poll(a,"p3",R.SWS,sFA,sNEED,sNEED+1,12,2,sleep=cfg.get("sleep2",4))
    a.label(f"{name}_nf2")
    if P3V==2: a("s_waitcnt vmcnt(0)")
    a("s_barrier")
    pf.pt("f2")
    if pf.on and cfg.get("pwave",0)>=4:
        pf0.flush(len(PTS),4,2,wave=cfg["pwave"])
    if P3V==2:
        gen_p3v2(a,name,cfg,R,pf,pf0,PTS,OSTF,HLD)
        return dict(name=name, grid=256, block=512, lds=163840, vgpr=248, sgpr=102)
    a(f"s_cmp_ge_u32 s{sWV}, 4\ns_cbranch_scc1 {name}_end")
    SOUT=16; sTB=27; sOB=28
    a(f"""
    s_lshl_b32 s{sTB}, s{sP3T}, 2
    s_add_u32 s{sTB}, s{sTB}, s{sWV}
    s_lshl_b32 s{sT}, s{sP3BR}, 6
    s_add_u32 s{sT}, s{sT}, s{sTB}
    s_lshl_b32 s{sOB}, s{sT}, 15
    s_add_u32 s{sOB}, s{sOB}, {OF}
    """)
    OFR=64; ACC3=32; WFR=[8,16]; vWA3=5
    DEPTH=cfg.get("p3_depth",10)
    if cfg.get("p3rot",0): a(f"s_mul_i32 s29, s{sP3NS}, {cfg['p3rot']}")
    def oload(h):
        if cfg.get("p3rot",0):
            a(f"s_add_u32 s{sT2}, s29, {h}\ns_and_b32 s{sT2}, s{sT2}, 31\ns_lshl_b32 s{sT2}, s{sT2}, 10\ns_add_u32 s{sT2}, s{sT2}, s{sOB}\nbuffer_load_dwordx4 {vr(OFR+4*h,4)}, v3, s[{R.SWS}:{R.SWS+3}], s{sT2} offen {HLD}")
        else:
            a(f"s_add_u32 s{sT2}, s{sOB}, {h*1024}\nbuffer_load_dwordx4 {vr(OFR+4*h,4)}, v3, s[{R.SWS}:{R.SWS+3}], s{sT2} offen {HLD}")
    for h in range(DEPTH): oload(h)
    a(f"""
    s_mov_b32 s{SOUT}, s{sOUT}
    s_mov_b32 s{SOUT+1}, s{sOUT+1}
    s_mov_b32 s{SOUT+2}, 0x400000
    s_mov_b32 s{SOUT+3}, 0x20000
    v_bfe_u32 v6, v1, 2, 2
    v_lshrrev_b32 v7, 5, v1
    v_lshl_add_u32 v6, v7, 2, v6
    v_lshlrev_b32 v6, 7, v6
    v_and_b32 v7, 1, v1
    v_lshlrev_b32 v7, 1, v7
    v_bfe_u32 v24, v1, 4, 1
    v_or_b32 v7, v7, v24
    v_bfe_u32 v24, v1, 3, 1
    v_lshlrev_b32 v24, 2, v24
    v_xor_b32 v7, v7, v24
    v_lshl_add_u32 v6, v7, 4, v6
    v_bfe_u32 v24, v1, 1, 1
    v_lshl_add_u32 v{vWA3}, v24, 3, v6
    v_xor_b32 v{vWA3+1}, 64, v{vWA3}
    v_add_u32 v{vWA3}, {WOL}, v{vWA3}
    v_add_u32 v{vWA3+1}, {WOL}, v{vWA3+1}
    """)
    def reads3(s,h):
        L=[]
        for nt in range(2):
            for t in range(2):
                L.append(f"ds_read_b64_tr_b16 {vr(WFR[s]+4*nt+2*t,2)}, v{vWA3+nt} offset:{h*2048+t*1024}")
        return L
    for l in reads3(0,0): a(l)
    for h in range(32):
        s=h&1
        if h==1: pf.pt("p3b0")
        nxt=reads3(s^1,h+1) if h<31 else []
        for l in nxt: a(l)
        issued=min(32,h+DEPTH)
        a(f"s_waitcnt vmcnt({issued-h-1}) lgkmcnt({len(nxt)})")
        for nt in range(2):
            c = "0" if h==0 else vr(ACC3+16*nt,16)
            a(f"v_mfma_f32_32x32x16_bf16 {vr(ACC3+16*nt,16)}, {vr(WFR[s]+4*nt,4)}, {vr(OFR+4*h,4)}, {c}")
        if h+DEPTH<32: oload(h+DEPTH)
    pf.pt("p3loop")
    a(f"""
    s_lshl_b32 s{sT}, s{sTB}, 16
    s_lshl_b32 s{sT2}, s{sP3BR}, 10
    s_add_u32 s{sT}, s{sT}, s{sT2}
    s_lshl_b32 s{sT2}, s{sP3NS}, 7
    s_add_u32 s{sT}, s{sT}, s{sT2}
    v_and_b32 v6, 31, v1
    v_lshlrev_b32 v6, 11, v6
    v_lshrrev_b32 v7, 5, v1
    v_lshl_add_u32 v6, v7, 5, v6
    s_nop 7
    """)
    if cfg.get("outT"):
        a(f"""
        s_lshl_b32 s{sT2}, s{sWV}, 12
        v_and_b32 v8, 31, v1
        v_lshlrev_b32 v8, 7, v8                    ; token*128
        v_lshrrev_b32 v9, 5, v1
        v_lshl_add_u32 v8, v9, 5, v8               ; + hf*32
        v_and_b32 v9, 7, v1
        v_lshlrev_b32 v9, 4, v9
        v_add_u32 v8, s{sT2}, v8
        """)
        for nt in range(2):
            b=ACC3+16*nt; T=16+8*nt
            for i in range(8): a(f"v_cvt_pk_bf16_f32 v{T+i}, v{b+2*i}, v{b+2*i+1}")
        for nt in range(2):
            for u in range(2):
                a(f"v_add_u32 v10, {nt*64+u*16}, v8\nv_xor_b32 v10, v10, v9\nds_write_b128 v10, {vr(16+8*nt+4*u,4)}")
        a(f"""
        v_lshrrev_b32 v11, 3, v1
        v_and_b32 v12, 7, v1                       ; chunk
        v_xor_b32 v13, v12, v11
        v_lshlrev_b32 v13, 4, v13
        v_lshl_add_u32 v13, v11, 7, v13
        v_add_u32 v13, s{sT2}, v13
        v_lshlrev_b32 v14, 11, v11
        v_lshl_add_u32 v14, v12, 4, v14
        s_waitcnt lgkmcnt(0)
        """)
        for i in range(4): a(f"ds_read_b128 {vr(32+4*i,4)}, v13 offset:{i*1024}")
        for i in range(4):
            a(f"s_waitcnt lgkmcnt({3-i})\ns_add_u32 s{sT2}, s{sT}, {i*8*2048}\nbuffer_store_dwordx4 {vr(32+4*i,4)}, v14, s[{SOUT}:{SOUT+3}], s{sT2} offen {OSTF}")
    else:
      for nt in range(2):
        b=ACC3+16*nt; T=8+8*nt
        for i in range(8): a(f"v_cvt_pk_bf16_f32 v{T+i}, v{b+2*i}, v{b+2*i+1}")
        a(f"buffer_store_dwordx4 {vr(T,4)}, v6, s[{SOUT}:{SOUT+3}], s{sT} offen offset:{nt*64} {OSTF}")
        a(f"buffer_store_dwordx4 {vr(T+4,4)}, v6, s[{SOUT}:{SOUT+3}], s{sT} offen offset:{nt*64+16} {OSTF}")
    a(f"""
    s_cmp_lg_u32 s2, 0
    s_cbranch_scc1 {name}_nn
    s_cmp_lg_u32 s{sWV}, 0
    s_cbranch_scc1 {name}_nn
    s_mov_b32 s{sT}, {NONCE}
    v_mov_b32 v12, 0
    v_mov_b32 v13, s{sN}
    buffer_store_dword v13, v12, s[{R.SWS}:{R.SWS+3}], s{sT} offen sc1
    {name}_nn:
    """)
    if pf.on:
        a("s_waitcnt vmcnt(0)"); pf.pt("end"); pf0.flush(len(PTS),4,2,wave=cfg.get("pwave",0) if cfg.get("pwave",0)<4 else 99)
    a.label(f"{name}_end")
    a("s_endpgm")
    if cfg.get("slow_ool"): a.lines+=R.deferred
    a.label(f"{name}_last")
    a("s_endpgm")
    return dict(name=name, grid=256, block=512, lds=163840, vgpr=248, sgpr=104 if False else 102)
```

```python
from asmlib import *
import math
from k1 import QF,KF,VF,PQ,OF,KVP,WS_USED,LOG2E,CSCALE
import k2
from k2 import K2R,k2_setup_consts,k2_load_b,k2_load_a,k2_attn,k2_apart

FLG=KVP+0x90000
FL=128
FSTR=16*FL+256
F1=FLG; F2=FLG+16*FSTR; F2STR=32*FL+256; NONCE=F2+8*F2STR
FP=NONCE+256; FPSTR=32*FL+256
WOL=98304
NL=163840-16

sAWO=64; sBWO=66; sOUT=68; sDBG=70; sWSP=72; sN=74; sWV=75; sP3T=76; sP3NS=77; sP3BR=78; sCNT2=79

def poll(a, name, srd, soff, need_lo, need_hi, vtmp, voff, bound=30000, sleep=4):
    L=a.newlabel(name); D=a.newlabel(name+"d")
    a(f"""
    s_mov_b32 s{sCNT2}, 0
    s_mov_b64 exec, s[{need_lo}:{need_hi}]
    {L}:
    buffer_load_dword v{vtmp}, v{voff}, s[{srd}:{srd+3}], s{soff} offen sc1
    s_waitcnt vmcnt(0)
    v_cmp_eq_u32 vcc, s{sN}, v{vtmp}
    s_cmp_eq_u64 vcc, s[{need_lo}:{need_hi}]
    s_cbranch_scc1 {D}
    s_add_u32 s{sCNT2}, s{sCNT2}, 1
    s_cmp_lt_u32 s{sCNT2}, {bound}
    s_cbranch_scc0 {D}
    s_sleep {sleep}
    s_branch {L}
    {D}:
    s_mov_b64 exec, -1
    """)

def gen_p3v2(a,name,cfg,R,pf,pf0,PTS,OSTF,HLD):
    sT=R.sT; sT2=R.sT2
    WOL0=32768; WOL1=98304
    a(f"s_cmp_ge_u32 s{sWV}, 4\ns_cbranch_scc1 {name}_p3l")
    SOUT=16; sTT=26; sNH=27
    ACC3=32; OS=[64,80]; WSET=[96,104,112]
    vWA3=5; vO=7
    a(f"""
    s_and_b32 s{sTT}, s{sWV}, 1
    s_lshr_b32 s{sNH}, s{sWV}, 1
    s_mov_b32 s{SOUT}, s{sOUT}
    s_mov_b32 s{SOUT+1}, s{sOUT+1}
    s_mov_b32 s{SOUT+2}, 0x400000
    s_mov_b32 s{SOUT+3}, 0x20000
    v_bfe_u32 v6, v1, 2, 2
    v_lshrrev_b32 v7, 5, v1
    v_lshl_add_u32 v6, v7, 2, v6
    v_lshlrev_b32 v6, 7, v6
    v_and_b32 v7, 1, v1
    v_lshlrev_b32 v7, 1, v7
    v_bfe_u32 v24, v1, 4, 1
    v_or_b32 v7, v7, v24
    v_bfe_u32 v24, v1, 3, 1
    v_lshlrev_b32 v24, 2, v24
    v_xor_b32 v7, v7, v24
    v_lshl_add_u32 v6, v7, 4, v6
    v_bfe_u32 v24, v1, 1, 1
    v_lshl_add_u32 v{vWA3}, v24, 3, v6
    v_xor_b32 v{vWA3+1}, 64, v{vWA3}
    s_lshl_b32 s{sT}, s{sNH}, 16
    s_add_u32 s{sT}, s{sT}, {WOL0}
    v_add_u32 v{vWA3}, s{sT}, v{vWA3}
    v_add_u32 v{vWA3+1}, s{sT}, v{vWA3+1}
    s_lshl_b32 s{sT}, s{sTT}, 10
    v_add_u32 v{vO}, s{sT}, v3
    """)
    q=[]
    def rd_o(e):
        for hh in range(4):
            a(f"ds_read_b128 {vr(OS[e&1]+4*hh,4)}, v{vO} offset:{(e&3)*8192+hh*2048}"); q.append(("o",e))
    def rd_w(h):
        for nt in range(2):
            for t in range(2):
                a(f"ds_read_b64_tr_b16 {vr(WSET[h%3]+4*nt+2*t,2)}, v{vWA3+nt} offset:{h*2048+t*1024}"); q.append(("w",h))
    st={"done":0}
    def wait_for(tags):
        last=max(i for i,x in enumerate(q) if x in tags)
        if last<st["done"]: return
        n=len(q)-1-last
        assert n<=15 and len(q)-st["done"]<=16, (n,len(q)-st["done"])
        a(f"s_waitcnt lgkmcnt({n})"); st["done"]=last+1
    rd_w(0); rd_w(1)
    a("s_barrier")
    pf.pt("p3b0")
    rd_o(0)
    for h in range(32):
        e=h>>2; hh=h&3
        if hh==2 and e<7:
            wait_for([("o",e)])
            a("s_barrier")
            rd_o(e+1)
        if h+2<32: rd_w(h+2)
        wait_for([("w",h),("o",e)])
        for nt in range(2):
            c = "0" if h==0 else vr(ACC3+16*nt,16)
            a(f"v_mfma_f32_32x32x16_bf16 {vr(ACC3+16*nt,16)}, {vr(WSET[h%3]+4*nt,4)}, {vr(OS[e&1]+4*hh,4)}, {c}")
    pf.pt("p3loop")
    a(f"""
    s_lshl_b32 s{sT}, s{sP3T}, 1
    s_add_u32 s{sT}, s{sT}, s{sTT}
    s_lshl_b32 s{sT}, s{sT}, 16
    s_lshl_b32 s{sT2}, s{sP3BR}, 10
    s_add_u32 s{sT}, s{sT}, s{sT2}
    s_lshl_b32 s{sT2}, s{sP3NS}, 8
    s_add_u32 s{sT}, s{sT}, s{sT2}
    s_lshl_b32 s{sT2}, s{sNH}, 7
    s_add_u32 s{sT}, s{sT}, s{sT2}
    v_and_b32 v6, 31, v1
    v_lshlrev_b32 v6, 11, v6
    v_lshrrev_b32 v7, 5, v1
    v_lshl_add_u32 v6, v7, 5, v6
    s_nop 7
    """)
    if cfg.get("outT"):
        a(f"""
        s_lshl_b32 s{sT2}, s{sWV}, 12
        v_and_b32 v8, 31, v1
        v_lshlrev_b32 v8, 7, v8                    ; token*128
        v_lshrrev_b32 v9, 5, v1
        v_lshl_add_u32 v8, v9, 5, v8               ; + hf*32
        v_and_b32 v9, 7, v1
        v_lshlrev_b32 v9, 4, v9
        v_add_u32 v8, s{sT2}, v8
        """)
        for nt in range(2):
            b=ACC3+16*nt; T=16+8*nt
            for i in range(8): a(f"v_cvt_pk_bf16_f32 v{T+i}, v{b+2*i}, v{b+2*i+1}")
        for nt in range(2):
            for u in range(2):
                a(f"v_add_u32 v10, {nt*64+u*16}, v8\nv_xor_b32 v10, v10, v9\nds_write_b128 v10, {vr(16+8*nt+4*u,4)}")
        a(f"""
        v_lshrrev_b32 v11, 3, v1
        v_and_b32 v12, 7, v1                       ; chunk
        v_xor_b32 v13, v12, v11
        v_lshlrev_b32 v13, 4, v13
        v_lshl_add_u32 v13, v11, 7, v13
        v_add_u32 v13, s{sT2}, v13
        v_lshlrev_b32 v14, 11, v11
        v_lshl_add_u32 v14, v12, 4, v14
        s_waitcnt lgkmcnt(0)
        """)
        for i in range(4): a(f"ds_read_b128 {vr(32+4*i,4)}, v13 offset:{i*1024}")
        for i in range(4):
            a(f"s_waitcnt lgkmcnt({3-i})\ns_add_u32 s{sT2}, s{sT}, {i*8*2048}\nbuffer_store_dwordx4 {vr(32+4*i,4)}, v14, s[{SOUT}:{SOUT+3}], s{sT2} offen {OSTF}")
    else:
      for nt in range(2):
        b=ACC3+16*nt; T=8+8*nt
        for i in range(8): a(f"v_cvt_pk_bf16_f32 v{T+i}, v{b+2*i}, v{b+2*i+1}")
        a(f"buffer_store_dwordx4 {vr(T,4)}, v6, s[{SOUT}:{SOUT+3}], s{sT} offen offset:{nt*64} {OSTF}")
        a(f"buffer_store_dwordx4 {vr(T+4,4)}, v6, s[{SOUT}:{SOUT+3}], s{sT} offen offset:{nt*64+16} {OSTF}")
    a(f"""
    s_cmp_lg_u32 s2, 0
    s_cbranch_scc1 {name}_nn
    s_cmp_lg_u32 s{sWV}, 0
    s_cbranch_scc1 {name}_nn
    s_mov_b32 s{sT}, {NONCE}
    v_mov_b32 v12, 0
    v_mov_b32 v13, s{sN}
    buffer_store_dword v13, v12, s[{R.SWS}:{R.SWS+3}], s{sT} offen sc1
    {name}_nn:
    """)
    if pf.on:
        a("s_waitcnt vmcnt(0)"); pf.pt("end"); pf0.flush(len(PTS),4,2,wave=cfg.get("pwave",0) if cfg.get("pwave",0)<4 else 99)
    a("s_endpgm")
    a.label(f"{name}_p3l")
    sE=26; sB=27; sL=28
    a(f"""
    s_sub_u32 s{sE}, s{sWV}, 4
    s_lshl_b32 s{sT}, s{sP3BR}, 6
    s_lshl_b32 s{sT2}, s{sP3T}, 1
    s_add_u32 s{sT}, s{sT}, s{sT2}
    s_lshl_b32 s{sB}, s{sT}, 15
    s_lshl_b32 s{sT}, s{sE}, 10
    s_add_u32 s{sB}, s{sB}, s{sT}
    s_add_u32 s{sB}, s{sB}, {OF}
    s_lshl_b32 s{sL}, s{sE}, 11
    """)
    OR=32; LA=cfg.get("p3_la",5); mode=cfg.get("p3_mode","reg")
    items=[(e,tt) for e in range(8) for tt in range(2)]
    def ld(k):
        e,tt=items[k]
        if cfg.get("diag_p3noload"): return
        if mode=="reg":
            a(f"s_add_u32 s{sT}, s{sB}, {e*4096+tt*32768}\nbuffer_load_dwordx4 {vr(OR+4*k,4)}, v3, s[{R.SWS}:{R.SWS+3}], s{sT} offen {HLD}")
        else:
            a(f"s_add_u32 m0, s{sL}, {(e&3)*8192+tt*1024}\ns_add_u32 s{sT}, s{sB}, {e*4096+tt*32768}\nbuffer_load_dwordx4 v3, s[{R.SWS}:{R.SWS+3}], s{sT} offen {HLD} lds")
    issued=0
    if mode=="dma": LA=min(LA,6)
    while issued<LA: ld(issued); issued+=1
    a(f"v_add_u32 v4, s{sL}, v3")
    for e in range(8):
        need=2*e+2
        a(f"s_waitcnt vmcnt({max(issued-need,0)})")
        if mode=="reg":
            for tt in range(2):
                a(f"ds_write_b128 v4, {vr(OR+4*(2*e+tt),4)} offset:{(e&3)*8192+tt*1024}")
            while issued<min(16,need+LA): ld(issued); issued+=1
            a("s_waitcnt lgkmcnt(0)\ns_barrier")
        else:
            a("s_barrier")
            while issued<min(16,need+LA,2*(e+4)): ld(issued); issued+=1
    a.label(f"{name}_end")
    a.label(f"{name}_last")
    a("s_endpgm")

def gen_fused(a, name, cfg):
    NS=3
    P3V=cfg.get("p3v",1)
    DEF=cfg.get("defer_pq",False)
    LDX=cfg.get("ldx",""); LDW=cfg.get("ldw","")
    STF="sc1"; HLD="sc1"
    OSTF=cfg.get("out_stflags","")
    XB=0; XS=16384; WB=NS*XS; WS_=24576
    a.raw(f".globl {name}\n.p2align 8\n.type {name},@function\n{name}:")
    sWAVE=20; sBR=21; sR=22; sG=23; sT=24; sT2=25
    SX=8; SW=12; SWS=16
    PTS=cfg.get("pts",["entry","p","loop","epi","b1","b2","kv","att","f2","end"])
    TIMER=cfg.get("timer","s_memrealtime")
    class PF0:
        on=cfg.get("prof",False)
        def flush(self,n,srd,vt,wave=0):
            if not self.on: return
            lab=a.newlabel("pf")
            a(f"""
            s_cmp_lg_u32 s{sWV}, {wave}
            s_cbranch_scc1 {lab}
            s_mov_b32 s4, s{sWSP}
            s_mov_b32 s5, s{sWSP+1}
            s_mov_b32 s6, {16<<20}
            s_mov_b32 s7, 0x20000
            s_lshl_b32 s24, s2, 6
            s_add_u32 s24, s24, {14<<20}
            v_lshlrev_b32 v2, 2, v1
            s_mov_b64 exec, 0xffff
            buffer_store_dword v247, v2, s[4:7], s24 offen
            s_mov_b64 exec, -1
            {lab}:
            """)
    pf0=PF0()
    class PF:
        on=pf0.on
        def pt(self,n):
            if self.on and n in PTS:
                a(f"{TIMER} s[100:101]\ns_waitcnt lgkmcnt(0)\nv_writelane_b32 v247, s100, {PTS.index(n)}")
    pf=PF()
    pf.pt("entry")
    a(f"""
    s_cmp_ge_u32 s2, 256
    s_cbranch_scc1 {name}_end
    """)
    if cfg.get("codepf_top"):
        nseg=cfg["codepf_top"]; lab=a.newlabel("cpt"); nwg=cfg.get("codepf_wgs",8)
        a(f"""
        s_load_dwordx4 s[28:31], s[0:1], 0
        s_load_dwordx4 s[32:35], s[0:1], 24
        s_load_dwordx2 s[{sAWO}:{sAWO+1}], s[0:1], 16
        s_load_dwordx2 s[{sBWO}:{sBWO+1}], s[0:1], 40
        s_load_dwordx4 s[{sOUT}:{sOUT+3}], s[0:1], 48
        s_load_dwordx2 s[{sWSP}:{sWSP+1}], s[0:1], 64
        s_cmp_ge_u32 s2, {nwg}
        s_cbranch_scc1 {lab}
        v_lshrrev_b32 v2, 6, v0
        v_and_b32 v1, 63, v0
        v_subrev_u32 v2, 1, v2                     ; wave - 1
        v_cmp_gt_u32 vcc, {nseg}, v2
        s_getpc_b64 s[4:5]
        {lab}_pc:
        s_sub_u32 s4, s4, {lab}_pc-{name}
        s_subb_u32 s5, s5, 0
        v_lshlrev_b32 v12, 13, v2
        v_lshl_add_u32 v12, v1, 7, v12
        v_min_u32 v12, {name}_last-{name}, v12
        v_mov_b32 v13, s5
        s_and_saveexec_b64 s[6:7], vcc
        s_cbranch_execz {lab}_x
        v_add_co_u32 v12, vcc, s4, v12
        s_nop 1
        v_addc_co_u32 v13, vcc, 0, v13, vcc
        global_load_dword v14, v[12:13], off
        {lab}_x:
        s_mov_b64 exec, s[6:7]
        {lab}:
        """)
    if not cfg.get("codepf_top"):
        a(f"""
        s_load_dwordx4 s[28:31], s[0:1], 0
        s_load_dwordx4 s[32:35], s[0:1], 24
        s_load_dwordx2 s[{sAWO}:{sAWO+1}], s[0:1], 16
        s_load_dwordx2 s[{sBWO}:{sBWO+1}], s[0:1], 40
        s_load_dwordx4 s[{sOUT}:{sOUT+3}], s[0:1], 48
        s_load_dwordx2 s[{sWSP}:{sWSP+1}], s[0:1], 64
        """)
    a(f"""
    v_lshrrev_b32 v2, 6, v0
    v_and_b32 v1, 63, v0
    s_and_b32 s{sT}, s2, 7
    v_readfirstlane_b32 s{sWAVE}, v2
    s_lshr_b32 s{sT2}, s2, 3
    s_and_b32 s{sBR}, s{sT}, 1
    s_lshr_b32 s{sT}, s{sT}, 1
    s_mov_b32 s{sP3BR}, s{sBR}
    s_lshl_b32 s{sP3T}, s{sT}, {3 if P3V==2 else 2}
    s_and_b32 s{sP3NS}, s{sT2}, {7 if P3V==2 else 3}
    s_add_u32 s{sP3T}, s{sP3T}, s{sP3NS}
    s_lshr_b32 s{sP3NS}, s{sT2}, {3 if P3V==2 else 2}
    s_and_b32 s{sR}, s{sT}, 1
    s_lshl_b32 s{sR}, s{sR}, 3
    s_lshr_b32 s{sG}, s{sT}, 1
    s_lshl_b32 s{sG}, s{sG}, 2
    s_and_b32 s{sT}, s{sT2}, 7
    s_add_u32 s{sR}, s{sR}, s{sT}
    s_lshr_b32 s{sT}, s{sT2}, 3
    s_add_u32 s{sG}, s{sG}, s{sT}
    s_mov_b32 s{sWV}, s{sWAVE}
    s_mov_b32 s83, 0
    """)
    FAST=cfg.get("faststart",False)
    sE=26; sXB=27; sWBs=38; sL=39; sROT=40; sXC=41; sWC=42
    def loader_setup():
        a(f"""
        s_sub_u32 s{sE}, s{sWAVE}, 4
        v_lshrrev_b32 v2, 3, v1
        v_and_b32 v3, 7, v1
        v_lshrrev_b32 v4, 1, v2
        s_and_b32 s{sT}, s{sE}, 1
        s_lshl_b32 s{sT}, s{sT}, 2
        v_or_b32 v4, s{sT}, v4
        v_xor_b32 v4, v4, v3
        v_lshlrev_b32 v5, 10, v2
        v_lshl_add_u32 v5, v4, 4, v5            ; x voffset
        v_bfe_u32 v4, v1, 4, 1
        v_lshlrev_b32 v4, 2, v4
        v_xor_b32 v4, v4, v3
        v_mul_u32_u24 v6, 3072, v2
        v_lshl_add_u32 v6, v4, 4, v6            ; w voffset
        v_lshlrev_b32 v7, 10, v2
        v_lshl_add_u32 v7, v4, 4, v7
        s_lshl_b32 s{sXB}, s{sR}, 17
        s_lshl_b32 s{sT}, s{sE}, 13
        s_add_u32 s{sXB}, s{sXB}, s{sT}
        s_lshl_b32 s{sWBs}, s{sG}, 7
        s_mul_i32 s{sT}, s{sE}, 24576
        s_add_u32 s{sWBs}, s{sWBs}, s{sT}
        s_lshl_b32 s{sL}, s{sE}, 10
        s_mov_b32 s{sROT}, 0
        """)
        for (src,sh,mask,mul) in cfg.get("k1_rot",[["R",0,3,2],["G",0,3,1]]):
            r={"R":sR,"G":sG}[src]
            a(f"s_lshr_b32 s{sT}, s{r}, {sh}\ns_and_b32 s{sT}, s{sT}, {mask}\ns_mul_i32 s{sT}, s{sT}, {mul}\ns_add_u32 s{sROT}, s{sROT}, s{sT}")
    if FAST: loader_setup()
    a(f"""
    s_mov_b32 s{SX+2}, 0x200000
    s_mov_b32 s{SX+3}, 0x20000
    s_mov_b32 s{SW+2}, 0x180000
    s_mov_b32 s{SW+3}, 0x20000
    s_mov_b32 s{SWS+2}, {WS_USED}
    s_mov_b32 s{SWS+3}, 0x20000
    s_cmp_eq_u32 s{sBR}, 0
    s_waitcnt lgkmcnt(0)
    s_cselect_b32 s{SX}, s28, s32
    s_cselect_b32 s{SX+1}, s29, s33
    s_cselect_b32 s{SW}, s30, s34
    s_cselect_b32 s{SW+1}, s31, s35
    s_mov_b32 s{SWS}, s{sWSP}
    s_mov_b32 s{SWS+1}, s{sWSP+1}
    """)
    def nonce_load():
        a(f"""
        s_mov_b32 s4, {NONCE}
        v_mov_b32 v30, 0
        buffer_load_dword v31, v30, s[{SWS}:{SWS+3}], s4 offen sc1
        """)
    if FAST:
        a(f"s_cmp_lt_u32 s{sWAVE}, 4\ns_cbranch_scc1 {name}_compute")
        mark_entry_end=len(a.lines)
        a.label(f"{name}_compute")
        nonce_load()
    else:
        nonce_load()
        a(f"s_cmp_ge_u32 s{sWAVE}, 4\ns_cbranch_scc1 {name}_loader")
    sTM=26; sFN=27
    vXA=4; vWA=8
    ACC=32
    def acc(tt,sec): return ACC+(tt*3+sec)*16
    FR=[128,148]
    def xf(s,tt): return FR[s]+4*tt
    def wf(s,sec): return FR[s]+8+4*sec
    if cfg.get("pretouch"):
        lab=a.newlabel("ptc")
        a(f"""
        s_cmp_lg_u32 s{sWAVE}, 2
        s_cbranch_scc1 {lab}
        v_and_b32 v12, 7, v1
        v_lshlrev_b32 v12, 21, v12
        v_add_u32 v12, {0x1ffc00 if False else 0x100000}, v12
        v_min_u32 v12, {WS_USED-256}, v12
        buffer_load_dword v14, v12, s[{SWS}:{SWS+3}], 0 offen
        s_mov_b32 s44, s{sOUT}
        s_mov_b32 s45, s{sOUT+1}
        s_mov_b32 s46, 0x400000
        s_mov_b32 s47, 0x20000
        v_and_b32 v12, 1, v1
        v_lshlrev_b32 v12, 21, v12
        buffer_load_dword v15, v12, s[44:47], 0 offen
        s_cmp_eq_u32 s{sP3BR}, 0
        s_cselect_b32 s44, s{sAWO}, s{sBWO}
        s_cselect_b32 s45, s{sAWO+1}, s{sBWO+1}
        s_mov_b32 s46, 0x80000
        v_mov_b32 v12, 0
        buffer_load_dword v16, v12, s[44:47], 0 offen
        {lab}:
        """)
    if cfg.get("codepf"):
        nseg=cfg["codepf"]
        lab=a.newlabel("cpf")
        a(f"""
        s_cmp_lg_u32 s{sWAVE}, 1
        s_cbranch_scc1 {lab}
        s_lshr_b32 s4, s2, 3
        s_cmp_ge_u32 s4, {nseg}
        s_cbranch_scc1 {lab}
        s_lshl_b32 s6, s4, 13
        s_getpc_b64 s[4:5]
        {lab}_pc:
        s_sub_u32 s4, s4, {lab}_pc-{name}
        s_subb_u32 s5, s5, 0
        v_lshlrev_b32 v12, 7, v1
        v_add_u32 v12, s6, v12
        v_min_u32 v12, {name}_last-{name}, v12
        v_mov_b32 v13, s5
        v_add_co_u32 v12, vcc, s4, v12
        s_nop 1
        v_addc_co_u32 v13, vcc, 0, v13, vcc
        global_load_dword v14, v[12:13], off
        {lab}:
        """)
    a(f"""
    s_and_b32 s{sTM}, s{sWAVE}, 1
    s_lshr_b32 s{sFN}, s{sWAVE}, 1
    v_lshrrev_b32 v2, 5, v1                 ; hf
    v_and_b32 v3, 31, v1                    ; t31
    v_lshrrev_b32 v9, 1, v3
    v_and_b32 v9, 7, v9                     ; g
    s_lshl_b32 s{sT}, s{sTM}, 13
    v_lshlrev_b32 v10, 7, v3
    v_add_u32 v10, s{sT}, v10
    """)
    for ks in range(4):
        a(f"v_or_b32 v11, {2*ks}, v2\nv_xor_b32 v11, v11, v9\nv_lshl_add_u32 v{vXA+ks}, v11, 4, v10")
    a(f"""
    v_bfe_u32 v10, v1, 2, 2
    v_lshlrev_b32 v10, 7, v10
    v_lshl_add_u32 v10, v2, 10, v10
    v_bfe_u32 v11, v1, 4, 1
    v_lshlrev_b32 v11, 1, v11
    v_bfe_u32 v12, v1, 1, 1
    v_or_b32 v11, v11, v12
    s_lshl_b32 s{sT}, s{sFN}, 2
    v_or_b32 v11, s{sT}, v11
    v_bfe_u32 v12, v1, 3, 1
    v_lshlrev_b32 v12, 2, v12
    v_xor_b32 v11, v11, v12
    v_lshl_add_u32 v10, v11, 4, v10
    v_and_b32 v12, 1, v1
    v_lshl_add_u32 v10, v12, 3, v10
    v_add_u32 v{vWA}, {WB}, v10
    """)
    for r in range(ACC,ACC+96): a(f"v_mov_b32 v{r}, 0")
    a(f"""
    s_mov_b32 s58, {(-(NS-1)*XS)&0xffffffff:#x}
    s_mov_b32 s59, {XS}
    s_mov_b32 s60, {(-(NS-1)*WS_)&0xffffffff:#x}
    s_mov_b32 s61, {WS_}
    """)
    def reads(s, ks):
        L=[]
        L.append(f"ds_read_b128 {vr(xf(s,0),4)}, v{vXA+ks}")
        L.append(f"ds_read_b64_tr_b16 {vr(wf(s,0),2)}, v{vWA} offset:{ks*2048}")
        L.append(f"ds_read_b64_tr_b16 {vr(wf(s,0)+2,2)}, v{vWA} offset:{ks*2048+512}")
        L.append(f"ds_read_b128 {vr(xf(s,1),4)}, v{vXA+ks} offset:4096")
        for sec in (1,2):
            L.append(f"ds_read_b64_tr_b16 {vr(wf(s,sec),2)}, v{vWA} offset:{sec*8192+ks*2048}")
            L.append(f"ds_read_b64_tr_b16 {vr(wf(s,sec)+2,2)}, v{vWA} offset:{sec*8192+ks*2048+512}")
        return L
    def mfmas(s, br):
        L=[]
        order=[(sec,tt) for sec in range(3) for tt in range(2)]
        if cfg.get("mf_order")=="x": order=[(sec,tt) for tt in range(2) for sec in range(3)]
        for sec,tt in order:
            for _one in (0,):
                featrow = (sec==0) or (sec==1 and br==1)
                A_,B_ = (wf(s,sec),xf(s,tt)) if featrow else (xf(s,tt),wf(s,sec))
                if cfg.get("mf16test"):
                    o=acc(tt,sec)+8*s
                    L.append(f"v_mfma_f32_16x16x32_bf16 {vr(o,4)}, {vr(A_,4)}, {vr(B_,4)}, {vr(o,4)}\nv_mfma_f32_16x16x32_bf16 {vr(o+4,4)}, {vr(B_,4)}, {vr(A_,4)}, {vr(o+4,4)}")
                else:
                    L.append(f"v_mfma_f32_32x32x16_bf16 {vr(acc(tt,sec),16)}, {vr(A_,4)}, {vr(B_,4)}, {vr(acc(tt,sec),16)}")
        return L
    def step(s, br, rd):
        M=mfmas(s,br)
        if rd:
            a(M[0]); a(rd[0]); a(rd[1]); a(rd[2])
            a(M[1]); a(rd[3]); a(rd[4]); a(rd[5])
            a(M[2]); a(rd[6]); a(rd[7])
            a(M[3]); a(M[4]); a(M[5])
        else:
            for m in M: a(m)
    sCNT=38; sSTG=39; sDX=40; sDW=41
    for br in (0,1):
        bn="AB"[br]
        if br==0: a(f"s_cmp_eq_u32 s{sBR}, 1\ns_cbranch_scc1 {name}_cB")
        else: a.label(f"{name}_cB")
        a(f"s_mov_b32 s{sCNT}, 0\ns_mov_b32 s{sSTG}, 0\ns_waitcnt vmcnt(0)\nv_readfirstlane_b32 s{sN}, v31\ns_nop 3\ns_add_u32 s{sN}, s{sN}, 1")
        a("s_barrier")
        pf.pt("p")
        for l in reads(0,0): a(l)
        a.label(f"{name}_loop{bn}")
        for ks in range(3):
            a("s_waitcnt lgkmcnt(0)")
            step(ks&1, br, reads((ks+1)&1, ks+1))
        a(f"""
        s_add_u32 s{sSTG}, s{sSTG}, 1
        s_cmp_eq_u32 s{sSTG}, {NS}
        s_cselect_b32 s{sDX}, s58, s59
        s_cselect_b32 s{sDW}, s60, s61
        s_cselect_b32 s{sSTG}, 0, s{sSTG}
        s_waitcnt lgkmcnt(0)
        s_barrier
        """)
        if cfg.get("chunkstamps"):
            for c in range(7):
                lab=a.newlabel("cs")
                a(f"s_cmp_lg_u32 s{sCNT}, {c}\ns_cbranch_scc1 {lab}")
                pf.pt(f"c{c}")
                a.label(lab)
        for ks in range(4): a(f"v_add_u32 v{vXA+ks}, s{sDX}, v{vXA+ks}")
        a(f"v_add_u32 v{vWA}, s{sDW}, v{vWA}")
        step(1, br, reads(0,0))
        a(f"""
        s_add_u32 s{sCNT}, s{sCNT}, 1
        s_cmp_lt_u32 s{sCNT}, 7
        s_cbranch_scc1 {name}_loop{bn}
        """)
        sOFF=42; sH=43; sTB=44
        def epi_addr():
            a(f"""
            s_lshl_b32 s{sH}, s{sG}, 2
            s_lshl_b32 s{sT}, s{sFN}, 1
            s_add_u32 s{sH}, s{sH}, s{sT}
            s_lshl_b32 s{sTB}, s{sR}, 2
            s_lshl_b32 s{sT}, s{sTM}, 1
            s_add_u32 s{sTB}, s{sTB}, s{sT}
            s_lshl_b32 s{sOFF}, s{sH}, 16
            s_lshl_b32 s{sT}, s{sTB}, 10
            s_add_u32 s{sOFF}, s{sOFF}, s{sT}
            v_lshlrev_b32 v9, 4, v1
            """)
        T0=128
        if br==1 and cfg.get("lastchunk"):
            epi_addr()
            a(f"""
            s_mov_b32 s46, {f2u(CSCALE):#x}
            s_mov_b32 s47, {f2u(CSCALE):#x}
            v_bfe_u32 v10, v1, 4, 1
            v_lshlrev_b32 v10, 16, v10
            v_lshrrev_b32 v11, 5, v1
            v_lshl_add_u32 v10, v11, 8, v10
            v_and_b32 v11, 15, v1
            v_lshl_add_u32 v10, v11, 4, v10
            """)
            XL={0:[xf(0,0),xf(0,1)]}; WL={(0,sec):wf(0,sec) for sec in range(3)}
            reg=168
            for ks in range(1,4): XL[ks]=[reg,reg+4]; reg+=8
            for sec in (1,2,0):
                for ks in range(1,4): WL[(ks,sec)]=reg; reg+=4
            assert reg<=232
            q=[]; st={"done":0}
            def rx(ks):
                a(f"ds_read_b128 {vr(XL[ks][0],4)}, v{vXA+ks}"); q.append(("x",ks))
                a(f"ds_read_b128 {vr(XL[ks][1],4)}, v{vXA+ks} offset:4096"); q.append(("x",ks))
            def rw(ks,sec):
                for t in range(2):
                    a(f"ds_read_b64_tr_b16 {vr(WL[(ks,sec)]+2*t,2)}, v{vWA} offset:{sec*8192+ks*2048+t*512}"); q.append(("w",ks,sec))
            def wait_for(tags):
                idx=[i for i,x in enumerate(q) if x in tags]
                if not idx or max(idx)<st["done"]: return
                n=len(q)-1-max(idx); assert n<=15 and len(q)-st["done"]<=15,(n,len(q),st)
                a(f"s_waitcnt lgkmcnt({n})"); st["done"]=max(idx)+1
            def mm(sec,ks,tt):
                featrow = sec in (0,1)
                A_,B_ = (WL[(ks,sec)],XL[ks][tt]) if featrow else (XL[ks][tt],WL[(ks,sec)])
                a(f"v_mfma_f32_32x32x16_bf16 {vr(acc(tt,sec),16)}, {vr(A_,4)}, {vr(B_,4)}, {vr(acc(tt,sec),16)}")
            TK=128+8
            TK=148
            def kops():
                L=[]
                for tt in range(2):
                    b=acc(tt,1); tmp=TK+8*tt
                    for i in range(8): L.append(f"v_cvt_pk_bf16_f32 v{tmp+i}, v{b+2*i}, v{b+2*i+1}")
                    L.append(f"s_add_u32 s{sT}, s{sOFF}, {KF+tt*1024}\nbuffer_store_dwordx4 {vr(tmp,4)}, v9, s[{SWS}:{SWS+3}], s{sT} offen {STF}")
                    L.append(f"s_add_u32 s{sT2}, s{sOFF}, {KF+tt*1024+65536}\nbuffer_store_dwordx4 {vr(tmp+4,4)}, v9, s[{SWS}:{SWS+3}], s{sT2} offen {STF}")
                return L
            TV=232
            def vops():
                L=[]
                for tt in range(2):
                    b=acc(tt,2); tmp=[232,148][tt]
                    for i in range(8): L.append(f"v_cvt_pk_bf16_f32 v{tmp+i}, v{b+2*i}, v{b+2*i+1}")
                    L.append(f"s_add_u32 s{sT}, s{sOFF}, {VF+tt*1024}\nbuffer_store_dwordx4 {vr(tmp,4)}, v10, s[{SWS}:{SWS+3}], s{sT} offen {STF}")
                    L.append(f"buffer_store_dwordx4 {vr(tmp+4,4)}, v10, s[{SWS}:{SWS+3}], s{sT} offen offset:512 {STF}")
                return L
            a("s_waitcnt lgkmcnt(0)")
            rx(1); rw(1,1); rx(2); rw(2,1)
            mm(1,0,0); mm(1,0,1)
            rx(3); rw(3,1)
            wait_for([("x",1),("w",1,1)]); mm(1,1,0); rw(1,2); mm(1,1,1)
            wait_for([("x",2),("w",2,1)]); mm(1,2,0); rw(2,2); mm(1,2,1)
            wait_for([("x",3),("w",3,1)]); mm(1,3,0); rw(3,2); mm(1,3,1)
            mm(2,0,0); rw(1,0); mm(2,0,1); rw(2,0)
            wait_for([("w",1,2)]); mm(2,1,0); rw(3,0); mm(2,1,1)
            a("s_nop 3")
            K=kops()
            for l in K[0:5]: a(l)
            wait_for([("w",2,2)]); mm(2,2,0)
            for l in K[5:10]: a(l)
            mm(2,2,1)
            for l in K[10:15]: a(l)
            wait_for([("w",3,2)]); mm(2,3,0)
            for l in K[15:20]: a(l)
            mm(2,3,1)
            mm(0,0,0); mm(0,0,1)
            wait_for([("w",1,0)]); mm(0,1,0); mm(0,1,1)
            a("s_nop 7")
            V=vops()
            for l in V[0:5]: a(l)
            wait_for([("w",2,0)]); mm(0,2,0)
            for l in V[5:10]: a(l)
            mm(0,2,1)
            for l in V[10:15]: a(l)
            wait_for([("w",3,0)]); mm(0,3,0)
            for l in V[15:20]: a(l)
            mm(0,3,1)
            pf.pt("loop")
            a("s_nop 15")
            tmp=168
            for tt in range(2):
                b=acc(tt,0)
                for i in range(8): a(f"v_pk_mul_f32 {vr(b+2*i,2)}, {vr(b+2*i,2)}, s[46:47]")
                for i in range(8): a(f"v_cvt_pk_bf16_f32 v{tmp+i}, v{b+2*i}, v{b+2*i+1}")
                a(f"s_add_u32 s{sT}, s{sOFF}, {QF+tt*1024}")
                a(f"buffer_store_dwordx4 {vr(tmp,4)}, v9, s[{SWS}:{SWS+3}], s{sT} offen {STF}")
                a(f"s_add_u32 s{sT2}, s{sOFF}, {QF+tt*1024+65536}")
                a(f"buffer_store_dwordx4 {vr(tmp+4,4)}, v9, s[{SWS}:{SWS+3}], s{sT2} offen {STF}")
                tmp+=8
            a(f"s_branch {name}_p1done")
            continue
        for ks in range(3):
            a("s_waitcnt lgkmcnt(0)")
            step(ks&1, br, reads((ks+1)&1, ks+1))
        a("s_waitcnt lgkmcnt(0)")
        step(1, br, [])
        pf.pt("loop")
        epi_addr()
        if br==1:
            a(f"s_mov_b32 s46, {f2u(CSCALE):#x}\ns_mov_b32 s47, {f2u(CSCALE):#x}")
            a(f"""
            v_bfe_u32 v10, v1, 4, 1
            v_lshlrev_b32 v10, 16, v10
            v_lshrrev_b32 v11, 5, v1
            v_lshl_add_u32 v10, v11, 8, v10
            v_and_b32 v11, 15, v1
            v_lshl_add_u32 v10, v11, 4, v10
            s_nop 7
            """)
            tmp=T0
            for tt in range(2):
                b=acc(tt,1)
                for i in range(8): a(f"v_cvt_pk_bf16_f32 v{tmp+i}, v{b+2*i}, v{b+2*i+1}")
                a(f"s_add_u32 s{sT}, s{sOFF}, {KF+tt*1024}")
                a(f"buffer_store_dwordx4 {vr(tmp,4)}, v9, s[{SWS}:{SWS+3}], s{sT} offen {STF}")
                a(f"s_add_u32 s{sT2}, s{sOFF}, {KF+tt*1024+65536}")
                a(f"buffer_store_dwordx4 {vr(tmp+4,4)}, v9, s[{SWS}:{SWS+3}], s{sT2} offen {STF}")
                tmp+=8
            for tt in range(2):
                b=acc(tt,2)
                for i in range(8): a(f"v_cvt_pk_bf16_f32 v{tmp+i}, v{b+2*i}, v{b+2*i+1}")
                a(f"s_add_u32 s{sT}, s{sOFF}, {VF+tt*1024}")
                a(f"buffer_store_dwordx4 {vr(tmp,4)}, v10, s[{SWS}:{SWS+3}], s{sT} offen {STF}")
                a(f"buffer_store_dwordx4 {vr(tmp+4,4)}, v10, s[{SWS}:{SWS+3}], s{sT} offen offset:512 {STF}")
                tmp+=8
            for tt in range(2):
                b=acc(tt,0)
                for i in range(8): a(f"v_pk_mul_f32 {vr(b+2*i,2)}, {vr(b+2*i,2)}, s[46:47]")
                for i in range(8): a(f"v_cvt_pk_bf16_f32 v{tmp+i}, v{b+2*i}, v{b+2*i+1}")
                a(f"s_add_u32 s{sT}, s{sOFF}, {QF+tt*1024}")
                a(f"buffer_store_dwordx4 {vr(tmp,4)}, v9, s[{SWS}:{SWS+3}], s{sT} offen {STF}")
                a(f"s_add_u32 s{sT2}, s{sOFF}, {QF+tt*1024+65536}")
                a(f"buffer_store_dwordx4 {vr(tmp+4,4)}, v9, s[{SWS}:{SWS+3}], s{sT2} offen {STF}")
                tmp+=8
            a(f"s_branch {name}_p1done")
        else:
            a(f"""
            s_mov_b32 s46, {f2u(LOG2E):#x}
            s_mov_b32 s47, {f2u(LOG2E):#x}
            s_mov_b32 s48, 1.0
            s_mov_b32 s49, 1.0
            s_mov_b32 s50, {f2u(1e-6):#x}
            s_mov_b32 s51, {f2u(1e-6):#x}
            s_mov_b32 s52, 0x0000ffff
            s_mov_b32 s53, 0x0000ffff
            v_mov_b32 v20, 0x3f803f80
            v_mov_b32 v21, 0x3f803f80
            v_mov_b32 v22, 0x3f803f80
            v_mov_b32 v23, 0x3f803f80
            s_nop 4
            """)
            U=168
            def phi(b):
                for i in range(8): a(f"v_pk_mul_f32 {vr(U+2*i,2)}, {vr(b+2*i,2)}, s[46:47]")
                for i in range(16): a(f"v_exp_f32 v{U+i}, v{U+i} clamp")
                for i in range(8): a(f"v_pk_add_f32 {vr(b+2*i,2)}, {vr(b+2*i,2)}, s[48:49]")
                for i in range(16): a(f"v_max_f32 v{b+i}, v{b+i}, v{U+i}")
                for i in range(8): a(f"v_pk_add_f32 {vr(b+2*i,2)}, {vr(b+2*i,2)}, s[50:51]")
            PK=[128,136]; VV=[144,152]; D=184; D2=200
            def qpart(tt,tmp):
                b=acc(tt,0)
                phi(b)
                for i in range(8): a(f"v_cvt_pk_bf16_f32 v{tmp+i}, v{b+2*i}, v{b+2*i+1}")
                if DEF: return
                a(f"s_add_u32 s{sT}, s{sOFF}, {PQ+tt*1024}")
                a(f"buffer_store_dwordx4 {vr(tmp,4)}, v9, s[{SWS}:{SWS+3}], s{sT} offen {STF}")
                a(f"s_add_u32 s{sT2}, s{sOFF}, {PQ+tt*1024+65536}")
                a(f"buffer_store_dwordx4 {vr(tmp+4,4)}, v9, s[{SWS}:{SWS+3}], s{sT2} offen {STF}")
            QF1=cfg.get("a_qfirst",False)
            if QF1: qpart(0,216); qpart(1,224)
            for tt in range(2):
                b=acc(tt,2)
                for i in range(8): a(f"v_cvt_pk_bf16_f32 v{VV[tt]+i}, v{b+2*i}, v{b+2*i+1}")
            for tt in range(2):
                b=acc(tt,1)
                phi(b)
                for i in range(8): a(f"v_cvt_pk_bf16_f32 v{PK[tt]+i}, v{b+2*i}, v{b+2*i+1}")
                a("s_nop 1")
                for m in range(2):
                    c1 = "0" if (tt==0 and m==0) else vr(D,16)
                    c2 = "0" if (tt==0 and m==0) else vr(D2,16)
                    a(f"v_mfma_f32_32x32x16_bf16 {vr(D,16)}, {vr(PK[tt]+4*m,4)}, {vr(VV[tt]+4*m,4)}, {c1}")
                    a(f"v_mfma_f32_32x32x16_bf16 {vr(D2,16)}, {vr(PK[tt]+4*m,4)}, v[20:23], {c2}")
            def kvp_addr():
                a(f"""
                v_and_b32 v11, 31, v1
                v_lshrrev_b32 v12, 5, v1
                v_and_b32 v13, 15, v1
                v_lshlrev_b32 v13, 5, v13
                v_lshl_add_u32 v13, v12, 9, v13
                v_lshlrev_b32 v14, 5, v12
                v_add_u32 v14, 1024, v14
                v_mov_b32 v15, 0x40000000
                v_cmp_eq_u32 s[54:55], 16, v11
                v_cmp_eq_u32 s[56:57], 0, v11
                s_nop 1
                v_cndmask_b32_e64 v16, v15, v14, s[54:55]
                v_cndmask_b32_e64 v17, v15, v14, s[56:57]
                v_cndmask_b32_e64 v16, v16, v13, s[52:53]
                v_cndmask_b32_e64 v17, v13, v17, s[52:53]
                """)
            if QF1:
                kvp_addr()
                a("s_nop 1")
            else:
                a("s_nop 15")
            for r in range(8):  a(f"v_cndmask_b32_e64 v{D+r}, v{D2+r}, v{D+r}, s[52:53]")
            for r in range(8,16): a(f"v_cndmask_b32_e64 v{D+r}, v{D+r}, v{D2+r}, s[52:53]")
            EX = 0
            a(f"""
            s_lshl_b32 s{sT}, s{sFN}, 12
            s_add_u32 s{sT}, s{sT}, {EX}
            v_add_u32 v10, s{sT}, v9
            s_cmp_eq_u32 s{sTM}, 0
            s_cbranch_scc1 {name}_Ard
            """)
            for q in range(4): a(f"ds_write_b128 v10, {vr(D+4*q,4)} offset:{q*1024}")
            a(f"s_waitcnt lgkmcnt(0)")
            a.label(f"{name}_Ard")
            a("s_barrier")
            a(f"s_cmp_lg_u32 s{sTM}, 0\ns_cbranch_scc1 {name}_Aq")
            for q in range(4): a(f"ds_read_b128 {vr(D2+4*q,4)}, v10 offset:{q*1024}")
            if not QF1: kvp_addr()
            a(f"""
            s_lshl_b32 s{sT}, s{sH}, 4
            s_add_u32 s{sT}, s{sT}, s{sR}
            s_mul_i32 s{sT}, s{sT}, 1088
            s_add_u32 s{sT}, s{sT}, {KVP}
            s_add_u32 s{sT2}, s{sT}, {16*1088}
            s_waitcnt lgkmcnt(0)
            """)
            for i in range(8): a(f"v_pk_add_f32 {vr(D+2*i,2)}, {vr(D+2*i,2)}, {vr(D2+2*i,2)}")
            a(f"""
            buffer_store_dwordx4 {vr(D,4)}, v16, s[{SWS}:{SWS+3}], s{sT} offen {STF}
            buffer_store_dwordx4 {vr(D+4,4)}, v16, s[{SWS}:{SWS+3}], s{sT} offen offset:16 {STF}
            buffer_store_dwordx4 {vr(D+8,4)}, v17, s[{SWS}:{SWS+3}], s{sT2} offen {STF}
            buffer_store_dwordx4 {vr(D+12,4)}, v17, s[{SWS}:{SWS+3}], s{sT2} offen offset:16 {STF}
            """)
            a.label(f"{name}_Aq")
            if not QF1: qpart(0,216); qpart(1,224 if DEF else 128)
            if DEF:
                a(f"""
                s_mov_b32 s82, s{sOFF}
                s_lshl_b32 s{sT}, s{sG}, 1
                s_add_u32 s{sT}, s{sT}, s{sFN}
                s_mul_i32 s{sT}, s{sT}, {FPSTR}
                s_lshl_b32 s{sT2}, s{sR}, 1
                s_add_u32 s{sT2}, s{sT2}, s{sTM}
                s_lshl_b32 s{sT2}, s{sT2}, 7
                s_add_u32 s{sT}, s{sT}, s{sT2}
                s_add_u32 s84, s{sT}, {FP}
                s_mov_b32 s83, 1
                """)
            a(f"s_branch {name}_p1done")
    mark_loader_start=len(a.lines)
    a.label(f"{name}_loader")
    if not FAST: loader_setup()
    def issue(c, part=None):
        st=c%NS
        L=[]
        hdr=f"""
        s_add_u32 s{sT}, s{sROT}, {c}
        s_and_b32 s{sT}, s{sT}, 7
        s_lshl_b32 s{sXC}, s{sT}, 7
        s_add_u32 s{sXC}, s{sXC}, s{sXB}
        s_mul_i32 s{sWC}, s{sT}, 196608
        s_add_u32 s{sWC}, s{sWC}, s{sWBs}
        """
        for i in range(4):
            L.append(f"s_add_u32 m0, s{sL}, {XB+st*XS+i*4096}\ns_add_u32 s{sT}, s{sXC}, {i*32768}\nbuffer_load_dwordx4 v5, s[{SX}:{SX+3}], s{sT} offen {LDX} lds")
        for jj in range(2):
            for sec in range(3):
                L.append(f"s_add_u32 m0, s{sL}, {WB+st*WS_+sec*8192+jj*4096}\ns_add_u32 s{sT}, s{sWC}, {jj*4*24576+sec*1024}\nbuffer_load_dwordx4 v6, s[{SW}:{SW+3}], s{sT} offen {LDW} lds")
        lo,hi = part if part else (0,10)
        if lo==0: a(hdr)
        for l in L[lo:hi]: a(l)
    k0=cfg.get("pro_k",5)
    issue(0)
    if FAST: nonce_load()
    issue(1,(0,k0))
    a(f"s_waitcnt vmcnt({k0})\nv_readfirstlane_b32 s{sN}, v31\ns_nop 3\ns_add_u32 s{sN}, s{sN}, 1\ns_barrier")
    if k0<10: issue(1,(k0,10))
    issue(2)
    for c in range(7):
        issued=min(8,c+NS)
        rem=10*(issued-(c+2))
        if c==6: rem=16 if P3V==1 else 17
        a(f"s_waitcnt vmcnt({rem})\ns_barrier")
        if c+NS<8: issue(c+NS)
        if c==5:
            a(f"""
            s_cmp_eq_u32 s{sP3BR}, 0
            s_cselect_b32 s28, s{sAWO}, s{sBWO}
            s_cselect_b32 s29, s{sAWO+1}, s{sBWO+1}
            s_mov_b32 s30, 0x80000
            s_mov_b32 s31, 0x20000
            s_lshl_b32 s{sXC}, s{sP3NS}, {7 if P3V==1 else 8}
            s_lshl_b32 s{sT}, s{sE}, 13
            s_add_u32 s{sXC}, s{sXC}, s{sT}
            """)
            if P3V==1 and cfg.get("p3rot",0):
                a(f"s_lshl_b32 s{sXC}, s{sP3NS}, 7\ns_mul_i32 s{sWC}, s{sP3NS}, {2*cfg['p3rot']}\ns_add_u32 s{sWC}, s{sWC}, s{sE}")
                for u in range(16):
                    a(f"s_add_u32 m0, s{sL}, {WOL+u*4096}")
                    a(f"s_add_u32 s{sT}, s{sWC}, {4*u}\ns_and_b32 s{sT}, s{sT}, 63\ns_lshl_b32 s{sT}, s{sT}, 13\ns_add_u32 s{sT}, s{sT}, s{sXC}")
                    a(f"buffer_load_dwordx4 v7, s[28:31], s{sT} offen lds")
            else:
              for u in range(16):
                a(f"s_add_u32 m0, s{sL}, {WOL+u*4096}")
                a(f"s_add_u32 s{sT}, s{sXC}, {u*32768+(0 if P3V==1 else 128)}")
                a(f"buffer_load_dwordx4 v7, s[28:31], s{sT} offen lds")
            if P3V==2:
                a(f"""
                v_and_b32 v8, 15, v1
                s_lshl_b32 s{sT}, s{sE}, 4
                v_add_u32 v8, s{sT}, v8
                v_lshlrev_b32 v8, 10, v8
                s_bfe_u32 s{sT}, s2, 0x30003
                s_lshl_b32 s{sT}, s{sT}, 16
                s_lshl_b32 s{sXC}, s{sP3NS}, 8
                s_add_u32 s{sT}, s{sT}, s{sXC}
                buffer_load_dword v9, v8, s[28:31], s{sT} offen
                """)
    a(f"s_cmp_eq_u32 s{sBR}, 1\ns_cbranch_scc1 {name}_p1bar\ns_barrier\ns_branch {name}_p1bar")
    if FAST:
        blk=a.lines[mark_loader_start:]
        del a.lines[mark_loader_start:]
        a.lines[mark_entry_end:mark_entry_end]=blk
    a.label(f"{name}_p1done")
    pf.pt("epi")
    a("s_waitcnt vmcnt(0)")
    a.label(f"{name}_p1bar")
    a("s_barrier")
    R=K2R
    a(f"""
    s_cmp_lg_u32 s{sWV}, 0
    s_cbranch_scc1 {name}_nf1
    s_lshl_b32 s{sT}, s{sBR}, 3
    s_add_u32 s{sT}, s{sT}, s{sG}
    s_mul_i32 s{sT}, s{sT}, {FSTR}
    s_lshl_b32 s{sT2}, s{sR}, 7
    s_add_u32 s{sT}, s{sT}, s{sT2}
    s_add_u32 s{sT}, s{sT}, {F1}
    v_mov_b32 v12, 0
    v_mov_b32 v13, s{sN}
    buffer_store_dword v13, v12, s[{SWS}:{SWS+3}], s{sT} offen sc1
    {name}_nf1:
    """)
    pf.pt("b1")
    a(f"""
    s_mov_b32 s{R.sWAVE}, s{sWV}
    s_bfe_u32 s{R.sRB}, s2, 0x30003
    s_and_b32 s{R.sH}, s2, 7
    s_lshr_b32 s{R.sT}, s2, 6
    s_lshl_b32 s{R.sT}, s{R.sT}, 3
    s_add_u32 s{R.sH}, s{R.sH}, s{R.sT}
    v_lshlrev_b32 v3, 4, v1
    s_lshl_b32 s{R.sQB}, s{R.sRB}, 3
    s_add_u32 s{R.sQB}, s{R.sQB}, s{R.sWAVE}
    s_mov_b32 s{R.SWS}, s{sWSP}
    s_mov_b32 s{R.SWS+1}, s{sWSP+1}
    s_mov_b32 s{R.SWS+2}, {WS_USED}
    s_mov_b32 s{R.SWS+3}, 0x20000
    """)
    k2_setup_consts(a,R)
    sFA=12; sNEED=14
    a(f"""
    v_lshlrev_b32 v2, 7, v1
    s_lshr_b32 s{sFA}, s{R.sH}, 2
    s_mul_i32 s{sFA}, s{sFA}, {FSTR}
    s_add_u32 s13, s{sFA}, {F1}               ; A row
    s_add_u32 s{sFA}, s{sFA}, {F1+8*FSTR}     ; B row
    """)
    if cfg.get("wavepoll"):
        a(f"""
        s_lshl_b32 s{R.sT}, s{R.sRB}, 1
        s_lshr_b32 s{R.sT2}, s{sWV}, 1
        s_add_u32 s{R.sT2}, s{R.sT2}, s{R.sT}
        s_sub_i32 s{R.sT2}, s{R.sT2}, 2
        s_max_i32 s{R.sT2}, s{R.sT2}, 0
        s_lshl_b32 s{sNEED}, 1, s{R.sT2}
        s_lshr_b32 s{R.sT2}, s{sWV}, 2
        s_add_u32 s{R.sT2}, s{R.sT2}, s{R.sT}
        s_lshl_b32 s{R.sT2}, 1, s{R.sT2}
        s_or_b32 s{sNEED}, s{sNEED}, s{R.sT2}
        s_mov_b32 s{sNEED+1}, 0
        """)
        poll(a,"pb",R.SWS,sFA,sNEED,sNEED+1,12,2,sleep=cfg.get("sleep1",4))
    else:
        a(f"""
        s_cmp_lg_u32 s{sWV}, 0
        s_cbranch_scc1 {name}_np2
        s_lshl_b32 s{R.sT}, s{R.sRB}, 1
        s_lshl_b32 s{sNEED}, 15, s{R.sT}
        s_lshr_b32 s{sNEED}, s{sNEED}, 2          ; (0b1111 << 2rb) >> 2
        s_mov_b32 s{sNEED+1}, 0
        """)
        poll(a,"pb",R.SWS,sFA,sNEED,sNEED+1,12,2,sleep=cfg.get("sleep1",4))
        a.label(f"{name}_np2")
        a("s_waitcnt lgkmcnt(0)\ns_barrier")
    pf.pt("b2")
    k2_load_b(a,R,HLD)
    if DEF:
        a(f"s_cmp_eq_u32 s83, 0\ns_cbranch_scc1 {name}_nopq")
        for tt in range(2):
            a(f"s_add_u32 s{R.sT}, s82, {PQ+tt*1024}\nbuffer_store_dwordx4 {vr(216+8*tt,4)}, v3, s[{R.SWS}:{R.SWS+3}], s{R.sT} offen {STF}")
            a(f"s_add_u32 s{R.sT2}, s82, {PQ+tt*1024+65536}\nbuffer_store_dwordx4 {vr(220+8*tt,4)}, v3, s[{R.SWS}:{R.SWS+3}], s{R.sT2} offen {STF}")
        a(f"s_waitcnt vmcnt(4)\ns_branch {name}_pqd\n{name}_nopq:\ns_waitcnt vmcnt(0)\n{name}_pqd:\ns_barrier")
    else:
        a("s_waitcnt vmcnt(0) lgkmcnt(0)\ns_barrier")
    pf.pt("kv")
    if cfg.get("prio"):
        a(f"s_cmp_ge_u32 s{sWV}, 4\ns_cbranch_scc0 {name}_nprio\ns_setprio 1\n{name}_nprio:")
    def h_pre():
        a(f"s_mov_b64 exec, 0xffff\nbuffer_load_dword v13, v2, s[{R.SWS}:{R.SWS+3}], s13 offen sc1\ns_mov_b64 exec, -1")
    def h_post0():
        pf.pt("post0")
        D=a.newlabel("pa")
        a(f"""
        s_mov_b32 s{sNEED}, 0xffff
        s_mov_b32 s{sNEED+1}, 0
        s_waitcnt vmcnt(0)
        v_cmp_eq_u32 vcc, s{sN}, v13
        s_and_b64 vcc, vcc, s[{sNEED}:{sNEED+1}]
        s_cmp_eq_u64 vcc, s[{sNEED}:{sNEED+1}]
        s_cbranch_scc1 {D}
        """)
        poll(a,"pa2",R.SWS,13,sNEED,sNEED+1,13,2)
        a.label(D)
        pf.pt("aflag")
        if DEF:
            lab=a.newlabel("pqf")
            a(f"""
            s_cmp_eq_u32 s83, 0
            s_cbranch_scc1 {lab}
            v_mov_b32 v12, 0
            v_mov_b32 v13, s{sN}
            buffer_store_dword v13, v12, s[{R.SWS}:{R.SWS+3}], s84 offen sc1
            {lab}:
            """)
        k2_load_a(a,R,HLD,name,pq=not DEF)
    def pq_addr():
        a(f"""
        s_lshr_b32 s14, s{R.sH}, 1
        s_mul_i32 s14, s14, {FPSTR}
        s_lshr_b32 s15, s{R.sQB}, 1
        s_lshl_b32 s15, s15, 7
        s_add_u32 s14, s14, s15
        s_add_u32 s16, s14, {FP}
        v_mov_b32 v12, 0
        """)
    def pq_load():
        a(f"""
        s_lshl_b32 s{R.sT}, s{R.sH}, 16
        s_lshl_b32 s{R.sT2}, s{R.sQB}, 10
        s_add_u32 s{R.sT}, s{R.sT}, s{R.sT2}
        s_add_u32 s{R.sT}, s{R.sT}, {PQ}
        buffer_load_dwordx4 {vr(R.vPQ,4)}, v3, s[{R.SWS}:{R.SWS+3}], s{R.sT} offen {HLD}
        """)
    def pq_check(first):
        D=a.newlabel("pqd")
        a("s_mov_b32 s14, 1\ns_mov_b32 s15, 0")
        if first:
            a(f"""
            s_waitcnt vmcnt(0)
            v_readfirstlane_b32 s{R.sT}, v13
            s_cmp_eq_u32 s{R.sT}, s{sN}
            s_cbranch_scc1 {D}
            """)
        poll(a,"pq2",R.SWS,16,14,15,13,12,sleep=2)
        a.label(D)
        pq_load()
    def h_probe():
        lab=a.newlabel("pr")
        a(f"s_cmp_eq_u32 s{R.sRB}, 0\ns_cbranch_scc1 {lab}")
        pq_addr()
        a(f"buffer_load_dword v13, v12, s[{R.SWS}:{R.SWS+3}], s16 offen sc1\n{lab}:")
    def h_check():
        lab=a.newlabel("ck")
        a(f"s_cmp_eq_u32 s{R.sRB}, 0\ns_cbranch_scc1 {lab}")
        pq_check(True)
        a.label(lab)
    hk={"pre":h_pre,"post0":h_post0}
    if DEF: hk[("it",cfg.get("pq_at",2)+1)]=h_probe; hk[("it",cfg.get("pq_at",2))]=h_check
    AMID=cfg.get("amid",False)
    if AMID:
        OA,TMP=R.OA,R.TMP
        def h_a1():
            lab=a.newlabel("am1"); nr=a.newlabel("amr")
            RT=R.SA
            a(f"""
            s_cmp_eq_u32 s{R.sRB}, 0
            s_cbranch_scc1 {lab}
            s_waitcnt vmcnt(0) lgkmcnt(0)
            s_barrier
            v_lshlrev_b32 v{R.vRA}, 2, v0
            v_cmp_gt_u32 vcc, 272, v0
            s_and_saveexec_b64 s[28:29], vcc
            s_cbranch_execz {nr}
            """)
            for p in range(12): a(f"ds_read_b32 v{RT+p}, v{R.vRA} offset:{R.KVL+p*1088}")
            for p in range(1,4):
                a(f"s_waitcnt lgkmcnt({11-p})\nv_add_f32 v{RT}, v{RT}, v{RT+p}")
            for p in range(12,16): a(f"ds_read_b32 v{RT+p}, v{R.vRA} offset:{R.KVL+p*1088}")
            for p in range(4,16):
                a(f"s_waitcnt lgkmcnt({15-p})\nv_add_f32 v{RT}, v{RT}, v{RT+p}")
            a(f"""
            ds_write_b32 v{R.vRA}, v{RT} offset:{R.RED}
            {nr}:
            s_mov_b64 exec, s[28:29]
            s_waitcnt lgkmcnt(0)
            {lab}:
            """)
        def h_a2():
            lab=a.newlabel("am2")
            a(f"""
            s_cmp_eq_u32 s{R.sRB}, 0
            s_cbranch_scc1 {lab}
            s_barrier
            ds_read_b128 {vr(TMP+8,4)}, v{R.vKVA}
            ds_read_b128 {vr(TMP+12,4)}, v{R.vKVA} offset:16
            s_waitcnt lgkmcnt(0)
            """)
            for i in range(4): a(f"v_cvt_pk_bf16_f32 v{TMP+8+i}, v{TMP+8+2*i}, v{TMP+8+2*i+1}")
            a("s_nop 1")
            a(f"v_mfma_f32_32x32x16_bf16 {vr(OA,16)}, {vr(TMP+8,4)}, {vr(R.vPQ,4)}, 0")
            a.label(lab)
        def h_a3():
            lab=a.newlabel("am3")
            a(f"""
            s_cmp_eq_u32 s{R.sRB}, 0
            s_cbranch_scc1 {lab}
            v_add_f32 v{OA+8}, {f2u(1e-6):#x}, v{OA+8}
            s_lshl_b32 s{R.sT}, s{R.sQB}, 5
            s_add_u32 s{R.sT}, s{R.sT}, s{R.sH}
            v_rcp_f32 v{OA+8}, v{OA+8}
            s_lshl_b32 s{R.sT}, s{R.sT}, 10
            s_add_u32 s{R.sT}, s{R.sT}, {OF}
            """)
            for r in range(8): a(f"v_mul_f32 v{OA+r}, v{OA+r}, v{OA+8}")
            for i in range(4): a(f"v_cvt_pk_bf16_f32 v{TMP+4+i}, v{OA+2*i}, v{OA+2*i+1}")
            a(f"buffer_store_dwordx4 {vr(TMP+4,4)}, v3, s[{R.SWS}:{R.SWS+3}], s{R.sT} offen {STF}")
            a.label(lab)
        t1,t2,t3=cfg.get("amid_at",[4,3,2])
        hk[("it",t1)]=h_a1; hk[("it",t2)]=h_a2; hk[("it",t3)]=h_a3
    k2_attn(a,R,name,cfg,pf,hooks=hk)
    if DEF:
        lab=a.newlabel("rb0")
        a(f"s_cmp_lg_u32 s{R.sRB}, 0\ns_cbranch_scc1 {lab}")
        pq_addr(); pq_check(False)
        a.label(lab)
    a(f"""
    s_lshl_b32 s{R.sT}, s{R.sQB}, 5
    s_add_u32 s{R.sT}, s{R.sT}, s{R.sH}
    s_lshl_b32 s{R.sT}, s{R.sT}, 10
    s_add_u32 s{R.sOB}, s{R.sT}, {OF}
    s_add_u32 s{R.sT}, s{R.sOB}, {64*32*1024}
    buffer_store_dwordx4 {vr(R.TMP,4)}, v3, s[{R.SWS}:{R.SWS+3}], s{R.sT} offen {STF}
    """)
    pf.pt("att")
    if AMID: a(f"s_cmp_lg_u32 s{R.sRB}, 0\ns_cbranch_scc1 {name}_adone")
    a("s_waitcnt vmcnt(1)\ns_barrier")
    pf.pt("kvp")
    k2_apart(a,R,name)
    pf.pt("apart")
    a(f"buffer_store_dwordx4 {vr(R.TMP+4,4)}, v3, s[{R.SWS}:{R.SWS+3}], s{R.sOB} offen {STF}")
    if AMID: a.label(f"{name}_adone")
    a("s_waitcnt vmcnt(0)")
    pf.pt("odrain")
    a("s_barrier")
    pf.pt("b5")
    if P3V==2:
        WOL0=32768
        a(f"""
        s_cmp_lt_u32 s{sWV}, 4
        s_cbranch_scc1 {name}_wod
        v_lshrrev_b32 v4, 3, v1
        v_and_b32 v5, 7, v1
        v_bfe_u32 v6, v1, 4, 1
        v_lshlrev_b32 v6, 2, v6
        v_xor_b32 v6, v6, v5
        v_lshlrev_b32 v7, 10, v4
        v_lshl_add_u32 v7, v6, 4, v7
        s_cmp_eq_u32 s{sP3BR}, 0
        s_cselect_b32 s16, s{sAWO}, s{sBWO}
        s_cselect_b32 s17, s{sAWO+1}, s{sBWO+1}
        s_mov_b32 s18, 0x80000
        s_mov_b32 s19, 0x20000
        s_sub_u32 s29, s{sWV}, 4
        s_lshl_b32 s28, s{sP3NS}, 8
        s_lshl_b32 s{R.sT}, s29, 13
        s_add_u32 s28, s28, s{R.sT}
        s_lshl_b32 s29, s29, 10
        """)
        for u in range(16):
            a(f"s_add_u32 m0, s29, {WOL0+u*4096}\ns_add_u32 s{R.sT}, s28, {u*32768}\nbuffer_load_dwordx4 v7, s[16:19], s{R.sT} offen lds")
        a.label(f"{name}_wod")
    a(f"""
    s_cmp_lg_u32 s{sWV}, 0
    s_cbranch_scc1 {name}_nf2
    s_mul_i32 s{R.sT}, s{R.sRB}, {F2STR}
    s_lshl_b32 s{R.sT2}, s{R.sH}, 7
    s_add_u32 s{R.sT}, s{R.sT}, s{R.sT2}
    s_add_u32 s{R.sT}, s{R.sT}, {F2}
    v_mov_b32 v12, 0
    v_mov_b32 v13, s{sN}
    buffer_store_dword v13, v12, s[{R.SWS}:{R.SWS+3}], s{R.sT} offen sc1
    s_lshr_b32 s{sFA}, s{sP3T}, {2 if P3V==2 else 1}
    s_mul_i32 s{sFA}, s{sFA}, {F2STR}
    s_add_u32 s{sFA}, s{sFA}, {F2}
    s_mov_b32 s{sNEED}, -1
    s_mov_b32 s{sNEED+1}, 0
    """)
    poll(a,"p3",R.SWS,sFA,sNEED,sNEED+1,12,2,sleep=cfg.get("sleep2",4))
    a.label(f"{name}_nf2")
    if P3V==2: a("s_waitcnt vmcnt(0)")
    a("s_barrier")
    pf.pt("f2")
    if pf.on and cfg.get("pwave",0)>=4:
        pf0.flush(len(PTS),4,2,wave=cfg["pwave"])
    if P3V==2:
        gen_p3v2(a,name,cfg,R,pf,pf0,PTS,OSTF,HLD)
        return dict(name=name, grid=256, block=512, lds=163840, vgpr=248, sgpr=102)
    a(f"s_cmp_ge_u32 s{sWV}, 4\ns_cbranch_scc1 {name}_end")
    SOUT=16; sTB=27; sOB=28
    a(f"""
    s_lshl_b32 s{sTB}, s{sP3T}, 2
    s_add_u32 s{sTB}, s{sTB}, s{sWV}
    s_lshl_b32 s{sT}, s{sP3BR}, 6
    s_add_u32 s{sT}, s{sT}, s{sTB}
    s_lshl_b32 s{sOB}, s{sT}, 15
    s_add_u32 s{sOB}, s{sOB}, {OF}
    """)
    OFR=64; ACC3=32; WFR=[8,16]; vWA3=5
    DEPTH=cfg.get("p3_depth",10)
    if cfg.get("p3rot",0): a(f"s_mul_i32 s29, s{sP3NS}, {cfg['p3rot']}")
    def oload(h):
        if cfg.get("p3rot",0):
            a(f"s_add_u32 s{sT2}, s29, {h}\ns_and_b32 s{sT2}, s{sT2}, 31\ns_lshl_b32 s{sT2}, s{sT2}, 10\ns_add_u32 s{sT2}, s{sT2}, s{sOB}\nbuffer_load_dwordx4 {vr(OFR+4*h,4)}, v3, s[{R.SWS}:{R.SWS+3}], s{sT2} offen {HLD}")
        else:
            a(f"s_add_u32 s{sT2}, s{sOB}, {h*1024}\nbuffer_load_dwordx4 {vr(OFR+4*h,4)}, v3, s[{R.SWS}:{R.SWS+3}], s{sT2} offen {HLD}")
    for h in range(DEPTH): oload(h)
    a(f"""
    s_mov_b32 s{SOUT}, s{sOUT}
    s_mov_b32 s{SOUT+1}, s{sOUT+1}
    s_mov_b32 s{SOUT+2}, 0x400000
    s_mov_b32 s{SOUT+3}, 0x20000
    v_bfe_u32 v6, v1, 2, 2
    v_lshrrev_b32 v7, 5, v1
    v_lshl_add_u32 v6, v7, 2, v6
    v_lshlrev_b32 v6, 7, v6
    v_and_b32 v7, 1, v1
    v_lshlrev_b32 v7, 1, v7
    v_bfe_u32 v24, v1, 4, 1
    v_or_b32 v7, v7, v24
    v_bfe_u32 v24, v1, 3, 1
    v_lshlrev_b32 v24, 2, v24
    v_xor_b32 v7, v7, v24
    v_lshl_add_u32 v6, v7, 4, v6
    v_bfe_u32 v24, v1, 1, 1
    v_lshl_add_u32 v{vWA3}, v24, 3, v6
    v_xor_b32 v{vWA3+1}, 64, v{vWA3}
    v_add_u32 v{vWA3}, {WOL}, v{vWA3}
    v_add_u32 v{vWA3+1}, {WOL}, v{vWA3+1}
    """)
    def reads3(s,h):
        L=[]
        for nt in range(2):
            for t in range(2):
                L.append(f"ds_read_b64_tr_b16 {vr(WFR[s]+4*nt+2*t,2)}, v{vWA3+nt} offset:{h*2048+t*1024}")
        return L
    for l in reads3(0,0): a(l)
    for h in range(32):
        s=h&1
        if h==1: pf.pt("p3b0")
        nxt=reads3(s^1,h+1) if h<31 else []
        for l in nxt: a(l)
        issued=min(32,h+DEPTH)
        a(f"s_waitcnt vmcnt({issued-h-1}) lgkmcnt({len(nxt)})")
        for nt in range(2):
            c = "0" if h==0 else vr(ACC3+16*nt,16)
            a(f"v_mfma_f32_32x32x16_bf16 {vr(ACC3+16*nt,16)}, {vr(WFR[s]+4*nt,4)}, {vr(OFR+4*h,4)}, {c}")
        if h+DEPTH<32: oload(h+DEPTH)
    pf.pt("p3loop")
    a(f"""
    s_lshl_b32 s{sT}, s{sTB}, 16
    s_lshl_b32 s{sT2}, s{sP3BR}, 10
    s_add_u32 s{sT}, s{sT}, s{sT2}
    s_lshl_b32 s{sT2}, s{sP3NS}, 7
    s_add_u32 s{sT}, s{sT}, s{sT2}
    v_and_b32 v6, 31, v1
    v_lshlrev_b32 v6, 11, v6
    v_lshrrev_b32 v7, 5, v1
    v_lshl_add_u32 v6, v7, 5, v6
    s_nop 7
    """)
    if cfg.get("outT"):
        a(f"""
        s_lshl_b32 s{sT2}, s{sWV}, 12
        v_and_b32 v8, 31, v1
        v_lshlrev_b32 v8, 7, v8                    ; token*128
        v_lshrrev_b32 v9, 5, v1
        v_lshl_add_u32 v8, v9, 5, v8               ; + hf*32
        v_and_b32 v9, 7, v1
        v_lshlrev_b32 v9, 4, v9
        v_add_u32 v8, s{sT2}, v8
        """)
        for nt in range(2):
            b=ACC3+16*nt; T=16+8*nt
            for i in range(8): a(f"v_cvt_pk_bf16_f32 v{T+i}, v{b+2*i}, v{b+2*i+1}")
        for nt in range(2):
            for u in range(2):
                a(f"v_add_u32 v10, {nt*64+u*16}, v8\nv_xor_b32 v10, v10, v9\nds_write_b128 v10, {vr(16+8*nt+4*u,4)}")
        a(f"""
        v_lshrrev_b32 v11, 3, v1
        v_and_b32 v12, 7, v1                       ; chunk
        v_xor_b32 v13, v12, v11
        v_lshlrev_b32 v13, 4, v13
        v_lshl_add_u32 v13, v11, 7, v13
        v_add_u32 v13, s{sT2}, v13
        v_lshlrev_b32 v14, 11, v11
        v_lshl_add_u32 v14, v12, 4, v14
        s_waitcnt lgkmcnt(0)
        """)
        for i in range(4): a(f"ds_read_b128 {vr(32+4*i,4)}, v13 offset:{i*1024}")
        for i in range(4):
            a(f"s_waitcnt lgkmcnt({3-i})\ns_add_u32 s{sT2}, s{sT}, {i*8*2048}\nbuffer_store_dwordx4 {vr(32+4*i,4)}, v14, s[{SOUT}:{SOUT+3}], s{sT2} offen {OSTF}")
    else:
      for nt in range(2):
        b=ACC3+16*nt; T=8+8*nt
        for i in range(8): a(f"v_cvt_pk_bf16_f32 v{T+i}, v{b+2*i}, v{b+2*i+1}")
        a(f"buffer_store_dwordx4 {vr(T,4)}, v6, s[{SOUT}:{SOUT+3}], s{sT} offen offset:{nt*64} {OSTF}")
        a(f"buffer_store_dwordx4 {vr(T+4,4)}, v6, s[{SOUT}:{SOUT+3}], s{sT} offen offset:{nt*64+16} {OSTF}")
    a(f"""
    s_cmp_lg_u32 s2, 0
    s_cbranch_scc1 {name}_nn
    s_cmp_lg_u32 s{sWV}, 0
    s_cbranch_scc1 {name}_nn
    s_mov_b32 s{sT}, {NONCE}
    v_mov_b32 v12, 0
    v_mov_b32 v13, s{sN}
    buffer_store_dword v13, v12, s[{R.SWS}:{R.SWS+3}], s{sT} offen sc1
    {name}_nn:
    """)
    if pf.on:
        a("s_waitcnt vmcnt(0)"); pf.pt("end"); pf0.flush(len(PTS),4,2,wave=cfg.get("pwave",0) if cfg.get("pwave",0)<4 else 99)
    a.label(f"{name}_end")
    a("s_endpgm")
    if cfg.get("slow_ool"): a.lines+=R.deferred
    a.label(f"{name}_last")
    a("s_endpgm")
    return dict(name=name, grid=256, block=512, lds=163840, vgpr=248, sgpr=104 if False else 102)
```

```python
import sys, json
from asmlib import *
from k1 import gen_k1
from k2 import gen_k2
from k3 import gen_k3
from kdiag import gen_diag
from fused import gen_fused
from fused2 import gen_fused2
from fused3 import gen_fused3
HDR=open("concat_heads__linear_attn_block__sliding_block__prompt.s.ref").read().split("\n")
DOC="""
;
; One persistent launch: 256 workgroups x 8 waves, one workgroup per CU (160 KB of LDS each), three phases.
;  P1  QKV GEMM.  Workgroup = (branch, 128 tokens, 4 heads x {q,k,v}); waves 4-7 stream x / wqkv tiles into a 3-stage LDS ring
; the launch tag = (word left in d_ws at entry) + 1, which workgroup 0 stores back when it has finished.
"""
def build_fused(cfg):
    a=Asm()
    N="concat_heads__linear_attn_block__sliding_block__prompt_kernel"
    k=({2:gen_fused2,3:gen_fused3}.get(cfg.get('fused'),gen_fused))(a,N,cfg)
    out=[]
    for l in HDR:
        if l.startswith("; Override") : break
        out.append(l)
    ks=[k]
    if "diag_q" in cfg:
        ks.append(gen_diag(a,"diag_kernel",cfg))
        for kk in ks: out.append(f"; @launch kernel={kk['name']} grid=({kk['grid']},1,1) block=({kk['block']},1,1) lds={kk['lds']}")
    else:
        out.append(f"; @launch grid=({k['grid']},1,1) block=({k['block']},1,1) lds={k['lds']}")
    if cfg.get("doc"): out+=DOC.strip("\n").split("\n")
    out.append('.amdgcn_target "amdgcn-amd-amdhsa--gfx950"')
    out.append(".text")
    txt=a.text()
    if cfg.get("doc"): txt="\n".join(l for l in txt.split("\n") if l.strip())+"\n"
    out.append(txt)
    out.append('.section .rodata,"a"')
    for kk in ks: out.append(kdesc(kk['name'],kk['vgpr'],kk['sgpr']))
    return "\n".join(out)
def build(cfg):
    if cfg.get("fused"): return build_fused(cfg)
    a=Asm()
    N="concat_heads__linear_attn_block__sliding_block__prompt"
    ks=[]
    ks.append(gen_k1(a,"qkv_kernel",cfg))
    ks.append(gen_k2(a,"attn_kernel",cfg))
    ks.append(gen_k3(a,"oproj_kernel",cfg))
    if 3 in cfg.get("launch",[]): a.raw(".globl empty_kernel\n.p2align 8\n.type empty_kernel,@function\nempty_kernel:")
    if 3 in cfg.get("launch",[]): a("s_endpgm")
    ks.append(dict(name="empty_kernel",grid=cfg.get("empty_grid",256),block=64,lds=0,vgpr=8,sgpr=16))
    if "diag_q" in cfg: ks.append(gen_diag(a,"diag_kernel",cfg))
    out=[]
    for l in HDR:
        if l.startswith("; Override") : break
        out.append(l)
    sel=cfg.get("launch",[0,1,2])
    for i in sel:
        k=ks[i]
        out.append(f"; @launch kernel={k['name']} grid=({k['grid']},1,1) block=({k['block']},1,1) lds={k['lds']}")
    out.append('.amdgcn_target "amdgcn-amd-amdhsa--gfx950"')
    out.append(".text")
    out.append(a.text())
    out.append('.section .rodata,"a"')
    used=set(sel)
    for i,k in enumerate(ks):
        if i in used or i<3: out.append(kdesc(k['name'],k['vgpr'],k['sgpr']))
    return "\n".join(out)
if __name__=="__main__":
    cfg=json.loads(sys.argv[2]) if len(sys.argv)>2 else {}
    open(sys.argv[1],"w").write(build(cfg))
```

```python
from asmlib import *
import math
from k1 import QF,KF,VF,PQ,OF,KVP,WS_USED,LOG2E,CSCALE
import k2
from k2 import K2R,k2_setup_consts,k2_load_b,k2_load_a,k2_attn,k2_apart

FLG=KVP+0x90000
FL=128
FSTR=16*FL+256
F1=FLG; F2=FLG+16*FSTR; F2STR=32*FL+256; NONCE=F2+8*F2STR
FP=NONCE+256; FPSTR=32*FL+256
WOL=98304
NL=163840-16

sAWO=64; sBWO=66; sOUT=68; sDBG=70; sWSP=72; sN=74; sWV=75; sP3T=76; sP3NS=77; sP3BR=78; sCNT2=79

def poll(a, name, srd, soff, need_lo, need_hi, vtmp, voff, bound=30000, sleep=4):
    L=a.newlabel(name); D=a.newlabel(name+"d")
    a(f"""
    s_mov_b32 s{sCNT2}, 0
    s_mov_b64 exec, s[{need_lo}:{need_hi}]
    {L}:
    buffer_load_dword v{vtmp}, v{voff}, s[{srd}:{srd+3}], s{soff} offen sc1
    s_waitcnt vmcnt(0)
    v_cmp_eq_u32 vcc, s{sN}, v{vtmp}
    s_cmp_eq_u64 vcc, s[{need_lo}:{need_hi}]
    s_cbranch_scc1 {D}
    s_add_u32 s{sCNT2}, s{sCNT2}, 1
    s_cmp_lt_u32 s{sCNT2}, {bound}
    s_cbranch_scc0 {D}
    s_sleep {sleep}
    s_branch {L}
    {D}:
    s_mov_b64 exec, -1
    """)

def gen_p3v2(a,name,cfg,R,pf,pf0,PTS,OSTF,HLD):
    sT=R.sT; sT2=R.sT2
    WOL0=32768; WOL1=98304
    a(f"s_cmp_ge_u32 s{sWV}, 4\ns_cbranch_scc1 {name}_p3l")
    SOUT=16; sTT=26; sNH=27
    ACC3=32; OS=[64,80]; WSET=[96,104,112]
    vWA3=5; vO=7
    a(f"""
    s_and_b32 s{sTT}, s{sWV}, 1
    s_lshr_b32 s{sNH}, s{sWV}, 1
    s_mov_b32 s{SOUT}, s{sOUT}
    s_mov_b32 s{SOUT+1}, s{sOUT+1}
    s_mov_b32 s{SOUT+2}, 0x400000
    s_mov_b32 s{SOUT+3}, 0x20000
    v_bfe_u32 v6, v1, 2, 2
    v_lshrrev_b32 v7, 5, v1
    v_lshl_add_u32 v6, v7, 2, v6
    v_lshlrev_b32 v6, 7, v6
    v_and_b32 v7, 1, v1
    v_lshlrev_b32 v7, 1, v7
    v_bfe_u32 v24, v1, 4, 1
    v_or_b32 v7, v7, v24
    v_bfe_u32 v24, v1, 3, 1
    v_lshlrev_b32 v24, 2, v24
    v_xor_b32 v7, v7, v24
    v_lshl_add_u32 v6, v7, 4, v6
    v_bfe_u32 v24, v1, 1, 1
    v_lshl_add_u32 v{vWA3}, v24, 3, v6
    v_xor_b32 v{vWA3+1}, 64, v{vWA3}
    s_lshl_b32 s{sT}, s{sNH}, 16
    s_add_u32 s{sT}, s{sT}, {WOL0}
    v_add_u32 v{vWA3}, s{sT}, v{vWA3}
    v_add_u32 v{vWA3+1}, s{sT}, v{vWA3+1}
    s_lshl_b32 s{sT}, s{sTT}, 10
    v_add_u32 v{vO}, s{sT}, v3
    """)
    q=[]
    def rd_o(e):
        for hh in range(4):
            a(f"ds_read_b128 {vr(OS[e&1]+4*hh,4)}, v{vO} offset:{(e&3)*8192+hh*2048}"); q.append(("o",e))
    def rd_w(h):
        for nt in range(2):
            for t in range(2):
                a(f"ds_read_b64_tr_b16 {vr(WSET[h%3]+4*nt+2*t,2)}, v{vWA3+nt} offset:{h*2048+t*1024}"); q.append(("w",h))
    st={"done":0}
    def wait_for(tags):
        last=max(i for i,x in enumerate(q) if x in tags)
        if last<st["done"]: return
        n=len(q)-1-last
        assert n<=15 and len(q)-st["done"]<=16, (n,len(q)-st["done"])
        a(f"s_waitcnt lgkmcnt({n})"); st["done"]=last+1
    rd_w(0); rd_w(1)
    a("s_barrier")
    pf.pt("p3b0")
    rd_o(0)
    for h in range(32):
        e=h>>2; hh=h&3
        if hh==2 and e<7:
            wait_for([("o",e)])
            a("s_barrier")
            rd_o(e+1)
        if h+2<32: rd_w(h+2)
        wait_for([("w",h),("o",e)])
        for nt in range(2):
            c = "0" if h==0 else vr(ACC3+16*nt,16)
            a(f"v_mfma_f32_32x32x16_bf16 {vr(ACC3+16*nt,16)}, {vr(WSET[h%3]+4*nt,4)}, {vr(OS[e&1]+4*hh,4)}, {c}")
    pf.pt("p3loop")
    a(f"""
    s_lshl_b32 s{sT}, s{sP3T}, 1
    s_add_u32 s{sT}, s{sT}, s{sTT}
    s_lshl_b32 s{sT}, s{sT}, 16
    s_lshl_b32 s{sT2}, s{sP3BR}, 10
    s_add_u32 s{sT}, s{sT}, s{sT2}
    s_lshl_b32 s{sT2}, s{sP3NS}, 8
    s_add_u32 s{sT}, s{sT}, s{sT2}
    s_lshl_b32 s{sT2}, s{sNH}, 7
    s_add_u32 s{sT}, s{sT}, s{sT2}
    v_and_b32 v6, 31, v1
    v_lshlrev_b32 v6, 11, v6
    v_lshrrev_b32 v7, 5, v1
    v_lshl_add_u32 v6, v7, 5, v6
    s_nop 7
    """)
    if cfg.get("outT"):
        a(f"""
        s_lshl_b32 s{sT2}, s{sWV}, 12
        v_and_b32 v8, 31, v1
        v_lshlrev_b32 v8, 7, v8                    ; token*128
        v_lshrrev_b32 v9, 5, v1
        v_lshl_add_u32 v8, v9, 5, v8               ; + hf*32
        v_and_b32 v9, 7, v1
        v_lshlrev_b32 v9, 4, v9
        v_add_u32 v8, s{sT2}, v8
        """)
        for nt in range(2):
            b=ACC3+16*nt; T=16+8*nt
            for i in range(8): a(f"v_cvt_pk_bf16_f32 v{T+i}, v{b+2*i}, v{b+2*i+1}")
        for nt in range(2):
            for u in range(2):
                a(f"v_add_u32 v10, {nt*64+u*16}, v8\nv_xor_b32 v10, v10, v9\nds_write_b128 v10, {vr(16+8*nt+4*u,4)}")
        a(f"""
        v_lshrrev_b32 v11, 3, v1
        v_and_b32 v12, 7, v1                       ; chunk
        v_xor_b32 v13, v12, v11
        v_lshlrev_b32 v13, 4, v13
        v_lshl_add_u32 v13, v11, 7, v13
        v_add_u32 v13, s{sT2}, v13
        v_lshlrev_b32 v14, 11, v11
        v_lshl_add_u32 v14, v12, 4, v14
        s_waitcnt lgkmcnt(0)
        """)
        for i in range(4): a(f"ds_read_b128 {vr(32+4*i,4)}, v13 offset:{i*1024}")
        for i in range(4):
            a(f"s_waitcnt lgkmcnt({3-i})\ns_add_u32 s{sT2}, s{sT}, {i*8*2048}\nbuffer_store_dwordx4 {vr(32+4*i,4)}, v14, s[{SOUT}:{SOUT+3}], s{sT2} offen {OSTF}")
    else:
      for nt in range(2):
        b=ACC3+16*nt; T=8+8*nt
        for i in range(8): a(f"v_cvt_pk_bf16_f32 v{T+i}, v{b+2*i}, v{b+2*i+1}")
        a(f"buffer_store_dwordx4 {vr(T,4)}, v6, s[{SOUT}:{SOUT+3}], s{sT} offen offset:{nt*64} {OSTF}")
        a(f"buffer_store_dwordx4 {vr(T+4,4)}, v6, s[{SOUT}:{SOUT+3}], s{sT} offen offset:{nt*64+16} {OSTF}")
    a(f"""
    s_cmp_lg_u32 s2, 0
    s_cbranch_scc1 {name}_nn
    s_cmp_lg_u32 s{sWV}, 0
    s_cbranch_scc1 {name}_nn
    s_mov_b32 s{sT}, {NONCE}
    v_mov_b32 v12, 0
    v_mov_b32 v13, s{sN}
    buffer_store_dword v13, v12, s[{R.SWS}:{R.SWS+3}], s{sT} offen sc1
    {name}_nn:
    """)
    if pf.on:
        a("s_waitcnt vmcnt(0)"); pf.pt("end"); pf0.flush(len(PTS),4,2,wave=cfg.get("pwave",0) if cfg.get("pwave",0)<4 else 99)
    a("s_endpgm")
    a.label(f"{name}_p3l")
    sE=26; sB=27; sL=28
    a(f"""
    s_sub_u32 s{sE}, s{sWV}, 4
    s_lshl_b32 s{sT}, s{sP3BR}, 6
    s_lshl_b32 s{sT2}, s{sP3T}, 1
    s_add_u32 s{sT}, s{sT}, s{sT2}
    s_lshl_b32 s{sB}, s{sT}, 15
    s_lshl_b32 s{sT}, s{sE}, 10
    s_add_u32 s{sB}, s{sB}, s{sT}
    s_add_u32 s{sB}, s{sB}, {OF}
    s_lshl_b32 s{sL}, s{sE}, 11
    """)
    OR=32; LA=cfg.get("p3_la",5); mode=cfg.get("p3_mode","reg")
    items=[(e,tt) for e in range(8) for tt in range(2)]
    def ld(k):
        e,tt=items[k]
        if cfg.get("diag_p3noload"): return
        if mode=="reg":
            a(f"s_add_u32 s{sT}, s{sB}, {e*4096+tt*32768}\nbuffer_load_dwordx4 {vr(OR+4*k,4)}, v3, s[{R.SWS}:{R.SWS+3}], s{sT} offen {HLD}")
        else:
            a(f"s_add_u32 m0, s{sL}, {(e&3)*8192+tt*1024}\ns_add_u32 s{sT}, s{sB}, {e*4096+tt*32768}\nbuffer_load_dwordx4 v3, s[{R.SWS}:{R.SWS+3}], s{sT} offen {HLD} lds")
    issued=0
    if mode=="dma": LA=min(LA,6)
    while issued<LA: ld(issued); issued+=1
    a(f"v_add_u32 v4, s{sL}, v3")
    for e in range(8):
        need=2*e+2
        a(f"s_waitcnt vmcnt({max(issued-need,0)})")
        if mode=="reg":
            for tt in range(2):
                a(f"ds_write_b128 v4, {vr(OR+4*(2*e+tt),4)} offset:{(e&3)*8192+tt*1024}")
            while issued<min(16,need+LA): ld(issued); issued+=1
            a("s_waitcnt lgkmcnt(0)\ns_barrier")
        else:
            a("s_barrier")
            while issued<min(16,need+LA,2*(e+4)): ld(issued); issued+=1
    a.label(f"{name}_end")
    a.label(f"{name}_last")
    a("s_endpgm")

def gen_fused(a, name, cfg):
    NS=3
    P3V=cfg.get("p3v",1)
    DEF=cfg.get("defer_pq",False)
    LDX=cfg.get("ldx",""); LDW=cfg.get("ldw","")
    STF="sc1"; HLD="sc1"
    OSTF=cfg.get("out_stflags","")
    XB=0; XS=16384; WB=NS*XS; WS_=24576
    a.raw(f".globl {name}\n.p2align 8\n.type {name},@function\n{name}:")
    sWAVE=20; sBR=21; sR=22; sG=23; sT=24; sT2=25
    SX=8; SW=12; SWS=16
    PTS=cfg.get("pts",["entry","p","loop","epi","b1","b2","kv","att","f2","end"])
    TIMER=cfg.get("timer","s_memrealtime")
    class PF0:
        on=cfg.get("prof",False)
        def flush(self,n,srd,vt,wave=0):
            if not self.on: return
            lab=a.newlabel("pf")
            a(f"""
            s_cmp_lg_u32 s{sWV}, {wave}
            s_cbranch_scc1 {lab}
            s_mov_b32 s4, s{sWSP}
            s_mov_b32 s5, s{sWSP+1}
            s_mov_b32 s6, {16<<20}
            s_mov_b32 s7, 0x20000
            s_lshl_b32 s24, s2, 6
            s_add_u32 s24, s24, {14<<20}
            v_lshlrev_b32 v2, 2, v1
            s_mov_b64 exec, 0xffff
            buffer_store_dword v247, v2, s[4:7], s24 offen
            s_mov_b64 exec, -1
            {lab}:
            """)
    pf0=PF0()
    class PF:
        on=pf0.on
        def pt(self,n):
            if self.on and n in PTS:
                a(f"{TIMER} s[100:101]\ns_waitcnt lgkmcnt(0)\nv_writelane_b32 v247, s100, {PTS.index(n)}")
    pf=PF()
    pf.pt("entry")
    a(f"""
    s_cmp_ge_u32 s2, 256
    s_cbranch_scc1 {name}_end
    """)
    if cfg.get("codepf_top"):
        nseg=cfg["codepf_top"]; lab=a.newlabel("cpt"); nwg=cfg.get("codepf_wgs",8)
        a(f"""
        s_load_dwordx4 s[28:31], s[0:1], 0
        s_load_dwordx4 s[32:35], s[0:1], 24
        s_load_dwordx2 s[{sAWO}:{sAWO+1}], s[0:1], 16
        s_load_dwordx2 s[{sBWO}:{sBWO+1}], s[0:1], 40
        s_load_dwordx4 s[{sOUT}:{sOUT+3}], s[0:1], 48
        s_load_dwordx2 s[{sWSP}:{sWSP+1}], s[0:1], 64
        s_cmp_ge_u32 s2, {nwg}
        s_cbranch_scc1 {lab}
        v_lshrrev_b32 v2, 6, v0
        v_and_b32 v1, 63, v0
        v_subrev_u32 v2, 1, v2                     ; wave - 1
        v_cmp_gt_u32 vcc, {nseg}, v2
        s_getpc_b64 s[4:5]
        {lab}_pc:
        s_sub_u32 s4, s4, {lab}_pc-{name}
        s_subb_u32 s5, s5, 0
        v_lshlrev_b32 v12, 13, v2
        v_lshl_add_u32 v12, v1, 7, v12
        v_min_u32 v12, {name}_last-{name}, v12
        v_mov_b32 v13, s5
        s_and_saveexec_b64 s[6:7], vcc
        s_cbranch_execz {lab}_x
        v_add_co_u32 v12, vcc, s4, v12
        s_nop 1
        v_addc_co_u32 v13, vcc, 0, v13, vcc
        global_load_dword v14, v[12:13], off
        {lab}_x:
        s_mov_b64 exec, s[6:7]
        {lab}:
        """)
    if not cfg.get("codepf_top"):
        a(f"""
        s_load_dwordx4 s[28:31], s[0:1], 0
        s_load_dwordx4 s[32:35], s[0:1], 24
        s_load_dwordx2 s[{sAWO}:{sAWO+1}], s[0:1], 16
        s_load_dwordx2 s[{sBWO}:{sBWO+1}], s[0:1], 40
        s_load_dwordx4 s[{sOUT}:{sOUT+3}], s[0:1], 48
        s_load_dwordx2 s[{sWSP}:{sWSP+1}], s[0:1], 64
        """)
    a(f"""
    v_lshrrev_b32 v2, 6, v0
    v_and_b32 v1, 63, v0
    s_and_b32 s{sT}, s2, 7
    v_readfirstlane_b32 s{sWAVE}, v2
    s_lshr_b32 s{sT2}, s2, 3
    s_and_b32 s{sBR}, s{sT}, 1
    s_lshr_b32 s{sT}, s{sT}, 1
    s_mov_b32 s{sP3BR}, s{sBR}
    s_lshl_b32 s{sP3T}, s{sT}, {3 if P3V==2 else 2}
    s_and_b32 s{sP3NS}, s{sT2}, {7 if P3V==2 else 3}
    s_add_u32 s{sP3T}, s{sP3T}, s{sP3NS}
    s_lshr_b32 s{sP3NS}, s{sT2}, {3 if P3V==2 else 2}
    s_and_b32 s{sR}, s{sT}, 1
    s_lshl_b32 s{sR}, s{sR}, 3
    s_lshr_b32 s{sG}, s{sT}, 1
    s_lshl_b32 s{sG}, s{sG}, 2
    s_and_b32 s{sT}, s{sT2}, 7
    s_add_u32 s{sR}, s{sR}, s{sT}
    s_lshr_b32 s{sT}, s{sT2}, 3
    s_add_u32 s{sG}, s{sG}, s{sT}
    s_mov_b32 s{sWV}, s{sWAVE}
    s_mov_b32 s83, 0
    """)
    FAST=cfg.get("faststart",False)
    sE=26; sXB=27; sWBs=38; sL=39; sROT=40; sXC=41; sWC=42
    def loader_setup():
        a(f"""
        s_sub_u32 s{sE}, s{sWAVE}, 4
        v_lshrrev_b32 v2, 3, v1
        v_and_b32 v3, 7, v1
        v_lshrrev_b32 v4, 1, v2
        s_and_b32 s{sT}, s{sE}, 1
        s_lshl_b32 s{sT}, s{sT}, 2
        v_or_b32 v4, s{sT}, v4
        v_xor_b32 v4, v4, v3
        v_lshlrev_b32 v5, 10, v2
        v_lshl_add_u32 v5, v4, 4, v5            ; x voffset
        v_bfe_u32 v4, v1, 4, 1
        v_lshlrev_b32 v4, 2, v4
        v_xor_b32 v4, v4, v3
        v_mul_u32_u24 v6, 3072, v2
        v_lshl_add_u32 v6, v4, 4, v6            ; w voffset
        v_lshlrev_b32 v7, 10, v2
        v_lshl_add_u32 v7, v4, 4, v7
        s_lshl_b32 s{sXB}, s{sR}, 17
        s_lshl_b32 s{sT}, s{sE}, 13
        s_add_u32 s{sXB}, s{sXB}, s{sT}
        s_lshl_b32 s{sWBs}, s{sG}, 7
        s_mul_i32 s{sT}, s{sE}, 24576
        s_add_u32 s{sWBs}, s{sWBs}, s{sT}
        s_lshl_b32 s{sL}, s{sE}, 10
        s_mov_b32 s{sROT}, 0
        """)
        for (src,sh,mask,mul) in cfg.get("k1_rot",[["R",0,3,2],["G",0,3,1]]):
            r={"R":sR,"G":sG}[src]
            a(f"s_lshr_b32 s{sT}, s{r}, {sh}\ns_and_b32 s{sT}, s{sT}, {mask}\ns_mul_i32 s{sT}, s{sT}, {mul}\ns_add_u32 s{sROT}, s{sROT}, s{sT}")
    if FAST: loader_setup()
    a(f"""
    s_mov_b32 s{SX+2}, 0x200000
    s_mov_b32 s{SX+3}, 0x20000
    s_mov_b32 s{SW+2}, 0x180000
    s_mov_b32 s{SW+3}, 0x20000
    s_mov_b32 s{SWS+2}, {WS_USED}
    s_mov_b32 s{SWS+3}, 0x20000
    s_cmp_eq_u32 s{sBR}, 0
    s_waitcnt lgkmcnt(0)
    s_cselect_b32 s{SX}, s28, s32
    s_cselect_b32 s{SX+1}, s29, s33
    s_cselect_b32 s{SW}, s30, s34
    s_cselect_b32 s{SW+1}, s31, s35
    s_mov_b32 s{SWS}, s{sWSP}
    s_mov_b32 s{SWS+1}, s{sWSP+1}
    """)
    def nonce_load():
        a(f"""
        s_mov_b32 s4, {NONCE}
        v_mov_b32 v30, 0
        buffer_load_dword v31, v30, s[{SWS}:{SWS+3}], s4 offen sc1
        """)
    if FAST:
        a(f"s_cmp_lt_u32 s{sWAVE}, 4\ns_cbranch_scc1 {name}_compute")
        mark_entry_end=len(a.lines)
        a.label(f"{name}_compute")
        nonce_load()
    else:
        nonce_load()
        a(f"s_cmp_ge_u32 s{sWAVE}, 4\ns_cbranch_scc1 {name}_loader")
    sTM=26; sFN=27
    vXA=4; vWA=8
    ACC=32
    def acc(tt,sec): return ACC+(tt*3+sec)*16
    FR=[128,148]
    def xf(s,tt): return FR[s]+4*tt
    def wf(s,sec): return FR[s]+8+4*sec
    if cfg.get("pretouch"):
        lab=a.newlabel("ptc")
        a(f"""
        s_cmp_lg_u32 s{sWAVE}, 2
        s_cbranch_scc1 {lab}
        v_and_b32 v12, 7, v1
        v_lshlrev_b32 v12, 21, v12
        v_add_u32 v12, {0x1ffc00 if False else 0x100000}, v12
        v_min_u32 v12, {WS_USED-256}, v12
        buffer_load_dword v14, v12, s[{SWS}:{SWS+3}], 0 offen
        s_mov_b32 s44, s{sOUT}
        s_mov_b32 s45, s{sOUT+1}
        s_mov_b32 s46, 0x400000
        s_mov_b32 s47, 0x20000
        v_and_b32 v12, 1, v1
        v_lshlrev_b32 v12, 21, v12
        buffer_load_dword v15, v12, s[44:47], 0 offen
        s_cmp_eq_u32 s{sP3BR}, 0
        s_cselect_b32 s44, s{sAWO}, s{sBWO}
        s_cselect_b32 s45, s{sAWO+1}, s{sBWO+1}
        s_mov_b32 s46, 0x80000
        v_mov_b32 v12, 0
        buffer_load_dword v16, v12, s[44:47], 0 offen
        {lab}:
        """)
    if cfg.get("codepf"):
        nseg=cfg["codepf"]
        lab=a.newlabel("cpf")
        a(f"""
        s_cmp_lg_u32 s{sWAVE}, 1
        s_cbranch_scc1 {lab}
        s_lshr_b32 s4, s2, 3
        s_cmp_ge_u32 s4, {nseg}
        s_cbranch_scc1 {lab}
        s_lshl_b32 s6, s4, 13
        s_getpc_b64 s[4:5]
        {lab}_pc:
        s_sub_u32 s4, s4, {lab}_pc-{name}
        s_subb_u32 s5, s5, 0
        v_lshlrev_b32 v12, 7, v1
        v_add_u32 v12, s6, v12
        v_min_u32 v12, {name}_last-{name}, v12
        v_mov_b32 v13, s5
        v_add_co_u32 v12, vcc, s4, v12
        s_nop 1
        v_addc_co_u32 v13, vcc, 0, v13, vcc
        global_load_dword v14, v[12:13], off
        {lab}:
        """)
    a(f"""
    s_and_b32 s{sTM}, s{sWAVE}, 1
    s_lshr_b32 s{sFN}, s{sWAVE}, 1
    v_lshrrev_b32 v2, 5, v1                 ; hf
    v_and_b32 v3, 31, v1                    ; t31
    v_lshrrev_b32 v9, 1, v3
    v_and_b32 v9, 7, v9                     ; g
    s_lshl_b32 s{sT}, s{sTM}, 13
    v_lshlrev_b32 v10, 7, v3
    v_add_u32 v10, s{sT}, v10
    """)
    for ks in range(4):
        a(f"v_or_b32 v11, {2*ks}, v2\nv_xor_b32 v11, v11, v9\nv_lshl_add_u32 v{vXA+ks}, v11, 4, v10")
    a(f"""
    v_bfe_u32 v10, v1, 2, 2
    v_lshlrev_b32 v10, 7, v10
    v_lshl_add_u32 v10, v2, 10, v10
    v_bfe_u32 v11, v1, 4, 1
    v_lshlrev_b32 v11, 1, v11
    v_bfe_u32 v12, v1, 1, 1
    v_or_b32 v11, v11, v12
    s_lshl_b32 s{sT}, s{sFN}, 2
    v_or_b32 v11, s{sT}, v11
    v_bfe_u32 v12, v1, 3, 1
    v_lshlrev_b32 v12, 2, v12
    v_xor_b32 v11, v11, v12
    v_lshl_add_u32 v10, v11, 4, v10
    v_and_b32 v12, 1, v1
    v_lshl_add_u32 v10, v12, 3, v10
    v_add_u32 v{vWA}, {WB}, v10
    """)
    for r in range(ACC,ACC+96): a(f"v_mov_b32 v{r}, 0")
    a(f"""
    s_mov_b32 s58, {(-(NS-1)*XS)&0xffffffff:#x}
    s_mov_b32 s59, {XS}
    s_mov_b32 s60, {(-(NS-1)*WS_)&0xffffffff:#x}
    s_mov_b32 s61, {WS_}
    """)
    def reads(s, ks):
        L=[]
        L.append(f"ds_read_b128 {vr(xf(s,0),4)}, v{vXA+ks}")
        L.append(f"ds_read_b64_tr_b16 {vr(wf(s,0),2)}, v{vWA} offset:{ks*2048}")
        L.append(f"ds_read_b64_tr_b16 {vr(wf(s,0)+2,2)}, v{vWA} offset:{ks*2048+512}")
        L.append(f"ds_read_b128 {vr(xf(s,1),4)}, v{vXA+ks} offset:4096")
        for sec in (1,2):
            L.append(f"ds_read_b64_tr_b16 {vr(wf(s,sec),2)}, v{vWA} offset:{sec*8192+ks*2048}")
            L.append(f"ds_read_b64_tr_b16 {vr(wf(s,sec)+2,2)}, v{vWA} offset:{sec*8192+ks*2048+512}")
        return L
    def mfmas(s, br):
        L=[]
        order=[(sec,tt) for sec in range(3) for tt in range(2)]
        if cfg.get("mf_order")=="x": order=[(sec,tt) for tt in range(2) for sec in range(3)]
        for sec,tt in order:
            for _one in (0,):
                featrow = (sec==0) or (sec==1 and br==1)
                A_,B_ = (wf(s,sec),xf(s,tt)) if featrow else (xf(s,tt),wf(s,sec))
                if cfg.get("mf16test"):
                    o=acc(tt,sec)+8*s
                    L.append(f"v_mfma_f32_16x16x32_bf16 {vr(o,4)}, {vr(A_,4)}, {vr(B_,4)}, {vr(o,4)}\nv_mfma_f32_16x16x32_bf16 {vr(o+4,4)}, {vr(B_,4)}, {vr(A_,4)}, {vr(o+4,4)}")
                else:
                    L.append(f"v_mfma_f32_32x32x16_bf16 {vr(acc(tt,sec),16)}, {vr(A_,4)}, {vr(B_,4)}, {vr(acc(tt,sec),16)}")
        return L
    def step(s, br, rd):
        M=mfmas(s,br)
        if rd:
            a(M[0]); a(rd[0]); a(rd[1]); a(rd[2])
            a(M[1]); a(rd[3]); a(rd[4]); a(rd[5])
            a(M[2]); a(rd[6]); a(rd[7])
            a(M[3]); a(M[4]); a(M[5])
        else:
            for m in M: a(m)
    sCNT=38; sSTG=39; sDX=40; sDW=41
    for br in (0,1):
        bn="AB"[br]
        if br==0: a(f"s_cmp_eq_u32 s{sBR}, 1\ns_cbranch_scc1 {name}_cB")
        else: a.label(f"{name}_cB")
        a(f"s_mov_b32 s{sCNT}, 0\ns_mov_b32 s{sSTG}, 0\ns_waitcnt vmcnt(0)\nv_readfirstlane_b32 s{sN}, v31\ns_nop 3\ns_add_u32 s{sN}, s{sN}, 1")
        a("s_barrier")
        pf.pt("p")
        for l in reads(0,0): a(l)
        a.label(f"{name}_loop{bn}")
        for ks in range(3):
            a("s_waitcnt lgkmcnt(0)")
            step(ks&1, br, reads((ks+1)&1, ks+1))
        a(f"""
        s_add_u32 s{sSTG}, s{sSTG}, 1
        s_cmp_eq_u32 s{sSTG}, {NS}
        s_cselect_b32 s{sDX}, s58, s59
        s_cselect_b32 s{sDW}, s60, s61
        s_cselect_b32 s{sSTG}, 0, s{sSTG}
        s_waitcnt lgkmcnt(0)
        s_barrier
        """)
        if cfg.get("chunkstamps"):
            for c in range(7):
                lab=a.newlabel("cs")
                a(f"s_cmp_lg_u32 s{sCNT}, {c}\ns_cbranch_scc1 {lab}")
                pf.pt(f"c{c}")
                a.label(lab)
        for ks in range(4): a(f"v_add_u32 v{vXA+ks}, s{sDX}, v{vXA+ks}")
        a(f"v_add_u32 v{vWA}, s{sDW}, v{vWA}")
        step(1, br, reads(0,0))
        a(f"""
        s_add_u32 s{sCNT}, s{sCNT}, 1
        s_cmp_lt_u32 s{sCNT}, 7
        s_cbranch_scc1 {name}_loop{bn}
        """)
        sOFF=42; sH=43; sTB=44
        def epi_addr():
            a(f"""
            s_lshl_b32 s{sH}, s{sG}, 2
            s_lshl_b32 s{sT}, s{sFN}, 1
            s_add_u32 s{sH}, s{sH}, s{sT}
            s_lshl_b32 s{sTB}, s{sR}, 2
            s_lshl_b32 s{sT}, s{sTM}, 1
            s_add_u32 s{sTB}, s{sTB}, s{sT}
            s_lshl_b32 s{sOFF}, s{sH}, 16
            s_lshl_b32 s{sT}, s{sTB}, 10
            s_add_u32 s{sOFF}, s{sOFF}, s{sT}
            v_lshlrev_b32 v9, 4, v1
            """)
        T0=128
        if br==1 and cfg.get("lastchunk"):
            epi_addr()
            a(f"""
            s_mov_b32 s46, {f2u(CSCALE):#x}
            s_mov_b32 s47, {f2u(CSCALE):#x}
            v_bfe_u32 v10, v1, 4, 1
            v_lshlrev_b32 v10, 16, v10
            v_lshrrev_b32 v11, 5, v1
            v_lshl_add_u32 v10, v11, 8, v10
            v_and_b32 v11, 15, v1
            v_lshl_add_u32 v10, v11, 4, v10
            """)
            XL={0:[xf(0,0),xf(0,1)]}; WL={(0,sec):wf(0,sec) for sec in range(3)}
            reg=168
            for ks in range(1,4): XL[ks]=[reg,reg+4]; reg+=8
            for sec in (1,2,0):
                for ks in range(1,4): WL[(ks,sec)]=reg; reg+=4
            assert reg<=232
            q=[]; st={"done":0}
            def rx(ks):
                a(f"ds_read_b128 {vr(XL[ks][0],4)}, v{vXA+ks}"); q.append(("x",ks))
                a(f"ds_read_b128 {vr(XL[ks][1],4)}, v{vXA+ks} offset:4096"); q.append(("x",ks))
            def rw(ks,sec):
                for t in range(2):
                    a(f"ds_read_b64_tr_b16 {vr(WL[(ks,sec)]+2*t,2)}, v{vWA} offset:{sec*8192+ks*2048+t*512}"); q.append(("w",ks,sec))
            def wait_for(tags):
                idx=[i for i,x in enumerate(q) if x in tags]
                if not idx or max(idx)<st["done"]: return
                n=len(q)-1-max(idx); assert n<=15 and len(q)-st["done"]<=15,(n,len(q),st)
                a(f"s_waitcnt lgkmcnt({n})"); st["done"]=max(idx)+1
            def mm(sec,ks,tt):
                featrow = sec in (0,1)
                A_,B_ = (WL[(ks,sec)],XL[ks][tt]) if featrow else (XL[ks][tt],WL[(ks,sec)])
                a(f"v_mfma_f32_32x32x16_bf16 {vr(acc(tt,sec),16)}, {vr(A_,4)}, {vr(B_,4)}, {vr(acc(tt,sec),16)}")
            TK=128+8
            TK=148
            def kops():
                L=[]
                for tt in range(2):
                    b=acc(tt,1); tmp=TK+8*tt
                    for i in range(8): L.append(f"v_cvt_pk_bf16_f32 v{tmp+i}, v{b+2*i}, v{b+2*i+1}")
                    L.append(f"s_add_u32 s{sT}, s{sOFF}, {KF+tt*1024}\nbuffer_store_dwordx4 {vr(tmp,4)}, v9, s[{SWS}:{SWS+3}], s{sT} offen {STF}")
                    L.append(f"s_add_u32 s{sT2}, s{sOFF}, {KF+tt*1024+65536}\nbuffer_store_dwordx4 {vr(tmp+4,4)}, v9, s[{SWS}:{SWS+3}], s{sT2} offen {STF}")
                return L
            TV=232
            def vops():
                L=[]
                for tt in range(2):
                    b=acc(tt,2); tmp=[232,148][tt]
                    for i in range(8): L.append(f"v_cvt_pk_bf16_f32 v{tmp+i}, v{b+2*i}, v{b+2*i+1}")
                    L.append(f"s_add_u32 s{sT}, s{sOFF}, {VF+tt*1024}\nbuffer_store_dwordx4 {vr(tmp,4)}, v10, s[{SWS}:{SWS+3}], s{sT} offen {STF}")
                    L.append(f"buffer_store_dwordx4 {vr(tmp+4,4)}, v10, s[{SWS}:{SWS+3}], s{sT} offen offset:512 {STF}")
                return L
            a("s_waitcnt lgkmcnt(0)")
            rx(1); rw(1,1); rx(2); rw(2,1)
            mm(1,0,0); mm(1,0,1)
            rx(3); rw(3,1)
            wait_for([("x",1),("w",1,1)]); mm(1,1,0); rw(1,2); mm(1,1,1)
            wait_for([("x",2),("w",2,1)]); mm(1,2,0); rw(2,2); mm(1,2,1)
            wait_for([("x",3),("w",3,1)]); mm(1,3,0); rw(3,2); mm(1,3,1)
            mm(2,0,0); rw(1,0); mm(2,0,1); rw(2,0)
            wait_for([("w",1,2)]); mm(2,1,0); rw(3,0); mm(2,1,1)
            a("s_nop 3")
            K=kops()
            for l in K[0:5]: a(l)
            wait_for([("w",2,2)]); mm(2,2,0)
            for l in K[5:10]: a(l)
            mm(2,2,1)
            for l in K[10:15]: a(l)
            wait_for([("w",3,2)]); mm(2,3,0)
            for l in K[15:20]: a(l)
            mm(2,3,1)
            mm(0,0,0); mm(0,0,1)
            wait_for([("w",1,0)]); mm(0,1,0); mm(0,1,1)
            a("s_nop 7")
            V=vops()
            for l in V[0:5]: a(l)
            wait_for([("w",2,0)]); mm(0,2,0)
            for l in V[5:10]: a(l)
            mm(0,2,1)
            for l in V[10:15]: a(l)
            wait_for([("w",3,0)]); mm(0,3,0)
            for l in V[15:20]: a(l)
            mm(0,3,1)
            pf.pt("loop")
            a("s_nop 15")
            tmp=168
            for tt in range(2):
                b=acc(tt,0)
                for i in range(8): a(f"v_pk_mul_f32 {vr(b+2*i,2)}, {vr(b+2*i,2)}, s[46:47]")
                for i in range(8): a(f"v_cvt_pk_bf16_f32 v{tmp+i}, v{b+2*i}, v{b+2*i+1}")
                a(f"s_add_u32 s{sT}, s{sOFF}, {QF+tt*1024}")
                a(f"buffer_store_dwordx4 {vr(tmp,4)}, v9, s[{SWS}:{SWS+3}], s{sT} offen {STF}")
                a(f"s_add_u32 s{sT2}, s{sOFF}, {QF+tt*1024+65536}")
                a(f"buffer_store_dwordx4 {vr(tmp+4,4)}, v9, s[{SWS}:{SWS+3}], s{sT2} offen {STF}")
                tmp+=8
            a(f"s_branch {name}_p1done")
            continue
        for ks in range(3):
            a("s_waitcnt lgkmcnt(0)")
            step(ks&1, br, reads((ks+1)&1, ks+1))
        a("s_waitcnt lgkmcnt(0)")
        step(1, br, [])
        pf.pt("loop")
        epi_addr()
        if br==1:
            a(f"s_mov_b32 s46, {f2u(CSCALE):#x}\ns_mov_b32 s47, {f2u(CSCALE):#x}")
            a(f"""
            v_bfe_u32 v10, v1, 4, 1
            v_lshlrev_b32 v10, 16, v10
            v_lshrrev_b32 v11, 5, v1
            v_lshl_add_u32 v10, v11, 8, v10
            v_and_b32 v11, 15, v1
            v_lshl_add_u32 v10, v11, 4, v10
            s_nop 7
            """)
            tmp=T0
            for tt in range(2):
                b=acc(tt,1)
                for i in range(8): a(f"v_cvt_pk_bf16_f32 v{tmp+i}, v{b+2*i}, v{b+2*i+1}")
                a(f"s_add_u32 s{sT}, s{sOFF}, {KF+tt*1024}")
                a(f"buffer_store_dwordx4 {vr(tmp,4)}, v9, s[{SWS}:{SWS+3}], s{sT} offen {STF}")
                a(f"s_add_u32 s{sT2}, s{sOFF}, {KF+tt*1024+65536}")
                a(f"buffer_store_dwordx4 {vr(tmp+4,4)}, v9, s[{SWS}:{SWS+3}], s{sT2} offen {STF}")
                tmp+=8
            for tt in range(2):
                b=acc(tt,2)
                for i in range(8): a(f"v_cvt_pk_bf16_f32 v{tmp+i}, v{b+2*i}, v{b+2*i+1}")
                a(f"s_add_u32 s{sT}, s{sOFF}, {VF+tt*1024}")
                a(f"buffer_store_dwordx4 {vr(tmp,4)}, v10, s[{SWS}:{SWS+3}], s{sT} offen {STF}")
                a(f"buffer_store_dwordx4 {vr(tmp+4,4)}, v10, s[{SWS}:{SWS+3}], s{sT} offen offset:512 {STF}")
                tmp+=8
            for tt in range(2):
                b=acc(tt,0)
                for i in range(8): a(f"v_pk_mul_f32 {vr(b+2*i,2)}, {vr(b+2*i,2)}, s[46:47]")
                for i in range(8): a(f"v_cvt_pk_bf16_f32 v{tmp+i}, v{b+2*i}, v{b+2*i+1}")
                a(f"s_add_u32 s{sT}, s{sOFF}, {QF+tt*1024}")
                a(f"buffer_store_dwordx4 {vr(tmp,4)}, v9, s[{SWS}:{SWS+3}], s{sT} offen {STF}")
                a(f"s_add_u32 s{sT2}, s{sOFF}, {QF+tt*1024+65536}")
                a(f"buffer_store_dwordx4 {vr(tmp+4,4)}, v9, s[{SWS}:{SWS+3}], s{sT2} offen {STF}")
                tmp+=8
            a(f"s_branch {name}_p1done")
        else:
            a(f"""
            s_mov_b32 s46, {f2u(LOG2E):#x}
            s_mov_b32 s47, {f2u(LOG2E):#x}
            s_mov_b32 s48, 1.0
            s_mov_b32 s49, 1.0
            s_mov_b32 s50, {f2u(1e-6):#x}
            s_mov_b32 s51, {f2u(1e-6):#x}
            s_mov_b32 s52, 0x0000ffff
            s_mov_b32 s53, 0x0000ffff
            v_mov_b32 v20, 0x3f803f80
            v_mov_b32 v21, 0x3f803f80
            v_mov_b32 v22, 0x3f803f80
            v_mov_b32 v23, 0x3f803f80
            s_nop 4
            """)
            U=168
            def phi(b):
                for i in range(8): a(f"v_pk_mul_f32 {vr(U+2*i,2)}, {vr(b+2*i,2)}, s[46:47]")
                for i in range(16): a(f"v_exp_f32 v{U+i}, v{U+i} clamp")
                for i in range(8): a(f"v_pk_add_f32 {vr(b+2*i,2)}, {vr(b+2*i,2)}, s[48:49]")
                for i in range(16): a(f"v_max_f32 v{b+i}, v{b+i}, v{U+i}")
                for i in range(8): a(f"v_pk_add_f32 {vr(b+2*i,2)}, {vr(b+2*i,2)}, s[50:51]")
            PK=[128,136]; VV=[144,152]; D=184; D2=200
            def qpart(tt,tmp):
                b=acc(tt,0)
                phi(b)
                for i in range(8): a(f"v_cvt_pk_bf16_f32 v{tmp+i}, v{b+2*i}, v{b+2*i+1}")
                if DEF: return
                a(f"s_add_u32 s{sT}, s{sOFF}, {PQ+tt*1024}")
                a(f"buffer_store_dwordx4 {vr(tmp,4)}, v9, s[{SWS}:{SWS+3}], s{sT} offen {STF}")
                a(f"s_add_u32 s{sT2}, s{sOFF}, {PQ+tt*1024+65536}")
                a(f"buffer_store_dwordx4 {vr(tmp+4,4)}, v9, s[{SWS}:{SWS+3}], s{sT2} offen {STF}")
            QF1=cfg.get("a_qfirst",False)
            if QF1: qpart(0,216); qpart(1,224)
            for tt in range(2):
                b=acc(tt,2)
                for i in range(8): a(f"v_cvt_pk_bf16_f32 v{VV[tt]+i}, v{b+2*i}, v{b+2*i+1}")
            for tt in range(2):
                b=acc(tt,1)
                phi(b)
                for i in range(8): a(f"v_cvt_pk_bf16_f32 v{PK[tt]+i}, v{b+2*i}, v{b+2*i+1}")
                a("s_nop 1")
                for m in range(2):
                    c1 = "0" if (tt==0 and m==0) else vr(D,16)
                    c2 = "0" if (tt==0 and m==0) else vr(D2,16)
                    a(f"v_mfma_f32_32x32x16_bf16 {vr(D,16)}, {vr(PK[tt]+4*m,4)}, {vr(VV[tt]+4*m,4)}, {c1}")
                    a(f"v_mfma_f32_32x32x16_bf16 {vr(D2,16)}, {vr(PK[tt]+4*m,4)}, v[20:23], {c2}")
            def kvp_addr():
                a(f"""
                v_and_b32 v11, 31, v1
                v_lshrrev_b32 v12, 5, v1
                v_and_b32 v13, 15, v1
                v_lshlrev_b32 v13, 5, v13
                v_lshl_add_u32 v13, v12, 9, v13
                v_lshlrev_b32 v14, 5, v12
                v_add_u32 v14, 1024, v14
                v_mov_b32 v15, 0x40000000
                v_cmp_eq_u32 s[54:55], 16, v11
                v_cmp_eq_u32 s[56:57], 0, v11
                s_nop 1
                v_cndmask_b32_e64 v16, v15, v14, s[54:55]
                v_cndmask_b32_e64 v17, v15, v14, s[56:57]
                v_cndmask_b32_e64 v16, v16, v13, s[52:53]
                v_cndmask_b32_e64 v17, v13, v17, s[52:53]
                """)
            if QF1:
                kvp_addr()
                a("s_nop 1")
            else:
                a("s_nop 15")
            for r in range(8):  a(f"v_cndmask_b32_e64 v{D+r}, v{D2+r}, v{D+r}, s[52:53]")
            for r in range(8,16): a(f"v_cndmask_b32_e64 v{D+r}, v{D+r}, v{D2+r}, s[52:53]")
            EX = 0
            a(f"""
            s_lshl_b32 s{sT}, s{sFN}, 12
            s_add_u32 s{sT}, s{sT}, {EX}
            v_add_u32 v10, s{sT}, v9
            s_cmp_eq_u32 s{sTM}, 0
            s_cbranch_scc1 {name}_Ard
            """)
            for q in range(4): a(f"ds_write_b128 v10, {vr(D+4*q,4)} offset:{q*1024}")
            a(f"s_waitcnt lgkmcnt(0)")
            a.label(f"{name}_Ard")
            a("s_barrier")
            a(f"s_cmp_lg_u32 s{sTM}, 0\ns_cbranch_scc1 {name}_Aq")
            for q in range(4): a(f"ds_read_b128 {vr(D2+4*q,4)}, v10 offset:{q*1024}")
            if not QF1: kvp_addr()
            a(f"""
            s_lshl_b32 s{sT}, s{sH}, 4
            s_add_u32 s{sT}, s{sT}, s{sR}
            s_mul_i32 s{sT}, s{sT}, 1088
            s_add_u32 s{sT}, s{sT}, {KVP}
            s_add_u32 s{sT2}, s{sT}, {16*1088}
            s_waitcnt lgkmcnt(0)
            """)
            for i in range(8): a(f"v_pk_add_f32 {vr(D+2*i,2)}, {vr(D+2*i,2)}, {vr(D2+2*i,2)}")
            a(f"""
            buffer_store_dwordx4 {vr(D,4)}, v16, s[{SWS}:{SWS+3}], s{sT} offen {STF}
            buffer_store_dwordx4 {vr(D+4,4)}, v16, s[{SWS}:{SWS+3}], s{sT} offen offset:16 {STF}
            buffer_store_dwordx4 {vr(D+8,4)}, v17, s[{SWS}:{SWS+3}], s{sT2} offen {STF}
            buffer_store_dwordx4 {vr(D+12,4)}, v17, s[{SWS}:{SWS+3}], s{sT2} offen offset:16 {STF}
            """)
            a.label(f"{name}_Aq")
            if not QF1: qpart(0,216); qpart(1,224 if DEF else 128)
            if DEF:
                a(f"""
                s_mov_b32 s82, s{sOFF}
                s_lshl_b32 s{sT}, s{sG}, 1
                s_add_u32 s{sT}, s{sT}, s{sFN}
                s_mul_i32 s{sT}, s{sT}, {FPSTR}
                s_lshl_b32 s{sT2}, s{sR}, 1
                s_add_u32 s{sT2}, s{sT2}, s{sTM}
                s_lshl_b32 s{sT2}, s{sT2}, 7
                s_add_u32 s{sT}, s{sT}, s{sT2}
                s_add_u32 s84, s{sT}, {FP}
                s_mov_b32 s83, 1
                """)
            a(f"s_branch {name}_p1done")
    mark_loader_start=len(a.lines)
    a.label(f"{name}_loader")
    if not FAST: loader_setup()
    def issue(c, part=None):
        st=c%NS
        L=[]
        hdr=f"""
        s_add_u32 s{sT}, s{sROT}, {c}
        s_and_b32 s{sT}, s{sT}, 7
        s_lshl_b32 s{sXC}, s{sT}, 7
        s_add_u32 s{sXC}, s{sXC}, s{sXB}
        s_mul_i32 s{sWC}, s{sT}, 196608
        s_add_u32 s{sWC}, s{sWC}, s{sWBs}
        """
        for i in range(4):
            L.append(f"s_add_u32 m0, s{sL}, {XB+st*XS+i*4096}\ns_add_u32 s{sT}, s{sXC}, {i*32768}\nbuffer_load_dwordx4 v5, s[{SX}:{SX+3}], s{sT} offen {LDX} lds")
        for jj in range(2):
            for sec in range(3):
                L.append(f"s_add_u32 m0, s{sL}, {WB+st*WS_+sec*8192+jj*4096}\ns_add_u32 s{sT}, s{sWC}, {jj*4*24576+sec*1024}\nbuffer_load_dwordx4 v6, s[{SW}:{SW+3}], s{sT} offen {LDW} lds")
        lo,hi = part if part else (0,10)
        if lo==0: a(hdr)
        for l in L[lo:hi]: a(l)
    k0=cfg.get("pro_k",5)
    issue(0)
    if FAST: nonce_load()
    issue(1,(0,k0))
    a(f"s_waitcnt vmcnt({k0})\nv_readfirstlane_b32 s{sN}, v31\ns_nop 3\ns_add_u32 s{sN}, s{sN}, 1\ns_barrier")
    if k0<10: issue(1,(k0,10))
    issue(2)
    for c in range(7):
        issued=min(8,c+NS)
        rem=10*(issued-(c+2))
        if c==6: rem=16 if P3V==1 else 17
        a(f"s_waitcnt vmcnt({rem})\ns_barrier")
        if c+NS<8: issue(c+NS)
        if c==5:
            a(f"""
            s_cmp_eq_u32 s{sP3BR}, 0
            s_cselect_b32 s28, s{sAWO}, s{sBWO}
            s_cselect_b32 s29, s{sAWO+1}, s{sBWO+1}
            s_mov_b32 s30, 0x80000
            s_mov_b32 s31, 0x20000
            s_lshl_b32 s{sXC}, s{sP3NS}, {7 if P3V==1 else 8}
            s_lshl_b32 s{sT}, s{sE}, 13
            s_add_u32 s{sXC}, s{sXC}, s{sT}
            """)
            if P3V==1 and cfg.get("p3rot",0):
                a(f"s_lshl_b32 s{sXC}, s{sP3NS}, 7\ns_mul_i32 s{sWC}, s{sP3NS}, {2*cfg['p3rot']}\ns_add_u32 s{sWC}, s{sWC}, s{sE}")
                for u in range(16):
                    a(f"s_add_u32 m0, s{sL}, {WOL+u*4096}")
                    a(f"s_add_u32 s{sT}, s{sWC}, {4*u}\ns_and_b32 s{sT}, s{sT}, 63\ns_lshl_b32 s{sT}, s{sT}, 13\ns_add_u32 s{sT}, s{sT}, s{sXC}")
                    a(f"buffer_load_dwordx4 v7, s[28:31], s{sT} offen lds")
            else:
              for u in range(16):
                a(f"s_add_u32 m0, s{sL}, {WOL+u*4096}")
                a(f"s_add_u32 s{sT}, s{sXC}, {u*32768+(0 if P3V==1 else 128)}")
                a(f"buffer_load_dwordx4 v7, s[28:31], s{sT} offen lds")
            if P3V==2:
                a(f"""
                v_and_b32 v8, 15, v1
                s_lshl_b32 s{sT}, s{sE}, 4
                v_add_u32 v8, s{sT}, v8
                v_lshlrev_b32 v8, 10, v8
                s_bfe_u32 s{sT}, s2, 0x30003
                s_lshl_b32 s{sT}, s{sT}, 16
                s_lshl_b32 s{sXC}, s{sP3NS}, 8
                s_add_u32 s{sT}, s{sT}, s{sXC}
                buffer_load_dword v9, v8, s[28:31], s{sT} offen
                """)
    a(f"s_cmp_eq_u32 s{sBR}, 1\ns_cbranch_scc1 {name}_p1bar\ns_barrier\ns_branch {name}_p1bar")
    if FAST:
        blk=a.lines[mark_loader_start:]
        del a.lines[mark_loader_start:]
        a.lines[mark_entry_end:mark_entry_end]=blk
    a.label(f"{name}_p1done")
    pf.pt("epi")
    a("s_waitcnt vmcnt(0)")
    a.label(f"{name}_p1bar")
    a("s_barrier")
    R=K2R
    a(f"""
    s_cmp_lg_u32 s{sWV}, 0
    s_cbranch_scc1 {name}_nf1
    s_lshl_b32 s{sT}, s{sBR}, 3
    s_add_u32 s{sT}, s{sT}, s{sG}
    s_mul_i32 s{sT}, s{sT}, {FSTR}
    s_lshl_b32 s{sT2}, s{sR}, 7
    s_add_u32 s{sT}, s{sT}, s{sT2}
    s_add_u32 s{sT}, s{sT}, {F1}
    v_mov_b32 v12, 0
    v_mov_b32 v13, s{sN}
    buffer_store_dword v13, v12, s[{SWS}:{SWS+3}], s{sT} offen sc1
    {name}_nf1:
    """)
    pf.pt("b1")
    a(f"""
    s_mov_b32 s{R.sWAVE}, s{sWV}
    s_bfe_u32 s{R.sRB}, s2, 0x30003
    s_and_b32 s{R.sH}, s2, 7
    s_lshr_b32 s{R.sT}, s2, 6
    s_lshl_b32 s{R.sT}, s{R.sT}, 3
    s_add_u32 s{R.sH}, s{R.sH}, s{R.sT}
    v_lshlrev_b32 v3, 4, v1
    s_lshl_b32 s{R.sQB}, s{R.sRB}, 3
    s_add_u32 s{R.sQB}, s{R.sQB}, s{R.sWAVE}
    s_mov_b32 s{R.SWS}, s{sWSP}
    s_mov_b32 s{R.SWS+1}, s{sWSP+1}
    s_mov_b32 s{R.SWS+2}, {WS_USED}
    s_mov_b32 s{R.SWS+3}, 0x20000
    """)
    k2_setup_consts(a,R)
    sFA=12; sNEED=14
    a(f"""
    v_lshlrev_b32 v2, 7, v1
    s_lshr_b32 s{sFA}, s{R.sH}, 2
    s_mul_i32 s{sFA}, s{sFA}, {FSTR}
    s_add_u32 s13, s{sFA}, {F1}               ; A row
    s_add_u32 s{sFA}, s{sFA}, {F1+8*FSTR}     ; B row
    """)
    if cfg.get("wavepoll"):
        a(f"""
        s_lshl_b32 s{R.sT}, s{R.sRB}, 1
        s_lshr_b32 s{R.sT2}, s{sWV}, 1
        s_add_u32 s{R.sT2}, s{R.sT2}, s{R.sT}
        s_sub_i32 s{R.sT2}, s{R.sT2}, 2
        s_max_i32 s{R.sT2}, s{R.sT2}, 0
        s_lshl_b32 s{sNEED}, 1, s{R.sT2}
        s_lshr_b32 s{R.sT2}, s{sWV}, 2
        s_add_u32 s{R.sT2}, s{R.sT2}, s{R.sT}
        s_lshl_b32 s{R.sT2}, 1, s{R.sT2}
        s_or_b32 s{sNEED}, s{sNEED}, s{R.sT2}
        s_mov_b32 s{sNEED+1}, 0
        """)
        poll(a,"pb",R.SWS,sFA,sNEED,sNEED+1,12,2,sleep=cfg.get("sleep1",4))
    else:
        a(f"""
        s_cmp_lg_u32 s{sWV}, 0
        s_cbranch_scc1 {name}_np2
        s_lshl_b32 s{R.sT}, s{R.sRB}, 1
        s_lshl_b32 s{sNEED}, 15, s{R.sT}
        s_lshr_b32 s{sNEED}, s{sNEED}, 2          ; (0b1111 << 2rb) >> 2
        s_mov_b32 s{sNEED+1}, 0
        """)
        poll(a,"pb",R.SWS,sFA,sNEED,sNEED+1,12,2,sleep=cfg.get("sleep1",4))
        a.label(f"{name}_np2")
        a("s_waitcnt lgkmcnt(0)\ns_barrier")
    pf.pt("b2")
    k2_load_b(a,R,HLD)
    if DEF:
        a(f"s_cmp_eq_u32 s83, 0\ns_cbranch_scc1 {name}_nopq")
        for tt in range(2):
            a(f"s_add_u32 s{R.sT}, s82, {PQ+tt*1024}\nbuffer_store_dwordx4 {vr(216+8*tt,4)}, v3, s[{R.SWS}:{R.SWS+3}], s{R.sT} offen {STF}")
            a(f"s_add_u32 s{R.sT2}, s82, {PQ+tt*1024+65536}\nbuffer_store_dwordx4 {vr(220+8*tt,4)}, v3, s[{R.SWS}:{R.SWS+3}], s{R.sT2} offen {STF}")
        a(f"s_waitcnt vmcnt(4)\ns_branch {name}_pqd\n{name}_nopq:\ns_waitcnt vmcnt(0)\n{name}_pqd:\ns_barrier")
    else:
        a("s_waitcnt vmcnt(0) lgkmcnt(0)\ns_barrier")
    pf.pt("kv")
    if cfg.get("prio"):
        a(f"s_cmp_ge_u32 s{sWV}, 4\ns_cbranch_scc0 {name}_nprio\ns_setprio 1\n{name}_nprio:")
    def h_pre():
        a(f"s_mov_b64 exec, 0xffff\nbuffer_load_dword v13, v2, s[{R.SWS}:{R.SWS+3}], s13 offen sc1\ns_mov_b64 exec, -1")
    def h_post0():
        pf.pt("post0")
        D=a.newlabel("pa")
        a(f"""
        s_mov_b32 s{sNEED}, 0xffff
        s_mov_b32 s{sNEED+1}, 0
        s_waitcnt vmcnt(0)
        v_cmp_eq_u32 vcc, s{sN}, v13
        s_and_b64 vcc, vcc, s[{sNEED}:{sNEED+1}]
        s_cmp_eq_u64 vcc, s[{sNEED}:{sNEED+1}]
        s_cbranch_scc1 {D}
        """)
        poll(a,"pa2",R.SWS,13,sNEED,sNEED+1,13,2)
        a.label(D)
        pf.pt("aflag")
        if DEF:
            lab=a.newlabel("pqf")
            a(f"""
            s_cmp_eq_u32 s83, 0
            s_cbranch_scc1 {lab}
            v_mov_b32 v12, 0
            v_mov_b32 v13, s{sN}
            buffer_store_dword v13, v12, s[{R.SWS}:{R.SWS+3}], s84 offen sc1
            {lab}:
            """)
        k2_load_a(a,R,HLD,name,pq=not DEF)
    def pq_addr():
        a(f"""
        s_lshr_b32 s14, s{R.sH}, 1
        s_mul_i32 s14, s14, {FPSTR}
        s_lshr_b32 s15, s{R.sQB}, 1
        s_lshl_b32 s15, s15, 7
        s_add_u32 s14, s14, s15
        s_add_u32 s16, s14, {FP}
        v_mov_b32 v12, 0
        """)
    def pq_load():
        a(f"""
        s_lshl_b32 s{R.sT}, s{R.sH}, 16
        s_lshl_b32 s{R.sT2}, s{R.sQB}, 10
        s_add_u32 s{R.sT}, s{R.sT}, s{R.sT2}
        s_add_u32 s{R.sT}, s{R.sT}, {PQ}
        buffer_load_dwordx4 {vr(R.vPQ,4)}, v3, s[{R.SWS}:{R.SWS+3}], s{R.sT} offen {HLD}
        """)
    def pq_check(first):
        D=a.newlabel("pqd")
        a("s_mov_b32 s14, 1\ns_mov_b32 s15, 0")
        if first:
            a(f"""
            s_waitcnt vmcnt(0)
            v_readfirstlane_b32 s{R.sT}, v13
            s_cmp_eq_u32 s{R.sT}, s{sN}
            s_cbranch_scc1 {D}
            """)
        poll(a,"pq2",R.SWS,16,14,15,13,12,sleep=2)
        a.label(D)
        pq_load()
    def h_probe():
        lab=a.newlabel("pr")
        a(f"s_cmp_eq_u32 s{R.sRB}, 0\ns_cbranch_scc1 {lab}")
        pq_addr()
        a(f"buffer_load_dword v13, v12, s[{R.SWS}:{R.SWS+3}], s16 offen sc1\n{lab}:")
    def h_check():
        lab=a.newlabel("ck")
        a(f"s_cmp_eq_u32 s{R.sRB}, 0\ns_cbranch_scc1 {lab}")
        pq_check(True)
        a.label(lab)
    hk={"pre":h_pre,"post0":h_post0}
    if DEF: hk[("it",cfg.get("pq_at",2)+1)]=h_probe; hk[("it",cfg.get("pq_at",2))]=h_check
    AMID=cfg.get("amid",False)
    if AMID:
        OA,TMP=R.OA,R.TMP
        def h_a1():
            lab=a.newlabel("am1"); nr=a.newlabel("amr")
            RT=R.SA
            a(f"""
            s_cmp_eq_u32 s{R.sRB}, 0
            s_cbranch_scc1 {lab}
            s_waitcnt vmcnt(0) lgkmcnt(0)
            s_barrier
            v_lshlrev_b32 v{R.vRA}, 2, v0
            v_cmp_gt_u32 vcc, 272, v0
            s_and_saveexec_b64 s[28:29], vcc
            s_cbranch_execz {nr}
            """)
            for p in range(12): a(f"ds_read_b32 v{RT+p}, v{R.vRA} offset:{R.KVL+p*1088}")
            for p in range(1,4):
                a(f"s_waitcnt lgkmcnt({11-p})\nv_add_f32 v{RT}, v{RT}, v{RT+p}")
            for p in range(12,16): a(f"ds_read_b32 v{RT+p}, v{R.vRA} offset:{R.KVL+p*1088}")
            for p in range(4,16):
                a(f"s_waitcnt lgkmcnt({15-p})\nv_add_f32 v{RT}, v{RT}, v{RT+p}")
            a(f"""
            ds_write_b32 v{R.vRA}, v{RT} offset:{R.RED}
            {nr}:
            s_mov_b64 exec, s[28:29]
            s_waitcnt lgkmcnt(0)
            {lab}:
            """)
        def h_a2():
            lab=a.newlabel("am2")
            a(f"""
            s_cmp_eq_u32 s{R.sRB}, 0
            s_cbranch_scc1 {lab}
            s_barrier
            ds_read_b128 {vr(TMP+8,4)}, v{R.vKVA}
            ds_read_b128 {vr(TMP+12,4)}, v{R.vKVA} offset:16
            s_waitcnt lgkmcnt(0)
            """)
            for i in range(4): a(f"v_cvt_pk_bf16_f32 v{TMP+8+i}, v{TMP+8+2*i}, v{TMP+8+2*i+1}")
            a("s_nop 1")
            a(f"v_mfma_f32_32x32x16_bf16 {vr(OA,16)}, {vr(TMP+8,4)}, {vr(R.vPQ,4)}, 0")
            a.label(lab)
        def h_a3():
            lab=a.newlabel("am3")
            a(f"""
            s_cmp_eq_u32 s{R.sRB}, 0
            s_cbranch_scc1 {lab}
            v_add_f32 v{OA+8}, {f2u(1e-6):#x}, v{OA+8}
            s_lshl_b32 s{R.sT}, s{R.sQB}, 5
            s_add_u32 s{R.sT}, s{R.sT}, s{R.sH}
            v_rcp_f32 v{OA+8}, v{OA+8}
            s_lshl_b32 s{R.sT}, s{R.sT}, 10
            s_add_u32 s{R.sT}, s{R.sT}, {OF}
            """)
            for r in range(8): a(f"v_mul_f32 v{OA+r}, v{OA+r}, v{OA+8}")
            for i in range(4): a(f"v_cvt_pk_bf16_f32 v{TMP+4+i}, v{OA+2*i}, v{OA+2*i+1}")
            a(f"buffer_store_dwordx4 {vr(TMP+4,4)}, v3, s[{R.SWS}:{R.SWS+3}], s{R.sT} offen {STF}")
            a.label(lab)
        t1,t2,t3=cfg.get("amid_at",[4,3,2])
        hk[("it",t1)]=h_a1; hk[("it",t2)]=h_a2; hk[("it",t3)]=h_a3
    k2_attn(a,R,name,cfg,pf,hooks=hk)
    if DEF:
        lab=a.newlabel("rb0")
        a(f"s_cmp_lg_u32 s{R.sRB}, 0\ns_cbranch_scc1 {lab}")
        pq_addr(); pq_check(False)
        a.label(lab)
    a(f"""
    s_lshl_b32 s{R.sT}, s{R.sQB}, 5
    s_add_u32 s{R.sT}, s{R.sT}, s{R.sH}
    s_lshl_b32 s{R.sT}, s{R.sT}, 10
    s_add_u32 s{R.sOB}, s{R.sT}, {OF}
    s_add_u32 s{R.sT}, s{R.sOB}, {64*32*1024}
    buffer_store_dwordx4 {vr(R.TMP,4)}, v3, s[{R.SWS}:{R.SWS+3}], s{R.sT} offen {STF}
    """)
    pf.pt("att")
    if AMID: a(f"s_cmp_lg_u32 s{R.sRB}, 0\ns_cbranch_scc1 {name}_adone")
    a("s_waitcnt vmcnt(1)\ns_barrier")
    pf.pt("kvp")
    k2_apart(a,R,name)
    pf.pt("apart")
    a(f"buffer_store_dwordx4 {vr(R.TMP+4,4)}, v3, s[{R.SWS}:{R.SWS+3}], s{R.sOB} offen {STF}")
    if AMID: a.label(f"{name}_adone")
    a("s_waitcnt vmcnt(0)")
    DYN=cfg.get("p3dyn",False); MW=32768
    if DYN:
        a(f"v_mov_b32 v12, {MW}\nv_mov_b32 v13, 0\nds_write_b32 v12, v13\ns_waitcnt lgkmcnt(0)")
    pf.pt("odrain")
    a("s_barrier")
    pf.pt("b5")
    if P3V==2:
        WOL0=32768
        a(f"""
        s_cmp_lt_u32 s{sWV}, 4
        s_cbranch_scc1 {name}_wod
        v_lshrrev_b32 v4, 3, v1
        v_and_b32 v5, 7, v1
        v_bfe_u32 v6, v1, 4, 1
        v_lshlrev_b32 v6, 2, v6
        v_xor_b32 v6, v6, v5
        v_lshlrev_b32 v7, 10, v4
        v_lshl_add_u32 v7, v6, 4, v7
        s_cmp_eq_u32 s{sP3BR}, 0
        s_cselect_b32 s16, s{sAWO}, s{sBWO}
        s_cselect_b32 s17, s{sAWO+1}, s{sBWO+1}
        s_mov_b32 s18, 0x80000
        s_mov_b32 s19, 0x20000
        s_sub_u32 s29, s{sWV}, 4
        s_lshl_b32 s28, s{sP3NS}, 8
        s_lshl_b32 s{R.sT}, s29, 13
        s_add_u32 s28, s28, s{R.sT}
        s_lshl_b32 s29, s29, 10
        """)
        for u in range(16):
            a(f"s_add_u32 m0, s29, {WOL0+u*4096}\ns_add_u32 s{R.sT}, s28, {u*32768}\nbuffer_load_dwordx4 v7, s[16:19], s{R.sT} offen lds")
        a.label(f"{name}_wod")
    a(f"""
    s_cmp_lg_u32 s{sWV}, 0
    s_cbranch_scc1 {name}_nf2
    s_mul_i32 s{R.sT}, s{R.sRB}, {F2STR}
    s_lshl_b32 s{R.sT2}, s{R.sH}, 7
    s_add_u32 s{R.sT}, s{R.sT}, s{R.sT2}
    s_add_u32 s{R.sT}, s{R.sT}, {F2}
    v_mov_b32 v12, 0
    v_mov_b32 v13, s{sN}
    buffer_store_dword v13, v12, s[{R.SWS}:{R.SWS+3}], s{R.sT} offen sc1
    """)
    if not DYN:
        a(f"""
        s_lshr_b32 s{sFA}, s{sP3T}, {2 if P3V==2 else 1}
        s_mul_i32 s{sFA}, s{sFA}, {F2STR}
        s_add_u32 s{sFA}, s{sFA}, {F2}
        s_mov_b32 s{sNEED}, -1
        s_mov_b32 s{sNEED+1}, 0
        """)
        poll(a,"p3",R.SWS,sFA,sNEED,sNEED+1,12,2,sleep=cfg.get("sleep2",4))
        a.label(f"{name}_nf2")
        if P3V==2: a("s_waitcnt vmcnt(0)")
        a("s_barrier")
        pf.pt("f2")
    else:
        a.label(f"{name}_nf2")
        lw=a.newlabel("wt"); ld=a.newlabel("wd")
        a(f"""
        s_cmp_lg_u32 s{sWV}, 4
        s_cbranch_scc1 {ld}_x
        s_lshr_b32 s{sFA}, s{sP3T}, 1
        s_mul_i32 s{sFA}, s{sFA}, {F2STR}
        s_add_u32 s{sFA}, s{sFA}, {F2}
        s_mov_b32 s{sCNT2}, 0
        v_mov_b32 v14, {MW}
        s_mov_b32 exec_lo, -1
        s_mov_b32 exec_hi, 0
        {lw}:
        buffer_load_dword v12, v2, s[{R.SWS}:{R.SWS+3}], s{sFA} offen sc1
        s_waitcnt vmcnt(0)
        v_cmp_eq_u32 vcc, s{sN}, v12
        s_add_u32 s{sCNT2}, s{sCNT2}, 1
        s_cmp_lt_u32 s{sCNT2}, 30000
        s_cselect_b32 s{R.sT}, vcc_lo, -1
        v_mov_b32 v13, s{R.sT}
        ds_write_b32 v14, v13
        s_cmp_eq_u32 s{R.sT}, -1
        s_cbranch_scc1 {ld}
        s_sleep {cfg.get("sleep2",1)}
        s_branch {lw}
        {ld}:
        s_waitcnt lgkmcnt(0)
        s_mov_b64 exec, -1
        {ld}_x:
        """)
    if pf.on and cfg.get("pwave",0)>=4:
        pf0.flush(len(PTS),4,2,wave=cfg["pwave"])
    if P3V==2:
        gen_p3v2(a,name,cfg,R,pf,pf0,PTS,OSTF,HLD)
        return dict(name=name, grid=256, block=512, lds=163840, vgpr=248, sgpr=102)
    a(f"s_cmp_ge_u32 s{sWV}, 4\ns_cbranch_scc1 {name}_end")
    SOUT=16; sTB=27; sOB=28
    a(f"""
    s_lshl_b32 s{sTB}, s{sP3T}, 2
    s_add_u32 s{sTB}, s{sTB}, s{sWV}
    s_lshl_b32 s{sT}, s{sP3BR}, 6
    s_add_u32 s{sT}, s{sT}, s{sTB}
    s_lshl_b32 s{sOB}, s{sT}, 15
    s_add_u32 s{sOB}, s{sOB}, {OF}
    """)
    if DYN:
        OFR=64; ACC3=32; WFR=[8,16]; vWA3=5; GS=4; NG=8; LA=cfg.get("p3_la",2)
        sRDY=40; sDONE=41; sH0=[44+i for i in range(NG)]; vWS=[[26,27],[28,29]]
        a(f"""
        s_mov_b32 s{SOUT}, s{sOUT}
        s_mov_b32 s{SOUT+1}, s{sOUT+1}
        s_mov_b32 s{SOUT+2}, 0x400000
        s_mov_b32 s{SOUT+3}, 0x20000
        v_bfe_u32 v6, v1, 2, 2
        v_lshrrev_b32 v7, 5, v1
        v_lshl_add_u32 v6, v7, 2, v6
        v_lshlrev_b32 v6, 7, v6
        v_and_b32 v7, 1, v1
        v_lshlrev_b32 v7, 1, v7
        v_bfe_u32 v24, v1, 4, 1
        v_or_b32 v7, v7, v24
        v_bfe_u32 v24, v1, 3, 1
        v_lshlrev_b32 v24, 2, v24
        v_xor_b32 v7, v7, v24
        v_lshl_add_u32 v6, v7, 4, v6
        v_bfe_u32 v24, v1, 1, 1
        v_lshl_add_u32 v{vWA3}, v24, 3, v6
        v_xor_b32 v{vWA3+1}, 64, v{vWA3}
        v_add_u32 v{vWA3}, {WOL}, v{vWA3}
        v_add_u32 v{vWA3+1}, {WOL}, v{vWA3+1}
        v_mov_b32 v30, {MW}
        s_mov_b32 s{sRDY}, 0
        s_mov_b32 s{sDONE}, 0
        """)
        def pick(it):
            L=a.newlabel("pk"); G=a.newlabel("pg")
            a(f"""
            s_mov_b32 s{sCNT2}, 0
            {L}:
            s_andn2_b32 s42, s{sRDY}, s{sDONE}
            s_cbranch_scc1 {G}
            ds_read_b32 v31, v30
            s_waitcnt lgkmcnt(0)
            v_readfirstlane_b32 s42, v31
            s_nop 2
            s_add_u32 s{sCNT2}, s{sCNT2}, 1
            s_cmp_lt_u32 s{sCNT2}, 400000
            s_cselect_b32 s42, s42, -1
            s_lshr_b32 s43, s42, 1
            s_and_b32 s42, s42, s43
            s_lshr_b32 s43, s42, 2
            s_and_b32 s42, s42, s43
            s_and_b32 s{sRDY}, s42, 0x11111111
            s_branch {L}
            {G}:
            s_ff1_i32_b32 s{sH0[it]}, s42
            s_lshl_b32 s43, 1, s{sH0[it]}
            s_or_b32 s{sDONE}, s{sDONE}, s43
            s_lshl_b32 s43, s{sH0[it]}, 10
            s_add_u32 s43, s43, s{sOB}
            """)
            for j in range(GS):
                a(f"buffer_load_dwordx4 {vr(OFR+4*(GS*it+j),4)}, v3, s[{R.SWS}:{R.SWS+3}], s43 offen offset:{j*1024} {HLD}")
        def waddr(it):
            a(f"s_lshl_b32 s43, s{sH0[it]}, 11")
            for nt in range(2): a(f"v_add_u32 v{vWS[it&1][nt]}, s43, v{vWA3+nt}")
        def rdw(s_,it,j):
            for nt in range(2):
                for t in range(2):
                    a(f"ds_read_b64_tr_b16 {vr(WFR[s_]+4*nt+2*t,2)}, v{vWS[it&1][nt]} offset:{j*2048+t*1024}")
        for it in range(LA): pick(it)
        pf.pt("f2")
        waddr(0)
        rdw(0,0,0)
        n=0
        for it in range(NG):
            if it+1<NG: waddr(it+1)
            later=min(NG,it+LA)-(it+1)
            for j in range(GS):
                s_=n&1
                nxt = (it,j+1) if j+1<GS else ((it+1,0) if it+1<NG else None)
                if nxt: rdw(s_^1,nxt[0],nxt[1])
                a(f"s_waitcnt vmcnt({(GS-1-j)+GS*later}) lgkmcnt({4 if nxt else 0})")
                for nt in range(2):
                    c = "0" if n==0 else vr(ACC3+16*nt,16)
                    a(f"v_mfma_f32_32x32x16_bf16 {vr(ACC3+16*nt,16)}, {vr(WFR[s_]+4*nt,4)}, {vr(OFR+4*(GS*it+j),4)}, {c}")
                if n==0: pf.pt("p3b0")
                n+=1
            if it+LA<NG: pick(it+LA)
    else:
        OFR=64; ACC3=32; WFR=[8,16]; vWA3=5
        DEPTH=cfg.get("p3_depth",10)
        if cfg.get("p3rot",0): a(f"s_mul_i32 s29, s{sP3NS}, {cfg['p3rot']}")
        def oload(h):
            if cfg.get("p3rot",0):
                a(f"s_add_u32 s{sT2}, s29, {h}\ns_and_b32 s{sT2}, s{sT2}, 31\ns_lshl_b32 s{sT2}, s{sT2}, 10\ns_add_u32 s{sT2}, s{sT2}, s{sOB}\nbuffer_load_dwordx4 {vr(OFR+4*h,4)}, v3, s[{R.SWS}:{R.SWS+3}], s{sT2} offen {HLD}")
            else:
                a(f"s_add_u32 s{sT2}, s{sOB}, {h*1024}\nbuffer_load_dwordx4 {vr(OFR+4*h,4)}, v3, s[{R.SWS}:{R.SWS+3}], s{sT2} offen {HLD}")
        for h in range(DEPTH): oload(h)
        a(f"""
        s_mov_b32 s{SOUT}, s{sOUT}
        s_mov_b32 s{SOUT+1}, s{sOUT+1}
        s_mov_b32 s{SOUT+2}, 0x400000
        s_mov_b32 s{SOUT+3}, 0x20000
        v_bfe_u32 v6, v1, 2, 2
        v_lshrrev_b32 v7, 5, v1
        v_lshl_add_u32 v6, v7, 2, v6
        v_lshlrev_b32 v6, 7, v6
        v_and_b32 v7, 1, v1
        v_lshlrev_b32 v7, 1, v7
        v_bfe_u32 v24, v1, 4, 1
        v_or_b32 v7, v7, v24
        v_bfe_u32 v24, v1, 3, 1
        v_lshlrev_b32 v24, 2, v24
        v_xor_b32 v7, v7, v24
        v_lshl_add_u32 v6, v7, 4, v6
        v_bfe_u32 v24, v1, 1, 1
        v_lshl_add_u32 v{vWA3}, v24, 3, v6
        v_xor_b32 v{vWA3+1}, 64, v{vWA3}
        v_add_u32 v{vWA3}, {WOL}, v{vWA3}
        v_add_u32 v{vWA3+1}, {WOL}, v{vWA3+1}
        """)
        def reads3(s,h):
            L=[]
            for nt in range(2):
                for t in range(2):
                    L.append(f"ds_read_b64_tr_b16 {vr(WFR[s]+4*nt+2*t,2)}, v{vWA3+nt} offset:{h*2048+t*1024}")
            return L
        for l in reads3(0,0): a(l)
        for h in range(32):
            s=h&1
            if h==1: pf.pt("p3b0")
            nxt=reads3(s^1,h+1) if h<31 else []
            for l in nxt: a(l)
            issued=min(32,h+DEPTH)
            a(f"s_waitcnt vmcnt({issued-h-1}) lgkmcnt({len(nxt)})")
            for nt in range(2):
                c = "0" if h==0 else vr(ACC3+16*nt,16)
                a(f"v_mfma_f32_32x32x16_bf16 {vr(ACC3+16*nt,16)}, {vr(WFR[s]+4*nt,4)}, {vr(OFR+4*h,4)}, {c}")
            if h+DEPTH<32: oload(h+DEPTH)
    pf.pt("p3loop")
    a(f"""
    s_lshl_b32 s{sT}, s{sTB}, 16
    s_lshl_b32 s{sT2}, s{sP3BR}, 10
    s_add_u32 s{sT}, s{sT}, s{sT2}
    s_lshl_b32 s{sT2}, s{sP3NS}, 7
    s_add_u32 s{sT}, s{sT}, s{sT2}
    v_and_b32 v6, 31, v1
    v_lshlrev_b32 v6, 11, v6
    v_lshrrev_b32 v7, 5, v1
    v_lshl_add_u32 v6, v7, 5, v6
    s_nop 7
    """)
    if cfg.get("outT"):
        a(f"""
        s_lshl_b32 s{sT2}, s{sWV}, 12
        v_and_b32 v8, 31, v1
        v_lshlrev_b32 v8, 7, v8                    ; token*128
        v_lshrrev_b32 v9, 5, v1
        v_lshl_add_u32 v8, v9, 5, v8               ; + hf*32
        v_and_b32 v9, 7, v1
        v_lshlrev_b32 v9, 4, v9
        v_add_u32 v8, s{sT2}, v8
        """)
        for nt in range(2):
            b=ACC3+16*nt; T=16+8*nt
            for i in range(8): a(f"v_cvt_pk_bf16_f32 v{T+i}, v{b+2*i}, v{b+2*i+1}")
        for nt in range(2):
            for u in range(2):
                a(f"v_add_u32 v10, {nt*64+u*16}, v8\nv_xor_b32 v10, v10, v9\nds_write_b128 v10, {vr(16+8*nt+4*u,4)}")
        a(f"""
        v_lshrrev_b32 v11, 3, v1
        v_and_b32 v12, 7, v1                       ; chunk
        v_xor_b32 v13, v12, v11
        v_lshlrev_b32 v13, 4, v13
        v_lshl_add_u32 v13, v11, 7, v13
        v_add_u32 v13, s{sT2}, v13
        v_lshlrev_b32 v14, 11, v11
        v_lshl_add_u32 v14, v12, 4, v14
        s_waitcnt lgkmcnt(0)
        """)
        for i in range(4): a(f"ds_read_b128 {vr(32+4*i,4)}, v13 offset:{i*1024}")
        for i in range(4):
            a(f"s_waitcnt lgkmcnt({3-i})\ns_add_u32 s{sT2}, s{sT}, {i*8*2048}\nbuffer_store_dwordx4 {vr(32+4*i,4)}, v14, s[{SOUT}:{SOUT+3}], s{sT2} offen {OSTF}")
    else:
      for nt in range(2):
        b=ACC3+16*nt; T=8+8*nt
        for i in range(8): a(f"v_cvt_pk_bf16_f32 v{T+i}, v{b+2*i}, v{b+2*i+1}")
        a(f"buffer_store_dwordx4 {vr(T,4)}, v6, s[{SOUT}:{SOUT+3}], s{sT} offen offset:{nt*64} {OSTF}")
        a(f"buffer_store_dwordx4 {vr(T+4,4)}, v6, s[{SOUT}:{SOUT+3}], s{sT} offen offset:{nt*64+16} {OSTF}")
    a(f"""
    s_cmp_lg_u32 s2, 0
    s_cbranch_scc1 {name}_nn
    s_cmp_lg_u32 s{sWV}, 0
    s_cbranch_scc1 {name}_nn
    s_mov_b32 s{sT}, {NONCE}
    v_mov_b32 v12, 0
    v_mov_b32 v13, s{sN}
    buffer_store_dword v13, v12, s[{R.SWS}:{R.SWS+3}], s{sT} offen sc1
    {name}_nn:
    """)
    if pf.on:
        a("s_waitcnt vmcnt(0)"); pf.pt("end"); pf0.flush(len(PTS),4,2,wave=cfg.get("pwave",0) if cfg.get("pwave",0)<4 else 99)
    a.label(f"{name}_end")
    a("s_endpgm")
    if cfg.get("slow_ool"): a.lines+=R.deferred
    a.label(f"{name}_last")
    a("s_endpgm")
    return dict(name=name, grid=256, block=512, lds=163840, vgpr=248, sgpr=104 if False else 102)
```

```python
from asmlib import *
import math
from k1 import QF,KF,VF,PQ,OF,KVP,WS_USED,LOG2E,CSCALE
import k2
from k2 import K2R,k2_setup_regs,k2_setup_late,k2_setup_consts,k2_load_b,k2_load_a,k2_attn,k2_apart

FLG=KVP+0x90000
FL=128
FSTR=16*FL+256
F1=FLG; F2=FLG+16*FSTR; F2STR=32*FL+256; NONCE=F2+8*F2STR
FP=NONCE+256; FPSTR=32*FL+256
WOL=98304
NL=163840-16

sAWO=64; sBWO=66; sOUT=68; sDBG=70; sWSP=72; sN=74; sWV=75; sP3T=76; sP3NS=77; sP3BR=78; sCNT2=79

def poll(a, name, srd, soff, need_lo, need_hi, vtmp, voff, bound=30000, sleep=4):
    L=a.newlabel(name); D=a.newlabel(name+"d")
    a(f"""
    s_mov_b32 s{sCNT2}, 0
    s_mov_b64 exec, s[{need_lo}:{need_hi}]
    {L}:
    buffer_load_dword v{vtmp}, v{voff}, s[{srd}:{srd+3}], s{soff} offen sc1
    s_waitcnt vmcnt(0)
    v_cmp_eq_u32 vcc, s{sN}, v{vtmp}
    s_cmp_eq_u64 vcc, s[{need_lo}:{need_hi}]
    s_cbranch_scc1 {D}
    s_add_u32 s{sCNT2}, s{sCNT2}, 1
    s_cmp_lt_u32 s{sCNT2}, {bound}
    s_cbranch_scc0 {D}
    s_sleep {sleep}
    s_branch {L}
    {D}:
    s_mov_b64 exec, -1
    """)

def gen_p3v2(a,name,cfg,R,pf,pf0,PTS,OSTF,HLD):
    sT=R.sT; sT2=R.sT2
    WOL0=32768; WOL1=98304
    a(f"s_cmp_ge_u32 s{sWV}, 4\ns_cbranch_scc1 {name}_p3l")
    SOUT=16; sTT=26; sNH=27
    ACC3=32; OS=[64,80]; WSET=[96,104,112]
    vWA3=5; vO=7
    a(f"""
    s_and_b32 s{sTT}, s{sWV}, 1
    s_lshr_b32 s{sNH}, s{sWV}, 1
    s_mov_b32 s{SOUT}, s{sOUT}
    s_mov_b32 s{SOUT+1}, s{sOUT+1}
    s_mov_b32 s{SOUT+2}, 0x400000
    s_mov_b32 s{SOUT+3}, 0x20000
    v_bfe_u32 v6, v1, 2, 2
    v_lshrrev_b32 v7, 5, v1
    v_lshl_add_u32 v6, v7, 2, v6
    v_lshlrev_b32 v6, 7, v6
    v_and_b32 v7, 1, v1
    v_lshlrev_b32 v7, 1, v7
    v_bfe_u32 v24, v1, 4, 1
    v_or_b32 v7, v7, v24
    v_bfe_u32 v24, v1, 3, 1
    v_lshlrev_b32 v24, 2, v24
    v_xor_b32 v7, v7, v24
    v_lshl_add_u32 v6, v7, 4, v6
    v_bfe_u32 v24, v1, 1, 1
    v_lshl_add_u32 v{vWA3}, v24, 3, v6
    v_xor_b32 v{vWA3+1}, 64, v{vWA3}
    s_lshl_b32 s{sT}, s{sNH}, 16
    s_add_u32 s{sT}, s{sT}, {WOL0}
    v_add_u32 v{vWA3}, s{sT}, v{vWA3}
    v_add_u32 v{vWA3+1}, s{sT}, v{vWA3+1}
    s_lshl_b32 s{sT}, s{sTT}, 10
    v_add_u32 v{vO}, s{sT}, v3
    """)
    q=[]
    def rd_o(e):
        for hh in range(4):
            a(f"ds_read_b128 {vr(OS[e&1]+4*hh,4)}, v{vO} offset:{(e&3)*8192+hh*2048}"); q.append(("o",e))
    def rd_w(h):
        for nt in range(2):
            for t in range(2):
                a(f"ds_read_b64_tr_b16 {vr(WSET[h%3]+4*nt+2*t,2)}, v{vWA3+nt} offset:{h*2048+t*1024}"); q.append(("w",h))
    st={"done":0}
    def wait_for(tags):
        last=max(i for i,x in enumerate(q) if x in tags)
        if last<st["done"]: return
        n=len(q)-1-last
        assert n<=15 and len(q)-st["done"]<=16, (n,len(q)-st["done"])
        a(f"s_waitcnt lgkmcnt({n})"); st["done"]=last+1
    rd_w(0); rd_w(1)
    a("s_barrier")
    pf.pt("p3b0")
    rd_o(0)
    for h in range(32):
        e=h>>2; hh=h&3
        if hh==2 and e<7:
            wait_for([("o",e)])
            a("s_barrier")
            rd_o(e+1)
        if h+2<32: rd_w(h+2)
        wait_for([("w",h),("o",e)])
        for nt in range(2):
            c = "0" if h==0 else vr(ACC3+16*nt,16)
            a(f"v_mfma_f32_32x32x16_bf16 {vr(ACC3+16*nt,16)}, {vr(WSET[h%3]+4*nt,4)}, {vr(OS[e&1]+4*hh,4)}, {c}")
    pf.pt("p3loop")
    a(f"""
    s_lshl_b32 s{sT}, s{sP3T}, 1
    s_add_u32 s{sT}, s{sT}, s{sTT}
    s_lshl_b32 s{sT}, s{sT}, 16
    s_lshl_b32 s{sT2}, s{sP3BR}, 10
    s_add_u32 s{sT}, s{sT}, s{sT2}
    s_lshl_b32 s{sT2}, s{sP3NS}, 8
    s_add_u32 s{sT}, s{sT}, s{sT2}
    s_lshl_b32 s{sT2}, s{sNH}, 7
    s_add_u32 s{sT}, s{sT}, s{sT2}
    v_and_b32 v6, 31, v1
    v_lshlrev_b32 v6, 11, v6
    v_lshrrev_b32 v7, 5, v1
    v_lshl_add_u32 v6, v7, 5, v6
    s_nop 7
    """)
    if cfg.get("outT"):
        a(f"""
        s_lshl_b32 s{sT2}, s{sWV}, 12
        v_and_b32 v8, 31, v1
        v_lshlrev_b32 v8, 7, v8                    ; token*128
        v_lshrrev_b32 v9, 5, v1
        v_lshl_add_u32 v8, v9, 5, v8               ; + hf*32
        v_and_b32 v9, 7, v1
        v_lshlrev_b32 v9, 4, v9
        v_add_u32 v8, s{sT2}, v8
        """)
        for nt in range(2):
            b=ACC3+16*nt; T=16+8*nt
            for i in range(8): a(f"v_cvt_pk_bf16_f32 v{T+i}, v{b+2*i}, v{b+2*i+1}")
        for nt in range(2):
            for u in range(2):
                a(f"v_add_u32 v10, {nt*64+u*16}, v8\nv_xor_b32 v10, v10, v9\nds_write_b128 v10, {vr(16+8*nt+4*u,4)}")
        a(f"""
        v_lshrrev_b32 v11, 3, v1
        v_and_b32 v12, 7, v1                       ; chunk
        v_xor_b32 v13, v12, v11
        v_lshlrev_b32 v13, 4, v13
        v_lshl_add_u32 v13, v11, 7, v13
        v_add_u32 v13, s{sT2}, v13
        v_lshlrev_b32 v14, 11, v11
        v_lshl_add_u32 v14, v12, 4, v14
        s_waitcnt lgkmcnt(0)
        """)
        for i in range(4): a(f"ds_read_b128 {vr(32+4*i,4)}, v13 offset:{i*1024}")
        for i in range(4):
            a(f"s_waitcnt lgkmcnt({3-i})\ns_add_u32 s{sT2}, s{sT}, {i*8*2048}\nbuffer_store_dwordx4 {vr(32+4*i,4)}, v14, s[{SOUT}:{SOUT+3}], s{sT2} offen {OSTF}")
    else:
      for nt in range(2):
        b=ACC3+16*nt; T=8+8*nt
        for i in range(8): a(f"v_cvt_pk_bf16_f32 v{T+i}, v{b+2*i}, v{b+2*i+1}")
        a(f"buffer_store_dwordx4 {vr(T,4)}, v6, s[{SOUT}:{SOUT+3}], s{sT} offen offset:{nt*64} {OSTF}")
        a(f"buffer_store_dwordx4 {vr(T+4,4)}, v6, s[{SOUT}:{SOUT+3}], s{sT} offen offset:{nt*64+16} {OSTF}")
    a(f"""
    s_cmp_lg_u32 s2, 0
    s_cbranch_scc1 {name}_nn
    s_cmp_lg_u32 s{sWV}, 0
    s_cbranch_scc1 {name}_nn
    s_mov_b32 s{sT}, {NONCE}
    v_mov_b32 v12, 0
    v_mov_b32 v13, s{sN}
    buffer_store_dword v13, v12, s[{R.SWS}:{R.SWS+3}], s{sT} offen sc1
    {name}_nn:
    """)
    if pf.on:
        a("s_waitcnt vmcnt(0)"); pf.pt("end"); pf0.flush(len(PTS),4,2,wave=cfg.get("pwave",0) if cfg.get("pwave",0)<4 else 99)
    a("s_endpgm")
    a.label(f"{name}_p3l")
    sE=26; sB=27; sL=28
    a(f"""
    s_sub_u32 s{sE}, s{sWV}, 4
    s_lshl_b32 s{sT}, s{sP3BR}, 6
    s_lshl_b32 s{sT2}, s{sP3T}, 1
    s_add_u32 s{sT}, s{sT}, s{sT2}
    s_lshl_b32 s{sB}, s{sT}, 15
    s_lshl_b32 s{sT}, s{sE}, 10
    s_add_u32 s{sB}, s{sB}, s{sT}
    s_add_u32 s{sB}, s{sB}, {OF}
    s_lshl_b32 s{sL}, s{sE}, 11
    """)
    OR=32; LA=cfg.get("p3_la",5); mode=cfg.get("p3_mode","reg")
    items=[(e,tt) for e in range(8) for tt in range(2)]
    def ld(k):
        e,tt=items[k]
        if cfg.get("diag_p3noload"): return
        if mode=="reg":
            a(f"s_add_u32 s{sT}, s{sB}, {e*4096+tt*32768}\nbuffer_load_dwordx4 {vr(OR+4*k,4)}, v3, s[{R.SWS}:{R.SWS+3}], s{sT} offen {HLD}")
        else:
            a(f"s_add_u32 m0, s{sL}, {(e&3)*8192+tt*1024}\ns_add_u32 s{sT}, s{sB}, {e*4096+tt*32768}\nbuffer_load_dwordx4 v3, s[{R.SWS}:{R.SWS+3}], s{sT} offen {HLD} lds")
    issued=0
    if mode=="dma": LA=min(LA,6)
    while issued<LA: ld(issued); issued+=1
    a(f"v_add_u32 v4, s{sL}, v3")
    for e in range(8):
        need=2*e+2
        a(f"s_waitcnt vmcnt({max(issued-need,0)})")
        if mode=="reg":
            for tt in range(2):
                a(f"ds_write_b128 v4, {vr(OR+4*(2*e+tt),4)} offset:{(e&3)*8192+tt*1024}")
            while issued<min(16,need+LA): ld(issued); issued+=1
            a("s_waitcnt lgkmcnt(0)\ns_barrier")
        else:
            a("s_barrier")
            while issued<min(16,need+LA,2*(e+4)): ld(issued); issued+=1
    a.label(f"{name}_end")
    a.label(f"{name}_last")
    a("s_endpgm")

def gen_fused(a, name, cfg):
    NS=3
    P3V=cfg.get("p3v",1)
    DEF=cfg.get("defer_pq",False)
    LDX=cfg.get("ldx",""); LDW=cfg.get("ldw","")
    STF="sc1"; HLD="sc1"
    OSTF=cfg.get("out_stflags","")
    XB=0; XS=16384; WB=NS*XS; WS_=24576
    a.raw(f".globl {name}\n.p2align 8\n.type {name},@function\n{name}:")
    sWAVE=20; sBR=21; sR=22; sG=23; sT=24; sT2=25
    SX=8; SW=12; SWS=16
    PTS=cfg.get("pts",["entry","p","loop","epi","b1","b2","kv","att","f2","end"])
    TIMER=cfg.get("timer","s_memrealtime")
    class PF0:
        on=cfg.get("prof",False)
        def flush(self,n,srd,vt,wave=0):
            if not self.on: return
            lab=a.newlabel("pf")
            a(f"""
            s_cmp_lg_u32 s{sWV}, {wave}
            s_cbranch_scc1 {lab}
            s_mov_b32 s4, s{sWSP}
            s_mov_b32 s5, s{sWSP+1}
            s_mov_b32 s6, {16<<20}
            s_mov_b32 s7, 0x20000
            s_lshl_b32 s24, s2, 6
            s_add_u32 s24, s24, {14<<20}
            v_lshlrev_b32 v2, 2, v1
            s_mov_b64 exec, 0xffff
            buffer_store_dword v247, v2, s[4:7], s24 offen
            s_mov_b64 exec, -1
            {lab}:
            """)
    pf0=PF0()
    class PF:
        on=pf0.on
        def pt(self,n):
            if self.on and n in PTS:
                a(f"{TIMER} s[100:101]\ns_waitcnt lgkmcnt(0)\nv_writelane_b32 v247, s100, {PTS.index(n)}")
    pf=PF()
    pf.pt("entry")
    a(f"""
    s_cmp_ge_u32 s2, 256
    s_cbranch_scc1 {name}_end
    """)
    if cfg.get("codepf_top"):
        nseg=cfg["codepf_top"]; lab=a.newlabel("cpt"); nwg=cfg.get("codepf_wgs",8)
        a(f"""
        s_load_dwordx4 s[28:31], s[0:1], 0
        s_load_dwordx4 s[32:35], s[0:1], 24
        s_load_dwordx2 s[{sAWO}:{sAWO+1}], s[0:1], 16
        s_load_dwordx2 s[{sBWO}:{sBWO+1}], s[0:1], 40
        s_load_dwordx4 s[{sOUT}:{sOUT+3}], s[0:1], 48
        s_load_dwordx2 s[{sWSP}:{sWSP+1}], s[0:1], 64
        s_cmp_ge_u32 s2, {nwg}
        s_cbranch_scc1 {lab}
        v_lshrrev_b32 v2, 6, v0
        v_and_b32 v1, 63, v0
        v_subrev_u32 v2, 1, v2                     ; wave - 1
        v_cmp_gt_u32 vcc, {nseg}, v2
        s_getpc_b64 s[4:5]
        {lab}_pc:
        s_sub_u32 s4, s4, {lab}_pc-{name}
        s_subb_u32 s5, s5, 0
        v_lshlrev_b32 v12, 13, v2
        v_lshl_add_u32 v12, v1, 7, v12
        v_min_u32 v12, {name}_last-{name}, v12
        v_mov_b32 v13, s5
        s_and_saveexec_b64 s[6:7], vcc
        s_cbranch_execz {lab}_x
        v_add_co_u32 v12, vcc, s4, v12
        s_nop 1
        v_addc_co_u32 v13, vcc, 0, v13, vcc
        global_load_dword v245, v[12:13], off
        {lab}_x:
        s_mov_b64 exec, s[6:7]
        {lab}:
        """)
    if not cfg.get("codepf_top"):
        a(f"""
        s_load_dwordx4 s[28:31], s[0:1], 0
        s_load_dwordx4 s[32:35], s[0:1], 24
        s_load_dwordx2 s[{sAWO}:{sAWO+1}], s[0:1], 16
        s_load_dwordx2 s[{sBWO}:{sBWO+1}], s[0:1], 40
        s_load_dwordx4 s[{sOUT}:{sOUT+3}], s[0:1], 48
        s_load_dwordx2 s[{sWSP}:{sWSP+1}], s[0:1], 64
        """)
    a(f"""
    v_lshrrev_b32 v2, 6, v0
    v_and_b32 v1, 63, v0
    s_and_b32 s{sT}, s2, 7
    v_readfirstlane_b32 s{sWAVE}, v2
    s_lshr_b32 s{sT2}, s2, 3
    s_and_b32 s{sBR}, s{sT}, 1
    s_lshr_b32 s{sT}, s{sT}, 1
    s_mov_b32 s{sP3BR}, s{sBR}
    s_lshl_b32 s{sP3T}, s{sT}, {3 if P3V==2 else 2}
    s_and_b32 s{sP3NS}, s{sT2}, {7 if P3V==2 else 3}
    s_add_u32 s{sP3T}, s{sP3T}, s{sP3NS}
    s_lshr_b32 s{sP3NS}, s{sT2}, {3 if P3V==2 else 2}
    s_and_b32 s{sR}, s{sT}, 1
    s_lshl_b32 s{sR}, s{sR}, 3
    s_lshr_b32 s{sG}, s{sT}, 1
    s_lshl_b32 s{sG}, s{sG}, 2
    s_and_b32 s{sT}, s{sT2}, 7
    s_add_u32 s{sR}, s{sR}, s{sT}
    s_lshr_b32 s{sT}, s{sT2}, 3
    s_add_u32 s{sG}, s{sG}, s{sT}
    s_mov_b32 s{sWV}, s{sWAVE}
    s_mov_b32 s83, 0
    """)
    FAST=cfg.get("faststart",False)
    sE=26; sXB=27; sWBs=38; sL=39; sROT=40; sXC=41; sWC=42
    def loader_setup():
        a(f"""
        s_sub_u32 s{sE}, s{sWAVE}, 4
        v_lshrrev_b32 v2, 3, v1
        v_and_b32 v3, 7, v1
        v_lshrrev_b32 v4, 1, v2
        s_and_b32 s{sT}, s{sE}, 1
        s_lshl_b32 s{sT}, s{sT}, 2
        v_or_b32 v4, s{sT}, v4
        v_xor_b32 v4, v4, v3
        v_lshlrev_b32 v5, 10, v2
        v_lshl_add_u32 v5, v4, 4, v5            ; x voffset
        v_bfe_u32 v4, v1, 4, 1
        v_lshlrev_b32 v4, 2, v4
        v_xor_b32 v4, v4, v3
        v_mul_u32_u24 v6, 3072, v2
        v_lshl_add_u32 v6, v4, 4, v6            ; w voffset
        v_lshlrev_b32 v7, 10, v2
        v_lshl_add_u32 v7, v4, 4, v7
        s_lshl_b32 s{sXB}, s{sR}, 17
        s_lshl_b32 s{sT}, s{sE}, 13
        s_add_u32 s{sXB}, s{sXB}, s{sT}
        s_lshl_b32 s{sWBs}, s{sG}, 7
        s_mul_i32 s{sT}, s{sE}, 24576
        s_add_u32 s{sWBs}, s{sWBs}, s{sT}
        s_lshl_b32 s{sL}, s{sE}, 10
        s_mov_b32 s{sROT}, 0
        """)
        for (src,sh,mask,mul) in cfg.get("k1_rot",[["R",0,3,2],["G",0,3,1]]):
            r={"R":sR,"G":sG}[src]
            a(f"s_lshr_b32 s{sT}, s{r}, {sh}\ns_and_b32 s{sT}, s{sT}, {mask}\ns_mul_i32 s{sT}, s{sT}, {mul}\ns_add_u32 s{sROT}, s{sROT}, s{sT}")
    if FAST: loader_setup()
    a(f"""
    s_mov_b32 s{SX+2}, 0x200000
    s_mov_b32 s{SX+3}, 0x20000
    s_mov_b32 s{SW+2}, 0x180000
    s_mov_b32 s{SW+3}, 0x20000
    s_mov_b32 s{SWS+2}, {WS_USED}
    s_mov_b32 s{SWS+3}, 0x20000
    s_cmp_eq_u32 s{sBR}, 0
    s_waitcnt lgkmcnt(0)
    s_cselect_b32 s{SX}, s28, s32
    s_cselect_b32 s{SX+1}, s29, s33
    s_cselect_b32 s{SW}, s30, s34
    s_cselect_b32 s{SW+1}, s31, s35
    s_mov_b32 s{SWS}, s{sWSP}
    s_mov_b32 s{SWS+1}, s{sWSP+1}
    """)
    def nonce_load():
        a(f"""
        s_mov_b32 s4, {NONCE}
        v_mov_b32 v30, 0
        buffer_load_dword v31, v30, s[{SWS}:{SWS+3}], s4 offen sc1
        """)
    if FAST:
        a(f"s_cmp_lt_u32 s{sWAVE}, 4\ns_cbranch_scc1 {name}_compute")
        mark_entry_end=len(a.lines)
        a.label(f"{name}_compute")
        nonce_load()
    else:
        nonce_load()
        a(f"s_cmp_ge_u32 s{sWAVE}, 4\ns_cbranch_scc1 {name}_loader")
    EC=cfg.get("early_consts",False)
    if EC: cD0,cD1,cD2,cD3,cA,cB,cC,cM,cT,cU,vONE,vKa,vKb=92,93,94,95,96,98,4,6,28,30,236,240,241
    else:  cD0,cD1,cD2,cD3,cA,cB,cC,cM,cT,cU,vONE,vKa,vKb=58,59,60,61,46,48,50,52,54,56,20,16,17
    sTM=26; sFN=27
    vXA=4; vWA=8
    ACC=32
    def acc(tt,sec): return ACC+(tt*3+sec)*16
    FR=[128,148]
    def xf(s,tt): return FR[s]+4*tt
    def wf(s,sec): return FR[s]+8+4*sec
    if cfg.get("pretouch"):
        lab=a.newlabel("ptc")
        a(f"""
        s_cmp_lg_u32 s{sWAVE}, 2
        s_cbranch_scc1 {lab}
        v_and_b32 v12, 7, v1
        v_lshlrev_b32 v12, 21, v12
        v_add_u32 v12, {0x1ffc00 if False else 0x100000}, v12
        v_min_u32 v12, {WS_USED-256}, v12
        buffer_load_dword v14, v12, s[{SWS}:{SWS+3}], 0 offen
        s_mov_b32 s44, s{sOUT}
        s_mov_b32 s45, s{sOUT+1}
        s_mov_b32 s46, 0x400000
        s_mov_b32 s47, 0x20000
        v_and_b32 v12, 1, v1
        v_lshlrev_b32 v12, 21, v12
        buffer_load_dword v15, v12, s[44:47], 0 offen
        s_cmp_eq_u32 s{sP3BR}, 0
        s_cselect_b32 s44, s{sAWO}, s{sBWO}
        s_cselect_b32 s45, s{sAWO+1}, s{sBWO+1}
        s_mov_b32 s46, 0x80000
        v_mov_b32 v12, 0
        buffer_load_dword v16, v12, s[44:47], 0 offen
        {lab}:
        """)
    if cfg.get("codepf"):
        nseg=cfg["codepf"]
        lab=a.newlabel("cpf")
        a(f"""
        s_cmp_lg_u32 s{sWAVE}, 1
        s_cbranch_scc1 {lab}
        s_lshr_b32 s4, s2, 3
        s_cmp_ge_u32 s4, {nseg}
        s_cbranch_scc1 {lab}
        s_lshl_b32 s6, s4, 13
        s_getpc_b64 s[4:5]
        {lab}_pc:
        s_sub_u32 s4, s4, {lab}_pc-{name}
        s_subb_u32 s5, s5, 0
        v_lshlrev_b32 v12, 7, v1
        v_add_u32 v12, s6, v12
        v_min_u32 v12, {name}_last-{name}, v12
        v_mov_b32 v13, s5
        v_add_co_u32 v12, vcc, s4, v12
        s_nop 1
        v_addc_co_u32 v13, vcc, 0, v13, vcc
        global_load_dword v245, v[12:13], off
        {lab}:
        """)
    a(f"""
    s_and_b32 s{sTM}, s{sWAVE}, 1
    s_lshr_b32 s{sFN}, s{sWAVE}, 1
    v_lshrrev_b32 v2, 5, v1                 ; hf
    v_and_b32 v3, 31, v1                    ; t31
    v_lshrrev_b32 v9, 1, v3
    v_and_b32 v9, 7, v9                     ; g
    s_lshl_b32 s{sT}, s{sTM}, 13
    v_lshlrev_b32 v10, 7, v3
    v_add_u32 v10, s{sT}, v10
    """)
    for ks in range(4):
        a(f"v_or_b32 v11, {2*ks}, v2\nv_xor_b32 v11, v11, v9\nv_lshl_add_u32 v{vXA+ks}, v11, 4, v10")
    a(f"""
    v_bfe_u32 v10, v1, 2, 2
    v_lshlrev_b32 v10, 7, v10
    v_lshl_add_u32 v10, v2, 10, v10
    v_bfe_u32 v11, v1, 4, 1
    v_lshlrev_b32 v11, 1, v11
    v_bfe_u32 v12, v1, 1, 1
    v_or_b32 v11, v11, v12
    s_lshl_b32 s{sT}, s{sFN}, 2
    v_or_b32 v11, s{sT}, v11
    v_bfe_u32 v12, v1, 3, 1
    v_lshlrev_b32 v12, 2, v12
    v_xor_b32 v11, v11, v12
    v_lshl_add_u32 v10, v11, 4, v10
    v_and_b32 v12, 1, v1
    v_lshl_add_u32 v10, v12, 3, v10
    v_add_u32 v{vWA}, {WB}, v10
    """)
    for r in range(ACC,ACC+96): a(f"v_mov_b32 v{r}, 0")
    a(f"""
    s_mov_b32 s{cD0}, {(-(NS-1)*XS)&0xffffffff:#x}
    s_mov_b32 s{cD1}, {XS}
    s_mov_b32 s{cD2}, {(-(NS-1)*WS_)&0xffffffff:#x}
    s_mov_b32 s{cD3}, {WS_}
    """)
    if EC: k2_setup_regs(a,K2R)
    def reads(s, ks):
        L=[]
        L.append(f"ds_read_b128 {vr(xf(s,0),4)}, v{vXA+ks}")
        L.append(f"ds_read_b64_tr_b16 {vr(wf(s,0),2)}, v{vWA} offset:{ks*2048}")
        L.append(f"ds_read_b64_tr_b16 {vr(wf(s,0)+2,2)}, v{vWA} offset:{ks*2048+512}")
        L.append(f"ds_read_b128 {vr(xf(s,1),4)}, v{vXA+ks} offset:4096")
        for sec in (1,2):
            L.append(f"ds_read_b64_tr_b16 {vr(wf(s,sec),2)}, v{vWA} offset:{sec*8192+ks*2048}")
            L.append(f"ds_read_b64_tr_b16 {vr(wf(s,sec)+2,2)}, v{vWA} offset:{sec*8192+ks*2048+512}")
        return L
    def mfmas(s, br):
        L=[]
        order=[(sec,tt) for sec in range(3) for tt in range(2)]
        if cfg.get("mf_order")=="x": order=[(sec,tt) for tt in range(2) for sec in range(3)]
        for sec,tt in order:
            for _one in (0,):
                featrow = (sec==0) or (sec==1 and br==1)
                A_,B_ = (wf(s,sec),xf(s,tt)) if featrow else (xf(s,tt),wf(s,sec))
                if cfg.get("mf16test"):
                    o=acc(tt,sec)+8*s
                    L.append(f"v_mfma_f32_16x16x32_bf16 {vr(o,4)}, {vr(A_,4)}, {vr(B_,4)}, {vr(o,4)}\nv_mfma_f32_16x16x32_bf16 {vr(o+4,4)}, {vr(B_,4)}, {vr(A_,4)}, {vr(o+4,4)}")
                else:
                    L.append(f"v_mfma_f32_32x32x16_bf16 {vr(acc(tt,sec),16)}, {vr(A_,4)}, {vr(B_,4)}, {vr(acc(tt,sec),16)}")
        return L
    def step(s, br, rd):
        M=mfmas(s,br)
        if rd:
            a(M[0]); a(rd[0]); a(rd[1]); a(rd[2])
            a(M[1]); a(rd[3]); a(rd[4]); a(rd[5])
            a(M[2]); a(rd[6]); a(rd[7])
            a(M[3]); a(M[4]); a(M[5])
        else:
            for m in M: a(m)
    sCNT,sSTG,sDX,sDW=(82,85,86,87) if EC else (38,39,40,41)
    for br in (0,1):
        bn="AB"[br]
        if br==0: a(f"s_cmp_eq_u32 s{sBR}, 1\ns_cbranch_scc1 {name}_cB")
        else: a.label(f"{name}_cB")
        a(f"s_mov_b32 s{sCNT}, 0\ns_mov_b32 s{sSTG}, 0\ns_waitcnt vmcnt(0)\nv_readfirstlane_b32 s{sN}, v31\ns_nop 3\ns_add_u32 s{sN}, s{sN}, 1")
        a("s_barrier")
        pf.pt("p")
        for l in reads(0,0): a(l)
        a.label(f"{name}_loop{bn}")
        for ks in range(3):
            a("s_waitcnt lgkmcnt(0)")
            step(ks&1, br, reads((ks+1)&1, ks+1))
        a(f"""
        s_add_u32 s{sSTG}, s{sSTG}, 1
        s_cmp_eq_u32 s{sSTG}, {NS}
        s_cselect_b32 s{sDX}, s{cD0}, s{cD1}
        s_cselect_b32 s{sDW}, s{cD2}, s{cD3}
        s_cselect_b32 s{sSTG}, 0, s{sSTG}
        s_waitcnt lgkmcnt(0)
        s_barrier
        """)
        if cfg.get("chunkstamps"):
            for c in range(7):
                lab=a.newlabel("cs")
                a(f"s_cmp_lg_u32 s{sCNT}, {c}\ns_cbranch_scc1 {lab}")
                pf.pt(f"c{c}")
                a.label(lab)
        for ks in range(4): a(f"v_add_u32 v{vXA+ks}, s{sDX}, v{vXA+ks}")
        a(f"v_add_u32 v{vWA}, s{sDW}, v{vWA}")
        step(1, br, reads(0,0))
        a(f"""
        s_add_u32 s{sCNT}, s{sCNT}, 1
        s_cmp_lt_u32 s{sCNT}, 7
        s_cbranch_scc1 {name}_loop{bn}
        """)
        sOFF,sH,sTB=(88,89,90) if EC else (42,43,44)
        def epi_addr():
            a(f"""
            s_lshl_b32 s{sH}, s{sG}, 2
            s_lshl_b32 s{sT}, s{sFN}, 1
            s_add_u32 s{sH}, s{sH}, s{sT}
            s_lshl_b32 s{sTB}, s{sR}, 2
            s_lshl_b32 s{sT}, s{sTM}, 1
            s_add_u32 s{sTB}, s{sTB}, s{sT}
            s_lshl_b32 s{sOFF}, s{sH}, 16
            s_lshl_b32 s{sT}, s{sTB}, 10
            s_add_u32 s{sOFF}, s{sOFF}, s{sT}
            v_lshlrev_b32 v9, 4, v1
            """)
        T0=128
        if br==1 and cfg.get("lastchunk"):
            epi_addr()
            a(f"""
            s_mov_b32 s{cA}, {f2u(CSCALE):#x}
            s_mov_b32 s{cA+1}, {f2u(CSCALE):#x}
            v_bfe_u32 v10, v1, 4, 1
            v_lshlrev_b32 v10, 16, v10
            v_lshrrev_b32 v11, 5, v1
            v_lshl_add_u32 v10, v11, 8, v10
            v_and_b32 v11, 15, v1
            v_lshl_add_u32 v10, v11, 4, v10
            """)
            XL={0:[xf(0,0),xf(0,1)]}; WL={(0,sec):wf(0,sec) for sec in range(3)}
            reg=168
            for ks in range(1,4): XL[ks]=[reg,reg+4]; reg+=8
            for sec in (1,2,0):
                for ks in range(1,4): WL[(ks,sec)]=reg; reg+=4
            assert reg<=232
            q=[]; st={"done":0}
            def rx(ks):
                a(f"ds_read_b128 {vr(XL[ks][0],4)}, v{vXA+ks}"); q.append(("x",ks))
                a(f"ds_read_b128 {vr(XL[ks][1],4)}, v{vXA+ks} offset:4096"); q.append(("x",ks))
            def rw(ks,sec):
                for t in range(2):
                    a(f"ds_read_b64_tr_b16 {vr(WL[(ks,sec)]+2*t,2)}, v{vWA} offset:{sec*8192+ks*2048+t*512}"); q.append(("w",ks,sec))
            def wait_for(tags):
                idx=[i for i,x in enumerate(q) if x in tags]
                if not idx or max(idx)<st["done"]: return
                n=len(q)-1-max(idx); assert n<=15 and len(q)-st["done"]<=15,(n,len(q),st)
                a(f"s_waitcnt lgkmcnt({n})"); st["done"]=max(idx)+1
            def mm(sec,ks,tt):
                featrow = sec in (0,1)
                A_,B_ = (WL[(ks,sec)],XL[ks][tt]) if featrow else (XL[ks][tt],WL[(ks,sec)])
                a(f"v_mfma_f32_32x32x16_bf16 {vr(acc(tt,sec),16)}, {vr(A_,4)}, {vr(B_,4)}, {vr(acc(tt,sec),16)}")
            TK=128+8
            TK=148
            def kops():
                L=[]
                for tt in range(2):
                    b=acc(tt,1); tmp=TK+8*tt
                    for i in range(8): L.append(f"v_cvt_pk_bf16_f32 v{tmp+i}, v{b+2*i}, v{b+2*i+1}")
                    L.append(f"s_add_u32 s{sT}, s{sOFF}, {KF+tt*1024}\nbuffer_store_dwordx4 {vr(tmp,4)}, v9, s[{SWS}:{SWS+3}], s{sT} offen {STF}")
                    L.append(f"s_add_u32 s{sT2}, s{sOFF}, {KF+tt*1024+65536}\nbuffer_store_dwordx4 {vr(tmp+4,4)}, v9, s[{SWS}:{SWS+3}], s{sT2} offen {STF}")
                return L
            TV=232
            def vops():
                L=[]
                for tt in range(2):
                    b=acc(tt,2); tmp=[232,148][tt]
                    for i in range(8): L.append(f"v_cvt_pk_bf16_f32 v{tmp+i}, v{b+2*i}, v{b+2*i+1}")
                    L.append(f"s_add_u32 s{sT}, s{sOFF}, {VF+tt*1024}\nbuffer_store_dwordx4 {vr(tmp,4)}, v10, s[{SWS}:{SWS+3}], s{sT} offen {STF}")
                    L.append(f"buffer_store_dwordx4 {vr(tmp+4,4)}, v10, s[{SWS}:{SWS+3}], s{sT} offen offset:512 {STF}")
                return L
            a("s_waitcnt lgkmcnt(0)")
            rx(1); rw(1,1); rx(2); rw(2,1)
            mm(1,0,0); mm(1,0,1)
            rx(3); rw(3,1)
            wait_for([("x",1),("w",1,1)]); mm(1,1,0); rw(1,2); mm(1,1,1)
            wait_for([("x",2),("w",2,1)]); mm(1,2,0); rw(2,2); mm(1,2,1)
            wait_for([("x",3),("w",3,1)]); mm(1,3,0); rw(3,2); mm(1,3,1)
            mm(2,0,0); rw(1,0); mm(2,0,1); rw(2,0)
            wait_for([("w",1,2)]); mm(2,1,0); rw(3,0); mm(2,1,1)
            a("s_nop 3")
            K=kops()
            for l in K[0:5]: a(l)
            wait_for([("w",2,2)]); mm(2,2,0)
            for l in K[5:10]: a(l)
            mm(2,2,1)
            for l in K[10:15]: a(l)
            wait_for([("w",3,2)]); mm(2,3,0)
            for l in K[15:20]: a(l)
            mm(2,3,1)
            mm(0,0,0); mm(0,0,1)
            wait_for([("w",1,0)]); mm(0,1,0); mm(0,1,1)
            a("s_nop 7")
            V=vops()
            for l in V[0:5]: a(l)
            wait_for([("w",2,0)]); mm(0,2,0)
            for l in V[5:10]: a(l)
            mm(0,2,1)
            for l in V[10:15]: a(l)
            wait_for([("w",3,0)]); mm(0,3,0)
            for l in V[15:20]: a(l)
            mm(0,3,1)
            pf.pt("loop")
            a("s_nop 15")
            tmp=168
            for tt in range(2):
                b=acc(tt,0)
                for i in range(8): a(f"v_pk_mul_f32 {vr(b+2*i,2)}, {vr(b+2*i,2)}, s[{cA}:{cA+1}]")
                for i in range(8): a(f"v_cvt_pk_bf16_f32 v{tmp+i}, v{b+2*i}, v{b+2*i+1}")
                a(f"s_add_u32 s{sT}, s{sOFF}, {QF+tt*1024}")
                a(f"buffer_store_dwordx4 {vr(tmp,4)}, v9, s[{SWS}:{SWS+3}], s{sT} offen {STF}")
                a(f"s_add_u32 s{sT2}, s{sOFF}, {QF+tt*1024+65536}")
                a(f"buffer_store_dwordx4 {vr(tmp+4,4)}, v9, s[{SWS}:{SWS+3}], s{sT2} offen {STF}")
                tmp+=8
            a(f"s_branch {name}_p1done")
            continue
        for ks in range(3):
            a("s_waitcnt lgkmcnt(0)")
            step(ks&1, br, reads((ks+1)&1, ks+1))
        a("s_waitcnt lgkmcnt(0)")
        step(1, br, [])
        pf.pt("loop")
        epi_addr()
        if br==1:
            a(f"s_mov_b32 s{cA}, {f2u(CSCALE):#x}\ns_mov_b32 s{cA+1}, {f2u(CSCALE):#x}")
            a(f"""
            v_bfe_u32 v10, v1, 4, 1
            v_lshlrev_b32 v10, 16, v10
            v_lshrrev_b32 v11, 5, v1
            v_lshl_add_u32 v10, v11, 8, v10
            v_and_b32 v11, 15, v1
            v_lshl_add_u32 v10, v11, 4, v10
            s_nop 7
            """)
            tmp=T0
            for tt in range(2):
                b=acc(tt,1)
                for i in range(8): a(f"v_cvt_pk_bf16_f32 v{tmp+i}, v{b+2*i}, v{b+2*i+1}")
                a(f"s_add_u32 s{sT}, s{sOFF}, {KF+tt*1024}")
                a(f"buffer_store_dwordx4 {vr(tmp,4)}, v9, s[{SWS}:{SWS+3}], s{sT} offen {STF}")
                a(f"s_add_u32 s{sT2}, s{sOFF}, {KF+tt*1024+65536}")
                a(f"buffer_store_dwordx4 {vr(tmp+4,4)}, v9, s[{SWS}:{SWS+3}], s{sT2} offen {STF}")
                tmp+=8
            for tt in range(2):
                b=acc(tt,2)
                for i in range(8): a(f"v_cvt_pk_bf16_f32 v{tmp+i}, v{b+2*i}, v{b+2*i+1}")
                a(f"s_add_u32 s{sT}, s{sOFF}, {VF+tt*1024}")
                a(f"buffer_store_dwordx4 {vr(tmp,4)}, v10, s[{SWS}:{SWS+3}], s{sT} offen {STF}")
                a(f"buffer_store_dwordx4 {vr(tmp+4,4)}, v10, s[{SWS}:{SWS+3}], s{sT} offen offset:512 {STF}")
                tmp+=8
            for tt in range(2):
                b=acc(tt,0)
                for i in range(8): a(f"v_pk_mul_f32 {vr(b+2*i,2)}, {vr(b+2*i,2)}, s[{cA}:{cA+1}]")
                for i in range(8): a(f"v_cvt_pk_bf16_f32 v{tmp+i}, v{b+2*i}, v{b+2*i+1}")
                a(f"s_add_u32 s{sT}, s{sOFF}, {QF+tt*1024}")
                a(f"buffer_store_dwordx4 {vr(tmp,4)}, v9, s[{SWS}:{SWS+3}], s{sT} offen {STF}")
                a(f"s_add_u32 s{sT2}, s{sOFF}, {QF+tt*1024+65536}")
                a(f"buffer_store_dwordx4 {vr(tmp+4,4)}, v9, s[{SWS}:{SWS+3}], s{sT2} offen {STF}")
                tmp+=8
            a(f"s_branch {name}_p1done")
        else:
            a(f"""
            s_mov_b32 s{cA}, {f2u(LOG2E):#x}
            s_mov_b32 s{cA+1}, {f2u(LOG2E):#x}
            s_mov_b32 s{cB}, 1.0
            s_mov_b32 s{cB+1}, 1.0
            s_mov_b32 s{cC}, {f2u(1e-6):#x}
            s_mov_b32 s{cC+1}, {f2u(1e-6):#x}
            s_mov_b32 s{cM}, 0x0000ffff
            s_mov_b32 s{cM+1}, 0x0000ffff
            v_mov_b32 v{vONE}, 0x3f803f80
            v_mov_b32 v{vONE+1}, 0x3f803f80
            v_mov_b32 v{vONE+2}, 0x3f803f80
            v_mov_b32 v{vONE+3}, 0x3f803f80
            s_nop 4
            """)
            U=168
            def phi(b):
                for i in range(8): a(f"v_pk_mul_f32 {vr(U+2*i,2)}, {vr(b+2*i,2)}, s[{cA}:{cA+1}]")
                for i in range(16): a(f"v_exp_f32 v{U+i}, v{U+i} clamp")
                for i in range(8): a(f"v_pk_add_f32 {vr(b+2*i,2)}, {vr(b+2*i,2)}, s[{cB}:{cB+1}]")
                for i in range(16): a(f"v_max_f32 v{b+i}, v{b+i}, v{U+i}")
                for i in range(8): a(f"v_pk_add_f32 {vr(b+2*i,2)}, {vr(b+2*i,2)}, s[{cC}:{cC+1}]")
            PK=[128,136]; VV=[144,152]; D=184; D2=200
            def qpart(tt,tmp):
                b=acc(tt,0)
                phi(b)
                for i in range(8): a(f"v_cvt_pk_bf16_f32 v{tmp+i}, v{b+2*i}, v{b+2*i+1}")
                if DEF: return
                a(f"s_add_u32 s{sT}, s{sOFF}, {PQ+tt*1024}")
                a(f"buffer_store_dwordx4 {vr(tmp,4)}, v9, s[{SWS}:{SWS+3}], s{sT} offen {STF}")
                a(f"s_add_u32 s{sT2}, s{sOFF}, {PQ+tt*1024+65536}")
                a(f"buffer_store_dwordx4 {vr(tmp+4,4)}, v9, s[{SWS}:{SWS+3}], s{sT2} offen {STF}")
            QF1=cfg.get("a_qfirst",False)
            if QF1: qpart(0,216); qpart(1,224)
            for tt in range(2):
                b=acc(tt,2)
                for i in range(8): a(f"v_cvt_pk_bf16_f32 v{VV[tt]+i}, v{b+2*i}, v{b+2*i+1}")
            for tt in range(2):
                b=acc(tt,1)
                phi(b)
                for i in range(8): a(f"v_cvt_pk_bf16_f32 v{PK[tt]+i}, v{b+2*i}, v{b+2*i+1}")
                a("s_nop 1")
                for m in range(2):
                    c1 = "0" if (tt==0 and m==0) else vr(D,16)
                    c2 = "0" if (tt==0 and m==0) else vr(D2,16)
                    a(f"v_mfma_f32_32x32x16_bf16 {vr(D,16)}, {vr(PK[tt]+4*m,4)}, {vr(VV[tt]+4*m,4)}, {c1}")
                    a(f"v_mfma_f32_32x32x16_bf16 {vr(D2,16)}, {vr(PK[tt]+4*m,4)}, v[{vONE}:{vONE+3}], {c2}")
            def kvp_addr():
                a(f"""
                v_and_b32 v11, 31, v1
                v_lshrrev_b32 v12, 5, v1
                v_and_b32 v13, 15, v1
                v_lshlrev_b32 v13, 5, v13
                v_lshl_add_u32 v13, v12, 9, v13
                v_lshlrev_b32 v14, 5, v12
                v_add_u32 v14, 1024, v14
                v_mov_b32 v15, 0x40000000
                v_cmp_eq_u32 s[{cT}:{cT+1}], 16, v11
                v_cmp_eq_u32 s[{cU}:{cU+1}], 0, v11
                s_nop 1
                v_cndmask_b32_e64 v{vKa}, v15, v14, s[{cT}:{cT+1}]
                v_cndmask_b32_e64 v{vKb}, v15, v14, s[{cU}:{cU+1}]
                v_cndmask_b32_e64 v{vKa}, v{vKa}, v13, s[{cM}:{cM+1}]
                v_cndmask_b32_e64 v{vKb}, v13, v{vKb}, s[{cM}:{cM+1}]
                """)
            if QF1:
                kvp_addr()
                a("s_nop 1")
            else:
                a("s_nop 15")
            for r in range(8):  a(f"v_cndmask_b32_e64 v{D+r}, v{D2+r}, v{D+r}, s[{cM}:{cM+1}]")
            for r in range(8,16): a(f"v_cndmask_b32_e64 v{D+r}, v{D+r}, v{D2+r}, s[{cM}:{cM+1}]")
            EX = 0
            a(f"""
            s_lshl_b32 s{sT}, s{sFN}, 12
            s_add_u32 s{sT}, s{sT}, {EX}
            v_add_u32 v10, s{sT}, v9
            s_cmp_eq_u32 s{sTM}, 0
            s_cbranch_scc1 {name}_Ard
            """)
            for q in range(4): a(f"ds_write_b128 v10, {vr(D+4*q,4)} offset:{q*1024}")
            a(f"s_waitcnt lgkmcnt(0)")
            a.label(f"{name}_Ard")
            a("s_barrier")
            a(f"s_cmp_lg_u32 s{sTM}, 0\ns_cbranch_scc1 {name}_Aq")
            for q in range(4): a(f"ds_read_b128 {vr(D2+4*q,4)}, v10 offset:{q*1024}")
            if not QF1: kvp_addr()
            a(f"""
            s_lshl_b32 s{sT}, s{sH}, 4
            s_add_u32 s{sT}, s{sT}, s{sR}
            s_mul_i32 s{sT}, s{sT}, 1088
            s_add_u32 s{sT}, s{sT}, {KVP}
            s_add_u32 s{sT2}, s{sT}, {16*1088}
            s_waitcnt lgkmcnt(0)
            """)
            for i in range(8): a(f"v_pk_add_f32 {vr(D+2*i,2)}, {vr(D+2*i,2)}, {vr(D2+2*i,2)}")
            a(f"""
            buffer_store_dwordx4 {vr(D,4)}, v{vKa}, s[{SWS}:{SWS+3}], s{sT} offen {STF}
            buffer_store_dwordx4 {vr(D+4,4)}, v{vKa}, s[{SWS}:{SWS+3}], s{sT} offen offset:16 {STF}
            buffer_store_dwordx4 {vr(D+8,4)}, v{vKb}, s[{SWS}:{SWS+3}], s{sT2} offen {STF}
            buffer_store_dwordx4 {vr(D+12,4)}, v{vKb}, s[{SWS}:{SWS+3}], s{sT2} offen offset:16 {STF}
            """)
            a.label(f"{name}_Aq")
            if not QF1: qpart(0,216); qpart(1,224 if DEF else 128)
            if DEF:
                a(f"""
                s_mov_b32 s82, s{sOFF}
                s_lshl_b32 s{sT}, s{sG}, 1
                s_add_u32 s{sT}, s{sT}, s{sFN}
                s_mul_i32 s{sT}, s{sT}, {FPSTR}
                s_lshl_b32 s{sT2}, s{sR}, 1
                s_add_u32 s{sT2}, s{sT2}, s{sTM}
                s_lshl_b32 s{sT2}, s{sT2}, 7
                s_add_u32 s{sT}, s{sT}, s{sT2}
                s_add_u32 s84, s{sT}, {FP}
                s_mov_b32 s83, 1
                """)
            a(f"s_branch {name}_p1done")
    mark_loader_start=len(a.lines)
    a.label(f"{name}_loader")
    if not FAST: loader_setup()
    def issue(c, part=None):
        st=c%NS
        L=[]
        hdr=f"""
        s_add_u32 s{sT}, s{sROT}, {c}
        s_and_b32 s{sT}, s{sT}, 7
        s_lshl_b32 s{sXC}, s{sT}, 7
        s_add_u32 s{sXC}, s{sXC}, s{sXB}
        s_mul_i32 s{sWC}, s{sT}, 196608
        s_add_u32 s{sWC}, s{sWC}, s{sWBs}
        """
        for i in range(4):
            L.append(f"s_add_u32 m0, s{sL}, {XB+st*XS+i*4096}\ns_add_u32 s{sT}, s{sXC}, {i*32768}\nbuffer_load_dwordx4 v5, s[{SX}:{SX+3}], s{sT} offen {LDX} lds")
        for jj in range(2):
            for sec in range(3):
                L.append(f"s_add_u32 m0, s{sL}, {WB+st*WS_+sec*8192+jj*4096}\ns_add_u32 s{sT}, s{sWC}, {jj*4*24576+sec*1024}\nbuffer_load_dwordx4 v6, s[{SW}:{SW+3}], s{sT} offen {LDW} lds")
        lo,hi = part if part else (0,10)
        if lo==0: a(hdr)
        for l in L[lo:hi]: a(l)
    k0=cfg.get("pro_k",5)
    issue(0)
    if FAST: nonce_load()
    issue(1,(0,k0))
    a(f"s_waitcnt vmcnt({k0})\nv_readfirstlane_b32 s{sN}, v31\ns_nop 3\ns_add_u32 s{sN}, s{sN}, 1\ns_barrier")
    if k0<10: issue(1,(k0,10))
    issue(2)
    for c in range(7):
        issued=min(8,c+NS)
        rem=10*(issued-(c+2))
        if c==6: rem=16 if P3V==1 else 17
        a(f"s_waitcnt vmcnt({rem})\ns_barrier")
        if c+NS<8: issue(c+NS)
        if c==5:
            a(f"""
            s_cmp_eq_u32 s{sP3BR}, 0
            s_cselect_b32 s28, s{sAWO}, s{sBWO}
            s_cselect_b32 s29, s{sAWO+1}, s{sBWO+1}
            s_mov_b32 s30, 0x80000
            s_mov_b32 s31, 0x20000
            s_lshl_b32 s{sXC}, s{sP3NS}, {7 if P3V==1 else 8}
            s_lshl_b32 s{sT}, s{sE}, 13
            s_add_u32 s{sXC}, s{sXC}, s{sT}
            """)
            if P3V==1 and cfg.get("p3rot",0):
                a(f"s_lshl_b32 s{sXC}, s{sP3NS}, 7\ns_mul_i32 s{sWC}, s{sP3NS}, {2*cfg['p3rot']}\ns_add_u32 s{sWC}, s{sWC}, s{sE}")
                for u in range(16):
                    a(f"s_add_u32 m0, s{sL}, {WOL+u*4096}")
                    a(f"s_add_u32 s{sT}, s{sWC}, {4*u}\ns_and_b32 s{sT}, s{sT}, 63\ns_lshl_b32 s{sT}, s{sT}, 13\ns_add_u32 s{sT}, s{sT}, s{sXC}")
                    a(f"buffer_load_dwordx4 v7, s[28:31], s{sT} offen lds")
            else:
              for u in range(16):
                a(f"s_add_u32 m0, s{sL}, {WOL+u*4096}")
                a(f"s_add_u32 s{sT}, s{sXC}, {u*32768+(0 if P3V==1 else 128)}")
                a(f"buffer_load_dwordx4 v7, s[28:31], s{sT} offen lds")
            if P3V==2:
                a(f"""
                v_and_b32 v8, 15, v1
                s_lshl_b32 s{sT}, s{sE}, 4
                v_add_u32 v8, s{sT}, v8
                v_lshlrev_b32 v8, 10, v8
                s_bfe_u32 s{sT}, s2, 0x30003
                s_lshl_b32 s{sT}, s{sT}, 16
                s_lshl_b32 s{sXC}, s{sP3NS}, 8
                s_add_u32 s{sT}, s{sT}, s{sXC}
                buffer_load_dword v9, v8, s[28:31], s{sT} offen
                """)
    if EC: k2_setup_regs(a,K2R)
    a(f"s_cmp_eq_u32 s{sBR}, 1\ns_cbranch_scc1 {name}_p1bar\ns_barrier\ns_branch {name}_p1bar")
    if FAST:
        blk=a.lines[mark_loader_start:]
        del a.lines[mark_loader_start:]
        a.lines[mark_entry_end:mark_entry_end]=blk
    a.label(f"{name}_p1done")
    pf.pt("epi")
    a("s_waitcnt vmcnt(0)")
    a.label(f"{name}_p1bar")
    a("s_barrier")
    R=K2R
    a(f"""
    s_cmp_lg_u32 s{sWV}, 0
    s_cbranch_scc1 {name}_nf1
    s_lshl_b32 s{sT}, s{sBR}, 3
    s_add_u32 s{sT}, s{sT}, s{sG}
    s_mul_i32 s{sT}, s{sT}, {FSTR}
    s_lshl_b32 s{sT2}, s{sR}, 7
    s_add_u32 s{sT}, s{sT}, s{sT2}
    s_add_u32 s{sT}, s{sT}, {F1}
    v_mov_b32 v12, 0
    v_mov_b32 v13, s{sN}
    buffer_store_dword v13, v12, s[{SWS}:{SWS+3}], s{sT} offen sc1
    {name}_nf1:
    """)
    pf.pt("b1")
    a(f"""
    s_mov_b32 s{R.sWAVE}, s{sWV}
    s_bfe_u32 s{R.sRB}, s2, 0x30003
    s_and_b32 s{R.sH}, s2, 7
    s_lshr_b32 s{R.sT}, s2, 6
    s_lshl_b32 s{R.sT}, s{R.sT}, 3
    s_add_u32 s{R.sH}, s{R.sH}, s{R.sT}
    v_lshlrev_b32 v3, 4, v1
    s_lshl_b32 s{R.sQB}, s{R.sRB}, 3
    s_add_u32 s{R.sQB}, s{R.sQB}, s{R.sWAVE}
    s_mov_b32 s{R.SWS}, s{sWSP}
    s_mov_b32 s{R.SWS+1}, s{sWSP+1}
    s_mov_b32 s{R.SWS+2}, {WS_USED}
    s_mov_b32 s{R.SWS+3}, 0x20000
    """)
    if EC: k2_setup_late(a,R)
    else: k2_setup_consts(a,R)
    sFA=12; sNEED=14
    a(f"""
    v_lshlrev_b32 v2, 7, v1
    s_lshr_b32 s{sFA}, s{R.sH}, 2
    s_mul_i32 s{sFA}, s{sFA}, {FSTR}
    s_add_u32 s13, s{sFA}, {F1}               ; A row
    s_add_u32 s{sFA}, s{sFA}, {F1+8*FSTR}     ; B row
    """)
    if cfg.get("wavepoll"):
        a(f"""
        s_lshl_b32 s{R.sT}, s{R.sRB}, 1
        s_lshr_b32 s{R.sT2}, s{sWV}, 1
        s_add_u32 s{R.sT2}, s{R.sT2}, s{R.sT}
        s_sub_i32 s{R.sT2}, s{R.sT2}, 2
        s_max_i32 s{R.sT2}, s{R.sT2}, 0
        s_lshl_b32 s{sNEED}, 1, s{R.sT2}
        s_lshr_b32 s{R.sT2}, s{sWV}, 2
        s_add_u32 s{R.sT2}, s{R.sT2}, s{R.sT}
        s_lshl_b32 s{R.sT2}, 1, s{R.sT2}
        s_or_b32 s{sNEED}, s{sNEED}, s{R.sT2}
        s_mov_b32 s{sNEED+1}, 0
        """)
        poll(a,"pb",R.SWS,sFA,sNEED,sNEED+1,12,2,sleep=cfg.get("sleep1",4))
    else:
        a(f"""
        s_cmp_lg_u32 s{sWV}, 0
        s_cbranch_scc1 {name}_np2
        s_lshl_b32 s{R.sT}, s{R.sRB}, 1
        s_lshl_b32 s{sNEED}, 15, s{R.sT}
        s_lshr_b32 s{sNEED}, s{sNEED}, 2          ; (0b1111 << 2rb) >> 2
        s_mov_b32 s{sNEED+1}, 0
        """)
        poll(a,"pb",R.SWS,sFA,sNEED,sNEED+1,12,2,sleep=cfg.get("sleep1",4))
        a.label(f"{name}_np2")
        a("s_waitcnt lgkmcnt(0)\ns_barrier")
    pf.pt("b2")
    k2_load_b(a,R,HLD)
    if DEF:
        a(f"s_cmp_eq_u32 s83, 0\ns_cbranch_scc1 {name}_nopq")
        for tt in range(2):
            a(f"s_add_u32 s{R.sT}, s82, {PQ+tt*1024}\nbuffer_store_dwordx4 {vr(216+8*tt,4)}, v3, s[{R.SWS}:{R.SWS+3}], s{R.sT} offen {STF}")
            a(f"s_add_u32 s{R.sT2}, s82, {PQ+tt*1024+65536}\nbuffer_store_dwordx4 {vr(220+8*tt,4)}, v3, s[{R.SWS}:{R.SWS+3}], s{R.sT2} offen {STF}")
        a(f"s_waitcnt vmcnt(4)\ns_branch {name}_pqd\n{name}_nopq:\ns_waitcnt vmcnt(0)\n{name}_pqd:\ns_barrier")
    else:
        a("s_waitcnt vmcnt(0) lgkmcnt(0)\ns_barrier")
    pf.pt("kv")
    if cfg.get("prio"):
        a(f"s_cmp_ge_u32 s{sWV}, 4\ns_cbranch_scc0 {name}_nprio\ns_setprio 1\n{name}_nprio:")
    def h_pre():
        a(f"s_mov_b64 exec, 0xffff\nbuffer_load_dword v13, v2, s[{R.SWS}:{R.SWS+3}], s13 offen sc1\ns_mov_b64 exec, -1")
    def h_post0():
        pf.pt("post0")
        D=a.newlabel("pa")
        a(f"""
        s_mov_b32 s{sNEED}, 0xffff
        s_mov_b32 s{sNEED+1}, 0
        s_waitcnt vmcnt(0)
        v_cmp_eq_u32 vcc, s{sN}, v13
        s_and_b64 vcc, vcc, s[{sNEED}:{sNEED+1}]
        s_cmp_eq_u64 vcc, s[{sNEED}:{sNEED+1}]
        s_cbranch_scc1 {D}
        """)
        poll(a,"pa2",R.SWS,13,sNEED,sNEED+1,13,2)
        a.label(D)
        pf.pt("aflag")
        if DEF:
            lab=a.newlabel("pqf")
            a(f"""
            s_cmp_eq_u32 s83, 0
            s_cbranch_scc1 {lab}
            v_mov_b32 v12, 0
            v_mov_b32 v13, s{sN}
            buffer_store_dword v13, v12, s[{R.SWS}:{R.SWS+3}], s84 offen sc1
            {lab}:
            """)
        k2_load_a(a,R,HLD,name,pq=not DEF)
    def pq_addr():
        a(f"""
        s_lshr_b32 s14, s{R.sH}, 1
        s_mul_i32 s14, s14, {FPSTR}
        s_lshr_b32 s15, s{R.sQB}, 1
        s_lshl_b32 s15, s15, 7
        s_add_u32 s14, s14, s15
        s_add_u32 s16, s14, {FP}
        v_mov_b32 v12, 0
        """)
    def pq_load():
        a(f"""
        s_lshl_b32 s{R.sT}, s{R.sH}, 16
        s_lshl_b32 s{R.sT2}, s{R.sQB}, 10
        s_add_u32 s{R.sT}, s{R.sT}, s{R.sT2}
        s_add_u32 s{R.sT}, s{R.sT}, {PQ}
        buffer_load_dwordx4 {vr(R.vPQ,4)}, v3, s[{R.SWS}:{R.SWS+3}], s{R.sT} offen {HLD}
        """)
    def pq_check(first):
        D=a.newlabel("pqd")
        a("s_mov_b32 s14, 1\ns_mov_b32 s15, 0")
        if first:
            a(f"""
            s_waitcnt vmcnt(0)
            v_readfirstlane_b32 s{R.sT}, v13
            s_cmp_eq_u32 s{R.sT}, s{sN}
            s_cbranch_scc1 {D}
            """)
        poll(a,"pq2",R.SWS,16,14,15,13,12,sleep=2)
        a.label(D)
        pq_load()
    def h_probe():
        lab=a.newlabel("pr")
        a(f"s_cmp_eq_u32 s{R.sRB}, 0\ns_cbranch_scc1 {lab}")
        pq_addr()
        a(f"buffer_load_dword v13, v12, s[{R.SWS}:{R.SWS+3}], s16 offen sc1\n{lab}:")
    def h_check():
        lab=a.newlabel("ck")
        a(f"s_cmp_eq_u32 s{R.sRB}, 0\ns_cbranch_scc1 {lab}")
        pq_check(True)
        a.label(lab)
    hk={"pre":h_pre,"post0":h_post0}
    if DEF: hk[("it",cfg.get("pq_at",2)+1)]=h_probe; hk[("it",cfg.get("pq_at",2))]=h_check
    AMID=cfg.get("amid",False)
    if AMID:
        OA,TMP=R.OA,R.TMP
        def h_a1():
            lab=a.newlabel("am1"); nr=a.newlabel("amr")
            RT=R.SA
            a(f"""
            s_cmp_eq_u32 s{R.sRB}, 0
            s_cbranch_scc1 {lab}
            s_waitcnt vmcnt(0) lgkmcnt(0)
            s_barrier
            v_lshlrev_b32 v{R.vRA}, 2, v0
            v_cmp_gt_u32 vcc, 272, v0
            s_and_saveexec_b64 s[28:29], vcc
            s_cbranch_execz {nr}
            """)
            for p in range(12): a(f"ds_read_b32 v{RT+p}, v{R.vRA} offset:{R.KVL+p*1088}")
            for p in range(1,4):
                a(f"s_waitcnt lgkmcnt({11-p})\nv_add_f32 v{RT}, v{RT}, v{RT+p}")
            for p in range(12,16): a(f"ds_read_b32 v{RT+p}, v{R.vRA} offset:{R.KVL+p*1088}")
            for p in range(4,16):
                a(f"s_waitcnt lgkmcnt({15-p})\nv_add_f32 v{RT}, v{RT}, v{RT+p}")
            a(f"""
            ds_write_b32 v{R.vRA}, v{RT} offset:{R.RED}
            {nr}:
            s_mov_b64 exec, s[28:29]
            s_waitcnt lgkmcnt(0)
            {lab}:
            """)
        def h_a2():
            lab=a.newlabel("am2")
            a(f"""
            s_cmp_eq_u32 s{R.sRB}, 0
            s_cbranch_scc1 {lab}
            s_barrier
            ds_read_b128 {vr(TMP+8,4)}, v{R.vKVA}
            ds_read_b128 {vr(TMP+12,4)}, v{R.vKVA} offset:16
            s_waitcnt lgkmcnt(0)
            """)
            for i in range(4): a(f"v_cvt_pk_bf16_f32 v{TMP+8+i}, v{TMP+8+2*i}, v{TMP+8+2*i+1}")
            a("s_nop 1")
            a(f"v_mfma_f32_32x32x16_bf16 {vr(OA,16)}, {vr(TMP+8,4)}, {vr(R.vPQ,4)}, 0")
            a.label(lab)
        def h_a3():
            lab=a.newlabel("am3")
            a(f"""
            s_cmp_eq_u32 s{R.sRB}, 0
            s_cbranch_scc1 {lab}
            v_add_f32 v{OA+8}, {f2u(1e-6):#x}, v{OA+8}
            s_lshl_b32 s{R.sT}, s{R.sQB}, 5
            s_add_u32 s{R.sT}, s{R.sT}, s{R.sH}
            v_rcp_f32 v{OA+8}, v{OA+8}
            s_lshl_b32 s{R.sT}, s{R.sT}, 10
            s_add_u32 s{R.sT}, s{R.sT}, {OF}
            """)
            for r in range(8): a(f"v_mul_f32 v{OA+r}, v{OA+r}, v{OA+8}")
            for i in range(4): a(f"v_cvt_pk_bf16_f32 v{TMP+4+i}, v{OA+2*i}, v{OA+2*i+1}")
            a(f"buffer_store_dwordx4 {vr(TMP+4,4)}, v3, s[{R.SWS}:{R.SWS+3}], s{R.sT} offen {STF}")
            a.label(lab)
        t1,t2,t3=cfg.get("amid_at",[4,3,2])
        hk[("it",t1)]=h_a1; hk[("it",t2)]=h_a2; hk[("it",t3)]=h_a3
    k2_attn(a,R,name,cfg,pf,hooks=hk)
    if DEF:
        lab=a.newlabel("rb0")
        a(f"s_cmp_lg_u32 s{R.sRB}, 0\ns_cbranch_scc1 {lab}")
        pq_addr(); pq_check(False)
        a.label(lab)
    a(f"""
    s_lshl_b32 s{R.sT}, s{R.sQB}, 5
    s_add_u32 s{R.sT}, s{R.sT}, s{R.sH}
    s_lshl_b32 s{R.sT}, s{R.sT}, 10
    s_add_u32 s{R.sOB}, s{R.sT}, {OF}
    s_add_u32 s{R.sT}, s{R.sOB}, {64*32*1024}
    buffer_store_dwordx4 {vr(R.TMP,4)}, v3, s[{R.SWS}:{R.SWS+3}], s{R.sT} offen {STF}
    """)
    pf.pt("att")
    if AMID: a(f"s_cmp_lg_u32 s{R.sRB}, 0\ns_cbranch_scc1 {name}_adone")
    a("s_waitcnt vmcnt(1)\ns_barrier")
    pf.pt("kvp")
    k2_apart(a,R,name)
    pf.pt("apart")
    a(f"buffer_store_dwordx4 {vr(R.TMP+4,4)}, v3, s[{R.SWS}:{R.SWS+3}], s{R.sOB} offen {STF}")
    if AMID: a.label(f"{name}_adone")
    a("s_waitcnt vmcnt(0)")
    DYN=cfg.get("p3dyn",False); MW=32768
    if DYN:
        a(f"v_mov_b32 v12, {MW}\nv_mov_b32 v13, 0\nds_write_b32 v12, v13\ns_waitcnt lgkmcnt(0)")
    pf.pt("odrain")
    a("s_barrier")
    pf.pt("b5")
    if P3V==2:
        WOL0=32768
        a(f"""
        s_cmp_lt_u32 s{sWV}, 4
        s_cbranch_scc1 {name}_wod
        v_lshrrev_b32 v4, 3, v1
        v_and_b32 v5, 7, v1
        v_bfe_u32 v6, v1, 4, 1
        v_lshlrev_b32 v6, 2, v6
        v_xor_b32 v6, v6, v5
        v_lshlrev_b32 v7, 10, v4
        v_lshl_add_u32 v7, v6, 4, v7
        s_cmp_eq_u32 s{sP3BR}, 0
        s_cselect_b32 s16, s{sAWO}, s{sBWO}
        s_cselect_b32 s17, s{sAWO+1}, s{sBWO+1}
        s_mov_b32 s18, 0x80000
        s_mov_b32 s19, 0x20000
        s_sub_u32 s29, s{sWV}, 4
        s_lshl_b32 s28, s{sP3NS}, 8
        s_lshl_b32 s{R.sT}, s29, 13
        s_add_u32 s28, s28, s{R.sT}
        s_lshl_b32 s29, s29, 10
        """)
        for u in range(16):
            a(f"s_add_u32 m0, s29, {WOL0+u*4096}\ns_add_u32 s{R.sT}, s28, {u*32768}\nbuffer_load_dwordx4 v7, s[16:19], s{R.sT} offen lds")
        a.label(f"{name}_wod")
    a(f"""
    s_cmp_lg_u32 s{sWV}, 0
    s_cbranch_scc1 {name}_nf2
    s_mul_i32 s{R.sT}, s{R.sRB}, {F2STR}
    s_lshl_b32 s{R.sT2}, s{R.sH}, 7
    s_add_u32 s{R.sT}, s{R.sT}, s{R.sT2}
    s_add_u32 s{R.sT}, s{R.sT}, {F2}
    v_mov_b32 v12, 0
    v_mov_b32 v13, s{sN}
    buffer_store_dword v13, v12, s[{R.SWS}:{R.SWS+3}], s{R.sT} offen sc1
    """)
    if not DYN:
        a(f"""
        s_lshr_b32 s{sFA}, s{sP3T}, {2 if P3V==2 else 1}
        s_mul_i32 s{sFA}, s{sFA}, {F2STR}
        s_add_u32 s{sFA}, s{sFA}, {F2}
        s_mov_b32 s{sNEED}, -1
        s_mov_b32 s{sNEED+1}, 0
        """)
        poll(a,"p3",R.SWS,sFA,sNEED,sNEED+1,12,2,sleep=cfg.get("sleep2",4))
        a.label(f"{name}_nf2")
        if P3V==2: a("s_waitcnt vmcnt(0)")
        a("s_barrier")
        pf.pt("f2")
    else:
        a.label(f"{name}_nf2")
        lw=a.newlabel("wt"); ld=a.newlabel("wd")
        a(f"""
        s_cmp_lg_u32 s{sWV}, 4
        s_cbranch_scc1 {ld}_x
        s_lshr_b32 s{sFA}, s{sP3T}, 1
        s_mul_i32 s{sFA}, s{sFA}, {F2STR}
        s_add_u32 s{sFA}, s{sFA}, {F2}
        s_mov_b32 s{sCNT2}, 0
        v_mov_b32 v14, {MW}
        s_mov_b32 exec_lo, -1
        s_mov_b32 exec_hi, 0
        {lw}:
        buffer_load_dword v12, v2, s[{R.SWS}:{R.SWS+3}], s{sFA} offen sc1
        s_waitcnt vmcnt(0)
        v_cmp_eq_u32 vcc, s{sN}, v12
        s_add_u32 s{sCNT2}, s{sCNT2}, 1
        s_cmp_lt_u32 s{sCNT2}, 30000
        s_cselect_b32 s{R.sT}, vcc_lo, -1
        v_mov_b32 v13, s{R.sT}
        ds_write_b32 v14, v13
        s_cmp_eq_u32 s{R.sT}, -1
        s_cbranch_scc1 {ld}
        s_sleep {cfg.get("sleep2",1)}
        s_branch {lw}
        {ld}:
        s_waitcnt lgkmcnt(0)
        s_mov_b64 exec, -1
        {ld}_x:
        """)
    if pf.on and cfg.get("pwave",0)>=4:
        pf0.flush(len(PTS),4,2,wave=cfg["pwave"])
    if P3V==2:
        gen_p3v2(a,name,cfg,R,pf,pf0,PTS,OSTF,HLD)
        return dict(name=name, grid=256, block=512, lds=163840, vgpr=248, sgpr=102)
    a(f"s_cmp_ge_u32 s{sWV}, 4\ns_cbranch_scc1 {name}_end")
    SOUT=16; sTB=27; sOB=28
    a(f"""
    s_lshl_b32 s{sTB}, s{sP3T}, 2
    s_add_u32 s{sTB}, s{sTB}, s{sWV}
    s_lshl_b32 s{sT}, s{sP3BR}, 6
    s_add_u32 s{sT}, s{sT}, s{sTB}
    s_lshl_b32 s{sOB}, s{sT}, 15
    s_add_u32 s{sOB}, s{sOB}, {OF}
    """)
    if DYN:
        OFR=64; ACC3=32; WFR=[8,16]; vWA3=5; GS=4; NG=8; LA=cfg.get("p3_la",2)
        sRDY=40; sDONE=41; sH0=[44+i for i in range(NG)]; vWS=[[26,27],[28,29]]
        a(f"""
        s_mov_b32 s{SOUT}, s{sOUT}
        s_mov_b32 s{SOUT+1}, s{sOUT+1}
        s_mov_b32 s{SOUT+2}, 0x400000
        s_mov_b32 s{SOUT+3}, 0x20000
        v_bfe_u32 v6, v1, 2, 2
        v_lshrrev_b32 v7, 5, v1
        v_lshl_add_u32 v6, v7, 2, v6
        v_lshlrev_b32 v6, 7, v6
        v_and_b32 v7, 1, v1
        v_lshlrev_b32 v7, 1, v7
        v_bfe_u32 v24, v1, 4, 1
        v_or_b32 v7, v7, v24
        v_bfe_u32 v24, v1, 3, 1
        v_lshlrev_b32 v24, 2, v24
        v_xor_b32 v7, v7, v24
        v_lshl_add_u32 v6, v7, 4, v6
        v_bfe_u32 v24, v1, 1, 1
        v_lshl_add_u32 v{vWA3}, v24, 3, v6
        v_xor_b32 v{vWA3+1}, 64, v{vWA3}
        v_add_u32 v{vWA3}, {WOL}, v{vWA3}
        v_add_u32 v{vWA3+1}, {WOL}, v{vWA3+1}
        v_mov_b32 v30, {MW}
        s_mov_b32 s{sRDY}, 0
        s_mov_b32 s{sDONE}, 0
        """)
        def pick(it):
            L=a.newlabel("pk"); G=a.newlabel("pg")
            a(f"""
            s_mov_b32 s{sCNT2}, 0
            {L}:
            s_andn2_b32 s42, s{sRDY}, s{sDONE}
            s_cbranch_scc1 {G}
            ds_read_b32 v31, v30
            s_waitcnt lgkmcnt(0)
            v_readfirstlane_b32 s42, v31
            s_nop 2
            s_add_u32 s{sCNT2}, s{sCNT2}, 1
            s_cmp_lt_u32 s{sCNT2}, 400000
            s_cselect_b32 s42, s42, -1
            s_lshr_b32 s43, s42, 1
            s_and_b32 s42, s42, s43
            s_lshr_b32 s43, s42, 2
            s_and_b32 s42, s42, s43
            s_and_b32 s{sRDY}, s42, 0x11111111
            s_branch {L}
            {G}:
            s_ff1_i32_b32 s{sH0[it]}, s42
            s_lshl_b32 s43, 1, s{sH0[it]}
            s_or_b32 s{sDONE}, s{sDONE}, s43
            s_lshl_b32 s43, s{sH0[it]}, 10
            s_add_u32 s43, s43, s{sOB}
            """)
            for j in range(GS):
                a(f"buffer_load_dwordx4 {vr(OFR+4*(GS*it+j),4)}, v3, s[{R.SWS}:{R.SWS+3}], s43 offen offset:{j*1024} {HLD}")
        def waddr(it):
            a(f"s_lshl_b32 s43, s{sH0[it]}, 11")
            for nt in range(2): a(f"v_add_u32 v{vWS[it&1][nt]}, s43, v{vWA3+nt}")
        def rdw(s_,it,j):
            for nt in range(2):
                for t in range(2):
                    a(f"ds_read_b64_tr_b16 {vr(WFR[s_]+4*nt+2*t,2)}, v{vWS[it&1][nt]} offset:{j*2048+t*1024}")
        for it in range(LA): pick(it)
        pf.pt("f2")
        waddr(0)
        rdw(0,0,0)
        n=0
        for it in range(NG):
            if it+1<NG: waddr(it+1)
            later=min(NG,it+LA)-(it+1)
            for j in range(GS):
                s_=n&1
                nxt = (it,j+1) if j+1<GS else ((it+1,0) if it+1<NG else None)
                if nxt: rdw(s_^1,nxt[0],nxt[1])
                a(f"s_waitcnt vmcnt({(GS-1-j)+GS*later}) lgkmcnt({4 if nxt else 0})")
                for nt in range(2):
                    c = "0" if n==0 else vr(ACC3+16*nt,16)
                    a(f"v_mfma_f32_32x32x16_bf16 {vr(ACC3+16*nt,16)}, {vr(WFR[s_]+4*nt,4)}, {vr(OFR+4*(GS*it+j),4)}, {c}")
                if n==0: pf.pt("p3b0")
                n+=1
            if it+LA<NG: pick(it+LA)
    else:
        OFR=64; ACC3=32; WFR=[8,16]; vWA3=5
        DEPTH=cfg.get("p3_depth",10)
        if cfg.get("p3rot",0): a(f"s_mul_i32 s29, s{sP3NS}, {cfg['p3rot']}")
        def oload(h):
            if cfg.get("p3rot",0):
                a(f"s_add_u32 s{sT2}, s29, {h}\ns_and_b32 s{sT2}, s{sT2}, 31\ns_lshl_b32 s{sT2}, s{sT2}, 10\ns_add_u32 s{sT2}, s{sT2}, s{sOB}\nbuffer_load_dwordx4 {vr(OFR+4*h,4)}, v3, s[{R.SWS}:{R.SWS+3}], s{sT2} offen {HLD}")
            else:
                a(f"s_add_u32 s{sT2}, s{sOB}, {h*1024}\nbuffer_load_dwordx4 {vr(OFR+4*h,4)}, v3, s[{R.SWS}:{R.SWS+3}], s{sT2} offen {HLD}")
        for h in range(DEPTH): oload(h)
        a(f"""
        s_mov_b32 s{SOUT}, s{sOUT}
        s_mov_b32 s{SOUT+1}, s{sOUT+1}
        s_mov_b32 s{SOUT+2}, 0x400000
        s_mov_b32 s{SOUT+3}, 0x20000
        v_bfe_u32 v6, v1, 2, 2
        v_lshrrev_b32 v7, 5, v1
        v_lshl_add_u32 v6, v7, 2, v6
        v_lshlrev_b32 v6, 7, v6
        v_and_b32 v7, 1, v1
        v_lshlrev_b32 v7, 1, v7
        v_bfe_u32 v24, v1, 4, 1
        v_or_b32 v7, v7, v24
        v_bfe_u32 v24, v1, 3, 1
        v_lshlrev_b32 v24, 2, v24
        v_xor_b32 v7, v7, v24
        v_lshl_add_u32 v6, v7, 4, v6
        v_bfe_u32 v24, v1, 1, 1
        v_lshl_add_u32 v{vWA3}, v24, 3, v6
        v_xor_b32 v{vWA3+1}, 64, v{vWA3}
        v_add_u32 v{vWA3}, {WOL}, v{vWA3}
        v_add_u32 v{vWA3+1}, {WOL}, v{vWA3+1}
        """)
        def reads3(s,h):
            L=[]
            for nt in range(2):
                for t in range(2):
                    L.append(f"ds_read_b64_tr_b16 {vr(WFR[s]+4*nt+2*t,2)}, v{vWA3+nt} offset:{h*2048+t*1024}")
            return L
        for l in reads3(0,0): a(l)
        for h in range(32):
            s=h&1
            if h==1: pf.pt("p3b0")
            nxt=reads3(s^1,h+1) if h<31 else []
            for l in nxt: a(l)
            issued=min(32,h+DEPTH)
            a(f"s_waitcnt vmcnt({issued-h-1}) lgkmcnt({len(nxt)})")
            for nt in range(2):
                c = "0" if h==0 else vr(ACC3+16*nt,16)
                a(f"v_mfma_f32_32x32x16_bf16 {vr(ACC3+16*nt,16)}, {vr(WFR[s]+4*nt,4)}, {vr(OFR+4*h,4)}, {c}")
            if h+DEPTH<32: oload(h+DEPTH)
    pf.pt("p3loop")
    a(f"""
    s_lshl_b32 s{sT}, s{sTB}, 16
    s_lshl_b32 s{sT2}, s{sP3BR}, 10
    s_add_u32 s{sT}, s{sT}, s{sT2}
    s_lshl_b32 s{sT2}, s{sP3NS}, 7
    s_add_u32 s{sT}, s{sT}, s{sT2}
    v_and_b32 v6, 31, v1
    v_lshlrev_b32 v6, 11, v6
    v_lshrrev_b32 v7, 5, v1
    v_lshl_add_u32 v6, v7, 5, v6
    s_nop 7
    """)
    if cfg.get("outT"):
        a(f"""
        s_lshl_b32 s{sT2}, s{sWV}, 12
        v_and_b32 v8, 31, v1
        v_lshlrev_b32 v8, 7, v8                    ; token*128
        v_lshrrev_b32 v9, 5, v1
        v_lshl_add_u32 v8, v9, 5, v8               ; + hf*32
        v_and_b32 v9, 7, v1
        v_lshlrev_b32 v9, 4, v9
        v_add_u32 v8, s{sT2}, v8
        """)
        for nt in range(2):
            b=ACC3+16*nt; T=16+8*nt
            for i in range(8): a(f"v_cvt_pk_bf16_f32 v{T+i}, v{b+2*i}, v{b+2*i+1}")
        for nt in range(2):
            for u in range(2):
                a(f"v_add_u32 v10, {nt*64+u*16}, v8\nv_xor_b32 v10, v10, v9\nds_write_b128 v10, {vr(16+8*nt+4*u,4)}")
        a(f"""
        v_lshrrev_b32 v11, 3, v1
        v_and_b32 v12, 7, v1                       ; chunk
        v_xor_b32 v13, v12, v11
        v_lshlrev_b32 v13, 4, v13
        v_lshl_add_u32 v13, v11, 7, v13
        v_add_u32 v13, s{sT2}, v13
        v_lshlrev_b32 v14, 11, v11
        v_lshl_add_u32 v14, v12, 4, v14
        s_waitcnt lgkmcnt(0)
        """)
        for i in range(4): a(f"ds_read_b128 {vr(32+4*i,4)}, v13 offset:{i*1024}")
        for i in range(4):
            a(f"s_waitcnt lgkmcnt({3-i})\ns_add_u32 s{sT2}, s{sT}, {i*8*2048}\nbuffer_store_dwordx4 {vr(32+4*i,4)}, v14, s[{SOUT}:{SOUT+3}], s{sT2} offen {OSTF}")
    else:
      for nt in range(2):
        b=ACC3+16*nt; T=8+8*nt
        for i in range(8): a(f"v_cvt_pk_bf16_f32 v{T+i}, v{b+2*i}, v{b+2*i+1}")
        a(f"buffer_store_dwordx4 {vr(T,4)}, v6, s[{SOUT}:{SOUT+3}], s{sT} offen offset:{nt*64} {OSTF}")
        a(f"buffer_store_dwordx4 {vr(T+4,4)}, v6, s[{SOUT}:{SOUT+3}], s{sT} offen offset:{nt*64+16} {OSTF}")
    a(f"""
    s_cmp_lg_u32 s2, 0
    s_cbranch_scc1 {name}_nn
    s_cmp_lg_u32 s{sWV}, 0
    s_cbranch_scc1 {name}_nn
    s_mov_b32 s{sT}, {NONCE}
    v_mov_b32 v12, 0
    v_mov_b32 v13, s{sN}
    buffer_store_dword v13, v12, s[{R.SWS}:{R.SWS+3}], s{sT} offen sc1
    {name}_nn:
    """)
    if pf.on:
        a("s_waitcnt vmcnt(0)"); pf.pt("end"); pf0.flush(len(PTS),4,2,wave=cfg.get("pwave",0) if cfg.get("pwave",0)<4 else 99)
    a.label(f"{name}_end")
    a("s_endpgm")
    if cfg.get("slow_ool"): a.lines+=R.deferred
    a.label(f"{name}_last")
    a("s_endpgm")
    return dict(name=name, grid=256, block=512, lds=163840, vgpr=248, sgpr=104 if False else 102)
```

```python
from asmlib import *
from k1 import QF,KF,VF,PQ,OF,KVP,WS_USED
NEGBIG=-1.0e30

def diag_mask(r):
    m=0
    for l in range(64):
        b=8*(r>>2)+4*(l>>5)+(r&3)
        if b<=(l&31): m|=1<<l
    return m

KL=0; VL=16384; ONES=32768; KVL=ONES+9216; RED=KVL+17408; K2_LDS=RED+1088+192

class K2R:
    KL=KL; VL=VL; ONES=ONES; KVL=KVL; RED=RED; NP=16; KVPB=KVP
    SWS=8
    sWAVE=20; sRB=21; sH=22; sQB=23; sT=24; sT2=25; sTMIN=26; sBASE=27; sOB=30
    MASK=32
    vLANE=1; vL16=3; vQ=4; vPQ=8; PM=16; vKA=24; vVA=25; vKVA=26; vRA=27; MX=28
    KFr=32
    SA,SB,SC,SD=68,84,100,116
    M=132; NEG=148; O=164; P=180; P2=188; VA=196; VB=204; OA=212; TMP=228

def k2_setup_consts(a, R):
    sT,sT2=R.sT,R.sT2
    a(f"""
    v_mov_b32 v12, 0x3f803f80
    v_mov_b32 v13, 0x3f803f80
    v_mov_b32 v14, 0x3f803f80
    v_mov_b32 v15, 0x3f803f80
    s_lshl_b32 s{sT}, s{R.sWAVE}, 10
    s_add_u32 s{sT}, s{sT}, {R.ONES}
    v_add_u32 v16, s{sT}, v{R.vL16}
    ds_write_b128 v16, v[12:15]
    v_add_u32 v16, {R.ONES+8192}, v{R.vL16}
    ds_write_b128 v16, v[12:15]
    """)
    for r in range(16):
        m=diag_mask(r)
        a(f"s_mov_b32 s{R.MASK+2*r}, {m&0xffffffff:#x}\ns_mov_b32 s{R.MASK+2*r+1}, {m>>32:#x}")
    a("v_mov_b32 v24, 0xffff\nv_mov_b32 v25, 0xffff0000")
    for i in range(8):
        a(f"v_cndmask_b32_e64 v{R.PM+i}, 0, v24, s[{R.MASK+4*i}:{R.MASK+4*i+1}]")
        a(f"v_cndmask_b32_e64 v26, 0, v25, s[{R.MASK+4*i+2}:{R.MASK+4*i+3}]")
        a(f"v_or_b32 v{R.PM+i}, v{R.PM+i}, v26")
    a(f"""
    s_lshl_b32 s{sT}, s{R.sWAVE}, 10
    s_add_u32 s{sT2}, s{sT}, {R.KL}
    v_add_u32 v{R.vKA}, s{sT2}, v{R.vL16}
    v_and_b32 v28, 31, v{R.vLANE}             ; idx
    v_lshrrev_b32 v29, 5, v{R.vLANE}          ; hf
    v_lshlrev_b32 v30, 4, v28
    v_lshl_add_u32 v30, v29, 8, v30
    s_add_u32 s{sT2}, s{sT}, {R.VL}
    v_add_u32 v30, s{sT2}, v30
    v_subrev_u32 v31, 20, v28
    v_cmp_gt_u32 vcc, 8, v31
    v_mov_b32 v31, {R.ONES}
    v_mov_b32 v12, {R.ONES+64}
    v_cndmask_b32_e64 v31, v31, v12, vcc
    v_cmp_gt_u32 vcc, 16, v28
    s_nop 1
    v_cndmask_b32_e64 v{R.vVA}, v31, v30, vcc
    v_lshlrev_b32 v30, 5, v28
    v_lshl_add_u32 v30, v29, 9, v30
    v_lshlrev_b32 v31, 5, v29
    v_add_u32 v31, 1024, v31
    v_cndmask_b32_e64 v{R.vKVA}, v31, v30, vcc
    v_add_u32 v{R.vKVA}, {R.RED}, v{R.vKVA}
    s_sub_u32 s{R.sTMIN}, 8, s{R.sWAVE}
    s_cmp_eq_u32 s{R.sRB}, 0
    s_cselect_b32 s{R.sTMIN}, s{R.sTMIN}, 1
    """)

def k2_setup_regs(a, R):
    sT,sT2=R.sT,R.sT2
    for r in range(16):
        m=diag_mask(r)
        a(f"s_mov_b32 s{R.MASK+2*r}, {m&0xffffffff:#x}\ns_mov_b32 s{R.MASK+2*r+1}, {m>>32:#x}")
    a("v_mov_b32 v24, 0xffff\nv_mov_b32 v25, 0xffff0000")
    for i in range(8):
        a(f"v_cndmask_b32_e64 v{R.PM+i}, 0, v24, s[{R.MASK+4*i}:{R.MASK+4*i+1}]")
        a(f"v_cndmask_b32_e64 v26, 0, v25, s[{R.MASK+4*i+2}:{R.MASK+4*i+3}]")
        a(f"v_or_b32 v{R.PM+i}, v{R.PM+i}, v26")
    a(f"""
    v_lshlrev_b32 v13, 4, v{R.vLANE}
    s_lshl_b32 s{sT}, s{R.sWAVE}, 10
    s_add_u32 s{sT2}, s{sT}, {R.KL}
    v_add_u32 v{R.vKA}, s{sT2}, v13
    v_and_b32 v28, 31, v{R.vLANE}             ; idx
    v_lshrrev_b32 v29, 5, v{R.vLANE}          ; hf
    v_lshlrev_b32 v30, 4, v28
    v_lshl_add_u32 v30, v29, 8, v30
    s_add_u32 s{sT2}, s{sT}, {R.VL}
    v_add_u32 v30, s{sT2}, v30
    v_subrev_u32 v14, 20, v28
    v_cmp_gt_u32 vcc, 8, v14
    v_mov_b32 v14, {R.ONES}
    v_mov_b32 v12, {R.ONES+64}
    v_cndmask_b32_e64 v14, v14, v12, vcc
    v_cmp_gt_u32 vcc, 16, v28
    s_nop 1
    v_cndmask_b32_e64 v{R.vVA}, v14, v30, vcc
    v_lshlrev_b32 v30, 5, v28
    v_lshl_add_u32 v30, v29, 9, v30
    v_lshlrev_b32 v14, 5, v29
    v_add_u32 v14, 1024, v14
    v_cndmask_b32_e64 v{R.vKVA}, v14, v30, vcc
    v_add_u32 v{R.vKVA}, {R.RED}, v{R.vKVA}
    """)

def k2_setup_late(a, R):
    sT=R.sT
    a(f"""
    v_mov_b32 v12, 0x3f803f80
    v_mov_b32 v13, 0x3f803f80
    v_mov_b32 v14, 0x3f803f80
    v_mov_b32 v15, 0x3f803f80
    s_lshl_b32 s{sT}, s{R.sWAVE}, 10
    s_add_u32 s{sT}, s{sT}, {R.ONES}
    v_add_u32 v28, s{sT}, v{R.vL16}
    ds_write_b128 v28, v[12:15]
    v_add_u32 v29, {R.ONES+8192}, v{R.vL16}
    ds_write_b128 v29, v[12:15]
    s_sub_u32 s{R.sTMIN}, 8, s{R.sWAVE}
    s_cmp_eq_u32 s{R.sRB}, 0
    s_cselect_b32 s{R.sTMIN}, s{R.sTMIN}, 1
    """)

def k2_load_b(a, R, LDF):
    sT,sT2,SWS=R.sT,R.sT2,R.SWS
    a(f"""
    s_lshl_b32 s{R.sBASE}, s{R.sH}, 16            ; h*65536
    s_lshl_b32 s{sT}, s{R.sQB}, 10
    s_add_u32 s{sT}, s{sT}, s{R.sBASE}
    s_add_u32 s{sT2}, s{sT}, {QF}
    buffer_load_dwordx4 {vr(R.vQ,4)}, v{R.vL16}, s[{SWS}:{SWS+3}], s{sT2} offen {LDF}
    """)
    for u in range(2):
        a(f"""
        s_lshl_b32 s{sT}, s{R.sWAVE}, 1
        s_add_u32 s{sT}, s{sT}, {u}              ; slot
        s_lshl_b32 s{sT2}, s{R.sRB}, 3
        s_add_u32 s{sT2}, s{sT2}, s{sT}
        s_sub_i32 s{sT2}, s{sT2}, 8
        s_max_i32 s{sT2}, s{sT2}, 0              ; tile
        s_lshl_b32 s{sT2}, s{sT2}, 10
        s_add_u32 s{sT2}, s{sT2}, s{R.sBASE}
        s_lshl_b32 s{sT}, s{sT}, 10
        s_add_u32 m0, s{sT}, {R.KL}
        s_add_u32 s28, s{sT2}, {KF}
        buffer_load_dwordx4 v{R.vL16}, s[{SWS}:{SWS+3}], s28 offen {LDF} lds
        s_add_u32 m0, s{sT}, {R.VL}
        s_add_u32 s28, s{sT2}, {VF}
        buffer_load_dwordx4 v{R.vL16}, s[{SWS}:{SWS+3}], s28 offen {LDF} lds
        """)

def k2_load_a(a, R, LDF, name, pq=True):
    sT,sT2,SWS=R.sT,R.sT2,R.SWS
    a(f"""
    s_mul_i32 s28, s{R.sH}, 17408
    s_add_u32 s28, s28, {KVP}
    s_cmp_lg_u32 s{R.sWAVE}, 0
    s_cbranch_scc1 {name}_nokv16
    s_mov_b32 m0, {R.KVL+16*1024}
    s_add_u32 s{sT}, s28, {16*1024}
    buffer_load_dwordx4 v{R.vL16}, s[{SWS}:{SWS+3}], s{sT} offen {LDF} lds
    {name}_nokv16:
    s_lshl_b32 s{sT2}, s{R.sWAVE}, 10
    s_add_u32 m0, s{sT2}, {R.KVL}
    s_add_u32 s{sT}, s28, s{sT2}
    buffer_load_dwordx4 v{R.vL16}, s[{SWS}:{SWS+3}], s{sT} offen {LDF} lds
    s_add_u32 m0, s{sT2}, {R.KVL+8192}
    s_add_u32 s{sT}, s{sT}, 8192
    buffer_load_dwordx4 v{R.vL16}, s[{SWS}:{SWS+3}], s{sT} offen {LDF} lds
    """)
    if pq: a(f"""
    s_lshl_b32 s{sT}, s{R.sH}, 16
    s_lshl_b32 s{sT2}, s{R.sQB}, 10
    s_add_u32 s{sT}, s{sT}, s{sT2}
    s_add_u32 s{sT}, s{sT}, {PQ}
    buffer_load_dwordx4 {vr(R.vPQ,4)}, v{R.vL16}, s[{SWS}:{SWS+3}], s{sT} offen {LDF}
    """)

def k2_attn(a, R, name, cfg, pf=None, hooks=None):
    hooks=hooks or {}
    SA,SB,SC,SD,M,NEG,O,P,P2,VA,VB,TMP=R.SA,R.SB,R.SC,R.SD,R.M,R.NEG,R.O,R.P,R.P2,R.VA,R.VB,R.TMP
    vQ,vKA,vVA,MASK,PM,MX=R.vQ,R.vKA,R.vVA,R.MASK,R.PM,R.MX
    def kf(t): return R.KFr+4*t
    def mf(D,A_,B_,C): a(f"v_mfma_f32_32x32x16_bf16 {vr(D,16)}, {vr(A_,4)}, {vr(B_,4)}, {C if isinstance(C,str) else vr(C,16)}")
    def vreads(t,V):
        a(f"ds_read_b128 {vr(V,4)}, v{vVA} offset:{t*1024}")
        a(f"ds_read_b128 {vr(V+4,4)}, v{vVA} offset:{t*1024+512}")
    def chk(t,lab): a(f"s_cmp_gt_u32 s{R.sTMIN}, {t}\ns_cbranch_scc1 {lab}")
    def hook(k):
        if k in hooks: hooks[k]()
    FE=f"{name}_fend"; SLOW=f"{name}_slow"; EPI=f"{name}_epi"
    nomax=cfg.get("k2_nomax",True)
    if nomax:
        KA,KB,KC=kf(0),kf(1),kf(2)
        a(f"ds_read_b128 {vr(KA,4)}, v{vKA} offset:0")
        a(f"ds_read_b128 {vr(KB,4)}, v{vKA} offset:{8*1024}")
        a(f"ds_read_b128 {vr(KC,4)}, v{vKA} offset:{7*1024}")
        vreads(8,VA); vreads(0,VB)
        l0=f"{name}_f0a"; l1=f"{name}_f0b"
        a(f"s_cmp_eq_u32 s{R.sRB}, 0\ns_cbranch_scc1 {l0}")
        a("s_waitcnt lgkmcnt(6)")
        mf(SA,KA,vQ,"0")
        a(f"s_branch {l1}")
        a.label(l0)
        for r in range(16): a(f"v_mov_b32 v{SA+r}, {f2u(NEGBIG):#x}")
        a.label(l1)
        a("s_waitcnt lgkmcnt(5)")
        mf(SB,KB,vQ,"0")
        a("s_waitcnt lgkmcnt(4)")
        mf(SC,KC,vQ,"0")
        a(f"ds_read_b128 {vr(KA,4)}, v{vKA} offset:{6*1024}")
        hook("pre")
        a("s_nop 7\ns_nop 1")
        for r in range(16):
            a(f"v_cndmask_b32_e64 v{M+r}, v{SA+r}, v{SB+r}, s[{MASK+2*r}:{MASK+2*r+1}]")
        for r in range(16): a(f"v_exp_f32 v{M+r}, v{M+r}")
        a("s_nop 0")
        for i in range(8): a(f"v_cvt_pk_bf16_f32 v{P+i}, v{M+2*i}, v{M+2*i+1}")
        for i in range(8): a(f"v_and_b32 v{P2+i}, v{P+i}, v{PM+i}")
        for i in range(8): a(f"v_xor_b32 v{P+i}, v{P+i}, v{P2+i}")
        a("s_waitcnt lgkmcnt(1)")
        mf(O,VA,P2,"0"); mf(O,VA+4,P2+4,O)
        lab=f"{name}_fskip0"
        a(f"s_cmp_eq_u32 s{R.sRB}, 0\ns_cbranch_scc1 {lab}")
        mf(O,VB,P,O); mf(O,VB+4,P+4,O)
        a.label(lab)
        hook("post0")
        bufs=[SC,SD]; Vb=[VA,VB]; Pb=[P2,P]; Kb=[KA,KB]
        if cfg.get("k2_sched",0)==0:
          for n,t in enumerate(range(7,0,-1)):
            S=bufs[n&1]; Sn=bufs[(n+1)&1]; V=Vb[n&1]; Pp=Pb[n&1]
            chk(t,FE)
            vreads(t,V)
            if t>1:
                a("s_waitcnt lgkmcnt(2)")
                mf(Sn,Kb[n&1],vQ,"0")
            if t>2: a(f"ds_read_b128 {vr(Kb[(n+1)&1],4)}, v{vKA} offset:{(t-2)*1024}")
            hook(("it",t))
            for r in range(16): a(f"v_exp_f32 v{S+r}, v{S+r}")
            a("s_nop 0")
            for i in range(8): a(f"v_cvt_pk_bf16_f32 v{Pp+i}, v{S+2*i}, v{S+2*i+1}")
            a(f"s_waitcnt lgkmcnt({1 if t>2 else 0})")
            mf(O,V,Pp,O); mf(O,V+4,Pp+4,O)
        else:
          FEP=f"{name}_fendp"
          pend=None
          for n,t in enumerate(range(7,0,-1)):
            S=bufs[n&1]; Sn=bufs[(n+1)&1]; V=Vb[n&1]; Pp=Pb[n&1]
            if pend is None: chk(t,FE)
            else: chk(t,f"{FEP}{n}")
            if t>1:
                a(f"s_waitcnt lgkmcnt({0 if pend is None else 2})")
                mf(Sn,Kb[n&1],vQ,"0")
            if t>2: a(f"ds_read_b128 {vr(Kb[(n+1)&1],4)}, v{vKA} offset:{(t-2)*1024}")
            hook(("it",t))
            for r in range(4): a(f"v_exp_f32 v{S+r}, v{S+r}")
            if pend is not None:
                a(f"s_waitcnt lgkmcnt({1 if t>2 else 0})")
                mf(O,pend[0],pend[1],O)
            for r in range(4,8): a(f"v_exp_f32 v{S+r}, v{S+r}")
            if pend is not None: mf(O,pend[0]+4,pend[1]+4,O)
            vreads(t,V)
            for r in range(8,16): a(f"v_exp_f32 v{S+r}, v{S+r}")
            a("s_nop 0")
            for i in range(8): a(f"v_cvt_pk_bf16_f32 v{Pp+i}, v{S+2*i}, v{S+2*i+1}")
            pend=(V,Pp)
          a("s_waitcnt lgkmcnt(0)")
          mf(O,pend[0],pend[1],O); mf(O,pend[0]+4,pend[1]+4,O)
          a(f"s_branch {FE}")
          for n in range(1,7):
            V=Vb[(n-1)&1]; Pp=Pb[(n-1)&1]
            a.label(f"{FEP}{n}")
            a("s_waitcnt lgkmcnt(0)\ns_nop 1")
            mf(O,V,Pp,O); mf(O,V+4,Pp+4,O)
            if n<6: a(f"s_branch {FE}")
        a.label(FE)
        a(f"""
        s_nop 15
        v_max3_f32 v28, |v{O}|, |v{O+1}|, |v{O+2}|
        v_max3_f32 v29, |v{O+3}|, |v{O+4}|, |v{O+5}|
        v_max3_f32 v28, v28, |v{O+6}|, |v{O+7}|
        v_max_f32 v28, v28, v29
        s_mov_b32 s28, {f2u(2.0**-64):#x}
        s_mov_b32 s29, {f2u(2.0**64):#x}
        v_cmp_nle_f32 vcc, s28, v{O+8}
        v_cmp_nge_f32 s[30:31], s29, v{O+8}
        s_or_b64 vcc, vcc, s[30:31]
        s_mov_b32 s28, {f2u(2.0**120):#x}
        v_cmp_nge_f32 s[30:31], s28, v28
        s_or_b64 vcc, vcc, s[30:31]
        s_nop 4
        s_cbranch_vccz {EPI}
        """)
    ool=cfg.get("slow_ool") and nomax
    if ool:
        a.lines[-2]=a.lines[-2].replace(f"s_cbranch_vccz {EPI}",f"s_cbranch_vccnz {SLOW}") if "s_cbranch_vccz" in a.lines[-2] else a.lines[-2]
        a.lines[-1]=a.lines[-1].replace(f"s_cbranch_vccz {EPI}",f"s_cbranch_vccnz {SLOW}") if "s_cbranch_vccz" in a.lines[-1] else a.lines[-1]
        mark=len(a.lines)
    a.label(SLOW)
    a("s_waitcnt lgkmcnt(0)")
    for t in (0,8,7,6,5,4,3,2,1):
        a(f"ds_read_b128 {vr(kf(t),4)}, v{vKA} offset:{t*1024}")
    a("s_waitcnt lgkmcnt(0)")
    l0=f"{name}_rb0a"; l1=f"{name}_rb0b"
    a(f"s_cmp_eq_u32 s{R.sRB}, 0\ns_cbranch_scc1 {l0}")
    mf(SA,kf(0),vQ,"0")
    a(f"s_branch {l1}")
    a.label(l0)
    for r in range(16): a(f"v_mov_b32 v{SA+r}, {f2u(NEGBIG):#x}")
    a.label(l1)
    mf(SB,kf(8),vQ,"0"); mf(SC,kf(7),vQ,"0"); mf(SD,kf(6),vQ,"0")
    a("s_nop 15")
    for r in range(16):
        a(f"v_cndmask_b32_e64 v{M+r}, v{SA+r}, v{SB+r}, s[{MASK+2*r}:{MASK+2*r+1}]")
    a(f"v_max3_f32 v{MX}, v{M}, v{M+1}, v{M+2}")
    for r in range(3,15,2): a(f"v_max3_f32 v{MX}, v{MX}, v{M+r}, v{M+r+1}")
    a(f"v_max_f32 v{MX}, v{MX}, v{M+15}")
    def maxtile(S):
        for r in range(0,16,2): a(f"v_max3_f32 v{MX}, v{MX}, v{S+r}, v{S+r+1}")
    P1E=f"{name}_p1end"
    chk(7,P1E)
    mf(SA,kf(5),vQ,"0"); mf(SB,kf(4),vQ,"0")
    maxtile(SC); chk(6,P1E); maxtile(SD); chk(5,P1E)
    mf(SC,kf(3),vQ,"0"); mf(SD,kf(2),vQ,"0")
    maxtile(SA); chk(4,P1E); maxtile(SB); chk(3,P1E)
    mf(SA,kf(1),vQ,"0")
    maxtile(SC); chk(2,P1E); maxtile(SD); chk(1,P1E)
    a("s_nop 1")
    maxtile(SA)
    a.label(P1E)
    a(f"""
    v_mov_b32 v29, v{MX}
    s_nop 1
    v_permlane32_swap_b32 v29, v{MX}
    s_nop 1
    v_max_f32 v{MX}, v{MX}, v29
    v_sub_f32 v{NEG}, 0, v{MX}
    """)
    for r in range(1,16): a(f"v_mov_b32 v{NEG+r}, v{NEG}")
    vreads(8,VA); vreads(0,VB)
    mf(SC,kf(7),vQ,NEG)
    for i in range(8): a(f"v_pk_add_f32 {vr(M+2*i,2)}, {vr(M+2*i,2)}, {vr(NEG,2)}")
    for r in range(16): a(f"v_exp_f32 v{M+r}, v{M+r}")
    a("s_nop 0")
    for i in range(8): a(f"v_cvt_pk_bf16_f32 v{P+i}, v{M+2*i}, v{M+2*i+1}")
    for i in range(8): a(f"v_and_b32 v{P2+i}, v{P+i}, v{PM+i}")
    for i in range(8): a(f"v_xor_b32 v{P+i}, v{P+i}, v{P2+i}")
    a("s_waitcnt lgkmcnt(0)")
    mf(O,VA,P2,"0"); mf(O,VA+4,P2+4,O)
    lab=f"{name}_skip0"
    a(f"s_cmp_eq_u32 s{R.sRB}, 0\ns_cbranch_scc1 {lab}")
    mf(O,VB,P,O); mf(O,VB+4,P+4,O)
    a.label(lab)
    P2E=f"{name}_p2end"
    bufs=[SC,SD]; Vb=[VA,VB]; Pb=[P,P2]
    for n,t in enumerate(range(7,0,-1)):
        S=bufs[n&1]; Sn=bufs[(n+1)&1]; V=Vb[n&1]; Pp=Pb[n&1]
        chk(t,P2E)
        vreads(t,V)
        if t>1: mf(Sn,kf(t-1),vQ,NEG)
        for r in range(16): a(f"v_exp_f32 v{S+r}, v{S+r}")
        a("s_nop 0")
        for i in range(8): a(f"v_cvt_pk_bf16_f32 v{Pp+i}, v{S+2*i}, v{S+2*i+1}")
        a("s_waitcnt lgkmcnt(0)")
        mf(O,V,Pp,O); mf(O,V+4,Pp+4,O)
    a.label(P2E)
    a("s_nop 15")
    if ool:
        a(f"s_branch {EPI}")
        R.deferred=a.lines[mark:]
        del a.lines[mark:]
    a.label(EPI)
    a(f"v_rcp_f32 v{O+8}, v{O+8}\ns_nop 0")
    for r in range(8): a(f"v_mul_f32 v{O+r}, v{O+r}, v{O+8}")
    for i in range(4): a(f"v_cvt_pk_bf16_f32 v{TMP+i}, v{O+2*i}, v{O+2*i+1}")

def k2_apart(a, R, name):
    OA,TMP=R.OA,R.TMP
    a(f"""
    v_lshlrev_b32 v{R.vRA}, 2, v0               ; tid*4
    v_cmp_gt_u32 vcc, 272, v0
    s_and_saveexec_b64 s[28:29], vcc
    s_cbranch_execz {name}_nored
    """)
    RT=32
    for p in range(12):
        a(f"ds_read_b32 v{RT+p}, v{R.vRA} offset:{R.KVL+p*1088}")
    for p in range(1,4):
        a(f"s_waitcnt lgkmcnt({11-p})")
        a(f"v_add_f32 v{RT}, v{RT}, v{RT+p}")
    for p in range(12,16):
        a(f"ds_read_b32 v{RT+p}, v{R.vRA} offset:{R.KVL+p*1088}")
    for p in range(4,16):
        a(f"s_waitcnt lgkmcnt({15-p})")
        a(f"v_add_f32 v{RT}, v{RT}, v{RT+p}")
    a(f"""
    ds_write_b32 v{R.vRA}, v{RT} offset:{R.RED}
    {name}_nored:
    s_mov_b64 exec, s[28:29]
    s_waitcnt lgkmcnt(0)
    s_barrier
    ds_read_b128 {vr(TMP+8,4)}, v{R.vKVA}
    ds_read_b128 {vr(TMP+12,4)}, v{R.vKVA} offset:16
    s_waitcnt lgkmcnt(0)
    """)
    for i in range(4): a(f"v_cvt_pk_bf16_f32 v{TMP+8+i}, v{TMP+8+2*i}, v{TMP+8+2*i+1}")
    a("s_nop 1")
    a(f"v_mfma_f32_32x32x16_bf16 {vr(OA,16)}, {vr(TMP+8,4)}, {vr(R.vPQ,4)}, 0")
    a(f"""
    s_nop 15
    v_add_f32 v{OA+8}, {f2u(1e-6):#x}, v{OA+8}
    s_nop 0
    v_rcp_f32 v{OA+8}, v{OA+8}
    s_nop 0
    """)
    for r in range(8): a(f"v_mul_f32 v{OA+r}, v{OA+r}, v{OA+8}")
    for i in range(4): a(f"v_cvt_pk_bf16_f32 v{TMP+4+i}, v{OA+2*i}, v{OA+2*i+1}")

def gen_k2(a, name, cfg):
    LDF=cfg.get("k2_ldflags","")
    STF=cfg.get("k2_stflags","")
    R=K2R
    a.raw(f".globl {name}\n.p2align 8\n.type {name},@function\n{name}:")
    SWS=R.SWS
    pf=Prof(a,cfg,1,64,R.sWAVE,4,5)
    pf.stamp(0)
    a(f"""
    s_cmp_ge_u32 s2, 256
    s_cbranch_scc1 {name}_end
    s_load_dwordx2 s[4:5], s[0:1], 64
    v_lshrrev_b32 v2, 6, v0
    v_and_b32 v1, 63, v0
    """)
    if cfg.get("k2_map",1)==0:
        a(f"s_and_b32 s{R.sRB}, s2, 7\nv_readfirstlane_b32 s{R.sWAVE}, v2\ns_lshr_b32 s{R.sH}, s2, 3")
    else:
        a(f"""
        s_bfe_u32 s{R.sRB}, s2, 0x30003
        v_readfirstlane_b32 s{R.sWAVE}, v2
        s_and_b32 s{R.sH}, s2, 7
        s_lshr_b32 s{R.sT}, s2, 6
        s_lshl_b32 s{R.sT}, s{R.sT}, 3
        s_add_u32 s{R.sH}, s{R.sH}, s{R.sT}
        """)
    a(f"""
    v_lshlrev_b32 v3, 4, v1                   ; lane*16
    s_lshl_b32 s{R.sQB}, s{R.sRB}, 3
    s_add_u32 s{R.sQB}, s{R.sQB}, s{R.sWAVE}        ; qb
    s_waitcnt lgkmcnt(0)
    s_mov_b32 s{SWS}, s4
    s_mov_b32 s{SWS+1}, s5
    s_mov_b32 s{SWS+2}, {WS_USED}
    s_mov_b32 s{SWS+3}, 0x20000
    """)
    pf.stamp(6)
    k2_load_b(a,R,LDF)
    k2_load_a(a,R,LDF,name)
    pf.stamp(7)
    k2_setup_consts(a,R)
    pf.stamp(8)
    a("s_waitcnt vmcnt(3) lgkmcnt(0)\ns_barrier")
    pf.stamp(1)
    k2_attn(a,R,name,cfg,pf)
    a(f"""
    s_lshl_b32 s{R.sT}, s{R.sQB}, 5
    s_add_u32 s{R.sT}, s{R.sT}, s{R.sH}
    s_lshl_b32 s{R.sT}, s{R.sT}, 10
    s_add_u32 s{R.sOB}, s{R.sT}, {OF}
    s_add_u32 s{R.sT}, s{R.sOB}, {64*32*1024}
    buffer_store_dwordx4 {vr(R.TMP,4)}, v3, s[{SWS}:{SWS+3}], s{R.sT} offen {STF}
    """)
    pf.stamp(2)
    a("s_waitcnt vmcnt(1)\ns_barrier")
    k2_apart(a,R,name)
    a(f"buffer_store_dwordx4 {vr(R.TMP+4,4)}, v3, s[{SWS}:{SWS+3}], s{R.sOB} offen {STF}")
    if pf.on:
        pf.stamp(3); pf.stamp(4); a("s_waitcnt vmcnt(0)"); pf.stamp(5); pf.flush(9,84,30,wave=7)
    a.label(f"{name}_end")
    a("s_endpgm")
    return dict(name=name, grid=256, block=512, lds=K2_LDS, vgpr=248, sgpr=92 if cfg.get('prof') else 72)
```

```python
from asmlib import *
import math
from k1 import QF,KF,VF,PQ,OF,KVP,WS_USED,LOG2E,CSCALE
import k2
from k2 import K2R,k2_setup_regs,k2_setup_late,k2_setup_consts,k2_load_b,k2_load_a,k2_attn,k2_apart

FLG=KVP+0x90000
FL=128
FSTR=16*FL+256
F1=FLG; F2=FLG+16*FSTR; F2STR=32*FL+256; NONCE=F2+8*F2STR
FP=NONCE+256; FPSTR=32*FL+256
WOL=98304
NL=163840-16

sAWO=64; sBWO=66; sOUT=68; sDBG=70; sWSP=72; sN=74; sWV=75; sP3T=76; sP3NS=77; sP3BR=78; sCNT2=79

def poll(a, name, srd, soff, need_lo, need_hi, vtmp, voff, bound=30000, sleep=4):
    L=a.newlabel(name); D=a.newlabel(name+"d")
    a(f"""
    s_mov_b32 s{sCNT2}, 0
    s_mov_b64 exec, s[{need_lo}:{need_hi}]
    {L}:
    buffer_load_dword v{vtmp}, v{voff}, s[{srd}:{srd+3}], s{soff} offen sc1
    s_waitcnt vmcnt(0)
    v_cmp_eq_u32 vcc, s{sN}, v{vtmp}
    s_cmp_eq_u64 vcc, s[{need_lo}:{need_hi}]
    s_cbranch_scc1 {D}
    s_add_u32 s{sCNT2}, s{sCNT2}, 1
    s_cmp_lt_u32 s{sCNT2}, {bound}
    s_cbranch_scc0 {D}
    s_sleep {sleep}
    s_branch {L}
    {D}:
    s_mov_b64 exec, -1
    """)

def gen_p3v2(a,name,cfg,R,pf,pf0,PTS,OSTF,HLD):
    sT=R.sT; sT2=R.sT2
    WOL0=32768; WOL1=98304
    a(f"s_cmp_ge_u32 s{sWV}, 4\ns_cbranch_scc1 {name}_p3l")
    SOUT=16; sTT=26; sNH=27
    ACC3=32; OS=[64,80]; WSET=[96,104,112]
    vWA3=5; vO=7
    a(f"""
    s_and_b32 s{sTT}, s{sWV}, 1
    s_lshr_b32 s{sNH}, s{sWV}, 1
    s_mov_b32 s{SOUT}, s{sOUT}
    s_mov_b32 s{SOUT+1}, s{sOUT+1}
    s_mov_b32 s{SOUT+2}, 0x400000
    s_mov_b32 s{SOUT+3}, 0x20000
    v_bfe_u32 v6, v1, 2, 2
    v_lshrrev_b32 v7, 5, v1
    v_lshl_add_u32 v6, v7, 2, v6
    v_lshlrev_b32 v6, 7, v6
    v_and_b32 v7, 1, v1
    v_lshlrev_b32 v7, 1, v7
    v_bfe_u32 v24, v1, 4, 1
    v_or_b32 v7, v7, v24
    v_bfe_u32 v24, v1, 3, 1
    v_lshlrev_b32 v24, 2, v24
    v_xor_b32 v7, v7, v24
    v_lshl_add_u32 v6, v7, 4, v6
    v_bfe_u32 v24, v1, 1, 1
    v_lshl_add_u32 v{vWA3}, v24, 3, v6
    v_xor_b32 v{vWA3+1}, 64, v{vWA3}
    s_lshl_b32 s{sT}, s{sNH}, 16
    s_add_u32 s{sT}, s{sT}, {WOL0}
    v_add_u32 v{vWA3}, s{sT}, v{vWA3}
    v_add_u32 v{vWA3+1}, s{sT}, v{vWA3+1}
    s_lshl_b32 s{sT}, s{sTT}, 10
    v_add_u32 v{vO}, s{sT}, v3
    """)
    q=[]
    def rd_o(e):
        for hh in range(4):
            a(f"ds_read_b128 {vr(OS[e&1]+4*hh,4)}, v{vO} offset:{(e&3)*8192+hh*2048}"); q.append(("o",e))
    def rd_w(h):
        for nt in range(2):
            for t in range(2):
                a(f"ds_read_b64_tr_b16 {vr(WSET[h%3]+4*nt+2*t,2)}, v{vWA3+nt} offset:{h*2048+t*1024}"); q.append(("w",h))
    st={"done":0}
    def wait_for(tags):
        last=max(i for i,x in enumerate(q) if x in tags)
        if last<st["done"]: return
        n=len(q)-1-last
        assert n<=15 and len(q)-st["done"]<=16, (n,len(q)-st["done"])
        a(f"s_waitcnt lgkmcnt({n})"); st["done"]=last+1
    rd_w(0); rd_w(1)
    a("s_barrier")
    pf.pt("p3b0")
    rd_o(0)
    for h in range(32):
        e=h>>2; hh=h&3
        if hh==2 and e<7:
            wait_for([("o",e)])
            a("s_barrier")
            rd_o(e+1)
        if h+2<32: rd_w(h+2)
        wait_for([("w",h),("o",e)])
        for nt in range(2):
            c = "0" if h==0 else vr(ACC3+16*nt,16)
            a(f"v_mfma_f32_32x32x16_bf16 {vr(ACC3+16*nt,16)}, {vr(WSET[h%3]+4*nt,4)}, {vr(OS[e&1]+4*hh,4)}, {c}")
    pf.pt("p3loop")
    a(f"""
    s_lshl_b32 s{sT}, s{sP3T}, 1
    s_add_u32 s{sT}, s{sT}, s{sTT}
    s_lshl_b32 s{sT}, s{sT}, 16
    s_lshl_b32 s{sT2}, s{sP3BR}, 10
    s_add_u32 s{sT}, s{sT}, s{sT2}
    s_lshl_b32 s{sT2}, s{sP3NS}, 8
    s_add_u32 s{sT}, s{sT}, s{sT2}
    s_lshl_b32 s{sT2}, s{sNH}, 7
    s_add_u32 s{sT}, s{sT}, s{sT2}
    v_and_b32 v6, 31, v1
    v_lshlrev_b32 v6, 11, v6
    v_lshrrev_b32 v7, 5, v1
    v_lshl_add_u32 v6, v7, 5, v6
    s_nop 7
    """)
    if cfg.get("outT"):
        a(f"""
        s_lshl_b32 s{sT2}, s{sWV}, 12
        v_and_b32 v8, 31, v1
        v_lshlrev_b32 v8, 7, v8                    ; token*128
        v_lshrrev_b32 v9, 5, v1
        v_lshl_add_u32 v8, v9, 5, v8               ; + hf*32
        v_and_b32 v9, 7, v1
        v_lshlrev_b32 v9, 4, v9
        v_add_u32 v8, s{sT2}, v8
        """)
        for nt in range(2):
            b=ACC3+16*nt; T=16+8*nt
            for i in range(8): a(f"v_cvt_pk_bf16_f32 v{T+i}, v{b+2*i}, v{b+2*i+1}")
        for nt in range(2):
            for u in range(2):
                a(f"v_add_u32 v10, {nt*64+u*16}, v8\nv_xor_b32 v10, v10, v9\nds_write_b128 v10, {vr(16+8*nt+4*u,4)}")
        a(f"""
        v_lshrrev_b32 v11, 3, v1
        v_and_b32 v12, 7, v1                       ; chunk
        v_xor_b32 v13, v12, v11
        v_lshlrev_b32 v13, 4, v13
        v_lshl_add_u32 v13, v11, 7, v13
        v_add_u32 v13, s{sT2}, v13
        v_lshlrev_b32 v14, 11, v11
        v_lshl_add_u32 v14, v12, 4, v14
        s_waitcnt lgkmcnt(0)
        """)
        for i in range(4): a(f"ds_read_b128 {vr(32+4*i,4)}, v13 offset:{i*1024}")
        for i in range(4):
            a(f"s_waitcnt lgkmcnt({3-i})\ns_add_u32 s{sT2}, s{sT}, {i*8*2048}\nbuffer_store_dwordx4 {vr(32+4*i,4)}, v14, s[{SOUT}:{SOUT+3}], s{sT2} offen {OSTF}")
    else:
      for nt in range(2):
        b=ACC3+16*nt; T=8+8*nt
        for i in range(8): a(f"v_cvt_pk_bf16_f32 v{T+i}, v{b+2*i}, v{b+2*i+1}")
        a(f"buffer_store_dwordx4 {vr(T,4)}, v6, s[{SOUT}:{SOUT+3}], s{sT} offen offset:{nt*64} {OSTF}")
        a(f"buffer_store_dwordx4 {vr(T+4,4)}, v6, s[{SOUT}:{SOUT+3}], s{sT} offen offset:{nt*64+16} {OSTF}")
    a(f"""
    s_cmp_lg_u32 s2, 0
    s_cbranch_scc1 {name}_nn
    s_cmp_lg_u32 s{sWV}, 0
    s_cbranch_scc1 {name}_nn
    s_mov_b32 s{sT}, {NONCE}
    v_mov_b32 v12, 0
    v_mov_b32 v13, s{sN}
    buffer_store_dword v13, v12, s[{R.SWS}:{R.SWS+3}], s{sT} offen sc1
    {name}_nn:
    """)
    if pf.on:
        a("s_waitcnt vmcnt(0)"); pf.pt("end"); pf0.flush(len(PTS),4,2,wave=cfg.get("pwave",0) if cfg.get("pwave",0)<4 else 99)
    a("s_endpgm")
    a.label(f"{name}_p3l")
    sE=26; sB=27; sL=28
    a(f"""
    s_sub_u32 s{sE}, s{sWV}, 4
    s_lshl_b32 s{sT}, s{sP3BR}, 6
    s_lshl_b32 s{sT2}, s{sP3T}, 1
    s_add_u32 s{sT}, s{sT}, s{sT2}
    s_lshl_b32 s{sB}, s{sT}, 15
    s_lshl_b32 s{sT}, s{sE}, 10
    s_add_u32 s{sB}, s{sB}, s{sT}
    s_add_u32 s{sB}, s{sB}, {OF}
    s_lshl_b32 s{sL}, s{sE}, 11
    """)
    OR=32; LA=cfg.get("p3_la",5); mode=cfg.get("p3_mode","reg")
    items=[(e,tt) for e in range(8) for tt in range(2)]
    def ld(k):
        e,tt=items[k]
        if cfg.get("diag_p3noload"): return
        if mode=="reg":
            a(f"s_add_u32 s{sT}, s{sB}, {e*4096+tt*32768}\nbuffer_load_dwordx4 {vr(OR+4*k,4)}, v3, s[{R.SWS}:{R.SWS+3}], s{sT} offen {HLD}")
        else:
            a(f"s_add_u32 m0, s{sL}, {(e&3)*8192+tt*1024}\ns_add_u32 s{sT}, s{sB}, {e*4096+tt*32768}\nbuffer_load_dwordx4 v3, s[{R.SWS}:{R.SWS+3}], s{sT} offen {HLD} lds")
    issued=0
    if mode=="dma": LA=min(LA,6)
    while issued<LA: ld(issued); issued+=1
    a(f"v_add_u32 v4, s{sL}, v3")
    for e in range(8):
        need=2*e+2
        a(f"s_waitcnt vmcnt({max(issued-need,0)})")
        if mode=="reg":
            for tt in range(2):
                a(f"ds_write_b128 v4, {vr(OR+4*(2*e+tt),4)} offset:{(e&3)*8192+tt*1024}")
            while issued<min(16,need+LA): ld(issued); issued+=1
            a("s_waitcnt lgkmcnt(0)\ns_barrier")
        else:
            a("s_barrier")
            while issued<min(16,need+LA,2*(e+4)): ld(issued); issued+=1
    a.label(f"{name}_end")
    a.label(f"{name}_last")
    a("s_endpgm")

def gen_fused(a, name, cfg):
    NS=cfg.get("ns",3)
    assert NS==3 or cfg.get("wo_late")
    P3V=cfg.get("p3v",1)
    DEF=cfg.get("defer_pq",False)
    LDX=cfg.get("ldx",""); LDW=cfg.get("ldw","")
    STF="sc1"; HLD="sc1"
    OSTF=cfg.get("out_stflags","")
    XB=0; XS=16384; WB=NS*XS; WS_=24576
    a.raw(f".globl {name}\n.p2align 8\n.type {name},@function\n{name}:")
    sWAVE=20; sBR=21; sR=22; sG=23; sT=24; sT2=25
    SX=8; SW=12; SWS=16
    PTS=cfg.get("pts",["entry","p","loop","epi","b1","b2","kv","att","f2","end"])
    TIMER=cfg.get("timer","s_memrealtime")
    class PF0:
        on=cfg.get("prof",False)
        def flush(self,n,srd,vt,wave=0):
            if not self.on: return
            lab=a.newlabel("pf")
            a(f"""
            s_cmp_lg_u32 s{sWV}, {wave}
            s_cbranch_scc1 {lab}
            s_mov_b32 s4, s{sWSP}
            s_mov_b32 s5, s{sWSP+1}
            s_mov_b32 s6, {16<<20}
            s_mov_b32 s7, 0x20000
            s_lshl_b32 s24, s2, 6
            s_add_u32 s24, s24, {14<<20}
            v_lshlrev_b32 v2, 2, v1
            s_mov_b64 exec, 0xffff
            buffer_store_dword v247, v2, s[4:7], s24 offen
            s_mov_b64 exec, -1
            {lab}:
            """)
    pf0=PF0()
    class PF:
        on=pf0.on
        def pt(self,n):
            if self.on and n in PTS:
                a(f"{TIMER} s[100:101]\ns_waitcnt lgkmcnt(0)\nv_writelane_b32 v247, s100, {PTS.index(n)}")
    pf=PF()
    pf.pt("entry")
    a(f"""
    s_cmp_ge_u32 s2, 256
    s_cbranch_scc1 {name}_end
    """)
    if cfg.get("codepf_top"):
        nseg=cfg["codepf_top"]; lab=a.newlabel("cpt"); nwg=cfg.get("codepf_wgs",8)
        a(f"""
        s_load_dwordx4 s[28:31], s[0:1], 0
        s_load_dwordx4 s[32:35], s[0:1], 24
        s_load_dwordx2 s[{sAWO}:{sAWO+1}], s[0:1], 16
        s_load_dwordx2 s[{sBWO}:{sBWO+1}], s[0:1], 40
        s_load_dwordx4 s[{sOUT}:{sOUT+3}], s[0:1], 48
        s_load_dwordx2 s[{sWSP}:{sWSP+1}], s[0:1], 64
        s_cmp_ge_u32 s2, {nwg}
        s_cbranch_scc1 {lab}
        v_lshrrev_b32 v2, 6, v0
        v_and_b32 v1, 63, v0
        v_subrev_u32 v2, 1, v2                     ; wave - 1
        v_cmp_gt_u32 vcc, {nseg}, v2
        s_getpc_b64 s[4:5]
        {lab}_pc:
        s_sub_u32 s4, s4, {lab}_pc-{name}
        s_subb_u32 s5, s5, 0
        v_lshlrev_b32 v12, 13, v2
        v_lshl_add_u32 v12, v1, 7, v12
        v_min_u32 v12, {name}_last-{name}, v12
        v_mov_b32 v13, s5
        s_and_saveexec_b64 s[6:7], vcc
        s_cbranch_execz {lab}_x
        v_add_co_u32 v12, vcc, s4, v12
        s_nop 1
        v_addc_co_u32 v13, vcc, 0, v13, vcc
        global_load_dword v245, v[12:13], off
        {lab}_x:
        s_mov_b64 exec, s[6:7]
        {lab}:
        """)
    if not cfg.get("codepf_top"):
        a(f"""
        s_load_dwordx4 s[28:31], s[0:1], 0
        s_load_dwordx4 s[32:35], s[0:1], 24
        s_load_dwordx2 s[{sAWO}:{sAWO+1}], s[0:1], 16
        s_load_dwordx2 s[{sBWO}:{sBWO+1}], s[0:1], 40
        s_load_dwordx4 s[{sOUT}:{sOUT+3}], s[0:1], 48
        s_load_dwordx2 s[{sWSP}:{sWSP+1}], s[0:1], 64
        """)
    a(f"""
    v_lshrrev_b32 v2, 6, v0
    v_and_b32 v1, 63, v0
    s_and_b32 s{sT}, s2, 7
    v_readfirstlane_b32 s{sWAVE}, v2
    s_lshr_b32 s{sT2}, s2, 3
    s_and_b32 s{sBR}, s{sT}, 1
    s_lshr_b32 s{sT}, s{sT}, 1
    s_mov_b32 s{sP3BR}, s{sBR}
    s_lshl_b32 s{sP3T}, s{sT}, {3 if P3V==2 else 2}
    s_and_b32 s{sP3NS}, s{sT2}, {7 if P3V==2 else 3}
    s_add_u32 s{sP3T}, s{sP3T}, s{sP3NS}
    s_lshr_b32 s{sP3NS}, s{sT2}, {3 if P3V==2 else 2}
    s_and_b32 s{sR}, s{sT}, 1
    s_lshl_b32 s{sR}, s{sR}, 3
    s_lshr_b32 s{sG}, s{sT}, 1
    s_lshl_b32 s{sG}, s{sG}, 2
    s_and_b32 s{sT}, s{sT2}, 7
    s_add_u32 s{sR}, s{sR}, s{sT}
    s_lshr_b32 s{sT}, s{sT2}, 3
    s_add_u32 s{sG}, s{sG}, s{sT}
    s_mov_b32 s{sWV}, s{sWAVE}
    s_mov_b32 s83, 0
    """)
    FAST=cfg.get("faststart",False)
    sE=26; sXB=27; sWBs=38; sL=39; sROT=40; sXC=41; sWC=42
    def loader_setup():
        a(f"""
        s_sub_u32 s{sE}, s{sWAVE}, 4
        v_lshrrev_b32 v2, 3, v1
        v_and_b32 v3, 7, v1
        v_lshrrev_b32 v4, 1, v2
        s_and_b32 s{sT}, s{sE}, 1
        s_lshl_b32 s{sT}, s{sT}, 2
        v_or_b32 v4, s{sT}, v4
        v_xor_b32 v4, v4, v3
        v_lshlrev_b32 v5, 10, v2
        v_lshl_add_u32 v5, v4, 4, v5            ; x voffset
        v_bfe_u32 v4, v1, 4, 1
        v_lshlrev_b32 v4, 2, v4
        v_xor_b32 v4, v4, v3
        v_mul_u32_u24 v6, 3072, v2
        v_lshl_add_u32 v6, v4, 4, v6            ; w voffset
        v_lshlrev_b32 v7, 10, v2
        v_lshl_add_u32 v7, v4, 4, v7
        s_lshl_b32 s{sXB}, s{sR}, 17
        s_lshl_b32 s{sT}, s{sE}, 13
        s_add_u32 s{sXB}, s{sXB}, s{sT}
        s_lshl_b32 s{sWBs}, s{sG}, 7
        s_mul_i32 s{sT}, s{sE}, 24576
        s_add_u32 s{sWBs}, s{sWBs}, s{sT}
        s_lshl_b32 s{sL}, s{sE}, 10
        s_mov_b32 s{sROT}, 0
        """)
        for (src,sh,mask,mul) in cfg.get("k1_rot",[["R",0,3,2],["G",0,3,1]]):
            r={"R":sR,"G":sG}[src]
            a(f"s_lshr_b32 s{sT}, s{r}, {sh}\ns_and_b32 s{sT}, s{sT}, {mask}\ns_mul_i32 s{sT}, s{sT}, {mul}\ns_add_u32 s{sROT}, s{sROT}, s{sT}")
    if FAST: loader_setup()
    a(f"""
    s_mov_b32 s{SX+2}, 0x200000
    s_mov_b32 s{SX+3}, 0x20000
    s_mov_b32 s{SW+2}, 0x180000
    s_mov_b32 s{SW+3}, 0x20000
    s_mov_b32 s{SWS+2}, {WS_USED}
    s_mov_b32 s{SWS+3}, 0x20000
    s_cmp_eq_u32 s{sBR}, 0
    s_waitcnt lgkmcnt(0)
    s_cselect_b32 s{SX}, s28, s32
    s_cselect_b32 s{SX+1}, s29, s33
    s_cselect_b32 s{SW}, s30, s34
    s_cselect_b32 s{SW+1}, s31, s35
    s_mov_b32 s{SWS}, s{sWSP}
    s_mov_b32 s{SWS+1}, s{sWSP+1}
    """)
    def nonce_load():
        a(f"""
        s_mov_b32 s4, {NONCE}
        v_mov_b32 v30, 0
        buffer_load_dword v31, v30, s[{SWS}:{SWS+3}], s4 offen sc1
        """)
    if FAST:
        a(f"s_cmp_lt_u32 s{sWAVE}, 4\ns_cbranch_scc1 {name}_compute")
        mark_entry_end=len(a.lines)
        a.label(f"{name}_compute")
        nonce_load()
    else:
        nonce_load()
        a(f"s_cmp_ge_u32 s{sWAVE}, 4\ns_cbranch_scc1 {name}_loader")
    EC=cfg.get("early_consts",False)
    if EC: cD0,cD1,cD2,cD3,cA,cB,cC,cM,cT,cU,vONE,vKa,vKb=92,93,94,95,96,98,4,6,28,30,236,240,241
    else:  cD0,cD1,cD2,cD3,cA,cB,cC,cM,cT,cU,vONE,vKa,vKb=58,59,60,61,46,48,50,52,54,56,20,16,17
    sTM=26; sFN=27
    vXA=4; vWA=8
    ACC=32
    def acc(tt,sec): return ACC+(tt*3+sec)*16
    FR=[128,148]
    def xf(s,tt): return FR[s]+4*tt
    def wf(s,sec): return FR[s]+8+4*sec
    if cfg.get("pretouch"):
        lab=a.newlabel("ptc")
        a(f"""
        s_cmp_lg_u32 s{sWAVE}, 2
        s_cbranch_scc1 {lab}
        v_and_b32 v12, 7, v1
        v_lshlrev_b32 v12, 21, v12
        v_add_u32 v12, {0x1ffc00 if False else 0x100000}, v12
        v_min_u32 v12, {WS_USED-256}, v12
        buffer_load_dword v14, v12, s[{SWS}:{SWS+3}], 0 offen
        s_mov_b32 s44, s{sOUT}
        s_mov_b32 s45, s{sOUT+1}
        s_mov_b32 s46, 0x400000
        s_mov_b32 s47, 0x20000
        v_and_b32 v12, 1, v1
        v_lshlrev_b32 v12, 21, v12
        buffer_load_dword v15, v12, s[44:47], 0 offen
        s_cmp_eq_u32 s{sP3BR}, 0
        s_cselect_b32 s44, s{sAWO}, s{sBWO}
        s_cselect_b32 s45, s{sAWO+1}, s{sBWO+1}
        s_mov_b32 s46, 0x80000
        v_mov_b32 v12, 0
        buffer_load_dword v16, v12, s[44:47], 0 offen
        {lab}:
        """)
    if cfg.get("codepf"):
        nseg=cfg["codepf"]
        lab=a.newlabel("cpf")
        a(f"""
        s_cmp_lg_u32 s{sWAVE}, 1
        s_cbranch_scc1 {lab}
        s_lshr_b32 s4, s2, 3
        s_cmp_ge_u32 s4, {nseg}
        s_cbranch_scc1 {lab}
        s_lshl_b32 s6, s4, 13
        s_getpc_b64 s[4:5]
        {lab}_pc:
        s_sub_u32 s4, s4, {lab}_pc-{name}
        s_subb_u32 s5, s5, 0
        v_lshlrev_b32 v12, 7, v1
        v_add_u32 v12, s6, v12
        v_min_u32 v12, {name}_last-{name}, v12
        v_mov_b32 v13, s5
        v_add_co_u32 v12, vcc, s4, v12
        s_nop 1
        v_addc_co_u32 v13, vcc, 0, v13, vcc
        global_load_dword v245, v[12:13], off
        {lab}:
        """)
    a(f"""
    s_and_b32 s{sTM}, s{sWAVE}, 1
    s_lshr_b32 s{sFN}, s{sWAVE}, 1
    v_lshrrev_b32 v2, 5, v1                 ; hf
    v_and_b32 v3, 31, v1                    ; t31
    v_lshrrev_b32 v9, 1, v3
    v_and_b32 v9, 7, v9                     ; g
    s_lshl_b32 s{sT}, s{sTM}, 13
    v_lshlrev_b32 v10, 7, v3
    v_add_u32 v10, s{sT}, v10
    """)
    for ks in range(4):
        a(f"v_or_b32 v11, {2*ks}, v2\nv_xor_b32 v11, v11, v9\nv_lshl_add_u32 v{vXA+ks}, v11, 4, v10")
    a(f"""
    v_bfe_u32 v10, v1, 2, 2
    v_lshlrev_b32 v10, 7, v10
    v_lshl_add_u32 v10, v2, 10, v10
    v_bfe_u32 v11, v1, 4, 1
    v_lshlrev_b32 v11, 1, v11
    v_bfe_u32 v12, v1, 1, 1
    v_or_b32 v11, v11, v12
    s_lshl_b32 s{sT}, s{sFN}, 2
    v_or_b32 v11, s{sT}, v11
    v_bfe_u32 v12, v1, 3, 1
    v_lshlrev_b32 v12, 2, v12
    v_xor_b32 v11, v11, v12
    v_lshl_add_u32 v10, v11, 4, v10
    v_and_b32 v12, 1, v1
    v_lshl_add_u32 v10, v12, 3, v10
    v_add_u32 v{vWA}, {WB}, v10
    """)
    for r in range(ACC,ACC+96): a(f"v_mov_b32 v{r}, 0")
    a(f"""
    s_mov_b32 s{cD0}, {(-(NS-1)*XS)&0xffffffff:#x}
    s_mov_b32 s{cD1}, {XS}
    s_mov_b32 s{cD2}, {(-(NS-1)*WS_)&0xffffffff:#x}
    s_mov_b32 s{cD3}, {WS_}
    """)
    if EC: k2_setup_regs(a,K2R)
    def reads(s, ks):
        L=[]
        L.append(f"ds_read_b128 {vr(xf(s,0),4)}, v{vXA+ks}")
        L.append(f"ds_read_b64_tr_b16 {vr(wf(s,0),2)}, v{vWA} offset:{ks*2048}")
        L.append(f"ds_read_b64_tr_b16 {vr(wf(s,0)+2,2)}, v{vWA} offset:{ks*2048+512}")
        L.append(f"ds_read_b128 {vr(xf(s,1),4)}, v{vXA+ks} offset:4096")
        for sec in (1,2):
            L.append(f"ds_read_b64_tr_b16 {vr(wf(s,sec),2)}, v{vWA} offset:{sec*8192+ks*2048}")
            L.append(f"ds_read_b64_tr_b16 {vr(wf(s,sec)+2,2)}, v{vWA} offset:{sec*8192+ks*2048+512}")
        return L
    def mfmas(s, br):
        L=[]
        order=[(sec,tt) for sec in range(3) for tt in range(2)]
        if cfg.get("mf_order")=="x": order=[(sec,tt) for tt in range(2) for sec in range(3)]
        for sec,tt in order:
            for _one in (0,):
                featrow = (sec==0) or (sec==1 and br==1)
                A_,B_ = (wf(s,sec),xf(s,tt)) if featrow else (xf(s,tt),wf(s,sec))
                if cfg.get("mf16test"):
                    o=acc(tt,sec)+8*s
                    L.append(f"v_mfma_f32_16x16x32_bf16 {vr(o,4)}, {vr(A_,4)}, {vr(B_,4)}, {vr(o,4)}\nv_mfma_f32_16x16x32_bf16 {vr(o+4,4)}, {vr(B_,4)}, {vr(A_,4)}, {vr(o+4,4)}")
                else:
                    L.append(f"v_mfma_f32_32x32x16_bf16 {vr(acc(tt,sec),16)}, {vr(A_,4)}, {vr(B_,4)}, {vr(acc(tt,sec),16)}")
        return L
    def step(s, br, rd):
        M=mfmas(s,br)
        if rd:
            a(M[0]); a(rd[0]); a(rd[1]); a(rd[2])
            a(M[1]); a(rd[3]); a(rd[4]); a(rd[5])
            a(M[2]); a(rd[6]); a(rd[7])
            a(M[3]); a(M[4]); a(M[5])
        else:
            for m in M: a(m)
    sCNT,sSTG,sDX,sDW=(82,85,86,87) if EC else (38,39,40,41)
    for br in (0,1):
        bn="AB"[br]
        if br==0: a(f"s_cmp_eq_u32 s{sBR}, 1\ns_cbranch_scc1 {name}_cB")
        else: a.label(f"{name}_cB")
        a(f"s_mov_b32 s{sCNT}, 0\ns_mov_b32 s{sSTG}, 0\ns_waitcnt vmcnt(0)\nv_readfirstlane_b32 s{sN}, v31\ns_nop 3\ns_add_u32 s{sN}, s{sN}, 1")
        a("s_barrier")
        pf.pt("p")
        for l in reads(0,0): a(l)
        a.label(f"{name}_loop{bn}")
        for ks in range(3):
            a("s_waitcnt lgkmcnt(0)")
            step(ks&1, br, reads((ks+1)&1, ks+1))
        a(f"""
        s_add_u32 s{sSTG}, s{sSTG}, 1
        s_cmp_eq_u32 s{sSTG}, {NS}
        s_cselect_b32 s{sDX}, s{cD0}, s{cD1}
        s_cselect_b32 s{sDW}, s{cD2}, s{cD3}
        s_cselect_b32 s{sSTG}, 0, s{sSTG}
        s_waitcnt lgkmcnt(0)
        s_barrier
        """)
        if cfg.get("chunkstamps"):
            for c in range(7):
                lab=a.newlabel("cs")
                a(f"s_cmp_lg_u32 s{sCNT}, {c}\ns_cbranch_scc1 {lab}")
                pf.pt(f"c{c}")
                a.label(lab)
        for ks in range(4): a(f"v_add_u32 v{vXA+ks}, s{sDX}, v{vXA+ks}")
        a(f"v_add_u32 v{vWA}, s{sDW}, v{vWA}")
        step(1, br, reads(0,0))
        a(f"""
        s_add_u32 s{sCNT}, s{sCNT}, 1
        s_cmp_lt_u32 s{sCNT}, 7
        s_cbranch_scc1 {name}_loop{bn}
        """)
        sOFF,sH,sTB=(88,89,90) if EC else (42,43,44)
        def epi_addr():
            a(f"""
            s_lshl_b32 s{sH}, s{sG}, 2
            s_lshl_b32 s{sT}, s{sFN}, 1
            s_add_u32 s{sH}, s{sH}, s{sT}
            s_lshl_b32 s{sTB}, s{sR}, 2
            s_lshl_b32 s{sT}, s{sTM}, 1
            s_add_u32 s{sTB}, s{sTB}, s{sT}
            s_lshl_b32 s{sOFF}, s{sH}, 16
            s_lshl_b32 s{sT}, s{sTB}, 10
            s_add_u32 s{sOFF}, s{sOFF}, s{sT}
            v_lshlrev_b32 v9, 4, v1
            """)
        T0=128
        if br==1 and cfg.get("lastchunk"):
            epi_addr()
            a(f"""
            s_mov_b32 s{cA}, {f2u(CSCALE):#x}
            s_mov_b32 s{cA+1}, {f2u(CSCALE):#x}
            v_bfe_u32 v10, v1, 4, 1
            v_lshlrev_b32 v10, 16, v10
            v_lshrrev_b32 v11, 5, v1
            v_lshl_add_u32 v10, v11, 8, v10
            v_and_b32 v11, 15, v1
            v_lshl_add_u32 v10, v11, 4, v10
            """)
            XL={0:[xf(0,0),xf(0,1)]}; WL={(0,sec):wf(0,sec) for sec in range(3)}
            reg=168
            for ks in range(1,4): XL[ks]=[reg,reg+4]; reg+=8
            for sec in (1,2,0):
                for ks in range(1,4): WL[(ks,sec)]=reg; reg+=4
            assert reg<=232
            q=[]; st={"done":0}
            def rx(ks):
                a(f"ds_read_b128 {vr(XL[ks][0],4)}, v{vXA+ks}"); q.append(("x",ks))
                a(f"ds_read_b128 {vr(XL[ks][1],4)}, v{vXA+ks} offset:4096"); q.append(("x",ks))
            def rw(ks,sec):
                for t in range(2):
                    a(f"ds_read_b64_tr_b16 {vr(WL[(ks,sec)]+2*t,2)}, v{vWA} offset:{sec*8192+ks*2048+t*512}"); q.append(("w",ks,sec))
            def wait_for(tags):
                idx=[i for i,x in enumerate(q) if x in tags]
                if not idx or max(idx)<st["done"]: return
                n=len(q)-1-max(idx); assert n<=15 and len(q)-st["done"]<=15,(n,len(q),st)
                a(f"s_waitcnt lgkmcnt({n})"); st["done"]=max(idx)+1
            def mm(sec,ks,tt):
                featrow = sec in (0,1)
                A_,B_ = (WL[(ks,sec)],XL[ks][tt]) if featrow else (XL[ks][tt],WL[(ks,sec)])
                a(f"v_mfma_f32_32x32x16_bf16 {vr(acc(tt,sec),16)}, {vr(A_,4)}, {vr(B_,4)}, {vr(acc(tt,sec),16)}")
            TK=128+8
            TK=148
            def kops():
                L=[]
                for tt in range(2):
                    b=acc(tt,1); tmp=TK+8*tt
                    for i in range(8): L.append(f"v_cvt_pk_bf16_f32 v{tmp+i}, v{b+2*i}, v{b+2*i+1}")
                    L.append(f"s_add_u32 s{sT}, s{sOFF}, {KF+tt*1024}\nbuffer_store_dwordx4 {vr(tmp,4)}, v9, s[{SWS}:{SWS+3}], s{sT} offen {STF}")
                    L.append(f"s_add_u32 s{sT2}, s{sOFF}, {KF+tt*1024+65536}\nbuffer_store_dwordx4 {vr(tmp+4,4)}, v9, s[{SWS}:{SWS+3}], s{sT2} offen {STF}")
                return L
            TV=232
            def vops():
                L=[]
                for tt in range(2):
                    b=acc(tt,2); tmp=[232,148][tt]
                    for i in range(8): L.append(f"v_cvt_pk_bf16_f32 v{tmp+i}, v{b+2*i}, v{b+2*i+1}")
                    L.append(f"s_add_u32 s{sT}, s{sOFF}, {VF+tt*1024}\nbuffer_store_dwordx4 {vr(tmp,4)}, v10, s[{SWS}:{SWS+3}], s{sT} offen {STF}")
                    L.append(f"buffer_store_dwordx4 {vr(tmp+4,4)}, v10, s[{SWS}:{SWS+3}], s{sT} offen offset:512 {STF}")
                return L
            a("s_waitcnt lgkmcnt(0)")
            rx(1); rw(1,1); rx(2); rw(2,1)
            mm(1,0,0); mm(1,0,1)
            rx(3); rw(3,1)
            wait_for([("x",1),("w",1,1)]); mm(1,1,0); rw(1,2); mm(1,1,1)
            wait_for([("x",2),("w",2,1)]); mm(1,2,0); rw(2,2); mm(1,2,1)
            wait_for([("x",3),("w",3,1)]); mm(1,3,0); rw(3,2); mm(1,3,1)
            mm(2,0,0); rw(1,0); mm(2,0,1); rw(2,0)
            wait_for([("w",1,2)]); mm(2,1,0); rw(3,0); mm(2,1,1)
            a("s_nop 3")
            K=kops()
            for l in K[0:5]: a(l)
            wait_for([("w",2,2)]); mm(2,2,0)
            for l in K[5:10]: a(l)
            mm(2,2,1)
            for l in K[10:15]: a(l)
            wait_for([("w",3,2)]); mm(2,3,0)
            for l in K[15:20]: a(l)
            mm(2,3,1)
            mm(0,0,0); mm(0,0,1)
            wait_for([("w",1,0)]); mm(0,1,0); mm(0,1,1)
            a("s_nop 7")
            V=vops()
            for l in V[0:5]: a(l)
            wait_for([("w",2,0)]); mm(0,2,0)
            for l in V[5:10]: a(l)
            mm(0,2,1)
            for l in V[10:15]: a(l)
            wait_for([("w",3,0)]); mm(0,3,0)
            for l in V[15:20]: a(l)
            mm(0,3,1)
            pf.pt("loop")
            a("s_nop 15")
            tmp=168
            for tt in range(2):
                b=acc(tt,0)
                for i in range(8): a(f"v_pk_mul_f32 {vr(b+2*i,2)}, {vr(b+2*i,2)}, s[{cA}:{cA+1}]")
                for i in range(8): a(f"v_cvt_pk_bf16_f32 v{tmp+i}, v{b+2*i}, v{b+2*i+1}")
                a(f"s_add_u32 s{sT}, s{sOFF}, {QF+tt*1024}")
                a(f"buffer_store_dwordx4 {vr(tmp,4)}, v9, s[{SWS}:{SWS+3}], s{sT} offen {STF}")
                a(f"s_add_u32 s{sT2}, s{sOFF}, {QF+tt*1024+65536}")
                a(f"buffer_store_dwordx4 {vr(tmp+4,4)}, v9, s[{SWS}:{SWS+3}], s{sT2} offen {STF}")
                tmp+=8
            a(f"s_branch {name}_p1done")
            continue
        for ks in range(3):
            a("s_waitcnt lgkmcnt(0)")
            step(ks&1, br, reads((ks+1)&1, ks+1))
        a("s_waitcnt lgkmcnt(0)")
        step(1, br, [])
        pf.pt("loop")
        epi_addr()
        if br==1:
            a(f"s_mov_b32 s{cA}, {f2u(CSCALE):#x}\ns_mov_b32 s{cA+1}, {f2u(CSCALE):#x}")
            a(f"""
            v_bfe_u32 v10, v1, 4, 1
            v_lshlrev_b32 v10, 16, v10
            v_lshrrev_b32 v11, 5, v1
            v_lshl_add_u32 v10, v11, 8, v10
            v_and_b32 v11, 15, v1
            v_lshl_add_u32 v10, v11, 4, v10
            s_nop 7
            """)
            tmp=T0
            for tt in range(2):
                b=acc(tt,1)
                for i in range(8): a(f"v_cvt_pk_bf16_f32 v{tmp+i}, v{b+2*i}, v{b+2*i+1}")
                a(f"s_add_u32 s{sT}, s{sOFF}, {KF+tt*1024}")
                a(f"buffer_store_dwordx4 {vr(tmp,4)}, v9, s[{SWS}:{SWS+3}], s{sT} offen {STF}")
                a(f"s_add_u32 s{sT2}, s{sOFF}, {KF+tt*1024+65536}")
                a(f"buffer_store_dwordx4 {vr(tmp+4,4)}, v9, s[{SWS}:{SWS+3}], s{sT2} offen {STF}")
                tmp+=8
            for tt in range(2):
                b=acc(tt,2)
                for i in range(8): a(f"v_cvt_pk_bf16_f32 v{tmp+i}, v{b+2*i}, v{b+2*i+1}")
                a(f"s_add_u32 s{sT}, s{sOFF}, {VF+tt*1024}")
                a(f"buffer_store_dwordx4 {vr(tmp,4)}, v10, s[{SWS}:{SWS+3}], s{sT} offen {STF}")
                a(f"buffer_store_dwordx4 {vr(tmp+4,4)}, v10, s[{SWS}:{SWS+3}], s{sT} offen offset:512 {STF}")
                tmp+=8
            for tt in range(2):
                b=acc(tt,0)
                for i in range(8): a(f"v_pk_mul_f32 {vr(b+2*i,2)}, {vr(b+2*i,2)}, s[{cA}:{cA+1}]")
                for i in range(8): a(f"v_cvt_pk_bf16_f32 v{tmp+i}, v{b+2*i}, v{b+2*i+1}")
                a(f"s_add_u32 s{sT}, s{sOFF}, {QF+tt*1024}")
                a(f"buffer_store_dwordx4 {vr(tmp,4)}, v9, s[{SWS}:{SWS+3}], s{sT} offen {STF}")
                a(f"s_add_u32 s{sT2}, s{sOFF}, {QF+tt*1024+65536}")
                a(f"buffer_store_dwordx4 {vr(tmp+4,4)}, v9, s[{SWS}:{SWS+3}], s{sT2} offen {STF}")
                tmp+=8
            a(f"s_branch {name}_p1done")
        else:
            a(f"""
            s_mov_b32 s{cA}, {f2u(LOG2E):#x}
            s_mov_b32 s{cA+1}, {f2u(LOG2E):#x}
            s_mov_b32 s{cB}, 1.0
            s_mov_b32 s{cB+1}, 1.0
            s_mov_b32 s{cC}, {f2u(1e-6):#x}
            s_mov_b32 s{cC+1}, {f2u(1e-6):#x}
            s_mov_b32 s{cM}, 0x0000ffff
            s_mov_b32 s{cM+1}, 0x0000ffff
            v_mov_b32 v{vONE}, 0x3f803f80
            v_mov_b32 v{vONE+1}, 0x3f803f80
            v_mov_b32 v{vONE+2}, 0x3f803f80
            v_mov_b32 v{vONE+3}, 0x3f803f80
            s_nop 4
            """)
            U=168
            def phi(b):
                for i in range(8): a(f"v_pk_mul_f32 {vr(U+2*i,2)}, {vr(b+2*i,2)}, s[{cA}:{cA+1}]")
                for i in range(16): a(f"v_exp_f32 v{U+i}, v{U+i} clamp")
                for i in range(8): a(f"v_pk_add_f32 {vr(b+2*i,2)}, {vr(b+2*i,2)}, s[{cB}:{cB+1}]")
                for i in range(16): a(f"v_max_f32 v{b+i}, v{b+i}, v{U+i}")
                for i in range(8): a(f"v_pk_add_f32 {vr(b+2*i,2)}, {vr(b+2*i,2)}, s[{cC}:{cC+1}]")
            PK=[128,136]; VV=[144,152]; D=184; D2=200
            def qpart(tt,tmp):
                b=acc(tt,0)
                phi(b)
                for i in range(8): a(f"v_cvt_pk_bf16_f32 v{tmp+i}, v{b+2*i}, v{b+2*i+1}")
                if DEF: return
                a(f"s_add_u32 s{sT}, s{sOFF}, {PQ+tt*1024}")
                a(f"buffer_store_dwordx4 {vr(tmp,4)}, v9, s[{SWS}:{SWS+3}], s{sT} offen {STF}")
                a(f"s_add_u32 s{sT2}, s{sOFF}, {PQ+tt*1024+65536}")
                a(f"buffer_store_dwordx4 {vr(tmp+4,4)}, v9, s[{SWS}:{SWS+3}], s{sT2} offen {STF}")
            QF1=cfg.get("a_qfirst",False)
            if QF1: qpart(0,216); qpart(1,224)
            for tt in range(2):
                b=acc(tt,2)
                for i in range(8): a(f"v_cvt_pk_bf16_f32 v{VV[tt]+i}, v{b+2*i}, v{b+2*i+1}")
            for tt in range(2):
                b=acc(tt,1)
                phi(b)
                for i in range(8): a(f"v_cvt_pk_bf16_f32 v{PK[tt]+i}, v{b+2*i}, v{b+2*i+1}")
                a("s_nop 1")
                for m in range(2):
                    c1 = "0" if (tt==0 and m==0) else vr(D,16)
                    c2 = "0" if (tt==0 and m==0) else vr(D2,16)
                    a(f"v_mfma_f32_32x32x16_bf16 {vr(D,16)}, {vr(PK[tt]+4*m,4)}, {vr(VV[tt]+4*m,4)}, {c1}")
                    a(f"v_mfma_f32_32x32x16_bf16 {vr(D2,16)}, {vr(PK[tt]+4*m,4)}, v[{vONE}:{vONE+3}], {c2}")
            def kvp_addr():
                a(f"""
                v_and_b32 v11, 31, v1
                v_lshrrev_b32 v12, 5, v1
                v_and_b32 v13, 15, v1
                v_lshlrev_b32 v13, 5, v13
                v_lshl_add_u32 v13, v12, 9, v13
                v_lshlrev_b32 v14, 5, v12
                v_add_u32 v14, 1024, v14
                v_mov_b32 v15, 0x40000000
                v_cmp_eq_u32 s[{cT}:{cT+1}], 16, v11
                v_cmp_eq_u32 s[{cU}:{cU+1}], 0, v11
                s_nop 1
                v_cndmask_b32_e64 v{vKa}, v15, v14, s[{cT}:{cT+1}]
                v_cndmask_b32_e64 v{vKb}, v15, v14, s[{cU}:{cU+1}]
                v_cndmask_b32_e64 v{vKa}, v{vKa}, v13, s[{cM}:{cM+1}]
                v_cndmask_b32_e64 v{vKb}, v13, v{vKb}, s[{cM}:{cM+1}]
                """)
            if QF1:
                kvp_addr()
                a("s_nop 1")
            else:
                a("s_nop 15")
            for r in range(8):  a(f"v_cndmask_b32_e64 v{D+r}, v{D2+r}, v{D+r}, s[{cM}:{cM+1}]")
            for r in range(8,16): a(f"v_cndmask_b32_e64 v{D+r}, v{D+r}, v{D2+r}, s[{cM}:{cM+1}]")
            EX = 0
            a(f"""
            s_lshl_b32 s{sT}, s{sFN}, 12
            s_add_u32 s{sT}, s{sT}, {EX}
            v_add_u32 v10, s{sT}, v9
            s_cmp_eq_u32 s{sTM}, 0
            s_cbranch_scc1 {name}_Ard
            """)
            for q in range(4): a(f"ds_write_b128 v10, {vr(D+4*q,4)} offset:{q*1024}")
            a(f"s_waitcnt lgkmcnt(0)")
            a.label(f"{name}_Ard")
            a("s_barrier")
            a(f"s_cmp_lg_u32 s{sTM}, 0\ns_cbranch_scc1 {name}_Aq")
            for q in range(4): a(f"ds_read_b128 {vr(D2+4*q,4)}, v10 offset:{q*1024}")
            if not QF1: kvp_addr()
            a(f"""
            s_lshl_b32 s{sT}, s{sH}, 4
            s_add_u32 s{sT}, s{sT}, s{sR}
            s_mul_i32 s{sT}, s{sT}, 1088
            s_add_u32 s{sT}, s{sT}, {KVP}
            s_add_u32 s{sT2}, s{sT}, {16*1088}
            s_waitcnt lgkmcnt(0)
            """)
            for i in range(8): a(f"v_pk_add_f32 {vr(D+2*i,2)}, {vr(D+2*i,2)}, {vr(D2+2*i,2)}")
            a(f"""
            buffer_store_dwordx4 {vr(D,4)}, v{vKa}, s[{SWS}:{SWS+3}], s{sT} offen {STF}
            buffer_store_dwordx4 {vr(D+4,4)}, v{vKa}, s[{SWS}:{SWS+3}], s{sT} offen offset:16 {STF}
            buffer_store_dwordx4 {vr(D+8,4)}, v{vKb}, s[{SWS}:{SWS+3}], s{sT2} offen {STF}
            buffer_store_dwordx4 {vr(D+12,4)}, v{vKb}, s[{SWS}:{SWS+3}], s{sT2} offen offset:16 {STF}
            """)
            a.label(f"{name}_Aq")
            if not QF1: qpart(0,216); qpart(1,224 if DEF else 128)
            if DEF:
                a(f"""
                s_mov_b32 s82, s{sOFF}
                s_lshl_b32 s{sT}, s{sG}, 1
                s_add_u32 s{sT}, s{sT}, s{sFN}
                s_mul_i32 s{sT}, s{sT}, {FPSTR}
                s_lshl_b32 s{sT2}, s{sR}, 1
                s_add_u32 s{sT2}, s{sT2}, s{sTM}
                s_lshl_b32 s{sT2}, s{sT2}, 7
                s_add_u32 s{sT}, s{sT}, s{sT2}
                s_add_u32 s84, s{sT}, {FP}
                s_mov_b32 s83, 1
                """)
            a(f"s_branch {name}_p1done")
    mark_loader_start=len(a.lines)
    a.label(f"{name}_loader")
    if not FAST: loader_setup()
    def issue(c, part=None):
        st=c%NS
        L=[]
        hdr=f"""
        s_add_u32 s{sT}, s{sROT}, {c}
        s_and_b32 s{sT}, s{sT}, 7
        s_lshl_b32 s{sXC}, s{sT}, 7
        s_add_u32 s{sXC}, s{sXC}, s{sXB}
        s_mul_i32 s{sWC}, s{sT}, 196608
        s_add_u32 s{sWC}, s{sWC}, s{sWBs}
        """
        for i in range(4):
            L.append(f"s_add_u32 m0, s{sL}, {XB+st*XS+i*4096}\ns_add_u32 s{sT}, s{sXC}, {i*32768}\nbuffer_load_dwordx4 v5, s[{SX}:{SX+3}], s{sT} offen {LDX} lds")
        for jj in range(2):
            for sec in range(3):
                L.append(f"s_add_u32 m0, s{sL}, {WB+st*WS_+sec*8192+jj*4096}\ns_add_u32 s{sT}, s{sWC}, {jj*4*24576+sec*1024}\nbuffer_load_dwordx4 v6, s[{SW}:{SW+3}], s{sT} offen {LDW} lds")
        lo,hi = part if part else (0,10)
        if lo==0: a(hdr)
        for l in L[lo:hi]: a(l)
    k0=cfg.get("pro_k",5)
    issue(0)
    if FAST: nonce_load()
    issue(1,(0,k0))
    a(f"s_waitcnt vmcnt({k0})\nv_readfirstlane_b32 s{sN}, v31\ns_nop 3\ns_add_u32 s{sN}, s{sN}, 1\ns_barrier")
    if k0<10: issue(1,(k0,10))
    for c_ in range(2,NS): issue(c_)
    for c in range(7):
        issued=min(8,c+NS)
        rem=10*(issued-(c+2))
        if c==6: rem=(1 if cfg.get("wo_late") else 16) if P3V==1 else 17
        a(f"s_waitcnt vmcnt({rem})\ns_barrier")
        if c+NS<8: issue(c+NS)
        if c==5:
            a(f"""
            s_cmp_eq_u32 s{sP3BR}, 0
            s_cselect_b32 s28, s{sAWO}, s{sBWO}
            s_cselect_b32 s29, s{sAWO+1}, s{sBWO+1}
            s_mov_b32 s30, 0x80000
            s_mov_b32 s31, 0x20000
            s_lshl_b32 s{sXC}, s{sP3NS}, {7 if P3V==1 else 8}
            s_lshl_b32 s{sT}, s{sE}, 13
            s_add_u32 s{sXC}, s{sXC}, s{sT}
            """)
            if P3V==1 and cfg.get("wo_late"):
                a(f"""
                v_and_b32 v8, 31, v1
                s_lshl_b32 s{sT}, s{sE}, 5
                v_add_u32 v8, s{sT}, v8
                v_lshlrev_b32 v8, 10, v8
                s_and_b32 s{sT}, s{sP3T}, 3
                s_lshl_b32 s{sT}, s{sT}, 17
                s_lshl_b32 s{sXC}, s{sP3NS}, 7
                s_add_u32 s{sT}, s{sT}, s{sXC}
                buffer_load_dword v244, v8, s[28:31], s{sT} offen
                """)
            elif P3V==1 and cfg.get("p3rot",0):
                a(f"s_lshl_b32 s{sXC}, s{sP3NS}, 7\ns_mul_i32 s{sWC}, s{sP3NS}, {2*cfg['p3rot']}\ns_add_u32 s{sWC}, s{sWC}, s{sE}")
                for u in range(16):
                    a(f"s_add_u32 m0, s{sL}, {WOL+u*4096}")
                    a(f"s_add_u32 s{sT}, s{sWC}, {4*u}\ns_and_b32 s{sT}, s{sT}, 63\ns_lshl_b32 s{sT}, s{sT}, 13\ns_add_u32 s{sT}, s{sT}, s{sXC}")
                    a(f"buffer_load_dwordx4 v7, s[28:31], s{sT} offen lds")
            else:
              for u in range(16):
                a(f"s_add_u32 m0, s{sL}, {WOL+u*4096}")
                a(f"s_add_u32 s{sT}, s{sXC}, {u*32768+(0 if P3V==1 else 128)}")
                a(f"buffer_load_dwordx4 v7, s[28:31], s{sT} offen lds")
            if P3V==2:
                a(f"""
                v_and_b32 v8, 15, v1
                s_lshl_b32 s{sT}, s{sE}, 4
                v_add_u32 v8, s{sT}, v8
                v_lshlrev_b32 v8, 10, v8
                s_bfe_u32 s{sT}, s2, 0x30003
                s_lshl_b32 s{sT}, s{sT}, 16
                s_lshl_b32 s{sXC}, s{sP3NS}, 8
                s_add_u32 s{sT}, s{sT}, s{sXC}
                buffer_load_dword v9, v8, s[28:31], s{sT} offen
                """)
    if EC: k2_setup_regs(a,K2R)
    a(f"s_cmp_eq_u32 s{sBR}, 1\ns_cbranch_scc1 {name}_p1bar\ns_barrier\ns_branch {name}_p1bar")
    if FAST:
        blk=a.lines[mark_loader_start:]
        del a.lines[mark_loader_start:]
        a.lines[mark_entry_end:mark_entry_end]=blk
    a.label(f"{name}_p1done")
    pf.pt("epi")
    a("s_waitcnt vmcnt(0)")
    a.label(f"{name}_p1bar")
    a("s_barrier")
    R=K2R
    a(f"""
    s_cmp_lg_u32 s{sWV}, 0
    s_cbranch_scc1 {name}_nf1
    s_lshl_b32 s{sT}, s{sBR}, 3
    s_add_u32 s{sT}, s{sT}, s{sG}
    s_mul_i32 s{sT}, s{sT}, {FSTR}
    s_lshl_b32 s{sT2}, s{sR}, 7
    s_add_u32 s{sT}, s{sT}, s{sT2}
    s_add_u32 s{sT}, s{sT}, {F1}
    v_mov_b32 v12, 0
    v_mov_b32 v13, s{sN}
    buffer_store_dword v13, v12, s[{SWS}:{SWS+3}], s{sT} offen sc1
    {name}_nf1:
    """)
    pf.pt("b1")
    a(f"""
    s_mov_b32 s{R.sWAVE}, s{sWV}
    s_bfe_u32 s{R.sRB}, s2, 0x30003
    s_and_b32 s{R.sH}, s2, 7
    s_lshr_b32 s{R.sT}, s2, 6
    s_lshl_b32 s{R.sT}, s{R.sT}, 3
    s_add_u32 s{R.sH}, s{R.sH}, s{R.sT}
    v_lshlrev_b32 v3, 4, v1
    s_lshl_b32 s{R.sQB}, s{R.sRB}, 3
    s_add_u32 s{R.sQB}, s{R.sQB}, s{R.sWAVE}
    s_mov_b32 s{R.SWS}, s{sWSP}
    s_mov_b32 s{R.SWS+1}, s{sWSP+1}
    s_mov_b32 s{R.SWS+2}, {WS_USED}
    s_mov_b32 s{R.SWS+3}, 0x20000
    """)
    if EC: k2_setup_late(a,R)
    else: k2_setup_consts(a,R)
    sFA=12; sNEED=14
    a(f"""
    v_lshlrev_b32 v2, 7, v1
    s_lshr_b32 s{sFA}, s{R.sH}, 2
    s_mul_i32 s{sFA}, s{sFA}, {FSTR}
    s_add_u32 s13, s{sFA}, {F1}               ; A row
    s_add_u32 s{sFA}, s{sFA}, {F1+8*FSTR}     ; B row
    """)
    if cfg.get("wavepoll"):
        a(f"""
        s_lshl_b32 s{R.sT}, s{R.sRB}, 1
        s_lshr_b32 s{R.sT2}, s{sWV}, 1
        s_add_u32 s{R.sT2}, s{R.sT2}, s{R.sT}
        s_sub_i32 s{R.sT2}, s{R.sT2}, 2
        s_max_i32 s{R.sT2}, s{R.sT2}, 0
        s_lshl_b32 s{sNEED}, 1, s{R.sT2}
        s_lshr_b32 s{R.sT2}, s{sWV}, 2
        s_add_u32 s{R.sT2}, s{R.sT2}, s{R.sT}
        s_lshl_b32 s{R.sT2}, 1, s{R.sT2}
        s_or_b32 s{sNEED}, s{sNEED}, s{R.sT2}
        s_mov_b32 s{sNEED+1}, 0
        """)
        poll(a,"pb",R.SWS,sFA,sNEED,sNEED+1,12,2,sleep=cfg.get("sleep1",4))
    else:
        a(f"""
        s_cmp_lg_u32 s{sWV}, 0
        s_cbranch_scc1 {name}_np2
        s_lshl_b32 s{R.sT}, s{R.sRB}, 1
        s_lshl_b32 s{sNEED}, 15, s{R.sT}
        s_lshr_b32 s{sNEED}, s{sNEED}, 2          ; (0b1111 << 2rb) >> 2
        s_mov_b32 s{sNEED+1}, 0
        """)
        poll(a,"pb",R.SWS,sFA,sNEED,sNEED+1,12,2,sleep=cfg.get("sleep1",4))
        a.label(f"{name}_np2")
        a("s_waitcnt lgkmcnt(0)\ns_barrier")
    pf.pt("b2")
    k2_load_b(a,R,HLD)
    if DEF:
        a(f"s_cmp_eq_u32 s83, 0\ns_cbranch_scc1 {name}_nopq")
        for tt in range(2):
            a(f"s_add_u32 s{R.sT}, s82, {PQ+tt*1024}\nbuffer_store_dwordx4 {vr(216+8*tt,4)}, v3, s[{R.SWS}:{R.SWS+3}], s{R.sT} offen {STF}")
            a(f"s_add_u32 s{R.sT2}, s82, {PQ+tt*1024+65536}\nbuffer_store_dwordx4 {vr(220+8*tt,4)}, v3, s[{R.SWS}:{R.SWS+3}], s{R.sT2} offen {STF}")
        a(f"s_waitcnt vmcnt(4)\ns_branch {name}_pqd\n{name}_nopq:\ns_waitcnt vmcnt(0)\n{name}_pqd:\ns_barrier")
    else:
        a("s_waitcnt vmcnt(0) lgkmcnt(0)\ns_barrier")
    pf.pt("kv")
    if cfg.get("prio"):
        a(f"s_cmp_ge_u32 s{sWV}, 4\ns_cbranch_scc0 {name}_nprio\ns_setprio 1\n{name}_nprio:")
    def h_pre():
        a(f"s_mov_b64 exec, 0xffff\nbuffer_load_dword v13, v2, s[{R.SWS}:{R.SWS+3}], s13 offen sc1\ns_mov_b64 exec, -1")
    def h_post0():
        pf.pt("post0")
        D=a.newlabel("pa")
        a(f"""
        s_mov_b32 s{sNEED}, 0xffff
        s_mov_b32 s{sNEED+1}, 0
        s_waitcnt vmcnt(0)
        v_cmp_eq_u32 vcc, s{sN}, v13
        s_and_b64 vcc, vcc, s[{sNEED}:{sNEED+1}]
        s_cmp_eq_u64 vcc, s[{sNEED}:{sNEED+1}]
        s_cbranch_scc1 {D}
        """)
        poll(a,"pa2",R.SWS,13,sNEED,sNEED+1,13,2)
        a.label(D)
        pf.pt("aflag")
        if DEF:
            lab=a.newlabel("pqf")
            a(f"""
            s_cmp_eq_u32 s83, 0
            s_cbranch_scc1 {lab}
            v_mov_b32 v12, 0
            v_mov_b32 v13, s{sN}
            buffer_store_dword v13, v12, s[{R.SWS}:{R.SWS+3}], s84 offen sc1
            {lab}:
            """)
        k2_load_a(a,R,HLD,name,pq=not DEF)
    def pq_addr():
        a(f"""
        s_lshr_b32 s14, s{R.sH}, 1
        s_mul_i32 s14, s14, {FPSTR}
        s_lshr_b32 s15, s{R.sQB}, 1
        s_lshl_b32 s15, s15, 7
        s_add_u32 s14, s14, s15
        s_add_u32 s16, s14, {FP}
        v_mov_b32 v12, 0
        """)
    def pq_load():
        a(f"""
        s_lshl_b32 s{R.sT}, s{R.sH}, 16
        s_lshl_b32 s{R.sT2}, s{R.sQB}, 10
        s_add_u32 s{R.sT}, s{R.sT}, s{R.sT2}
        s_add_u32 s{R.sT}, s{R.sT}, {PQ}
        buffer_load_dwordx4 {vr(R.vPQ,4)}, v3, s[{R.SWS}:{R.SWS+3}], s{R.sT} offen {HLD}
        """)
    def pq_check(first):
        D=a.newlabel("pqd")
        a("s_mov_b32 s14, 1\ns_mov_b32 s15, 0")
        if first:
            a(f"""
            s_waitcnt vmcnt(0)
            v_readfirstlane_b32 s{R.sT}, v13
            s_cmp_eq_u32 s{R.sT}, s{sN}
            s_cbranch_scc1 {D}
            """)
        poll(a,"pq2",R.SWS,16,14,15,13,12,sleep=2)
        a.label(D)
        pq_load()
    def h_probe():
        lab=a.newlabel("pr")
        a(f"s_cmp_eq_u32 s{R.sRB}, 0\ns_cbranch_scc1 {lab}")
        pq_addr()
        a(f"buffer_load_dword v13, v12, s[{R.SWS}:{R.SWS+3}], s16 offen sc1\n{lab}:")
    def h_check():
        lab=a.newlabel("ck")
        a(f"s_cmp_eq_u32 s{R.sRB}, 0\ns_cbranch_scc1 {lab}")
        pq_check(True)
        a.label(lab)
    hk={"pre":h_pre,"post0":h_post0}
    if DEF: hk[("it",cfg.get("pq_at",2)+1)]=h_probe; hk[("it",cfg.get("pq_at",2))]=h_check
    AMID=cfg.get("amid",False)
    if AMID:
        OA,TMP=R.OA,R.TMP
        def h_a1():
            lab=a.newlabel("am1"); nr=a.newlabel("amr")
            RT=R.SA
            a(f"""
            s_cmp_eq_u32 s{R.sRB}, 0
            s_cbranch_scc1 {lab}
            s_waitcnt vmcnt(0) lgkmcnt(0)
            s_barrier
            v_lshlrev_b32 v{R.vRA}, 2, v0
            v_cmp_gt_u32 vcc, 272, v0
            s_and_saveexec_b64 s[28:29], vcc
            s_cbranch_execz {nr}
            """)
            for p in range(12): a(f"ds_read_b32 v{RT+p}, v{R.vRA} offset:{R.KVL+p*1088}")
            for p in range(1,4):
                a(f"s_waitcnt lgkmcnt({11-p})\nv_add_f32 v{RT}, v{RT}, v{RT+p}")
            for p in range(12,16): a(f"ds_read_b32 v{RT+p}, v{R.vRA} offset:{R.KVL+p*1088}")
            for p in range(4,16):
                a(f"s_waitcnt lgkmcnt({15-p})\nv_add_f32 v{RT}, v{RT}, v{RT+p}")
            a(f"""
            ds_write_b32 v{R.vRA}, v{RT} offset:{R.RED}
            {nr}:
            s_mov_b64 exec, s[28:29]
            s_waitcnt lgkmcnt(0)
            {lab}:
            """)
        def h_a2():
            lab=a.newlabel("am2")
            a(f"""
            s_cmp_eq_u32 s{R.sRB}, 0
            s_cbranch_scc1 {lab}
            s_barrier
            ds_read_b128 {vr(TMP+8,4)}, v{R.vKVA}
            ds_read_b128 {vr(TMP+12,4)}, v{R.vKVA} offset:16
            s_waitcnt lgkmcnt(0)
            """)
            for i in range(4): a(f"v_cvt_pk_bf16_f32 v{TMP+8+i}, v{TMP+8+2*i}, v{TMP+8+2*i+1}")
            a("s_nop 1")
            a(f"v_mfma_f32_32x32x16_bf16 {vr(OA,16)}, {vr(TMP+8,4)}, {vr(R.vPQ,4)}, 0")
            a.label(lab)
        def h_a3():
            lab=a.newlabel("am3")
            a(f"""
            s_cmp_eq_u32 s{R.sRB}, 0
            s_cbranch_scc1 {lab}
            v_add_f32 v{OA+8}, {f2u(1e-6):#x}, v{OA+8}
            s_lshl_b32 s{R.sT}, s{R.sQB}, 5
            s_add_u32 s{R.sT}, s{R.sT}, s{R.sH}
            v_rcp_f32 v{OA+8}, v{OA+8}
            s_lshl_b32 s{R.sT}, s{R.sT}, 10
            s_add_u32 s{R.sT}, s{R.sT}, {OF}
            """)
            for r in range(8): a(f"v_mul_f32 v{OA+r}, v{OA+r}, v{OA+8}")
            for i in range(4): a(f"v_cvt_pk_bf16_f32 v{TMP+4+i}, v{OA+2*i}, v{OA+2*i+1}")
            a(f"buffer_store_dwordx4 {vr(TMP+4,4)}, v3, s[{R.SWS}:{R.SWS+3}], s{R.sT} offen {STF}")
            a.label(lab)
        t1,t2,t3=cfg.get("amid_at",[4,3,2])
        hk[("it",t1)]=h_a1; hk[("it",t2)]=h_a2; hk[("it",t3)]=h_a3
    k2_attn(a,R,name,cfg,pf,hooks=hk)
    if DEF:
        lab=a.newlabel("rb0")
        a(f"s_cmp_lg_u32 s{R.sRB}, 0\ns_cbranch_scc1 {lab}")
        pq_addr(); pq_check(False)
        a.label(lab)
    a(f"""
    s_lshl_b32 s{R.sT}, s{R.sQB}, 5
    s_add_u32 s{R.sT}, s{R.sT}, s{R.sH}
    s_lshl_b32 s{R.sT}, s{R.sT}, 10
    s_add_u32 s{R.sOB}, s{R.sT}, {OF}
    s_add_u32 s{R.sT}, s{R.sOB}, {64*32*1024}
    buffer_store_dwordx4 {vr(R.TMP,4)}, v3, s[{R.SWS}:{R.SWS+3}], s{R.sT} offen {STF}
    """)
    pf.pt("att")
    if AMID: a(f"s_cmp_lg_u32 s{R.sRB}, 0\ns_cbranch_scc1 {name}_adone")
    a("s_waitcnt vmcnt(1)\ns_barrier")
    pf.pt("kvp")
    k2_apart(a,R,name)
    pf.pt("apart")
    a(f"buffer_store_dwordx4 {vr(R.TMP+4,4)}, v3, s[{R.SWS}:{R.SWS+3}], s{R.sOB} offen {STF}")
    if AMID: a.label(f"{name}_adone")
    a("s_waitcnt vmcnt(0)")
    DYN=cfg.get("p3dyn",False); MW=32768
    if DYN:
        a(f"v_mov_b32 v12, {MW}\nv_mov_b32 v13, 0\nds_write_b32 v12, v13\ns_waitcnt lgkmcnt(0)")
    pf.pt("odrain")
    a("s_barrier")
    pf.pt("b5")
    if P3V==1 and cfg.get("wo_late"):
        a(f"""
        s_cmp_lt_u32 s{sWV}, 4
        s_cbranch_scc1 {name}_wod
        v_lshrrev_b32 v4, 3, v1
        v_and_b32 v5, 7, v1
        v_bfe_u32 v6, v1, 4, 1
        v_lshlrev_b32 v6, 2, v6
        v_xor_b32 v6, v6, v5
        v_lshlrev_b32 v7, 10, v4
        v_lshl_add_u32 v7, v6, 4, v7
        s_cmp_eq_u32 s{sP3BR}, 0
        s_cselect_b32 s16, s{sAWO}, s{sBWO}
        s_cselect_b32 s17, s{sAWO+1}, s{sBWO+1}
        s_mov_b32 s18, 0x80000
        s_mov_b32 s19, 0x20000
        s_sub_u32 s29, s{sWV}, 4
        s_lshl_b32 s28, s{sP3NS}, 7
        s_lshl_b32 s{R.sT}, s29, 13
        s_add_u32 s28, s28, s{R.sT}
        s_lshl_b32 s29, s29, 10
        """)
        for u in range(16):
            a(f"s_add_u32 m0, s29, {WOL+u*4096}\ns_add_u32 s{R.sT}, s28, {u*32768}\nbuffer_load_dwordx4 v7, s[16:19], s{R.sT} offen lds")
        a.label(f"{name}_wod")
    if P3V==2:
        WOL0=32768
        a(f"""
        s_cmp_lt_u32 s{sWV}, 4
        s_cbranch_scc1 {name}_wod
        v_lshrrev_b32 v4, 3, v1
        v_and_b32 v5, 7, v1
        v_bfe_u32 v6, v1, 4, 1
        v_lshlrev_b32 v6, 2, v6
        v_xor_b32 v6, v6, v5
        v_lshlrev_b32 v7, 10, v4
        v_lshl_add_u32 v7, v6, 4, v7
        s_cmp_eq_u32 s{sP3BR}, 0
        s_cselect_b32 s16, s{sAWO}, s{sBWO}
        s_cselect_b32 s17, s{sAWO+1}, s{sBWO+1}
        s_mov_b32 s18, 0x80000
        s_mov_b32 s19, 0x20000
        s_sub_u32 s29, s{sWV}, 4
        s_lshl_b32 s28, s{sP3NS}, 8
        s_lshl_b32 s{R.sT}, s29, 13
        s_add_u32 s28, s28, s{R.sT}
        s_lshl_b32 s29, s29, 10
        """)
        for u in range(16):
            a(f"s_add_u32 m0, s29, {WOL0+u*4096}\ns_add_u32 s{R.sT}, s28, {u*32768}\nbuffer_load_dwordx4 v7, s[16:19], s{R.sT} offen lds")
        a.label(f"{name}_wod")
    a(f"""
    s_cmp_lg_u32 s{sWV}, 0
    s_cbranch_scc1 {name}_nf2
    s_mul_i32 s{R.sT}, s{R.sRB}, {F2STR}
    s_lshl_b32 s{R.sT2}, s{R.sH}, 7
    s_add_u32 s{R.sT}, s{R.sT}, s{R.sT2}
    s_add_u32 s{R.sT}, s{R.sT}, {F2}
    v_mov_b32 v12, 0
    v_mov_b32 v13, s{sN}
    buffer_store_dword v13, v12, s[{R.SWS}:{R.SWS+3}], s{R.sT} offen sc1
    """)
    if not DYN:
        a(f"""
        s_lshr_b32 s{sFA}, s{sP3T}, {2 if P3V==2 else 1}
        s_mul_i32 s{sFA}, s{sFA}, {F2STR}
        s_add_u32 s{sFA}, s{sFA}, {F2}
        s_mov_b32 s{sNEED}, -1
        s_mov_b32 s{sNEED+1}, 0
        """)
        poll(a,"p3",R.SWS,sFA,sNEED,sNEED+1,12,2,sleep=cfg.get("sleep2",4))
        a.label(f"{name}_nf2")
        if P3V==2 or cfg.get("wo_late"): a("s_waitcnt vmcnt(0)")
        a("s_barrier")
        pf.pt("f2")
    else:
        a.label(f"{name}_nf2")
        lw=a.newlabel("wt"); ld=a.newlabel("wd")
        a(f"""
        s_cmp_lg_u32 s{sWV}, 4
        s_cbranch_scc1 {ld}_x
        s_lshr_b32 s{sFA}, s{sP3T}, 1
        s_mul_i32 s{sFA}, s{sFA}, {F2STR}
        s_add_u32 s{sFA}, s{sFA}, {F2}
        s_mov_b32 s{sCNT2}, 0
        v_mov_b32 v14, {MW}
        s_mov_b32 exec_lo, -1
        s_mov_b32 exec_hi, 0
        {lw}:
        buffer_load_dword v12, v2, s[{R.SWS}:{R.SWS+3}], s{sFA} offen sc1
        s_waitcnt vmcnt(0)
        v_cmp_eq_u32 vcc, s{sN}, v12
        s_add_u32 s{sCNT2}, s{sCNT2}, 1
        s_cmp_lt_u32 s{sCNT2}, 30000
        s_cselect_b32 s{R.sT}, vcc_lo, -1
        v_mov_b32 v13, s{R.sT}
        ds_write_b32 v14, v13
        s_cmp_eq_u32 s{R.sT}, -1
        s_cbranch_scc1 {ld}
        s_sleep {cfg.get("sleep2",1)}
        s_branch {lw}
        {ld}:
        s_waitcnt lgkmcnt(0)
        s_mov_b64 exec, -1
        {ld}_x:
        """)
    if pf.on and cfg.get("pwave",0)>=4:
        pf0.flush(len(PTS),4,2,wave=cfg["pwave"])
    if P3V==2:
        gen_p3v2(a,name,cfg,R,pf,pf0,PTS,OSTF,HLD)
        return dict(name=name, grid=256, block=512, lds=163840, vgpr=248, sgpr=102)
    a(f"s_cmp_ge_u32 s{sWV}, 4\ns_cbranch_scc1 {name}_end")
    SOUT=16; sTB=27; sOB=28
    a(f"""
    s_lshl_b32 s{sTB}, s{sP3T}, 2
    s_add_u32 s{sTB}, s{sTB}, s{sWV}
    s_lshl_b32 s{sT}, s{sP3BR}, 6
    s_add_u32 s{sT}, s{sT}, s{sTB}
    s_lshl_b32 s{sOB}, s{sT}, 15
    s_add_u32 s{sOB}, s{sOB}, {OF}
    """)
    if DYN:
        OFR=64; ACC3=32; WFR=[8,16]; vWA3=5; GS=4; NG=8; LA=cfg.get("p3_la",2)
        sRDY=40; sDONE=41; sH0=[44+i for i in range(NG)]; vWS=[[26,27],[28,29]]
        a(f"""
        s_mov_b32 s{SOUT}, s{sOUT}
        s_mov_b32 s{SOUT+1}, s{sOUT+1}
        s_mov_b32 s{SOUT+2}, 0x400000
        s_mov_b32 s{SOUT+3}, 0x20000
        v_bfe_u32 v6, v1, 2, 2
        v_lshrrev_b32 v7, 5, v1
        v_lshl_add_u32 v6, v7, 2, v6
        v_lshlrev_b32 v6, 7, v6
        v_and_b32 v7, 1, v1
        v_lshlrev_b32 v7, 1, v7
        v_bfe_u32 v24, v1, 4, 1
        v_or_b32 v7, v7, v24
        v_bfe_u32 v24, v1, 3, 1
        v_lshlrev_b32 v24, 2, v24
        v_xor_b32 v7, v7, v24
        v_lshl_add_u32 v6, v7, 4, v6
        v_bfe_u32 v24, v1, 1, 1
        v_lshl_add_u32 v{vWA3}, v24, 3, v6
        v_xor_b32 v{vWA3+1}, 64, v{vWA3}
        v_add_u32 v{vWA3}, {WOL}, v{vWA3}
        v_add_u32 v{vWA3+1}, {WOL}, v{vWA3+1}
        v_mov_b32 v30, {MW}
        s_mov_b32 s{sRDY}, 0
        s_mov_b32 s{sDONE}, 0
        """)
        def pick(it):
            L=a.newlabel("pk"); G=a.newlabel("pg")
            a(f"""
            s_mov_b32 s{sCNT2}, 0
            {L}:
            s_andn2_b32 s42, s{sRDY}, s{sDONE}
            s_cbranch_scc1 {G}
            ds_read_b32 v31, v30
            s_waitcnt lgkmcnt(0)
            v_readfirstlane_b32 s42, v31
            s_nop 2
            s_add_u32 s{sCNT2}, s{sCNT2}, 1
            s_cmp_lt_u32 s{sCNT2}, 400000
            s_cselect_b32 s42, s42, -1
            s_lshr_b32 s43, s42, 1
            s_and_b32 s42, s42, s43
            s_lshr_b32 s43, s42, 2
            s_and_b32 s42, s42, s43
            s_and_b32 s{sRDY}, s42, 0x11111111
            s_branch {L}
            {G}:
            s_ff1_i32_b32 s{sH0[it]}, s42
            s_lshl_b32 s43, 1, s{sH0[it]}
            s_or_b32 s{sDONE}, s{sDONE}, s43
            s_lshl_b32 s43, s{sH0[it]}, 10
            s_add_u32 s43, s43, s{sOB}
            """)
            for j in range(GS):
                a(f"buffer_load_dwordx4 {vr(OFR+4*(GS*it+j),4)}, v3, s[{R.SWS}:{R.SWS+3}], s43 offen offset:{j*1024} {HLD}")
        def waddr(it):
            a(f"s_lshl_b32 s43, s{sH0[it]}, 11")
            for nt in range(2): a(f"v_add_u32 v{vWS[it&1][nt]}, s43, v{vWA3+nt}")
        def rdw(s_,it,j):
            for nt in range(2):
                for t in range(2):
                    a(f"ds_read_b64_tr_b16 {vr(WFR[s_]+4*nt+2*t,2)}, v{vWS[it&1][nt]} offset:{j*2048+t*1024}")
        for it in range(LA): pick(it)
        pf.pt("f2")
        waddr(0)
        rdw(0,0,0)
        n=0
        for it in range(NG):
            if it+1<NG: waddr(it+1)
            later=min(NG,it+LA)-(it+1)
            for j in range(GS):
                s_=n&1
                nxt = (it,j+1) if j+1<GS else ((it+1,0) if it+1<NG else None)
                if nxt: rdw(s_^1,nxt[0],nxt[1])
                a(f"s_waitcnt vmcnt({(GS-1-j)+GS*later}) lgkmcnt({4 if nxt else 0})")
                for nt in range(2):
                    c = "0" if n==0 else vr(ACC3+16*nt,16)
                    a(f"v_mfma_f32_32x32x16_bf16 {vr(ACC3+16*nt,16)}, {vr(WFR[s_]+4*nt,4)}, {vr(OFR+4*(GS*it+j),4)}, {c}")
                if n==0: pf.pt("p3b0")
                n+=1
            if it+LA<NG: pick(it+LA)
    else:
        OFR=64; ACC3=32; WFR=[8,16]; vWA3=5
        DEPTH=cfg.get("p3_depth",10)
        if cfg.get("p3rot",0): a(f"s_mul_i32 s29, s{sP3NS}, {cfg['p3rot']}")
        def oload(h):
            if cfg.get("p3rot",0):
                a(f"s_add_u32 s{sT2}, s29, {h}\ns_and_b32 s{sT2}, s{sT2}, 31\ns_lshl_b32 s{sT2}, s{sT2}, 10\ns_add_u32 s{sT2}, s{sT2}, s{sOB}\nbuffer_load_dwordx4 {vr(OFR+4*h,4)}, v3, s[{R.SWS}:{R.SWS+3}], s{sT2} offen {HLD}")
            else:
                a(f"s_add_u32 s{sT2}, s{sOB}, {h*1024}\nbuffer_load_dwordx4 {vr(OFR+4*h,4)}, v3, s[{R.SWS}:{R.SWS+3}], s{sT2} offen {HLD}")
        for h in range(DEPTH): oload(h)
        a(f"""
        s_mov_b32 s{SOUT}, s{sOUT}
        s_mov_b32 s{SOUT+1}, s{sOUT+1}
        s_mov_b32 s{SOUT+2}, 0x400000
        s_mov_b32 s{SOUT+3}, 0x20000
        v_bfe_u32 v6, v1, 2, 2
        v_lshrrev_b32 v7, 5, v1
        v_lshl_add_u32 v6, v7, 2, v6
        v_lshlrev_b32 v6, 7, v6
        v_and_b32 v7, 1, v1
        v_lshlrev_b32 v7, 1, v7
        v_bfe_u32 v24, v1, 4, 1
        v_or_b32 v7, v7, v24
        v_bfe_u32 v24, v1, 3, 1
        v_lshlrev_b32 v24, 2, v24
        v_xor_b32 v7, v7, v24
        v_lshl_add_u32 v6, v7, 4, v6
        v_bfe_u32 v24, v1, 1, 1
        v_lshl_add_u32 v{vWA3}, v24, 3, v6
        v_xor_b32 v{vWA3+1}, 64, v{vWA3}
        v_add_u32 v{vWA3}, {WOL}, v{vWA3}
        v_add_u32 v{vWA3+1}, {WOL}, v{vWA3+1}
        """)
        def reads3(s,h):
            L=[]
            for nt in range(2):
                for t in range(2):
                    L.append(f"ds_read_b64_tr_b16 {vr(WFR[s]+4*nt+2*t,2)}, v{vWA3+nt} offset:{h*2048+t*1024}")
            return L
        for l in reads3(0,0): a(l)
        for h in range(32):
            s=h&1
            if h==1: pf.pt("p3b0")
            nxt=reads3(s^1,h+1) if h<31 else []
            for l in nxt: a(l)
            issued=min(32,h+DEPTH)
            a(f"s_waitcnt vmcnt({issued-h-1}) lgkmcnt({len(nxt)})")
            for nt in range(2):
                c = "0" if h==0 else vr(ACC3+16*nt,16)
                a(f"v_mfma_f32_32x32x16_bf16 {vr(ACC3+16*nt,16)}, {vr(WFR[s]+4*nt,4)}, {vr(OFR+4*h,4)}, {c}")
            if h+DEPTH<32: oload(h+DEPTH)
    pf.pt("p3loop")
    a(f"""
    s_lshl_b32 s{sT}, s{sTB}, 16
    s_lshl_b32 s{sT2}, s{sP3BR}, 10
    s_add_u32 s{sT}, s{sT}, s{sT2}
    s_lshl_b32 s{sT2}, s{sP3NS}, 7
    s_add_u32 s{sT}, s{sT}, s{sT2}
    v_and_b32 v6, 31, v1
    v_lshlrev_b32 v6, 11, v6
    v_lshrrev_b32 v7, 5, v1
    v_lshl_add_u32 v6, v7, 5, v6
    s_nop 7
    """)
    if cfg.get("outT"):
        a(f"""
        s_lshl_b32 s{sT2}, s{sWV}, 12
        v_and_b32 v8, 31, v1
        v_lshlrev_b32 v8, 7, v8                    ; token*128
        v_lshrrev_b32 v9, 5, v1
        v_lshl_add_u32 v8, v9, 5, v8               ; + hf*32
        v_and_b32 v9, 7, v1
        v_lshlrev_b32 v9, 4, v9
        v_add_u32 v8, s{sT2}, v8
        """)
        for nt in range(2):
            b=ACC3+16*nt; T=16+8*nt
            for i in range(8): a(f"v_cvt_pk_bf16_f32 v{T+i}, v{b+2*i}, v{b+2*i+1}")
        for nt in range(2):
            for u in range(2):
                a(f"v_add_u32 v10, {nt*64+u*16}, v8\nv_xor_b32 v10, v10, v9\nds_write_b128 v10, {vr(16+8*nt+4*u,4)}")
        a(f"""
        v_lshrrev_b32 v11, 3, v1
        v_and_b32 v12, 7, v1                       ; chunk
        v_xor_b32 v13, v12, v11
        v_lshlrev_b32 v13, 4, v13
        v_lshl_add_u32 v13, v11, 7, v13
        v_add_u32 v13, s{sT2}, v13
        v_lshlrev_b32 v14, 11, v11
        v_lshl_add_u32 v14, v12, 4, v14
        s_waitcnt lgkmcnt(0)
        """)
        for i in range(4): a(f"ds_read_b128 {vr(32+4*i,4)}, v13 offset:{i*1024}")
        for i in range(4):
            a(f"s_waitcnt lgkmcnt({3-i})\ns_add_u32 s{sT2}, s{sT}, {i*8*2048}\nbuffer_store_dwordx4 {vr(32+4*i,4)}, v14, s[{SOUT}:{SOUT+3}], s{sT2} offen {OSTF}")
    else:
      for nt in range(2):
        b=ACC3+16*nt; T=8+8*nt
        for i in range(8): a(f"v_cvt_pk_bf16_f32 v{T+i}, v{b+2*i}, v{b+2*i+1}")
        a(f"buffer_store_dwordx4 {vr(T,4)}, v6, s[{SOUT}:{SOUT+3}], s{sT} offen offset:{nt*64} {OSTF}")
        a(f"buffer_store_dwordx4 {vr(T+4,4)}, v6, s[{SOUT}:{SOUT+3}], s{sT} offen offset:{nt*64+16} {OSTF}")
    a(f"""
    s_cmp_lg_u32 s2, 0
    s_cbranch_scc1 {name}_nn
    s_cmp_lg_u32 s{sWV}, 0
    s_cbranch_scc1 {name}_nn
    s_mov_b32 s{sT}, {NONCE}
    v_mov_b32 v12, 0
    v_mov_b32 v13, s{sN}
    buffer_store_dword v13, v12, s[{R.SWS}:{R.SWS+3}], s{sT} offen sc1
    {name}_nn:
    """)
    if pf.on:
        a("s_waitcnt vmcnt(0)"); pf.pt("end"); pf0.flush(len(PTS),4,2,wave=cfg.get("pwave",0) if cfg.get("pwave",0)<4 else 99)
    a.label(f"{name}_end")
    a("s_endpgm")
    if cfg.get("slow_ool"): a.lines+=R.deferred
    a.label(f"{name}_last")
    a("s_endpgm")
    return dict(name=name, grid=256, block=512, lds=163840, vgpr=248, sgpr=104 if False else 102)
```

```python
from asmlib import *
import math
from k1 import QF,KF,VF,PQ,OF,KVP,WS_USED,LOG2E,CSCALE
import k2
from k2 import K2R,k2_setup_consts,k2_load_b,k2_load_a,k2_attn,k2_apart

FLG=KVP+0x90000
FL=128
ROW=32*FL+256
FKV=FLG; FQ=FLG+16*ROW; FA=FLG+32*ROW; F2=FLG+48*ROW; F2STR=ROW; NONCE=F2+8*ROW
EXL=61440; XFL=69632; QL=73728
WOL=98304
NL=163840-16

sAWO=64; sBWO=66; sOUT=68; sDBG=70; sWSP=72; sN=74; sWV=75; sP3T=76; sP3NS=77; sP3BR=78; sCNT2=79

def poll(a, name, srd, soff, need_lo, need_hi, vtmp, voff, bound=3000, sleep=4):
    L=a.newlabel(name); D=a.newlabel(name+"d")
    a(f"""
    s_mov_b32 s{sCNT2}, 0
    s_mov_b64 exec, s[{need_lo}:{need_hi}]
    {L}:
    buffer_load_dword v{vtmp}, v{voff}, s[{srd}:{srd+3}], s{soff} offen sc1
    s_waitcnt vmcnt(0)
    v_cmp_eq_u32 vcc, s{sN}, v{vtmp}
    s_cmp_eq_u64 vcc, s[{need_lo}:{need_hi}]
    s_cbranch_scc1 {D}
    s_add_u32 s{sCNT2}, s{sCNT2}, 1
    s_cmp_lt_u32 s{sCNT2}, {bound}
    s_cbranch_scc0 {D}
    s_sleep {sleep}
    s_branch {L}
    {D}:
    s_mov_b64 exec, -1
    """)

def gen_p3v2(a,name,cfg,R,pf,pf0,PTS,OSTF,HLD):
    sT=R.sT; sT2=R.sT2
    WOL0=32768; WOL1=98304
    a(f"s_cmp_ge_u32 s{sWV}, 4\ns_cbranch_scc1 {name}_p3l")
    SOUT=16; sTT=26; sNH=27
    ACC3=32; OS=[64,80]; WSET=[96,104,112]
    vWA3=5; vO=7
    a(f"""
    s_and_b32 s{sTT}, s{sWV}, 1
    s_lshr_b32 s{sNH}, s{sWV}, 1
    s_mov_b32 s{SOUT}, s{sOUT}
    s_mov_b32 s{SOUT+1}, s{sOUT+1}
    s_mov_b32 s{SOUT+2}, 0x400000
    s_mov_b32 s{SOUT+3}, 0x20000
    v_bfe_u32 v6, v1, 2, 2
    v_lshrrev_b32 v7, 5, v1
    v_lshl_add_u32 v6, v7, 2, v6
    v_lshlrev_b32 v6, 7, v6
    v_and_b32 v7, 1, v1
    v_lshlrev_b32 v7, 1, v7
    v_bfe_u32 v24, v1, 4, 1
    v_or_b32 v7, v7, v24
    v_bfe_u32 v24, v1, 3, 1
    v_lshlrev_b32 v24, 2, v24
    v_xor_b32 v7, v7, v24
    v_lshl_add_u32 v6, v7, 4, v6
    v_bfe_u32 v24, v1, 1, 1
    v_lshl_add_u32 v{vWA3}, v24, 3, v6
    v_xor_b32 v{vWA3+1}, 64, v{vWA3}
    s_lshl_b32 s{sT}, s{sNH}, 16
    s_add_u32 s{sT}, s{sT}, {WOL0}
    v_add_u32 v{vWA3}, s{sT}, v{vWA3}
    v_add_u32 v{vWA3+1}, s{sT}, v{vWA3+1}
    s_lshl_b32 s{sT}, s{sTT}, 10
    v_add_u32 v{vO}, s{sT}, v3
    """)
    q=[]
    def rd_o(e):
        for hh in range(4):
            a(f"ds_read_b128 {vr(OS[e&1]+4*hh,4)}, v{vO} offset:{(e&3)*8192+hh*2048}"); q.append(("o",e))
    def rd_w(h):
        for nt in range(2):
            for t in range(2):
                a(f"ds_read_b64_tr_b16 {vr(WSET[h%3]+4*nt+2*t,2)}, v{vWA3+nt} offset:{h*2048+t*1024}"); q.append(("w",h))
    st={"done":0}
    def wait_for(tags):
        last=max(i for i,x in enumerate(q) if x in tags)
        if last<st["done"]: return
        n=len(q)-1-last
        assert n<=15 and len(q)-st["done"]<=16, (n,len(q)-st["done"])
        a(f"s_waitcnt lgkmcnt({n})"); st["done"]=last+1
    rd_w(0); rd_w(1)
    a("s_barrier")
    pf.pt("p3b0")
    rd_o(0)
    for h in range(32):
        e=h>>2; hh=h&3
        if hh==2 and e<7:
            wait_for([("o",e)])
            a("s_barrier")
            rd_o(e+1)
        if h+2<32: rd_w(h+2)
        wait_for([("w",h),("o",e)])
        for nt in range(2):
            c = "0" if h==0 else vr(ACC3+16*nt,16)
            a(f"v_mfma_f32_32x32x16_bf16 {vr(ACC3+16*nt,16)}, {vr(WSET[h%3]+4*nt,4)}, {vr(OS[e&1]+4*hh,4)}, {c}")
    pf.pt("p3loop")
    a(f"""
    s_lshl_b32 s{sT}, s{sP3T}, 1
    s_add_u32 s{sT}, s{sT}, s{sTT}
    s_lshl_b32 s{sT}, s{sT}, 16
    s_lshl_b32 s{sT2}, s{sP3BR}, 10
    s_add_u32 s{sT}, s{sT}, s{sT2}
    s_lshl_b32 s{sT2}, s{sP3NS}, 8
    s_add_u32 s{sT}, s{sT}, s{sT2}
    s_lshl_b32 s{sT2}, s{sNH}, 7
    s_add_u32 s{sT}, s{sT}, s{sT2}
    v_and_b32 v6, 31, v1
    v_lshlrev_b32 v6, 11, v6
    v_lshrrev_b32 v7, 5, v1
    v_lshl_add_u32 v6, v7, 5, v6
    s_nop 7
    """)
    if cfg.get("outT"):
        a(f"""
        s_lshl_b32 s{sT2}, s{sWV}, 12
        v_and_b32 v8, 31, v1
        v_lshlrev_b32 v8, 7, v8                    ; token*128
        v_lshrrev_b32 v9, 5, v1
        v_lshl_add_u32 v8, v9, 5, v8               ; + hf*32
        v_and_b32 v9, 7, v1
        v_lshlrev_b32 v9, 4, v9
        v_add_u32 v8, s{sT2}, v8
        """)
        for nt in range(2):
            b=ACC3+16*nt; T=16+8*nt
            for i in range(8): a(f"v_cvt_pk_bf16_f32 v{T+i}, v{b+2*i}, v{b+2*i+1}")
        for nt in range(2):
            for u in range(2):
                a(f"v_add_u32 v10, {nt*64+u*16}, v8\nv_xor_b32 v10, v10, v9\nds_write_b128 v10, {vr(16+8*nt+4*u,4)}")
        a(f"""
        v_lshrrev_b32 v11, 3, v1
        v_and_b32 v12, 7, v1                       ; chunk
        v_xor_b32 v13, v12, v11
        v_lshlrev_b32 v13, 4, v13
        v_lshl_add_u32 v13, v11, 7, v13
        v_add_u32 v13, s{sT2}, v13
        v_lshlrev_b32 v14, 11, v11
        v_lshl_add_u32 v14, v12, 4, v14
        s_waitcnt lgkmcnt(0)
        """)
        for i in range(4): a(f"ds_read_b128 {vr(32+4*i,4)}, v13 offset:{i*1024}")
        for i in range(4):
            a(f"s_waitcnt lgkmcnt({3-i})\ns_add_u32 s{sT2}, s{sT}, {i*8*2048}\nbuffer_store_dwordx4 {vr(32+4*i,4)}, v14, s[{SOUT}:{SOUT+3}], s{sT2} offen {OSTF}")
    else:
      for nt in range(2):
        b=ACC3+16*nt; T=8+8*nt
        for i in range(8): a(f"v_cvt_pk_bf16_f32 v{T+i}, v{b+2*i}, v{b+2*i+1}")
        a(f"buffer_store_dwordx4 {vr(T,4)}, v6, s[{SOUT}:{SOUT+3}], s{sT} offen offset:{nt*64} {OSTF}")
        a(f"buffer_store_dwordx4 {vr(T+4,4)}, v6, s[{SOUT}:{SOUT+3}], s{sT} offen offset:{nt*64+16} {OSTF}")
    a(f"""
    s_cmp_lg_u32 s2, 0
    s_cbranch_scc1 {name}_nn
    s_cmp_lg_u32 s{sWV}, 0
    s_cbranch_scc1 {name}_nn
    s_mov_b32 s{sT}, {NONCE}
    v_mov_b32 v12, 0
    v_mov_b32 v13, s{sN}
    buffer_store_dword v13, v12, s[{R.SWS}:{R.SWS+3}], s{sT} offen sc1
    {name}_nn:
    """)
    if pf.on:
        a("s_waitcnt vmcnt(0)"); pf.pt("end"); pf0.flush(len(PTS),4,2,wave=cfg.get("pwave",0) if cfg.get("pwave",0)<4 else 99)
    a("s_endpgm")
    a.label(f"{name}_p3l")
    sE=26; sB=27; sL=28
    a(f"""
    s_sub_u32 s{sE}, s{sWV}, 4
    s_lshl_b32 s{sT}, s{sP3BR}, 6
    s_lshl_b32 s{sT2}, s{sP3T}, 1
    s_add_u32 s{sT}, s{sT}, s{sT2}
    s_lshl_b32 s{sB}, s{sT}, 15
    s_lshl_b32 s{sT}, s{sE}, 10
    s_add_u32 s{sB}, s{sB}, s{sT}
    s_add_u32 s{sB}, s{sB}, {OF}
    s_lshl_b32 s{sL}, s{sE}, 11
    """)
    OR=32; LA=cfg.get("p3_la",5); mode=cfg.get("p3_mode","reg")
    items=[(e,tt) for e in range(8) for tt in range(2)]
    def ld(k):
        e,tt=items[k]
        if cfg.get("diag_p3noload"): return
        if mode=="reg":
            a(f"s_add_u32 s{sT}, s{sB}, {e*4096+tt*32768}\nbuffer_load_dwordx4 {vr(OR+4*k,4)}, v3, s[{R.SWS}:{R.SWS+3}], s{sT} offen {HLD}")
        else:
            a(f"s_add_u32 m0, s{sL}, {(e&3)*8192+tt*1024}\ns_add_u32 s{sT}, s{sB}, {e*4096+tt*32768}\nbuffer_load_dwordx4 v3, s[{R.SWS}:{R.SWS+3}], s{sT} offen {HLD} lds")
    issued=0
    if mode=="dma": LA=min(LA,6)
    while issued<LA: ld(issued); issued+=1
    a(f"v_add_u32 v4, s{sL}, v3")
    for e in range(8):
        need=2*e+2
        a(f"s_waitcnt vmcnt({max(issued-need,0)})")
        if mode=="reg":
            for tt in range(2):
                a(f"ds_write_b128 v4, {vr(OR+4*(2*e+tt),4)} offset:{(e&3)*8192+tt*1024}")
            while issued<min(16,need+LA): ld(issued); issued+=1
            a("s_waitcnt lgkmcnt(0)\ns_barrier")
        else:
            a("s_barrier")
            while issued<min(16,need+LA,2*(e+4)): ld(issued); issued+=1
    a.label(f"{name}_end")
    a.label(f"{name}_last")
    a("s_endpgm")

def gen_fused3(a, name, cfg):
    NS=3
    P3V=cfg.get("p3v",1)
    LDX=cfg.get("ldx",""); LDW=cfg.get("ldw","")
    STF="sc1"; HLD="sc1"
    OSTF=cfg.get("out_stflags","")
    XB=0; XS=16384; WB=NS*XS; WS_=24576
    a.raw(f".globl {name}\n.p2align 8\n.type {name},@function\n{name}:")
    sWAVE=20; sBR=21; sR=22; sG=23; sT=24; sT2=25
    SX=8; SW=12; SWS=16
    PTS=cfg.get("pts",["entry","p","loop","epi","b1","b2","kv","att","f2","end"])
    TIMER=cfg.get("timer","s_memrealtime")
    class PF0:
        on=cfg.get("prof",False)
        def flush(self,n,srd,vt,wave=0):
            if not self.on: return
            lab=a.newlabel("pf")
            a(f"""
            s_cmp_lg_u32 s{sWV}, {wave}
            s_cbranch_scc1 {lab}
            s_mov_b32 s4, s{sWSP}
            s_mov_b32 s5, s{sWSP+1}
            s_mov_b32 s6, {16<<20}
            s_mov_b32 s7, 0x20000
            s_lshl_b32 s24, s2, 6
            s_add_u32 s24, s24, {14<<20}
            v_lshlrev_b32 v2, 2, v1
            s_mov_b64 exec, 0xffff
            buffer_store_dword v247, v2, s[4:7], s24 offen
            s_mov_b64 exec, -1
            {lab}:
            """)
    pf0=PF0()
    class PF:
        on=pf0.on
        def pt(self,n):
            if self.on and n in PTS:
                a(f"{TIMER} s[100:101]\ns_waitcnt lgkmcnt(0)\nv_writelane_b32 v247, s100, {PTS.index(n)}")
    pf=PF()
    pf.pt("entry")
    a(f"""
    s_cmp_ge_u32 s2, 256
    s_cbranch_scc1 {name}_end
    s_load_dwordx4 s[28:31], s[0:1], 0
    s_load_dwordx4 s[32:35], s[0:1], 24
    s_load_dwordx2 s[{sAWO}:{sAWO+1}], s[0:1], 16
    s_load_dwordx2 s[{sBWO}:{sBWO+1}], s[0:1], 40
    s_load_dwordx4 s[{sOUT}:{sOUT+3}], s[0:1], 48
    s_load_dwordx2 s[{sWSP}:{sWSP+1}], s[0:1], 64
    v_lshrrev_b32 v2, 6, v0
    v_and_b32 v1, 63, v0
    s_and_b32 s{sT}, s2, 7
    v_readfirstlane_b32 s{sWAVE}, v2
    s_lshr_b32 s{sT2}, s2, 3
    s_and_b32 s{sBR}, s{sT}, 1
    s_lshr_b32 s{sT}, s{sT}, 1
    s_mov_b32 s{sP3BR}, s{sBR}
    s_lshl_b32 s{sP3T}, s{sT}, {3 if P3V==2 else 2}
    s_and_b32 s{sP3NS}, s{sT2}, {7 if P3V==2 else 3}
    s_add_u32 s{sP3T}, s{sP3T}, s{sP3NS}
    s_lshr_b32 s{sP3NS}, s{sT2}, {3 if P3V==2 else 2}
    s_and_b32 s{sR}, s{sT}, 1
    s_lshl_b32 s{sR}, s{sR}, 3
    s_lshr_b32 s{sG}, s{sT}, 1
    s_lshl_b32 s{sG}, s{sG}, 2
    s_and_b32 s{sT}, s{sT2}, 7
    s_add_u32 s{sR}, s{sR}, s{sT}
    s_lshr_b32 s{sT}, s{sT2}, 3
    s_add_u32 s{sG}, s{sG}, s{sT}
    s_mov_b32 s{sWV}, s{sWAVE}
    s_waitcnt lgkmcnt(0)
    s_cmp_eq_u32 s{sBR}, 0
    s_cselect_b32 s{SX}, s28, s32
    s_cselect_b32 s{SX+1}, s29, s33
    s_cselect_b32 s{SW}, s30, s34
    s_cselect_b32 s{SW+1}, s31, s35
    s_mov_b32 s{SX+2}, 0x200000
    s_mov_b32 s{SX+3}, 0x20000
    s_mov_b32 s{SW+2}, 0x180000
    s_mov_b32 s{SW+3}, 0x20000
    s_mov_b32 s{SWS}, s{sWSP}
    s_mov_b32 s{SWS+1}, s{sWSP+1}
    s_mov_b32 s{SWS+2}, {WS_USED}
    s_mov_b32 s{SWS+3}, 0x20000
    s_mov_b32 s4, {NONCE}
    v_mov_b32 v30, 0
    buffer_load_dword v31, v30, s[{SWS}:{SWS+3}], s4 offen sc1
    s_cmp_ge_u32 s{sWAVE}, 4
    s_cbranch_scc1 {name}_loader
    """)
    sTM=26; sFN=27
    vXA=4; vWA=8
    ACC=32
    def acc(tt,sec): return ACC+(tt*3+sec)*16
    FR=[128,148]
    def xf(s,tt): return FR[s]+4*tt
    def wf(s,sec): return FR[s]+8+4*sec
    if cfg.get("codepf"):
        nseg=cfg["codepf"]
        lab=a.newlabel("cpf")
        a(f"""
        s_cmp_lg_u32 s{sWAVE}, 1
        s_cbranch_scc1 {lab}
        s_lshr_b32 s4, s2, 3
        s_cmp_ge_u32 s4, {nseg}
        s_cbranch_scc1 {lab}
        s_lshl_b32 s6, s4, 13
        s_getpc_b64 s[4:5]
        {lab}_pc:
        s_sub_u32 s4, s4, {lab}_pc-{name}
        s_subb_u32 s5, s5, 0
        v_lshlrev_b32 v12, 7, v1
        v_add_u32 v12, s6, v12
        v_min_u32 v12, {name}_last-{name}, v12
        v_mov_b32 v13, s5
        v_add_co_u32 v12, vcc, s4, v12
        s_nop 1
        v_addc_co_u32 v13, vcc, 0, v13, vcc
        global_load_dword v245, v[12:13], off
        {lab}:
        """)
    a(f"""
    s_and_b32 s{sTM}, s{sWAVE}, 1
    s_lshr_b32 s{sFN}, s{sWAVE}, 1
    v_lshrrev_b32 v2, 5, v1                 ; hf
    v_and_b32 v3, 31, v1                    ; t31
    v_lshrrev_b32 v9, 1, v3
    v_and_b32 v9, 7, v9                     ; g
    s_lshl_b32 s{sT}, s{sTM}, 13
    v_lshlrev_b32 v10, 7, v3
    v_add_u32 v10, s{sT}, v10
    """)
    for ks in range(4):
        a(f"v_or_b32 v11, {2*ks}, v2\nv_xor_b32 v11, v11, v9\nv_lshl_add_u32 v{vXA+ks}, v11, 4, v10")
    a(f"""
    v_bfe_u32 v10, v1, 2, 2
    v_lshlrev_b32 v10, 7, v10
    v_lshl_add_u32 v10, v2, 10, v10
    v_bfe_u32 v11, v1, 4, 1
    v_lshlrev_b32 v11, 1, v11
    v_bfe_u32 v12, v1, 1, 1
    v_or_b32 v11, v11, v12
    s_lshl_b32 s{sT}, s{sFN}, 2
    v_or_b32 v11, s{sT}, v11
    v_bfe_u32 v12, v1, 3, 1
    v_lshlrev_b32 v12, 2, v12
    v_xor_b32 v11, v11, v12
    v_lshl_add_u32 v10, v11, 4, v10
    v_and_b32 v12, 1, v1
    v_lshl_add_u32 v10, v12, 3, v10
    v_add_u32 v{vWA}, {WB}, v10
    """)
    for r in range(ACC,ACC+96): a(f"v_mov_b32 v{r}, 0")
    a(f"""
    s_mov_b32 s58, {(-(NS-1)*XS)&0xffffffff:#x}
    s_mov_b32 s59, {XS}
    s_mov_b32 s60, {(-(NS-1)*WS_)&0xffffffff:#x}
    s_mov_b32 s61, {WS_}
    """)
    def reads(s, ks):
        L=[]
        L.append(f"ds_read_b128 {vr(xf(s,0),4)}, v{vXA+ks}")
        L.append(f"ds_read_b64_tr_b16 {vr(wf(s,0),2)}, v{vWA} offset:{ks*2048}")
        L.append(f"ds_read_b64_tr_b16 {vr(wf(s,0)+2,2)}, v{vWA} offset:{ks*2048+512}")
        L.append(f"ds_read_b128 {vr(xf(s,1),4)}, v{vXA+ks} offset:4096")
        for sec in (1,2):
            L.append(f"ds_read_b64_tr_b16 {vr(wf(s,sec),2)}, v{vWA} offset:{sec*8192+ks*2048}")
            L.append(f"ds_read_b64_tr_b16 {vr(wf(s,sec)+2,2)}, v{vWA} offset:{sec*8192+ks*2048+512}")
        return L
    def mfmas(s, br):
        L=[]
        for sec in range(3):
            for tt in range(2):
                featrow = (sec==0) or (sec==1 and br==1)
                A_,B_ = (wf(s,sec),xf(s,tt)) if featrow else (xf(s,tt),wf(s,sec))
                if cfg.get("mf16test"):
                    o=acc(tt,sec)+8*s
                    L.append(f"v_mfma_f32_16x16x32_bf16 {vr(o,4)}, {vr(A_,4)}, {vr(B_,4)}, {vr(o,4)}\nv_mfma_f32_16x16x32_bf16 {vr(o+4,4)}, {vr(B_,4)}, {vr(A_,4)}, {vr(o+4,4)}")
                else:
                    L.append(f"v_mfma_f32_32x32x16_bf16 {vr(acc(tt,sec),16)}, {vr(A_,4)}, {vr(B_,4)}, {vr(acc(tt,sec),16)}")
        return L
    def step(s, br, rd):
        M=mfmas(s,br)
        if rd:
            a(M[0]); a(rd[0]); a(rd[1]); a(rd[2])
            a(M[1]); a(rd[3]); a(rd[4]); a(rd[5])
            a(M[2]); a(rd[6]); a(rd[7])
            a(M[3]); a(M[4]); a(M[5])
        else:
            for m in M: a(m)
    sCNT=38; sSTG=39; sDX=40; sDW=41
    for br in (0,1):
        bn="AB"[br]
        if br==0: a(f"s_cmp_eq_u32 s{sBR}, 1\ns_cbranch_scc1 {name}_cB")
        else: a.label(f"{name}_cB")
        a(f"s_mov_b32 s{sCNT}, 0\ns_mov_b32 s{sSTG}, 0\ns_waitcnt vmcnt(0)\nv_readfirstlane_b32 s{sN}, v31\ns_nop 3\ns_add_u32 s{sN}, s{sN}, 1")
        a("s_barrier")
        pf.pt("p")
        for l in reads(0,0): a(l)
        a.label(f"{name}_loop{bn}")
        for ks in range(3):
            a("s_waitcnt lgkmcnt(0)")
            step(ks&1, br, reads((ks+1)&1, ks+1))
        a(f"""
        s_add_u32 s{sSTG}, s{sSTG}, 1
        s_cmp_eq_u32 s{sSTG}, {NS}
        s_cselect_b32 s{sDX}, s58, s59
        s_cselect_b32 s{sDW}, s60, s61
        s_cselect_b32 s{sSTG}, 0, s{sSTG}
        s_waitcnt lgkmcnt(0)
        s_barrier
        """)
        if cfg.get("chunkstamps"):
            for c in range(7):
                lab=a.newlabel("cs")
                a(f"s_cmp_lg_u32 s{sCNT}, {c}\ns_cbranch_scc1 {lab}")
                pf.pt(f"c{c}")
                a.label(lab)
        for ks in range(4): a(f"v_add_u32 v{vXA+ks}, s{sDX}, v{vXA+ks}")
        a(f"v_add_u32 v{vWA}, s{sDW}, v{vWA}")
        step(1, br, reads(0,0))
        a(f"""
        s_add_u32 s{sCNT}, s{sCNT}, 1
        s_cmp_lt_u32 s{sCNT}, 7
        s_cbranch_scc1 {name}_loop{bn}
        """)
        if br==0:
            a(f"v_mov_b32 v12, {XFL}\nv_mov_b32 v14, 0\nv_mov_b32 v15, 0\nds_write_b64 v12, v[14:15]")
        for ks in range(3):
            a("s_waitcnt lgkmcnt(0)")
            step(ks&1, br, reads((ks+1)&1, ks+1))
        a("s_waitcnt lgkmcnt(0)")
        step(1, br, [])
        a("s_barrier")
        pf.pt("loop")
        T0=128
        sOFF=42; sH=43; sTB=44
        a(f"""
        s_lshl_b32 s{sH}, s{sG}, 2
        s_lshl_b32 s{sT}, s{sFN}, 1
        s_add_u32 s{sH}, s{sH}, s{sT}
        s_lshl_b32 s{sTB}, s{sR}, 2
        s_lshl_b32 s{sT}, s{sTM}, 1
        s_add_u32 s{sTB}, s{sTB}, s{sT}
        s_lshl_b32 s{sOFF}, s{sH}, 16
        s_lshl_b32 s{sT}, s{sTB}, 10
        s_add_u32 s{sOFF}, s{sOFF}, s{sT}
        v_lshlrev_b32 v9, 4, v1
        """)
        if br==1:
            a(f"s_mov_b32 s46, {f2u(CSCALE):#x}\ns_mov_b32 s47, {f2u(CSCALE):#x}")
            a(f"""
            v_bfe_u32 v10, v1, 4, 1
            v_lshlrev_b32 v10, 16, v10
            v_lshrrev_b32 v11, 5, v1
            v_lshl_add_u32 v10, v11, 8, v10
            v_and_b32 v11, 15, v1
            v_lshl_add_u32 v10, v11, 4, v10
            s_nop 7
            """)
            tmp=T0
            for tt in range(2):
                b=acc(tt,1)
                for i in range(8): a(f"v_cvt_pk_bf16_f32 v{tmp+i}, v{b+2*i}, v{b+2*i+1}")
                a(f"s_add_u32 s{sT}, s{sOFF}, {KF+tt*1024}")
                a(f"buffer_store_dwordx4 {vr(tmp,4)}, v9, s[{SWS}:{SWS+3}], s{sT} offen {STF}")
                a(f"s_add_u32 s{sT2}, s{sOFF}, {KF+tt*1024+65536}")
                a(f"buffer_store_dwordx4 {vr(tmp+4,4)}, v9, s[{SWS}:{SWS+3}], s{sT2} offen {STF}")
                tmp+=8
            for tt in range(2):
                b=acc(tt,2)
                for i in range(8): a(f"v_cvt_pk_bf16_f32 v{tmp+i}, v{b+2*i}, v{b+2*i+1}")
                a(f"s_add_u32 s{sT}, s{sOFF}, {VF+tt*1024}")
                a(f"buffer_store_dwordx4 {vr(tmp,4)}, v10, s[{SWS}:{SWS+3}], s{sT} offen {STF}")
                a(f"buffer_store_dwordx4 {vr(tmp+4,4)}, v10, s[{SWS}:{SWS+3}], s{sT} offen offset:512 {STF}")
                tmp+=8
            for tt in range(2):
                b=acc(tt,0)
                for i in range(8): a(f"v_pk_mul_f32 {vr(b+2*i,2)}, {vr(b+2*i,2)}, s[46:47]")
                for i in range(8): a(f"v_cvt_pk_bf16_f32 v{tmp+i}, v{b+2*i}, v{b+2*i+1}")
                a(f"s_add_u32 s{sT}, s{sOFF}, {QF+tt*1024}")
                a(f"buffer_store_dwordx4 {vr(tmp,4)}, v9, s[{SWS}:{SWS+3}], s{sT} offen {STF}")
                a(f"s_add_u32 s{sT2}, s{sOFF}, {QF+tt*1024+65536}")
                a(f"buffer_store_dwordx4 {vr(tmp+4,4)}, v9, s[{SWS}:{SWS+3}], s{sT2} offen {STF}")
                tmp+=8
            a(f"""
            s_lshl_b32 s{sT}, s{sG}, 1
            s_add_u32 s{sT}, s{sT}, s{sFN}
            s_mul_i32 s{sT}, s{sT}, {ROW}
            s_lshl_b32 s{sT2}, s{sR}, 1
            s_add_u32 s{sT2}, s{sT2}, s{sTM}
            s_lshl_b32 s{sT2}, s{sT2}, 7
            s_add_u32 s{sT}, s{sT}, s{sT2}
            s_add_u32 s{sT2}, s{sT}, {FKV}
            s_add_u32 s{sT}, s{sT}, {FQ}
            v_mov_b32 v12, 0
            v_mov_b32 v13, s{sN}
            s_waitcnt vmcnt(4)
            buffer_store_dword v13, v12, s[{SWS}:{SWS+3}], s{sT2} offen sc1
            """)
            pf.pt("fkv")
            a(f"""
            s_waitcnt vmcnt(1)
            buffer_store_dword v13, v12, s[{SWS}:{SWS+3}], s{sT} offen sc1
            """)
            a(f"s_branch {name}_p1done")
        else:
            a(f"""
            s_mov_b32 s46, {f2u(LOG2E):#x}
            s_mov_b32 s47, {f2u(LOG2E):#x}
            s_mov_b32 s48, 1.0
            s_mov_b32 s49, 1.0
            s_mov_b32 s50, {f2u(1e-6):#x}
            s_mov_b32 s51, {f2u(1e-6):#x}
            s_mov_b32 s52, 0x0000ffff
            s_mov_b32 s53, 0x0000ffff
            v_mov_b32 v20, 0x3f803f80
            v_mov_b32 v21, 0x3f803f80
            v_mov_b32 v22, 0x3f803f80
            v_mov_b32 v23, 0x3f803f80
            s_nop 4
            """)
            U=168
            def phi(b):
                for i in range(8): a(f"v_pk_mul_f32 {vr(U+2*i,2)}, {vr(b+2*i,2)}, s[46:47]")
                for i in range(16): a(f"v_exp_f32 v{U+i}, v{U+i} clamp")
                for i in range(8): a(f"v_pk_add_f32 {vr(b+2*i,2)}, {vr(b+2*i,2)}, s[48:49]")
                for i in range(16): a(f"v_max_f32 v{b+i}, v{b+i}, v{U+i}")
                for i in range(8): a(f"v_pk_add_f32 {vr(b+2*i,2)}, {vr(b+2*i,2)}, s[50:51]")
            PK=[128,136]; VV=[144,152]; D=184; D2=200
            for tt in range(2):
                b=acc(tt,2)
                for i in range(8): a(f"v_cvt_pk_bf16_f32 v{VV[tt]+i}, v{b+2*i}, v{b+2*i+1}")
            mq=[]
            for tt in range(2):
                b=acc(tt,1)
                phi(b)
                for i in range(8): a(f"v_cvt_pk_bf16_f32 v{PK[tt]+i}, v{b+2*i}, v{b+2*i+1}")
                a("s_nop 1")
                for m in range(2):
                    c1 = "0" if (tt==0 and m==0) else vr(D,16)
                    c2 = "0" if (tt==0 and m==0) else vr(D2,16)
                    a(f"v_mfma_f32_32x32x16_bf16 {vr(D,16)}, {vr(PK[tt]+4*m,4)}, {vr(VV[tt]+4*m,4)}, {c1}")
                    a(f"v_mfma_f32_32x32x16_bf16 {vr(D2,16)}, {vr(PK[tt]+4*m,4)}, v[20:23], {c2}")
            a("s_nop 15")
            for r in range(8):  a(f"v_cndmask_b32_e64 v{D+r}, v{D2+r}, v{D+r}, s[52:53]")
            for r in range(8,16): a(f"v_cndmask_b32_e64 v{D+r}, v{D+r}, v{D2+r}, s[52:53]")
            Lx=a.newlabel("xw"); Lxd=a.newlabel("xd")
            a(f"""
            s_lshl_b32 s{sT}, s{sFN}, 12
            s_add_u32 s{sT}, s{sT}, {EXL}
            v_add_u32 v10, s{sT}, v9
            s_lshl_b32 s{sT}, s{sFN}, 2
            s_add_u32 s{sT}, s{sT}, {XFL}
            v_mov_b32 v11, s{sT}
            s_cmp_eq_u32 s{sTM}, 0
            s_cbranch_scc1 {name}_Ard
            """)
            for q in range(4): a(f"ds_write_b128 v10, {vr(D+4*q,4)} offset:{q*1024}")
            a(f"""
            s_waitcnt lgkmcnt(0)
            v_mov_b32 v12, 1
            ds_write_b32 v11, v12
            {name}_Ard:
            """)
            tmp=216
            def qpart(tt,tmp):
                b=acc(tt,0)
                phi(b)
                for i in range(8): a(f"v_cvt_pk_bf16_f32 v{tmp+i}, v{b+2*i}, v{b+2*i+1}")
                a(f"s_add_u32 s{sT}, s{sOFF}, {PQ+tt*1024}")
                a(f"buffer_store_dwordx4 {vr(tmp,4)}, v9, s[{SWS}:{SWS+3}], s{sT} offen {STF}")
                a(f"s_add_u32 s{sT2}, s{sOFF}, {PQ+tt*1024+65536}")
                a(f"buffer_store_dwordx4 {vr(tmp+4,4)}, v9, s[{SWS}:{SWS+3}], s{sT2} offen {STF}")
            qpart(0,216); qpart(1,128)
            a(f"""
            s_cmp_lg_u32 s{sTM}, 0
            s_cbranch_scc1 {name}_Aq
            s_mov_b32 s{sCNT2}, 0
            {Lx}:
            ds_read_b32 v12, v11
            s_waitcnt lgkmcnt(0)
            v_readfirstlane_b32 s{sT}, v12
            s_cmp_lg_u32 s{sT}, 0
            s_cbranch_scc1 {Lxd}
            s_add_u32 s{sCNT2}, s{sCNT2}, 1
            s_cmp_lt_u32 s{sCNT2}, 100000
            s_cbranch_scc1 {Lx}
            {Lxd}:
            """)
            for q in range(4): a(f"ds_read_b128 {vr(D2+4*q,4)}, v10 offset:{q*1024}")
            a(f"""
            v_and_b32 v11, 31, v1
            v_lshrrev_b32 v12, 5, v1
            v_and_b32 v13, 15, v1
            v_lshlrev_b32 v13, 5, v13
            v_lshl_add_u32 v13, v12, 9, v13
            v_lshlrev_b32 v14, 5, v12
            v_add_u32 v14, 1024, v14
            v_mov_b32 v15, 0x40000000
            v_cmp_eq_u32 s[54:55], 16, v11
            v_cmp_eq_u32 s[56:57], 0, v11
            s_nop 1
            v_cndmask_b32_e64 v16, v15, v14, s[54:55]
            v_cndmask_b32_e64 v17, v15, v14, s[56:57]
            v_cndmask_b32_e64 v16, v16, v13, s[52:53]
            v_cndmask_b32_e64 v17, v13, v17, s[52:53]
            s_lshl_b32 s{sT}, s{sH}, 4
            s_add_u32 s{sT}, s{sT}, s{sR}
            s_mul_i32 s{sT}, s{sT}, 1088
            s_add_u32 s{sT}, s{sT}, {KVP}
            s_add_u32 s{sT2}, s{sT}, {16*1088}
            s_waitcnt lgkmcnt(0)
            """)
            for i in range(8): a(f"v_pk_add_f32 {vr(D+2*i,2)}, {vr(D+2*i,2)}, {vr(D2+2*i,2)}")
            a(f"""
            buffer_store_dwordx4 {vr(D,4)}, v16, s[{SWS}:{SWS+3}], s{sT} offen {STF}
            buffer_store_dwordx4 {vr(D+4,4)}, v16, s[{SWS}:{SWS+3}], s{sT} offen offset:16 {STF}
            buffer_store_dwordx4 {vr(D+8,4)}, v17, s[{SWS}:{SWS+3}], s{sT2} offen {STF}
            buffer_store_dwordx4 {vr(D+12,4)}, v17, s[{SWS}:{SWS+3}], s{sT2} offen offset:16 {STF}
            """)
            a.label(f"{name}_Aq")
            a(f"""
            s_lshl_b32 s{sT}, s{sG}, 1
            s_add_u32 s{sT}, s{sT}, s{sFN}
            s_mul_i32 s{sT}, s{sT}, {ROW}
            s_lshl_b32 s{sT2}, s{sR}, 1
            s_add_u32 s{sT2}, s{sT2}, s{sTM}
            s_lshl_b32 s{sT2}, s{sT2}, 7
            s_add_u32 s{sT}, s{sT}, s{sT2}
            s_add_u32 s{sT}, s{sT}, {FA}
            v_mov_b32 v12, 0
            v_mov_b32 v13, s{sN}
            """)
            pf.pt("fkv")
            a(f"""
            s_waitcnt vmcnt(0)
            buffer_store_dword v13, v12, s[{SWS}:{SWS+3}], s{sT} offen sc1
            """)
            a(f"s_branch {name}_p1done")
    a.label(f"{name}_loader")
    sE=26; sXB=27; sWBs=38; sL=39
    a(f"""
    s_sub_u32 s{sE}, s{sWAVE}, 4
    v_lshrrev_b32 v2, 3, v1
    v_and_b32 v3, 7, v1
    v_lshrrev_b32 v4, 1, v2
    s_and_b32 s{sT}, s{sE}, 1
    s_lshl_b32 s{sT}, s{sT}, 2
    v_or_b32 v4, s{sT}, v4
    v_xor_b32 v4, v4, v3
    v_lshlrev_b32 v5, 10, v2
    v_lshl_add_u32 v5, v4, 4, v5            ; x voffset
    v_bfe_u32 v4, v1, 4, 1
    v_lshlrev_b32 v4, 2, v4
    v_xor_b32 v4, v4, v3
    v_mul_u32_u24 v6, 3072, v2
    v_lshl_add_u32 v6, v4, 4, v6            ; w voffset
    v_lshlrev_b32 v7, 10, v2
    v_lshl_add_u32 v7, v4, 4, v7
    s_lshl_b32 s{sXB}, s{sR}, 17
    s_lshl_b32 s{sT}, s{sE}, 13
    s_add_u32 s{sXB}, s{sXB}, s{sT}
    s_lshl_b32 s{sWBs}, s{sG}, 7
    s_mul_i32 s{sT}, s{sE}, 24576
    s_add_u32 s{sWBs}, s{sWBs}, s{sT}
    s_lshl_b32 s{sL}, s{sE}, 10
    """)
    sROT=40; sXC=41; sWC=42
    a(f"s_mov_b32 s{sROT}, 0")
    for (src,sh,mask,mul) in cfg.get("k1_rot",[["R",0,3,2],["G",0,3,1]]):
        r={"R":sR,"G":sG}[src]
        a(f"s_lshr_b32 s{sT}, s{r}, {sh}\ns_and_b32 s{sT}, s{sT}, {mask}\ns_mul_i32 s{sT}, s{sT}, {mul}\ns_add_u32 s{sROT}, s{sROT}, s{sT}")
    def issue(c, part=None):
        st=c%NS
        L=[]
        hdr=f"""
        s_add_u32 s{sT}, s{sROT}, {c}
        s_and_b32 s{sT}, s{sT}, 7
        s_lshl_b32 s{sXC}, s{sT}, 7
        s_add_u32 s{sXC}, s{sXC}, s{sXB}
        s_mul_i32 s{sWC}, s{sT}, 196608
        s_add_u32 s{sWC}, s{sWC}, s{sWBs}
        """
        for i in range(4):
            L.append(f"s_add_u32 m0, s{sL}, {XB+st*XS+i*4096}\ns_add_u32 s{sT}, s{sXC}, {i*32768}\nbuffer_load_dwordx4 v5, s[{SX}:{SX+3}], s{sT} offen {LDX} lds")
        for jj in range(2):
            for sec in range(3):
                L.append(f"s_add_u32 m0, s{sL}, {WB+st*WS_+sec*8192+jj*4096}\ns_add_u32 s{sT}, s{sWC}, {jj*4*24576+sec*1024}\nbuffer_load_dwordx4 v6, s[{SW}:{SW+3}], s{sT} offen {LDW} lds")
        lo,hi = part if part else (0,10)
        if lo==0: a(hdr)
        for l in L[lo:hi]: a(l)
    k0=cfg.get("pro_k",5)
    issue(0); issue(1,(0,k0))
    a(f"s_waitcnt vmcnt({k0})\nv_readfirstlane_b32 s{sN}, v31\ns_nop 3\ns_add_u32 s{sN}, s{sN}, 1\ns_barrier")
    if k0<10: issue(1,(k0,10))
    issue(2)
    for c in range(7):
        issued=min(8,c+NS)
        rem=10*(issued-(c+2))
        if c==6: rem=(1 if cfg.get("wo_late") else 16) if P3V==1 else 17
        a(f"s_waitcnt vmcnt({rem})\ns_barrier")
        if c+NS<8: issue(c+NS)
        if c==5:
            a(f"""
            s_cmp_eq_u32 s{sP3BR}, 0
            s_cselect_b32 s28, s{sAWO}, s{sBWO}
            s_cselect_b32 s29, s{sAWO+1}, s{sBWO+1}
            s_mov_b32 s30, 0x80000
            s_mov_b32 s31, 0x20000
            s_lshl_b32 s{sXC}, s{sP3NS}, {7 if P3V==1 else 8}
            s_lshl_b32 s{sT}, s{sE}, 13
            s_add_u32 s{sXC}, s{sXC}, s{sT}
            """)
            if P3V==1 and cfg.get("wo_late"):
                a(f"""
                v_and_b32 v8, 31, v1
                s_lshl_b32 s{sT}, s{sE}, 5
                v_add_u32 v8, s{sT}, v8
                v_lshlrev_b32 v8, 10, v8
                s_and_b32 s{sT}, s{sP3T}, 3
                s_lshl_b32 s{sT}, s{sT}, 17
                s_lshl_b32 s{sXC}, s{sP3NS}, 7
                s_add_u32 s{sT}, s{sT}, s{sXC}
                buffer_load_dword v244, v8, s[28:31], s{sT} offen
                """)
            elif P3V==1 and cfg.get("p3rot",0):
                a(f"s_lshl_b32 s{sXC}, s{sP3NS}, 7\ns_mul_i32 s{sWC}, s{sP3NS}, {2*cfg['p3rot']}\ns_add_u32 s{sWC}, s{sWC}, s{sE}")
                for u in range(16):
                    a(f"s_add_u32 m0, s{sL}, {WOL+u*4096}")
                    a(f"s_add_u32 s{sT}, s{sWC}, {4*u}\ns_and_b32 s{sT}, s{sT}, 63\ns_lshl_b32 s{sT}, s{sT}, 13\ns_add_u32 s{sT}, s{sT}, s{sXC}")
                    a(f"buffer_load_dwordx4 v7, s[28:31], s{sT} offen lds")
            else:
              for u in range(16):
                a(f"s_add_u32 m0, s{sL}, {WOL+u*4096}")
                a(f"s_add_u32 s{sT}, s{sXC}, {u*32768+(0 if P3V==1 else 128)}")
                a(f"buffer_load_dwordx4 v7, s[28:31], s{sT} offen lds")
            if P3V==2:
                a(f"""
                v_and_b32 v8, 15, v1
                s_lshl_b32 s{sT}, s{sE}, 4
                v_add_u32 v8, s{sT}, v8
                v_lshlrev_b32 v8, 10, v8
                s_bfe_u32 s{sT}, s2, 0x30003
                s_lshl_b32 s{sT}, s{sT}, 16
                s_lshl_b32 s{sXC}, s{sP3NS}, 8
                s_add_u32 s{sT}, s{sT}, s{sXC}
                buffer_load_dword v9, v8, s[28:31], s{sT} offen
                """)
    a("s_barrier")
    R=K2R
    def p2_roles():
        a(f"""
        s_mov_b32 s{R.sWAVE}, s{sWV}
        s_bfe_u32 s{R.sRB}, s2, 0x30003
        s_and_b32 s{R.sH}, s2, 7
        s_lshr_b32 s{R.sT}, s2, 6
        s_lshl_b32 s{R.sT}, s{R.sT}, 3
        s_add_u32 s{R.sH}, s{R.sH}, s{R.sT}
        v_lshlrev_b32 v3, 4, v1
        s_lshl_b32 s{R.sQB}, s{R.sRB}, 3
        s_add_u32 s{R.sQB}, s{R.sQB}, s{R.sWAVE}
        s_mov_b32 s{R.SWS}, s{sWSP}
        s_mov_b32 s{R.SWS+1}, s{sWSP+1}
        s_mov_b32 s{R.SWS+2}, {WS_USED}
        s_mov_b32 s{R.SWS+3}, 0x20000
        v_lshlrev_b32 v2, 7, v1
        s_lshr_b32 s12, s{R.sH}, 1
        s_mul_i32 s12, s12, {ROW}
        s_add_u32 s13, s12, {FA}
        s_lshl_b32 s{R.sT}, s{R.sRB}, 2
        """)
    sFA=12; sNEED=14
    p2_roles()
    a(f"""
    s_mov_b32 s{sNEED}, 0xff
    s_mov_b32 s{sNEED+1}, 0
    s_lshl_b64 s[{sNEED}:{sNEED+1}], s[{sNEED}:{sNEED+1}], s{R.sT}
    s_lshr_b64 s[{sNEED}:{sNEED+1}], s[{sNEED}:{sNEED+1}], 4
    s_add_u32 s{sFA}, s12, {FKV}
    """)
    k2_setup_consts(a,R)
    poll(a,"pb",R.SWS,sFA,sNEED,sNEED+1,12,2,sleep=cfg.get("sleep1",2))
    pf.pt("b2")
    a(f"s_lshl_b32 s{R.sBASE}, s{R.sH}, 16\ns_sub_u32 s29, s{sWV}, 4")
    for u in range(4):
        a(f"""
        s_lshl_b32 s{R.sT}, s29, 2
        s_add_u32 s{R.sT}, s{R.sT}, {u}
        s_lshl_b32 s{R.sT2}, s{R.sRB}, 3
        s_add_u32 s{R.sT2}, s{R.sT2}, s{R.sT}
        s_sub_i32 s{R.sT2}, s{R.sT2}, 8
        s_max_i32 s{R.sT2}, s{R.sT2}, 0
        s_lshl_b32 s{R.sT2}, s{R.sT2}, 10
        s_add_u32 s{R.sT2}, s{R.sT2}, s{R.sBASE}
        s_lshl_b32 s{R.sT}, s{R.sT}, 10
        s_add_u32 m0, s{R.sT}, {R.KL}
        s_add_u32 s28, s{R.sT2}, {KF}
        buffer_load_dwordx4 v3, s[{R.SWS}:{R.SWS+3}], s28 offen {HLD} lds
        s_add_u32 m0, s{R.sT}, {R.VL}
        s_add_u32 s28, s{R.sT2}, {VF}
        buffer_load_dwordx4 v3, s[{R.SWS}:{R.SWS+3}], s28 offen {HLD} lds
        """)
    a(f"s_branch {name}_p2go")
    a.label(f"{name}_p1done")
    pf.pt("epi")
    p2_roles()
    a(f"""
    s_mov_b32 s{sNEED}, 0xf
    s_mov_b32 s{sNEED+1}, 0
    s_lshl_b64 s[{sNEED}:{sNEED+1}], s[{sNEED}:{sNEED+1}], s{R.sT}
    s_add_u32 s{sFA}, s12, {FQ}
    """)
    k2_setup_consts(a,R)
    poll(a,"pq",R.SWS,sFA,sNEED,sNEED+1,12,2,sleep=cfg.get("sleep1",2))
    pf.pt("bq")
    for u in range(2):
        a(f"""
        s_add_u32 s{R.sT}, s{sWV}, {4*u}
        s_lshl_b32 s{R.sT2}, s{R.sRB}, 3
        s_add_u32 s{R.sT2}, s{R.sT2}, s{R.sT}
        s_lshl_b32 s{R.sT2}, s{R.sT2}, 10
        s_lshl_b32 s28, s{R.sH}, 16
        s_add_u32 s{R.sT2}, s{R.sT2}, s28
        s_add_u32 s28, s{R.sT2}, {QF}
        s_lshl_b32 s{R.sT}, s{R.sT}, 10
        s_add_u32 m0, s{R.sT}, {QL}
        s_nop 0
        buffer_load_dwordx4 v3, s[{R.SWS}:{R.SWS+3}], s28 offen {HLD} lds
        """)
    a.label(f"{name}_p2go")
    a("s_waitcnt vmcnt(0) lgkmcnt(0)\ns_barrier")
    pf.pt("kv")
    a(f"""
    s_lshl_b32 s{R.sT}, s{sWV}, 10
    s_add_u32 s{R.sT}, s{R.sT}, {QL}
    v_add_u32 v12, s{R.sT}, v3
    ds_read_b128 {vr(R.vQ,4)}, v12
    s_waitcnt lgkmcnt(0)
    """)
    def h_pre():
        a(f"s_mov_b32 exec_lo, -1\ns_mov_b32 exec_hi, 0\nbuffer_load_dword v13, v2, s[{R.SWS}:{R.SWS+3}], s13 offen sc1\ns_mov_b64 exec, -1")
    def h_post0():
        pf.pt("post0")
        D=a.newlabel("pa")
        a(f"""
        s_mov_b32 s{sNEED}, -1
        s_mov_b32 s{sNEED+1}, 0
        s_waitcnt vmcnt(0)
        v_cmp_eq_u32 vcc, s{sN}, v13
        s_and_b64 vcc, vcc, s[{sNEED}:{sNEED+1}]
        s_cmp_eq_u64 vcc, s[{sNEED}:{sNEED+1}]
        s_cbranch_scc1 {D}
        """)
        poll(a,"pa2",R.SWS,13,sNEED,sNEED+1,13,2)
        a.label(D)
        pf.pt("aflag")
        k2_load_a(a,R,HLD,name)
    k2_attn(a,R,name,cfg,pf,hooks={"pre":h_pre,"post0":h_post0})
    a(f"""
    s_lshl_b32 s{R.sT}, s{R.sQB}, 5
    s_add_u32 s{R.sT}, s{R.sT}, s{R.sH}
    s_lshl_b32 s{R.sT}, s{R.sT}, 10
    s_add_u32 s{R.sOB}, s{R.sT}, {OF}
    s_add_u32 s{R.sT}, s{R.sOB}, {64*32*1024}
    buffer_store_dwordx4 {vr(R.TMP,4)}, v3, s[{R.SWS}:{R.SWS+3}], s{R.sT} offen {STF}
    """)
    pf.pt("att")
    a("s_waitcnt vmcnt(1)\ns_barrier")
    pf.pt("kvp")
    k2_apart(a,R,name)
    pf.pt("apart")
    a(f"buffer_store_dwordx4 {vr(R.TMP+4,4)}, v3, s[{R.SWS}:{R.SWS+3}], s{R.sOB} offen {STF}")
    a("s_waitcnt vmcnt(0)")
    pf.pt("odrain")
    a("s_barrier")
    pf.pt("b5")
    if P3V==1 and cfg.get("wo_late"):
        a(f"""
        s_cmp_lt_u32 s{sWV}, 4
        s_cbranch_scc1 {name}_wod
        v_lshrrev_b32 v4, 3, v1
        v_and_b32 v5, 7, v1
        v_bfe_u32 v6, v1, 4, 1
        v_lshlrev_b32 v6, 2, v6
        v_xor_b32 v6, v6, v5
        v_lshlrev_b32 v7, 10, v4
        v_lshl_add_u32 v7, v6, 4, v7
        s_cmp_eq_u32 s{sP3BR}, 0
        s_cselect_b32 s16, s{sAWO}, s{sBWO}
        s_cselect_b32 s17, s{sAWO+1}, s{sBWO+1}
        s_mov_b32 s18, 0x80000
        s_mov_b32 s19, 0x20000
        s_sub_u32 s29, s{sWV}, 4
        s_lshl_b32 s28, s{sP3NS}, 7
        s_lshl_b32 s{R.sT}, s29, 13
        s_add_u32 s28, s28, s{R.sT}
        s_lshl_b32 s29, s29, 10
        """)
        for u in range(16):
            a(f"s_add_u32 m0, s29, {WOL+u*4096}\ns_add_u32 s{R.sT}, s28, {u*32768}\nbuffer_load_dwordx4 v7, s[16:19], s{R.sT} offen lds")
        a.label(f"{name}_wod")
    if P3V==2:
        WOL0=32768
        a(f"""
        s_cmp_lt_u32 s{sWV}, 4
        s_cbranch_scc1 {name}_wod
        v_lshrrev_b32 v4, 3, v1
        v_and_b32 v5, 7, v1
        v_bfe_u32 v6, v1, 4, 1
        v_lshlrev_b32 v6, 2, v6
        v_xor_b32 v6, v6, v5
        v_lshlrev_b32 v7, 10, v4
        v_lshl_add_u32 v7, v6, 4, v7
        s_cmp_eq_u32 s{sP3BR}, 0
        s_cselect_b32 s16, s{sAWO}, s{sBWO}
        s_cselect_b32 s17, s{sAWO+1}, s{sBWO+1}
        s_mov_b32 s18, 0x80000
        s_mov_b32 s19, 0x20000
        s_sub_u32 s29, s{sWV}, 4
        s_lshl_b32 s28, s{sP3NS}, 8
        s_lshl_b32 s{R.sT}, s29, 13
        s_add_u32 s28, s28, s{R.sT}
        s_lshl_b32 s29, s29, 10
        """)
        for u in range(16):
            a(f"s_add_u32 m0, s29, {WOL0+u*4096}\ns_add_u32 s{R.sT}, s28, {u*32768}\nbuffer_load_dwordx4 v7, s[16:19], s{R.sT} offen lds")
        a.label(f"{name}_wod")
    a(f"""
    s_cmp_lg_u32 s{sWV}, 0
    s_cbranch_scc1 {name}_nf2
    s_mul_i32 s{R.sT}, s{R.sRB}, {F2STR}
    s_lshl_b32 s{R.sT2}, s{R.sH}, 7
    s_add_u32 s{R.sT}, s{R.sT}, s{R.sT2}
    s_add_u32 s{R.sT}, s{R.sT}, {F2}
    v_mov_b32 v12, 0
    v_mov_b32 v13, s{sN}
    buffer_store_dword v13, v12, s[{R.SWS}:{R.SWS+3}], s{R.sT} offen sc1
    s_lshr_b32 s{sFA}, s{sP3T}, {2 if P3V==2 else 1}
    s_mul_i32 s{sFA}, s{sFA}, {F2STR}
    s_add_u32 s{sFA}, s{sFA}, {F2}
    s_mov_b32 s{sNEED}, -1
    s_mov_b32 s{sNEED+1}, 0
    """)
    poll(a,"p3",R.SWS,sFA,sNEED,sNEED+1,12,2,sleep=cfg.get("sleep2",4))
    a.label(f"{name}_nf2")
    if P3V==2 or cfg.get("wo_late"): a("s_waitcnt vmcnt(0)")
    a("s_barrier")
    pf.pt("f2")
    if pf.on and cfg.get("pwave",0)>=4:
        pf0.flush(len(PTS),4,2,wave=cfg["pwave"])
    if P3V==2:
        gen_p3v2(a,name,cfg,R,pf,pf0,PTS,OSTF,HLD)
        return dict(name=name, grid=256, block=512, lds=163840, vgpr=248, sgpr=102)
    a(f"s_cmp_ge_u32 s{sWV}, 4\ns_cbranch_scc1 {name}_end")
    SOUT=16; sTB=27; sOB=28
    a(f"""
    s_lshl_b32 s{sTB}, s{sP3T}, 2
    s_add_u32 s{sTB}, s{sTB}, s{sWV}
    s_lshl_b32 s{sT}, s{sP3BR}, 6
    s_add_u32 s{sT}, s{sT}, s{sTB}
    s_lshl_b32 s{sOB}, s{sT}, 15
    s_add_u32 s{sOB}, s{sOB}, {OF}
    """)
    OFR=64; ACC3=32; WFR=[8,16]; vWA3=5
    DEPTH=cfg.get("p3_depth",10)
    if cfg.get("p3rot",0): a(f"s_mul_i32 s29, s{sP3NS}, {cfg['p3rot']}")
    def oload(h):
        if cfg.get("p3rot",0):
            a(f"s_add_u32 s{sT2}, s29, {h}\ns_and_b32 s{sT2}, s{sT2}, 31\ns_lshl_b32 s{sT2}, s{sT2}, 10\ns_add_u32 s{sT2}, s{sT2}, s{sOB}\nbuffer_load_dwordx4 {vr(OFR+4*h,4)}, v3, s[{R.SWS}:{R.SWS+3}], s{sT2} offen {HLD}")
        else:
            a(f"s_add_u32 s{sT2}, s{sOB}, {h*1024}\nbuffer_load_dwordx4 {vr(OFR+4*h,4)}, v3, s[{R.SWS}:{R.SWS+3}], s{sT2} offen {HLD}")
    for h in range(DEPTH): oload(h)
    a(f"""
    s_mov_b32 s{SOUT}, s{sOUT}
    s_mov_b32 s{SOUT+1}, s{sOUT+1}
    s_mov_b32 s{SOUT+2}, 0x400000
    s_mov_b32 s{SOUT+3}, 0x20000
    v_bfe_u32 v6, v1, 2, 2
    v_lshrrev_b32 v7, 5, v1
    v_lshl_add_u32 v6, v7, 2, v6
    v_lshlrev_b32 v6, 7, v6
    v_and_b32 v7, 1, v1
    v_lshlrev_b32 v7, 1, v7
    v_bfe_u32 v24, v1, 4, 1
    v_or_b32 v7, v7, v24
    v_bfe_u32 v24, v1, 3, 1
    v_lshlrev_b32 v24, 2, v24
    v_xor_b32 v7, v7, v24
    v_lshl_add_u32 v6, v7, 4, v6
    v_bfe_u32 v24, v1, 1, 1
    v_lshl_add_u32 v{vWA3}, v24, 3, v6
    v_xor_b32 v{vWA3+1}, 64, v{vWA3}
    v_add_u32 v{vWA3}, {WOL}, v{vWA3}
    v_add_u32 v{vWA3+1}, {WOL}, v{vWA3+1}
    """)
    def reads3(s,h):
        L=[]
        for nt in range(2):
            for t in range(2):
                L.append(f"ds_read_b64_tr_b16 {vr(WFR[s]+4*nt+2*t,2)}, v{vWA3+nt} offset:{h*2048+t*1024}")
        return L
    for l in reads3(0,0): a(l)
    for h in range(32):
        s=h&1
        if h==1: pf.pt("p3b0")
        nxt=reads3(s^1,h+1) if h<31 else []
        for l in nxt: a(l)
        issued=min(32,h+DEPTH)
        a(f"s_waitcnt vmcnt({issued-h-1}) lgkmcnt({len(nxt)})")
        for nt in range(2):
            c = "0" if h==0 else vr(ACC3+16*nt,16)
            a(f"v_mfma_f32_32x32x16_bf16 {vr(ACC3+16*nt,16)}, {vr(WFR[s]+4*nt,4)}, {vr(OFR+4*h,4)}, {c}")
        if h+DEPTH<32: oload(h+DEPTH)
    pf.pt("p3loop")
    a(f"""
    s_lshl_b32 s{sT}, s{sTB}, 16
    s_lshl_b32 s{sT2}, s{sP3BR}, 10
    s_add_u32 s{sT}, s{sT}, s{sT2}
    s_lshl_b32 s{sT2}, s{sP3NS}, 7
    s_add_u32 s{sT}, s{sT}, s{sT2}
    v_and_b32 v6, 31, v1
    v_lshlrev_b32 v6, 11, v6
    v_lshrrev_b32 v7, 5, v1
    v_lshl_add_u32 v6, v7, 5, v6
    s_nop 7
    """)
    if cfg.get("outT"):
        a(f"""
        s_lshl_b32 s{sT2}, s{sWV}, 12
        v_and_b32 v8, 31, v1
        v_lshlrev_b32 v8, 7, v8                    ; token*128
        v_lshrrev_b32 v9, 5, v1
        v_lshl_add_u32 v8, v9, 5, v8               ; + hf*32
        v_and_b32 v9, 7, v1
        v_lshlrev_b32 v9, 4, v9
        v_add_u32 v8, s{sT2}, v8
        """)
        for nt in range(2):
            b=ACC3+16*nt; T=16+8*nt
            for i in range(8): a(f"v_cvt_pk_bf16_f32 v{T+i}, v{b+2*i}, v{b+2*i+1}")
        for nt in range(2):
            for u in range(2):
                a(f"v_add_u32 v10, {nt*64+u*16}, v8\nv_xor_b32 v10, v10, v9\nds_write_b128 v10, {vr(16+8*nt+4*u,4)}")
        a(f"""
        v_lshrrev_b32 v11, 3, v1
        v_and_b32 v12, 7, v1                       ; chunk
        v_xor_b32 v13, v12, v11
        v_lshlrev_b32 v13, 4, v13
        v_lshl_add_u32 v13, v11, 7, v13
        v_add_u32 v13, s{sT2}, v13
        v_lshlrev_b32 v14, 11, v11
        v_lshl_add_u32 v14, v12, 4, v14
        s_waitcnt lgkmcnt(0)
        """)
        for i in range(4): a(f"ds_read_b128 {vr(32+4*i,4)}, v13 offset:{i*1024}")
        for i in range(4):
            a(f"s_waitcnt lgkmcnt({3-i})\ns_add_u32 s{sT2}, s{sT}, {i*8*2048}\nbuffer_store_dwordx4 {vr(32+4*i,4)}, v14, s[{SOUT}:{SOUT+3}], s{sT2} offen {OSTF}")
    else:
      for nt in range(2):
        b=ACC3+16*nt; T=8+8*nt
        for i in range(8): a(f"v_cvt_pk_bf16_f32 v{T+i}, v{b+2*i}, v{b+2*i+1}")
        a(f"buffer_store_dwordx4 {vr(T,4)}, v6, s[{SOUT}:{SOUT+3}], s{sT} offen offset:{nt*64} {OSTF}")
        a(f"buffer_store_dwordx4 {vr(T+4,4)}, v6, s[{SOUT}:{SOUT+3}], s{sT} offen offset:{nt*64+16} {OSTF}")
    a(f"""
    s_cmp_lg_u32 s2, 0
    s_cbranch_scc1 {name}_nn
    s_cmp_lg_u32 s{sWV}, 0
    s_cbranch_scc1 {name}_nn
    s_mov_b32 s{sT}, {NONCE}
    v_mov_b32 v12, 0
    v_mov_b32 v13, s{sN}
    buffer_store_dword v13, v12, s[{R.SWS}:{R.SWS+3}], s{sT} offen sc1
    {name}_nn:
    """)
    if pf.on:
        a("s_waitcnt vmcnt(0)"); pf.pt("end"); pf0.flush(len(PTS),4,2,wave=cfg.get("pwave",0) if cfg.get("pwave",0)<4 else 99)
    a.label(f"{name}_end")
    a.label(f"{name}_last")
    a("s_endpgm")
    return dict(name=name, grid=256, block=512, lds=163840, vgpr=248, sgpr=104 if False else 102)
```

```python
from asmlib import *
import math
from k1 import QF,KF,VF,PQ,OF,KVP,WS_USED,LOG2E,CSCALE
import k2
from k2 import K2R,k2_load_b2,k2_setup_regs,k2_setup_late,k2_setup_consts,k2_load_b,k2_load_a,k2_attn,k2_apart

FLG=KVP+0x90000
FL=128
FSTR=16*FL+256
F1=FLG; F2=FLG+16*FSTR; F2STR=32*FL+256; NONCE=F2+8*F2STR
FP=NONCE+256; FPSTR=32*FL+256
WOL=98304
NL=163840-16

sAWO=64; sBWO=66; sOUT=68; sDBG=70; sWSP=72; sN=74; sWV=75; sP3T=76; sP3NS=77; sP3BR=78; sCNT2=79

def poll(a, name, srd, soff, need_lo, need_hi, vtmp, voff, bound=30000, sleep=4):
    L=a.newlabel(name); D=a.newlabel(name+"d")
    a(f"""
    s_mov_b32 s{sCNT2}, 0
    s_mov_b64 exec, s[{need_lo}:{need_hi}]
    {L}:
    buffer_load_dword v{vtmp}, v{voff}, s[{srd}:{srd+3}], s{soff} offen sc1
    s_waitcnt vmcnt(0)
    v_cmp_eq_u32 vcc, s{sN}, v{vtmp}
    s_cmp_eq_u64 vcc, s[{need_lo}:{need_hi}]
    s_cbranch_scc1 {D}
    s_add_u32 s{sCNT2}, s{sCNT2}, 1
    s_cmp_lt_u32 s{sCNT2}, {bound}
    s_cbranch_scc0 {D}
    s_sleep {sleep}
    s_branch {L}
    {D}:
    s_mov_b64 exec, -1
    """)

def gen_p3v2(a,name,cfg,R,pf,pf0,PTS,OSTF,HLD):
    sT=R.sT; sT2=R.sT2
    WOL0=32768; WOL1=98304
    a(f"s_cmp_ge_u32 s{sWV}, 4\ns_cbranch_scc1 {name}_p3l")
    SOUT=16; sTT=26; sNH=27
    ACC3=32; OS=[64,80]; WSET=[96,104,112]
    vWA3=5; vO=7
    a(f"""
    s_and_b32 s{sTT}, s{sWV}, 1
    s_lshr_b32 s{sNH}, s{sWV}, 1
    s_mov_b32 s{SOUT}, s{sOUT}
    s_mov_b32 s{SOUT+1}, s{sOUT+1}
    s_mov_b32 s{SOUT+2}, 0x400000
    s_mov_b32 s{SOUT+3}, 0x20000
    v_bfe_u32 v6, v1, 2, 2
    v_lshrrev_b32 v7, 5, v1
    v_lshl_add_u32 v6, v7, 2, v6
    v_lshlrev_b32 v6, 7, v6
    v_and_b32 v7, 1, v1
    v_lshlrev_b32 v7, 1, v7
    v_bfe_u32 v24, v1, 4, 1
    v_or_b32 v7, v7, v24
    v_bfe_u32 v24, v1, 3, 1
    v_lshlrev_b32 v24, 2, v24
    v_xor_b32 v7, v7, v24
    v_lshl_add_u32 v6, v7, 4, v6
    v_bfe_u32 v24, v1, 1, 1
    v_lshl_add_u32 v{vWA3}, v24, 3, v6
    v_xor_b32 v{vWA3+1}, 64, v{vWA3}
    s_lshl_b32 s{sT}, s{sNH}, 16
    s_add_u32 s{sT}, s{sT}, {WOL0}
    v_add_u32 v{vWA3}, s{sT}, v{vWA3}
    v_add_u32 v{vWA3+1}, s{sT}, v{vWA3+1}
    s_lshl_b32 s{sT}, s{sTT}, 10
    v_add_u32 v{vO}, s{sT}, v3
    """)
    q=[]
    def rd_o(e):
        for hh in range(4):
            a(f"ds_read_b128 {vr(OS[e&1]+4*hh,4)}, v{vO} offset:{(e&3)*8192+hh*2048}"); q.append(("o",e))
    def rd_w(h):
        for nt in range(2):
            for t in range(2):
                a(f"ds_read_b64_tr_b16 {vr(WSET[h%3]+4*nt+2*t,2)}, v{vWA3+nt} offset:{h*2048+t*1024}"); q.append(("w",h))
    st={"done":0}
    def wait_for(tags):
        last=max(i for i,x in enumerate(q) if x in tags)
        if last<st["done"]: return
        n=len(q)-1-last
        assert n<=15 and len(q)-st["done"]<=16, (n,len(q)-st["done"])
        a(f"s_waitcnt lgkmcnt({n})"); st["done"]=last+1
    rd_w(0); rd_w(1)
    a("s_barrier")
    pf.pt("p3b0")
    rd_o(0)
    for h in range(32):
        e=h>>2; hh=h&3
        if hh==2 and e<7:
            wait_for([("o",e)])
            a("s_barrier")
            rd_o(e+1)
        if h+2<32: rd_w(h+2)
        wait_for([("w",h),("o",e)])
        for nt in range(2):
            c = "0" if h==0 else vr(ACC3+16*nt,16)
            a(f"v_mfma_f32_32x32x16_bf16 {vr(ACC3+16*nt,16)}, {vr(WSET[h%3]+4*nt,4)}, {vr(OS[e&1]+4*hh,4)}, {c}")
    pf.pt("p3loop")
    a(f"""
    s_lshl_b32 s{sT}, s{sP3T}, 1
    s_add_u32 s{sT}, s{sT}, s{sTT}
    s_lshl_b32 s{sT}, s{sT}, 16
    s_lshl_b32 s{sT2}, s{sP3BR}, 10
    s_add_u32 s{sT}, s{sT}, s{sT2}
    s_lshl_b32 s{sT2}, s{sP3NS}, 8
    s_add_u32 s{sT}, s{sT}, s{sT2}
    s_lshl_b32 s{sT2}, s{sNH}, 7
    s_add_u32 s{sT}, s{sT}, s{sT2}
    v_and_b32 v6, 31, v1
    v_lshlrev_b32 v6, 11, v6
    v_lshrrev_b32 v7, 5, v1
    v_lshl_add_u32 v6, v7, 5, v6
    s_nop 7
    """)
    if cfg.get("outT"):
        a(f"""
        s_lshl_b32 s{sT2}, s{sWV}, 12
        v_and_b32 v8, 31, v1
        v_lshlrev_b32 v8, 7, v8                    ; token*128
        v_lshrrev_b32 v9, 5, v1
        v_lshl_add_u32 v8, v9, 5, v8               ; + hf*32
        v_and_b32 v9, 7, v1
        v_lshlrev_b32 v9, 4, v9
        v_add_u32 v8, s{sT2}, v8
        """)
        for nt in range(2):
            b=ACC3+16*nt; T=16+8*nt
            for i in range(8): a(f"v_cvt_pk_bf16_f32 v{T+i}, v{b+2*i}, v{b+2*i+1}")
        for nt in range(2):
            for u in range(2):
                a(f"v_add_u32 v10, {nt*64+u*16}, v8\nv_xor_b32 v10, v10, v9\nds_write_b128 v10, {vr(16+8*nt+4*u,4)}")
        a(f"""
        v_lshrrev_b32 v11, 3, v1
        v_and_b32 v12, 7, v1                       ; chunk
        v_xor_b32 v13, v12, v11
        v_lshlrev_b32 v13, 4, v13
        v_lshl_add_u32 v13, v11, 7, v13
        v_add_u32 v13, s{sT2}, v13
        v_lshlrev_b32 v14, 11, v11
        v_lshl_add_u32 v14, v12, 4, v14
        s_waitcnt lgkmcnt(0)
        """)
        for i in range(4): a(f"ds_read_b128 {vr(32+4*i,4)}, v13 offset:{i*1024}")
        for i in range(4):
            a(f"s_waitcnt lgkmcnt({3-i})\ns_add_u32 s{sT2}, s{sT}, {i*8*2048}\nbuffer_store_dwordx4 {vr(32+4*i,4)}, v14, s[{SOUT}:{SOUT+3}], s{sT2} offen {OSTF}")
    else:
      for nt in range(2):
        b=ACC3+16*nt; T=8+8*nt
        for i in range(8): a(f"v_cvt_pk_bf16_f32 v{T+i}, v{b+2*i}, v{b+2*i+1}")
        a(f"buffer_store_dwordx4 {vr(T,4)}, v6, s[{SOUT}:{SOUT+3}], s{sT} offen offset:{nt*64} {OSTF}")
        a(f"buffer_store_dwordx4 {vr(T+4,4)}, v6, s[{SOUT}:{SOUT+3}], s{sT} offen offset:{nt*64+16} {OSTF}")
    a(f"""
    s_cmp_lg_u32 s2, 0
    s_cbranch_scc1 {name}_nn
    s_cmp_lg_u32 s{sWV}, 0
    s_cbranch_scc1 {name}_nn
    s_mov_b32 s{sT}, {NONCE}
    v_mov_b32 v12, 0
    v_mov_b32 v13, s{sN}
    buffer_store_dword v13, v12, s[{R.SWS}:{R.SWS+3}], s{sT} offen sc1
    {name}_nn:
    """)
    if pf.on:
        a("s_waitcnt vmcnt(0)"); pf.pt("end"); pf0.flush(len(PTS),4,2,wave=cfg.get("pwave",0) if cfg.get("pwave",0)<4 else 99)
    a("s_endpgm")
    a.label(f"{name}_p3l")
    sE=26; sB=27; sL=28
    a(f"""
    s_sub_u32 s{sE}, s{sWV}, 4
    s_lshl_b32 s{sT}, s{sP3BR}, 6
    s_lshl_b32 s{sT2}, s{sP3T}, 1
    s_add_u32 s{sT}, s{sT}, s{sT2}
    s_lshl_b32 s{sB}, s{sT}, 15
    s_lshl_b32 s{sT}, s{sE}, 10
    s_add_u32 s{sB}, s{sB}, s{sT}
    s_add_u32 s{sB}, s{sB}, {OF}
    s_lshl_b32 s{sL}, s{sE}, 11
    """)
    OR=32; LA=cfg.get("p3_la",5); mode=cfg.get("p3_mode","reg")
    items=[(e,tt) for e in range(8) for tt in range(2)]
    def ld(k):
        e,tt=items[k]
        if cfg.get("diag_p3noload"): return
        if mode=="reg":
            a(f"s_add_u32 s{sT}, s{sB}, {e*4096+tt*32768}\nbuffer_load_dwordx4 {vr(OR+4*k,4)}, v3, s[{R.SWS}:{R.SWS+3}], s{sT} offen {HLD}")
        else:
            a(f"s_add_u32 m0, s{sL}, {(e&3)*8192+tt*1024}\ns_add_u32 s{sT}, s{sB}, {e*4096+tt*32768}\nbuffer_load_dwordx4 v3, s[{R.SWS}:{R.SWS+3}], s{sT} offen {HLD} lds")
    issued=0
    if mode=="dma": LA=min(LA,6)
    while issued<LA: ld(issued); issued+=1
    a(f"v_add_u32 v4, s{sL}, v3")
    for e in range(8):
        need=2*e+2
        a(f"s_waitcnt vmcnt({max(issued-need,0)})")
        if mode=="reg":
            for tt in range(2):
                a(f"ds_write_b128 v4, {vr(OR+4*(2*e+tt),4)} offset:{(e&3)*8192+tt*1024}")
            while issued<min(16,need+LA): ld(issued); issued+=1
            a("s_waitcnt lgkmcnt(0)\ns_barrier")
        else:
            a("s_barrier")
            while issued<min(16,need+LA,2*(e+4)): ld(issued); issued+=1
    a.label(f"{name}_end")
    a.label(f"{name}_last")
    a("s_endpgm")

def gen_fused(a, name, cfg):
    NS=cfg.get("ns",3)
    assert NS==3 or cfg.get("wo_late")
    P3V=cfg.get("p3v",1)
    DEF=cfg.get("defer_pq",False)
    LDX=cfg.get("ldx",""); LDW=cfg.get("ldw","")
    STF="sc1"; HLD="sc1"
    OSTF=cfg.get("out_stflags","")
    XB=0; XS=16384; WB=NS*XS; WS_=24576
    a.raw(f".globl {name}\n.p2align 8\n.type {name},@function\n{name}:")
    sWAVE=20; sBR=21; sR=22; sG=23; sT=24; sT2=25
    SX=8; SW=12; SWS=16
    PTS=cfg.get("pts",["entry","p","loop","epi","b1","b2","kv","att","f2","end"])
    TIMER=cfg.get("timer","s_memrealtime")
    class PF0:
        on=cfg.get("prof",False)
        def flush(self,n,srd,vt,wave=0):
            if not self.on: return
            lab=a.newlabel("pf")
            a(f"""
            s_cmp_lg_u32 s{sWV}, {wave}
            s_cbranch_scc1 {lab}
            s_mov_b32 s4, s{sWSP}
            s_mov_b32 s5, s{sWSP+1}
            s_mov_b32 s6, {16<<20}
            s_mov_b32 s7, 0x20000
            s_lshl_b32 s24, s2, 6
            s_add_u32 s24, s24, {14<<20}
            v_lshlrev_b32 v2, 2, v1
            s_mov_b64 exec, 0xffff
            buffer_store_dword v247, v2, s[4:7], s24 offen
            s_mov_b64 exec, -1
            {lab}:
            """)
    pf0=PF0()
    class PF:
        on=pf0.on
        def pt(self,n):
            if self.on and n in PTS:
                a(f"{TIMER} s[100:101]\ns_waitcnt lgkmcnt(0)\nv_writelane_b32 v247, s100, {PTS.index(n)}")
    pf=PF()
    pf.pt("entry")
    a(f"""
    s_cmp_ge_u32 s2, 256
    s_cbranch_scc1 {name}_end
    """)
    if cfg.get("codepf_top"):
        nseg=cfg["codepf_top"]; lab=a.newlabel("cpt"); nwg=cfg.get("codepf_wgs",8)
        a(f"""
        s_load_dwordx4 s[28:31], s[0:1], 0
        s_load_dwordx4 s[32:35], s[0:1], 24
        s_load_dwordx2 s[{sAWO}:{sAWO+1}], s[0:1], 16
        s_load_dwordx2 s[{sBWO}:{sBWO+1}], s[0:1], 40
        s_load_dwordx4 s[{sOUT}:{sOUT+3}], s[0:1], 48
        s_load_dwordx2 s[{sWSP}:{sWSP+1}], s[0:1], 64
        s_cmp_ge_u32 s2, {nwg}
        s_cbranch_scc1 {lab}
        v_lshrrev_b32 v2, 6, v0
        v_and_b32 v1, 63, v0
        v_subrev_u32 v2, 1, v2                     ; wave - 1
        v_cmp_gt_u32 vcc, {nseg}, v2
        s_getpc_b64 s[4:5]
        {lab}_pc:
        s_sub_u32 s4, s4, {lab}_pc-{name}
        s_subb_u32 s5, s5, 0
        v_lshlrev_b32 v12, 13, v2
        v_lshl_add_u32 v12, v1, 7, v12
        v_min_u32 v12, {name}_last-{name}, v12
        v_mov_b32 v13, s5
        s_and_saveexec_b64 s[6:7], vcc
        s_cbranch_execz {lab}_x
        v_add_co_u32 v12, vcc, s4, v12
        s_nop 1
        v_addc_co_u32 v13, vcc, 0, v13, vcc
        global_load_dword v245, v[12:13], off
        {lab}_x:
        s_mov_b64 exec, s[6:7]
        {lab}:
        """)
    if not cfg.get("codepf_top"):
        a(f"""
        s_load_dwordx4 s[28:31], s[0:1], 0
        s_load_dwordx4 s[32:35], s[0:1], 24
        s_load_dwordx2 s[{sAWO}:{sAWO+1}], s[0:1], 16
        s_load_dwordx2 s[{sBWO}:{sBWO+1}], s[0:1], 40
        s_load_dwordx4 s[{sOUT}:{sOUT+3}], s[0:1], 48
        s_load_dwordx2 s[{sWSP}:{sWSP+1}], s[0:1], 64
        """)
    a(f"""
    v_lshrrev_b32 v2, 6, v0
    v_and_b32 v1, 63, v0
    s_and_b32 s{sT}, s2, 7
    v_readfirstlane_b32 s{sWAVE}, v2
    s_lshr_b32 s{sT2}, s2, 3
    s_and_b32 s{sBR}, s{sT}, 1
    s_lshr_b32 s{sT}, s{sT}, 1
    s_mov_b32 s{sP3BR}, s{sBR}
    s_lshl_b32 s{sP3T}, s{sT}, {3 if P3V==2 else 2}
    s_and_b32 s{sP3NS}, s{sT2}, {7 if P3V==2 else 3}
    s_add_u32 s{sP3T}, s{sP3T}, s{sP3NS}
    s_lshr_b32 s{sP3NS}, s{sT2}, {3 if P3V==2 else 2}
    s_and_b32 s{sR}, s{sT}, 1
    s_lshl_b32 s{sR}, s{sR}, 3
    s_lshr_b32 s{sG}, s{sT}, 1
    s_lshl_b32 s{sG}, s{sG}, 2
    s_and_b32 s{sT}, s{sT2}, 7
    s_add_u32 s{sR}, s{sR}, s{sT}
    s_lshr_b32 s{sT}, s{sT2}, 3
    s_add_u32 s{sG}, s{sG}, s{sT}
    s_mov_b32 s{sWV}, s{sWAVE}
    s_mov_b32 s83, 0
    """)
    FAST=cfg.get("faststart",False)
    sE=26; sXB=27; sWBs=38; sL=39; sROT=40; sXC=41; sWC=42
    def loader_setup():
        a(f"""
        s_sub_u32 s{sE}, s{sWAVE}, 4
        v_lshrrev_b32 v2, 3, v1
        v_and_b32 v3, 7, v1
        v_lshrrev_b32 v4, 1, v2
        s_and_b32 s{sT}, s{sE}, 1
        s_lshl_b32 s{sT}, s{sT}, 2
        v_or_b32 v4, s{sT}, v4
        v_xor_b32 v4, v4, v3
        v_lshlrev_b32 v5, 10, v2
        v_lshl_add_u32 v5, v4, 4, v5            ; x voffset
        v_bfe_u32 v4, v1, 4, 1
        v_lshlrev_b32 v4, 2, v4
        v_xor_b32 v4, v4, v3
        v_mul_u32_u24 v6, 3072, v2
        v_lshl_add_u32 v6, v4, 4, v6            ; w voffset
        v_lshlrev_b32 v7, 10, v2
        v_lshl_add_u32 v7, v4, 4, v7
        s_lshl_b32 s{sXB}, s{sR}, 17
        s_lshl_b32 s{sT}, s{sE}, 13
        s_add_u32 s{sXB}, s{sXB}, s{sT}
        s_lshl_b32 s{sWBs}, s{sG}, 7
        s_mul_i32 s{sT}, s{sE}, 24576
        s_add_u32 s{sWBs}, s{sWBs}, s{sT}
        s_lshl_b32 s{sL}, s{sE}, 10
        s_mov_b32 s{sROT}, 0
        """)
        for (src,sh,mask,mul) in cfg.get("k1_rot",[["R",0,3,2],["G",0,3,1]]):
            r={"R":sR,"G":sG}[src]
            a(f"s_lshr_b32 s{sT}, s{r}, {sh}\ns_and_b32 s{sT}, s{sT}, {mask}\ns_mul_i32 s{sT}, s{sT}, {mul}\ns_add_u32 s{sROT}, s{sROT}, s{sT}")
    if FAST: loader_setup()
    a(f"""
    s_mov_b32 s{SX+2}, 0x200000
    s_mov_b32 s{SX+3}, 0x20000
    s_mov_b32 s{SW+2}, 0x180000
    s_mov_b32 s{SW+3}, 0x20000
    s_mov_b32 s{SWS+2}, {WS_USED}
    s_mov_b32 s{SWS+3}, 0x20000
    s_cmp_eq_u32 s{sBR}, 0
    s_waitcnt lgkmcnt(0)
    s_cselect_b32 s{SX}, s28, s32
    s_cselect_b32 s{SX+1}, s29, s33
    s_cselect_b32 s{SW}, s30, s34
    s_cselect_b32 s{SW+1}, s31, s35
    s_mov_b32 s{SWS}, s{sWSP}
    s_mov_b32 s{SWS+1}, s{sWSP+1}
    """)
    def nonce_load():
        a(f"""
        s_mov_b32 s4, {NONCE}
        v_mov_b32 v30, 0
        buffer_load_dword v31, v30, s[{SWS}:{SWS+3}], s4 offen sc1
        """)
    if FAST:
        a(f"s_cmp_lt_u32 s{sWAVE}, 4\ns_cbranch_scc1 {name}_compute")
        mark_entry_end=len(a.lines)
        a.label(f"{name}_compute")
        if cfg.get("cmp_prio"): a(f"s_setprio {cfg['cmp_prio']}")
        nonce_load()
    else:
        nonce_load()
        a(f"s_cmp_ge_u32 s{sWAVE}, 4\ns_cbranch_scc1 {name}_loader")
    EC=cfg.get("early_consts",False)
    if EC: cD0,cD1,cD2,cD3,cA,cB,cC,cM,cT,cU,vONE,vKa,vKb=92,93,94,95,96,98,4,6,28,30,236,240,241
    else:  cD0,cD1,cD2,cD3,cA,cB,cC,cM,cT,cU,vONE,vKa,vKb=58,59,60,61,46,48,50,52,54,56,20,16,17
    sTM=26; sFN=27
    vXA=4; vWA=8
    ACC=32
    def acc(tt,sec): return ACC+(tt*3+sec)*16
    FR=[128,148]
    def xf(s,tt): return FR[s]+4*tt
    def wf(s,sec): return FR[s]+8+4*sec
    if cfg.get("pretouch"):
        lab=a.newlabel("ptc")
        a(f"""
        s_cmp_lg_u32 s{sWAVE}, 2
        s_cbranch_scc1 {lab}
        v_and_b32 v12, 7, v1
        v_lshlrev_b32 v12, 21, v12
        v_add_u32 v12, {0x1ffc00 if False else 0x100000}, v12
        v_min_u32 v12, {WS_USED-256}, v12
        buffer_load_dword v14, v12, s[{SWS}:{SWS+3}], 0 offen
        s_mov_b32 s44, s{sOUT}
        s_mov_b32 s45, s{sOUT+1}
        s_mov_b32 s46, 0x400000
        s_mov_b32 s47, 0x20000
        v_and_b32 v12, 1, v1
        v_lshlrev_b32 v12, 21, v12
        buffer_load_dword v15, v12, s[44:47], 0 offen
        s_cmp_eq_u32 s{sP3BR}, 0
        s_cselect_b32 s44, s{sAWO}, s{sBWO}
        s_cselect_b32 s45, s{sAWO+1}, s{sBWO+1}
        s_mov_b32 s46, 0x80000
        v_mov_b32 v12, 0
        buffer_load_dword v16, v12, s[44:47], 0 offen
        {lab}:
        """)
    if cfg.get("codepf"):
        nseg=cfg["codepf"]
        lab=a.newlabel("cpf")
        a(f"""
        s_cmp_lg_u32 s{sWAVE}, 1
        s_cbranch_scc1 {lab}
        s_lshr_b32 s4, s2, 3
        s_cmp_ge_u32 s4, {nseg}
        s_cbranch_scc1 {lab}
        s_lshl_b32 s6, s4, 13
        s_getpc_b64 s[4:5]
        {lab}_pc:
        s_sub_u32 s4, s4, {lab}_pc-{name}
        s_subb_u32 s5, s5, 0
        v_lshlrev_b32 v12, 7, v1
        v_add_u32 v12, s6, v12
        v_min_u32 v12, {name}_last-{name}, v12
        v_mov_b32 v13, s5
        v_add_co_u32 v12, vcc, s4, v12
        s_nop 1
        v_addc_co_u32 v13, vcc, 0, v13, vcc
        global_load_dword v245, v[12:13], off
        {lab}:
        """)
    a(f"""
    s_and_b32 s{sTM}, s{sWAVE}, 1
    s_lshr_b32 s{sFN}, s{sWAVE}, 1
    v_lshrrev_b32 v2, 5, v1                 ; hf
    v_and_b32 v3, 31, v1                    ; t31
    v_lshrrev_b32 v9, 1, v3
    v_and_b32 v9, 7, v9                     ; g
    s_lshl_b32 s{sT}, s{sTM}, 13
    v_lshlrev_b32 v10, 7, v3
    v_add_u32 v10, s{sT}, v10
    """)
    for ks in range(4):
        a(f"v_or_b32 v11, {2*ks}, v2\nv_xor_b32 v11, v11, v9\nv_lshl_add_u32 v{vXA+ks}, v11, 4, v10")
    a(f"""
    v_bfe_u32 v10, v1, 2, 2
    v_lshlrev_b32 v10, 7, v10
    v_lshl_add_u32 v10, v2, 10, v10
    v_bfe_u32 v11, v1, 4, 1
    v_lshlrev_b32 v11, 1, v11
    v_bfe_u32 v12, v1, 1, 1
    v_or_b32 v11, v11, v12
    s_lshl_b32 s{sT}, s{sFN}, 2
    v_or_b32 v11, s{sT}, v11
    v_bfe_u32 v12, v1, 3, 1
    v_lshlrev_b32 v12, 2, v12
    v_xor_b32 v11, v11, v12
    v_lshl_add_u32 v10, v11, 4, v10
    v_and_b32 v12, 1, v1
    v_lshl_add_u32 v10, v12, 3, v10
    v_add_u32 v{vWA}, {WB}, v10
    """)
    for r in range(ACC,ACC+96): a(f"v_mov_b32 v{r}, 0")
    a(f"""
    s_mov_b32 s{cD0}, {(-(NS-1)*XS)&0xffffffff:#x}
    s_mov_b32 s{cD1}, {XS}
    s_mov_b32 s{cD2}, {(-(NS-1)*WS_)&0xffffffff:#x}
    s_mov_b32 s{cD3}, {WS_}
    """)
    if EC: k2_setup_regs(a,K2R)
    def reads(s, ks):
        L=[]
        L.append(f"ds_read_b128 {vr(xf(s,0),4)}, v{vXA+ks}")
        L.append(f"ds_read_b64_tr_b16 {vr(wf(s,0),2)}, v{vWA} offset:{ks*2048}")
        L.append(f"ds_read_b64_tr_b16 {vr(wf(s,0)+2,2)}, v{vWA} offset:{ks*2048+512}")
        L.append(f"ds_read_b128 {vr(xf(s,1),4)}, v{vXA+ks} offset:4096")
        for sec in (1,2):
            L.append(f"ds_read_b64_tr_b16 {vr(wf(s,sec),2)}, v{vWA} offset:{sec*8192+ks*2048}")
            L.append(f"ds_read_b64_tr_b16 {vr(wf(s,sec)+2,2)}, v{vWA} offset:{sec*8192+ks*2048+512}")
        return L
    def mfmas(s, br):
        L=[]
        order=[(sec,tt) for sec in range(3) for tt in range(2)]
        if cfg.get("mf_order")=="x": order=[(sec,tt) for tt in range(2) for sec in range(3)]
        for sec,tt in order:
            for _one in (0,):
                featrow = (sec==0) or (sec==1 and br==1)
                A_,B_ = (wf(s,sec),xf(s,tt)) if featrow else (xf(s,tt),wf(s,sec))
                if cfg.get("mf16test"):
                    o=acc(tt,sec)+8*s
                    L.append(f"v_mfma_f32_16x16x32_bf16 {vr(o,4)}, {vr(A_,4)}, {vr(B_,4)}, {vr(o,4)}\nv_mfma_f32_16x16x32_bf16 {vr(o+4,4)}, {vr(B_,4)}, {vr(A_,4)}, {vr(o+4,4)}")
                else:
                    L.append(f"v_mfma_f32_32x32x16_bf16 {vr(acc(tt,sec),16)}, {vr(A_,4)}, {vr(B_,4)}, {vr(acc(tt,sec),16)}")
        return L
    def step(s, br, rd):
        M=mfmas(s,br)
        if rd:
            a(M[0]); a(rd[0]); a(rd[1]); a(rd[2])
            a(M[1]); a(rd[3]); a(rd[4]); a(rd[5])
            a(M[2]); a(rd[6]); a(rd[7])
            a(M[3]); a(M[4]); a(M[5])
        else:
            for m in M: a(m)
    sCNT,sSTG,sDX,sDW=(82,85,86,87) if EC else (38,39,40,41)
    for br in (0,1):
        bn="AB"[br]
        if br==0: a(f"s_cmp_eq_u32 s{sBR}, 1\ns_cbranch_scc1 {name}_cB")
        else: a.label(f"{name}_cB")
        a(f"s_mov_b32 s{sCNT}, 0\ns_mov_b32 s{sSTG}, 0\ns_waitcnt vmcnt(0)\nv_readfirstlane_b32 s{sN}, v31\ns_nop 3\ns_add_u32 s{sN}, s{sN}, 1")
        a("s_barrier")
        pf.pt("p")
        for l in reads(0,0): a(l)
        a.label(f"{name}_loop{bn}")
        for ks in range(3):
            a("s_waitcnt lgkmcnt(0)")
            step(ks&1, br, reads((ks+1)&1, ks+1))
        a(f"""
        s_add_u32 s{sSTG}, s{sSTG}, 1
        s_cmp_eq_u32 s{sSTG}, {NS}
        s_cselect_b32 s{sDX}, s{cD0}, s{cD1}
        s_cselect_b32 s{sDW}, s{cD2}, s{cD3}
        s_cselect_b32 s{sSTG}, 0, s{sSTG}
        s_waitcnt lgkmcnt(0)
        s_barrier
        """)
        if cfg.get("chunkstamps"):
            for c in range(7):
                lab=a.newlabel("cs")
                a(f"s_cmp_lg_u32 s{sCNT}, {c}\ns_cbranch_scc1 {lab}")
                pf.pt(f"c{c}")
                a.label(lab)
        for ks in range(4): a(f"v_add_u32 v{vXA+ks}, s{sDX}, v{vXA+ks}")
        a(f"v_add_u32 v{vWA}, s{sDW}, v{vWA}")
        step(1, br, reads(0,0))
        a(f"""
        s_add_u32 s{sCNT}, s{sCNT}, 1
        s_cmp_lt_u32 s{sCNT}, 7
        s_cbranch_scc1 {name}_loop{bn}
        """)
        sOFF,sH,sTB=(88,89,90) if EC else (42,43,44)
        def epi_addr():
            a(f"""
            s_lshl_b32 s{sH}, s{sG}, 2
            s_lshl_b32 s{sT}, s{sFN}, 1
            s_add_u32 s{sH}, s{sH}, s{sT}
            s_lshl_b32 s{sTB}, s{sR}, 2
            s_lshl_b32 s{sT}, s{sTM}, 1
            s_add_u32 s{sTB}, s{sTB}, s{sT}
            s_lshl_b32 s{sOFF}, s{sH}, 16
            s_lshl_b32 s{sT}, s{sTB}, 10
            s_add_u32 s{sOFF}, s{sOFF}, s{sT}
            v_lshlrev_b32 v9, 4, v1
            """)
        T0=128
        if br==1 and cfg.get("lastchunk"):
            epi_addr()
            a(f"""
            s_mov_b32 s{cA}, {f2u(CSCALE):#x}
            s_mov_b32 s{cA+1}, {f2u(CSCALE):#x}
            v_bfe_u32 v10, v1, 4, 1
            v_lshlrev_b32 v10, 16, v10
            v_lshrrev_b32 v11, 5, v1
            v_lshl_add_u32 v10, v11, 8, v10
            v_and_b32 v11, 15, v1
            v_lshl_add_u32 v10, v11, 4, v10
            """)
            XL={0:[xf(0,0),xf(0,1)]}; WL={(0,sec):wf(0,sec) for sec in range(3)}
            reg=168
            for ks in range(1,4): XL[ks]=[reg,reg+4]; reg+=8
            for sec in (1,2,0):
                for ks in range(1,4): WL[(ks,sec)]=reg; reg+=4
            assert reg<=232
            q=[]; st={"done":0}
            def rx(ks):
                a(f"ds_read_b128 {vr(XL[ks][0],4)}, v{vXA+ks}"); q.append(("x",ks))
                a(f"ds_read_b128 {vr(XL[ks][1],4)}, v{vXA+ks} offset:4096"); q.append(("x",ks))
            def rw(ks,sec):
                for t in range(2):
                    a(f"ds_read_b64_tr_b16 {vr(WL[(ks,sec)]+2*t,2)}, v{vWA} offset:{sec*8192+ks*2048+t*512}"); q.append(("w",ks,sec))
            def wait_for(tags):
                idx=[i for i,x in enumerate(q) if x in tags]
                if not idx or max(idx)<st["done"]: return
                n=len(q)-1-max(idx); assert n<=15 and len(q)-st["done"]<=15,(n,len(q),st)
                a(f"s_waitcnt lgkmcnt({n})"); st["done"]=max(idx)+1
            def mm(sec,ks,tt):
                featrow = sec in (0,1)
                A_,B_ = (WL[(ks,sec)],XL[ks][tt]) if featrow else (XL[ks][tt],WL[(ks,sec)])
                a(f"v_mfma_f32_32x32x16_bf16 {vr(acc(tt,sec),16)}, {vr(A_,4)}, {vr(B_,4)}, {vr(acc(tt,sec),16)}")
            TK=128+8
            TK=148
            def kops():
                L=[]
                for tt in range(2):
                    b=acc(tt,1); tmp=TK+8*tt
                    for i in range(8): L.append(f"v_cvt_pk_bf16_f32 v{tmp+i}, v{b+2*i}, v{b+2*i+1}")
                    L.append(f"s_add_u32 s{sT}, s{sOFF}, {KF+tt*1024}\nbuffer_store_dwordx4 {vr(tmp,4)}, v9, s[{SWS}:{SWS+3}], s{sT} offen {STF}")
                    L.append(f"s_add_u32 s{sT2}, s{sOFF}, {KF+tt*1024+65536}\nbuffer_store_dwordx4 {vr(tmp+4,4)}, v9, s[{SWS}:{SWS+3}], s{sT2} offen {STF}")
                return L
            TV=232
            def vops():
                L=[]
                for tt in range(2):
                    b=acc(tt,2); tmp=[232,148][tt]
                    for i in range(8): L.append(f"v_cvt_pk_bf16_f32 v{tmp+i}, v{b+2*i}, v{b+2*i+1}")
                    L.append(f"s_add_u32 s{sT}, s{sOFF}, {VF+tt*1024}\nbuffer_store_dwordx4 {vr(tmp,4)}, v10, s[{SWS}:{SWS+3}], s{sT} offen {STF}")
                    L.append(f"buffer_store_dwordx4 {vr(tmp+4,4)}, v10, s[{SWS}:{SWS+3}], s{sT} offen offset:512 {STF}")
                return L
            a("s_waitcnt lgkmcnt(0)")
            rx(1); rw(1,1); rx(2); rw(2,1)
            mm(1,0,0); mm(1,0,1)
            rx(3); rw(3,1)
            wait_for([("x",1),("w",1,1)]); mm(1,1,0); rw(1,2); mm(1,1,1)
            wait_for([("x",2),("w",2,1)]); mm(1,2,0); rw(2,2); mm(1,2,1)
            wait_for([("x",3),("w",3,1)]); mm(1,3,0); rw(3,2); mm(1,3,1)
            mm(2,0,0); rw(1,0); mm(2,0,1); rw(2,0)
            wait_for([("w",1,2)]); mm(2,1,0); rw(3,0); mm(2,1,1)
            a("s_nop 3")
            K=kops()
            for l in K[0:5]: a(l)
            wait_for([("w",2,2)]); mm(2,2,0)
            for l in K[5:10]: a(l)
            mm(2,2,1)
            for l in K[10:15]: a(l)
            wait_for([("w",3,2)]); mm(2,3,0)
            for l in K[15:20]: a(l)
            mm(2,3,1)
            mm(0,0,0); mm(0,0,1)
            wait_for([("w",1,0)]); mm(0,1,0); mm(0,1,1)
            a("s_nop 7")
            V=vops()
            for l in V[0:5]: a(l)
            wait_for([("w",2,0)]); mm(0,2,0)
            for l in V[5:10]: a(l)
            mm(0,2,1)
            for l in V[10:15]: a(l)
            wait_for([("w",3,0)]); mm(0,3,0)
            for l in V[15:20]: a(l)
            mm(0,3,1)
            pf.pt("loop")
            a("s_nop 15")
            tmp=168
            for tt in range(2):
                b=acc(tt,0)
                for i in range(8): a(f"v_pk_mul_f32 {vr(b+2*i,2)}, {vr(b+2*i,2)}, s[{cA}:{cA+1}]")
                for i in range(8): a(f"v_cvt_pk_bf16_f32 v{tmp+i}, v{b+2*i}, v{b+2*i+1}")
                a(f"s_add_u32 s{sT}, s{sOFF}, {QF+tt*1024}")
                a(f"buffer_store_dwordx4 {vr(tmp,4)}, v9, s[{SWS}:{SWS+3}], s{sT} offen {STF}")
                a(f"s_add_u32 s{sT2}, s{sOFF}, {QF+tt*1024+65536}")
                a(f"buffer_store_dwordx4 {vr(tmp+4,4)}, v9, s[{SWS}:{SWS+3}], s{sT2} offen {STF}")
                tmp+=8
            a(f"s_branch {name}_p1done")
            continue
        for ks in range(3):
            a("s_waitcnt lgkmcnt(0)")
            step(ks&1, br, reads((ks+1)&1, ks+1))
        a("s_waitcnt lgkmcnt(0)")
        step(1, br, [])
        pf.pt("loop")
        epi_addr()
        if br==1:
            a(f"s_mov_b32 s{cA}, {f2u(CSCALE):#x}\ns_mov_b32 s{cA+1}, {f2u(CSCALE):#x}")
            a(f"""
            v_bfe_u32 v10, v1, 4, 1
            v_lshlrev_b32 v10, 16, v10
            v_lshrrev_b32 v11, 5, v1
            v_lshl_add_u32 v10, v11, 8, v10
            v_and_b32 v11, 15, v1
            v_lshl_add_u32 v10, v11, 4, v10
            s_nop 7
            """)
            tmp=T0
            for tt in range(2):
                b=acc(tt,1)
                for i in range(8): a(f"v_cvt_pk_bf16_f32 v{tmp+i}, v{b+2*i}, v{b+2*i+1}")
                a(f"s_add_u32 s{sT}, s{sOFF}, {KF+tt*1024}")
                a(f"buffer_store_dwordx4 {vr(tmp,4)}, v9, s[{SWS}:{SWS+3}], s{sT} offen {STF}")
                a(f"s_add_u32 s{sT2}, s{sOFF}, {KF+tt*1024+65536}")
                a(f"buffer_store_dwordx4 {vr(tmp+4,4)}, v9, s[{SWS}:{SWS+3}], s{sT2} offen {STF}")
                tmp+=8
            for tt in range(2):
                b=acc(tt,2)
                for i in range(8): a(f"v_cvt_pk_bf16_f32 v{tmp+i}, v{b+2*i}, v{b+2*i+1}")
                a(f"s_add_u32 s{sT}, s{sOFF}, {VF+tt*1024}")
                a(f"buffer_store_dwordx4 {vr(tmp,4)}, v10, s[{SWS}:{SWS+3}], s{sT} offen {STF}")
                a(f"buffer_store_dwordx4 {vr(tmp+4,4)}, v10, s[{SWS}:{SWS+3}], s{sT} offen offset:512 {STF}")
                tmp+=8
            for tt in range(2):
                b=acc(tt,0)
                for i in range(8): a(f"v_pk_mul_f32 {vr(b+2*i,2)}, {vr(b+2*i,2)}, s[{cA}:{cA+1}]")
                for i in range(8): a(f"v_cvt_pk_bf16_f32 v{tmp+i}, v{b+2*i}, v{b+2*i+1}")
                a(f"s_add_u32 s{sT}, s{sOFF}, {QF+tt*1024}")
                a(f"buffer_store_dwordx4 {vr(tmp,4)}, v9, s[{SWS}:{SWS+3}], s{sT} offen {STF}")
                a(f"s_add_u32 s{sT2}, s{sOFF}, {QF+tt*1024+65536}")
                a(f"buffer_store_dwordx4 {vr(tmp+4,4)}, v9, s[{SWS}:{SWS+3}], s{sT2} offen {STF}")
                tmp+=8
            a(f"s_branch {name}_p1done")
        else:
            a(f"""
            s_mov_b32 s{cA}, {f2u(LOG2E):#x}
            s_mov_b32 s{cA+1}, {f2u(LOG2E):#x}
            s_mov_b32 s{cB}, 1.0
            s_mov_b32 s{cB+1}, 1.0
            s_mov_b32 s{cC}, {f2u(1e-6):#x}
            s_mov_b32 s{cC+1}, {f2u(1e-6):#x}
            s_mov_b32 s{cM}, 0x0000ffff
            s_mov_b32 s{cM+1}, 0x0000ffff
            v_mov_b32 v{vONE}, 0x3f803f80
            v_mov_b32 v{vONE+1}, 0x3f803f80
            v_mov_b32 v{vONE+2}, 0x3f803f80
            v_mov_b32 v{vONE+3}, 0x3f803f80
            s_nop 4
            """)
            U=168
            def phi(b):
                for i in range(8): a(f"v_pk_mul_f32 {vr(U+2*i,2)}, {vr(b+2*i,2)}, s[{cA}:{cA+1}]")
                for i in range(16): a(f"v_exp_f32 v{U+i}, v{U+i} clamp")
                for i in range(8): a(f"v_pk_add_f32 {vr(b+2*i,2)}, {vr(b+2*i,2)}, s[{cB}:{cB+1}]")
                for i in range(16): a(f"v_max_f32 v{b+i}, v{b+i}, v{U+i}")
                for i in range(8): a(f"v_pk_add_f32 {vr(b+2*i,2)}, {vr(b+2*i,2)}, s[{cC}:{cC+1}]")
            PK=[128,136]; VV=[144,152]; D=184; D2=200
            def qpart(tt,tmp):
                b=acc(tt,0)
                phi(b)
                for i in range(8): a(f"v_cvt_pk_bf16_f32 v{tmp+i}, v{b+2*i}, v{b+2*i+1}")
                if DEF: return
                a(f"s_add_u32 s{sT}, s{sOFF}, {PQ+tt*1024}")
                a(f"buffer_store_dwordx4 {vr(tmp,4)}, v9, s[{SWS}:{SWS+3}], s{sT} offen {STF}")
                a(f"s_add_u32 s{sT2}, s{sOFF}, {PQ+tt*1024+65536}")
                a(f"buffer_store_dwordx4 {vr(tmp+4,4)}, v9, s[{SWS}:{SWS+3}], s{sT2} offen {STF}")
            QF1=cfg.get("a_qfirst",False)
            if QF1: qpart(0,216); qpart(1,224)
            for tt in range(2):
                b=acc(tt,2)
                for i in range(8): a(f"v_cvt_pk_bf16_f32 v{VV[tt]+i}, v{b+2*i}, v{b+2*i+1}")
            for tt in range(2):
                b=acc(tt,1)
                phi(b)
                for i in range(8): a(f"v_cvt_pk_bf16_f32 v{PK[tt]+i}, v{b+2*i}, v{b+2*i+1}")
                a("s_nop 1")
                for m in range(2):
                    c1 = "0" if (tt==0 and m==0) else vr(D,16)
                    c2 = "0" if (tt==0 and m==0) else vr(D2,16)
                    a(f"v_mfma_f32_32x32x16_bf16 {vr(D,16)}, {vr(PK[tt]+4*m,4)}, {vr(VV[tt]+4*m,4)}, {c1}")
                    a(f"v_mfma_f32_32x32x16_bf16 {vr(D2,16)}, {vr(PK[tt]+4*m,4)}, v[{vONE}:{vONE+3}], {c2}")
            def kvp_addr():
                a(f"""
                v_and_b32 v11, 31, v1
                v_lshrrev_b32 v12, 5, v1
                v_and_b32 v13, 15, v1
                v_lshlrev_b32 v13, 5, v13
                v_lshl_add_u32 v13, v12, 9, v13
                v_lshlrev_b32 v14, 5, v12
                v_add_u32 v14, 1024, v14
                v_mov_b32 v15, 0x40000000
                v_cmp_eq_u32 s[{cT}:{cT+1}], 16, v11
                v_cmp_eq_u32 s[{cU}:{cU+1}], 0, v11
                s_nop 1
                v_cndmask_b32_e64 v{vKa}, v15, v14, s[{cT}:{cT+1}]
                v_cndmask_b32_e64 v{vKb}, v15, v14, s[{cU}:{cU+1}]
                v_cndmask_b32_e64 v{vKa}, v{vKa}, v13, s[{cM}:{cM+1}]
                v_cndmask_b32_e64 v{vKb}, v13, v{vKb}, s[{cM}:{cM+1}]
                """)
            if QF1:
                kvp_addr()
                a("s_nop 1")
            else:
                a("s_nop 15")
            for r in range(8):  a(f"v_cndmask_b32_e64 v{D+r}, v{D2+r}, v{D+r}, s[{cM}:{cM+1}]")
            for r in range(8,16): a(f"v_cndmask_b32_e64 v{D+r}, v{D+r}, v{D2+r}, s[{cM}:{cM+1}]")
            EX = 0
            a(f"""
            s_lshl_b32 s{sT}, s{sFN}, 12
            s_add_u32 s{sT}, s{sT}, {EX}
            v_add_u32 v10, s{sT}, v9
            s_cmp_eq_u32 s{sTM}, 0
            s_cbranch_scc1 {name}_Ard
            """)
            for q in range(4): a(f"ds_write_b128 v10, {vr(D+4*q,4)} offset:{q*1024}")
            a(f"s_waitcnt lgkmcnt(0)")
            a.label(f"{name}_Ard")
            a("s_barrier")
            a(f"s_cmp_lg_u32 s{sTM}, 0\ns_cbranch_scc1 {name}_Aq")
            for q in range(4): a(f"ds_read_b128 {vr(D2+4*q,4)}, v10 offset:{q*1024}")
            if not QF1: kvp_addr()
            a(f"""
            s_lshl_b32 s{sT}, s{sH}, 4
            s_add_u32 s{sT}, s{sT}, s{sR}
            s_mul_i32 s{sT}, s{sT}, 1088
            s_add_u32 s{sT}, s{sT}, {KVP}
            s_add_u32 s{sT2}, s{sT}, {16*1088}
            s_waitcnt lgkmcnt(0)
            """)
            for i in range(8): a(f"v_pk_add_f32 {vr(D+2*i,2)}, {vr(D+2*i,2)}, {vr(D2+2*i,2)}")
            a(f"""
            buffer_store_dwordx4 {vr(D,4)}, v{vKa}, s[{SWS}:{SWS+3}], s{sT} offen {STF}
            buffer_store_dwordx4 {vr(D+4,4)}, v{vKa}, s[{SWS}:{SWS+3}], s{sT} offen offset:16 {STF}
            buffer_store_dwordx4 {vr(D+8,4)}, v{vKb}, s[{SWS}:{SWS+3}], s{sT2} offen {STF}
            buffer_store_dwordx4 {vr(D+12,4)}, v{vKb}, s[{SWS}:{SWS+3}], s{sT2} offen offset:16 {STF}
            """)
            a.label(f"{name}_Aq")
            if not QF1: qpart(0,216); qpart(1,224 if DEF else 128)
            if DEF:
                a(f"""
                s_mov_b32 s82, s{sOFF}
                s_lshl_b32 s{sT}, s{sG}, 1
                s_add_u32 s{sT}, s{sT}, s{sFN}
                s_mul_i32 s{sT}, s{sT}, {FPSTR}
                s_lshl_b32 s{sT2}, s{sR}, 1
                s_add_u32 s{sT2}, s{sT2}, s{sTM}
                s_lshl_b32 s{sT2}, s{sT2}, 7
                s_add_u32 s{sT}, s{sT}, s{sT2}
                s_add_u32 s84, s{sT}, {FP}
                s_mov_b32 s83, 1
                """)
            a(f"s_branch {name}_p1done")
    mark_loader_start=len(a.lines)
    a.label(f"{name}_loader")
    if cfg.get("ldr_prio"): a(f"s_setprio {cfg['ldr_prio']}")
    if not FAST: loader_setup()
    def issue(c, part=None):
        st=c%NS
        L=[]
        hdr=f"""
        s_add_u32 s{sT}, s{sROT}, {c}
        s_and_b32 s{sT}, s{sT}, 7
        s_lshl_b32 s{sXC}, s{sT}, 7
        s_add_u32 s{sXC}, s{sXC}, s{sXB}
        s_mul_i32 s{sWC}, s{sT}, 196608
        s_add_u32 s{sWC}, s{sWC}, s{sWBs}
        """
        for i in range(4):
            L.append(f"s_add_u32 m0, s{sL}, {XB+st*XS+i*4096}\ns_add_u32 s{sT}, s{sXC}, {i*32768}\nbuffer_load_dwordx4 v5, s[{SX}:{SX+3}], s{sT} offen {LDX} lds")
        for jj in range(2):
            for sec in range(3):
                L.append(f"s_add_u32 m0, s{sL}, {WB+st*WS_+sec*8192+jj*4096}\ns_add_u32 s{sT}, s{sWC}, {jj*4*24576+sec*1024}\nbuffer_load_dwordx4 v6, s[{SW}:{SW+3}], s{sT} offen {LDW} lds")
        lo,hi = part if part else (0,10)
        if lo==0: a(hdr)
        for l in L[lo:hi]: a(l)
    k0=cfg.get("pro_k",5)
    issue(0)
    if FAST: nonce_load()
    issue(1,(0,k0))
    a(f"s_waitcnt vmcnt({k0})\nv_readfirstlane_b32 s{sN}, v31\ns_nop 3\ns_add_u32 s{sN}, s{sN}, 1\ns_barrier")
    if k0<10: issue(1,(k0,10))
    for c_ in range(2,NS): issue(c_)
    for c in range(7):
        issued=min(8,c+NS)
        rem=10*(issued-(c+2))
        if c==6: rem=(1 if cfg.get("wo_late") else 16) if P3V==1 else 17
        a(f"s_waitcnt vmcnt({rem})\ns_barrier")
        if c+NS<8: issue(c+NS)
        if c==5:
            a(f"""
            s_cmp_eq_u32 s{sP3BR}, 0
            s_cselect_b32 s28, s{sAWO}, s{sBWO}
            s_cselect_b32 s29, s{sAWO+1}, s{sBWO+1}
            s_mov_b32 s30, 0x80000
            s_mov_b32 s31, 0x20000
            s_lshl_b32 s{sXC}, s{sP3NS}, {7 if P3V==1 else 8}
            s_lshl_b32 s{sT}, s{sE}, 13
            s_add_u32 s{sXC}, s{sXC}, s{sT}
            """)
            if P3V==1 and cfg.get("wo_late"):
                a(f"""
                v_and_b32 v8, 31, v1
                s_lshl_b32 s{sT}, s{sE}, 5
                v_add_u32 v8, s{sT}, v8
                v_lshlrev_b32 v8, 10, v8
                s_and_b32 s{sT}, s{sP3T}, 3
                s_lshl_b32 s{sT}, s{sT}, 17
                s_lshl_b32 s{sXC}, s{sP3NS}, 7
                s_add_u32 s{sT}, s{sT}, s{sXC}
                buffer_load_dword v244, v8, s[28:31], s{sT} offen
                """)
            elif P3V==1 and cfg.get("p3rot",0):
                a(f"s_lshl_b32 s{sXC}, s{sP3NS}, 7\ns_mul_i32 s{sWC}, s{sP3NS}, {2*cfg['p3rot']}\ns_add_u32 s{sWC}, s{sWC}, s{sE}")
                for u in range(16):
                    a(f"s_add_u32 m0, s{sL}, {WOL+u*4096}")
                    a(f"s_add_u32 s{sT}, s{sWC}, {4*u}\ns_and_b32 s{sT}, s{sT}, 63\ns_lshl_b32 s{sT}, s{sT}, 13\ns_add_u32 s{sT}, s{sT}, s{sXC}")
                    a(f"buffer_load_dwordx4 v7, s[28:31], s{sT} offen lds")
            else:
              for u in range(16):
                a(f"s_add_u32 m0, s{sL}, {WOL+u*4096}")
                a(f"s_add_u32 s{sT}, s{sXC}, {u*32768+(0 if P3V==1 else 128)}")
                a(f"buffer_load_dwordx4 v7, s[28:31], s{sT} offen lds")
            if P3V==2:
                a(f"""
                v_and_b32 v8, 15, v1
                s_lshl_b32 s{sT}, s{sE}, 4
                v_add_u32 v8, s{sT}, v8
                v_lshlrev_b32 v8, 10, v8
                s_bfe_u32 s{sT}, s2, 0x30003
                s_lshl_b32 s{sT}, s{sT}, 16
                s_lshl_b32 s{sXC}, s{sP3NS}, 8
                s_add_u32 s{sT}, s{sT}, s{sXC}
                buffer_load_dword v9, v8, s[28:31], s{sT} offen
                """)
    if cfg.get("ldr_prio"): a("s_setprio 0")
    if EC: k2_setup_regs(a,K2R)
    a(f"s_cmp_eq_u32 s{sBR}, 1\ns_cbranch_scc1 {name}_p1bar\ns_barrier\ns_branch {name}_p1bar")
    if FAST:
        blk=a.lines[mark_loader_start:]
        del a.lines[mark_loader_start:]
        a.lines[mark_entry_end:mark_entry_end]=blk
    a.label(f"{name}_p1done")
    if cfg.get("cmp_prio"): a("s_setprio 0")
    pf.pt("epi")
    a("s_waitcnt vmcnt(0)")
    a.label(f"{name}_p1bar")
    a("s_barrier")
    R=K2R
    a(f"""
    s_cmp_lg_u32 s{sWV}, 0
    s_cbranch_scc1 {name}_nf1
    s_lshl_b32 s{sT}, s{sBR}, 3
    s_add_u32 s{sT}, s{sT}, s{sG}
    s_mul_i32 s{sT}, s{sT}, {FSTR}
    s_lshl_b32 s{sT2}, s{sR}, 7
    s_add_u32 s{sT}, s{sT}, s{sT2}
    s_add_u32 s{sT}, s{sT}, {F1}
    v_mov_b32 v12, 0
    v_mov_b32 v13, s{sN}
    buffer_store_dword v13, v12, s[{SWS}:{SWS+3}], s{sT} offen sc1
    {name}_nf1:
    """)
    pf.pt("b1")
    a(f"""
    s_mov_b32 s{R.sWAVE}, s{sWV}
    s_bfe_u32 s{R.sRB}, s2, 0x30003
    s_and_b32 s{R.sH}, s2, 7
    s_lshr_b32 s{R.sT}, s2, 6
    s_lshl_b32 s{R.sT}, s{R.sT}, 3
    s_add_u32 s{R.sH}, s{R.sH}, s{R.sT}
    v_lshlrev_b32 v3, 4, v1
    s_lshl_b32 s{R.sQB}, s{R.sRB}, 3
    s_add_u32 s{R.sQB}, s{R.sQB}, s{R.sWAVE}
    s_mov_b32 s{R.SWS}, s{sWSP}
    s_mov_b32 s{R.SWS+1}, s{sWSP+1}
    s_mov_b32 s{R.SWS+2}, {WS_USED}
    s_mov_b32 s{R.SWS+3}, 0x20000
    """)
    if EC: k2_setup_late(a,R)
    else: k2_setup_consts(a,R)
    sFA=12; sNEED=14
    a(f"""
    v_lshlrev_b32 v2, 7, v1
    s_lshr_b32 s{sFA}, s{R.sH}, 2
    s_mul_i32 s{sFA}, s{sFA}, {FSTR}
    s_add_u32 s13, s{sFA}, {F1}               ; A row
    s_add_u32 s{sFA}, s{sFA}, {F1+8*FSTR}     ; B row
    """)
    if cfg.get("wavepoll"):
        a(f"""
        s_lshl_b32 s{R.sT}, s{R.sRB}, 1
        s_lshr_b32 s{R.sT2}, s{sWV}, 1
        s_add_u32 s{R.sT2}, s{R.sT2}, s{R.sT}
        s_sub_i32 s{R.sT2}, s{R.sT2}, 2
        s_max_i32 s{R.sT2}, s{R.sT2}, 0
        s_lshl_b32 s{sNEED}, 1, s{R.sT2}
        s_lshr_b32 s{R.sT2}, s{sWV}, 2
        s_add_u32 s{R.sT2}, s{R.sT2}, s{R.sT}
        s_lshl_b32 s{R.sT2}, 1, s{R.sT2}
        s_or_b32 s{sNEED}, s{sNEED}, s{R.sT2}
        s_mov_b32 s{sNEED+1}, 0
        """)
        poll(a,"pb",R.SWS,sFA,sNEED,sNEED+1,12,2,sleep=cfg.get("sleep1",4))
    else:
        a(f"""
        s_cmp_lg_u32 s{sWV}, 0
        s_cbranch_scc1 {name}_np2
        s_lshl_b32 s{R.sT}, s{R.sRB}, 1
        s_lshl_b32 s{sNEED}, 15, s{R.sT}
        s_lshr_b32 s{sNEED}, s{sNEED}, 2          ; (0b1111 << 2rb) >> 2
        s_mov_b32 s{sNEED+1}, 0
        """)
        poll(a,"pb",R.SWS,sFA,sNEED,sNEED+1,12,2,sleep=cfg.get("sleep1",4))
        a.label(f"{name}_np2")
        a("s_waitcnt lgkmcnt(0)\ns_barrier")
    pf.pt("b2")
    if cfg.get("v_late"): k2_load_b2(a,R,HLD)
    else: k2_load_b(a,R,HLD)
    if DEF:
        a(f"s_cmp_eq_u32 s83, 0\ns_cbranch_scc1 {name}_nopq")
        for tt in range(2):
            a(f"s_add_u32 s{R.sT}, s82, {PQ+tt*1024}\nbuffer_store_dwordx4 {vr(216+8*tt,4)}, v3, s[{R.SWS}:{R.SWS+3}], s{R.sT} offen {STF}")
            a(f"s_add_u32 s{R.sT2}, s82, {PQ+tt*1024+65536}\nbuffer_store_dwordx4 {vr(220+8*tt,4)}, v3, s[{R.SWS}:{R.SWS+3}], s{R.sT2} offen {STF}")
        a(f"s_waitcnt vmcnt(4)\ns_branch {name}_pqd\n{name}_nopq:\ns_waitcnt vmcnt(0)\n{name}_pqd:\ns_barrier")
    else:
        a(f"s_waitcnt vmcnt({2 if cfg.get('v_late') else 0}) lgkmcnt(0)\ns_barrier")
    pf.pt("kv")
    if cfg.get("prio"):
        a(f"s_cmp_ge_u32 s{sWV}, 4\ns_cbranch_scc0 {name}_nprio\ns_setprio 1\n{name}_nprio:")
    def h_pre():
        a(f"s_mov_b64 exec, 0xffff\nbuffer_load_dword v13, v2, s[{R.SWS}:{R.SWS+3}], s13 offen sc1\ns_mov_b64 exec, -1")
    def h_post0():
        pf.pt("post0")
        D=a.newlabel("pa")
        a(f"""
        s_mov_b32 s{sNEED}, 0xffff
        s_mov_b32 s{sNEED+1}, 0
        s_waitcnt vmcnt(0)
        v_cmp_eq_u32 vcc, s{sN}, v13
        s_and_b64 vcc, vcc, s[{sNEED}:{sNEED+1}]
        s_cmp_eq_u64 vcc, s[{sNEED}:{sNEED+1}]
        s_cbranch_scc1 {D}
        """)
        poll(a,"pa2",R.SWS,13,sNEED,sNEED+1,13,2)
        a.label(D)
        pf.pt("aflag")
        if DEF:
            lab=a.newlabel("pqf")
            a(f"""
            s_cmp_eq_u32 s83, 0
            s_cbranch_scc1 {lab}
            v_mov_b32 v12, 0
            v_mov_b32 v13, s{sN}
            buffer_store_dword v13, v12, s[{R.SWS}:{R.SWS+3}], s84 offen sc1
            {lab}:
            """)
        k2_load_a(a,R,HLD,name,pq=not DEF)
    def pq_addr():
        a(f"""
        s_lshr_b32 s14, s{R.sH}, 1
        s_mul_i32 s14, s14, {FPSTR}
        s_lshr_b32 s15, s{R.sQB}, 1
        s_lshl_b32 s15, s15, 7
        s_add_u32 s14, s14, s15
        s_add_u32 s16, s14, {FP}
        v_mov_b32 v12, 0
        """)
    def pq_load():
        a(f"""
        s_lshl_b32 s{R.sT}, s{R.sH}, 16
        s_lshl_b32 s{R.sT2}, s{R.sQB}, 10
        s_add_u32 s{R.sT}, s{R.sT}, s{R.sT2}
        s_add_u32 s{R.sT}, s{R.sT}, {PQ}
        buffer_load_dwordx4 {vr(R.vPQ,4)}, v3, s[{R.SWS}:{R.SWS+3}], s{R.sT} offen {HLD}
        """)
    def pq_check(first):
        D=a.newlabel("pqd")
        a("s_mov_b32 s14, 1\ns_mov_b32 s15, 0")
        if first:
            a(f"""
            s_waitcnt vmcnt(0)
            v_readfirstlane_b32 s{R.sT}, v13
            s_cmp_eq_u32 s{R.sT}, s{sN}
            s_cbranch_scc1 {D}
            """)
        poll(a,"pq2",R.SWS,16,14,15,13,12,sleep=2)
        a.label(D)
        pq_load()
    def h_probe():
        lab=a.newlabel("pr")
        a(f"s_cmp_eq_u32 s{R.sRB}, 0\ns_cbranch_scc1 {lab}")
        pq_addr()
        a(f"buffer_load_dword v13, v12, s[{R.SWS}:{R.SWS+3}], s16 offen sc1\n{lab}:")
    def h_check():
        lab=a.newlabel("ck")
        a(f"s_cmp_eq_u32 s{R.sRB}, 0\ns_cbranch_scc1 {lab}")
        pq_check(True)
        a.label(lab)
    hk={"pre":h_pre,"post0":h_post0}
    if DEF: hk[("it",cfg.get("pq_at",2)+1)]=h_probe; hk[("it",cfg.get("pq_at",2))]=h_check
    AMID=cfg.get("amid",False)
    if AMID:
        OA,TMP=R.OA,R.TMP
        def h_a1():
            lab=a.newlabel("am1"); nr=a.newlabel("amr")
            RT=R.SA
            a(f"""
            s_cmp_eq_u32 s{R.sRB}, 0
            s_cbranch_scc1 {lab}
            s_waitcnt vmcnt(0) lgkmcnt(0)
            s_barrier
            v_lshlrev_b32 v{R.vRA}, 2, v0
            v_cmp_gt_u32 vcc, 272, v0
            s_and_saveexec_b64 s[28:29], vcc
            s_cbranch_execz {nr}
            """)
            for p in range(12): a(f"ds_read_b32 v{RT+p}, v{R.vRA} offset:{R.KVL+p*1088}")
            for p in range(1,4):
                a(f"s_waitcnt lgkmcnt({11-p})\nv_add_f32 v{RT}, v{RT}, v{RT+p}")
            for p in range(12,16): a(f"ds_read_b32 v{RT+p}, v{R.vRA} offset:{R.KVL+p*1088}")
            for p in range(4,16):
                a(f"s_waitcnt lgkmcnt({15-p})\nv_add_f32 v{RT}, v{RT}, v{RT+p}")
            a(f"""
            ds_write_b32 v{R.vRA}, v{RT} offset:{R.RED}
            {nr}:
            s_mov_b64 exec, s[28:29]
            s_waitcnt lgkmcnt(0)
            {lab}:
            """)
        def h_a2():
            lab=a.newlabel("am2")
            a(f"""
            s_cmp_eq_u32 s{R.sRB}, 0
            s_cbranch_scc1 {lab}
            s_barrier
            ds_read_b128 {vr(TMP+8,4)}, v{R.vKVA}
            ds_read_b128 {vr(TMP+12,4)}, v{R.vKVA} offset:16
            s_waitcnt lgkmcnt(0)
            """)
            for i in range(4): a(f"v_cvt_pk_bf16_f32 v{TMP+8+i}, v{TMP+8+2*i}, v{TMP+8+2*i+1}")
            a("s_nop 1")
            a(f"v_mfma_f32_32x32x16_bf16 {vr(OA,16)}, {vr(TMP+8,4)}, {vr(R.vPQ,4)}, 0")
            a.label(lab)
        def h_a3():
            lab=a.newlabel("am3")
            a(f"""
            s_cmp_eq_u32 s{R.sRB}, 0
            s_cbranch_scc1 {lab}
            v_add_f32 v{OA+8}, {f2u(1e-6):#x}, v{OA+8}
            s_lshl_b32 s{R.sT}, s{R.sQB}, 5
            s_add_u32 s{R.sT}, s{R.sT}, s{R.sH}
            v_rcp_f32 v{OA+8}, v{OA+8}
            s_lshl_b32 s{R.sT}, s{R.sT}, 10
            s_add_u32 s{R.sT}, s{R.sT}, {OF}
            """)
            for r in range(8): a(f"v_mul_f32 v{OA+r}, v{OA+r}, v{OA+8}")
            for i in range(4): a(f"v_cvt_pk_bf16_f32 v{TMP+4+i}, v{OA+2*i}, v{OA+2*i+1}")
            a(f"buffer_store_dwordx4 {vr(TMP+4,4)}, v3, s[{R.SWS}:{R.SWS+3}], s{R.sT} offen {STF}")
            a.label(lab)
        t1,t2,t3=cfg.get("amid_at",[4,3,2])
        hk[("it",t1)]=h_a1; hk[("it",t2)]=h_a2; hk[("it",t3)]=h_a3
    k2_attn(a,R,name,cfg,pf,hooks=hk)
    if DEF:
        lab=a.newlabel("rb0")
        a(f"s_cmp_lg_u32 s{R.sRB}, 0\ns_cbranch_scc1 {lab}")
        pq_addr(); pq_check(False)
        a.label(lab)
    a(f"""
    s_lshl_b32 s{R.sT}, s{R.sQB}, 5
    s_add_u32 s{R.sT}, s{R.sT}, s{R.sH}
    s_lshl_b32 s{R.sT}, s{R.sT}, 10
    s_add_u32 s{R.sOB}, s{R.sT}, {OF}
    s_add_u32 s{R.sT}, s{R.sOB}, {64*32*1024}
    buffer_store_dwordx4 {vr(R.TMP,4)}, v3, s[{R.SWS}:{R.SWS+3}], s{R.sT} offen {STF}
    """)
    pf.pt("att")
    if AMID: a(f"s_cmp_lg_u32 s{R.sRB}, 0\ns_cbranch_scc1 {name}_adone")
    a("s_waitcnt vmcnt(1)\ns_barrier")
    pf.pt("kvp")
    k2_apart(a,R,name)
    pf.pt("apart")
    a(f"buffer_store_dwordx4 {vr(R.TMP+4,4)}, v3, s[{R.SWS}:{R.SWS+3}], s{R.sOB} offen {STF}")
    if AMID: a.label(f"{name}_adone")
    a("s_waitcnt vmcnt(0)")
    DYN=cfg.get("p3dyn",False); MW=32768
    if DYN:
        a(f"v_mov_b32 v12, {MW}\nv_mov_b32 v13, 0\nds_write_b32 v12, v13\ns_waitcnt lgkmcnt(0)")
    pf.pt("odrain")
    a("s_barrier")
    pf.pt("b5")
    if P3V==1 and cfg.get("wo_late"):
        a(f"""
        s_cmp_lt_u32 s{sWV}, 4
        s_cbranch_scc1 {name}_wod
        v_lshrrev_b32 v4, 3, v1
        v_and_b32 v5, 7, v1
        v_bfe_u32 v6, v1, 4, 1
        v_lshlrev_b32 v6, 2, v6
        v_xor_b32 v6, v6, v5
        v_lshlrev_b32 v7, 10, v4
        v_lshl_add_u32 v7, v6, 4, v7
        s_cmp_eq_u32 s{sP3BR}, 0
        s_cselect_b32 s16, s{sAWO}, s{sBWO}
        s_cselect_b32 s17, s{sAWO+1}, s{sBWO+1}
        s_mov_b32 s18, 0x80000
        s_mov_b32 s19, 0x20000
        s_sub_u32 s29, s{sWV}, 4
        s_lshl_b32 s28, s{sP3NS}, 7
        s_lshl_b32 s{R.sT}, s29, 13
        s_add_u32 s28, s28, s{R.sT}
        s_lshl_b32 s29, s29, 10
        """)
        for u in range(16):
            a(f"s_add_u32 m0, s29, {WOL+u*4096}\ns_add_u32 s{R.sT}, s28, {u*32768}\nbuffer_load_dwordx4 v7, s[16:19], s{R.sT} offen lds")
        a.label(f"{name}_wod")
    if P3V==2:
        WOL0=32768
        a(f"""
        s_cmp_lt_u32 s{sWV}, 4
        s_cbranch_scc1 {name}_wod
        v_lshrrev_b32 v4, 3, v1
        v_and_b32 v5, 7, v1
        v_bfe_u32 v6, v1, 4, 1
        v_lshlrev_b32 v6, 2, v6
        v_xor_b32 v6, v6, v5
        v_lshlrev_b32 v7, 10, v4
        v_lshl_add_u32 v7, v6, 4, v7
        s_cmp_eq_u32 s{sP3BR}, 0
        s_cselect_b32 s16, s{sAWO}, s{sBWO}
        s_cselect_b32 s17, s{sAWO+1}, s{sBWO+1}
        s_mov_b32 s18, 0x80000
        s_mov_b32 s19, 0x20000
        s_sub_u32 s29, s{sWV}, 4
        s_lshl_b32 s28, s{sP3NS}, 8
        s_lshl_b32 s{R.sT}, s29, 13
        s_add_u32 s28, s28, s{R.sT}
        s_lshl_b32 s29, s29, 10
        """)
        for u in range(16):
            a(f"s_add_u32 m0, s29, {WOL0+u*4096}\ns_add_u32 s{R.sT}, s28, {u*32768}\nbuffer_load_dwordx4 v7, s[16:19], s{R.sT} offen lds")
        a.label(f"{name}_wod")
    a(f"""
    s_cmp_lg_u32 s{sWV}, 0
    s_cbranch_scc1 {name}_nf2
    s_mul_i32 s{R.sT}, s{R.sRB}, {F2STR}
    s_lshl_b32 s{R.sT2}, s{R.sH}, 7
    s_add_u32 s{R.sT}, s{R.sT}, s{R.sT2}
    s_add_u32 s{R.sT}, s{R.sT}, {F2}
    v_mov_b32 v12, 0
    v_mov_b32 v13, s{sN}
    buffer_store_dword v13, v12, s[{R.SWS}:{R.SWS+3}], s{R.sT} offen sc1
    """)
    if not DYN:
        a(f"""
        s_lshr_b32 s{sFA}, s{sP3T}, {2 if P3V==2 else 1}
        s_mul_i32 s{sFA}, s{sFA}, {F2STR}
        s_add_u32 s{sFA}, s{sFA}, {F2}
        s_mov_b32 s{sNEED}, -1
        s_mov_b32 s{sNEED+1}, 0
        """)
        poll(a,"p3",R.SWS,sFA,sNEED,sNEED+1,12,2,sleep=cfg.get("sleep2",4))
        a.label(f"{name}_nf2")
        if P3V==2 or cfg.get("wo_late"): a("s_waitcnt vmcnt(0)")
        a("s_barrier")
        pf.pt("f2")
    else:
        a.label(f"{name}_nf2")
        lw=a.newlabel("wt"); ld=a.newlabel("wd")
        a(f"""
        s_cmp_lg_u32 s{sWV}, 4
        s_cbranch_scc1 {ld}_x
        s_lshr_b32 s{sFA}, s{sP3T}, 1
        s_mul_i32 s{sFA}, s{sFA}, {F2STR}
        s_add_u32 s{sFA}, s{sFA}, {F2}
        s_mov_b32 s{sCNT2}, 0
        v_mov_b32 v14, {MW}
        s_mov_b32 exec_lo, -1
        s_mov_b32 exec_hi, 0
        {lw}:
        buffer_load_dword v12, v2, s[{R.SWS}:{R.SWS+3}], s{sFA} offen sc1
        s_waitcnt vmcnt(0)
        v_cmp_eq_u32 vcc, s{sN}, v12
        s_add_u32 s{sCNT2}, s{sCNT2}, 1
        s_cmp_lt_u32 s{sCNT2}, 30000
        s_cselect_b32 s{R.sT}, vcc_lo, -1
        v_mov_b32 v13, s{R.sT}
        ds_write_b32 v14, v13
        s_cmp_eq_u32 s{R.sT}, -1
        s_cbranch_scc1 {ld}
        s_sleep {cfg.get("sleep2",1)}
        s_branch {lw}
        {ld}:
        s_waitcnt lgkmcnt(0)
        s_mov_b64 exec, -1
        {ld}_x:
        """)
    if pf.on and cfg.get("pwave",0)>=4:
        pf0.flush(len(PTS),4,2,wave=cfg["pwave"])
    if P3V==2:
        gen_p3v2(a,name,cfg,R,pf,pf0,PTS,OSTF,HLD)
        return dict(name=name, grid=256, block=512, lds=163840, vgpr=248, sgpr=102)
    if cfg.get("nonce_early"):
        a(f"""
        s_cmp_lg_u32 s2, 0
        s_cbranch_scc1 {name}_nn0
        s_cmp_lg_u32 s{sWV}, 4
        s_cbranch_scc1 {name}_nn0
        s_mov_b32 s{R.sT}, {NONCE}
        v_mov_b32 v12, 0
        v_mov_b32 v13, s{sN}
        buffer_store_dword v13, v12, s[{R.SWS}:{R.SWS+3}], s{R.sT} offen sc1
        {name}_nn0:
        """)
    a(f"s_cmp_ge_u32 s{sWV}, 4\ns_cbranch_scc1 {name}_end")
    SOUT=16; sTB=27; sOB=28
    a(f"""
    s_lshl_b32 s{sTB}, s{sP3T}, 2
    s_add_u32 s{sTB}, s{sTB}, s{sWV}
    s_lshl_b32 s{sT}, s{sP3BR}, 6
    s_add_u32 s{sT}, s{sT}, s{sTB}
    s_lshl_b32 s{sOB}, s{sT}, 15
    s_add_u32 s{sOB}, s{sOB}, {OF}
    """)
    if DYN:
        OFR=64; ACC3=32; WFR=[8,16]; vWA3=5; GS=4; NG=8; LA=cfg.get("p3_la",2)
        sRDY=40; sDONE=41; sH0=[44+i for i in range(NG)]; vWS=[[26,27],[28,29]]
        a(f"""
        s_mov_b32 s{SOUT}, s{sOUT}
        s_mov_b32 s{SOUT+1}, s{sOUT+1}
        s_mov_b32 s{SOUT+2}, 0x400000
        s_mov_b32 s{SOUT+3}, 0x20000
        v_bfe_u32 v6, v1, 2, 2
        v_lshrrev_b32 v7, 5, v1
        v_lshl_add_u32 v6, v7, 2, v6
        v_lshlrev_b32 v6, 7, v6
        v_and_b32 v7, 1, v1
        v_lshlrev_b32 v7, 1, v7
        v_bfe_u32 v24, v1, 4, 1
        v_or_b32 v7, v7, v24
        v_bfe_u32 v24, v1, 3, 1
        v_lshlrev_b32 v24, 2, v24
        v_xor_b32 v7, v7, v24
        v_lshl_add_u32 v6, v7, 4, v6
        v_bfe_u32 v24, v1, 1, 1
        v_lshl_add_u32 v{vWA3}, v24, 3, v6
        v_xor_b32 v{vWA3+1}, 64, v{vWA3}
        v_add_u32 v{vWA3}, {WOL}, v{vWA3}
        v_add_u32 v{vWA3+1}, {WOL}, v{vWA3+1}
        v_mov_b32 v30, {MW}
        s_mov_b32 s{sRDY}, 0
        s_mov_b32 s{sDONE}, 0
        """)
        def pick(it):
            L=a.newlabel("pk"); G=a.newlabel("pg")
            a(f"""
            s_mov_b32 s{sCNT2}, 0
            {L}:
            s_andn2_b32 s42, s{sRDY}, s{sDONE}
            s_cbranch_scc1 {G}
            ds_read_b32 v31, v30
            s_waitcnt lgkmcnt(0)
            v_readfirstlane_b32 s42, v31
            s_nop 2
            s_add_u32 s{sCNT2}, s{sCNT2}, 1
            s_cmp_lt_u32 s{sCNT2}, 400000
            s_cselect_b32 s42, s42, -1
            s_lshr_b32 s43, s42, 1
            s_and_b32 s42, s42, s43
            s_lshr_b32 s43, s42, 2
            s_and_b32 s42, s42, s43
            s_and_b32 s{sRDY}, s42, 0x11111111
            s_branch {L}
            {G}:
            s_ff1_i32_b32 s{sH0[it]}, s42
            s_lshl_b32 s43, 1, s{sH0[it]}
            s_or_b32 s{sDONE}, s{sDONE}, s43
            s_lshl_b32 s43, s{sH0[it]}, 10
            s_add_u32 s43, s43, s{sOB}
            """)
            for j in range(GS):
                a(f"buffer_load_dwordx4 {vr(OFR+4*(GS*it+j),4)}, v3, s[{R.SWS}:{R.SWS+3}], s43 offen offset:{j*1024} {HLD}")
        def waddr(it):
            a(f"s_lshl_b32 s43, s{sH0[it]}, 11")
            for nt in range(2): a(f"v_add_u32 v{vWS[it&1][nt]}, s43, v{vWA3+nt}")
        def rdw(s_,it,j):
            for nt in range(2):
                for t in range(2):
                    a(f"ds_read_b64_tr_b16 {vr(WFR[s_]+4*nt+2*t,2)}, v{vWS[it&1][nt]} offset:{j*2048+t*1024}")
        for it in range(LA): pick(it)
        pf.pt("f2")
        waddr(0)
        rdw(0,0,0)
        n=0
        for it in range(NG):
            if it+1<NG: waddr(it+1)
            later=min(NG,it+LA)-(it+1)
            for j in range(GS):
                s_=n&1
                nxt = (it,j+1) if j+1<GS else ((it+1,0) if it+1<NG else None)
                if nxt: rdw(s_^1,nxt[0],nxt[1])
                a(f"s_waitcnt vmcnt({(GS-1-j)+GS*later}) lgkmcnt({4 if nxt else 0})")
                for nt in range(2):
                    c = "0" if n==0 else vr(ACC3+16*nt,16)
                    a(f"v_mfma_f32_32x32x16_bf16 {vr(ACC3+16*nt,16)}, {vr(WFR[s_]+4*nt,4)}, {vr(OFR+4*(GS*it+j),4)}, {c}")
                if n==0: pf.pt("p3b0")
                n+=1
            if it+LA<NG: pick(it+LA)
    else:
        OFR=64; ACC3=32; WFR=[8,16]; vWA3=5
        DEPTH=cfg.get("p3_depth",10)
        if cfg.get("p3rot",0): a(f"s_mul_i32 s29, s{sP3NS}, {cfg['p3rot']}")
        def oload(h):
            if cfg.get("p3rot",0):
                a(f"s_add_u32 s{sT2}, s29, {h}\ns_and_b32 s{sT2}, s{sT2}, 31\ns_lshl_b32 s{sT2}, s{sT2}, 10\ns_add_u32 s{sT2}, s{sT2}, s{sOB}\nbuffer_load_dwordx4 {vr(OFR+4*h,4)}, v3, s[{R.SWS}:{R.SWS+3}], s{sT2} offen {HLD}")
            else:
                a(f"s_add_u32 s{sT2}, s{sOB}, {h*1024}\nbuffer_load_dwordx4 {vr(OFR+4*h,4)}, v3, s[{R.SWS}:{R.SWS+3}], s{sT2} offen {HLD}")
        for h in range(DEPTH): oload(h)
        a(f"""
        s_mov_b32 s{SOUT}, s{sOUT}
        s_mov_b32 s{SOUT+1}, s{sOUT+1}
        s_mov_b32 s{SOUT+2}, 0x400000
        s_mov_b32 s{SOUT+3}, 0x20000
        v_bfe_u32 v6, v1, 2, 2
        v_lshrrev_b32 v7, 5, v1
        v_lshl_add_u32 v6, v7, 2, v6
        v_lshlrev_b32 v6, 7, v6
        v_and_b32 v7, 1, v1
        v_lshlrev_b32 v7, 1, v7
        v_bfe_u32 v24, v1, 4, 1
        v_or_b32 v7, v7, v24
        v_bfe_u32 v24, v1, 3, 1
        v_lshlrev_b32 v24, 2, v24
        v_xor_b32 v7, v7, v24
        v_lshl_add_u32 v6, v7, 4, v6
        v_bfe_u32 v24, v1, 1, 1
        v_lshl_add_u32 v{vWA3}, v24, 3, v6
        v_xor_b32 v{vWA3+1}, 64, v{vWA3}
        v_add_u32 v{vWA3}, {WOL}, v{vWA3}
        v_add_u32 v{vWA3+1}, {WOL}, v{vWA3+1}
        """)
        def reads3(s,h):
            L=[]
            for nt in range(2):
                for t in range(2):
                    L.append(f"ds_read_b64_tr_b16 {vr(WFR[s]+4*nt+2*t,2)}, v{vWA3+nt} offset:{h*2048+t*1024}")
            return L
        for l in reads3(0,0): a(l)
        for h in range(32):
            s=h&1
            if h==1: pf.pt("p3b0")
            nxt=reads3(s^1,h+1) if h<31 else []
            for l in nxt: a(l)
            issued=min(32,h+DEPTH)
            a(f"s_waitcnt vmcnt({issued-h-1}) lgkmcnt({len(nxt)})")
            for nt in range(2):
                c = "0" if h==0 else vr(ACC3+16*nt,16)
                a(f"v_mfma_f32_32x32x16_bf16 {vr(ACC3+16*nt,16)}, {vr(WFR[s]+4*nt,4)}, {vr(OFR+4*h,4)}, {c}")
            if h+DEPTH<32: oload(h+DEPTH)
    pf.pt("p3loop")
    a(f"""
    s_lshl_b32 s{sT}, s{sTB}, 16
    s_lshl_b32 s{sT2}, s{sP3BR}, 10
    s_add_u32 s{sT}, s{sT}, s{sT2}
    s_lshl_b32 s{sT2}, s{sP3NS}, 7
    s_add_u32 s{sT}, s{sT}, s{sT2}
    v_and_b32 v6, 31, v1
    v_lshlrev_b32 v6, 11, v6
    v_lshrrev_b32 v7, 5, v1
    v_lshl_add_u32 v6, v7, 5, v6
    s_nop 7
    """)
    if cfg.get("outT"):
        a(f"""
        s_lshl_b32 s{sT2}, s{sWV}, 12
        v_and_b32 v8, 31, v1
        v_lshlrev_b32 v8, 7, v8                    ; token*128
        v_lshrrev_b32 v9, 5, v1
        v_lshl_add_u32 v8, v9, 5, v8               ; + hf*32
        v_and_b32 v9, 7, v1
        v_lshlrev_b32 v9, 4, v9
        v_add_u32 v8, s{sT2}, v8
        """)
        for nt in range(2):
            b=ACC3+16*nt; T=16+8*nt
            for i in range(8): a(f"v_cvt_pk_bf16_f32 v{T+i}, v{b+2*i}, v{b+2*i+1}")
        for nt in range(2):
            for u in range(2):
                a(f"v_add_u32 v10, {nt*64+u*16}, v8\nv_xor_b32 v10, v10, v9\nds_write_b128 v10, {vr(16+8*nt+4*u,4)}")
        a(f"""
        v_lshrrev_b32 v11, 3, v1
        v_and_b32 v12, 7, v1                       ; chunk
        v_xor_b32 v13, v12, v11
        v_lshlrev_b32 v13, 4, v13
        v_lshl_add_u32 v13, v11, 7, v13
        v_add_u32 v13, s{sT2}, v13
        v_lshlrev_b32 v14, 11, v11
        v_lshl_add_u32 v14, v12, 4, v14
        s_waitcnt lgkmcnt(0)
        """)
        for i in range(4): a(f"ds_read_b128 {vr(32+4*i,4)}, v13 offset:{i*1024}")
        for i in range(4):
            a(f"s_waitcnt lgkmcnt({3-i})\ns_add_u32 s{sT2}, s{sT}, {i*8*2048}\nbuffer_store_dwordx4 {vr(32+4*i,4)}, v14, s[{SOUT}:{SOUT+3}], s{sT2} offen {OSTF}")
    else:
      for nt in range(2):
        b=ACC3+16*nt; T=8+8*nt
        for i in range(8): a(f"v_cvt_pk_bf16_f32 v{T+i}, v{b+2*i}, v{b+2*i+1}")
        a(f"buffer_store_dwordx4 {vr(T,4)}, v6, s[{SOUT}:{SOUT+3}], s{sT} offen offset:{nt*64} {OSTF}")
        a(f"buffer_store_dwordx4 {vr(T+4,4)}, v6, s[{SOUT}:{SOUT+3}], s{sT} offen offset:{nt*64+16} {OSTF}")
    if not cfg.get("nonce_early"):
        a(f"""
        s_cmp_lg_u32 s2, 0
        s_cbranch_scc1 {name}_nn
        s_cmp_lg_u32 s{sWV}, 0
        s_cbranch_scc1 {name}_nn
        s_mov_b32 s{sT}, {NONCE}
        v_mov_b32 v12, 0
        v_mov_b32 v13, s{sN}
        buffer_store_dword v13, v12, s[{R.SWS}:{R.SWS+3}], s{sT} offen sc1
        {name}_nn:
        """)
    if pf.on:
        a("s_waitcnt vmcnt(0)"); pf.pt("end"); pf0.flush(len(PTS),4,2,wave=cfg.get("pwave",0) if cfg.get("pwave",0)<4 else 99)
    a.label(f"{name}_end")
    a("s_endpgm")
    if cfg.get("slow_ool"): a.lines+=R.deferred
    a.label(f"{name}_last")
    a("s_endpgm")
    return dict(name=name, grid=256, block=512, lds=163840, vgpr=248, sgpr=104 if False else 102)
```

```python
from asmlib import *
from k1 import QF,KF,VF,PQ,OF,KVP,WS_USED
NEGBIG=-1.0e30

def diag_mask(r):
    m=0
    for l in range(64):
        b=8*(r>>2)+4*(l>>5)+(r&3)
        if b<=(l&31): m|=1<<l
    return m

KL=0; VL=16384; ONES=32768; KVL=ONES+9216; RED=KVL+17408; K2_LDS=RED+1088+192

class K2R:
    KL=KL; VL=VL; ONES=ONES; KVL=KVL; RED=RED; NP=16; KVPB=KVP
    SWS=8
    sWAVE=20; sRB=21; sH=22; sQB=23; sT=24; sT2=25; sTMIN=26; sBASE=27; sOB=30
    MASK=32
    vLANE=1; vL16=3; vQ=4; vPQ=8; PM=16; vKA=24; vVA=25; vKVA=26; vRA=27; MX=28
    KFr=32
    SA,SB,SC,SD=68,84,100,116
    M=132; NEG=148; O=164; P=180; P2=188; VA=196; VB=204; OA=212; TMP=228

def k2_setup_consts(a, R):
    sT,sT2=R.sT,R.sT2
    a(f"""
    v_mov_b32 v12, 0x3f803f80
    v_mov_b32 v13, 0x3f803f80
    v_mov_b32 v14, 0x3f803f80
    v_mov_b32 v15, 0x3f803f80
    s_lshl_b32 s{sT}, s{R.sWAVE}, 10
    s_add_u32 s{sT}, s{sT}, {R.ONES}
    v_add_u32 v16, s{sT}, v{R.vL16}
    ds_write_b128 v16, v[12:15]
    v_add_u32 v16, {R.ONES+8192}, v{R.vL16}
    ds_write_b128 v16, v[12:15]
    """)
    for r in range(16):
        m=diag_mask(r)
        a(f"s_mov_b32 s{R.MASK+2*r}, {m&0xffffffff:#x}\ns_mov_b32 s{R.MASK+2*r+1}, {m>>32:#x}")
    a("v_mov_b32 v24, 0xffff\nv_mov_b32 v25, 0xffff0000")
    for i in range(8):
        a(f"v_cndmask_b32_e64 v{R.PM+i}, 0, v24, s[{R.MASK+4*i}:{R.MASK+4*i+1}]")
        a(f"v_cndmask_b32_e64 v26, 0, v25, s[{R.MASK+4*i+2}:{R.MASK+4*i+3}]")
        a(f"v_or_b32 v{R.PM+i}, v{R.PM+i}, v26")
    a(f"""
    s_lshl_b32 s{sT}, s{R.sWAVE}, 10
    s_add_u32 s{sT2}, s{sT}, {R.KL}
    v_add_u32 v{R.vKA}, s{sT2}, v{R.vL16}
    v_and_b32 v28, 31, v{R.vLANE}             ; idx
    v_lshrrev_b32 v29, 5, v{R.vLANE}          ; hf
    v_lshlrev_b32 v30, 4, v28
    v_lshl_add_u32 v30, v29, 8, v30
    s_add_u32 s{sT2}, s{sT}, {R.VL}
    v_add_u32 v30, s{sT2}, v30
    v_subrev_u32 v31, 20, v28
    v_cmp_gt_u32 vcc, 8, v31
    v_mov_b32 v31, {R.ONES}
    v_mov_b32 v12, {R.ONES+64}
    v_cndmask_b32_e64 v31, v31, v12, vcc
    v_cmp_gt_u32 vcc, 16, v28
    s_nop 1
    v_cndmask_b32_e64 v{R.vVA}, v31, v30, vcc
    v_lshlrev_b32 v30, 5, v28
    v_lshl_add_u32 v30, v29, 9, v30
    v_lshlrev_b32 v31, 5, v29
    v_add_u32 v31, 1024, v31
    v_cndmask_b32_e64 v{R.vKVA}, v31, v30, vcc
    v_add_u32 v{R.vKVA}, {R.RED}, v{R.vKVA}
    s_sub_u32 s{R.sTMIN}, 8, s{R.sWAVE}
    s_cmp_eq_u32 s{R.sRB}, 0
    s_cselect_b32 s{R.sTMIN}, s{R.sTMIN}, 1
    """)

def k2_setup_regs(a, R):
    sT,sT2=R.sT,R.sT2
    for r in range(16):
        m=diag_mask(r)
        a(f"s_mov_b32 s{R.MASK+2*r}, {m&0xffffffff:#x}\ns_mov_b32 s{R.MASK+2*r+1}, {m>>32:#x}")
    a("v_mov_b32 v24, 0xffff\nv_mov_b32 v25, 0xffff0000")
    for i in range(8):
        a(f"v_cndmask_b32_e64 v{R.PM+i}, 0, v24, s[{R.MASK+4*i}:{R.MASK+4*i+1}]")
        a(f"v_cndmask_b32_e64 v26, 0, v25, s[{R.MASK+4*i+2}:{R.MASK+4*i+3}]")
        a(f"v_or_b32 v{R.PM+i}, v{R.PM+i}, v26")
    a(f"""
    v_lshlrev_b32 v13, 4, v{R.vLANE}
    s_lshl_b32 s{sT}, s{R.sWAVE}, 10
    s_add_u32 s{sT2}, s{sT}, {R.KL}
    v_add_u32 v{R.vKA}, s{sT2}, v13
    v_and_b32 v28, 31, v{R.vLANE}             ; idx
    v_lshrrev_b32 v29, 5, v{R.vLANE}          ; hf
    v_lshlrev_b32 v30, 4, v28
    v_lshl_add_u32 v30, v29, 8, v30
    s_add_u32 s{sT2}, s{sT}, {R.VL}
    v_add_u32 v30, s{sT2}, v30
    v_subrev_u32 v14, 20, v28
    v_cmp_gt_u32 vcc, 8, v14
    v_mov_b32 v14, {R.ONES}
    v_mov_b32 v12, {R.ONES+64}
    v_cndmask_b32_e64 v14, v14, v12, vcc
    v_cmp_gt_u32 vcc, 16, v28
    s_nop 1
    v_cndmask_b32_e64 v{R.vVA}, v14, v30, vcc
    v_lshlrev_b32 v30, 5, v28
    v_lshl_add_u32 v30, v29, 9, v30
    v_lshlrev_b32 v14, 5, v29
    v_add_u32 v14, 1024, v14
    v_cndmask_b32_e64 v{R.vKVA}, v14, v30, vcc
    v_add_u32 v{R.vKVA}, {R.RED}, v{R.vKVA}
    """)

def k2_setup_late(a, R):
    sT=R.sT
    a(f"""
    v_mov_b32 v12, 0x3f803f80
    v_mov_b32 v13, 0x3f803f80
    v_mov_b32 v14, 0x3f803f80
    v_mov_b32 v15, 0x3f803f80
    s_lshl_b32 s{sT}, s{R.sWAVE}, 10
    s_add_u32 s{sT}, s{sT}, {R.ONES}
    v_add_u32 v28, s{sT}, v{R.vL16}
    ds_write_b128 v28, v[12:15]
    v_add_u32 v29, {R.ONES+8192}, v{R.vL16}
    ds_write_b128 v29, v[12:15]
    s_sub_u32 s{R.sTMIN}, 8, s{R.sWAVE}
    s_cmp_eq_u32 s{R.sRB}, 0
    s_cselect_b32 s{R.sTMIN}, s{R.sTMIN}, 1
    """)

def k2_load_b(a, R, LDF):
    sT,sT2,SWS=R.sT,R.sT2,R.SWS
    a(f"""
    s_lshl_b32 s{R.sBASE}, s{R.sH}, 16            ; h*65536
    s_lshl_b32 s{sT}, s{R.sQB}, 10
    s_add_u32 s{sT}, s{sT}, s{R.sBASE}
    s_add_u32 s{sT2}, s{sT}, {QF}
    buffer_load_dwordx4 {vr(R.vQ,4)}, v{R.vL16}, s[{SWS}:{SWS+3}], s{sT2} offen {LDF}
    """)
    for u in range(2):
        a(f"""
        s_lshl_b32 s{sT}, s{R.sWAVE}, 1
        s_add_u32 s{sT}, s{sT}, {u}              ; slot
        s_lshl_b32 s{sT2}, s{R.sRB}, 3
        s_add_u32 s{sT2}, s{sT2}, s{sT}
        s_sub_i32 s{sT2}, s{sT2}, 8
        s_max_i32 s{sT2}, s{sT2}, 0              ; tile
        s_lshl_b32 s{sT2}, s{sT2}, 10
        s_add_u32 s{sT2}, s{sT2}, s{R.sBASE}
        s_lshl_b32 s{sT}, s{sT}, 10
        s_add_u32 m0, s{sT}, {R.KL}
        s_add_u32 s28, s{sT2}, {KF}
        buffer_load_dwordx4 v{R.vL16}, s[{SWS}:{SWS+3}], s28 offen {LDF} lds
        s_add_u32 m0, s{sT}, {R.VL}
        s_add_u32 s28, s{sT2}, {VF}
        buffer_load_dwordx4 v{R.vL16}, s[{SWS}:{SWS+3}], s28 offen {LDF} lds
        """)

def k2_load_b2(a, R, LDF):
    sT,sT2,SWS=R.sT,R.sT2,R.SWS
    a(f"""
    s_lshl_b32 s{R.sBASE}, s{R.sH}, 16            ; h*65536
    s_lshl_b32 s{sT}, s{R.sQB}, 10
    s_add_u32 s{sT}, s{sT}, s{R.sBASE}
    s_add_u32 s{sT2}, s{sT}, {QF}
    buffer_load_dwordx4 {vr(R.vQ,4)}, v{R.vL16}, s[{SWS}:{SWS+3}], s{sT2} offen {LDF}
    """)
    for (L,G) in ((R.KL,KF),(R.VL,VF)):
        for u in range(2):
            a(f"""
            s_lshl_b32 s{sT}, s{R.sWAVE}, 1
            s_add_u32 s{sT}, s{sT}, {u}              ; slot
            s_lshl_b32 s{sT2}, s{R.sRB}, 3
            s_add_u32 s{sT2}, s{sT2}, s{sT}
            s_sub_i32 s{sT2}, s{sT2}, 8
            s_max_i32 s{sT2}, s{sT2}, 0              ; tile
            s_lshl_b32 s{sT2}, s{sT2}, 10
            s_add_u32 s{sT2}, s{sT2}, s{R.sBASE}
            s_lshl_b32 s{sT}, s{sT}, 10
            s_add_u32 m0, s{sT}, {L}
            s_add_u32 s28, s{sT2}, {G}
            buffer_load_dwordx4 v{R.vL16}, s[{SWS}:{SWS+3}], s28 offen {LDF} lds
            """)

def k2_load_a(a, R, LDF, name, pq=True):
    sT,sT2,SWS=R.sT,R.sT2,R.SWS
    a(f"""
    s_mul_i32 s28, s{R.sH}, 17408
    s_add_u32 s28, s28, {KVP}
    s_cmp_lg_u32 s{R.sWAVE}, 0
    s_cbranch_scc1 {name}_nokv16
    s_mov_b32 m0, {R.KVL+16*1024}
    s_add_u32 s{sT}, s28, {16*1024}
    buffer_load_dwordx4 v{R.vL16}, s[{SWS}:{SWS+3}], s{sT} offen {LDF} lds
    {name}_nokv16:
    s_lshl_b32 s{sT2}, s{R.sWAVE}, 10
    s_add_u32 m0, s{sT2}, {R.KVL}
    s_add_u32 s{sT}, s28, s{sT2}
    buffer_load_dwordx4 v{R.vL16}, s[{SWS}:{SWS+3}], s{sT} offen {LDF} lds
    s_add_u32 m0, s{sT2}, {R.KVL+8192}
    s_add_u32 s{sT}, s{sT}, 8192
    buffer_load_dwordx4 v{R.vL16}, s[{SWS}:{SWS+3}], s{sT} offen {LDF} lds
    """)
    if pq: a(f"""
    s_lshl_b32 s{sT}, s{R.sH}, 16
    s_lshl_b32 s{sT2}, s{R.sQB}, 10
    s_add_u32 s{sT}, s{sT}, s{sT2}
    s_add_u32 s{sT}, s{sT}, {PQ}
    buffer_load_dwordx4 {vr(R.vPQ,4)}, v{R.vL16}, s[{SWS}:{SWS+3}], s{sT} offen {LDF}
    """)

def k2_attn(a, R, name, cfg, pf=None, hooks=None):
    hooks=hooks or {}
    SA,SB,SC,SD,M,NEG,O,P,P2,VA,VB,TMP=R.SA,R.SB,R.SC,R.SD,R.M,R.NEG,R.O,R.P,R.P2,R.VA,R.VB,R.TMP
    vQ,vKA,vVA,MASK,PM,MX=R.vQ,R.vKA,R.vVA,R.MASK,R.PM,R.MX
    def kf(t): return R.KFr+4*t
    def mf(D,A_,B_,C): a(f"v_mfma_f32_32x32x16_bf16 {vr(D,16)}, {vr(A_,4)}, {vr(B_,4)}, {C if isinstance(C,str) else vr(C,16)}")
    def vreads(t,V):
        a(f"ds_read_b128 {vr(V,4)}, v{vVA} offset:{t*1024}")
        a(f"ds_read_b128 {vr(V+4,4)}, v{vVA} offset:{t*1024+512}")
    def chk(t,lab): a(f"s_cmp_gt_u32 s{R.sTMIN}, {t}\ns_cbranch_scc1 {lab}")
    def hook(k):
        if k in hooks: hooks[k]()
    FE=f"{name}_fend"; SLOW=f"{name}_slow"; EPI=f"{name}_epi"
    nomax=cfg.get("k2_nomax",True)
    if nomax:
        KA,KB,KC=kf(0),kf(1),kf(2)
        a(f"ds_read_b128 {vr(KA,4)}, v{vKA} offset:0")
        a(f"ds_read_b128 {vr(KB,4)}, v{vKA} offset:{8*1024}")
        a(f"ds_read_b128 {vr(KC,4)}, v{vKA} offset:{7*1024}")
        VL8=cfg.get("v_late",False)
        nv=0 if VL8 else 4
        if not VL8: vreads(8,VA); vreads(0,VB)
        l0=f"{name}_f0a"; l1=f"{name}_f0b"
        a(f"s_cmp_eq_u32 s{R.sRB}, 0\ns_cbranch_scc1 {l0}")
        a(f"s_waitcnt lgkmcnt({2+nv})")
        mf(SA,KA,vQ,"0")
        a(f"s_branch {l1}")
        a.label(l0)
        for r in range(16): a(f"v_mov_b32 v{SA+r}, {f2u(NEGBIG):#x}")
        a.label(l1)
        a(f"s_waitcnt lgkmcnt({1+nv})")
        mf(SB,KB,vQ,"0")
        a(f"s_waitcnt lgkmcnt({nv})")
        mf(SC,KC,vQ,"0")
        a(f"ds_read_b128 {vr(KA,4)}, v{vKA} offset:{6*1024}")
        if not VL8: hook("pre")
        a("s_nop 7\ns_nop 1")
        for r in range(16):
            a(f"v_cndmask_b32_e64 v{M+r}, v{SA+r}, v{SB+r}, s[{MASK+2*r}:{MASK+2*r+1}]")
        for r in range(16): a(f"v_exp_f32 v{M+r}, v{M+r}")
        if VL8:
            a("s_waitcnt vmcnt(0)\ns_barrier")
            vreads(8,VA); vreads(0,VB)
            hook("pre")
        else: a("s_nop 0")
        for i in range(8): a(f"v_cvt_pk_bf16_f32 v{P+i}, v{M+2*i}, v{M+2*i+1}")
        for i in range(8): a(f"v_and_b32 v{P2+i}, v{P+i}, v{PM+i}")
        for i in range(8): a(f"v_xor_b32 v{P+i}, v{P+i}, v{P2+i}")
        a(f"s_waitcnt lgkmcnt({0 if VL8 else 1})")
        mf(O,VA,P2,"0"); mf(O,VA+4,P2+4,O)
        lab=f"{name}_fskip0"
        a(f"s_cmp_eq_u32 s{R.sRB}, 0\ns_cbranch_scc1 {lab}")
        mf(O,VB,P,O); mf(O,VB+4,P+4,O)
        a.label(lab)
        hook("post0")
        bufs=[SC,SD]; Vb=[VA,VB]; Pb=[P2,P]; Kb=[KA,KB]
        if cfg.get("k2_sched",0)==0:
          for n,t in enumerate(range(7,0,-1)):
            S=bufs[n&1]; Sn=bufs[(n+1)&1]; V=Vb[n&1]; Pp=Pb[n&1]
            chk(t,FE)
            vreads(t,V)
            if t>1:
                a("s_waitcnt lgkmcnt(2)")
                mf(Sn,Kb[n&1],vQ,"0")
            if t>2: a(f"ds_read_b128 {vr(Kb[(n+1)&1],4)}, v{vKA} offset:{(t-2)*1024}")
            hook(("it",t))
            for r in range(16): a(f"v_exp_f32 v{S+r}, v{S+r}")
            a("s_nop 0")
            for i in range(8): a(f"v_cvt_pk_bf16_f32 v{Pp+i}, v{S+2*i}, v{S+2*i+1}")
            a(f"s_waitcnt lgkmcnt({1 if t>2 else 0})")
            mf(O,V,Pp,O); mf(O,V+4,Pp+4,O)
        else:
          FEP=f"{name}_fendp"
          pend=None
          for n,t in enumerate(range(7,0,-1)):
            S=bufs[n&1]; Sn=bufs[(n+1)&1]; V=Vb[n&1]; Pp=Pb[n&1]
            if pend is None: chk(t,FE)
            else: chk(t,f"{FEP}{n}")
            if t>1:
                a(f"s_waitcnt lgkmcnt({0 if pend is None else 2})")
                mf(Sn,Kb[n&1],vQ,"0")
            if t>2: a(f"ds_read_b128 {vr(Kb[(n+1)&1],4)}, v{vKA} offset:{(t-2)*1024}")
            hook(("it",t))
            for r in range(4): a(f"v_exp_f32 v{S+r}, v{S+r}")
            if pend is not None:
                a(f"s_waitcnt lgkmcnt({1 if t>2 else 0})")
                mf(O,pend[0],pend[1],O)
            for r in range(4,8): a(f"v_exp_f32 v{S+r}, v{S+r}")
            if pend is not None: mf(O,pend[0]+4,pend[1]+4,O)
            vreads(t,V)
            for r in range(8,16): a(f"v_exp_f32 v{S+r}, v{S+r}")
            a("s_nop 0")
            for i in range(8): a(f"v_cvt_pk_bf16_f32 v{Pp+i}, v{S+2*i}, v{S+2*i+1}")
            pend=(V,Pp)
          a("s_waitcnt lgkmcnt(0)")
          mf(O,pend[0],pend[1],O); mf(O,pend[0]+4,pend[1]+4,O)
          a(f"s_branch {FE}")
          for n in range(1,7):
            V=Vb[(n-1)&1]; Pp=Pb[(n-1)&1]
            a.label(f"{FEP}{n}")
            a("s_waitcnt lgkmcnt(0)\ns_nop 1")
            mf(O,V,Pp,O); mf(O,V+4,Pp+4,O)
            if n<6: a(f"s_branch {FE}")
        a.label(FE)
        a(f"""
        s_nop 15
        v_max3_f32 v28, |v{O}|, |v{O+1}|, |v{O+2}|
        v_max3_f32 v29, |v{O+3}|, |v{O+4}|, |v{O+5}|
        v_max3_f32 v28, v28, |v{O+6}|, |v{O+7}|
        v_max_f32 v28, v28, v29
        s_mov_b32 s28, {f2u(2.0**-30):#x}
        s_mov_b32 s29, {f2u(2.0**60):#x}
        v_cmp_nle_f32 vcc, s28, v{O+8}
        v_cmp_nge_f32 s[30:31], s29, v{O+8}
        s_or_b64 vcc, vcc, s[30:31]
        s_mov_b32 s28, {f2u(2.0**120):#x}
        v_cmp_nge_f32 s[30:31], s28, v28
        s_or_b64 vcc, vcc, s[30:31]
        s_nop 4
        s_cbranch_vccz {EPI}
        """)
    ool=cfg.get("slow_ool") and nomax
    if ool:
        a.lines[-2]=a.lines[-2].replace(f"s_cbranch_vccz {EPI}",f"s_cbranch_vccnz {SLOW}") if "s_cbranch_vccz" in a.lines[-2] else a.lines[-2]
        a.lines[-1]=a.lines[-1].replace(f"s_cbranch_vccz {EPI}",f"s_cbranch_vccnz {SLOW}") if "s_cbranch_vccz" in a.lines[-1] else a.lines[-1]
        mark=len(a.lines)
    a.label(SLOW)
    a("s_waitcnt lgkmcnt(0)")
    for t in (0,8,7,6,5,4,3,2,1):
        a(f"ds_read_b128 {vr(kf(t),4)}, v{vKA} offset:{t*1024}")
    a("s_waitcnt lgkmcnt(0)")
    l0=f"{name}_rb0a"; l1=f"{name}_rb0b"
    a(f"s_cmp_eq_u32 s{R.sRB}, 0\ns_cbranch_scc1 {l0}")
    mf(SA,kf(0),vQ,"0")
    a(f"s_branch {l1}")
    a.label(l0)
    for r in range(16): a(f"v_mov_b32 v{SA+r}, {f2u(NEGBIG):#x}")
    a.label(l1)
    mf(SB,kf(8),vQ,"0"); mf(SC,kf(7),vQ,"0"); mf(SD,kf(6),vQ,"0")
    a("s_nop 15")
    for r in range(16):
        a(f"v_cndmask_b32_e64 v{M+r}, v{SA+r}, v{SB+r}, s[{MASK+2*r}:{MASK+2*r+1}]")
    a(f"v_max3_f32 v{MX}, v{M}, v{M+1}, v{M+2}")
    for r in range(3,15,2): a(f"v_max3_f32 v{MX}, v{MX}, v{M+r}, v{M+r+1}")
    a(f"v_max_f32 v{MX}, v{MX}, v{M+15}")
    def maxtile(S):
        for r in range(0,16,2): a(f"v_max3_f32 v{MX}, v{MX}, v{S+r}, v{S+r+1}")
    P1E=f"{name}_p1end"
    chk(7,P1E)
    mf(SA,kf(5),vQ,"0"); mf(SB,kf(4),vQ,"0")
    maxtile(SC); chk(6,P1E); maxtile(SD); chk(5,P1E)
    mf(SC,kf(3),vQ,"0"); mf(SD,kf(2),vQ,"0")
    maxtile(SA); chk(4,P1E); maxtile(SB); chk(3,P1E)
    mf(SA,kf(1),vQ,"0")
    maxtile(SC); chk(2,P1E); maxtile(SD); chk(1,P1E)
    a("s_nop 1")
    maxtile(SA)
    a.label(P1E)
    a(f"""
    v_mov_b32 v29, v{MX}
    s_nop 1
    v_permlane32_swap_b32 v29, v{MX}
    s_nop 1
    v_max_f32 v{MX}, v{MX}, v29
    v_sub_f32 v{NEG}, 0, v{MX}
    """)
    for r in range(1,16): a(f"v_mov_b32 v{NEG+r}, v{NEG}")
    vreads(8,VA); vreads(0,VB)
    mf(SC,kf(7),vQ,NEG)
    for i in range(8): a(f"v_pk_add_f32 {vr(M+2*i,2)}, {vr(M+2*i,2)}, {vr(NEG,2)}")
    for r in range(16): a(f"v_exp_f32 v{M+r}, v{M+r}")
    a("s_nop 0")
    for i in range(8): a(f"v_cvt_pk_bf16_f32 v{P+i}, v{M+2*i}, v{M+2*i+1}")
    for i in range(8): a(f"v_and_b32 v{P2+i}, v{P+i}, v{PM+i}")
    for i in range(8): a(f"v_xor_b32 v{P+i}, v{P+i}, v{P2+i}")
    a("s_waitcnt lgkmcnt(0)")
    mf(O,VA,P2,"0"); mf(O,VA+4,P2+4,O)
    lab=f"{name}_skip0"
    a(f"s_cmp_eq_u32 s{R.sRB}, 0\ns_cbranch_scc1 {lab}")
    mf(O,VB,P,O); mf(O,VB+4,P+4,O)
    a.label(lab)
    P2E=f"{name}_p2end"
    bufs=[SC,SD]; Vb=[VA,VB]; Pb=[P,P2]
    for n,t in enumerate(range(7,0,-1)):
        S=bufs[n&1]; Sn=bufs[(n+1)&1]; V=Vb[n&1]; Pp=Pb[n&1]
        chk(t,P2E)
        vreads(t,V)
        if t>1: mf(Sn,kf(t-1),vQ,NEG)
        for r in range(16): a(f"v_exp_f32 v{S+r}, v{S+r}")
        a("s_nop 0")
        for i in range(8): a(f"v_cvt_pk_bf16_f32 v{Pp+i}, v{S+2*i}, v{S+2*i+1}")
        a("s_waitcnt lgkmcnt(0)")
        mf(O,V,Pp,O); mf(O,V+4,Pp+4,O)
    a.label(P2E)
    a("s_nop 15")
    if ool:
        a(f"s_branch {EPI}")
        R.deferred=a.lines[mark:]
        del a.lines[mark:]
    a.label(EPI)
    a(f"v_rcp_f32 v{O+8}, v{O+8}\ns_nop 0")
    for r in range(8): a(f"v_mul_f32 v{O+r}, v{O+r}, v{O+8}")
    for i in range(4): a(f"v_cvt_pk_bf16_f32 v{TMP+i}, v{O+2*i}, v{O+2*i+1}")

def k2_apart(a, R, name):
    OA,TMP=R.OA,R.TMP
    a(f"""
    v_lshlrev_b32 v{R.vRA}, 2, v0               ; tid*4
    v_cmp_gt_u32 vcc, 272, v0
    s_and_saveexec_b64 s[28:29], vcc
    s_cbranch_execz {name}_nored
    """)
    RT=32
    for p in range(12):
        a(f"ds_read_b32 v{RT+p}, v{R.vRA} offset:{R.KVL+p*1088}")
    for p in range(1,4):
        a(f"s_waitcnt lgkmcnt({11-p})")
        a(f"v_add_f32 v{RT}, v{RT}, v{RT+p}")
    for p in range(12,16):
        a(f"ds_read_b32 v{RT+p}, v{R.vRA} offset:{R.KVL+p*1088}")
    for p in range(4,16):
        a(f"s_waitcnt lgkmcnt({15-p})")
        a(f"v_add_f32 v{RT}, v{RT}, v{RT+p}")
    a(f"""
    ds_write_b32 v{R.vRA}, v{RT} offset:{R.RED}
    {name}_nored:
    s_mov_b64 exec, s[28:29]
    s_waitcnt lgkmcnt(0)
    s_barrier
    ds_read_b128 {vr(TMP+8,4)}, v{R.vKVA}
    ds_read_b128 {vr(TMP+12,4)}, v{R.vKVA} offset:16
    s_waitcnt lgkmcnt(0)
    """)
    for i in range(4): a(f"v_cvt_pk_bf16_f32 v{TMP+8+i}, v{TMP+8+2*i}, v{TMP+8+2*i+1}")
    a("s_nop 1")
    a(f"v_mfma_f32_32x32x16_bf16 {vr(OA,16)}, {vr(TMP+8,4)}, {vr(R.vPQ,4)}, 0")
    a(f"""
    s_nop 15
    v_add_f32 v{OA+8}, {f2u(1e-6):#x}, v{OA+8}
    s_nop 0
    v_rcp_f32 v{OA+8}, v{OA+8}
    s_nop 0
    """)
    for r in range(8): a(f"v_mul_f32 v{OA+r}, v{OA+r}, v{OA+8}")
    for i in range(4): a(f"v_cvt_pk_bf16_f32 v{TMP+4+i}, v{OA+2*i}, v{OA+2*i+1}")

def gen_k2(a, name, cfg):
    LDF=cfg.get("k2_ldflags","")
    STF=cfg.get("k2_stflags","")
    R=K2R
    a.raw(f".globl {name}\n.p2align 8\n.type {name},@function\n{name}:")
    SWS=R.SWS
    pf=Prof(a,cfg,1,64,R.sWAVE,4,5)
    pf.stamp(0)
    a(f"""
    s_cmp_ge_u32 s2, 256
    s_cbranch_scc1 {name}_end
    s_load_dwordx2 s[4:5], s[0:1], 64
    v_lshrrev_b32 v2, 6, v0
    v_and_b32 v1, 63, v0
    """)
    if cfg.get("k2_map",1)==0:
        a(f"s_and_b32 s{R.sRB}, s2, 7\nv_readfirstlane_b32 s{R.sWAVE}, v2\ns_lshr_b32 s{R.sH}, s2, 3")
    else:
        a(f"""
        s_bfe_u32 s{R.sRB}, s2, 0x30003
        v_readfirstlane_b32 s{R.sWAVE}, v2
        s_and_b32 s{R.sH}, s2, 7
        s_lshr_b32 s{R.sT}, s2, 6
        s_lshl_b32 s{R.sT}, s{R.sT}, 3
        s_add_u32 s{R.sH}, s{R.sH}, s{R.sT}
        """)
    a(f"""
    v_lshlrev_b32 v3, 4, v1                   ; lane*16
    s_lshl_b32 s{R.sQB}, s{R.sRB}, 3
    s_add_u32 s{R.sQB}, s{R.sQB}, s{R.sWAVE}        ; qb
    s_waitcnt lgkmcnt(0)
    s_mov_b32 s{SWS}, s4
    s_mov_b32 s{SWS+1}, s5
    s_mov_b32 s{SWS+2}, {WS_USED}
    s_mov_b32 s{SWS+3}, 0x20000
    """)
    pf.stamp(6)
    k2_load_b(a,R,LDF)
    k2_load_a(a,R,LDF,name)
    pf.stamp(7)
    k2_setup_consts(a,R)
    pf.stamp(8)
    a("s_waitcnt vmcnt(3) lgkmcnt(0)\ns_barrier")
    pf.stamp(1)
    k2_attn(a,R,name,cfg,pf)
    a(f"""
    s_lshl_b32 s{R.sT}, s{R.sQB}, 5
    s_add_u32 s{R.sT}, s{R.sT}, s{R.sH}
    s_lshl_b32 s{R.sT}, s{R.sT}, 10
    s_add_u32 s{R.sOB}, s{R.sT}, {OF}
    s_add_u32 s{R.sT}, s{R.sOB}, {64*32*1024}
    buffer_store_dwordx4 {vr(R.TMP,4)}, v3, s[{SWS}:{SWS+3}], s{R.sT} offen {STF}
    """)
    pf.stamp(2)
    a("s_waitcnt vmcnt(1)\ns_barrier")
    k2_apart(a,R,name)
    a(f"buffer_store_dwordx4 {vr(R.TMP+4,4)}, v3, s[{SWS}:{SWS+3}], s{R.sOB} offen {STF}")
    if pf.on:
        pf.stamp(3); pf.stamp(4); a("s_waitcnt vmcnt(0)"); pf.stamp(5); pf.flush(9,84,30,wave=7)
    a.label(f"{name}_end")
    a("s_endpgm")
    return dict(name=name, grid=256, block=512, lds=K2_LDS, vgpr=248, sgpr=92 if cfg.get('prof') else 72)
```

```python
from asmlib import *
import math
from k1 import QF,KF,VF,PQ,OF,KVP,WS_USED,LOG2E,CSCALE
import k2
from k2 import K2R,k2_load_b2,k2_setup_regs,k2_setup_late,k2_setup_consts,k2_load_b,k2_load_a,k2_attn,k2_apart

FLG=KVP+0x90000
FL=128
FSTR=16*FL+256
F1=FLG; F2=FLG+16*FSTR; F2STR=32*FL+256; NONCE=F2+8*F2STR
FP=NONCE+256; FPSTR=32*FL+256
WOL=98304
NL=163840-16

sAWO=64; sBWO=66; sOUT=68; sDBG=70; sWSP=72; sN=74; sWV=75; sP3T=76; sP3NS=77; sP3BR=78; sCNT2=79

def poll(a, name, srd, soff, need_lo, need_hi, vtmp, voff, bound=30000, sleep=4):
    L=a.newlabel(name); D=a.newlabel(name+"d")
    a(f"""
    s_mov_b32 s{sCNT2}, 0
    s_mov_b64 exec, s[{need_lo}:{need_hi}]
    {L}:
    buffer_load_dword v{vtmp}, v{voff}, s[{srd}:{srd+3}], s{soff} offen sc1
    s_waitcnt vmcnt(0)
    v_cmp_eq_u32 vcc, s{sN}, v{vtmp}
    s_cmp_eq_u64 vcc, s[{need_lo}:{need_hi}]
    s_cbranch_scc1 {D}
    s_add_u32 s{sCNT2}, s{sCNT2}, 1
    s_cmp_lt_u32 s{sCNT2}, {bound}
    s_cbranch_scc0 {D}
    s_sleep {sleep}
    s_branch {L}
    {D}:
    s_mov_b64 exec, -1
    """)

def gen_p3v2(a,name,cfg,R,pf,pf0,PTS,OSTF,HLD):
    sT=R.sT; sT2=R.sT2
    WOL0=32768; WOL1=98304
    a(f"s_cmp_ge_u32 s{sWV}, 4\ns_cbranch_scc1 {name}_p3l")
    SOUT=16; sTT=26; sNH=27
    ACC3=32; OS=[64,80]; WSET=[96,104,112]
    vWA3=5; vO=7
    a(f"""
    s_and_b32 s{sTT}, s{sWV}, 1
    s_lshr_b32 s{sNH}, s{sWV}, 1
    s_mov_b32 s{SOUT}, s{sOUT}
    s_mov_b32 s{SOUT+1}, s{sOUT+1}
    s_mov_b32 s{SOUT+2}, 0x400000
    s_mov_b32 s{SOUT+3}, 0x20000
    v_bfe_u32 v6, v1, 2, 2
    v_lshrrev_b32 v7, 5, v1
    v_lshl_add_u32 v6, v7, 2, v6
    v_lshlrev_b32 v6, 7, v6
    v_and_b32 v7, 1, v1
    v_lshlrev_b32 v7, 1, v7
    v_bfe_u32 v24, v1, 4, 1
    v_or_b32 v7, v7, v24
    v_bfe_u32 v24, v1, 3, 1
    v_lshlrev_b32 v24, 2, v24
    v_xor_b32 v7, v7, v24
    v_lshl_add_u32 v6, v7, 4, v6
    v_bfe_u32 v24, v1, 1, 1
    v_lshl_add_u32 v{vWA3}, v24, 3, v6
    v_xor_b32 v{vWA3+1}, 64, v{vWA3}
    s_lshl_b32 s{sT}, s{sNH}, 16
    s_add_u32 s{sT}, s{sT}, {WOL0}
    v_add_u32 v{vWA3}, s{sT}, v{vWA3}
    v_add_u32 v{vWA3+1}, s{sT}, v{vWA3+1}
    s_lshl_b32 s{sT}, s{sTT}, 10
    v_add_u32 v{vO}, s{sT}, v3
    """)
    q=[]
    def rd_o(e):
        for hh in range(4):
            a(f"ds_read_b128 {vr(OS[e&1]+4*hh,4)}, v{vO} offset:{(e&3)*8192+hh*2048}"); q.append(("o",e))
    def rd_w(h):
        for nt in range(2):
            for t in range(2):
                a(f"ds_read_b64_tr_b16 {vr(WSET[h%3]+4*nt+2*t,2)}, v{vWA3+nt} offset:{h*2048+t*1024}"); q.append(("w",h))
    st={"done":0}
    def wait_for(tags):
        last=max(i for i,x in enumerate(q) if x in tags)
        if last<st["done"]: return
        n=len(q)-1-last
        assert n<=15 and len(q)-st["done"]<=16, (n,len(q)-st["done"])
        a(f"s_waitcnt lgkmcnt({n})"); st["done"]=last+1
    rd_w(0); rd_w(1)
    a("s_barrier")
    pf.pt("p3b0")
    rd_o(0)
    for h in range(32):
        e=h>>2; hh=h&3
        if hh==2 and e<7:
            wait_for([("o",e)])
            a("s_barrier")
            rd_o(e+1)
        if h+2<32: rd_w(h+2)
        wait_for([("w",h),("o",e)])
        for nt in range(2):
            c = "0" if h==0 else vr(ACC3+16*nt,16)
            a(f"v_mfma_f32_32x32x16_bf16 {vr(ACC3+16*nt,16)}, {vr(WSET[h%3]+4*nt,4)}, {vr(OS[e&1]+4*hh,4)}, {c}")
    pf.pt("p3loop")
    a(f"""
    s_lshl_b32 s{sT}, s{sP3T}, 1
    s_add_u32 s{sT}, s{sT}, s{sTT}
    s_lshl_b32 s{sT}, s{sT}, 16
    s_lshl_b32 s{sT2}, s{sP3BR}, 10
    s_add_u32 s{sT}, s{sT}, s{sT2}
    s_lshl_b32 s{sT2}, s{sP3NS}, 8
    s_add_u32 s{sT}, s{sT}, s{sT2}
    s_lshl_b32 s{sT2}, s{sNH}, 7
    s_add_u32 s{sT}, s{sT}, s{sT2}
    v_and_b32 v6, 31, v1
    v_lshlrev_b32 v6, 11, v6
    v_lshrrev_b32 v7, 5, v1
    v_lshl_add_u32 v6, v7, 5, v6
    s_nop 7
    """)
    if cfg.get("outT"):
        a(f"""
        s_lshl_b32 s{sT2}, s{sWV}, 12
        v_and_b32 v8, 31, v1
        v_lshlrev_b32 v8, 7, v8                    ; token*128
        v_lshrrev_b32 v9, 5, v1
        v_lshl_add_u32 v8, v9, 5, v8               ; + hf*32
        v_and_b32 v9, 7, v1
        v_lshlrev_b32 v9, 4, v9
        v_add_u32 v8, s{sT2}, v8
        """)
        for nt in range(2):
            b=ACC3+16*nt; T=16+8*nt
            for i in range(8): a(f"v_cvt_pk_bf16_f32 v{T+i}, v{b+2*i}, v{b+2*i+1}")
        for nt in range(2):
            for u in range(2):
                a(f"v_add_u32 v10, {nt*64+u*16}, v8\nv_xor_b32 v10, v10, v9\nds_write_b128 v10, {vr(16+8*nt+4*u,4)}")
        a(f"""
        v_lshrrev_b32 v11, 3, v1
        v_and_b32 v12, 7, v1                       ; chunk
        v_xor_b32 v13, v12, v11
        v_lshlrev_b32 v13, 4, v13
        v_lshl_add_u32 v13, v11, 7, v13
        v_add_u32 v13, s{sT2}, v13
        v_lshlrev_b32 v14, 11, v11
        v_lshl_add_u32 v14, v12, 4, v14
        s_waitcnt lgkmcnt(0)
        """)
        for i in range(4): a(f"ds_read_b128 {vr(32+4*i,4)}, v13 offset:{i*1024}")
        for i in range(4):
            a(f"s_waitcnt lgkmcnt({3-i})\ns_add_u32 s{sT2}, s{sT}, {i*8*2048}\nbuffer_store_dwordx4 {vr(32+4*i,4)}, v14, s[{SOUT}:{SOUT+3}], s{sT2} offen {OSTF}")
    else:
      for nt in range(2):
        b=ACC3+16*nt; T=8+8*nt
        for i in range(8): a(f"v_cvt_pk_bf16_f32 v{T+i}, v{b+2*i}, v{b+2*i+1}")
        a(f"buffer_store_dwordx4 {vr(T,4)}, v6, s[{SOUT}:{SOUT+3}], s{sT} offen offset:{nt*64} {OSTF}")
        a(f"buffer_store_dwordx4 {vr(T+4,4)}, v6, s[{SOUT}:{SOUT+3}], s{sT} offen offset:{nt*64+16} {OSTF}")
    a(f"""
    s_cmp_lg_u32 s2, 0
    s_cbranch_scc1 {name}_nn
    s_cmp_lg_u32 s{sWV}, 0
    s_cbranch_scc1 {name}_nn
    s_mov_b32 s{sT}, {NONCE}
    v_mov_b32 v12, 0
    v_mov_b32 v13, s{sN}
    buffer_store_dword v13, v12, s[{R.SWS}:{R.SWS+3}], s{sT} offen sc1
    {name}_nn:
    """)
    if pf.on:
        a("s_waitcnt vmcnt(0)"); pf.pt("end"); pf0.flush(len(PTS),4,2,wave=cfg.get("pwave",0) if cfg.get("pwave",0)<4 else 99)
    a("s_endpgm")
    a.label(f"{name}_p3l")
    sE=26; sB=27; sL=28
    a(f"""
    s_sub_u32 s{sE}, s{sWV}, 4
    s_lshl_b32 s{sT}, s{sP3BR}, 6
    s_lshl_b32 s{sT2}, s{sP3T}, 1
    s_add_u32 s{sT}, s{sT}, s{sT2}
    s_lshl_b32 s{sB}, s{sT}, 15
    s_lshl_b32 s{sT}, s{sE}, 10
    s_add_u32 s{sB}, s{sB}, s{sT}
    s_add_u32 s{sB}, s{sB}, {OF}
    s_lshl_b32 s{sL}, s{sE}, 11
    """)
    OR=32; LA=cfg.get("p3_la",5); mode=cfg.get("p3_mode","reg")
    items=[(e,tt) for e in range(8) for tt in range(2)]
    def ld(k):
        e,tt=items[k]
        if cfg.get("diag_p3noload"): return
        if mode=="reg":
            a(f"s_add_u32 s{sT}, s{sB}, {e*4096+tt*32768}\nbuffer_load_dwordx4 {vr(OR+4*k,4)}, v3, s[{R.SWS}:{R.SWS+3}], s{sT} offen {HLD}")
        else:
            a(f"s_add_u32 m0, s{sL}, {(e&3)*8192+tt*1024}\ns_add_u32 s{sT}, s{sB}, {e*4096+tt*32768}\nbuffer_load_dwordx4 v3, s[{R.SWS}:{R.SWS+3}], s{sT} offen {HLD} lds")
    issued=0
    if mode=="dma": LA=min(LA,6)
    while issued<LA: ld(issued); issued+=1
    a(f"v_add_u32 v4, s{sL}, v3")
    for e in range(8):
        need=2*e+2
        a(f"s_waitcnt vmcnt({max(issued-need,0)})")
        if mode=="reg":
            for tt in range(2):
                a(f"ds_write_b128 v4, {vr(OR+4*(2*e+tt),4)} offset:{(e&3)*8192+tt*1024}")
            while issued<min(16,need+LA): ld(issued); issued+=1
            a("s_waitcnt lgkmcnt(0)\ns_barrier")
        else:
            a("s_barrier")
            while issued<min(16,need+LA,2*(e+4)): ld(issued); issued+=1
    a.label(f"{name}_end")
    a.label(f"{name}_last")
    a("s_endpgm")

def gen_fused(a, name, cfg):
    NS=cfg.get("ns",3)
    assert NS==3 or cfg.get("wo_late")
    P3V=cfg.get("p3v",1)
    DEF=cfg.get("defer_pq",False)
    LDX=cfg.get("ldx",""); LDW=cfg.get("ldw","")
    STF="sc1"; HLD="sc1"
    OSTF=cfg.get("out_stflags","")
    XB=0; XS=16384; WB=NS*XS; WS_=24576
    a.raw(f".globl {name}\n.p2align 8\n.type {name},@function\n{name}:")
    sWAVE=20; sBR=21; sR=22; sG=23; sT=24; sT2=25
    SX=8; SW=12; SWS=16
    PTS=cfg.get("pts",["entry","p","loop","epi","b1","b2","kv","att","f2","end"])
    TIMER=cfg.get("timer","s_memrealtime")
    class PF0:
        on=cfg.get("prof",False)
        def flush(self,n,srd,vt,wave=0):
            if not self.on: return
            lab=a.newlabel("pf")
            a(f"""
            s_cmp_lg_u32 s{sWV}, {wave}
            s_cbranch_scc1 {lab}
            s_mov_b32 s4, s{sWSP}
            s_mov_b32 s5, s{sWSP+1}
            s_mov_b32 s6, {16<<20}
            s_mov_b32 s7, 0x20000
            s_lshl_b32 s24, s2, 6
            s_add_u32 s24, s24, {14<<20}
            v_lshlrev_b32 v2, 2, v1
            s_mov_b64 exec, 0xffff
            buffer_store_dword v247, v2, s[4:7], s24 offen
            s_mov_b64 exec, -1
            {lab}:
            """)
    pf0=PF0()
    class PF:
        on=pf0.on
        def pt(self,n):
            if self.on and n in PTS:
                a(f"{TIMER} s[100:101]\ns_waitcnt lgkmcnt(0)\nv_writelane_b32 v247, s100, {PTS.index(n)}")
    pf=PF()
    pf.pt("entry")
    a(f"""
    s_cmp_ge_u32 s2, 256
    s_cbranch_scc1 {name}_end
    """)
    if cfg.get("codepf_top"):
        nseg=cfg["codepf_top"]; lab=a.newlabel("cpt"); nwg=cfg.get("codepf_wgs",8)
        a(f"""
        s_load_dwordx4 s[28:31], s[0:1], 0
        s_load_dwordx4 s[32:35], s[0:1], 24
        s_load_dwordx2 s[{sAWO}:{sAWO+1}], s[0:1], 16
        s_load_dwordx2 s[{sBWO}:{sBWO+1}], s[0:1], 40
        s_load_dwordx4 s[{sOUT}:{sOUT+3}], s[0:1], 48
        s_load_dwordx2 s[{sWSP}:{sWSP+1}], s[0:1], 64
        s_cmp_ge_u32 s2, {nwg}
        s_cbranch_scc1 {lab}
        v_lshrrev_b32 v2, 6, v0
        v_and_b32 v1, 63, v0
        v_subrev_u32 v2, 1, v2                     ; wave - 1
        v_cmp_gt_u32 vcc, {nseg}, v2
        s_getpc_b64 s[4:5]
        {lab}_pc:
        s_sub_u32 s4, s4, {lab}_pc-{name}
        s_subb_u32 s5, s5, 0
        v_lshlrev_b32 v12, 13, v2
        v_lshl_add_u32 v12, v1, 7, v12
        v_min_u32 v12, {name}_last-{name}, v12
        v_mov_b32 v13, s5
        s_and_saveexec_b64 s[6:7], vcc
        s_cbranch_execz {lab}_x
        v_add_co_u32 v12, vcc, s4, v12
        s_nop 1
        v_addc_co_u32 v13, vcc, 0, v13, vcc
        global_load_dword v245, v[12:13], off
        {lab}_x:
        s_mov_b64 exec, s[6:7]
        {lab}:
        """)
    if not cfg.get("codepf_top"):
        a(f"""
        s_load_dwordx4 s[28:31], s[0:1], 0
        s_load_dwordx4 s[32:35], s[0:1], 24
        s_load_dwordx2 s[{sAWO}:{sAWO+1}], s[0:1], 16
        s_load_dwordx2 s[{sBWO}:{sBWO+1}], s[0:1], 40
        s_load_dwordx4 s[{sOUT}:{sOUT+3}], s[0:1], 48
        s_load_dwordx2 s[{sWSP}:{sWSP+1}], s[0:1], 64
        """)
    a(f"""
    v_lshrrev_b32 v2, 6, v0
    v_and_b32 v1, 63, v0
    s_and_b32 s{sT}, s2, 7
    v_readfirstlane_b32 s{sWAVE}, v2
    s_lshr_b32 s{sT2}, s2, 3
    s_and_b32 s{sBR}, s{sT}, 1
    s_lshr_b32 s{sT}, s{sT}, 1
    s_mov_b32 s{sP3BR}, s{sBR}
    s_lshl_b32 s{sP3T}, s{sT}, {3 if P3V==2 else 2}
    s_and_b32 s{sP3NS}, s{sT2}, {7 if P3V==2 else 3}
    s_add_u32 s{sP3T}, s{sP3T}, s{sP3NS}
    s_lshr_b32 s{sP3NS}, s{sT2}, {3 if P3V==2 else 2}
    s_and_b32 s{sR}, s{sT}, 1
    s_lshl_b32 s{sR}, s{sR}, 3
    s_lshr_b32 s{sG}, s{sT}, 1
    s_lshl_b32 s{sG}, s{sG}, 2
    s_and_b32 s{sT}, s{sT2}, 7
    s_add_u32 s{sR}, s{sR}, s{sT}
    s_lshr_b32 s{sT}, s{sT2}, 3
    s_add_u32 s{sG}, s{sG}, s{sT}
    s_mov_b32 s{sWV}, s{sWAVE}
    s_mov_b32 s83, 0
    """)
    FAST=cfg.get("faststart",False)
    sE=26; sXB=27; sWBs=38; sL=39; sROT=40; sXC=41; sWC=42
    def loader_setup():
        a(f"""
        s_sub_u32 s{sE}, s{sWAVE}, 4
        v_lshrrev_b32 v2, 3, v1
        v_and_b32 v3, 7, v1
        v_lshrrev_b32 v4, 1, v2
        s_and_b32 s{sT}, s{sE}, 1
        s_lshl_b32 s{sT}, s{sT}, 2
        v_or_b32 v4, s{sT}, v4
        v_xor_b32 v4, v4, v3
        v_lshlrev_b32 v5, 10, v2
        v_lshl_add_u32 v5, v4, 4, v5            ; x voffset
        v_bfe_u32 v4, v1, 4, 1
        v_lshlrev_b32 v4, 2, v4
        v_xor_b32 v4, v4, v3
        v_mul_u32_u24 v6, 3072, v2
        v_lshl_add_u32 v6, v4, 4, v6            ; w voffset
        v_lshlrev_b32 v7, 10, v2
        v_lshl_add_u32 v7, v4, 4, v7
        s_lshl_b32 s{sXB}, s{sR}, 17
        s_lshl_b32 s{sT}, s{sE}, 13
        s_add_u32 s{sXB}, s{sXB}, s{sT}
        s_lshl_b32 s{sWBs}, s{sG}, 7
        s_mul_i32 s{sT}, s{sE}, 24576
        s_add_u32 s{sWBs}, s{sWBs}, s{sT}
        s_lshl_b32 s{sL}, s{sE}, 10
        s_mov_b32 s{sROT}, 0
        """)
        for (src,sh,mask,mul) in cfg.get("k1_rot",[["R",0,3,2],["G",0,3,1]]):
            r={"R":sR,"G":sG}[src]
            a(f"s_lshr_b32 s{sT}, s{r}, {sh}\ns_and_b32 s{sT}, s{sT}, {mask}\ns_mul_i32 s{sT}, s{sT}, {mul}\ns_add_u32 s{sROT}, s{sROT}, s{sT}")
    if FAST: loader_setup()
    a(f"""
    s_mov_b32 s{SX+2}, 0x200000
    s_mov_b32 s{SX+3}, 0x20000
    s_mov_b32 s{SW+2}, 0x180000
    s_mov_b32 s{SW+3}, 0x20000
    s_mov_b32 s{SWS+2}, {WS_USED}
    s_mov_b32 s{SWS+3}, 0x20000
    s_cmp_eq_u32 s{sBR}, 0
    s_waitcnt lgkmcnt(0)
    s_cselect_b32 s{SX}, s28, s32
    s_cselect_b32 s{SX+1}, s29, s33
    s_cselect_b32 s{SW}, s30, s34
    s_cselect_b32 s{SW+1}, s31, s35
    s_mov_b32 s{SWS}, s{sWSP}
    s_mov_b32 s{SWS+1}, s{sWSP+1}
    """)
    def nonce_load():
        a(f"""
        s_mov_b32 s4, {NONCE}
        v_mov_b32 v30, 0
        buffer_load_dword v31, v30, s[{SWS}:{SWS+3}], s4 offen sc1
        """)
    if FAST:
        a(f"s_cmp_lt_u32 s{sWAVE}, 4\ns_cbranch_scc1 {name}_compute")
        mark_entry_end=len(a.lines)
        a.label(f"{name}_compute")
        nonce_load()
    else:
        nonce_load()
        a(f"s_cmp_ge_u32 s{sWAVE}, 4\ns_cbranch_scc1 {name}_loader")
    EC=cfg.get("early_consts",False)
    if EC: cD0,cD1,cD2,cD3,cA,cB,cC,cM,cT,cU,vONE,vKa,vKb=92,93,94,95,96,98,4,6,28,30,236,240,241
    else:  cD0,cD1,cD2,cD3,cA,cB,cC,cM,cT,cU,vONE,vKa,vKb=58,59,60,61,46,48,50,52,54,56,20,16,17
    sTM=26; sFN=27
    vXA=4; vWA=8
    ACC=32
    def acc(tt,sec): return ACC+(tt*3+sec)*16
    FR=[128,148]
    def xf(s,tt): return FR[s]+4*tt
    def wf(s,sec): return FR[s]+8+4*sec
    if cfg.get("pretouch"):
        lab=a.newlabel("ptc")
        a(f"""
        s_cmp_lg_u32 s{sWAVE}, 2
        s_cbranch_scc1 {lab}
        v_and_b32 v12, 7, v1
        v_lshlrev_b32 v12, 21, v12
        v_add_u32 v12, {0x1ffc00 if False else 0x100000}, v12
        v_min_u32 v12, {WS_USED-256}, v12
        buffer_load_dword v14, v12, s[{SWS}:{SWS+3}], 0 offen
        s_mov_b32 s44, s{sOUT}
        s_mov_b32 s45, s{sOUT+1}
        s_mov_b32 s46, 0x400000
        s_mov_b32 s47, 0x20000
        v_and_b32 v12, 1, v1
        v_lshlrev_b32 v12, 21, v12
        buffer_load_dword v15, v12, s[44:47], 0 offen
        s_cmp_eq_u32 s{sP3BR}, 0
        s_cselect_b32 s44, s{sAWO}, s{sBWO}
        s_cselect_b32 s45, s{sAWO+1}, s{sBWO+1}
        s_mov_b32 s46, 0x80000
        v_mov_b32 v12, 0
        buffer_load_dword v16, v12, s[44:47], 0 offen
        {lab}:
        """)
    if cfg.get("codepf"):
        nseg=cfg["codepf"]
        lab=a.newlabel("cpf")
        a(f"""
        s_cmp_lg_u32 s{sWAVE}, 1
        s_cbranch_scc1 {lab}
        s_lshr_b32 s4, s2, 3
        s_cmp_ge_u32 s4, {nseg}
        s_cbranch_scc1 {lab}
        s_lshl_b32 s6, s4, 13
        s_getpc_b64 s[4:5]
        {lab}_pc:
        s_sub_u32 s4, s4, {lab}_pc-{name}
        s_subb_u32 s5, s5, 0
        v_lshlrev_b32 v12, 7, v1
        v_add_u32 v12, s6, v12
        v_min_u32 v12, {name}_last-{name}, v12
        v_mov_b32 v13, s5
        v_add_co_u32 v12, vcc, s4, v12
        s_nop 1
        v_addc_co_u32 v13, vcc, 0, v13, vcc
        global_load_dword v245, v[12:13], off
        {lab}:
        """)
    a(f"""
    s_and_b32 s{sTM}, s{sWAVE}, 1
    s_lshr_b32 s{sFN}, s{sWAVE}, 1
    v_lshrrev_b32 v2, 5, v1                 ; hf
    v_and_b32 v3, 31, v1                    ; t31
    v_lshrrev_b32 v9, 1, v3
    v_and_b32 v9, 7, v9                     ; g
    s_lshl_b32 s{sT}, s{sTM}, 13
    v_lshlrev_b32 v10, 7, v3
    v_add_u32 v10, s{sT}, v10
    """)
    for ks in range(4):
        a(f"v_or_b32 v11, {2*ks}, v2\nv_xor_b32 v11, v11, v9\nv_lshl_add_u32 v{vXA+ks}, v11, 4, v10")
    a(f"""
    v_bfe_u32 v10, v1, 2, 2
    v_lshlrev_b32 v10, 7, v10
    v_lshl_add_u32 v10, v2, 10, v10
    v_bfe_u32 v11, v1, 4, 1
    v_lshlrev_b32 v11, 1, v11
    v_bfe_u32 v12, v1, 1, 1
    v_or_b32 v11, v11, v12
    s_lshl_b32 s{sT}, s{sFN}, 2
    v_or_b32 v11, s{sT}, v11
    v_bfe_u32 v12, v1, 3, 1
    v_lshlrev_b32 v12, 2, v12
    v_xor_b32 v11, v11, v12
    v_lshl_add_u32 v10, v11, 4, v10
    v_and_b32 v12, 1, v1
    v_lshl_add_u32 v10, v12, 3, v10
    v_add_u32 v{vWA}, {WB}, v10
    """)
    for r in range(ACC,ACC+96): a(f"v_mov_b32 v{r}, 0")
    a(f"""
    s_mov_b32 s{cD0}, {(-(NS-1)*XS)&0xffffffff:#x}
    s_mov_b32 s{cD1}, {XS}
    s_mov_b32 s{cD2}, {(-(NS-1)*WS_)&0xffffffff:#x}
    s_mov_b32 s{cD3}, {WS_}
    """)
    if EC: k2_setup_regs(a,K2R)
    def reads(s, ks):
        L=[]
        L.append(f"ds_read_b128 {vr(xf(s,0),4)}, v{vXA+ks}")
        L.append(f"ds_read_b64_tr_b16 {vr(wf(s,0),2)}, v{vWA} offset:{ks*2048}")
        L.append(f"ds_read_b64_tr_b16 {vr(wf(s,0)+2,2)}, v{vWA} offset:{ks*2048+512}")
        L.append(f"ds_read_b128 {vr(xf(s,1),4)}, v{vXA+ks} offset:4096")
        for sec in (1,2):
            L.append(f"ds_read_b64_tr_b16 {vr(wf(s,sec),2)}, v{vWA} offset:{sec*8192+ks*2048}")
            L.append(f"ds_read_b64_tr_b16 {vr(wf(s,sec)+2,2)}, v{vWA} offset:{sec*8192+ks*2048+512}")
        return L
    def mfmas(s, br):
        L=[]
        order=[(sec,tt) for sec in range(3) for tt in range(2)]
        if cfg.get("mf_order")=="x": order=[(sec,tt) for tt in range(2) for sec in range(3)]
        for sec,tt in order:
            for _one in (0,):
                featrow = (sec==0) or (sec==1 and br==1)
                A_,B_ = (wf(s,sec),xf(s,tt)) if featrow else (xf(s,tt),wf(s,sec))
                if cfg.get("mf16test"):
                    o=acc(tt,sec)+8*s
                    L.append(f"v_mfma_f32_16x16x32_bf16 {vr(o,4)}, {vr(A_,4)}, {vr(B_,4)}, {vr(o,4)}\nv_mfma_f32_16x16x32_bf16 {vr(o+4,4)}, {vr(B_,4)}, {vr(A_,4)}, {vr(o+4,4)}")
                else:
                    L.append(f"v_mfma_f32_32x32x16_bf16 {vr(acc(tt,sec),16)}, {vr(A_,4)}, {vr(B_,4)}, {vr(acc(tt,sec),16)}")
        return L
    def step(s, br, rd):
        M=mfmas(s,br)
        if rd:
            a(M[0]); a(rd[0]); a(rd[1]); a(rd[2])
            a(M[1]); a(rd[3]); a(rd[4]); a(rd[5])
            a(M[2]); a(rd[6]); a(rd[7])
            a(M[3]); a(M[4]); a(M[5])
        else:
            for m in M: a(m)
    sCNT,sSTG,sDX,sDW=(82,85,86,87) if EC else (38,39,40,41)
    for br in (0,1):
        bn="AB"[br]
        if br==0: a(f"s_cmp_eq_u32 s{sBR}, 1\ns_cbranch_scc1 {name}_cB")
        else: a.label(f"{name}_cB")
        a(f"s_mov_b32 s{sCNT}, 0\ns_mov_b32 s{sSTG}, 0\ns_waitcnt vmcnt(0)\nv_readfirstlane_b32 s{sN}, v31\ns_nop 3\ns_add_u32 s{sN}, s{sN}, 1")
        a("s_barrier")
        pf.pt("p")
        for l in reads(0,0): a(l)
        a.label(f"{name}_loop{bn}")
        for ks in range(3):
            a("s_waitcnt lgkmcnt(0)")
            step(ks&1, br, reads((ks+1)&1, ks+1))
        a(f"""
        s_add_u32 s{sSTG}, s{sSTG}, 1
        s_cmp_eq_u32 s{sSTG}, {NS}
        s_cselect_b32 s{sDX}, s{cD0}, s{cD1}
        s_cselect_b32 s{sDW}, s{cD2}, s{cD3}
        s_cselect_b32 s{sSTG}, 0, s{sSTG}
        s_waitcnt lgkmcnt(0)
        s_barrier
        """)
        if cfg.get("chunkstamps"):
            for c in range(7):
                lab=a.newlabel("cs")
                a(f"s_cmp_lg_u32 s{sCNT}, {c}\ns_cbranch_scc1 {lab}")
                pf.pt(f"c{c}")
                a.label(lab)
        for ks in range(4): a(f"v_add_u32 v{vXA+ks}, s{sDX}, v{vXA+ks}")
        a(f"v_add_u32 v{vWA}, s{sDW}, v{vWA}")
        step(1, br, reads(0,0))
        a(f"""
        s_add_u32 s{sCNT}, s{sCNT}, 1
        s_cmp_lt_u32 s{sCNT}, 7
        s_cbranch_scc1 {name}_loop{bn}
        """)
        sOFF,sH,sTB=(88,89,90) if EC else (42,43,44)
        def epi_addr():
            a(f"""
            s_lshl_b32 s{sH}, s{sG}, 2
            s_lshl_b32 s{sT}, s{sFN}, 1
            s_add_u32 s{sH}, s{sH}, s{sT}
            s_lshl_b32 s{sTB}, s{sR}, 2
            s_lshl_b32 s{sT}, s{sTM}, 1
            s_add_u32 s{sTB}, s{sTB}, s{sT}
            s_lshl_b32 s{sOFF}, s{sH}, 16
            s_lshl_b32 s{sT}, s{sTB}, 10
            s_add_u32 s{sOFF}, s{sOFF}, s{sT}
            v_lshlrev_b32 v9, 4, v1
            """)
        T0=128
        if br==1 and cfg.get("lastchunk"):
            epi_addr()
            a(f"""
            s_mov_b32 s{cA}, {f2u(CSCALE):#x}
            s_mov_b32 s{cA+1}, {f2u(CSCALE):#x}
            v_bfe_u32 v10, v1, 4, 1
            v_lshlrev_b32 v10, 16, v10
            v_lshrrev_b32 v11, 5, v1
            v_lshl_add_u32 v10, v11, 8, v10
            v_and_b32 v11, 15, v1
            v_lshl_add_u32 v10, v11, 4, v10
            """)
            XL={0:[xf(0,0),xf(0,1)]}; WL={(0,sec):wf(0,sec) for sec in range(3)}
            reg=168
            for ks in range(1,4): XL[ks]=[reg,reg+4]; reg+=8
            for sec in (1,2,0):
                for ks in range(1,4): WL[(ks,sec)]=reg; reg+=4
            assert reg<=232
            q=[]; st={"done":0}
            def rx(ks):
                a(f"ds_read_b128 {vr(XL[ks][0],4)}, v{vXA+ks}"); q.append(("x",ks))
                a(f"ds_read_b128 {vr(XL[ks][1],4)}, v{vXA+ks} offset:4096"); q.append(("x",ks))
            def rw(ks,sec):
                for t in range(2):
                    a(f"ds_read_b64_tr_b16 {vr(WL[(ks,sec)]+2*t,2)}, v{vWA} offset:{sec*8192+ks*2048+t*512}"); q.append(("w",ks,sec))
            def wait_for(tags):
                idx=[i for i,x in enumerate(q) if x in tags]
                if not idx or max(idx)<st["done"]: return
                n=len(q)-1-max(idx); assert n<=15 and len(q)-st["done"]<=15,(n,len(q),st)
                a(f"s_waitcnt lgkmcnt({n})"); st["done"]=max(idx)+1
            def mm(sec,ks,tt):
                featrow = sec in (0,1)
                A_,B_ = (WL[(ks,sec)],XL[ks][tt]) if featrow else (XL[ks][tt],WL[(ks,sec)])
                a(f"v_mfma_f32_32x32x16_bf16 {vr(acc(tt,sec),16)}, {vr(A_,4)}, {vr(B_,4)}, {vr(acc(tt,sec),16)}")
            TK=128+8
            TK=148
            def kops():
                L=[]
                for tt in range(2):
                    b=acc(tt,1); tmp=TK+8*tt
                    for i in range(8): L.append(f"v_cvt_pk_bf16_f32 v{tmp+i}, v{b+2*i}, v{b+2*i+1}")
                    L.append(f"s_add_u32 s{sT}, s{sOFF}, {KF+tt*1024}\nbuffer_store_dwordx4 {vr(tmp,4)}, v9, s[{SWS}:{SWS+3}], s{sT} offen {STF}")
                    L.append(f"s_add_u32 s{sT2}, s{sOFF}, {KF+tt*1024+65536}\nbuffer_store_dwordx4 {vr(tmp+4,4)}, v9, s[{SWS}:{SWS+3}], s{sT2} offen {STF}")
                return L
            TV=232
            def vops():
                L=[]
                for tt in range(2):
                    b=acc(tt,2); tmp=[232,148][tt]
                    for i in range(8): L.append(f"v_cvt_pk_bf16_f32 v{tmp+i}, v{b+2*i}, v{b+2*i+1}")
                    L.append(f"s_add_u32 s{sT}, s{sOFF}, {VF+tt*1024}\nbuffer_store_dwordx4 {vr(tmp,4)}, v10, s[{SWS}:{SWS+3}], s{sT} offen {STF}")
                    L.append(f"buffer_store_dwordx4 {vr(tmp+4,4)}, v10, s[{SWS}:{SWS+3}], s{sT} offen offset:512 {STF}")
                return L
            a("s_waitcnt lgkmcnt(0)")
            rx(1); rw(1,1); rx(2); rw(2,1)
            mm(1,0,0); mm(1,0,1)
            rx(3); rw(3,1)
            wait_for([("x",1),("w",1,1)]); mm(1,1,0); rw(1,2); mm(1,1,1)
            wait_for([("x",2),("w",2,1)]); mm(1,2,0); rw(2,2); mm(1,2,1)
            wait_for([("x",3),("w",3,1)]); mm(1,3,0); rw(3,2); mm(1,3,1)
            mm(2,0,0); rw(1,0); mm(2,0,1); rw(2,0)
            wait_for([("w",1,2)]); mm(2,1,0); rw(3,0); mm(2,1,1)
            a("s_nop 3")
            K=kops()
            for l in K[0:5]: a(l)
            wait_for([("w",2,2)]); mm(2,2,0)
            for l in K[5:10]: a(l)
            mm(2,2,1)
            for l in K[10:15]: a(l)
            wait_for([("w",3,2)]); mm(2,3,0)
            for l in K[15:20]: a(l)
            mm(2,3,1)
            mm(0,0,0); mm(0,0,1)
            wait_for([("w",1,0)]); mm(0,1,0); mm(0,1,1)
            a("s_nop 7")
            V=vops()
            for l in V[0:5]: a(l)
            wait_for([("w",2,0)]); mm(0,2,0)
            for l in V[5:10]: a(l)
            mm(0,2,1)
            for l in V[10:15]: a(l)
            wait_for([("w",3,0)]); mm(0,3,0)
            for l in V[15:20]: a(l)
            mm(0,3,1)
            pf.pt("loop")
            a("s_nop 15")
            tmp=168
            for tt in range(2):
                b=acc(tt,0)
                for i in range(8): a(f"v_pk_mul_f32 {vr(b+2*i,2)}, {vr(b+2*i,2)}, s[{cA}:{cA+1}]")
                for i in range(8): a(f"v_cvt_pk_bf16_f32 v{tmp+i}, v{b+2*i}, v{b+2*i+1}")
                a(f"s_add_u32 s{sT}, s{sOFF}, {QF+tt*1024}")
                a(f"buffer_store_dwordx4 {vr(tmp,4)}, v9, s[{SWS}:{SWS+3}], s{sT} offen {STF}")
                a(f"s_add_u32 s{sT2}, s{sOFF}, {QF+tt*1024+65536}")
                a(f"buffer_store_dwordx4 {vr(tmp+4,4)}, v9, s[{SWS}:{SWS+3}], s{sT2} offen {STF}")
                tmp+=8
            a(f"s_branch {name}_p1done")
            continue
        for ks in range(3):
            a("s_waitcnt lgkmcnt(0)")
            step(ks&1, br, reads((ks+1)&1, ks+1))
        a("s_waitcnt lgkmcnt(0)")
        step(1, br, [])
        pf.pt("loop")
        epi_addr()
        if br==1:
            a(f"s_mov_b32 s{cA}, {f2u(CSCALE):#x}\ns_mov_b32 s{cA+1}, {f2u(CSCALE):#x}")
            a(f"""
            v_bfe_u32 v10, v1, 4, 1
            v_lshlrev_b32 v10, 16, v10
            v_lshrrev_b32 v11, 5, v1
            v_lshl_add_u32 v10, v11, 8, v10
            v_and_b32 v11, 15, v1
            v_lshl_add_u32 v10, v11, 4, v10
            s_nop 7
            """)
            tmp=T0
            for tt in range(2):
                b=acc(tt,1)
                for i in range(8): a(f"v_cvt_pk_bf16_f32 v{tmp+i}, v{b+2*i}, v{b+2*i+1}")
                a(f"s_add_u32 s{sT}, s{sOFF}, {KF+tt*1024}")
                a(f"buffer_store_dwordx4 {vr(tmp,4)}, v9, s[{SWS}:{SWS+3}], s{sT} offen {STF}")
                a(f"s_add_u32 s{sT2}, s{sOFF}, {KF+tt*1024+65536}")
                a(f"buffer_store_dwordx4 {vr(tmp+4,4)}, v9, s[{SWS}:{SWS+3}], s{sT2} offen {STF}")
                tmp+=8
            for tt in range(2):
                b=acc(tt,2)
                for i in range(8): a(f"v_cvt_pk_bf16_f32 v{tmp+i}, v{b+2*i}, v{b+2*i+1}")
                a(f"s_add_u32 s{sT}, s{sOFF}, {VF+tt*1024}")
                a(f"buffer_store_dwordx4 {vr(tmp,4)}, v10, s[{SWS}:{SWS+3}], s{sT} offen {STF}")
                a(f"buffer_store_dwordx4 {vr(tmp+4,4)}, v10, s[{SWS}:{SWS+3}], s{sT} offen offset:512 {STF}")
                tmp+=8
            for tt in range(2):
                b=acc(tt,0)
                for i in range(8): a(f"v_pk_mul_f32 {vr(b+2*i,2)}, {vr(b+2*i,2)}, s[{cA}:{cA+1}]")
                for i in range(8): a(f"v_cvt_pk_bf16_f32 v{tmp+i}, v{b+2*i}, v{b+2*i+1}")
                a(f"s_add_u32 s{sT}, s{sOFF}, {QF+tt*1024}")
                a(f"buffer_store_dwordx4 {vr(tmp,4)}, v9, s[{SWS}:{SWS+3}], s{sT} offen {STF}")
                a(f"s_add_u32 s{sT2}, s{sOFF}, {QF+tt*1024+65536}")
                a(f"buffer_store_dwordx4 {vr(tmp+4,4)}, v9, s[{SWS}:{SWS+3}], s{sT2} offen {STF}")
                tmp+=8
            a(f"s_branch {name}_p1done")
        else:
            a(f"""
            s_mov_b32 s{cA}, {f2u(LOG2E):#x}
            s_mov_b32 s{cA+1}, {f2u(LOG2E):#x}
            s_mov_b32 s{cB}, 1.0
            s_mov_b32 s{cB+1}, 1.0
            s_mov_b32 s{cC}, {f2u(1e-6):#x}
            s_mov_b32 s{cC+1}, {f2u(1e-6):#x}
            s_mov_b32 s{cM}, 0x0000ffff
            s_mov_b32 s{cM+1}, 0x0000ffff
            v_mov_b32 v{vONE}, 0x3f803f80
            v_mov_b32 v{vONE+1}, 0x3f803f80
            v_mov_b32 v{vONE+2}, 0x3f803f80
            v_mov_b32 v{vONE+3}, 0x3f803f80
            s_nop 4
            """)
            U=168
            def phi(b):
                for i in range(8): a(f"v_pk_mul_f32 {vr(U+2*i,2)}, {vr(b+2*i,2)}, s[{cA}:{cA+1}]")
                for i in range(16): a(f"v_exp_f32 v{U+i}, v{U+i} clamp")
                for i in range(8): a(f"v_pk_add_f32 {vr(b+2*i,2)}, {vr(b+2*i,2)}, s[{cB}:{cB+1}]")
                for i in range(16): a(f"v_max_f32 v{b+i}, v{b+i}, v{U+i}")
                for i in range(8): a(f"v_pk_add_f32 {vr(b+2*i,2)}, {vr(b+2*i,2)}, s[{cC}:{cC+1}]")
            PK=[128,136]; VV=[144,152]; D=184; D2=200
            def qpart(tt,tmp):
                b=acc(tt,0)
                phi(b)
                for i in range(8): a(f"v_cvt_pk_bf16_f32 v{tmp+i}, v{b+2*i}, v{b+2*i+1}")
                if DEF: return
                a(f"s_add_u32 s{sT}, s{sOFF}, {PQ+tt*1024}")
                a(f"buffer_store_dwordx4 {vr(tmp,4)}, v9, s[{SWS}:{SWS+3}], s{sT} offen {STF}")
                a(f"s_add_u32 s{sT2}, s{sOFF}, {PQ+tt*1024+65536}")
                a(f"buffer_store_dwordx4 {vr(tmp+4,4)}, v9, s[{SWS}:{SWS+3}], s{sT2} offen {STF}")
            QF1=cfg.get("a_qfirst",False)
            if QF1: qpart(0,216); qpart(1,224)
            for tt in range(2):
                b=acc(tt,2)
                for i in range(8): a(f"v_cvt_pk_bf16_f32 v{VV[tt]+i}, v{b+2*i}, v{b+2*i+1}")
            for tt in range(2):
                b=acc(tt,1)
                phi(b)
                for i in range(8): a(f"v_cvt_pk_bf16_f32 v{PK[tt]+i}, v{b+2*i}, v{b+2*i+1}")
                a("s_nop 1")
                for m in range(2):
                    c1 = "0" if (tt==0 and m==0) else vr(D,16)
                    c2 = "0" if (tt==0 and m==0) else vr(D2,16)
                    a(f"v_mfma_f32_32x32x16_bf16 {vr(D,16)}, {vr(PK[tt]+4*m,4)}, {vr(VV[tt]+4*m,4)}, {c1}")
                    a(f"v_mfma_f32_32x32x16_bf16 {vr(D2,16)}, {vr(PK[tt]+4*m,4)}, v[{vONE}:{vONE+3}], {c2}")
            def kvp_addr():
                a(f"""
                v_and_b32 v11, 31, v1
                v_lshrrev_b32 v12, 5, v1
                v_and_b32 v13, 15, v1
                v_lshlrev_b32 v13, 5, v13
                v_lshl_add_u32 v13, v12, 9, v13
                v_lshlrev_b32 v14, 5, v12
                v_add_u32 v14, 1024, v14
                v_mov_b32 v15, 0x40000000
                v_cmp_eq_u32 s[{cT}:{cT+1}], 16, v11
                v_cmp_eq_u32 s[{cU}:{cU+1}], 0, v11
                s_nop 1
                v_cndmask_b32_e64 v{vKa}, v15, v14, s[{cT}:{cT+1}]
                v_cndmask_b32_e64 v{vKb}, v15, v14, s[{cU}:{cU+1}]
                v_cndmask_b32_e64 v{vKa}, v{vKa}, v13, s[{cM}:{cM+1}]
                v_cndmask_b32_e64 v{vKb}, v13, v{vKb}, s[{cM}:{cM+1}]
                """)
            if QF1:
                kvp_addr()
                a("s_nop 1")
            else:
                a("s_nop 15")
            for r in range(8):  a(f"v_cndmask_b32_e64 v{D+r}, v{D2+r}, v{D+r}, s[{cM}:{cM+1}]")
            for r in range(8,16): a(f"v_cndmask_b32_e64 v{D+r}, v{D+r}, v{D2+r}, s[{cM}:{cM+1}]")
            EX = 0
            a(f"""
            s_lshl_b32 s{sT}, s{sFN}, 12
            s_add_u32 s{sT}, s{sT}, {EX}
            v_add_u32 v10, s{sT}, v9
            s_cmp_eq_u32 s{sTM}, 0
            s_cbranch_scc1 {name}_Ard
            """)
            for q in range(4): a(f"ds_write_b128 v10, {vr(D+4*q,4)} offset:{q*1024}")
            a(f"s_waitcnt lgkmcnt(0)")
            a.label(f"{name}_Ard")
            a("s_barrier")
            a(f"s_cmp_lg_u32 s{sTM}, 0\ns_cbranch_scc1 {name}_Aq")
            for q in range(4): a(f"ds_read_b128 {vr(D2+4*q,4)}, v10 offset:{q*1024}")
            if not QF1: kvp_addr()
            a(f"""
            s_lshl_b32 s{sT}, s{sH}, 4
            s_add_u32 s{sT}, s{sT}, s{sR}
            s_mul_i32 s{sT}, s{sT}, 1088
            s_add_u32 s{sT}, s{sT}, {KVP}
            s_add_u32 s{sT2}, s{sT}, {16*1088}
            s_waitcnt lgkmcnt(0)
            """)
            for i in range(8): a(f"v_pk_add_f32 {vr(D+2*i,2)}, {vr(D+2*i,2)}, {vr(D2+2*i,2)}")
            a(f"""
            buffer_store_dwordx4 {vr(D,4)}, v{vKa}, s[{SWS}:{SWS+3}], s{sT} offen {STF}
            buffer_store_dwordx4 {vr(D+4,4)}, v{vKa}, s[{SWS}:{SWS+3}], s{sT} offen offset:16 {STF}
            buffer_store_dwordx4 {vr(D+8,4)}, v{vKb}, s[{SWS}:{SWS+3}], s{sT2} offen {STF}
            buffer_store_dwordx4 {vr(D+12,4)}, v{vKb}, s[{SWS}:{SWS+3}], s{sT2} offen offset:16 {STF}
            """)
            a.label(f"{name}_Aq")
            if not QF1: qpart(0,216); qpart(1,224 if DEF else 128)
            if DEF:
                a(f"""
                s_mov_b32 s82, s{sOFF}
                s_lshl_b32 s{sT}, s{sG}, 1
                s_add_u32 s{sT}, s{sT}, s{sFN}
                s_mul_i32 s{sT}, s{sT}, {FPSTR}
                s_lshl_b32 s{sT2}, s{sR}, 1
                s_add_u32 s{sT2}, s{sT2}, s{sTM}
                s_lshl_b32 s{sT2}, s{sT2}, 7
                s_add_u32 s{sT}, s{sT}, s{sT2}
                s_add_u32 s84, s{sT}, {FP}
                s_mov_b32 s83, 1
                """)
            a(f"s_branch {name}_p1done")
    mark_loader_start=len(a.lines)
    a.label(f"{name}_loader")
    if not FAST: loader_setup()
    def issue(c, part=None):
        st=c%NS
        L=[]
        hdr=f"""
        s_add_u32 s{sT}, s{sROT}, {c}
        s_and_b32 s{sT}, s{sT}, 7
        s_lshl_b32 s{sXC}, s{sT}, 7
        s_add_u32 s{sXC}, s{sXC}, s{sXB}
        s_mul_i32 s{sWC}, s{sT}, 196608
        s_add_u32 s{sWC}, s{sWC}, s{sWBs}
        """
        for i in range(4):
            L.append(f"s_add_u32 m0, s{sL}, {XB+st*XS+i*4096}\ns_add_u32 s{sT}, s{sXC}, {i*32768}\nbuffer_load_dwordx4 v5, s[{SX}:{SX+3}], s{sT} offen {LDX} lds")
        for jj in range(2):
            for sec in range(3):
                L.append(f"s_add_u32 m0, s{sL}, {WB+st*WS_+sec*8192+jj*4096}\ns_add_u32 s{sT}, s{sWC}, {jj*4*24576+sec*1024}\nbuffer_load_dwordx4 v6, s[{SW}:{SW+3}], s{sT} offen {LDW} lds")
        lo,hi = part if part else (0,10)
        if lo==0: a(hdr)
        for l in L[lo:hi]: a(l)
    k0=cfg.get("pro_k",5)
    issue(0)
    if FAST: nonce_load()
    issue(1,(0,k0))
    a(f"s_waitcnt vmcnt({k0})\nv_readfirstlane_b32 s{sN}, v31\ns_nop 3\ns_add_u32 s{sN}, s{sN}, 1\ns_barrier")
    if k0<10: issue(1,(k0,10))
    for c_ in range(2,NS): issue(c_)
    for c in range(7):
        issued=min(8,c+NS)
        rem=10*(issued-(c+2))
        if c==6: rem=(1 if cfg.get("wo_late") else 16) if P3V==1 else 17
        a(f"s_waitcnt vmcnt({rem})\ns_barrier")
        if c+NS<8: issue(c+NS)
        if c==5:
            a(f"""
            s_cmp_eq_u32 s{sP3BR}, 0
            s_cselect_b32 s28, s{sAWO}, s{sBWO}
            s_cselect_b32 s29, s{sAWO+1}, s{sBWO+1}
            s_mov_b32 s30, 0x80000
            s_mov_b32 s31, 0x20000
            s_lshl_b32 s{sXC}, s{sP3NS}, {7 if P3V==1 else 8}
            s_lshl_b32 s{sT}, s{sE}, 13
            s_add_u32 s{sXC}, s{sXC}, s{sT}
            """)
            if P3V==1 and cfg.get("wo_late"):
                a(f"""
                v_and_b32 v8, 31, v1
                s_lshl_b32 s{sT}, s{sE}, 5
                v_add_u32 v8, s{sT}, v8
                v_lshlrev_b32 v8, 10, v8
                s_and_b32 s{sT}, s{sP3T}, 3
                s_lshl_b32 s{sT}, s{sT}, 17
                s_lshl_b32 s{sXC}, s{sP3NS}, 7
                s_add_u32 s{sT}, s{sT}, s{sXC}
                buffer_load_dword v244, v8, s[28:31], s{sT} offen
                """)
            elif P3V==1 and cfg.get("p3rot",0):
                a(f"s_lshl_b32 s{sXC}, s{sP3NS}, 7\ns_mul_i32 s{sWC}, s{sP3NS}, {2*cfg['p3rot']}\ns_add_u32 s{sWC}, s{sWC}, s{sE}")
                for u in range(16):
                    a(f"s_add_u32 m0, s{sL}, {WOL+u*4096}")
                    a(f"s_add_u32 s{sT}, s{sWC}, {4*u}\ns_and_b32 s{sT}, s{sT}, 63\ns_lshl_b32 s{sT}, s{sT}, 13\ns_add_u32 s{sT}, s{sT}, s{sXC}")
                    a(f"buffer_load_dwordx4 v7, s[28:31], s{sT} offen lds")
            else:
              for u in range(16):
                a(f"s_add_u32 m0, s{sL}, {WOL+u*4096}")
                a(f"s_add_u32 s{sT}, s{sXC}, {u*32768+(0 if P3V==1 else 128)}")
                a(f"buffer_load_dwordx4 v7, s[28:31], s{sT} offen lds")
            if P3V==2:
                a(f"""
                v_and_b32 v8, 15, v1
                s_lshl_b32 s{sT}, s{sE}, 4
                v_add_u32 v8, s{sT}, v8
                v_lshlrev_b32 v8, 10, v8
                s_bfe_u32 s{sT}, s2, 0x30003
                s_lshl_b32 s{sT}, s{sT}, 16
                s_lshl_b32 s{sXC}, s{sP3NS}, 8
                s_add_u32 s{sT}, s{sT}, s{sXC}
                buffer_load_dword v9, v8, s[28:31], s{sT} offen
                """)
    if EC: k2_setup_regs(a,K2R)
    a(f"s_cmp_eq_u32 s{sBR}, 1\ns_cbranch_scc1 {name}_p1bar\ns_barrier\ns_branch {name}_p1bar")
    if FAST:
        blk=a.lines[mark_loader_start:]
        del a.lines[mark_loader_start:]
        a.lines[mark_entry_end:mark_entry_end]=blk
    a.label(f"{name}_p1done")
    pf.pt("epi")
    a("s_waitcnt vmcnt(0)")
    a.label(f"{name}_p1bar")
    a("s_barrier")
    R=K2R
    a(f"""
    s_cmp_lg_u32 s{sWV}, 0
    s_cbranch_scc1 {name}_nf1
    s_lshl_b32 s{sT}, s{sBR}, 3
    s_add_u32 s{sT}, s{sT}, s{sG}
    s_mul_i32 s{sT}, s{sT}, {FSTR}
    s_lshl_b32 s{sT2}, s{sR}, 7
    s_add_u32 s{sT}, s{sT}, s{sT2}
    s_add_u32 s{sT}, s{sT}, {F1}
    v_mov_b32 v12, 0
    v_mov_b32 v13, s{sN}
    buffer_store_dword v13, v12, s[{SWS}:{SWS+3}], s{sT} offen sc1
    {name}_nf1:
    """)
    pf.pt("b1")
    a(f"""
    s_mov_b32 s{R.sWAVE}, s{sWV}
    s_bfe_u32 s{R.sRB}, s2, 0x30003
    s_and_b32 s{R.sH}, s2, 7
    s_lshr_b32 s{R.sT}, s2, 6
    s_lshl_b32 s{R.sT}, s{R.sT}, 3
    s_add_u32 s{R.sH}, s{R.sH}, s{R.sT}
    v_lshlrev_b32 v3, 4, v1
    s_lshl_b32 s{R.sQB}, s{R.sRB}, 3
    s_add_u32 s{R.sQB}, s{R.sQB}, s{R.sWAVE}
    s_mov_b32 s{R.SWS}, s{sWSP}
    s_mov_b32 s{R.SWS+1}, s{sWSP+1}
    s_mov_b32 s{R.SWS+2}, {WS_USED}
    s_mov_b32 s{R.SWS+3}, 0x20000
    """)
    if EC: k2_setup_late(a,R)
    else: k2_setup_consts(a,R)
    sFA=12; sNEED=14
    a(f"""
    v_lshlrev_b32 v2, 7, v1
    s_lshr_b32 s{sFA}, s{R.sH}, 2
    s_mul_i32 s{sFA}, s{sFA}, {FSTR}
    s_add_u32 s13, s{sFA}, {F1}               ; A row
    s_add_u32 s{sFA}, s{sFA}, {F1+8*FSTR}     ; B row
    """)
    if cfg.get("wavepoll"):
        a(f"""
        s_lshl_b32 s{R.sT}, s{R.sRB}, 1
        s_lshr_b32 s{R.sT2}, s{sWV}, 1
        s_add_u32 s{R.sT2}, s{R.sT2}, s{R.sT}
        s_sub_i32 s{R.sT2}, s{R.sT2}, 2
        s_max_i32 s{R.sT2}, s{R.sT2}, 0
        s_lshl_b32 s{sNEED}, 1, s{R.sT2}
        s_lshr_b32 s{R.sT2}, s{sWV}, 2
        s_add_u32 s{R.sT2}, s{R.sT2}, s{R.sT}
        s_lshl_b32 s{R.sT2}, 1, s{R.sT2}
        s_or_b32 s{sNEED}, s{sNEED}, s{R.sT2}
        s_mov_b32 s{sNEED+1}, 0
        """)
        poll(a,"pb",R.SWS,sFA,sNEED,sNEED+1,12,2,sleep=cfg.get("sleep1",4))
    else:
        a(f"""
        s_cmp_lg_u32 s{sWV}, 0
        s_cbranch_scc1 {name}_np2
        s_lshl_b32 s{R.sT}, s{R.sRB}, 1
        s_lshl_b32 s{sNEED}, 15, s{R.sT}
        s_lshr_b32 s{sNEED}, s{sNEED}, 2          ; (0b1111 << 2rb) >> 2
        s_mov_b32 s{sNEED+1}, 0
        """)
        poll(a,"pb",R.SWS,sFA,sNEED,sNEED+1,12,2,sleep=cfg.get("sleep1",4))
        a.label(f"{name}_np2")
        a("s_waitcnt lgkmcnt(0)\ns_barrier")
    pf.pt("b2")
    if cfg.get("v_late"): k2_load_b2(a,R,HLD)
    else: k2_load_b(a,R,HLD)
    if DEF:
        a(f"s_cmp_eq_u32 s83, 0\ns_cbranch_scc1 {name}_nopq")
        for tt in range(2):
            a(f"s_add_u32 s{R.sT}, s82, {PQ+tt*1024}\nbuffer_store_dwordx4 {vr(216+8*tt,4)}, v3, s[{R.SWS}:{R.SWS+3}], s{R.sT} offen {STF}")
            a(f"s_add_u32 s{R.sT2}, s82, {PQ+tt*1024+65536}\nbuffer_store_dwordx4 {vr(220+8*tt,4)}, v3, s[{R.SWS}:{R.SWS+3}], s{R.sT2} offen {STF}")
        a(f"s_waitcnt vmcnt(4)\ns_branch {name}_pqd\n{name}_nopq:\ns_waitcnt vmcnt(0)\n{name}_pqd:\ns_barrier")
    else:
        a(f"s_waitcnt vmcnt({2 if cfg.get('v_late') else 0}) lgkmcnt(0)\ns_barrier")
    pf.pt("kv")
    if cfg.get("prio"):
        a(f"s_cmp_ge_u32 s{sWV}, 4\ns_cbranch_scc0 {name}_nprio\ns_setprio 1\n{name}_nprio:")
    def h_pre():
        a(f"s_mov_b64 exec, 0xffff\nbuffer_load_dword v13, v2, s[{R.SWS}:{R.SWS+3}], s13 offen sc1\ns_mov_b64 exec, -1")
    def h_post0():
        pf.pt("post0")
        D=a.newlabel("pa")
        a(f"""
        s_mov_b32 s{sNEED}, 0xffff
        s_mov_b32 s{sNEED+1}, 0
        s_waitcnt vmcnt(0)
        v_cmp_eq_u32 vcc, s{sN}, v13
        s_and_b64 vcc, vcc, s[{sNEED}:{sNEED+1}]
        s_cmp_eq_u64 vcc, s[{sNEED}:{sNEED+1}]
        s_cbranch_scc1 {D}
        """)
        poll(a,"pa2",R.SWS,13,sNEED,sNEED+1,13,2)
        a.label(D)
        pf.pt("aflag")
        if DEF:
            lab=a.newlabel("pqf")
            a(f"""
            s_cmp_eq_u32 s83, 0
            s_cbranch_scc1 {lab}
            v_mov_b32 v12, 0
            v_mov_b32 v13, s{sN}
            buffer_store_dword v13, v12, s[{R.SWS}:{R.SWS+3}], s84 offen sc1
            {lab}:
            """)
        k2_load_a(a,R,HLD,name,pq=not DEF)
    def pq_addr():
        a(f"""
        s_lshr_b32 s14, s{R.sH}, 1
        s_mul_i32 s14, s14, {FPSTR}
        s_lshr_b32 s15, s{R.sQB}, 1
        s_lshl_b32 s15, s15, 7
        s_add_u32 s14, s14, s15
        s_add_u32 s16, s14, {FP}
        v_mov_b32 v12, 0
        """)
    def pq_load():
        a(f"""
        s_lshl_b32 s{R.sT}, s{R.sH}, 16
        s_lshl_b32 s{R.sT2}, s{R.sQB}, 10
        s_add_u32 s{R.sT}, s{R.sT}, s{R.sT2}
        s_add_u32 s{R.sT}, s{R.sT}, {PQ}
        buffer_load_dwordx4 {vr(R.vPQ,4)}, v3, s[{R.SWS}:{R.SWS+3}], s{R.sT} offen {HLD}
        """)
    def pq_check(first):
        D=a.newlabel("pqd")
        a("s_mov_b32 s14, 1\ns_mov_b32 s15, 0")
        if first:
            a(f"""
            s_waitcnt vmcnt(0)
            v_readfirstlane_b32 s{R.sT}, v13
            s_cmp_eq_u32 s{R.sT}, s{sN}
            s_cbranch_scc1 {D}
            """)
        poll(a,"pq2",R.SWS,16,14,15,13,12,sleep=2)
        a.label(D)
        pq_load()
    def h_probe():
        lab=a.newlabel("pr")
        a(f"s_cmp_eq_u32 s{R.sRB}, 0\ns_cbranch_scc1 {lab}")
        pq_addr()
        a(f"buffer_load_dword v13, v12, s[{R.SWS}:{R.SWS+3}], s16 offen sc1\n{lab}:")
    def h_check():
        lab=a.newlabel("ck")
        a(f"s_cmp_eq_u32 s{R.sRB}, 0\ns_cbranch_scc1 {lab}")
        pq_check(True)
        a.label(lab)
    hk={"pre":h_pre,"post0":h_post0}
    if DEF: hk[("it",cfg.get("pq_at",2)+1)]=h_probe; hk[("it",cfg.get("pq_at",2))]=h_check
    AMID=cfg.get("amid",False)
    if AMID:
        OA,TMP=R.OA,R.TMP
        def h_a1():
            lab=a.newlabel("am1"); nr=a.newlabel("amr")
            RT=R.SA
            a(f"""
            s_cmp_eq_u32 s{R.sRB}, 0
            s_cbranch_scc1 {lab}
            s_waitcnt vmcnt(0) lgkmcnt(0)
            s_barrier
            v_lshlrev_b32 v{R.vRA}, 2, v0
            v_cmp_gt_u32 vcc, 272, v0
            s_and_saveexec_b64 s[28:29], vcc
            s_cbranch_execz {nr}
            """)
            for p in range(12): a(f"ds_read_b32 v{RT+p}, v{R.vRA} offset:{R.KVL+p*1088}")
            for p in range(1,4):
                a(f"s_waitcnt lgkmcnt({11-p})\nv_add_f32 v{RT}, v{RT}, v{RT+p}")
            for p in range(12,16): a(f"ds_read_b32 v{RT+p}, v{R.vRA} offset:{R.KVL+p*1088}")
            for p in range(4,16):
                a(f"s_waitcnt lgkmcnt({15-p})\nv_add_f32 v{RT}, v{RT}, v{RT+p}")
            a(f"""
            ds_write_b32 v{R.vRA}, v{RT} offset:{R.RED}
            {nr}:
            s_mov_b64 exec, s[28:29]
            s_waitcnt lgkmcnt(0)
            {lab}:
            """)
        def h_a2():
            lab=a.newlabel("am2")
            a(f"""
            s_cmp_eq_u32 s{R.sRB}, 0
            s_cbranch_scc1 {lab}
            s_barrier
            ds_read_b128 {vr(TMP+8,4)}, v{R.vKVA}
            ds_read_b128 {vr(TMP+12,4)}, v{R.vKVA} offset:16
            s_waitcnt lgkmcnt(0)
            """)
            for i in range(4): a(f"v_cvt_pk_bf16_f32 v{TMP+8+i}, v{TMP+8+2*i}, v{TMP+8+2*i+1}")
            a("s_nop 1")
            a(f"v_mfma_f32_32x32x16_bf16 {vr(OA,16)}, {vr(TMP+8,4)}, {vr(R.vPQ,4)}, 0")
            a.label(lab)
        def h_a3():
            lab=a.newlabel("am3")
            a(f"""
            s_cmp_eq_u32 s{R.sRB}, 0
            s_cbranch_scc1 {lab}
            v_add_f32 v{OA+8}, {f2u(1e-6):#x}, v{OA+8}
            s_lshl_b32 s{R.sT}, s{R.sQB}, 5
            s_add_u32 s{R.sT}, s{R.sT}, s{R.sH}
            v_rcp_f32 v{OA+8}, v{OA+8}
            s_lshl_b32 s{R.sT}, s{R.sT}, 10
            s_add_u32 s{R.sT}, s{R.sT}, {OF}
            """)
            for r in range(8): a(f"v_mul_f32 v{OA+r}, v{OA+r}, v{OA+8}")
            for i in range(4): a(f"v_cvt_pk_bf16_f32 v{TMP+4+i}, v{OA+2*i}, v{OA+2*i+1}")
            a(f"buffer_store_dwordx4 {vr(TMP+4,4)}, v3, s[{R.SWS}:{R.SWS+3}], s{R.sT} offen {STF}")
            a.label(lab)
        t1,t2,t3=cfg.get("amid_at",[4,3,2])
        hk[("it",t1)]=h_a1; hk[("it",t2)]=h_a2; hk[("it",t3)]=h_a3
    k2_attn(a,R,name,cfg,pf,hooks=hk)
    if DEF:
        lab=a.newlabel("rb0")
        a(f"s_cmp_lg_u32 s{R.sRB}, 0\ns_cbranch_scc1 {lab}")
        pq_addr(); pq_check(False)
        a.label(lab)
    a(f"""
    s_lshl_b32 s{R.sT}, s{R.sQB}, 5
    s_add_u32 s{R.sT}, s{R.sT}, s{R.sH}
    s_lshl_b32 s{R.sT}, s{R.sT}, 10
    s_add_u32 s{R.sOB}, s{R.sT}, {OF}
    s_add_u32 s{R.sT}, s{R.sOB}, {64*32*1024}
    buffer_store_dwordx4 {vr(R.TMP,4)}, v3, s[{R.SWS}:{R.SWS+3}], s{R.sT} offen {STF}
    """)
    pf.pt("att")
    if AMID: a(f"s_cmp_lg_u32 s{R.sRB}, 0\ns_cbranch_scc1 {name}_adone")
    a("s_waitcnt vmcnt(1)\ns_barrier")
    pf.pt("kvp")
    k2_apart(a,R,name)
    pf.pt("apart")
    a(f"buffer_store_dwordx4 {vr(R.TMP+4,4)}, v3, s[{R.SWS}:{R.SWS+3}], s{R.sOB} offen {STF}")
    if AMID: a.label(f"{name}_adone")
    a("s_waitcnt vmcnt(0)")
    DYN=cfg.get("p3dyn",False); MW=32768
    if DYN:
        a(f"v_mov_b32 v12, {MW}\nv_mov_b32 v13, 0\nds_write_b32 v12, v13\ns_waitcnt lgkmcnt(0)")
    pf.pt("odrain")
    a("s_barrier")
    pf.pt("b5")
    if P3V==1 and cfg.get("wo_late"):
        a(f"""
        s_cmp_lt_u32 s{sWV}, 4
        s_cbranch_scc1 {name}_wod
        v_lshrrev_b32 v4, 3, v1
        v_and_b32 v5, 7, v1
        v_bfe_u32 v6, v1, 4, 1
        v_lshlrev_b32 v6, 2, v6
        v_xor_b32 v6, v6, v5
        v_lshlrev_b32 v7, 10, v4
        v_lshl_add_u32 v7, v6, 4, v7
        s_cmp_eq_u32 s{sP3BR}, 0
        s_cselect_b32 s16, s{sAWO}, s{sBWO}
        s_cselect_b32 s17, s{sAWO+1}, s{sBWO+1}
        s_mov_b32 s18, 0x80000
        s_mov_b32 s19, 0x20000
        s_sub_u32 s29, s{sWV}, 4
        s_lshl_b32 s28, s{sP3NS}, 7
        s_lshl_b32 s{R.sT}, s29, 13
        s_add_u32 s28, s28, s{R.sT}
        s_lshl_b32 s29, s29, 10
        """)
        for u in range(16):
            a(f"s_add_u32 m0, s29, {WOL+u*4096}\ns_add_u32 s{R.sT}, s28, {u*32768}\nbuffer_load_dwordx4 v7, s[16:19], s{R.sT} offen lds")
        a.label(f"{name}_wod")
    if P3V==2:
        WOL0=32768
        a(f"""
        s_cmp_lt_u32 s{sWV}, 4
        s_cbranch_scc1 {name}_wod
        v_lshrrev_b32 v4, 3, v1
        v_and_b32 v5, 7, v1
        v_bfe_u32 v6, v1, 4, 1
        v_lshlrev_b32 v6, 2, v6
        v_xor_b32 v6, v6, v5
        v_lshlrev_b32 v7, 10, v4
        v_lshl_add_u32 v7, v6, 4, v7
        s_cmp_eq_u32 s{sP3BR}, 0
        s_cselect_b32 s16, s{sAWO}, s{sBWO}
        s_cselect_b32 s17, s{sAWO+1}, s{sBWO+1}
        s_mov_b32 s18, 0x80000
        s_mov_b32 s19, 0x20000
        s_sub_u32 s29, s{sWV}, 4
        s_lshl_b32 s28, s{sP3NS}, 8
        s_lshl_b32 s{R.sT}, s29, 13
        s_add_u32 s28, s28, s{R.sT}
        s_lshl_b32 s29, s29, 10
        """)
        for u in range(16):
            a(f"s_add_u32 m0, s29, {WOL0+u*4096}\ns_add_u32 s{R.sT}, s28, {u*32768}\nbuffer_load_dwordx4 v7, s[16:19], s{R.sT} offen lds")
        a.label(f"{name}_wod")
    a(f"""
    s_cmp_lg_u32 s{sWV}, 0
    s_cbranch_scc1 {name}_nf2
    s_mul_i32 s{R.sT}, s{R.sRB}, {F2STR}
    s_lshl_b32 s{R.sT2}, s{R.sH}, 7
    s_add_u32 s{R.sT}, s{R.sT}, s{R.sT2}
    s_add_u32 s{R.sT}, s{R.sT}, {F2}
    v_mov_b32 v12, 0
    v_mov_b32 v13, s{sN}
    buffer_store_dword v13, v12, s[{R.SWS}:{R.SWS+3}], s{R.sT} offen sc1
    """)
    if not DYN:
        a(f"""
        s_lshr_b32 s{sFA}, s{sP3T}, {2 if P3V==2 else 1}
        s_mul_i32 s{sFA}, s{sFA}, {F2STR}
        s_add_u32 s{sFA}, s{sFA}, {F2}
        s_mov_b32 s{sNEED}, -1
        s_mov_b32 s{sNEED+1}, 0
        """)
        poll(a,"p3",R.SWS,sFA,sNEED,sNEED+1,12,2,sleep=cfg.get("sleep2",4))
        a.label(f"{name}_nf2")
        if P3V==2 or cfg.get("wo_late"): a("s_waitcnt vmcnt(0)")
        a("s_barrier")
        pf.pt("f2")
    else:
        a.label(f"{name}_nf2")
        lw=a.newlabel("wt"); ld=a.newlabel("wd")
        a(f"""
        s_cmp_lg_u32 s{sWV}, 4
        s_cbranch_scc1 {ld}_x
        s_lshr_b32 s{sFA}, s{sP3T}, 1
        s_mul_i32 s{sFA}, s{sFA}, {F2STR}
        s_add_u32 s{sFA}, s{sFA}, {F2}
        s_mov_b32 s{sCNT2}, 0
        v_mov_b32 v14, {MW}
        s_mov_b32 exec_lo, -1
        s_mov_b32 exec_hi, 0
        {lw}:
        buffer_load_dword v12, v2, s[{R.SWS}:{R.SWS+3}], s{sFA} offen sc1
        s_waitcnt vmcnt(0)
        v_cmp_eq_u32 vcc, s{sN}, v12
        s_add_u32 s{sCNT2}, s{sCNT2}, 1
        s_cmp_lt_u32 s{sCNT2}, 30000
        s_cselect_b32 s{R.sT}, vcc_lo, -1
        v_mov_b32 v13, s{R.sT}
        ds_write_b32 v14, v13
        s_cmp_eq_u32 s{R.sT}, -1
        s_cbranch_scc1 {ld}
        s_sleep {cfg.get("sleep2",1)}
        s_branch {lw}
        {ld}:
        s_waitcnt lgkmcnt(0)
        s_mov_b64 exec, -1
        {ld}_x:
        """)
    if pf.on and cfg.get("pwave",0)>=4:
        pf0.flush(len(PTS),4,2,wave=cfg["pwave"])
    if P3V==2:
        gen_p3v2(a,name,cfg,R,pf,pf0,PTS,OSTF,HLD)
        return dict(name=name, grid=256, block=512, lds=163840, vgpr=248, sgpr=102)
    if cfg.get("nonce_early"):
        a(f"""
        s_cmp_lg_u32 s2, 0
        s_cbranch_scc1 {name}_nn0
        s_cmp_lg_u32 s{sWV}, 4
        s_cbranch_scc1 {name}_nn0
        s_mov_b32 s{R.sT}, {NONCE}
        v_mov_b32 v12, 0
        v_mov_b32 v13, s{sN}
        buffer_store_dword v13, v12, s[{R.SWS}:{R.SWS+3}], s{R.sT} offen sc1
        {name}_nn0:
        """)
    a(f"s_cmp_ge_u32 s{sWV}, 4\ns_cbranch_scc1 {name}_end")
    SOUT=16; sTB=27; sOB=28
    a(f"""
    s_lshl_b32 s{sTB}, s{sP3T}, 2
    s_add_u32 s{sTB}, s{sTB}, s{sWV}
    s_lshl_b32 s{sT}, s{sP3BR}, 6
    s_add_u32 s{sT}, s{sT}, s{sTB}
    s_lshl_b32 s{sOB}, s{sT}, 15
    s_add_u32 s{sOB}, s{sOB}, {OF}
    """)
    if DYN:
        OFR=64; ACC3=32; WFR=[8,16]; vWA3=5; GS=4; NG=8; LA=cfg.get("p3_la",2)
        sRDY=40; sDONE=41; sH0=[44+i for i in range(NG)]; vWS=[[26,27],[28,29]]
        a(f"""
        s_mov_b32 s{SOUT}, s{sOUT}
        s_mov_b32 s{SOUT+1}, s{sOUT+1}
        s_mov_b32 s{SOUT+2}, 0x400000
        s_mov_b32 s{SOUT+3}, 0x20000
        v_bfe_u32 v6, v1, 2, 2
        v_lshrrev_b32 v7, 5, v1
        v_lshl_add_u32 v6, v7, 2, v6
        v_lshlrev_b32 v6, 7, v6
        v_and_b32 v7, 1, v1
        v_lshlrev_b32 v7, 1, v7
        v_bfe_u32 v24, v1, 4, 1
        v_or_b32 v7, v7, v24
        v_bfe_u32 v24, v1, 3, 1
        v_lshlrev_b32 v24, 2, v24
        v_xor_b32 v7, v7, v24
        v_lshl_add_u32 v6, v7, 4, v6
        v_bfe_u32 v24, v1, 1, 1
        v_lshl_add_u32 v{vWA3}, v24, 3, v6
        v_xor_b32 v{vWA3+1}, 64, v{vWA3}
        v_add_u32 v{vWA3}, {WOL}, v{vWA3}
        v_add_u32 v{vWA3+1}, {WOL}, v{vWA3+1}
        v_mov_b32 v30, {MW}
        s_mov_b32 s{sRDY}, 0
        s_mov_b32 s{sDONE}, 0
        """)
        def pick(it):
            L=a.newlabel("pk"); G=a.newlabel("pg")
            a(f"""
            s_mov_b32 s{sCNT2}, 0
            {L}:
            s_andn2_b32 s42, s{sRDY}, s{sDONE}
            s_cbranch_scc1 {G}
            ds_read_b32 v31, v30
            s_waitcnt lgkmcnt(0)
            v_readfirstlane_b32 s42, v31
            s_nop 2
            s_add_u32 s{sCNT2}, s{sCNT2}, 1
            s_cmp_lt_u32 s{sCNT2}, 400000
            s_cselect_b32 s42, s42, -1
            s_lshr_b32 s43, s42, 1
            s_and_b32 s42, s42, s43
            s_lshr_b32 s43, s42, 2
            s_and_b32 s42, s42, s43
            s_and_b32 s{sRDY}, s42, 0x11111111
            s_branch {L}
            {G}:
            s_ff1_i32_b32 s{sH0[it]}, s42
            s_lshl_b32 s43, 1, s{sH0[it]}
            s_or_b32 s{sDONE}, s{sDONE}, s43
            s_lshl_b32 s43, s{sH0[it]}, 10
            s_add_u32 s43, s43, s{sOB}
            """)
            for j in range(GS):
                a(f"buffer_load_dwordx4 {vr(OFR+4*(GS*it+j),4)}, v3, s[{R.SWS}:{R.SWS+3}], s43 offen offset:{j*1024} {HLD}")
        def waddr(it):
            a(f"s_lshl_b32 s43, s{sH0[it]}, 11")
            for nt in range(2): a(f"v_add_u32 v{vWS[it&1][nt]}, s43, v{vWA3+nt}")
        def rdw(s_,it,j):
            for nt in range(2):
                for t in range(2):
                    a(f"ds_read_b64_tr_b16 {vr(WFR[s_]+4*nt+2*t,2)}, v{vWS[it&1][nt]} offset:{j*2048+t*1024}")
        for it in range(LA): pick(it)
        pf.pt("f2")
        waddr(0)
        rdw(0,0,0)
        n=0
        for it in range(NG):
            if it+1<NG: waddr(it+1)
            later=min(NG,it+LA)-(it+1)
            for j in range(GS):
                s_=n&1
                nxt = (it,j+1) if j+1<GS else ((it+1,0) if it+1<NG else None)
                if nxt: rdw(s_^1,nxt[0],nxt[1])
                a(f"s_waitcnt vmcnt({(GS-1-j)+GS*later}) lgkmcnt({4 if nxt else 0})")
                for nt in range(2):
                    c = "0" if n==0 else vr(ACC3+16*nt,16)
                    a(f"v_mfma_f32_32x32x16_bf16 {vr(ACC3+16*nt,16)}, {vr(WFR[s_]+4*nt,4)}, {vr(OFR+4*(GS*it+j),4)}, {c}")
                if n==0: pf.pt("p3b0")
                n+=1
            if it+LA<NG: pick(it+LA)
    else:
        OFR=64; ACC3=32; WFR=[8,16]; vWA3=5
        DEPTH=cfg.get("p3_depth",10)
        if cfg.get("p3rot",0): a(f"s_mul_i32 s29, s{sP3NS}, {cfg['p3rot']}")
        def oload(h):
            if cfg.get("p3rot",0):
                a(f"s_add_u32 s{sT2}, s29, {h}\ns_and_b32 s{sT2}, s{sT2}, 31\ns_lshl_b32 s{sT2}, s{sT2}, 10\ns_add_u32 s{sT2}, s{sT2}, s{sOB}\nbuffer_load_dwordx4 {vr(OFR+4*h,4)}, v3, s[{R.SWS}:{R.SWS+3}], s{sT2} offen {HLD}")
            else:
                a(f"s_add_u32 s{sT2}, s{sOB}, {h*1024}\nbuffer_load_dwordx4 {vr(OFR+4*h,4)}, v3, s[{R.SWS}:{R.SWS+3}], s{sT2} offen {HLD}")
        for h in range(DEPTH): oload(h)
        a(f"""
        s_mov_b32 s{SOUT}, s{sOUT}
        s_mov_b32 s{SOUT+1}, s{sOUT+1}
        s_mov_b32 s{SOUT+2}, 0x400000
        s_mov_b32 s{SOUT+3}, 0x20000
        v_bfe_u32 v6, v1, 2, 2
        v_lshrrev_b32 v7, 5, v1
        v_lshl_add_u32 v6, v7, 2, v6
        v_lshlrev_b32 v6, 7, v6
        v_and_b32 v7, 1, v1
        v_lshlrev_b32 v7, 1, v7
        v_bfe_u32 v24, v1, 4, 1
        v_or_b32 v7, v7, v24
        v_bfe_u32 v24, v1, 3, 1
        v_lshlrev_b32 v24, 2, v24
        v_xor_b32 v7, v7, v24
        v_lshl_add_u32 v6, v7, 4, v6
        v_bfe_u32 v24, v1, 1, 1
        v_lshl_add_u32 v{vWA3}, v24, 3, v6
        v_xor_b32 v{vWA3+1}, 64, v{vWA3}
        v_add_u32 v{vWA3}, {WOL}, v{vWA3}
        v_add_u32 v{vWA3+1}, {WOL}, v{vWA3+1}
        """)
        def reads3(s,h):
            L=[]
            for nt in range(2):
                for t in range(2):
                    L.append(f"ds_read_b64_tr_b16 {vr(WFR[s]+4*nt+2*t,2)}, v{vWA3+nt} offset:{h*2048+t*1024}")
            return L
        for l in reads3(0,0): a(l)
        for h in range(32):
            s=h&1
            if h==1: pf.pt("p3b0")
            nxt=reads3(s^1,h+1) if h<31 else []
            for l in nxt: a(l)
            issued=min(32,h+DEPTH)
            a(f"s_waitcnt vmcnt({issued-h-1}) lgkmcnt({len(nxt)})")
            for nt in range(2):
                c = "0" if h==0 else vr(ACC3+16*nt,16)
                a(f"v_mfma_f32_32x32x16_bf16 {vr(ACC3+16*nt,16)}, {vr(WFR[s]+4*nt,4)}, {vr(OFR+4*h,4)}, {c}")
            if h+DEPTH<32: oload(h+DEPTH)
    pf.pt("p3loop")
    a(f"""
    s_lshl_b32 s{sT}, s{sTB}, 16
    s_lshl_b32 s{sT2}, s{sP3BR}, 10
    s_add_u32 s{sT}, s{sT}, s{sT2}
    s_lshl_b32 s{sT2}, s{sP3NS}, 7
    s_add_u32 s{sT}, s{sT}, s{sT2}
    v_and_b32 v6, 31, v1
    v_lshlrev_b32 v6, 11, v6
    v_lshrrev_b32 v7, 5, v1
    v_lshl_add_u32 v6, v7, 5, v6
    s_nop 7
    """)
    if cfg.get("outT"):
        a(f"""
        s_lshl_b32 s{sT2}, s{sWV}, 12
        v_and_b32 v8, 31, v1
        v_lshlrev_b32 v8, 7, v8                    ; token*128
        v_lshrrev_b32 v9, 5, v1
        v_lshl_add_u32 v8, v9, 5, v8               ; + hf*32
        v_and_b32 v9, 7, v1
        v_lshlrev_b32 v9, 4, v9
        v_add_u32 v8, s{sT2}, v8
        """)
        for nt in range(2):
            b=ACC3+16*nt; T=16+8*nt
            for i in range(8): a(f"v_cvt_pk_bf16_f32 v{T+i}, v{b+2*i}, v{b+2*i+1}")
        for nt in range(2):
            for u in range(2):
                a(f"v_add_u32 v10, {nt*64+u*16}, v8\nv_xor_b32 v10, v10, v9\nds_write_b128 v10, {vr(16+8*nt+4*u,4)}")
        a(f"""
        v_lshrrev_b32 v11, 3, v1
        v_and_b32 v12, 7, v1                       ; chunk
        v_xor_b32 v13, v12, v11
        v_lshlrev_b32 v13, 4, v13
        v_lshl_add_u32 v13, v11, 7, v13
        v_add_u32 v13, s{sT2}, v13
        v_lshlrev_b32 v14, 11, v11
        v_lshl_add_u32 v14, v12, 4, v14
        s_waitcnt lgkmcnt(0)
        """)
        for i in range(4): a(f"ds_read_b128 {vr(32+4*i,4)}, v13 offset:{i*1024}")
        for i in range(4):
            a(f"s_waitcnt lgkmcnt({3-i})\ns_add_u32 s{sT2}, s{sT}, {i*8*2048}\nbuffer_store_dwordx4 {vr(32+4*i,4)}, v14, s[{SOUT}:{SOUT+3}], s{sT2} offen {OSTF}")
    else:
      for nt in range(2):
        b=ACC3+16*nt; T=8+8*nt
        for i in range(8): a(f"v_cvt_pk_bf16_f32 v{T+i}, v{b+2*i}, v{b+2*i+1}")
        a(f"buffer_store_dwordx4 {vr(T,4)}, v6, s[{SOUT}:{SOUT+3}], s{sT} offen offset:{nt*64} {OSTF}")
        a(f"buffer_store_dwordx4 {vr(T+4,4)}, v6, s[{SOUT}:{SOUT+3}], s{sT} offen offset:{nt*64+16} {OSTF}")
    if not cfg.get("nonce_early"):
        a(f"""
        s_cmp_lg_u32 s2, 0
        s_cbranch_scc1 {name}_nn
        s_cmp_lg_u32 s{sWV}, 0
        s_cbranch_scc1 {name}_nn
        s_mov_b32 s{sT}, {NONCE}
        v_mov_b32 v12, 0
        v_mov_b32 v13, s{sN}
        buffer_store_dword v13, v12, s[{R.SWS}:{R.SWS+3}], s{sT} offen sc1
        {name}_nn:
        """)
    if pf.on:
        a("s_waitcnt vmcnt(0)"); pf.pt("end"); pf0.flush(len(PTS),4,2,wave=cfg.get("pwave",0) if cfg.get("pwave",0)<4 else 99)
    a.label(f"{name}_end")
    a("s_endpgm")
    if cfg.get("slow_ool"): a.lines+=R.deferred
    a.label(f"{name}_last")
    a("s_endpgm")
    return dict(name=name, grid=256, block=512, lds=163840, vgpr=248, sgpr=104 if False else 102)
```
